```python
import torch

def _softmax(x, axis=-1):
    return torch.softmax(x, dim=axis)
def _gelu(x):
    return torch.nn.functional.gelu(x, approximate="tanh")
def _silu(x):
    return torch.nn.functional.silu(x)
def _sigmoid(x):
    return torch.sigmoid(x)
def _layernorm(x, axis=-1, eps=1e-5):
    m = x.mean(dim=axis, keepdim=True)
    v = x.var(dim=axis, keepdim=True, unbiased=False)
    return (x - m) / torch.sqrt(v + eps)
def _scatter_add(tgt, idx, src, axis=0):
    return tgt.clone().index_add_(axis, idx, src)
def _segment_sum(src, seg, n):
    out = torch.zeros((n,) + src.shape[1:], dtype=src.dtype)
    return out.index_add_(0, seg, src)
def _pad(x, pw):
    flat = tuple(v for pair in reversed(pw) for v in pair)
    return torch.nn.functional.pad(x, flat)

kernel_name = 'concat_heads__mha_block_cached__gqa_block_cached__near_ridge'

def setup_inputs():

    _w = (lambda a: (lambda t: t.to(torch.bfloat16) if t.is_floating_point() else t)(torch.as_tensor(a)))
    def _A_setup():
        B, Sq, D = 16, 96, 576
        H, Sk, Dh = 32, 512, 128
        return {
            "x": _w((lambda *s: torch.randn(*s, dtype=torch.bfloat16) * 0.8)(B, Sq, D)),
            "k_cache": _w((lambda *s: torch.randn(*s, dtype=torch.bfloat16) * 0.8)(B, H, Sk, Dh)),
            "v_cache": _w((lambda *s: torch.randn(*s, dtype=torch.bfloat16) * 0.05)(B, H, Sk, Dh)),
            "wq": _w((lambda *s: torch.randn(*s, dtype=torch.bfloat16) * 0.8)(D, H * Dh) * (D ** -0.5)),
            "wo": _w((lambda *s: torch.randn(*s, dtype=torch.bfloat16) * 0.05)(H * Dh, D) * ((H * Dh) ** -0.5)),
        }
    _A_in = _A_setup()

    def _B_setup():
        B, Sq, D = 16, 96, 576
        Hq, Hkv, Sk, Dh = 32, 32, 512, 128
        assert Hq % Hkv == 0, (Hq, Hkv)
        return {
            "x": _w((lambda *s: torch.randn(*s, dtype=torch.bfloat16) * 0.8)(B, Sq, D)),
            "k_cache": _w((lambda *s: torch.randn(*s, dtype=torch.bfloat16) * 0.8)(B, Hkv, Sk, Dh)),
            "v_cache": _w((lambda *s: torch.randn(*s, dtype=torch.bfloat16) * 0.05)(B, Hkv, Sk, Dh)),
            "wq": _w((lambda *s: torch.randn(*s, dtype=torch.bfloat16) * 0.8)(D, Hq * Dh) * (D ** -0.5)),
            "wo": _w((lambda *s: torch.randn(*s, dtype=torch.bfloat16) * 0.05)(Hq * Dh, D) * ((Hq * Dh) ** -0.5)),
        }
    _B_in = _B_setup()

    return {
        "A_x": _A_in["x"],
        "A_k_cache": _A_in["k_cache"],
        "A_v_cache": _A_in["v_cache"],
        "A_wq": _A_in["wq"],
        "A_wo": _A_in["wo"],
        "B_x": _B_in["x"],
        "B_k_cache": _B_in["k_cache"],
        "B_v_cache": _B_in["v_cache"],
        "B_wq": _B_in["wq"],
        "B_wo": _B_in["wo"],
    }

def reference(A_x, A_k_cache, A_v_cache, A_wq, A_wo, B_x, B_k_cache, B_v_cache, B_wq, B_wo):
    def _A_ref(x, k_cache, v_cache, wq, wo):
        B, Sq, D = x.shape
        H, Dh = 32, 128
        q = (lambda x, *d: x.permute(*d))((x @ wq).reshape(B, Sq, H, Dh), 0, 2, 1, 3)
        scores = torch.einsum("bhqd,bhkd->bhqk", q, k_cache) * (Dh ** -0.5)
        p = _softmax(scores, axis=-1)
        o = torch.einsum("bhqk,bhkd->bhqd", p, v_cache)
        return (lambda x, *d: x.permute(*d))(o, 0, 2, 1, 3).reshape(B, Sq, H * Dh) @ wo

    def _B_ref(x, k_cache, v_cache, wq, wo):
        B, Sq, D = x.shape
        Hq, Dh = 32, 128
        Hkv = k_cache.shape[1]
        rep = Hq // Hkv
        q = (lambda x, *d: x.permute(*d))((x @ wq).reshape(B, Sq, Hq, Dh), 0, 2, 1, 3)
        k = (lambda x, n, axis: torch.repeat_interleave(x, n, dim=axis))(k_cache, rep, axis=1)
        v = (lambda x, n, axis: torch.repeat_interleave(x, n, dim=axis))(v_cache, rep, axis=1)
        scores = torch.einsum("bhqd,bhkd->bhqk", q, k) * (Dh ** -0.5)
        p = _softmax(scores, axis=-1)
        o = torch.einsum("bhqk,bhkd->bhqd", p, v)
        return (lambda x, *d: x.permute(*d))(o, 0, 2, 1, 3).reshape(B, Sq, Hq * Dh) @ wo

    a = _A_ref(A_x, A_k_cache, A_v_cache, A_wq, A_wo)
    b = _B_ref(B_x, B_k_cache, B_v_cache, B_wq, B_wo)
    return torch.concatenate([a, b], axis=-1)
```

```python
import re


def regs(kind, base, n=1):
    return {(kind, base + i) for i in range(n)}


def R(kind, base, n=1):
    return f"{kind}{base}" if n == 1 else f"{kind}[{base}:{base + n - 1}]"


class Ins:
    __slots__ = ("text", "kind", "rd", "wr", "srcc", "ab", "passes", "note", "label")

    def __init__(self, text, kind, rd=(), wr=(), srcc=(), ab=(), passes=0):
        self.text = text
        self.kind = kind
        self.rd = set(rd)
        self.wr = set(wr)
        self.srcc = set(srcc)
        self.ab = set(ab)
        self.passes = passes

    def __repr__(self):
        return self.text


_OPRE = re.compile(r"^(-?)(?:abs\()?([vas])(?:\[(\d+):(\d+)\]|(\d+))\)?$")


def opregs(op):
    op = op.strip()
    if op in ("vcc", "vcc_lo"):
        return {("s", "vcc")}
    if op in ("exec", "exec_lo", "exec_hi"):
        return set()
    if op == "m0":
        return {("s", "m0")}
    m = _OPRE.match(op)
    if not m:
        return set()
    k = m.group(2)
    if m.group(3) is not None:
        return regs(k, int(m.group(3)), int(m.group(4)) - int(m.group(3)) + 1)
    return {(k, int(m.group(5)))}


TRANS = ("v_exp_f32", "v_rcp_f32", "v_log_f32", "v_rsq_f32", "v_sqrt_f32")


def parse(text):
    t = text.split(";")[0].strip()
    if t.endswith(":"):
        return Ins(text, "label")
    parts = t.split(None, 1)
    op = parts[0]
    args = [a.strip() for a in parts[1].split(",")] if len(parts) > 1 else []
    mods = ""
    if args:
        la = args[-1].split()
        args[-1] = la[0]
        mods = " ".join(la[1:])
    if op.startswith("v_mfma"):
        d, a, b, c = (opregs(x) for x in args)
        passes = 8 if "32x32x16" in op else 4
        return Ins(text, "mfma", rd=a | b | c, wr=d, srcc=c, ab=a | b, passes=passes)
    if op.startswith("ds_read"):
        return Ins(text, "ds_read", rd=opregs(args[1]), wr=opregs(args[0]))
    if op.startswith("ds_write"):
        return Ins(text, "ds_write", rd=set().union(*[opregs(a) for a in args]))
    if op.startswith("buffer_load") or op.startswith("global_load"):
        if "lds" in mods.split():
            return Ins(text, "dma", rd=set().union(*[opregs(a) for a in args]) | {("s", "m0")})
        return Ins(text, "vmem_ld", rd=set().union(*[opregs(a) for a in args[1:]]), wr=opregs(args[0]))
    if op.startswith("buffer_store") or op.startswith("buffer_atomic"):
        i = Ins(text, "vmem_st", rd=set().union(*[opregs(a) for a in args]))
        if "x4" in op or "x3" in op:
            i.ab = opregs(args[0])
        if op.startswith("buffer_atomic") and "sc0" in mods.split():
            i.wr = opregs(args[0])
        return i
    if op in ("buffer_wbl2", "buffer_inv"):
        return Ins(text, "other")
    if op == "s_nop":
        return Ins(text, "nop", passes=int(args[0], 0) + 1)
    if op == "s_waitcnt":
        return Ins(text, "wait")
    if op == "s_barrier":
        return Ins(text, "barrier")
    if op.startswith("s_cbranch") or op in ("s_branch", "s_call_b64", "s_setpc_b64", "s_endpgm"):
        return Ins(text, "branch", rd={("s", "vcc")} if "vcc" in op else ())
    if op.startswith("s_cmp") or op.startswith("s_bitcmp"):
        return Ins(text, "salu", rd=set().union(*[opregs(a) for a in args]))
    if op.startswith("s_"):
        if not args:
            return Ins(text, "salu")
        return Ins(text, "salu", rd=set().union(set(), *[opregs(a) for a in args[1:]]), wr=opregs(args[0]))
    if op.startswith("v_permlane"):
        r = opregs(args[0]) | opregs(args[1])
        return Ins(text, "perm", rd=r, wr=r)
    if op.startswith("v_writelane"):
        return Ins(text, "valu", rd=opregs(args[1]), wr=opregs(args[0]))
    if op.startswith("v_readfirstlane") or op.startswith("v_readlane"):
        return Ins(text, "rfl", rd=opregs(args[1]), wr=opregs(args[0]))
    if op.startswith("v_"):
        rd = set().union(set(), *[opregs(a) for a in args[1:]])
        wr = opregs(args[0])
        if op.startswith("v_fmac") or op.startswith("v_pk_fmac"):
            rd |= wr
        if op.startswith("v_add_co") or op.startswith("v_addc_co"):
            wr |= opregs(args[1])
        base = op.replace("_e32", "").replace("_e64", "")
        return Ins(text, "trans" if base in TRANS else "valu", rd=rd, wr=wr)
    if op.startswith("."):
        return Ins(text, "label")
    raise ValueError("cannot parse: " + text)


VALU_KINDS = ("valu", "trans", "perm", "rfl")


def lgkm_pass(ins, pending=None):
    out = []
    pend = list(pending or [])
    for i in ins:
        if i.kind == "wait" and "lgkmcnt" in i.text:
            n = int(re.search(r"lgkmcnt\((\d+)\)", i.text).group(1))
            pend = pend[len(pend) - n:] if n < len(pend) else pend
            if n == 0:
                pend = []
            out.append(i)
            continue
        touch = i.rd | i.wr
        need = -1
        for k, s in enumerate(pend):
            if s & touch:
                need = k
        if need >= 0:
            n = len(pend) - 1 - need
            assert n <= 15, "too many DS ops in flight"
            out.append(parse(f"s_waitcnt lgkmcnt({n})"))
            pend = pend[need + 1:]
        out.append(i)
        if i.kind == "ds_read":
            pend.append(set(i.wr))
        elif i.kind == "ds_write":
            pend.append(set())
        if len(pend) > 15:
            out.append(parse("s_waitcnt lgkmcnt(15)"))
            pend = pend[-15:]
    return out, pend


def _need(p, c):
    n = 0
    vp = p.kind in VALU_KINDS
    vwr = {r for r in p.wr if r[0] in "va"}
    swr = {r for r in p.wr if r[0] == "s"}
    if vp:
        if c.kind == "mfma" and vwr & c.rd:
            n = max(n, 2)
        if c.kind == "perm" and vwr & c.rd:
            n = max(n, 2)
        if c.kind == "rfl" and vwr & c.rd:
            n = max(n, 1)
        if p.kind == "trans" and c.kind in ("valu", "perm", "rfl") and vwr & c.rd:
            n = max(n, 1)
        if swr:
            if c.kind in VALU_KINDS and swr & c.rd:
                n = max(n, 2)
            if c.kind in ("dma", "vmem_ld", "vmem_st") and swr & c.rd:
                n = max(n, 5)
            if c.kind == "salu" and swr & c.rd:
                n = max(n, 4)
    if p.kind == "mfma":
        big = 12 if p.passes == 8 else 8
        if c.kind in VALU_KINDS and p.wr & (c.rd | c.wr):
            n = max(n, big)
        if c.kind in ("ds_read", "ds_write", "vmem_ld", "vmem_st", "dma") and p.wr & (c.rd | c.wr):
            n = max(n, big)
        if c.kind == "mfma":
            if p.wr & c.ab:
                n = max(n, big)
            if p.wr & c.srcc and not (p.wr == c.srcc and p.passes == c.passes):
                n = max(n, big - 2)
            if p.wr & c.wr and not (p.wr == c.srcc):
                n = max(n, big - 2)
        if c.kind in VALU_KINDS and p.srcc & c.wr:
            n = max(n, 7 if p.passes == 8 else 3)
    if p.kind == "vmem_st" and p.ab and (c.kind in VALU_KINDS or c.kind in ("ds_read", "vmem_ld")) and p.ab & c.wr:
        n = max(n, 2)
    if p.kind == "salu" and ("s", "m0") in p.wr and c.kind == "dma":
        n = max(n, 1)
    return n


def hazard_pass(ins, history=None, verbose=False):
    out = list(history or [])
    h0 = len(out)
    added = 0
    for c in ins:
        if c.kind == "label":
            out.append(c)
            continue
        dist = 0
        short = 0
        k = len(out) - 1
        while k >= 0 and dist < 14:
            p = out[k]
            if p.kind != "label":
                need = _need(p, c)
                if need > dist:
                    short = max(short, need - dist)
                dist += p.passes if p.kind == "nop" else 1
            k -= 1
        if short:
            added += short
            if verbose:
                print("  nop", short, "before", c.text)
            out.append(parse(f"s_nop {short - 1}"))
        out.append(c)
    return out[h0:], added


class Prog:
    def __init__(self):
        self.ins = []

    def __call__(self, text):
        for line in text.split("\n"):
            line = line.strip()
            if line:
                self.ins.append(parse(line))

    def extend(self, l):
        self.ins.extend(l)


def render(ins):
    return "\n".join(("" if i.kind == "label" else " ") + i.text for i in ins) + "\n"


def est_cycles(ins):
    t = 0
    mf_free = 0
    for i in ins:
        if i.kind == "label":
            continue
        if i.kind == "mfma":
            t = max(t, mf_free)
            mf_free = t + 4 * i.passes
            t += 8
        elif i.kind == "altmfma":
            pass
        elif i.kind == "trans":
            t += 8
        elif i.kind == "nop":
            t += 4 * i.passes
        else:
            t += 4
    return max(t, mf_free)
```

```python
import copy
import math
import struct
import sys

from asmlib import Prog, parse, lgkm_pass, hazard_pass, render, est_cycles, R

KNAME = "concat_heads__mha_block_cached__gqa_block_cached__near_ridge_kernel"
K2NAME = "reduce_partials_kernel"

HDR = open("concat_heads__mha_block_cached__gqa_block_cached__near_ridge.s.ref").read().split("; Override launch")[0]


def f2u(x):
    return struct.unpack("<I", struct.pack("<f", x))[0]


class Cfg:
    mapping = "16x8"
    kvf = " nt"
    wf = ""
    xf = ""
    pstf = ""
    k2f = ""
    LA = 4
    NB = 6
    ring = 33
    ra = 12
    ra_x = 12
    free_lag = 2
    waitpair = True
    stamp = False
    pf = True
    thr = 1024.0
    dbg = None

    def __init__(self, **kw):
        for k, v in kw.items():
            assert hasattr(Cfg, k), k
            setattr(self, k, v)


pK = [4, 5, 6, 7]
pV = [8, 9]
pWq = [10, 11]
pWo = [12, 13]
vL, vBS = 14, 15
vT = [16, 17, 18, 19]
vM, vM2, vST = 20, 21, 22
FR0 = 24
NEGM = 48
S0 = 64
P0 = 96
Q0 = 112
O0 = 144
OUTV = 208
FRX = 240
sW, sB, sH = 3, 4, 5
SK, SV, SWQ, SWO, SX, SWS = 16, 20, 24, 28, 32, 36
sKV, sXo, sWQo, sWOo, sTMP, sIT, sC, sTHR, sT4K, sWSo = 42, 43, 44, 45, 46, 47, 48, 49, 50, 51
sJ = 52
MF = "v_mfma_f32_32x32x16_bf16"


def srd(n):
    return f"s[{n}:{n + 3}]"


def build_steps():
    steps = []
    for t in range(9):
        q = [("wq", t, rb, cb) for rb in range(2) for cb in range(2)] + [("x", t, rb) for rb in range(3)]
        steps.append(q)
    steps.append([("k", 0, 0), ("k", 0, 1), ("k", 1, 0), ("k", 1, 1)])
    for u in range(1, 15):
        steps.append([("k", u + 1, 0), ("k", u + 1, 1), ("v", u - 1, 0), ("v", u - 1, 1)])
    steps.append([("v", 14, 0), ("v", 14, 1), ("v", 15, 0), ("v", 15, 1)])
    for t in range(9):
        steps.append([("wo", t, rb) for rb in range(4)])
    return steps


def plan_ring(cfg):
    steps = build_steps()
    ns = len(steps)
    order = [(q, s) for s, qs in enumerate(steps) for q in qs]
    nq = len(order)
    ring = cfg.ring
    periods = -(-nq // ring)
    skips = periods * ring - nq
    best = None
    for start in range(ring):
        pos, p, used = [], start, 0
        for i, (q, s) in enumerate(order):
            if q[0] == "x" and q[2] == 0 and (p % ring) > ring - 3:
                used += ring - (p % ring)
                p += ring - (p % ring)
            pos.append(p)
            p += 1
        if used <= skips:
            best = (start, pos, skips - used)
            break
    assert best, "no ring layout"
    start, pos, left = best
    total = periods * ring
    addr = {q: (pos[i] % ring) * 4096 for i, (q, s) in enumerate(order)}
    NIT = 4
    seq = [(it, i) for it in range(NIT) for i in range(nq)]
    lastuse = {}
    issue_at = []
    nxt = 0
    gstep = lambda it, i: it * ns + order[i][1]
    for b in range(-1, NIT * ns):
        while nxt < len(seq):
            it, i = seq[nxt]
            slot = pos[i] % ring
            if slot in lastuse and lastuse[slot] > b - cfg.free_lag:
                break
            gs = gstep(it, i)
            ahead = sum(1 for k in range(max(0, nxt - 64), nxt) if gstep(*seq[k]) > b + 1)
            kindn = order[i][0][0]
            lim = cfg.ra if kindn in ("k", "v") else cfg.ra_x
            if gs > b + 1 and ahead >= lim:
                break
            lastuse[slot] = gs
            issue_at.append(b)
            nxt += 1
        assert all(gstep(*seq[k]) > b + 1 for k in range(nxt, min(nxt + 8, len(seq)))), f"ring too small at {b}"
    issue = {s: [] for s in range(ns)}
    for k, (it, i) in enumerate(seq):
        b = issue_at[k]
        if ns <= b < 2 * ns:
            issue[b - ns].append((order[i][0], it == 2))
    for k, (it, i) in enumerate(seq):
        if it == 2:
            assert issue_at[k] - issue_at[k - nq] == ns, "schedule not periodic"
    pro = [q for s in range(ns) for (q, w) in issue[s] if w]
    lin = [(q, -1) for q in pro] + [(q, s) for s in range(ns) for (q, w) in issue[s]]
    stepof = {q: s for q, s in order}
    waitn = {}
    npro = len(pro)
    for s in range(ns):
        idx = [k for k, (q, b) in enumerate(lin) if stepof[q] == s and (k < npro or not (q in pro))]
        last = max(idx)
        issued = npro + sum(len(issue[b]) for b in range(s))
        assert last < issued
        waitn[s] = min(63, 4 * (issued - 1 - last))
    return steps, addr, issue, pro, waitn


def prologue(cfg, A):
    A("s_cmp_ge_u32 s2, 256\ns_cbranch_scc1 L_done")
    A(f"v_lshrrev_b32 v1, 6, v0\nv_and_b32 v0, 63, v0\nv_readfirstlane_b32 s{sW}, v1")
    A("s_and_b32 s6, s2, 4\ns_mul_i32 s6, s6, 10\ns_add_u32 s6, s0, s6\ns_addc_u32 s7, s1, 0")
    A("s_load_dwordx2 s[40:41], s[6:7], 0\ns_load_dwordx4 s[8:11], s[6:7], 8\ns_load_dwordx4 s[12:15], s[6:7], 24")
    A("s_load_dwordx2 s[54:55], s[0:1], 96")
    A(f"s_and_b32 s53, s2, 3\ns_lshr_b32 s{sJ}, s2, 3")
    if cfg.mapping == "16x8":
        A(f"s_lshr_b32 s{sB}, s{sJ}, 1\ns_and_b32 s{sH}, s{sJ}, 1\ns_lshl_b32 s{sH}, s{sH}, 2\ns_lshl_b32 s53, s53, 3\ns_add_u32 s{sH}, s{sH}, s53")
    elif cfg.mapping == "8x16":
        A(f"s_and_b32 s56, s53, 1\ns_lshl_b32 s56, s56, 3\ns_lshr_b32 s{sB}, s{sJ}, 2\ns_add_u32 s{sB}, s{sB}, s56")
        A(f"s_lshr_b32 s56, s53, 1\ns_lshl_b32 s56, s56, 4\ns_and_b32 s{sH}, s{sJ}, 3\ns_lshl_b32 s{sH}, s{sH}, 2\ns_add_u32 s{sH}, s{sH}, s56")
    else:
        A(f"s_lshl_b32 s56, s53, 2\ns_lshr_b32 s{sB}, s{sJ}, 3\ns_add_u32 s{sB}, s{sB}, s56\ns_and_b32 s{sH}, s{sJ}, 7\ns_lshl_b32 s{sH}, s{sH}, 2")
    A(f"s_lshl_b32 s{sKV}, s{sB}, 22\ns_lshl_b32 s56, s{sH}, 17\ns_add_u32 s{sKV}, s{sKV}, s56")
    A(f"s_mul_i32 s{sXo}, s{sB}, 110592\ns_lshl_b32 s{sWQo}, s{sH}, 8\ns_mul_i32 s{sWOo}, s{sH}, 147456")
    A(f"s_and_b32 s56, s2, 4\ns_lshl_b32 s56, s56, 2\ns_add_u32 s56, s56, s{sB}\ns_lshl_b32 s56, s56, 3\ns_lshr_b32 s57, s{sH}, 2")
    A(f"s_add_u32 s56, s56, s57\ns_mul_i32 s{sWSo}, s56, 110592")
    A(f"s_mov_b32 s{sIT}, 0")
    A("s_waitcnt lgkmcnt(0)")
    for d, b, n in ((SK, 8, 0x4000000), (SV, 10, 0x4000000), (SWQ, 12, 4718592), (SWO, 14, 4718592), (SX, 40, 1769472), (SWS, 54, 290848768)):
        A(f"s_mov_b32 s{d}, s{b}\ns_mov_b32 s{d + 1}, s{b + 1}\ns_mov_b32 s{d + 2}, {n}\ns_mov_b32 s{d + 3}, 0x20000")
    A(f"s_cmp_eq_u32 s{sW}, 3\ns_cbranch_scc1 L_loader")


STAMP_BASE = 64 << 20


def stamp(cfg, A, k, who):
    if not cfg.stamp:
        return
    A("s_memrealtime s[60:61]\ns_waitcnt lgkmcnt(0)")
    A(f"s_lshl_b32 s62, s2, 10\ns_lshl_b32 s63, s{sIT}, 7\ns_add_u32 s62, s62, s63\ns_add_u32 s62, s62, {STAMP_BASE + who * 512 + 4 * k}")
    A(f"v_mov_b32 v2, s60\nv_mov_b32 v3, 0\nbuffer_store_dword v2, v3, {srd(SWS)}, s62 offen")


vK, vV, vWq, vWo, vX = 4, 8, 12, 16, 20


def loader(cfg, plan):
    steps, addr, issue, pro, waitn = plan
    A = Prog()
    A("L_loader:")
    A("v_lshrrev_b32 v1, 3, v0\nv_and_b32 v2, 7, v0\nv_lshrrev_b32 v3, 4, v0")
    A("v_and_b32 v24, 1, v3\nv_lshlrev_b32 v24, 2, v24\nv_xor_b32 v24, v24, v2\nv_lshlrev_b32 v24, 4, v24")
    A("v_lshlrev_b32 v26, 8, v1\nv_lshlrev_b32 v27, 13, v1\nv_mul_u32_u24 v28, 1152, v1")
    for g in range(4):
        A(f"v_add_u32 v25, {4 * g}, v3\nv_and_b32 v25, 7, v25\nv_xor_b32 v25, v25, v2\nv_lshlrev_b32 v25, 4, v25")
        A(f"v_add_u32 v25, {g * 1024}, v25\nv_add_u32 v{vK + g}, v25, v26")
        A(f"v_add_u32 v25, {g * (9216 - 2048)}, v25\nv_add_u32 v{vX + g}, v25, v28")
        A(f"v_add_u32 v25, {g * 1024}, v24\nv_add_u32 v{vV + g}, v25, v26")
        A(f"v_add_u32 v25, {g * (65536 - 1024)}, v24\nv_add_u32 v{vWq + g}, v25, v27")
        A(f"v_add_u32 v25, {g * (9216 - 1024)}, v24\nv_add_u32 v{vWo + g}, v25, v28")
    if cfg.pf:
        nsh = {"16x8": 16, "8x16": 8, "4x32": 4}[cfg.mapping]
        rows = 576 // nsh
        A(f"s_and_b32 s56, s{sB}, {nsh - 1}")
        A(f"v_lshrrev_b32 v30, 1, v0\nv_lshlrev_b32 v30, 13, v30\nv_and_b32 v31, 1, v0\nv_lshlrev_b32 v31, 7, v31\nv_add_u32 v30, v30, v31")
        A(f"s_mul_i32 s57, s56, {rows * 8192}\nv_add_u32 v30, s57, v30")
        A(f"v_lshlrev_b32 v31, 7, v0\ns_mul_i32 s57, s56, {rows * 256}\nv_add_u32 v31, s57, v31")
        nlines = rows * 2

        def touch(vreg, srd_, base, step):
            n = -(-nlines // 64)
            for i in range(n):
                off = min(i * 64, nlines - 64) * step
                A(f"s_add_u32 s{sTMP}, s{base}, {off}\nbuffer_load_dword v40, v{vreg}, {srd(srd_)}, s{sTMP} offen")
            return n
    else:
        touch = None

    def quad(q):
        k = q[0]
        if k == "k":
            off, base, v, sr, fl = q[1] * 8192 + q[2] * 128, sKV, vK, SK, cfg.kvf
        elif k == "v":
            off, base, v, sr, fl = q[1] * 8192 + q[2] * 128, sKV, vV, SV, cfg.kvf
        elif k == "wq":
            off, base, v, sr, fl = (q[1] * 64 + q[2] * 32) * 8192 + q[3] * 128, sWQo, vWq, SWQ, cfg.wf
        elif k == "x":
            off, base, v, sr, fl = q[2] * 32 * 1152 + q[1] * 128, sXo, vX, SX, cfg.xf
        else:
            off, base, v, sr, fl = q[2] * 32 * 1152 + q[1] * 128, sWOo, vWo, SWO, cfg.wf
        A(f"s_mov_b32 m0, {addr[q]}\ns_add_u32 s{sTMP}, s{base}, {off}")
        for g in range(4):
            A(f"buffer_load_dwordx4 v{v + g}, {srd(sr)}, s{sTMP} offen offset:{g * 1024}{fl} lds")

    stamp(cfg, A, 31, 1)
    if touch:
        touch(30, SWQ, sWQo, 4096)
    for q in pro:
        quad(q)
    A("L_litem:")
    wrapped = False
    extra = 0
    tq = []
    lin = [("quad", q) for q in pro]
    stepof = {q: s for s, qs in enumerate(steps) for q in qs}
    for s in range(len(steps)):
        last = max(k for k, e in enumerate(lin) if e[0] == "quad" and stepof[e[1]] == s and not (len(e) > 2))
        n = sum(4 if e[0] == "quad" else 1 for e in lin[last + 1:])
        A(f"s_waitcnt vmcnt({min(n, 63)})")
        if s in (0, 9, 25):
            stamp(cfg, A, {0: 0, 9: 1, 25: 2}[s], 1)
            if cfg.stamp:
                lin.append(("touch",))
        A("s_barrier")
        if touch and s == 9:
            lin += [("touch",)] * touch(31, SWO, sWOo, 128)
        if touch and s == 11:
            A(f"s_add_u32 s58, s{sWQo}, 256")
            lin += [("touch",)] * touch(30, SWQ, 58, 4096)
        for (q, w) in issue[s]:
            if w and not wrapped:
                wrapped = True
                A(f"s_add_u32 s{sWQo}, s{sWQo}, 256\ns_cmp_eq_u32 s{sIT}, 3")
                A(f"s_cselect_b32 s{SWQ + 2}, 0, s{SWQ + 2}\ns_cselect_b32 s{SX + 2}, 0, s{SX + 2}")
            quad(q)
            lin.append(("quad", q, "w") if w else ("quad", q))
    assert all(e[0] == "quad" for e in lin[-len(pro):]) and [e[1] for e in lin[-len(pro):]] == pro
    A(f"s_add_u32 s{sKV}, s{sKV}, 0x20000\ns_add_u32 s{sWOo}, s{sWOo}, 147456")
    A(f"s_add_u32 s{sIT}, s{sIT}, 1\ns_cmp_lt_u32 s{sIT}, 4\ns_cbranch_scc1 L_litem")
    A("s_waitcnt vmcnt(0)\ns_endpgm")
    ins, _ = hazard_pass(A.ins)
    return ins


class Sched:
    def __init__(self, cfg, addr):
        self.cfg, self.addr = cfg, addr
        self.bias = {}
        self.nbuf = 0
        self.out = Prog()

    def fbuf(self):
        i = self.nbuf % self.cfg.NB
        self.nbuf += 1
        return FR0 + 4 * i if i < 6 else FRX + 4 * (i - 6)

    def read(self, op, dst, n, preg, a):
        b = self.bias[preg]
        if not (0 <= a - b <= 65535):
            nb = a & ~4095
            self.out(f"v_add_u32 v{preg}, {(nb - b) & 0xffffffff}, v{preg}")
            self.bias[preg] = b = nb
        self.out(f"{op} {R('v', dst, n)}, v{preg} offset:{a - b}")

    def rebias(self, preg, nb):
        b = self.bias[preg]
        if b != nb:
            self.out(f"v_add_u32 v{preg}, {(nb - b) & 0xffffffff}, v{preg}")
            self.bias[preg] = nb


def acc_out(nb):
    return R("a", 16 * nb, 16) if nb < 16 else R("v", OUTV + 16 * (nb - 16), 16)


def build_ops(addr):
    ops = []
    XB = S0
    for t in range(9):
        order = [(s, b) for s in range(4) for b in range(4)] if t < 8 else [(s, b) for b in range(4) for s in range(4)]
        seen = set()
        for (s, b) in order:
            qa = addr[("wq", t, s >> 1, b >> 1)] + (16 * (s & 1)) * 128
            xb = XB + 4 * ((t * 4 + s) % 8)
            o = dict(step=t, a=[("tr", pWq[b & 1], qa), ("tr", pWq[b & 1], qa + 4 * 128)], b=R("v", xb, 4),
                     d=R("v", O0 + 16 * b, 16))
            o["c"] = "0" if (t == 0 and s == 0) else o["d"]
            if s not in seen:
                seen.add(s)
                o["x"] = (xb, pK[s], addr[("x", t, 0)])
            ops.append(o)

    def qk(u, step):
        for ds in range(8):
            d = R("v", S0 + 16 * (u & 1) if u else O0, 16)
            c = d if ds else ("0" if u < 2 else R("v", NEGM, 16))
            ops.append(dict(step=step, a=[("b128", pK[ds & 3], addr[("k", u, ds >> 2)])], b=R("v", Q0 + 4 * ds, 4), d=d, c=c))

    def pv(u, step, bmajor=False):
        order = [(s, b) for s in range(2) for b in range(4)] if not bmajor else [(s, b) for b in range(4) for s in range(2)]
        for (s, b) in order:
            va = addr[("v", u, b >> 1)] + 16 * s * 128
            d = R("v", O0 + 16 * b, 16)
            ops.append(dict(step=step, a=[("tr", pV[b & 1], va), ("tr", pV[b & 1], va + 8 * 128)],
                            b=R("v", P0 + 8 * (u & 1) + 4 * s, 4), d=d, c="0" if (u == 0 and s == 0) else d))
    qk(0, 9)
    qk(1, 9)
    for u in range(1, 15):
        qk(u + 1, 9 + u)
        pv(u - 1, 9 + u)
    pv(14, 24)
    pv(15, 24, True)
    for t in range(9):
        for b in range(4):
            for s in range(2):
                for half in range(2):
                    wa = addr[("wo", t, b)] + 16 * s * 128
                    d = acc_out(2 * t + half)
                    ops.append(dict(step=25 + t, a=[("tr", pWo[half], wa), ("tr", pWo[half], wa + 8 * 128)],
                                    b=R("v", Q0 + 8 * b + 4 * s, 4), d=d, c=d))
    assert len(ops) == 544
    return ops


def softmax_ops(u, first=False):
    S, P = S0 + 16 * (u & 1), P0 + 8 * (u & 1)
    if first:
        S = O0
    l = []
    for k in range(8):
        a, b = vT[2 * (k & 1)], vT[2 * (k & 1) + 1]
        pa, pb = vT[2 * ((k - 1) & 1)], vT[2 * ((k - 1) & 1) + 1]
        l.append(f"v_exp_f32 v{a}, v{S + 2 * k}")
        if k == 1:
            l.append(f"v_add_f32 v{vBS}, v{pa}, v{pb}")
        elif k > 1:
            l.append(f"v_add_f32 v{vBS}, v{vBS}, v{pa}")
        l.append(f"v_exp_f32 v{b}, v{S + 2 * k + 1}")
        if k > 1:
            l.append(f"v_add_f32 v{vBS}, v{vBS}, v{pb}")
        if k >= 1:
            l.append(f"v_cvt_pk_bf16_f32 v{P + k - 1}, v{pa}, v{pb}")
    a, b = vT[2], vT[3]
    l.append(f"v_add_f32 v{vBS}, v{vBS}, v{a}")
    l.append(f"v_cvt_pk_bf16_f32 v{P + 7}, v{a}, v{b}")
    l.append(f"v_add_f32 v{vBS}, v{vBS}, v{b}")
    return l


def spread(fill, ops_list, s0, s1):
    n = s1 - s0 + 1
    cost = [2 if o.startswith("v_exp") else 1 for o in ops_list]
    tot = sum(cost)
    acc = 0
    for o, c in zip(ops_list, cost):
        k = min(n - 1, int((acc + c / 2) * n / tot))
        fill.setdefault(s0 + k, []).append(o)
        acc += c


def conv_block(b, scale):
    l = []
    for k in range(8):
        r = O0 + 16 * b + 2 * k
        l.append(f"v_mul_f32 v{r}, {scale}, v{r}")
        l.append(f"v_mul_f32 v{r + 1}, {scale}, v{r + 1}")
        if k:
            l.append(f"v_cvt_pk_bf16_f32 v{Q0 + 8 * b + k - 1}, v{r - 2}, v{r - 1}")
    l.append(f"v_cvt_pk_bf16_f32 v{Q0 + 8 * b + 7}, v{O0 + 16 * b + 14}, v{O0 + 16 * b + 15}")
    return l


def rowmax(S):
    l = [f"v_max3_f32 v{vM}, v{S}, v{S + 1}, v{S + 2}"]
    for k in range(6):
        l.append(f"v_max3_f32 v{vM}, v{vM}, v{S + 3 + 2 * k}, v{S + 4 + 2 * k}")
    l.append(f"v_max_f32 v{vM}, v{vM}, v{S + 15}")
    l.append(f"v_mov_b32 v{vM2}, v{vM}")
    l.append(f"v_permlane32_swap_b32 v{vM}, v{vM2}")
    l.append(f"v_max_f32 v{vM}, v{vM}, v{vM2}")
    return l


def build_fill(cfg):
    fill, post = {}, {}
    spread(fill, conv_block(0, f"s{sC}"), 135, 138)
    spread(fill, conv_block(1, f"s{sC}"), 139, 142)
    spread(fill, conv_block(2, f"s{sC}"), 143, 146)
    spread(fill, conv_block(3, f"s{sC}"), 147, 149)
    spread(fill, rowmax(O0) + [f"v_sub_f32 v{NEGM + i}, 0, v{vM}" for i in range(16)], 155, 159)
    sub0 = [f"v_sub_f32 v{O0 + i}, v{O0 + i}, v{vM}" for i in range(16)]
    sm0 = softmax_ops(0, True)
    l0 = sub0[:4]
    k = 4
    for o in sm0:
        l0.append(o)
        if o.startswith("v_exp") and k < 16:
            l0.append(sub0[k])
            k += 1
    l0.append(f"v_mov_b32 v{vL}, v{vBS}")
    spread(fill, l0, 160, 167)
    sub1 = [f"v_sub_f32 v{S0 + 16 + i}, v{S0 + 16 + i}, v{vM}" for i in range(16)]
    l1 = sub1[:4]
    k = 4
    for o in softmax_ops(1):
        l1.append(o)
        if o.startswith("v_exp") and k < 16:
            l1.append(sub1[k])
            k += 1
    spread(fill, l1 + [f"v_cmp_lt_f32 vcc, s{sTHR}, v{vBS}"], 168, 175)
    post[175] = 1
    for u in range(2, 15):
        su = 160 + 16 * (u - 1)
        spread(fill, softmax_ops(u) + [f"v_cmp_lt_f32 vcc, s{sTHR}, v{vBS}"], su, su + 15)
        post[su + 15] = u
    spread(fill, softmax_ops(15) + [f"v_cmp_lt_f32 vcc, s{sTHR}, v{vBS}"], 384, 391)
    post[391] = 15
    spread(fill, [f"v_mov_b32 v{vM2}, v{vL}", f"v_permlane32_swap_b32 v{vL}, v{vM2}", f"v_add_f32 v{vL}, v{vL}, v{vM2}",
                  f"v_rcp_f32 v{vM}, v{vL}"], 393, 396)
    spread(fill, conv_block(0, f"v{vM}"), 397, 399)
    spread(fill, conv_block(1, f"v{vM}"), 400, 403)
    spread(fill, conv_block(2, f"v{vM}"), 404, 407)
    spread(fill, conv_block(3, f"v{vM}"), 408, 411)
    return fill, post


def store_block(cfg, nb, tmp, pk):
    l = []
    src = tmp if nb < 16 else OUTV + 16 * (nb - 16)
    for u in range(2):
        for k in range(4):
            i = 8 * u + 2 * k
            if nb < 16:
                l.append(f"v_accvgpr_read_b32 v{tmp + i}, a{16 * nb + i}")
                l.append(f"v_accvgpr_read_b32 v{tmp + i + 1}, a{16 * nb + i + 1}")
        for k in range(4):
            i = 8 * u + 2 * k
            l.append(f"v_cvt_pk_bf16_f32 v{pk + 4 * u + k}, v{src + i}, v{src + i + 1}")
        l.append(f"buffer_store_dwordx4 {R('v', pk + 4 * u, 4)}, v{vST}, {srd(SWS)}, s{sWSo} offen offset:{((nb & 1) * 2 + u) * 1024}{cfg.pstf}")
    if nb & 1:
        l.append(f"s_add_u32 s{sWSo}, s{sWSo}, 4096")
    return l


def emit_slots(cfg, sc, ops, fill, post, lo, hi, first_read, stubs, last_read=None):
    LA = cfg.LA
    rd = first_read
    nmax = len(ops) if last_read is None else last_read
    for i in range(lo, hi):
        while rd < min(i + LA + 1, nmax):
            o = ops[rd]
            if rd == 0 or ops[rd - 1]["step"] != o["step"]:
                if o["step"] in (0, 9, 25):
                    stamp(cfg, sc.out, {0: 0, 9: 1, 25: 2}[o["step"]], 0)
                sc.out("s_barrier")
            if rd == 144:
                for p in pK:
                    sc.out(f"v_subrev_u32 v{p}, s{sT4K}, v{p}")
            if "x" in o:
                sc.read("ds_read_b128", o["x"][0], 4, o["x"][1], o["x"][2])
            fb = sc.fbuf()
            o["areg"] = fb
            if o["a"][0][0] == "b128":
                sc.read("ds_read_b128", fb, 4, o["a"][0][1], o["a"][0][2])
            else:
                sc.read("ds_read_b64_tr_b16", fb, 2, o["a"][0][1], o["a"][0][2])
                sc.read("ds_read_b64_tr_b16", fb + 2, 2, o["a"][1][1], o["a"][1][2])
            rd += 1
        if i < 0:
            continue
        for f in fill.get(i, []):
            sc.out(f)
        o = ops[i]
        m = parse(f"{MF} {o['d']}, {R('v', o['areg'], 4)}, {o['b']}, {o['c']}")
        if cfg.waitpair and i % 2 == 0 and i + 1 < rd:
            m2 = parse(f"s_nop 0")
            m.rd = set(m.rd)
            m.wr = set(m.wr)
            m_extra = {("v", ops[i + 1]["areg"] + k) for k in range(4)}
            m.rd |= m_extra
        sc.out.ins.append(m)
        if i in post:
            u = post[i]
            tag = f"{u}_{len(stubs)}"
            sc.out(f"s_cbranch_vccnz L_stub_{tag}\nL_back_{tag}:")
            sc.out(f"v_add_f32 v{vL}, v{vL}, v{vBS}")
            stubs.append((tag, u & 1))
    return rd


def rare_routine(p):
    A = Prog()
    S, Sn, P = S0 + 16 * p, S0 + 16 * (1 - p), P0 + 8 * p
    A(f"L_rare{p}:\ns_nop 15\ns_nop 15")
    A("\n".join(rowmax(S)))
    A(f"v_max_f32 v{vM}, 0, v{vM}")
    for i in range(16):
        A(f"v_sub_f32 v{NEGM + i}, v{NEGM + i}, v{vM}\nv_sub_f32 v{S + i}, v{S + i}, v{vM}\nv_sub_f32 v{Sn + i}, v{Sn + i}, v{vM}")
    A(f"v_sub_f32 v{vM2}, 0, v{vM}\nv_exp_f32 v{vM2}, v{vM2}\ns_nop 0\nv_mul_f32 v{vL}, v{vL}, v{vM2}")
    for i in range(64):
        A(f"v_mul_f32 v{O0 + i}, v{O0 + i}, v{vM2}")
    A("\n".join(softmax_ops(p)))
    A("s_nop 3\ns_setpc_b64 s[40:41]")
    ins, _ = hazard_pass(A.ins)
    return ins


def compute(cfg, plan):
    steps, addr, issue, pro, waitn = plan
    A = Prog()
    A(f"s_lshl_b32 s{sT4K}, s{sW}, 12\ns_mov_b32 s{sC}, {hex(f2u(math.log2(math.e) / math.sqrt(128.0)))}\ns_mov_b32 s{sTHR}, {hex(f2u(cfg.thr))}")
    A("v_lshrrev_b32 v1, 5, v0\nv_and_b32 v2, 31, v0\nv_lshrrev_b32 v3, 1, v2\nv_and_b32 v3, 7, v3\nv_xor_b32 v3, v3, v1")
    A(f"v_lshlrev_b32 v2, 7, v2\nv_add_u32 v2, s{sT4K}, v2")
    for j in range(4):
        A(f"v_xor_b32 v16, {2 * j}, v3\nv_lshl_add_u32 v{pK[j]}, v16, 4, v2")
    A("v_lshrrev_b32 v2, 2, v0\nv_and_b32 v2, 3, v2\nv_lshrrev_b32 v3, 1, v2\nv_lshlrev_b32 v3, 6, v3")
    A("v_lshrrev_b32 v16, 4, v0\nv_and_b32 v16, 1, v16\nv_and_b32 v17, 1, v0\nv_lshrrev_b32 v18, 1, v0\nv_and_b32 v18, 1, v18")
    A("v_lshl_add_u32 v19, v1, 2, v2\nv_lshlrev_b32 v19, 7, v19\nv_lshl_add_u32 v20, v1, 3, v2\nv_lshlrev_b32 v20, 7, v20")
    A("v_lshlrev_b32 v21, 5, v16\nv_lshl_add_u32 v21, v17, 3, v21\nv_lshl_add_u32 v21, v18, 4, v21\nv_add_u32 v21, v21, v19")
    A(f"v_add_u32 v{pV[0]}, v21, v3\nv_xor_b32 v{pV[1]}, 64, v{pV[0]}")
    A("v_lshlrev_b32 v21, 5, v16\nv_lshl_add_u32 v21, v17, 4, v21\nv_lshl_add_u32 v21, v18, 3, v21\nv_add_u32 v21, v21, v20")
    A(f"v_add_u32 v{pWq[0]}, v21, v3\nv_xor_b32 v{pWq[1]}, 64, v{pWq[0]}")
    A("v_lshlrev_b32 v21, 5, v17\nv_lshl_add_u32 v21, v16, 4, v21\nv_lshl_add_u32 v21, v18, 3, v21\nv_add_u32 v21, v21, v19")
    A(f"v_add_u32 v{pWo[0]}, v21, v3\nv_xor_b32 v{pWo[1]}, 64, v{pWo[0]}")
    A(f"s_mul_i32 s56, s{sW}, 36864\nv_lshlrev_b32 v{vST}, 4, v0\nv_add_u32 v{vST}, s56, v{vST}")
    for i in range(256):
        A(f"v_accvgpr_write_b32 a{i}, 0")
    for i in range(32):
        A(f"v_mov_b32 v{OUTV + i}, 0")
    head, _ = hazard_pass(A.ins)

    ops = build_ops(addr)
    fill, post = build_fill(cfg)
    sc = Sched(cfg, addr)
    for p in pK + pV + pWq + pWo:
        sc.bias[p] = 0
    stubs = []
    sc.out("L_item:")
    split = 416
    rd = emit_slots(cfg, sc, ops, fill, post, -cfg.LA, split, 0, stubs)
    sc.out(f"s_cmp_eq_u32 s{sIT}, 3\ns_cbranch_scc1 L_last")
    common, pend = lgkm_pass(sc.out.ins)
    common, n0 = hazard_pass(common, verbose=cfg.dbg == "nops")
    sa = copy.deepcopy(sc)
    sa.out = Prog()
    opsa = copy.deepcopy(ops)
    emit_slots(cfg, sa, opsa, {}, {}, split, 544, rd, stubs)
    for p in pK + pV + pWq + pWo:
        sa.rebias(p, 0)
    for p in pK:
        sa.out(f"v_add_u32 v{p}, s{sT4K}, v{p}")
    sa.out(f"s_add_u32 s{sIT}, s{sIT}, 1\ns_branch L_item")
    conta, pe = lgkm_pass(sa.out.ins, pend)
    assert not pe
    conta, n1 = hazard_pass(conta, history=common[-20:])
    sb = copy.deepcopy(sc)
    sb.out = Prog()
    sb.out("L_last:")
    opsb = copy.deepcopy(ops)
    fb = {}
    for t in range(1, 9):
        s0 = 400 + 16 * t
        spread(fb, store_block(cfg, 2 * t - 2, S0, P0) + store_block(cfg, 2 * t - 1, S0 + 16, P0 + 8), s0 + 3, s0 + 15)
    emit_slots(cfg, sb, opsb, fb, {}, split, 544, rd, stubs)
    sb.out("\n".join(store_block(cfg, 16, S0, P0) + store_block(cfg, 17, S0 + 16, P0 + 8)))
    stamp(cfg, sb.out, 3, 0)
    sb.out("s_endpgm")
    contb, _ = lgkm_pass(sb.out.ins, pend)
    contb, n2 = hazard_pass(contb, history=common[-20:], verbose=cfg.dbg == "nops")
    st = Prog()
    for tag, p in stubs:
        st(f"L_stub_{tag}:\ns_call_b64 s[40:41], L_rare{p}\ns_branch L_back_{tag}")
    info = dict(nops=(n0, n1, n2), est_item=est_cycles(common + conta), est_last=est_cycles(common + contb))
    return head + common + conta + contb + st.ins + rare_routine(0) + rare_routine(1), info


def reduce_kernel(cfg):
    A = Prog()
    A("s_cmp_ge_u32 s2, 864\ns_cbranch_scc1 L_rdone")
    A("s_load_dwordx2 s[4:5], s[0:1], 80\ns_load_dwordx2 s[6:7], s[0:1], 96")
    A(f"s_mul_hi_u32 s8, s2, {(2 ** 32 + 26) // 27}\ns_mul_i32 s9, s8, 27\ns_sub_u32 s9, s2, s9")
    A(f"s_mul_hi_u32 s10, s9, {(2 ** 32 + 8) // 9}\ns_mul_i32 s11, s10, 9\ns_sub_u32 s11, s9, s11")
    A("s_mul_i32 s20, s8, 884736\ns_lshl_b32 s21, s9, 12\ns_add_u32 s20, s20, s21\nv_lshlrev_b32 v1, 4, v0")
    A("s_and_b32 s21, s8, 15\ns_mul_i32 s21, s21, 96\ns_lshl_b32 s22, s10, 5\ns_add_u32 s21, s21, s22\ns_mul_i32 s21, s21, 2304")
    A("s_lshr_b32 s22, s8, 4\ns_mul_i32 s22, s22, 1152\ns_add_u32 s21, s21, s22\ns_lshl_b32 s22, s11, 7\ns_add_u32 s21, s21, s22")
    A("v_and_b32 v2, 31, v0\nv_mul_u32_u24 v2, 2304, v2\nv_lshrrev_b32 v3, 7, v0\nv_lshl_add_u32 v2, v3, 6, v2")
    A("v_bfe_u32 v3, v0, 5, 1\nv_lshl_add_u32 v2, v3, 5, v2\nv_bfe_u32 v3, v0, 6, 1\nv_lshl_add_u32 v2, v3, 4, v2")
    A("s_waitcnt lgkmcnt(0)")
    A("s_mov_b32 s12, s6\ns_mov_b32 s13, s7\ns_mov_b32 s14, 28311552\ns_mov_b32 s15, 0x20000")
    A("s_mov_b32 s16, s4\ns_mov_b32 s17, s5\ns_mov_b32 s18, 3538944\ns_mov_b32 s19, 0x20000")
    for j in range(8):
        A(f"buffer_load_dwordx4 v[{8 + 4 * j}:{11 + 4 * j}], v1, s[12:15], s20 offen{cfg.k2f}\ns_add_u32 s20, s20, 110592")
    for j in range(8):
        A(f"s_waitcnt vmcnt({7 - j})")
        for k in range(4):
            r = 8 + 4 * j + k
            if j == 0:
                A(f"v_lshlrev_b32 v{40 + 2 * k}, 16, v{r}\nv_and_b32 v{41 + 2 * k}, 0xffff0000, v{r}")
            else:
                A(f"v_lshlrev_b32 v4, 16, v{r}\nv_and_b32 v5, 0xffff0000, v{r}")
                A(f"v_add_f32 v{40 + 2 * k}, v{40 + 2 * k}, v4\nv_add_f32 v{41 + 2 * k}, v{41 + 2 * k}, v5")
    for k in range(4):
        A(f"v_cvt_pk_bf16_f32 v{48 + k}, v{40 + 2 * k}, v{41 + 2 * k}")
    A("buffer_store_dwordx4 v[48:51], v2, s[16:19], s21 offen")
    A("L_rdone:\ns_endpgm")
    ins, _ = hazard_pass(A.ins)
    return ins


def kd(name, vg, acc, sg=96):
    return (f".amdhsa_kernel {name}\n  .amdhsa_next_free_vgpr {vg}\n  .amdhsa_next_free_sgpr {sg}\n  .amdhsa_accum_offset {acc}\n"
            "  .amdhsa_group_segment_fixed_size 0\n  .amdhsa_kernarg_size 104\n  .amdhsa_user_sgpr_count 2\n"
            "  .amdhsa_user_sgpr_kernarg_segment_ptr 1\n  .amdhsa_system_sgpr_workgroup_id_x 1\n.end_amdhsa_kernel\n")


def generate(cfg):
    plan = plan_ring(cfg)
    P = Prog()
    prologue(cfg, P)
    pro, _ = hazard_pass(P.ins)
    comp, info = compute(cfg, plan)
    ld = loader(cfg, plan)
    s = HDR
    s += f"; @launch kernel={KNAME} grid=(256,1,1) block=(256,1,1) lds={cfg.ring * 4096}\n"
    s += f"; @launch kernel={K2NAME} grid=(864,1,1) block=(256,1,1) lds=0\n"
    s += '.amdgcn_target "amdgcn-amd-amdhsa--gfx950"\n.text\n'
    s += f".globl {KNAME}\n.p2align 8\n.type {KNAME},@function\n{KNAME}:\n"
    s += render(pro) + render(comp) + render(ld) + "L_done:\n    s_endpgm\n"
    s += f".globl {K2NAME}\n.p2align 8\n.type {K2NAME},@function\n{K2NAME}:\n" + render(reduce_kernel(cfg))
    s += '.section .rodata,"a"\n.p2align 6\n' + kd(KNAME, 512, 256) + ".p2align 6\n" + kd(K2NAME, 56, 56, 32)
    return s, info, plan


if __name__ == "__main__":
    import build
    name = sys.argv[1]
    kw = {}
    for a in sys.argv[2:]:
        k, v = a.split("=", 1)
        try:
            v = eval(v)
        except Exception:
            pass
        kw[k] = v
    s, info, plan = generate(Cfg(**kw))
    open(name, "w").write(s)
    print(info)
    build.build(name)
```

```python
import copy
import math
import struct
import sys

from asmlib import Prog, parse, lgkm_pass, hazard_pass, render, est_cycles, R

KNAME = "concat_heads__mha_block_cached__gqa_block_cached__near_ridge_kernel"
HDR = open("concat_heads__mha_block_cached__gqa_block_cached__near_ridge.s.ref").read().split("; Override launch")[0]


def f2u(x):
    return struct.unpack("<I", struct.pack("<f", x))[0]


class Cfg:
    mapping = "16x8"
    kvf = " nt"
    wf = ""
    xf = ""
    pstf = " sc1"
    gf = " sc1"
    LA = 6
    LB = 4
    NB = 8
    colors = "defabcdabcdefabc" + "abc" * 3
    dmax = 99
    dwo = 2
    park = (14, 16, 18)
    kv0 = (0, 1, 2)
    WR = 6
    raq = 4
    waitgrp = 4
    wqbatch = 1
    balance = True
    front = True
    stamp = False
    pf = True
    dbl = True
    pfx = True
    thr = 1024.0
    quota = (13, 24, 20) + (20,) * 12 + (21, 21) + (15,) * 6 + (3, 0)
    pf_wo_step = 1
    pf_wq_step = 12
    pf_wq0_step = 1
    dbg = None
    nobar = False
    noload = False
    delay = 0
    prof = False
    trace = False
    half = 0

    def __init__(self, **kw):
        for k, v in kw.items():
            assert hasattr(Cfg, k), k
            setattr(self, k, v)


pK = [4, 5, 6, 7]
pV = [8, 9]
pWq = [10, 11]
pWo = [12, 13]
vL, vBS = 14, 15
vT = [16, 17, 18, 19]
vM, vM2, vST, vFL = 20, 21, 22, 23
FR0, NEGM, S0, P0, Q0, O0, OUTV, FRX = 24, 48, 64, 96, 112, 144, 208, 240
OF = S0
pQ = 3
bK, bV, bWo, bM = 248, 249, 250, 251
vD = 252
sW, sB, sH = 3, 4, 5
SK, SV, SWQ, SWO, SX, SWS = 16, 20, 24, 28, 32, 36
sKV, sXo, sWQo, sWOo, sTMP, sIT, sC, sTHR, sT4K, sWSo = 42, 43, 44, 45, 46, 47, 48, 49, 50, 51
sJ, sPAIR, sCU = 52, 53, 59
SDB, SOUT = 68, 72
sTC = 80
sFLG = 89
SWQ2 = 92
SM = 96
sMB, sB0, sWB, sXM, sXM2 = 90, 91, 66, 67, 100
WRB = 24 * 4096
MF = "v_mfma_f32_32x32x16_bf16"
QBUF = 31 * 4096
XRES = 34 * 4096
FLAGBASE = 32 << 20
TORD = (0, 1, 2, 7, 8, 3, 4, 5, 6)


def srd(n):
    return f"s[{n}:{n + 3}]"


def w3_quads():
    return [("wq3", p, t, rb) for p in range(2) for t in TORD for rb in range(2)]


def w3_ops(cfg):
    quads = w3_quads()
    ops = []
    for p in range(2):
        pq = quads[18 * p:18 * p + 18]
        groups = [pq[0:2]] + [[q] for q in pq[2:16]] + [pq[16:18]]
        for grp in groups:
            if len(grp) == 2:
                seqv = [(q, s2, hb) for hb in range(2) for q in grp for s2 in range(2)]
            else:
                seqv = [(grp[0], s2, hb) for s2 in range(2) for hb in range(2)]
            for (q, s2, hb) in seqv:
                ks = 4 * q[2] + 2 * q[3] + s2
                for j in range(3):
                    ops.append(dict(q=q, s2=s2, hb=hb, j=j, ks=ks, p=p, first=(q == pq[0] and s2 == 0), last=(q == pq[17] and s2 == 1)))
    assert len(ops) == 432 == sum(cfg.quota)
    i = 0
    for s, n in enumerate(cfg.quota):
        for o in ops[i:i + n]:
            o["step"] = s
        i += n
    for i in range(0, 432, 3):
        for d in range(3):
            ops[i + d]["astep"] = ops[i]["step"]
    return ops


class Plan:
    pass


def plan_ring(cfg):
    pl = Plan()
    grp = [[("k", 0, 0), ("k", 0, 1), ("k", 1, 0), ("k", 1, 1)]]
    for u in range(1, 15):
        grp.append([("k", u + 1, 0), ("k", u + 1, 1), ("v", u - 1, 0), ("v", u - 1, 1)])
    grp.append([("v", 14, 0), ("v", 14, 1), ("v", 15, 0), ("v", 15, 1)])
    for t in range(9):
        grp.append([("wo", t, rb) for rb in range(4)])
    ns = len(grp)
    addr = {}
    for s_, g in enumerate(grp):
        for k, q in enumerate(g):
            addr[q] = (ord(cfg.colors[s_]) - 97) * 16384 + k * 4096
    start = []
    xslot = (QBUF, WRB, WRB + 12288) * 2 + (QBUF, XRES, XRES + 12288)
    for t in range(9):
        wq = [("wq", t, rb, cb) for rb in range(2) for cb in range(2)]
        for k, q in enumerate(wq):
            addr[q] = (ord(cfg.colors[16 + t]) - 97) * 16384 + k * 4096
        for rb in range(3):
            addr[("x", t, rb)] = xslot[t] + rb * 4096
        start.append(wq + [("x", t, rb) for rb in range(3)])
    for i, q in enumerate(w3_quads()):
        addr[q] = WRB + (i % cfg.WR) * 4096
    req = {b: [] for b in range(ns)}
    for g in range(ns):
        gap = next(d for d in range(1, ns + 1) if cfg.colors[(g - d) % ns] == cfg.colors[g])
        lead = min(gap - 1, cfg.dwo if g >= 16 else cfg.dmax)
        if g < len(cfg.park):
            assert ns + g - cfg.park[g] <= lead
            lead = ns + g - cfg.park[g]
        assert lead >= 1
        req[(g - lead) % ns].append((g, g - lead < 0))
    for b in req:
        req[b].sort(key=lambda e: e[1])
    pl.req = req
    pl.pro = [g for b in range(ns) for g, w in req[b] if w]
    pl.sreq = {b: [] for b in range(-1, 9)}
    bb = -1
    for n_, g in enumerate(pl.pro):
        b = next(b for b in range(ns) if (g, True) in req[b])
        bb = max(bb, cfg.kv0[n_] if n_ < len(cfg.kv0) else b - 16)
        assert all(cfg.colors[16 + t] != cfg.colors[g] for t in range(max(bb, 0), 9))
        pl.sreq[bb].append(g)
    sissue = {b: [] for b in range(-1, 9)}
    lastuse = {}
    b = -1
    for t in range(9):
        for q in start[t]:
            lo = addr[q]
            b = max(b, lastuse.get(lo, -9) + 1)
            assert b < t
            sissue[b].append(q)
            lastuse[lo] = t
    pl.slast = lastuse
    pl.grp, pl.start, pl.addr, pl.sissue = grp, start, addr, sissue
    return pl


def prologue(cfg, A):
    A("s_cmp_ge_u32 s2, 256\ns_cbranch_scc1 L_done")
    A(f"v_lshrrev_b32 v1, 6, v0\nv_and_b32 v0, 63, v0\nv_readfirstlane_b32 s{sW}, v1")
    A("s_and_b32 s6, s2, 4\ns_mul_i32 s6, s6, 10\ns_add_u32 s6, s0, s6\ns_addc_u32 s7, s1, 0")
    A("s_load_dwordx2 s[40:41], s[6:7], 0\ns_load_dwordx4 s[8:11], s[6:7], 8\ns_load_dwordx4 s[12:15], s[6:7], 24")
    A("s_load_dwordx2 s[54:55], s[0:1], 96\ns_load_dwordx4 s[76:79], s[0:1], 80")
    A(f"s_and_b32 s57, s2, 3\ns_lshr_b32 s{sJ}, s2, 3")
    if cfg.mapping == "16x8":
        A(f"s_lshr_b32 s{sB}, s{sJ}, 1\ns_and_b32 s{sH}, s{sJ}, 1\ns_lshl_b32 s{sH}, s{sH}, 2\ns_lshl_b32 s57, s57, 3\ns_add_u32 s{sH}, s{sH}, s57")
    elif cfg.mapping == "8x16":
        A(f"s_and_b32 s56, s57, 1\ns_lshl_b32 s56, s56, 3\ns_lshr_b32 s{sB}, s{sJ}, 2\ns_add_u32 s{sB}, s{sB}, s56")
        A(f"s_lshr_b32 s56, s57, 1\ns_lshl_b32 s56, s56, 4\ns_and_b32 s{sH}, s{sJ}, 3\ns_lshl_b32 s{sH}, s{sH}, 2\ns_add_u32 s{sH}, s{sH}, s56")
    else:
        A(f"s_lshl_b32 s56, s57, 2\ns_lshr_b32 s{sB}, s{sJ}, 3\ns_add_u32 s{sB}, s{sB}, s56\ns_and_b32 s{sH}, s{sJ}, 7\ns_lshl_b32 s{sH}, s{sH}, 2")
    if cfg.half:
        A(f"s_and_b32 s56, s{sB}, {cfg.half}\ns_cmp_lg_u32 s56, 0\ns_cbranch_scc1 L_done")
    A(f"s_lshl_b32 s{sKV}, s{sB}, 22\ns_lshl_b32 s56, s{sH}, 17\ns_add_u32 s{sKV}, s{sKV}, s56")
    A(f"s_mul_i32 s{sXo}, s{sB}, 110592\ns_lshl_b32 s{sWQo}, s{sH}, 8\ns_mul_i32 s{sWOo}, s{sH}, 147456")
    A(f"s_and_b32 s56, s2, 4\ns_lshl_b32 s56, s56, 2\ns_add_u32 s{sPAIR}, s56, s{sB}\ns_lshr_b32 s{sCU}, s{sH}, 2")
    for tau in range(9):
        A(f"s_add_u32 s56, s{sCU}, {1 + tau}\ns_cmp_ge_u32 s56, 9\ns_cselect_b32 s57, 9, 0\ns_sub_u32 s56, s56, s57\ns_lshl_b32 s{sTC + tau}, s56, 7")
    A(f"s_mov_b32 s{sIT}, 0\ns_mov_b32 s{sC}, {hex(f2u(math.log2(math.e) / math.sqrt(128.0)))}")
    A(f"s_cmp_eq_u32 s{sW}, 3\ns_cselect_b32 s56, s{sCU}, s{sW}\ns_mul_i32 s57, s{sPAIR}, 3\ns_add_u32 s56, s56, s57\ns_lshl_b32 s56, s56, 12\ns_add_u32 s{sFLG}, s56, {FLAGBASE}")
    A("s_waitcnt lgkmcnt(0)")
    for d, b, n in ((SK, 8, 0x4000000), (SV, 10, 0x4000000), (SWQ, 12, 4718592), (SWO, 14, 4718592), (SX, 40, 1769472),
                    (SWQ2, 12, 4718592), (SWS, 54, 290848768), (SOUT, 76, 3538944), (SDB, 78, 256)):
        A(f"s_mov_b32 s{d}, s{b}\ns_mov_b32 s{d + 1}, s{b + 1}\ns_mov_b32 s{d + 2}, {n}\ns_mov_b32 s{d + 3}, 0x20000")
    A(f"v_and_b32 v1, 7, v0\nv_lshlrev_b32 v1, 2, v1\nbuffer_load_dword v{vFL}, v1, {srd(SWS)}, s{sFLG} offen sc1")
    A(f"s_cmp_eq_u32 s{sW}, 3\ns_cbranch_scc1 L_loader")


STAMP_BASE = 64 << 20


def stamp(cfg, A, k, who):
    if not cfg.stamp:
        return 0
    A("s_memrealtime s[60:61]\ns_memtime s[64:65]\ns_waitcnt lgkmcnt(0)")
    A(f"s_lshl_b32 s62, s2, 10\ns_lshl_b32 s63, s{sIT}, 7\ns_add_u32 s62, s62, s63\ns_add_u32 s62, s62, {STAMP_BASE + who * 512 + 8 * k}")
    t = 18 if who else 0
    if who:
        A(f"v_mov_b32 v{t}, s60\nv_mov_b32 v{t + 1}, s64\nv_mov_b32 v{t + 2}, 0\nbuffer_store_dwordx2 v[{t}:{t + 1}], v{t + 2}, {srd(SWS)}, s62 offen")
    else:
        A(f"v_mov_b32 v0, s60\nv_mov_b32 v1, s64\nv_mov_b32 v2, 0\nbuffer_store_dwordx2 v[0:1], v2, {srd(SWS)}, s62 offen")
        A("s_nop 1\nv_mbcnt_lo_u32_b32 v0, -1, 0\nv_mbcnt_hi_u32_b32 v0, -1, v0")
    return 1


class Sched:
    def __init__(self, cfg):
        self.cfg = cfg
        self.bias = {}
        self.nbuf = 0
        self.out = Prog()

    def fbuf(self):
        i = self.nbuf % self.cfg.NB
        self.nbuf += 1
        return FR0 + 4 * i if i < 6 else FRX + 4 * (i - 6)

    def lds(self, op, reg, preg, a):
        b = self.bias[preg]
        if not (0 <= a - b <= 65535):
            nb = a & ~4095
            self.out(f"v_add_u32 v{preg}, {(nb - b) & 0xffffffff}, v{preg}")
            self.bias[preg] = b = nb
        if op.startswith("ds_read"):
            self.out(f"{op} {reg}, v{preg} offset:{a - b}")
        else:
            self.out(f"{op} v{preg}, {reg} offset:{a - b}")

    def rebias(self, preg, nb):
        b = self.bias[preg]
        if b != nb:
            self.out(f"v_add_u32 v{preg}, {(nb - b) & 0xffffffff}, v{preg}")
            self.bias[preg] = nb


def spread(fill, ops_list, s0, s1):
    n = s1 - s0 + 1
    cost = [2 if isinstance(o, str) and o.startswith("v_exp") else 1 for o in ops_list]
    tot = sum(cost)
    acc = 0
    for o, c in zip(ops_list, cost):
        k = min(n - 1, int((acc + c / 2) * n / tot))
        fill.setdefault(s0 + k, []).append(o)
        acc += c


def spread_bal(cfg, ops, fill, ops_list, s0, s1):
    if not cfg.balance:
        return spread(fill, ops_list, s0, s1)
    base = []
    for i in range(s0, s1 + 1):
        o = ops[min(i + cfg.LA, len(ops) - 1)]
        base.append(len(o["a"]) + (1 if i % cfg.waitgrp == 0 else 0) + sum(VMCOST if isinstance(f, tuple) else 1 for f in fill.get(i, [])))
    cost = [2 if isinstance(o, str) and o.startswith("v_exp") else 1 for o in ops_list]
    level = (sum(cost) + sum(base)) / len(base)
    k, room = 0, level - base[0]
    for o, c in zip(ops_list, cost):
        while k < len(base) - 1 and room < c / 2:
            k += 1
            room += level - base[k]
        fill.setdefault(s0 + k, []).append(o)
        room -= c


def k_patterns(A, xform, off=None):
    A("v_lshrrev_b32 v1, 5, v0\nv_and_b32 v2, 31, v0\nv_lshrrev_b32 v16, 1, v2\nv_and_b32 v16, 7, v16\nv_xor_b32 v16, v16, v1")
    if xform:
        A("v_lshlrev_b32 v2, 7, v2")
        if off:
            A(f"v_add_u32 v2, s{off}, v2")
    else:
        A("v_lshrrev_b32 v17, 2, v2\nv_and_b32 v2, 3, v2\nv_lshlrev_b32 v2, 7, v2\nv_lshl_add_u32 v2, v17, 10, v2")
    for j in range(4):
        A(f"v_xor_b32 v17, {2 * j}, v16\nv_lshl_add_u32 v{pK[j]}, v17, 4, v2")


def lane_patterns(A, with_wave_offset):
    k_patterns(A, True, sT4K if with_wave_offset else None)
    A("v_lshrrev_b32 v2, 2, v0\nv_and_b32 v2, 3, v2\nv_lshrrev_b32 v3, 1, v2\nv_lshlrev_b32 v3, 6, v3")
    A("v_lshrrev_b32 v16, 4, v0\nv_and_b32 v16, 1, v16\nv_and_b32 v17, 1, v0\nv_lshrrev_b32 v18, 1, v0\nv_and_b32 v18, 1, v18")
    A("v_lshl_add_u32 v19, v1, 2, v2\nv_lshlrev_b32 v19, 7, v19\nv_lshl_add_u32 v20, v1, 3, v2\nv_lshlrev_b32 v20, 7, v20")
    A("v_lshlrev_b32 v21, 5, v16\nv_lshl_add_u32 v21, v17, 3, v21\nv_lshl_add_u32 v21, v18, 4, v21\nv_lshl_add_u32 v21, v2, 7, v21\nv_lshl_add_u32 v21, v1, 10, v21")
    A(f"v_add_u32 v{pV[0]}, v21, v3\nv_xor_b32 v{pV[1]}, 64, v{pV[0]}")
    A("v_lshlrev_b32 v21, 5, v16\nv_lshl_add_u32 v21, v17, 4, v21\nv_lshl_add_u32 v21, v18, 3, v21\nv_add_u32 v21, v21, v20")
    A(f"v_add_u32 v{pWq[0]}, v21, v3\nv_xor_b32 v{pWq[1]}, 64, v{pWq[0]}")
    A("v_lshlrev_b32 v21, 5, v17\nv_lshl_add_u32 v21, v16, 4, v21\nv_lshl_add_u32 v21, v18, 3, v21\nv_add_u32 v21, v21, v19")
    A(f"v_add_u32 v{pWo[0]}, v21, v3\nv_xor_b32 v{pWo[1]}, 64, v{pWo[0]}")


def kv_offsets(A, dk, dv):
    A("v_lshrrev_b32 v1, 3, v0\nv_and_b32 v1, 3, v1\nv_and_b32 v2, 7, v0\nv_lshrrev_b32 v16, 5, v0\nv_lshlrev_b32 v16, 7, v16\nv_lshl_add_u32 v16, v1, 8, v16")
    A(f"v_lshrrev_b32 v1, 1, v1\nv_xor_b32 v17, v1, v2\nv_lshl_add_u32 v{dk}, v17, 4, v16")
    A(f"v_lshlrev_b32 v1, 2, v1\nv_xor_b32 v17, v1, v2\nv_lshl_add_u32 v{dv}, v17, 4, v16")


def poll_flags(A, tag):
    A(f"s_mov_b32 s58, 0\nL_poll{tag}:\nbuffer_load_dword v2, v1, {srd(SWS)}, s{sFLG} offen sc1\ns_add_u32 s58, s58, 1\ns_waitcnt vmcnt(0)")
    A(f"v_cmp_eq_u32 vcc, v2, v{vFL}\ns_cbranch_vccz L_pend{tag}\ns_cmp_gt_u32 s58, 0x80000\ns_cbranch_scc1 L_pend{tag}\ns_sleep 4\ns_branch L_poll{tag}\nL_pend{tag}:")


def gather_store(cfg, A, nsrc, acc, w_sreg, t_sreg, G=32):
    A(f"s_mul_i32 s56, s{sPAIR}, 884736\ns_mul_i32 s57, s{t_sreg}, 3\ns_add_u32 s57, s57, s{w_sreg}\ns_lshl_b32 s57, s57, 15\ns_add_u32 s56, s56, s57")
    A("v_lshlrev_b32 v1, 4, v0")
    for i in range(nsrc):
        A(f"s_add_u32 s57, s{sCU}, {i + 1}\ns_and_b32 s57, s57, 7\ns_lshl_b32 s57, s57, 12\ns_add_u32 s57, s57, s56")
        for p in range(4):
            A(f"buffer_load_dwordx4 {R('v', G + 16 * i + 4 * p, 4)}, v1, {srd(SWS)}, s57 offen offset:{1024 * p}{cfg.gf}")
    A(f"s_mul_i32 s60, s{sB}, 96\ns_lshl_b32 s58, s{w_sreg}, 5\ns_add_u32 s60, s60, s58\ns_mul_i32 s60, s60, 2304\ns_lshl_b32 s58, s{t_sreg}, 7\ns_add_u32 s60, s60, s58")
    A("s_and_b32 s58, s2, 4\ns_mul_i32 s58, s58, 288\ns_add_u32 s60, s60, s58")
    A("v_and_b32 v2, 31, v0\nv_mul_u32_u24 v2, 2304, v2\nv_lshrrev_b32 v3, 5, v0\nv_lshl_add_u32 v2, v3, 5, v2")
    for i in range(nsrc):
        A(f"s_waitcnt vmcnt({4 * (nsrc - 1 - i)})")
        for k in range(16):
            r = G + 16 * i + k
            if i == 0 and nsrc == 8:
                A(f"v_lshlrev_b32 v{acc + 2 * k}, 16, v{r}\nv_and_b32 v{acc + 2 * k + 1}, 0xffff0000, v{r}")
            else:
                A(f"v_lshlrev_b32 v4, 16, v{r}\nv_and_b32 v5, 0xffff0000, v{r}")
                A(f"v_add_f32 v{acc + 2 * k}, v{acc + 2 * k}, v4\nv_add_f32 v{acc + 2 * k + 1}, v{acc + 2 * k + 1}, v5")
    for p in range(4):
        for k in range(4):
            A(f"v_cvt_pk_bf16_f32 v{8 + 4 * p + k}, v{acc + 8 * p + 2 * k}, v{acc + 8 * p + 2 * k + 1}")
        A(f"buffer_store_dwordx4 {R('v', 8 + 4 * p, 4)}, v2, {srd(SOUT)}, s60 offen offset:{64 * (p >> 1) + 16 * (p & 1)}")


vK, vV, vWq, vWo, vX = 24, 28, 32, 36, 176
W3A = 40
W3B = 52
W3X = 76
W3ACC = 160
vTQ, vTO, vTX, vDUM = 12, 13, 14, 15
pQ3 = 22


def xreg(ks, j):
    i = ks * 3 + j
    return R("a", 4 * i, 4) if i < 64 else R("v", W3X + 4 * (i - 64), 4)


def wave3(cfg, pl):
    addr = pl.addr
    sc = Sched(cfg)
    A = sc.out
    A("L_loader:")
    if cfg.prof:
        A("s_mov_b32 s96, 0\ns_mov_b32 s97, 0\ns_mov_b32 s98, 0\ns_mov_b32 s99, 0")
    lane_patterns(A, False)
    A(f"v_lshlrev_b32 v{pQ3}, 4, v0")
    for p in pK + pWq + [pQ3]:
        sc.bias[p] = 0
    A("v_lshrrev_b32 v1, 3, v0\nv_and_b32 v2, 7, v0\nv_lshrrev_b32 v3, 4, v0")
    A("v_and_b32 v16, 1, v3\nv_lshlrev_b32 v16, 2, v16\nv_xor_b32 v16, v16, v2\nv_lshlrev_b32 v16, 4, v16")
    A("v_lshlrev_b32 v18, 8, v1\nv_lshlrev_b32 v19, 13, v1\nv_mul_u32_u24 v20, 1152, v1")
    for g in range(4):
        A(f"v_add_u32 v17, {4 * g}, v3\nv_and_b32 v17, 7, v17\nv_xor_b32 v17, v17, v2\nv_lshlrev_b32 v17, 4, v17")
        A(f"v_add_u32 v17, {g * (9216 - 1024)}, v17\nv_add_u32 v{vX + g}, v17, v20")
        A(f"v_add_u32 v17, {g * (65536 - 1024)}, v16\nv_add_u32 v{vWq + g}, v17, v19")
        A(f"v_add_u32 v17, {g * (9216 - 1024)}, v16\nv_add_u32 v{vWo + g}, v17, v20")
    kv_offsets(A, vK, vV)
    for g in range(1, 4):
        A(f"v_xor_b32 v{vK + g}, {32 * g}, v{vK}\nv_mov_b32 v{vV + g}, v{vV}")
    nsh = {"16x8": 16, "8x16": 8, "4x32": 4}[cfg.mapping]
    xsh = 32 // nsh
    rows = 576 // nsh
    A(f"s_and_b32 s56, s{sB}, {nsh - 1}\nv_mov_b32 v21, 0x7fffff00\nv_cmp_gt_u32 vcc, 36, v0")
    A(f"v_lshrrev_b32 v{vTQ}, 1, v0\nv_lshlrev_b32 v{vTQ}, 13, v{vTQ}\nv_and_b32 v17, 1, v0\nv_lshlrev_b32 v17, 7, v17\nv_add_u32 v{vTQ}, v{vTQ}, v17")
    A(f"s_mul_i32 s57, s56, {rows * 8192}\nv_add_u32 v{vTQ}, s57, v{vTQ}\nv_cndmask_b32 v{vTQ}, v21, v{vTQ}, vcc")
    A(f"v_lshlrev_b32 v{vTO}, 7, v0\ns_mul_i32 s57, s56, {rows * 256}\nv_add_u32 v{vTO}, s57, v{vTO}\nv_cndmask_b32 v{vTO}, v21, v{vTO}, vcc")
    A(f"v_cmp_gt_u32 vcc, 54, v0\nv_lshlrev_b32 v{vTX}, 7, v0\ns_and_b32 s57, s{sCU}, {xsh - 1}\ns_mul_i32 s57, s57, {110592 // xsh}\nv_add_u32 v{vTX}, s57, v{vTX}")
    A(f"v_cndmask_b32 v{vTX}, v21, v{vTX}, vcc")

    def touch_ops(vreg, srd_, base, add, step, nl=rows * 2, per=36):
        l = []
        if not cfg.pf:
            return l
        for i in range(nl // per):
            l.append(f"s_add_u32 s{sTMP}, s{base}, {i * per * step + add}")
            for fl in ((" nt", "") if cfg.dbl else ("",)):
                l.append(("vm", f"buffer_load_dword v{vDUM}, v{vreg}, {srd(srd_)}, s{sTMP} offen{fl}"))
        return l

    def quad_ops(q, w=False):
        k = q[0]
        pre = []
        if k == "k":
            off, base, v, sr, fl = q[1] * 8192 + q[2] * 4096, sKV, vK, SK, cfg.kvf
        elif k == "v":
            off, base, v, sr, fl = q[1] * 8192 + q[2] * 4096, sKV, vV, SV, cfg.kvf
        elif k == "wq":
            off, base, v, sr, fl = (q[1] * 64 + q[2] * 32) * 8192 + q[3] * 128, sWQo, vWq, SWQ, cfg.wf
        elif k == "wq3":
            off, base, v, sr, fl = (q[2] * 64 + q[3] * 32) * 8192 + q[1] * 128 + 256, sWQo, vWq, (SWQ2 if w else SWQ), cfg.wf
        elif k == "x":
            off, base, v, sr, fl = q[2] * 32 * 1152 + q[1] * 128, sXo, vX, SX, cfg.xf
        else:
            pre = [f"s_add_u32 s{sTMP}, s{sWOo}, s{sTC + q[1]}"]
            off, base, v, sr, fl = q[2] * 32 * 1152, sTMP, vWo, SWO, cfg.wf
        l = pre + [f"s_mov_b32 m0, {addr[q]}", f"s_add_u32 s{sTMP}, s{base}, {off}"]
        for g in range(4):
            if not cfg.noload:
                l.append(("vm", f"buffer_load_dwordx4 v{v + g}, {srd(sr)}, s{sTMP} offen offset:{g * 1024}{fl} lds", q, g))
        return l

    lin = []

    def put(sc_, o, gen=0):
        if isinstance(o, tuple):
            sc_.out(o[1])
            lin.append((o[2] if len(o) > 2 else None, gen))
        elif callable(o):
            o(sc_)
        else:
            sc_.out(o)

    def wait_for(sc_, quads, gen):
        if cfg.noload:
            return
        last = max(k for k, e in enumerate(lin) if e[0] in quads and e[1] == gen)
        sc_.out(f"s_waitcnt vmcnt({min(63, len(lin) - 1 - last)})")

    def bar(sc_):
        if not cfg.nobar:
            sc_.out("s_barrier")

    if stamp(cfg, A, 15, 1):
        lin.append((None, 0))
    if cfg.delay:
        A(f"s_and_b32 s56, s{sB}, 1\ns_cmp_eq_u32 s56, 0\ns_cbranch_scc1 L_nodelay")
        for _ in range(cfg.delay):
            A("s_sleep 32")
        A("L_nodelay:")
    for o in touch_ops(vTQ, SWQ, sWQo, 0, 4096) + (touch_ops(vTX, SX, sXo, 0, 128, 864 // xsh, 54) if cfg.pfx else []):
        put(sc, o)
    for q in pl.sissue[-1]:
        for o in quad_ops(q):
            put(sc, o)
    bias0 = {p: XRES for p in pK}
    bias0.update({p: WRB for p in pWq})
    bias0[pQ3] = QBUF
    ops = w3_ops(cfg)
    quads = w3_quads()
    ns = len(pl.grp)

    def conv_tile(p, hb, j):
        acc = W3ACC + 16 * (3 * hb + j)
        l = []
        for s in range(2):
            pk = W3B + 8 + 4 * s
            for k in range(4):
                t0 = W3B + 2 * (k & 1)
                r = acc + 8 * s + 2 * k
                l += [f"v_mul_f32 v{t0}, s{sC}, v{r}", f"v_mul_f32 v{t0 + 1}, s{sC}, v{r + 1}", f"v_cvt_pk_bf16_f32 v{pk + k}, v{t0}, v{t0 + 1}"]
            l.append(lambda sc_, pk=pk, a=QBUF + (j * 4 + hb * 2 + s) * 1024: sc_.lds("ds_write_b128", R("v", pk, 4), pQ3, a))
        return l

    def period(last, pro):
        nonlocal lin
        sc2 = Sched(cfg)
        sc2.bias = dict(bias0)
        B = sc2.out
        lin = [(q, 0) for q in pro for g in range(4)] if not cfg.noload else []
        myops = [] if last else copy.deepcopy(ops)
        n = len(myops)
        fill = {}
        bpos = {s: (sum(cfg.quota[:s]) if not last else 0) for s in range(ns + 1)}
        enq = {}
        if not last:
            lastidx = {(o["p"], o["hb"], o["j"]): i for i, o in enumerate(ops) if o["last"]}
            for p, hb in ((0, 0), (1, 0), (0, 1)):
                i0 = lastidx[(p, hb, 2)]
                spread(fill, sum((conv_tile(p, hb, j) for j in range(3)), []), i0 + 4, i0 + 12)
            firstop = {q: min(i for i, o in enumerate(ops) if o["q"] == q) for q in quads}
            lastop = {q: max(i for i, o in enumerate(ops) if o["q"] == q) - 2 for q in quads}
            seg = lambda i: max(s for s in range(ns) if bpos[s] <= i)
            at = 0
            for k in range(36, 72):
                prev = max(j for j in range(k) if addr[quads[j % 36]] == addr[quads[k % 36]])
                free = lastop[quads[prev % 36]] + 1 + (prev // 36 - 1) * n
                sneed = seg(firstop[quads[k % 36]]) - cfg.raq
                early = bpos[sneed] if sneed >= 0 else bpos[sneed + ns] - n
                at = max(free, early) if k == 36 else max(at, free, early)
                assert at <= firstop[quads[k % 36]] - 5
                enq.setdefault(at % n if at < 0 else at, []).append((quads[k % 36], at < 0))
        st = dict(wrapq=False, wrapg=False, rdA=0, rdB=0, abuf=0, bbuf=0, step=-1)
        queue = []

        def drain(nvm):
            while queue and nvm > 0:
                o, g = queue.pop(0)
                put(sc2, o, g)
                nvm -= isinstance(o, tuple)

        def open_step(s):
            if cfg.trace:
                B(f"s_memtime s[60:61]\ns_waitcnt lgkmcnt(0)\nv_writelane_b32 v2, s60, {s}")
            wait_for(sc2, {pl.grp[s][3]}, 0)
            if cfg.trace:
                B(f"s_memtime s[60:61]\ns_waitcnt lgkmcnt(0)\nv_writelane_b32 v2, s60, {32 + s}")
            if s in (0, 16):
                if stamp(cfg, B, {0: 1, 16: 2}[s], 1):
                    lin.append((None, 0))
            if last and s == 16:
                B("v_readfirstlane_b32 s57, v17\ns_mov_b32 s58, 0\nL_chk:\ns_cmp_ge_u32 s57, 8\ns_cbranch_scc1 L_chkend")
                B(f"buffer_load_dword v17, v16, {srd(SDB)}, 0 offen sc1\ns_add_u32 s58, s58, 1\ns_waitcnt vmcnt(0)\nv_readfirstlane_b32 s57, v17")
                B("s_cmp_lt_u32 s58, 0x80000\ns_cbranch_scc1 L_chk\nL_chkend:")
            bar(sc2)
            for g, w in pl.req[s]:
                if w and not st["wrapg"]:
                    st["wrapg"] = True
                    queue.append((f"s_add_u32 s{sKV}, s{sKV}, 0x20000", 0))
                assert g >= 16 or w == st["wrapg"]
                if not (last and w):
                    queue.extend((o, int(w)) for o in quad_ops(pl.grp[g][3]))
            if last and s == 2:
                queue.extend([(f"s_lshl_b32 s56, s{sPAIR}, 2", 0), ("v_mov_b32 v16, s56", 0), (("vm", f"buffer_load_dword v17, v16, {srd(SDB)}, 0 offen sc1"), 0)])
            if s == cfg.pf_wo_step:
                queue.extend((o, 0) for o in touch_ops(vTO, SWO, sWOo, 0, 128))
            if s == cfg.pf_wq_step and not last:
                queue.append((f"s_cmp_eq_u32 s{sIT}, 2\ns_cselect_b32 s{SWQ2 + 2}, 0, s{SWQ2 + 2}", 0))
                queue.extend((o, 0) for o in touch_ops(vTQ, SWQ2, sWQo, 512, 4096))
            if bpos[s + 1] == bpos[s]:
                drain(99)
            st["step"] = s

        for i in range(n):
            while st["step"] + 1 < ns and bpos[st["step"] + 1] <= i:
                open_step(st["step"] + 1)
            for q, w in enq.get(i, []):
                if w and not st["wrapq"]:
                    st["wrapq"] = True
                    queue.append((f"s_add_u32 s{sWQo}, s{sWQo}, 256", 0))
                assert w == st["wrapq"]
                queue.extend((o, int(w)) for o in quad_ops(q, w))
            while st["rdA"] < n and st["rdA"] <= i + 5:
                o = myops[st["rdA"]]
                if st["rdA"] == firstop[o["q"]] and not cfg.noload:
                    while lin.count((o["q"], 0)) < 4:
                        drain(1)
                    wait_for(sc2, {o["q"]}, 0)
                fb = W3A + 4 * (st["abuf"] % 3)
                st["abuf"] += 1
                qa = addr[o["q"]] + 16 * o["s2"] * 128
                sc2.lds("ds_read_b64_tr_b16", R("v", fb, 2), pWq[o["hb"]], qa)
                sc2.lds("ds_read_b64_tr_b16", R("v", fb + 2, 2), pWq[o["hb"]], qa + 4 * 128)
                for d in range(3):
                    myops[st["rdA"] + d]["areg"] = fb
                st["rdA"] += 3
            while st["rdB"] < n and st["rdB"] <= i + 5:
                o = myops[st["rdB"]]
                if o["ks"] < 28:
                    o["breg"] = xreg(o["ks"], o["j"])
                elif o["hb"] == 0:
                    bb = W3B + 4 * (st["bbuf"] % 6)
                    st["bbuf"] += 1
                    sc2.lds("ds_read_b128", R("v", bb, 4), pK[o["ks"] & 3], XRES + (((o["ks"] >> 2) - 7) * 3 + o["j"]) * 4096)
                    assert myops[st["rdB"] + 3]["ks"] == o["ks"]
                    o["breg"] = myops[st["rdB"] + 3]["breg"] = R("v", bb, 4)
                st["rdB"] += 1
            drain(1)
            for o in fill.get(i, []):
                put(sc2, o)
            o = myops[i]
            d = R("v", W3ACC + 16 * (3 * o["hb"] + o["j"]), 16)
            B(f"{MF} {d}, {R('v', o['areg'], 4)}, {o['breg']}, {'0' if o['first'] else d}")
        drain(99)
        if not last:
            for o in sum((conv_tile(1, 1, j) for j in range(3)), []):
                put(sc2, o)
            B("s_waitcnt lgkmcnt(0)")
            assert st["step"] + 1 < ns
        while st["step"] + 1 < ns:
            open_step(st["step"] + 1)
        tailq = [e[0] for e in lin if e[1] == 1][::4]
        if not last:
            B(f"s_add_u32 s{sWOo}, s{sWOo}, 147456")
            for p, b in bias0.items():
                sc2.rebias(p, b)
            if cfg.trace:
                B(f"s_cmp_lg_u32 s{sIT}, 2\ns_cbranch_scc1 L_notr3\nv_lshlrev_b32 v1, 2, v0\ns_lshl_b32 s62, s2, 10\ns_add_u32 s62, s62, {STAMP_BASE + 768}")
                B(f"buffer_store_dword v2, v1, {srd(SWS)}, s62 offen\ns_waitcnt vmcnt(0)\nL_notr3:")
            B(f"s_add_u32 s{sIT}, s{sIT}, 1\ns_cmp_lt_u32 s{sIT}, 3\ns_cbranch_scc1 L_w3loop")
        body, pe = lgkm_pass(B.ins)
        assert not pe
        return body, tailq

    lin0 = list(lin)
    _, pro = period(False, [pl.grp[g][3] for g in pl.pro] + quads[:cfg.WR])
    loopbody, pro2 = period(False, pro)
    assert pro2 == pro
    lastp, _ = period(True, pro)
    lin = lin0
    if cfg.noload:
        pro = []
    todo = list(pro)
    for t in range(9):
        wait_for(sc, set(pl.start[t]), 0)
        A("s_waitcnt lgkmcnt(0)")
        bar(sc)
        if t == 0:
            A(f"s_lshl_b32 s56, s{sPAIR}, 2\nv_mov_b32 v16, s56\nv_mov_b32 v17, 1\ns_mov_b64 exec, 1")
            put(sc, ("vm", f"buffer_atomic_add v17, v16, {srd(SDB)}, 0 offen sc1"))
            A("s_mov_b64 exec, -1")
        if t < 7:
            for s in range(4):
                for j in range(3):
                    sc.lds("ds_read_b128", xreg(4 * t + s, j), pK[s], addr[("x", t, j)])
        if t == cfg.pf_wq0_step:
            for o in touch_ops(vTQ, SWQ, sWQo, 256, 4096):
                put(sc, o)
        for q in pl.sissue[t]:
            for o in quad_ops(q):
                put(sc, o)
        while todo:
            q = todo[0]
            if q[0] == "wq3":
                if pl.slast.get(addr[q], -9) >= t:
                    break
                if any(pl.sissue[b] for b in range(t + 1, 9)):
                    break
            elif not any(pl.grp[g][3] == q for b in range(-1, t + 1) for g in pl.sreq[b]):
                break
            for o in quad_ops(todo.pop(0)):
                put(sc, o)
    assert not todo
    for p, b in bias0.items():
        sc.rebias(p, b)
    A("s_waitcnt lgkmcnt(0)")
    head, pend = lgkm_pass(sc.out.ins)
    loop = [parse("L_w3loop:")] + loopbody
    T = Prog()
    if cfg.prof:
        T(f"v_mov_b32 v16, s96\nv_mov_b32 v17, s97\nv_mov_b32 v18, s98\nv_mov_b32 v19, s99\nv_mov_b32 v20, 0\ns_lshl_b32 s62, s2, 10\ns_add_u32 s62, s62, {STAMP_BASE + 512 + 64}")
        T(f"buffer_store_dwordx4 v[16:19], v20, {srd(SWS)}, s62 offen")
    T(f"s_cmp_ge_u32 s{sCU}, 3\ns_cbranch_scc1 L_done")
    T("v_and_b32 v1, 7, v0\nv_lshlrev_b32 v1, 2, v1")
    poll_flags(T, "w3")
    T("s_mov_b32 s61, 8")
    gather_store(cfg, T, 8, 192, sCU, 61)
    T("s_endpgm")
    allins, nn = hazard_pass(head + loop + lastp + T.ins, verbose=cfg.dbg == "nops3")
    return allins, dict(w3nops=nn, w3est=est_cycles(loop))


def acc_out(nb):
    return R("a", 16 * nb, 16) if nb < 16 else R("v", OUTV + 16 * (nb - 16), 16)


def q_ops(addr):
    ops = []
    XB = S0
    for t in range(9):
        order = [(s, b) for s in range(4) for b in range(4)] if t < 8 else [(s, b) for b in range(4) for s in range(4)]
        seen = set()
        for (s, b) in order:
            qa = addr[("wq", t, s >> 1, b >> 1)] + (16 * (s & 1)) * 128
            xb = XB + 4 * ((t * 4 + s) % 8)
            o = dict(step=t, a=[("tr", pWq[b & 1], qa), ("tr", pWq[b & 1], qa + 4 * 128)], b=R("v", xb, 4), d=R("v", O0 + 16 * b, 16))
            o["c"] = "0" if (t == 0 and s == 0) else o["d"]
            if s not in seen:
                seen.add(s)
                o["x"] = (xb, pK[s], addr[("x", t, 0)])
            ops.append(o)
    return ops


def item_ops(addr):
    ops = []

    def qk(u, step):
        for ds in range(8):
            d = R("v", S0 + 16 * (u & 1) if u else O0, 16)
            c = d if ds else ("0" if u < 2 else R("v", NEGM, 16))
            ops.append(dict(step=step, a=[("b128", pK[ds & 3], addr[("k", u, 0)] + (ds >> 2) * 512)], b=R("v", Q0 + 4 * ds, 4), d=d, c=c))

    def pv(u, step, bmajor=False):
        order = [(s, b) for s in range(2) for b in range(4)] if not bmajor else [(s, b) for b in range(4) for s in range(2)]
        for (s, b) in order:
            va = addr[("v", u, s)] + (b >> 1) * 512
            d = R("v", O0 + 16 * b, 16)
            ops.append(dict(step=step, a=[("tr", pV[b & 1], va), ("tr", pV[b & 1], va + 2048)],
                            b=R("v", P0 + 8 * (u & 1) + 4 * s, 4), d=d, c="0" if (u == 0 and s == 0) else d))
    qk(0, 0)
    qk(1, 0)
    for u in range(1, 15):
        qk(u + 1, u)
        pv(u - 1, u)
    pv(14, 15)
    pv(15, 15, True)
    for t in range(9):
        for b in range(4):
            for s in range(2):
                for half in range(2):
                    wa = addr[("wo", t, b)] + 16 * s * 128
                    d = acc_out(2 * t + half)
                    ops.append(dict(step=16 + t, a=[("tr", pWo[half], wa), ("tr", pWo[half], wa + 8 * 128)],
                                    b=R("v", OF + 8 * b + 4 * s, 4), d=d, c=d))
    assert len(ops) == 400
    return ops


def softmax_ops(u, first=False):
    S, P = S0 + 16 * (u & 1), P0 + 8 * (u & 1)
    if first:
        S = O0
    l = []
    for k in range(8):
        a, b = vT[2 * (k & 1)], vT[2 * (k & 1) + 1]
        pa, pb = vT[2 * ((k - 1) & 1)], vT[2 * ((k - 1) & 1) + 1]
        l.append(f"v_exp_f32 v{a}, v{S + 2 * k}")
        if k == 1:
            l.append(f"v_add_f32 v{vBS}, v{pa}, v{pb}")
        elif k > 1:
            l.append(f"v_add_f32 v{vBS}, v{vBS}, v{pa}")
        l.append(f"v_exp_f32 v{b}, v{S + 2 * k + 1}")
        if k > 1:
            l.append(f"v_add_f32 v{vBS}, v{vBS}, v{pb}")
        if k >= 1:
            l.append(f"v_cvt_pk_bf16_f32 v{P + k - 1}, v{pa}, v{pb}")
    a, b = vT[2], vT[3]
    l.append(f"v_add_f32 v{vBS}, v{vBS}, v{a}")
    l.append(f"v_cvt_pk_bf16_f32 v{P + 7}, v{a}, v{b}")
    l.append(f"v_add_f32 v{vBS}, v{vBS}, v{b}")
    return l


def conv_block(b, scale, dst):
    l = []
    for k in range(8):
        r = O0 + 16 * b + 2 * k
        l.append(f"v_mul_f32 v{r}, {scale}, v{r}")
        l.append(f"v_mul_f32 v{r + 1}, {scale}, v{r + 1}")
        if k:
            l.append(f"v_cvt_pk_bf16_f32 v{dst + 8 * b + k - 1}, v{r - 2}, v{r - 1}")
    l.append(f"v_cvt_pk_bf16_f32 v{dst + 8 * b + 7}, v{O0 + 16 * b + 14}, v{O0 + 16 * b + 15}")
    return l


def rowmax(S):
    l = [f"v_max3_f32 v{vM}, v{S}, v{S + 1}, v{S + 2}"]
    for k in range(6):
        l.append(f"v_max3_f32 v{vM}, v{vM}, v{S + 3 + 2 * k}, v{S + 4 + 2 * k}")
    l.append(f"v_max_f32 v{vM}, v{vM}, v{S + 15}")
    l.append(f"v_mov_b32 v{vM2}, v{vM}")
    l.append(f"v_permlane32_swap_b32 v{vM}, v{vM2}")
    l.append(f"v_max_f32 v{vM}, v{vM}, v{vM2}")
    return l


def with_subs(S, sm):
    sub = [f"v_sub_f32 v{S + i}, v{S + i}, v{vM}" for i in range(16)]
    l, k = sub[:4], 4
    for o in sm:
        l.append(o)
        if o.startswith("v_exp") and k < 16:
            l.append(sub[k])
            k += 1
    return l


def item_fill(cfg, ops, fill):
    post = {}
    chk = [f"v_cmp_lt_f32 vcc, s{sTHR}, v{vBS}"]
    spread(fill, rowmax(O0) + [f"v_sub_f32 v{NEGM + i}, 0, v{vM}" for i in range(16)], 11, 15)
    spread(fill, with_subs(O0, softmax_ops(0, True)) + [f"v_mov_b32 v{vL}, v{vBS}"], 16, 23)
    spread(fill, with_subs(S0 + 16, softmax_ops(1)) + chk, 24, 31)
    post[31] = 1
    for u in range(2, 15):
        su = 16 * u
        spread_bal(cfg, ops, fill, softmax_ops(u) + chk, su, su + 15)
        post[su + 15] = u
    spread(fill, softmax_ops(15) + chk, 240, 247)
    post[247] = 15
    spread(fill, [f"v_mov_b32 v{vM2}, v{vL}", f"v_permlane32_swap_b32 v{vL}, v{vM2}", f"v_add_f32 v{vL}, v{vL}, v{vM2}",
                  f"v_rcp_f32 v{vM}, v{vL}"], 249, 252)
    spread(fill, conv_block(0, f"v{vM}", OF), 253, 255)
    spread(fill, conv_block(1, f"v{vM}", OF), 256, 259)
    spread(fill, conv_block(2, f"v{vM}", OF), 260, 263)
    spread(fill, conv_block(3, f"v{vM}", OF), 264, 267)
    return post


def store_block(cfg, nb, tmp, pk):
    l = []
    if not nb & 1:
        l += [f"s_mul_i32 s56, s{sTC + (nb >> 1)}, 768", f"s_add_u32 s56, s56, s{sWSo}"]
    for u in range(2):
        for k in range(8):
            l.append(f"v_accvgpr_read_b32 v{tmp + 8 * u + k}, a{16 * nb + 8 * u + k}")
        for k in range(4):
            i = 8 * u + 2 * k
            l.append(f"v_cvt_pk_bf16_f32 v{pk + 4 * u + k}, v{tmp + i}, v{tmp + i + 1}")
        l.append(f"buffer_store_dwordx4 {R('v', pk + 4 * u, 4)}, v{vST}, {srd(SWS)}, s56 offen offset:{((nb & 1) * 2 + u) * 1024}{cfg.pstf}")
    return l


VMCOST = 4


def emit_slots(cfg, sc, ops, fill, post, lo, hi, st, stubs, stamps={}):
    LA = cfg.LA
    first = {}
    for i, o in enumerate(ops):
        first.setdefault(o["step"], i)
    for i in range(lo, hi):
        nx = st["step"] + 1
        if nx in first and i >= first[nx] - (cfg.LB if nx else LA):
            if nx in stamps and stamp(cfg, sc.out, stamps[nx], 0):
                st["lin"].append(None)
            w = "lgkmcnt(0)"
            if (st["tag"], nx) in st["lin"]:
                last = max(k for k, e in enumerate(st["lin"]) if e == (st["tag"], nx))
                w = f"vmcnt({len(st['lin']) - 1 - last}) " + w
            if cfg.trace and len(ops) == 400:
                sc.out("s_memtime s[60:61]\ns_waitcnt lgkmcnt(0)")
                sc.out(f"v_writelane_b32 v2, s60, {nx}")
            sc.out("s_waitcnt " + w)
            if cfg.trace and len(ops) == 400:
                sc.out("s_memtime s[60:61]\ns_waitcnt lgkmcnt(0)")
                sc.out(f"v_writelane_b32 v2, s60, {32 + nx}")
            if not cfg.nobar:
                sc.out("s_barrier")
            st["step"] = nx
        while st["rd"] < min(i + LA + 1, len(ops)) and ops[st["rd"]]["step"] <= st["step"]:
            o = ops[st["rd"]]
            if "x" in o:
                sc.lds("ds_read_b128", R("v", o["x"][0], 4), o["x"][1], o["x"][2])
            fb = sc.fbuf()
            o["areg"] = fb
            if o["a"][0][0] == "b128":
                sc.lds("ds_read_b128", R("v", fb, 4), o["a"][0][1], o["a"][0][2])
            else:
                sc.lds("ds_read_b64_tr_b16", R("v", fb, 2), o["a"][0][1], o["a"][0][2])
                sc.lds("ds_read_b64_tr_b16", R("v", fb + 2, 2), o["a"][1][1], o["a"][1][2])
            st["rd"] += 1
        for f in fill.get(i, []):
            if callable(f):
                f(sc)
            elif isinstance(f, tuple):
                sc.out(f[0])
                st["lin"].append(f[1])
            else:
                sc.out(f)
                if f.startswith("buffer_"):
                    st["lin"].append(None)
        if i < 0:
            continue
        o = ops[i]
        m = parse(f"{MF} {o['d']}, {R('v', o['areg'], 4)}, {o['b']}, {o['c']}")
        if i % cfg.waitgrp == 0:
            for d in range(1, cfg.waitgrp):
                if i + d < st["rd"]:
                    m.rd = set(m.rd) | {("v", ops[i + d]["areg"] + k) for k in range(4)}
        sc.out.ins.append(m)
        if i in post:
            u = post[i]
            tag = f"{u}_{len(stubs)}"
            sc.out(f"s_cbranch_vccnz L_stub_{tag}\nL_back_{tag}:")
            sc.out(f"v_add_f32 v{vL}, v{vL}, v{vBS}")
            stubs.append((tag, u & 1))


def group_request(cfg, pl, fill, slot, g, tag, kind):
    l = []
    want = "k" if g == 0 else "m" if g < 15 else "v" if g == 15 else "w"
    if want != kind:
        l += {"k": [f"v_xor_b32 v{vD + k}, {32 * k}, v{bK}" for k in range(4)],
              "m": [f"v_mov_b32 v{vD}, v{bM}", f"v_xor_b32 v{vD + 1}, s{sXM}, v{bM}", f"v_xor_b32 v{vD + 2}, s{sXM2}, v{bM}", f"v_xor_b32 v{vD + 3}, s{sXM2}, v{vD + 1}"],
              "v": [f"v_mov_b32 v{vD + k}, v{bV}" for k in range(4)],
              "w": [f"v_add_u32 v{vD + k}, {8192 * k}, v{bWo}" for k in range(4)]}[want]
    so, sr, fl = {"k": (f"s_add_u32 s{sTMP}, s{sB0}, 0", SK, cfg.kvf), "m": (f"s_add_u32 s{sTMP}, s{sMB}, {g * 8192}", SM, cfg.kvf),
                  "v": (f"s_add_u32 s{sTMP}, s{sB0}, {14 * 8192}", SV, cfg.kvf),
                  "w": (f"s_add_u32 s{sTMP}, s{sWB}, s{sTC + max(g - 16, 0)}", SWO, cfg.wf)}[want]
    l += [f"s_add_u32 m0, s{sT4K}, {pl.addr[pl.grp[g][0]]}", so]
    fill.setdefault(slot, []).extend(l)
    for k in range(4):
        if not cfg.noload:
            fill.setdefault(slot + k, []).append((f"buffer_load_dwordx4 v{vD + k}, {srd(sr)}, s{sTMP} offen offset:{k * 1024}{fl} lds", (tag, g)))
    if g == 24:
        fill.setdefault(slot + 3, []).append(f"s_add_u32 s{sWB}, s{sWB}, 147456")
    return want


def rare_routine(p):
    A = Prog()
    S, Sn = S0 + 16 * p, S0 + 16 * (1 - p)
    A(f"L_rare{p}:\ns_nop 15\ns_nop 15")
    A("\n".join(rowmax(S)))
    A(f"v_max_f32 v{vM}, 0, v{vM}")
    for i in range(16):
        A(f"v_sub_f32 v{NEGM + i}, v{NEGM + i}, v{vM}\nv_sub_f32 v{S + i}, v{S + i}, v{vM}\nv_sub_f32 v{Sn + i}, v{Sn + i}, v{vM}")
    A(f"v_sub_f32 v{vM2}, 0, v{vM}\nv_exp_f32 v{vM2}, v{vM2}\ns_nop 0\nv_mul_f32 v{vL}, v{vL}, v{vM2}")
    for i in range(64):
        A(f"v_mul_f32 v{O0 + i}, v{O0 + i}, v{vM2}")
    A("\n".join(softmax_ops(p)))
    A("s_nop 3\ns_setpc_b64 s[40:41]")
    ins, _ = hazard_pass(A.ins)
    return ins


def compute(cfg, pl):
    addr = pl.addr
    sc = Sched(cfg)
    A = sc.out
    A(f"s_lshl_b32 s{sT4K}, s{sW}, 12\ns_mov_b32 s{sTHR}, {hex(f2u(cfg.thr))}")
    lane_patterns(A, True)
    A(f"v_lshlrev_b32 v{vST}, 4, v0\nv_add_u32 v{pQ}, s{sT4K}, v{vST}")
    A(f"s_mul_i32 s56, s{sPAIR}, 884736\ns_lshl_b32 s57, s{sW}, 15\ns_add_u32 s56, s56, s57\ns_lshl_b32 s57, s{sCU}, 12\ns_add_u32 s{sWSo}, s56, s57")
    A("v_lshrrev_b32 v1, 3, v0\nv_and_b32 v2, 7, v0\nv_lshrrev_b32 v16, 4, v0\nv_lshlrev_b32 v18, 8, v1\nv_mul_u32_u24 v19, 1152, v1")
    A(f"v_and_b32 v17, 1, v16\nv_lshlrev_b32 v17, 2, v17\nv_xor_b32 v17, v17, v2\nv_lshl_add_u32 v{bWo}, v17, 4, v19")
    kv_offsets(A, bK, bV)
    A(f"s_cmp_lt_u32 s{sW}, 2\ns_cselect_b32 s{SM}, s{SK}, s{SV}\ns_cselect_b32 s{SM + 1}, s{SK + 1}, s{SV + 1}\ns_mov_b32 s{SM + 2}, 0x4000000\ns_mov_b32 s{SM + 3}, 0x20000")
    A(f"s_cselect_b32 s{sXM}, 32, 0\ns_cselect_b32 s{sXM2}, 64, 0\ns_cselect_b64 vcc, -1, 0\ns_add_u32 s56, s{sT4K}, 8192\ns_cmp_lt_u32 s{sW}, 2")
    A(f"s_cselect_b32 s56, s56, {(-8192) & 0xffffffff}\ns_add_u32 s{sMB}, s{sKV}, s56\nv_cndmask_b32 v{bM}, v{bV}, v{bK}, vcc")
    A(f"s_add_u32 s{sB0}, s{sKV}, s{sT4K}")
    A(f"s_mul_i32 s56, s{sW}, 36864\ns_add_u32 s{sWB}, s{sWOo}, s56")
    for i in range(256):
        A(f"v_accvgpr_write_b32 a{i}, 0")
    for i in range(32):
        A(f"v_mov_b32 v{OUTV + i}, 0")
    A("s_waitcnt vmcnt(0)")
    for p in pK + pV + pWq + pWo + [pQ]:
        sc.bias[p] = 0
    qops = q_ops(addr)
    qf = {}
    kind = None
    for t in range(-1, 9):
        for n_, g in enumerate(pl.sreq[t]):
            kind = group_request(cfg, pl, qf, (16 * t - cfg.LB if t > 0 else -cfg.LA + 1 if t == 0 else -cfg.LA - 8) + 4 * n_, g, "n", kind)
    kind0 = kind
    spread(qf, conv_block(0, f"s{sC}", Q0), 135, 138)
    spread(qf, conv_block(1, f"s{sC}", Q0), 139, 143)
    emit_slots(cfg, sc, qops, qf, {}, -cfg.LA - 8, 144, dict(rd=0, step=-1, lin=[], tag="c"), [], {0: 0})
    A("\n".join(conv_block(2, f"s{sC}", Q0) + conv_block(3, f"s{sC}", Q0)))
    k_patterns(A, False)
    for p in pK:
        sc.bias[p] = 0
    for p in pV + pWo:
        sc.rebias(p, 0)
    sc.rebias(pQ, QBUF)
    head, pend = lgkm_pass(sc.out.ins)
    assert not pend
    head, nh = hazard_pass(head, verbose=cfg.dbg == "nops")
    bias0 = dict(sc.bias)
    sc.out = Prog()
    sc.nbuf = 0
    ops = item_ops(addr)
    fill = {}
    split = 272
    bslot = lambda s_: 16 * s_ - cfg.LB if s_ else 0
    late = {}
    wrapped = False
    for s_ in range(25):
        for n_, (g, w) in enumerate(pl.req[s_]):
            slot = bslot(s_) + 4 * n_
            if w and not wrapped:
                wrapped = True
                assert slot < split, "first wrapped request must precede the split"
                fill.setdefault(slot, []).append(f"s_add_u32 s{sB0}, s{sB0}, 0x20000\ns_add_u32 s{sMB}, s{sMB}, 0x20000\ns_cmp_eq_u32 s{sIT}, 3")
                fill[slot].append(f"s_cselect_b32 s{SK + 2}, 0, s{SK + 2}\ns_cselect_b32 s{SM + 2}, 0, s{SM + 2}")
            assert g >= 16 or w == wrapped
            if w and slot >= split:
                kind = group_request(cfg, pl, late, slot, g, "n", None)
            else:
                kind = group_request(cfg, pl, fill, slot, g, "n" if w else "c", None if slot >= split else kind)
    assert kind == kind0
    post = item_fill(cfg, ops, fill)
    stubs = []
    sc.out("L_item:")
    st = dict(rd=0, step=-1, lin=[("c", g) for g in pl.pro for k in range(4)] if not cfg.noload else [], tag="c")
    emit_slots(cfg, sc, ops, fill, post, -cfg.LA, split, st, stubs, {0: 1, 16: 2})
    sc.out(f"s_cmp_eq_u32 s{sIT}, 3\ns_cbranch_scc1 L_last")
    common, pend = lgkm_pass(sc.out.ins)
    common, n0 = hazard_pass(common, history=head[-20:], verbose=cfg.dbg == "nops")
    sa = copy.deepcopy(sc)
    sa.out = Prog()
    fa = {k: list(v) for k, v in fill.items()}
    for k, v in late.items():
        fa[k] = fa.get(k, []) + v
    for p, r0 in ((0, 288), (1, 381)):
        spread(fa, [(lambda s_, i=i, p=p: s_.lds("ds_read_b128", R("v", Q0 + 16 * p + 4 * i, 4), pQ, QBUF + i * 1024)) for i in range(4)], r0, r0 + 3)
    sta = copy.deepcopy(st)
    emit_slots(cfg, sa, copy.deepcopy(ops), fa, {}, split, 400, sta, stubs)
    assert cfg.noload or [e for e in sta["lin"] if e and e[0] == "n"] == [("n", g) for g in pl.pro for k in range(4)]
    for p, b in bias0.items():
        sa.rebias(p, b)
    if cfg.trace:
        sa.out(f"s_cmp_lg_u32 s{sIT}, 2\ns_cbranch_scc1 L_notr\nv_lshlrev_b32 v1, 2, v0\ns_lshl_b32 s62, s2, 10\ns_lshl_b32 s63, s{sW}, 8\ns_add_u32 s62, s62, s63\ns_add_u32 s62, s62, {STAMP_BASE}")
        sa.out(f"buffer_store_dword v2, v1, {srd(SWS)}, s62 offen\ns_waitcnt vmcnt(0)\nL_notr:")
    sa.out(f"s_add_u32 s{sIT}, s{sIT}, 1\ns_waitcnt lgkmcnt(0)\ns_branch L_item")
    conta, pe = lgkm_pass(sa.out.ins, pend)
    assert not pe
    conta, n1 = hazard_pass(conta, history=common[-20:])
    sb = copy.deepcopy(sc)
    sb.out = Prog()
    sb.out("L_last:")
    fb = {k: list(v) for k, v in fill.items()}
    for t in range(1, 9):
        s0 = 256 + 16 * t
        spread(fb, store_block(cfg, 2 * t - 2, Q0, P0) + store_block(cfg, 2 * t - 1, Q0 + 16, P0 + 8), s0 + 3, s0 + 15)
    emit_slots(cfg, sb, copy.deepcopy(ops), fb, {}, split, 400, copy.deepcopy(st), stubs)
    T = sb.out
    stamp(cfg, T, 3, 0)
    T(f"v_and_b32 v1, 7, v0\nv_lshlrev_b32 v1, 2, v1\nv_add_u32 v2, 1, v{vFL}\nv_cmp_eq_u32 vcc, s{sCU}, v0")
    T(f"s_waitcnt vmcnt(0)\ns_and_saveexec_b64 s[56:57], vcc\nbuffer_store_dword v2, v1, {srd(SWS)}, s{sFLG} offen sc1\ns_mov_b64 exec, s[56:57]")
    poll_flags(T, "c")
    stamp(cfg, T, 4, 0)
    gather_store(cfg, T, 7, OUTV, sW, sCU)
    if cfg.stamp:
        T("s_waitcnt vmcnt(0)")
        stamp(cfg, T, 5, 0)
    T("s_endpgm")
    contb, _ = lgkm_pass(sb.out.ins, pend)
    contb, n2 = hazard_pass(contb, history=common[-20:], verbose=cfg.dbg == "nops")
    st = Prog()
    for tag, p in stubs:
        st(f"L_stub_{tag}:\ns_call_b64 s[40:41], L_rare{p}\ns_branch L_back_{tag}")
    info = dict(nops=(nh, n0, n1, n2), est_item=est_cycles(common + conta))
    return head + common + conta + contb + st.ins + rare_routine(0) + rare_routine(1), info


def kd(name, vg, acc, sg=102):
    return (f".amdhsa_kernel {name}\n  .amdhsa_next_free_vgpr {vg}\n  .amdhsa_next_free_sgpr {sg}\n  .amdhsa_accum_offset {acc}\n"
            "  .amdhsa_group_segment_fixed_size 0\n  .amdhsa_kernarg_size 104\n  .amdhsa_user_sgpr_count 2\n"
            "  .amdhsa_user_sgpr_kernarg_segment_ptr 1\n  .amdhsa_system_sgpr_workgroup_id_x 1\n.end_amdhsa_kernel\n")


def generate(cfg):
    pl = plan_ring(cfg)
    P = Prog()
    prologue(cfg, P)
    pro, _ = hazard_pass(P.ins)
    comp, info = compute(cfg, pl)
    w3, info3 = wave3(cfg, pl)
    info.update(info3)
    s = HDR + "; @launch grid=(256,1,1) block=(256,1,1) lds=163840\n"
    s += '.amdgcn_target "amdgcn-amd-amdhsa--gfx950"\n.text\n'
    s += f".globl {KNAME}\n.p2align 8\n.type {KNAME},@function\n{KNAME}:\n"
    s += render(pro) + render(comp) + render(w3) + "L_done:\n    s_endpgm\n"
    s += '.section .rodata,"a"\n.p2align 6\n' + kd(KNAME, 512, 256)
    return s, info, pl


if __name__ == "__main__":
    import build
    name = sys.argv[1]
    kw = {}
    for a in sys.argv[2:]:
        k, v = a.split("=", 1)
        try:
            v = eval(v)
        except Exception:
            pass
        kw[k] = v
    s, info, plan = generate(Cfg(**kw))
    open(name, "w").write(s)
    print(info)
    build.build(name)
```

```python
import copy
import math
import struct
import sys

from asmlib import Prog, parse, lgkm_pass, hazard_pass, render, est_cycles, R

KNAME = "concat_heads__mha_block_cached__gqa_block_cached__near_ridge_kernel"
HDR = open("concat_heads__mha_block_cached__gqa_block_cached__near_ridge.s.ref").read().split("; Override launch")[0]


def f2u(x):
    return struct.unpack("<I", struct.pack("<f", x))[0]


class Cfg:
    mapping = "16x8"
    kvf = " nt"
    wf = ""
    xf = ""
    pstf = " sc1"
    gf = " sc1"
    of = ""
    psleep = 2
    LA = 6
    LB = 4
    NB = 8
    colors = "defabcdabcdefabc" + "abc" * 3
    dmax = 99
    dwo = 2
    park = (14, 16, 18)
    kv0 = (4, 5, 6)
    WR = 6
    raq = 4
    waitgrp = 4
    wqbatch = 1
    balance = True
    front = True
    stamp = False
    pf = True
    dbl = False
    pfx = False
    thr = 1024.0
    quota = (13, 24, 20) + (20,) * 12 + (21, 21) + (15,) * 6 + (3, 0)
    pf_wo_step = 1
    pf_wq_step = 12
    pf_wq0_step = 1
    dbg = None
    nobar = False
    noload = False
    delay = 0
    prof = False
    trace = False
    half = 0

    def __init__(self, **kw):
        for k, v in kw.items():
            assert hasattr(Cfg, k), k
            setattr(self, k, v)


pK = [4, 5, 6, 7]
pV = [8, 9]
pWq = [10, 11]
pWo = [12, 13]
vL, vBS = 14, 15
vT = [16, 17, 18, 19]
vM, vM2, vST, vFL = 20, 21, 22, 23
FR0, NEGM, S0, P0, Q0, O0, OUTV, FRX = 24, 48, 64, 96, 112, 144, 208, 240
OF = S0
pQ = 3
bK, bV, bWo, bM = 248, 249, 250, 251
vD = 252
sW, sB, sH = 3, 4, 5
SK, SV, SWQ, SWO, SX, SWS = 16, 20, 24, 28, 32, 36
sKV, sXo, sWQo, sWOo, sTMP, sIT, sC, sTHR, sT4K, sWSo = 42, 43, 44, 45, 46, 47, 48, 49, 50, 51
sJ, sPAIR, sCU = 52, 53, 59
SDB, SOUT = 68, 72
sTC = 80
sFLG = 89
SWQ2 = 92
SM = 96
sMB, sB0, sWB, sXM, sXM2 = 90, 91, 66, 67, 100
WRB = 24 * 4096
MF = "v_mfma_f32_32x32x16_bf16"
QBUF = 31 * 4096
XRES = 34 * 4096
FLAGBASE = 32 << 20
TORD = (0, 1, 2, 7, 8, 3, 4, 5, 6)


def srd(n):
    return f"s[{n}:{n + 3}]"


def w3_quads():
    return [("wq3", p, t, rb) for p in range(2) for t in TORD for rb in range(2)]


def w3_ops(cfg):
    quads = w3_quads()
    ops = []
    for p in range(2):
        pq = quads[18 * p:18 * p + 18]
        groups = [pq[0:2]] + [[q] for q in pq[2:16]] + [pq[16:18]]
        for grp in groups:
            if len(grp) == 2:
                seqv = [(q, s2, hb) for hb in range(2) for q in grp for s2 in range(2)]
            else:
                seqv = [(grp[0], s2, hb) for s2 in range(2) for hb in range(2)]
            for (q, s2, hb) in seqv:
                ks = 4 * q[2] + 2 * q[3] + s2
                for j in range(3):
                    ops.append(dict(q=q, s2=s2, hb=hb, j=j, ks=ks, p=p, first=(q == pq[0] and s2 == 0), last=(q == pq[17] and s2 == 1)))
    assert len(ops) == 432 == sum(cfg.quota)
    i = 0
    for s, n in enumerate(cfg.quota):
        for o in ops[i:i + n]:
            o["step"] = s
        i += n
    for i in range(0, 432, 3):
        for d in range(3):
            ops[i + d]["astep"] = ops[i]["step"]
    return ops


class Plan:
    pass


def plan_ring(cfg):
    pl = Plan()
    grp = [[("k", 0, 0), ("k", 0, 1), ("k", 1, 0), ("k", 1, 1)]]
    for u in range(1, 15):
        grp.append([("k", u + 1, 0), ("k", u + 1, 1), ("v", u - 1, 0), ("v", u - 1, 1)])
    grp.append([("v", 14, 0), ("v", 14, 1), ("v", 15, 0), ("v", 15, 1)])
    for t in range(9):
        grp.append([("wo", t, rb) for rb in range(4)])
    ns = len(grp)
    addr = {}
    for s_, g in enumerate(grp):
        for k, q in enumerate(g):
            addr[q] = (ord(cfg.colors[s_]) - 97) * 16384 + k * 4096
    start = []
    xslot = (QBUF, WRB, WRB + 12288) * 2 + (QBUF, XRES, XRES + 12288)
    for t in range(9):
        wq = [("wq", t, rb, cb) for rb in range(2) for cb in range(2)]
        for k, q in enumerate(wq):
            addr[q] = (ord(cfg.colors[16 + t]) - 97) * 16384 + k * 4096
        for rb in range(3):
            addr[("x", t, rb)] = xslot[t] + rb * 4096
        start.append(wq + [("x", t, rb) for rb in range(3)])
    for i, q in enumerate(w3_quads()):
        addr[q] = WRB + (i % cfg.WR) * 4096
    req = {b: [] for b in range(ns)}
    for g in range(ns):
        gap = next(d for d in range(1, ns + 1) if cfg.colors[(g - d) % ns] == cfg.colors[g])
        lead = min(gap - 1, cfg.dwo if g >= 16 else cfg.dmax)
        if g < len(cfg.park):
            assert ns + g - cfg.park[g] <= lead
            lead = ns + g - cfg.park[g]
        assert lead >= 1
        req[(g - lead) % ns].append((g, g - lead < 0))
    for b in req:
        req[b].sort(key=lambda e: e[1])
    pl.req = req
    pl.pro = [g for b in range(ns) for g, w in req[b] if w]
    pl.sreq = {b: [] for b in range(-1, 9)}
    bb = -1
    for n_, g in enumerate(pl.pro):
        b = next(b for b in range(ns) if (g, True) in req[b])
        bb = max(bb, cfg.kv0[n_] if n_ < len(cfg.kv0) else b - 16)
        assert all(cfg.colors[16 + t] != cfg.colors[g] for t in range(max(bb, 0), 9))
        pl.sreq[bb].append(g)
    sissue = {b: [] for b in range(-1, 9)}
    lastuse = {}
    b = -1
    for t in range(9):
        for q in start[t]:
            lo = addr[q]
            b = max(b, lastuse.get(lo, -9) + 1)
            assert b < t
            sissue[b].append(q)
            lastuse[lo] = t
    pl.slast = lastuse
    pl.grp, pl.start, pl.addr, pl.sissue = grp, start, addr, sissue
    return pl


def prologue(cfg, A):
    A("s_cmp_ge_u32 s2, 256\ns_cbranch_scc1 L_done")
    if cfg.trace == "head":
        A("s_memrealtime s[60:61]\ns_waitcnt lgkmcnt(0)\ns_mov_b32 s101, s60")
    A(f"v_lshrrev_b32 v1, 6, v0\nv_and_b32 v0, 63, v0\nv_readfirstlane_b32 s{sW}, v1")
    A("s_and_b32 s6, s2, 4\ns_mul_i32 s6, s6, 10\ns_add_u32 s6, s0, s6\ns_addc_u32 s7, s1, 0")
    A("s_load_dwordx2 s[40:41], s[6:7], 0\ns_load_dwordx4 s[8:11], s[6:7], 8\ns_load_dwordx4 s[12:15], s[6:7], 24")
    A("s_load_dwordx2 s[54:55], s[0:1], 96\ns_load_dwordx4 s[76:79], s[0:1], 80")
    A(f"s_and_b32 s57, s2, 3\ns_lshr_b32 s{sJ}, s2, 3")
    if cfg.mapping == "16x8":
        A(f"s_lshr_b32 s{sB}, s{sJ}, 1\ns_and_b32 s{sH}, s{sJ}, 1\ns_lshl_b32 s{sH}, s{sH}, 2\ns_lshl_b32 s57, s57, 3\ns_add_u32 s{sH}, s{sH}, s57")
    elif cfg.mapping == "8x16":
        A(f"s_and_b32 s56, s57, 1\ns_lshl_b32 s56, s56, 3\ns_lshr_b32 s{sB}, s{sJ}, 2\ns_add_u32 s{sB}, s{sB}, s56")
        A(f"s_lshr_b32 s56, s57, 1\ns_lshl_b32 s56, s56, 4\ns_and_b32 s{sH}, s{sJ}, 3\ns_lshl_b32 s{sH}, s{sH}, 2\ns_add_u32 s{sH}, s{sH}, s56")
    else:
        A(f"s_lshl_b32 s56, s57, 2\ns_lshr_b32 s{sB}, s{sJ}, 3\ns_add_u32 s{sB}, s{sB}, s56\ns_and_b32 s{sH}, s{sJ}, 7\ns_lshl_b32 s{sH}, s{sH}, 2")
    if cfg.half:
        A(f"s_and_b32 s56, s{sB}, {cfg.half}\ns_cmp_lg_u32 s56, 0\ns_cbranch_scc1 L_done")
    A(f"s_lshl_b32 s{sKV}, s{sB}, 22\ns_lshl_b32 s56, s{sH}, 17\ns_add_u32 s{sKV}, s{sKV}, s56")
    A(f"s_mul_i32 s{sXo}, s{sB}, 110592\ns_lshl_b32 s{sWQo}, s{sH}, 8\ns_mul_i32 s{sWOo}, s{sH}, 147456")
    A(f"s_and_b32 s56, s2, 4\ns_lshl_b32 s56, s56, 2\ns_add_u32 s{sPAIR}, s56, s{sB}\ns_lshr_b32 s{sCU}, s{sH}, 2")
    for tau in range(9):
        A(f"s_add_u32 s56, s{sCU}, {1 + tau}\ns_cmp_ge_u32 s56, 9\ns_cselect_b32 s57, 9, 0\ns_sub_u32 s56, s56, s57\ns_lshl_b32 s{sTC + tau}, s56, 7")
    A(f"s_mov_b32 s{sIT}, 0\ns_mov_b32 s{sC}, {hex(f2u(math.log2(math.e) / math.sqrt(128.0)))}")
    A(f"s_cmp_eq_u32 s{sW}, 3\ns_cselect_b32 s56, s{sCU}, s{sW}\ns_mul_i32 s57, s{sPAIR}, 3\ns_add_u32 s56, s56, s57\ns_lshl_b32 s56, s56, 12\ns_add_u32 s{sFLG}, s56, {FLAGBASE}")
    A(f"s_cmp_eq_u32 s{sW}, 3\ns_cbranch_scc1 L_loader")


def descriptors(A):
    A("s_waitcnt lgkmcnt(0)")
    for d, b, n in ((SWQ, 12, 4718592), (SX, 40, 1769472), (SWS, 54, 290848768), (SK, 8, 0x4000000), (SV, 10, 0x4000000),
                    (SWO, 14, 4718592), (SWQ2, 12, 4718592), (SOUT, 76, 3538944), (SDB, 78, 256)):
        A(f"s_mov_b32 s{d}, s{b}\ns_mov_b32 s{d + 1}, s{b + 1}\ns_mov_b32 s{d + 2}, {n}\ns_mov_b32 s{d + 3}, 0x20000")


def sample_flags(A):
    A(f"v_and_b32 v1, 7, v0\nv_lshlrev_b32 v1, 2, v1\nbuffer_load_dword v{vFL}, v1, {srd(SWS)}, s{sFLG} offen sc1")


STAMP_BASE = 64 << 20


def stamp(cfg, A, k, who):
    if not cfg.stamp:
        return 0
    A("s_memrealtime s[60:61]\ns_memtime s[64:65]\ns_waitcnt lgkmcnt(0)")
    A(f"s_lshl_b32 s62, s2, 10\ns_lshl_b32 s63, s{sIT}, 7\ns_add_u32 s62, s62, s63\ns_add_u32 s62, s62, {STAMP_BASE + who * 512 + 8 * k}")
    t = 18 if who else 0
    if who:
        A(f"v_mov_b32 v{t}, s60\nv_mov_b32 v{t + 1}, s64\nv_mov_b32 v{t + 2}, 0\nbuffer_store_dwordx2 v[{t}:{t + 1}], v{t + 2}, {srd(SWS)}, s62 offen")
    else:
        A(f"v_mov_b32 v0, s60\nv_mov_b32 v1, s64\nv_mov_b32 v2, 0\nbuffer_store_dwordx2 v[0:1], v2, {srd(SWS)}, s62 offen")
        A("s_nop 1\nv_mbcnt_lo_u32_b32 v0, -1, 0\nv_mbcnt_hi_u32_b32 v0, -1, v0")
    return 1


class Sched:
    def __init__(self, cfg):
        self.cfg = cfg
        self.bias = {}
        self.nbuf = 0
        self.out = Prog()

    def fbuf(self):
        i = self.nbuf % self.cfg.NB
        self.nbuf += 1
        return FR0 + 4 * i if i < 6 else FRX + 4 * (i - 6)

    def lds(self, op, reg, preg, a):
        b = self.bias[preg]
        if not (0 <= a - b <= 65535):
            nb = a & ~4095
            self.out(f"v_add_u32 v{preg}, {(nb - b) & 0xffffffff}, v{preg}")
            self.bias[preg] = b = nb
        if op.startswith("ds_read"):
            self.out(f"{op} {reg}, v{preg} offset:{a - b}")
        else:
            self.out(f"{op} v{preg}, {reg} offset:{a - b}")

    def rebias(self, preg, nb):
        b = self.bias[preg]
        if b != nb:
            self.out(f"v_add_u32 v{preg}, {(nb - b) & 0xffffffff}, v{preg}")
            self.bias[preg] = nb


def spread(fill, ops_list, s0, s1):
    n = s1 - s0 + 1
    cost = [2 if isinstance(o, str) and o.startswith("v_exp") else 1 for o in ops_list]
    tot = sum(cost)
    acc = 0
    for o, c in zip(ops_list, cost):
        k = min(n - 1, int((acc + c / 2) * n / tot))
        fill.setdefault(s0 + k, []).append(o)
        acc += c


def spread_bal(cfg, ops, fill, ops_list, s0, s1):
    if not cfg.balance:
        return spread(fill, ops_list, s0, s1)
    base = []
    for i in range(s0, s1 + 1):
        o = ops[min(i + cfg.LA, len(ops) - 1)]
        base.append(len(o["a"]) + (1 if i % cfg.waitgrp == 0 else 0) + sum(VMCOST if isinstance(f, tuple) else 1 for f in fill.get(i, [])))
    cost = [2 if isinstance(o, str) and o.startswith("v_exp") else 1 for o in ops_list]
    level = (sum(cost) + sum(base)) / len(base)
    k, room = 0, level - base[0]
    for o, c in zip(ops_list, cost):
        while k < len(base) - 1 and room < c / 2:
            k += 1
            room += level - base[k]
        fill.setdefault(s0 + k, []).append(o)
        room -= c


def k_patterns(A, xform, off=None):
    A("v_lshrrev_b32 v1, 5, v0\nv_and_b32 v2, 31, v0\nv_lshrrev_b32 v16, 1, v2\nv_and_b32 v16, 7, v16\nv_xor_b32 v16, v16, v1")
    if xform:
        A("v_lshlrev_b32 v2, 7, v2")
        if off:
            A(f"v_add_u32 v2, s{off}, v2")
    else:
        A("v_lshrrev_b32 v17, 2, v2\nv_and_b32 v2, 3, v2\nv_lshlrev_b32 v2, 7, v2\nv_lshl_add_u32 v2, v17, 10, v2")
    for j in range(4):
        A(f"v_xor_b32 v17, {2 * j}, v16\nv_lshl_add_u32 v{pK[j]}, v17, 4, v2")


def lane_patterns(A, with_wave_offset):
    k_patterns(A, True, sT4K if with_wave_offset else None)
    A("v_lshrrev_b32 v2, 2, v0\nv_and_b32 v2, 3, v2\nv_lshrrev_b32 v3, 1, v2\nv_lshlrev_b32 v3, 6, v3")
    A("v_lshrrev_b32 v16, 4, v0\nv_and_b32 v16, 1, v16\nv_and_b32 v17, 1, v0\nv_lshrrev_b32 v18, 1, v0\nv_and_b32 v18, 1, v18")
    A("v_lshl_add_u32 v19, v1, 2, v2\nv_lshlrev_b32 v19, 7, v19\nv_lshl_add_u32 v20, v1, 3, v2\nv_lshlrev_b32 v20, 7, v20")
    A("v_lshlrev_b32 v21, 5, v16\nv_lshl_add_u32 v21, v17, 3, v21\nv_lshl_add_u32 v21, v18, 4, v21\nv_lshl_add_u32 v21, v2, 7, v21\nv_lshl_add_u32 v21, v1, 10, v21")
    A(f"v_add_u32 v{pV[0]}, v21, v3\nv_xor_b32 v{pV[1]}, 64, v{pV[0]}")
    A("v_lshlrev_b32 v21, 5, v16\nv_lshl_add_u32 v21, v17, 4, v21\nv_lshl_add_u32 v21, v18, 3, v21\nv_add_u32 v21, v21, v20")
    A(f"v_add_u32 v{pWq[0]}, v21, v3\nv_xor_b32 v{pWq[1]}, 64, v{pWq[0]}")
    A("v_lshlrev_b32 v21, 5, v17\nv_lshl_add_u32 v21, v16, 4, v21\nv_lshl_add_u32 v21, v18, 3, v21\nv_add_u32 v21, v21, v19")
    A(f"v_add_u32 v{pWo[0]}, v21, v3\nv_xor_b32 v{pWo[1]}, 64, v{pWo[0]}")


def kv_offsets(A, dk, dv):
    A("v_lshrrev_b32 v1, 3, v0\nv_and_b32 v1, 3, v1\nv_and_b32 v2, 7, v0\nv_lshrrev_b32 v16, 5, v0\nv_lshlrev_b32 v16, 7, v16\nv_lshl_add_u32 v16, v1, 8, v16")
    A(f"v_lshrrev_b32 v1, 1, v1\nv_xor_b32 v17, v1, v2\nv_lshl_add_u32 v{dk}, v17, 4, v16")
    A(f"v_lshlrev_b32 v1, 2, v1\nv_xor_b32 v17, v1, v2\nv_lshl_add_u32 v{dv}, v17, 4, v16")


def finish_unit(cfg, A, tag, nsrc, acc, w_sreg, t_sreg, publish, G=32):
    A("v_and_b32 v1, 7, v0\nv_lshlrev_b32 v1, 2, v1\nv_lshlrev_b32 v6, 4, v0")
    A(f"buffer_load_dword v2, v1, {srd(SWS)}, s{sFLG} offen sc1")
    A(f"s_mul_i32 s56, s{sPAIR}, 884736\ns_mul_i32 s57, s{t_sreg}, 3\ns_add_u32 s57, s57, s{w_sreg}\ns_lshl_b32 s57, s57, 15\ns_add_u32 s56, s56, s57")
    A(f"s_mul_i32 s60, s{sB}, 96\ns_lshl_b32 s58, s{w_sreg}, 5\ns_add_u32 s60, s60, s58\ns_mul_i32 s60, s60, 2304\ns_lshl_b32 s58, s{t_sreg}, 7\ns_add_u32 s60, s60, s58")
    A("s_and_b32 s58, s2, 4\ns_mul_i32 s58, s58, 288\ns_add_u32 s60, s60, s58")
    A("v_and_b32 v7, 31, v0\nv_mul_u32_u24 v7, 2304, v7\nv_lshrrev_b32 v3, 5, v0\nv_lshl_add_u32 v7, v3, 5, v7")
    A(f"s_mov_b32 s62, {((1 << nsrc) - 1) << 1}\ns_mov_b32 s58, 0")
    if nsrc == 8:
        for k in range(32):
            A(f"v_mov_b32 v{acc + k}, 0")
    if publish:
        A(f"v_add_u32 v3, 1, v{vFL}\nv_cmp_eq_u32 vcc, s{sCU}, v0\ns_waitcnt vmcnt(0)\ns_and_saveexec_b64 s[64:65], vcc")
        A(f"buffer_store_dword v3, v1, {srd(SWS)}, s{sFLG} offen sc1\ns_mov_b64 exec, s[64:65]\ns_branch L_chk{tag}")
    A(f"L_poll{tag}:\ns_waitcnt vmcnt(0)\nL_chk{tag}:\nv_cmp_ne_u32 vcc, v2, v{vFL}")
    A(f"s_and_b32 s63, vcc_lo, 0xffff\ns_lshr_b32 s63, s63, s{sCU}\ns_and_b32 s63, s63, s62\ns_cbranch_scc1 L_some{tag}")
    A(f"s_add_u32 s58, s58, 1\ns_cmp_gt_u32 s58, 0x100000\ns_cbranch_scc1 L_out{tag}\ns_sleep {cfg.psleep}")
    A(f"buffer_load_dword v2, v1, {srd(SWS)}, s{sFLG} offen sc1\ns_branch L_poll{tag}\nL_some{tag}:")

    def loads(i):
        A(f"s_add_u32 s57, s{sCU}, {i}\ns_and_b32 s57, s57, 7\ns_lshl_b32 s57, s57, 12\ns_add_u32 s57, s57, s56")
        for p in range(4):
            A(f"buffer_load_dwordx4 {R('v', G + 16 * (i - 1) + 4 * p, 4)}, v6, {srd(SWS)}, s57 offen offset:{1024 * p}{cfg.gf}")

    def adds(i):
        for k in range(16):
            r = G + 16 * (i - 1) + k
            A(f"v_lshlrev_b32 v4, 16, v{r}\nv_and_b32 v5, 0xffff0000, v{r}")
            A(f"v_add_f32 v{acc + 2 * k}, v{acc + 2 * k}, v4\nv_add_f32 v{acc + 2 * k + 1}, v{acc + 2 * k + 1}, v5")
    A(f"s_cmp_lg_u32 s63, {((1 << nsrc) - 1) << 1}\ns_cbranch_scc1 L_part{tag}")
    for i in range(1, nsrc + 1):
        loads(i)
    for i in range(1, nsrc + 1):
        A(f"s_waitcnt vmcnt({4 * (nsrc - i)})")
        adds(i)
    A(f"L_out{tag}:")
    for p in range(4):
        for k in range(4):
            A(f"v_cvt_pk_bf16_f32 v{8 + 4 * p + k}, v{acc + 8 * p + 2 * k}, v{acc + 8 * p + 2 * k + 1}")
        A(f"buffer_store_dwordx4 {R('v', 8 + 4 * p, 4)}, v7, {srd(SOUT)}, s60 offen offset:{64 * (p >> 1) + 16 * (p & 1)}{cfg.of}")
    if cfg.stamp and publish:
        A("s_waitcnt vmcnt(0)")
        stamp(cfg, A, 5, 0)
    A(f"s_endpgm\nL_part{tag}:")
    for i in range(1, nsrc + 1):
        A(f"s_bitcmp1_b32 s63, {i}\ns_cbranch_scc0 L_nl{tag}{i}")
        loads(i)
        A(f"L_nl{tag}{i}:")
    A(f"buffer_load_dword v2, v1, {srd(SWS)}, s{sFLG} offen sc1\ns_waitcnt vmcnt(1)")
    for i in range(1, nsrc + 1):
        A(f"s_bitcmp1_b32 s63, {i}\ns_cbranch_scc0 L_na{tag}{i}")
        adds(i)
        A(f"L_na{tag}{i}:")
    A(f"s_andn2_b32 s62, s62, s63\ns_cbranch_scc1 L_poll{tag}\ns_branch L_out{tag}")


vK, vV, vWq, vWo, vX = 24, 28, 32, 36, 176
W3A = 40
W3B = 52
W3X = 76
W3ACC = 160
vTQ, vTO, vTX, vDUM = 12, 13, 14, 15
pQ3 = 22


def xreg(ks, j):
    i = ks * 3 + j
    return R("a", 4 * i, 4) if i < 64 else R("v", W3X + 4 * (i - 64), 4)


def wave3(cfg, pl):
    addr = pl.addr
    sc = Sched(cfg)
    A = sc.out
    A("L_loader:")
    if cfg.prof:
        A("s_mov_b32 s96, 0\ns_mov_b32 s97, 0\ns_mov_b32 s98, 0\ns_mov_b32 s99, 0")
    lane_patterns(A, False)
    A(f"v_lshlrev_b32 v{pQ3}, 4, v0")
    for p in pK + pWq + [pQ3]:
        sc.bias[p] = 0
    A("v_lshrrev_b32 v1, 3, v0\nv_and_b32 v2, 7, v0\nv_lshrrev_b32 v3, 4, v0")
    A("v_and_b32 v16, 1, v3\nv_lshlrev_b32 v16, 2, v16\nv_xor_b32 v16, v16, v2\nv_lshlrev_b32 v16, 4, v16")
    A("v_lshlrev_b32 v18, 8, v1\nv_lshlrev_b32 v19, 13, v1\nv_mul_u32_u24 v20, 1152, v1")
    for g in range(4):
        A(f"v_add_u32 v17, {4 * g}, v3\nv_and_b32 v17, 7, v17\nv_xor_b32 v17, v17, v2\nv_lshlrev_b32 v17, 4, v17")
        A(f"v_add_u32 v17, {g * (9216 - 1024)}, v17\nv_add_u32 v{vX + g}, v17, v20")
        A(f"v_add_u32 v17, {g * (65536 - 1024)}, v16\nv_add_u32 v{vWq + g}, v17, v19")
        A(f"v_add_u32 v17, {g * (9216 - 1024)}, v16\nv_add_u32 v{vWo + g}, v17, v20")
    kv_offsets(A, vK, vV)
    for g in range(1, 4):
        A(f"v_xor_b32 v{vK + g}, {32 * g}, v{vK}\nv_mov_b32 v{vV + g}, v{vV}")
    nsh = {"16x8": 16, "8x16": 8, "4x32": 4}[cfg.mapping]
    xsh = 32 // nsh
    rows = 576 // nsh
    A(f"s_and_b32 s56, s{sB}, {nsh - 1}\nv_mov_b32 v21, 0x7fffff00\nv_cmp_gt_u32 vcc, 36, v0")
    A(f"v_lshrrev_b32 v{vTQ}, 1, v0\nv_lshlrev_b32 v{vTQ}, 13, v{vTQ}\nv_and_b32 v17, 1, v0\nv_lshlrev_b32 v17, 7, v17\nv_add_u32 v{vTQ}, v{vTQ}, v17")
    A(f"s_mul_i32 s57, s56, {rows * 8192}\nv_add_u32 v{vTQ}, s57, v{vTQ}\nv_cndmask_b32 v{vTQ}, v21, v{vTQ}, vcc")
    A(f"v_lshlrev_b32 v{vTO}, 7, v0\ns_mul_i32 s57, s56, {rows * 256}\nv_add_u32 v{vTO}, s57, v{vTO}\nv_cndmask_b32 v{vTO}, v21, v{vTO}, vcc")
    A(f"v_cmp_gt_u32 vcc, 54, v0\nv_lshlrev_b32 v{vTX}, 7, v0\ns_and_b32 s57, s{sCU}, {xsh - 1}\ns_mul_i32 s57, s57, {110592 // xsh}\nv_add_u32 v{vTX}, s57, v{vTX}")
    A(f"v_cndmask_b32 v{vTX}, v21, v{vTX}, vcc")

    def touch_ops(vreg, srd_, base, add, step, nl=rows * 2, per=36):
        l = []
        if not cfg.pf:
            return l
        for i in range(nl // per):
            l.append(f"s_add_u32 s{sTMP}, s{base}, {i * per * step + add}")
            for fl in ((" nt", "") if cfg.dbl else ("",)):
                l.append(("vm", f"buffer_load_dword v{vDUM}, v{vreg}, {srd(srd_)}, s{sTMP} offen{fl}"))
        return l

    def quad_ops(q, w=False):
        k = q[0]
        pre = []
        if k == "k":
            off, base, v, sr, fl = q[1] * 8192 + q[2] * 4096, sKV, vK, SK, cfg.kvf
        elif k == "v":
            off, base, v, sr, fl = q[1] * 8192 + q[2] * 4096, sKV, vV, SV, cfg.kvf
        elif k == "wq":
            off, base, v, sr, fl = (q[1] * 64 + q[2] * 32) * 8192 + q[3] * 128, sWQo, vWq, SWQ, cfg.wf
        elif k == "wq3":
            off, base, v, sr, fl = (q[2] * 64 + q[3] * 32) * 8192 + q[1] * 128 + 256, sWQo, vWq, (SWQ2 if w else SWQ), cfg.wf
        elif k == "x":
            off, base, v, sr, fl = q[2] * 32 * 1152 + q[1] * 128, sXo, vX, SX, cfg.xf
        else:
            pre = [f"s_add_u32 s{sTMP}, s{sWOo}, s{sTC + q[1]}"]
            off, base, v, sr, fl = q[2] * 32 * 1152, sTMP, vWo, SWO, cfg.wf
        l = pre + [f"s_mov_b32 m0, {addr[q]}", f"s_add_u32 s{sTMP}, s{base}, {off}"]
        for g in range(4):
            if not cfg.noload:
                l.append(("vm", f"buffer_load_dwordx4 v{v + g}, {srd(sr)}, s{sTMP} offen offset:{g * 1024}{fl} lds", q, g))
        return l

    lin = []

    def put(sc_, o, gen=0):
        if isinstance(o, tuple):
            sc_.out(o[1])
            lin.append((o[2] if len(o) > 2 else None, gen))
        elif callable(o):
            o(sc_)
        else:
            sc_.out(o)

    def wait_for(sc_, quads, gen):
        if cfg.noload:
            return
        last = max(k for k, e in enumerate(lin) if e[0] in quads and e[1] == gen)
        sc_.out(f"s_waitcnt vmcnt({min(63, len(lin) - 1 - last)})")

    def bar(sc_):
        if not cfg.nobar:
            sc_.out("s_barrier")

    descriptors(A)
    if stamp(cfg, A, 15, 1):
        lin.append((None, 0))
    if cfg.delay:
        A(f"s_and_b32 s56, s{sB}, 1\ns_cmp_eq_u32 s56, 0\ns_cbranch_scc1 L_nodelay")
        for _ in range(cfg.delay):
            A("s_sleep 32")
        A("L_nodelay:")
    for n_, q in enumerate(pl.sissue[-1]):
        for o in quad_ops(q):
            put(sc, o)
        if n_ == 6:
            sample_flags(A)
            lin.append((("flag",), 0))
    bias0 = {p: XRES for p in pK}
    bias0.update({p: WRB for p in pWq})
    bias0[pQ3] = QBUF
    ops = w3_ops(cfg)
    quads = w3_quads()
    ns = len(pl.grp)

    def conv_tile(p, hb, j):
        acc = W3ACC + 16 * (3 * hb + j)
        l = []
        for s in range(2):
            pk = W3B + 8 + 4 * s
            for k in range(4):
                t0 = W3B + 2 * (k & 1)
                r = acc + 8 * s + 2 * k
                l += [f"v_mul_f32 v{t0}, s{sC}, v{r}", f"v_mul_f32 v{t0 + 1}, s{sC}, v{r + 1}", f"v_cvt_pk_bf16_f32 v{pk + k}, v{t0}, v{t0 + 1}"]
            l.append(lambda sc_, pk=pk, a=QBUF + (j * 4 + hb * 2 + s) * 1024: sc_.lds("ds_write_b128", R("v", pk, 4), pQ3, a))
        return l

    def period(last, pro):
        nonlocal lin
        sc2 = Sched(cfg)
        sc2.bias = dict(bias0)
        B = sc2.out
        lin = [(q, 0) for q in pro for g in range(4)] if not cfg.noload else []
        myops = [] if last else copy.deepcopy(ops)
        n = len(myops)
        fill = {}
        bpos = {s: (sum(cfg.quota[:s]) if not last else 0) for s in range(ns + 1)}
        enq = {}
        if not last:
            lastidx = {(o["p"], o["hb"], o["j"]): i for i, o in enumerate(ops) if o["last"]}
            for p, hb in ((0, 0), (1, 0), (0, 1)):
                i0 = lastidx[(p, hb, 2)]
                spread(fill, sum((conv_tile(p, hb, j) for j in range(3)), []), i0 + 4, i0 + 12)
            assert lastidx[(0, 1, 2)] + 16 <= bpos[18] and lastidx[(1, 0, 2)] + 4 >= bpos[19]
            firstop = {q: min(i for i, o in enumerate(ops) if o["q"] == q) for q in quads}
            lastop = {q: max(i for i, o in enumerate(ops) if o["q"] == q) - 2 for q in quads}
            seg = lambda i: max(s for s in range(ns) if bpos[s] <= i)
            at = 0
            for k in range(36, 72):
                prev = max(j for j in range(k) if addr[quads[j % 36]] == addr[quads[k % 36]])
                free = lastop[quads[prev % 36]] + 1 + (prev // 36 - 1) * n
                sneed = seg(firstop[quads[k % 36]]) - cfg.raq
                early = bpos[sneed] if sneed >= 0 else bpos[sneed + ns] - n
                at = max(free, early) if k == 36 else max(at, free, early)
                assert at <= firstop[quads[k % 36]] - 5
                enq.setdefault(at % n if at < 0 else at, []).append((quads[k % 36], at < 0))
        st = dict(wrapq=False, wrapg=False, rdA=0, rdB=0, abuf=0, bbuf=0, step=-1)
        queue = []

        def drain(nvm):
            while queue and nvm > 0:
                o, g = queue.pop(0)
                put(sc2, o, g)
                nvm -= isinstance(o, tuple)

        def open_step(s):
            if cfg.trace is True:
                B(f"s_memtime s[60:61]\ns_waitcnt lgkmcnt(0)\nv_writelane_b32 v2, s60, {s}")
            wait_for(sc2, {pl.grp[s][3]}, 0)
            if cfg.trace is True:
                B(f"s_memtime s[60:61]\ns_waitcnt lgkmcnt(0)\nv_writelane_b32 v2, s60, {32 + s}")
            if s in (0, 16):
                if stamp(cfg, B, {0: 1, 16: 2}[s], 1):
                    lin.append((None, 0))
            if last and s == 16:
                B("v_readfirstlane_b32 s57, v17\ns_mov_b32 s58, 0\nL_chk:\ns_cmp_ge_u32 s57, 8\ns_cbranch_scc1 L_chkend")
                B(f"buffer_load_dword v17, v16, {srd(SDB)}, 0 offen sc1\ns_add_u32 s58, s58, 1\ns_waitcnt vmcnt(0)\nv_readfirstlane_b32 s57, v17")
                B("s_cmp_lt_u32 s58, 0x80000\ns_cbranch_scc1 L_chk\nL_chkend:")
            bar(sc2)
            for g, w in pl.req[s]:
                if w and not st["wrapg"]:
                    st["wrapg"] = True
                    queue.append((f"s_add_u32 s{sKV}, s{sKV}, 0x20000", 0))
                assert g >= 16 or w == st["wrapg"]
                if not (last and w):
                    queue.extend((o, int(w)) for o in quad_ops(pl.grp[g][3]))
            if last and s == 2:
                queue.extend([(f"s_lshl_b32 s56, s{sPAIR}, 2", 0), ("v_mov_b32 v16, s56", 0), (("vm", f"buffer_load_dword v17, v16, {srd(SDB)}, 0 offen sc1"), 0)])
            if s == cfg.pf_wo_step:
                queue.extend((o, 0) for o in touch_ops(vTO, SWO, sWOo, 0, 128))
            if s == cfg.pf_wq_step and not last:
                queue.append((f"s_cmp_eq_u32 s{sIT}, 2\ns_cselect_b32 s{SWQ2 + 2}, 0, s{SWQ2 + 2}", 0))
                queue.extend((o, 0) for o in touch_ops(vTQ, SWQ2, sWQo, 512, 4096))
            if bpos[s + 1] == bpos[s]:
                drain(99)
            st["step"] = s

        for i in range(n):
            while st["step"] + 1 < ns and bpos[st["step"] + 1] <= i:
                open_step(st["step"] + 1)
            for q, w in enq.get(i, []):
                if w and not st["wrapq"]:
                    st["wrapq"] = True
                    queue.append((f"s_add_u32 s{sWQo}, s{sWQo}, 256", 0))
                assert w == st["wrapq"]
                queue.extend((o, int(w)) for o in quad_ops(q, w))
            while st["rdA"] < n and st["rdA"] <= i + 5:
                o = myops[st["rdA"]]
                if st["rdA"] == firstop[o["q"]] and not cfg.noload:
                    while lin.count((o["q"], 0)) < 4:
                        drain(1)
                    wait_for(sc2, {o["q"]}, 0)
                fb = W3A + 4 * (st["abuf"] % 3)
                st["abuf"] += 1
                qa = addr[o["q"]] + 16 * o["s2"] * 128
                sc2.lds("ds_read_b64_tr_b16", R("v", fb, 2), pWq[o["hb"]], qa)
                sc2.lds("ds_read_b64_tr_b16", R("v", fb + 2, 2), pWq[o["hb"]], qa + 4 * 128)
                for d in range(3):
                    myops[st["rdA"] + d]["areg"] = fb
                st["rdA"] += 3
            while st["rdB"] < n and st["rdB"] <= i + 5:
                o = myops[st["rdB"]]
                if o["ks"] < 28:
                    o["breg"] = xreg(o["ks"], o["j"])
                elif o["hb"] == 0:
                    bb = W3B + 4 * (st["bbuf"] % 6)
                    st["bbuf"] += 1
                    sc2.lds("ds_read_b128", R("v", bb, 4), pK[o["ks"] & 3], XRES + (((o["ks"] >> 2) - 7) * 3 + o["j"]) * 4096)
                    assert myops[st["rdB"] + 3]["ks"] == o["ks"]
                    o["breg"] = myops[st["rdB"] + 3]["breg"] = R("v", bb, 4)
                st["rdB"] += 1
            drain(1)
            for o in fill.get(i, []):
                put(sc2, o)
            o = myops[i]
            d = R("v", W3ACC + 16 * (3 * o["hb"] + o["j"]), 16)
            B(f"{MF} {d}, {R('v', o['areg'], 4)}, {o['breg']}, {'0' if o['first'] else d}")
        drain(99)
        if not last:
            for o in sum((conv_tile(1, 1, j) for j in range(3)), []):
                put(sc2, o)
            B("s_waitcnt lgkmcnt(0)")
            assert st["step"] + 1 < ns
        while st["step"] + 1 < ns:
            open_step(st["step"] + 1)
        tailq = [e[0] for e in lin if e[1] == 1][::4]
        if not last:
            B(f"s_add_u32 s{sWOo}, s{sWOo}, 147456")
            for p, b in bias0.items():
                sc2.rebias(p, b)
            if cfg.trace is True:
                B(f"s_cmp_lg_u32 s{sIT}, 2\ns_cbranch_scc1 L_notr3\nv_lshlrev_b32 v1, 2, v0\ns_lshl_b32 s62, s2, 10\ns_add_u32 s62, s62, {STAMP_BASE + 768}")
                B(f"buffer_store_dword v2, v1, {srd(SWS)}, s62 offen\ns_waitcnt vmcnt(0)\nL_notr3:")
            B(f"s_add_u32 s{sIT}, s{sIT}, 1\ns_cmp_lt_u32 s{sIT}, 3\ns_cbranch_scc1 L_w3loop")
        body, pe = lgkm_pass(B.ins)
        assert not pe
        return body, tailq

    lin0 = list(lin)
    _, pro = period(False, [pl.grp[g][3] for g in pl.pro] + quads[:cfg.WR])
    loopbody, pro2 = period(False, pro)
    assert pro2 == pro
    lastp, _ = period(True, pro)
    lin = lin0
    if cfg.noload:
        pro = []
    todo = list(pro)
    for t in range(9):
        wait_for(sc, set(pl.start[t]) | ({("flag",)} if t == 0 else set()), 0)
        A("s_waitcnt lgkmcnt(0)")
        bar(sc)
        if t == 0:
            A(f"s_lshl_b32 s56, s{sPAIR}, 2\nv_mov_b32 v16, s56\nv_mov_b32 v17, 1\ns_mov_b64 exec, 1")
            put(sc, ("vm", f"buffer_atomic_add v17, v16, {srd(SDB)}, 0 offen sc1"))
            A("s_mov_b64 exec, -1")
        if t < 7:
            for s in range(4):
                for j in range(3):
                    sc.lds("ds_read_b128", xreg(4 * t + s, j), pK[s], addr[("x", t, j)])
        if t == cfg.pf_wq0_step:
            for o in touch_ops(vTQ, SWQ, sWQo, 256, 4096):
                put(sc, o)
        for q in pl.sissue[t]:
            for o in quad_ops(q):
                put(sc, o)
        while todo:
            q = todo[0]
            if q[0] == "wq3":
                if pl.slast.get(addr[q], -9) >= t:
                    break
                if any(pl.sissue[b] for b in range(t + 1, 9)):
                    break
            elif not any(pl.grp[g][3] == q for b in range(-1, t + 1) for g in pl.sreq[b]):
                break
            for o in quad_ops(todo.pop(0)):
                put(sc, o)
    assert not todo
    for p, b in bias0.items():
        sc.rebias(p, b)
    A("s_waitcnt lgkmcnt(0)")
    head, pend = lgkm_pass(sc.out.ins)
    loop = [parse("L_w3loop:")] + loopbody
    T = Prog()
    if cfg.prof:
        T(f"v_mov_b32 v16, s96\nv_mov_b32 v17, s97\nv_mov_b32 v18, s98\nv_mov_b32 v19, s99\nv_mov_b32 v20, 0\ns_lshl_b32 s62, s2, 10\ns_add_u32 s62, s62, {STAMP_BASE + 512 + 64}")
        T(f"buffer_store_dwordx4 v[16:19], v20, {srd(SWS)}, s62 offen")
    T(f"s_cmp_ge_u32 s{sCU}, 3\ns_cbranch_scc1 L_done")
    T("s_mov_b32 s61, 8")
    finish_unit(cfg, T, "w3", 8, 192, sCU, 61, False)
    allins, nn = hazard_pass(head + loop + lastp + T.ins, verbose=cfg.dbg == "nops3")
    return allins, dict(w3nops=nn, w3est=est_cycles(loop))


def acc_out(nb):
    return R("a", 16 * nb, 16) if nb < 16 else R("v", OUTV + 16 * (nb - 16), 16)


def q_ops(addr):
    ops = []
    XB = S0
    for t in range(9):
        order = [(s, b) for s in range(4) for b in range(4)] if t < 8 else [(s, b) for b in range(4) for s in range(4)]
        seen = set()
        for (s, b) in order:
            qa = addr[("wq", t, s >> 1, b >> 1)] + (16 * (s & 1)) * 128
            xb = XB + 4 * ((t * 4 + s) % 8)
            o = dict(step=t, a=[("tr", pWq[b & 1], qa), ("tr", pWq[b & 1], qa + 4 * 128)], b=R("v", xb, 4), d=R("v", O0 + 16 * b, 16))
            o["c"] = "0" if (t == 0 and s == 0) else o["d"]
            if s not in seen:
                seen.add(s)
                o["x"] = (xb, pK[s], addr[("x", t, 0)])
            ops.append(o)
    return ops


def item_ops(addr):
    ops = []

    def qk(u, step):
        for ds in range(8):
            d = R("v", S0 + 16 * (u & 1) if u else O0, 16)
            c = d if ds else ("0" if u < 2 else R("v", NEGM, 16))
            ops.append(dict(step=step, a=[("b128", pK[ds & 3], addr[("k", u, 0)] + (ds >> 2) * 512)], b=R("v", Q0 + 4 * ds, 4), d=d, c=c))

    def pv(u, step, bmajor=False):
        order = [(s, b) for s in range(2) for b in range(4)] if not bmajor else [(s, b) for b in range(4) for s in range(2)]
        for (s, b) in order:
            va = addr[("v", u, s)] + (b >> 1) * 512
            d = R("v", O0 + 16 * b, 16)
            ops.append(dict(step=step, a=[("tr", pV[b & 1], va), ("tr", pV[b & 1], va + 2048)],
                            b=R("v", P0 + 8 * (u & 1) + 4 * s, 4), d=d, c="0" if (u == 0 and s == 0) else d))
    qk(0, 0)
    qk(1, 0)
    for u in range(1, 15):
        qk(u + 1, u)
        pv(u - 1, u)
    pv(14, 15)
    pv(15, 15, True)
    for t in range(9):
        for b in range(4):
            for s in range(2):
                for half in range(2):
                    wa = addr[("wo", t, b)] + 16 * s * 128
                    d = acc_out(2 * t + half)
                    ops.append(dict(step=16 + t, a=[("tr", pWo[half], wa), ("tr", pWo[half], wa + 8 * 128)],
                                    b=R("v", OF + 8 * b + 4 * s, 4), d=d, c=d))
    assert len(ops) == 400
    return ops


def softmax_ops(u, first=False):
    S, P = S0 + 16 * (u & 1), P0 + 8 * (u & 1)
    if first:
        S = O0
    l = []
    for k in range(8):
        a, b = vT[2 * (k & 1)], vT[2 * (k & 1) + 1]
        pa, pb = vT[2 * ((k - 1) & 1)], vT[2 * ((k - 1) & 1) + 1]
        l.append(f"v_exp_f32 v{a}, v{S + 2 * k}")
        if k == 1:
            l.append(f"v_add_f32 v{vBS}, v{pa}, v{pb}")
        elif k > 1:
            l.append(f"v_add_f32 v{vBS}, v{vBS}, v{pa}")
        l.append(f"v_exp_f32 v{b}, v{S + 2 * k + 1}")
        if k > 1:
            l.append(f"v_add_f32 v{vBS}, v{vBS}, v{pb}")
        if k >= 1:
            l.append(f"v_cvt_pk_bf16_f32 v{P + k - 1}, v{pa}, v{pb}")
    a, b = vT[2], vT[3]
    l.append(f"v_add_f32 v{vBS}, v{vBS}, v{a}")
    l.append(f"v_cvt_pk_bf16_f32 v{P + 7}, v{a}, v{b}")
    l.append(f"v_add_f32 v{vBS}, v{vBS}, v{b}")
    return l


def conv_block(b, scale, dst):
    l = []
    for k in range(8):
        r = O0 + 16 * b + 2 * k
        l.append(f"v_mul_f32 v{r}, {scale}, v{r}")
        l.append(f"v_mul_f32 v{r + 1}, {scale}, v{r + 1}")
        if k:
            l.append(f"v_cvt_pk_bf16_f32 v{dst + 8 * b + k - 1}, v{r - 2}, v{r - 1}")
    l.append(f"v_cvt_pk_bf16_f32 v{dst + 8 * b + 7}, v{O0 + 16 * b + 14}, v{O0 + 16 * b + 15}")
    return l


def rowmax(S):
    l = [f"v_max3_f32 v{vM}, v{S}, v{S + 1}, v{S + 2}"]
    for k in range(6):
        l.append(f"v_max3_f32 v{vM}, v{vM}, v{S + 3 + 2 * k}, v{S + 4 + 2 * k}")
    l.append(f"v_max_f32 v{vM}, v{vM}, v{S + 15}")
    l.append(f"v_mov_b32 v{vM2}, v{vM}")
    l.append(f"v_permlane32_swap_b32 v{vM}, v{vM2}")
    l.append(f"v_max_f32 v{vM}, v{vM}, v{vM2}")
    return l


def with_subs(S, sm):
    sub = [f"v_sub_f32 v{S + i}, v{S + i}, v{vM}" for i in range(16)]
    l, k = sub[:4], 4
    for o in sm:
        l.append(o)
        if o.startswith("v_exp") and k < 16:
            l.append(sub[k])
            k += 1
    return l


def item_fill(cfg, ops, fill):
    post = {}
    chk = [f"v_cmp_lt_f32 vcc, s{sTHR}, v{vBS}"]
    spread(fill, rowmax(O0) + [f"v_sub_f32 v{NEGM + i}, 0, v{vM}" for i in range(16)], 11, 15)
    spread(fill, with_subs(O0, softmax_ops(0, True)) + [f"v_mov_b32 v{vL}, v{vBS}"], 16, 23)
    spread(fill, with_subs(S0 + 16, softmax_ops(1)) + chk, 24, 31)
    post[31] = 1
    for u in range(2, 15):
        su = 16 * u
        spread_bal(cfg, ops, fill, softmax_ops(u) + chk, su, su + 15)
        post[su + 15] = u
    spread(fill, softmax_ops(15) + chk, 240, 247)
    post[247] = 15
    spread(fill, [f"v_mov_b32 v{vM2}, v{vL}", f"v_permlane32_swap_b32 v{vL}, v{vM2}", f"v_add_f32 v{vL}, v{vL}, v{vM2}",
                  f"v_rcp_f32 v{vM}, v{vL}"], 249, 252)
    spread(fill, conv_block(0, f"v{vM}", OF), 253, 255)
    spread(fill, conv_block(1, f"v{vM}", OF), 256, 259)
    spread(fill, conv_block(2, f"v{vM}", OF), 260, 263)
    spread(fill, conv_block(3, f"v{vM}", OF), 264, 267)
    return post


def store_block(cfg, nb, tmp, pk):
    l = []
    if not nb & 1:
        l += [f"s_mul_i32 s56, s{sTC + (nb >> 1)}, 768", f"s_add_u32 s56, s56, s{sWSo}"]
    for u in range(2):
        for k in range(8):
            l.append(f"v_accvgpr_read_b32 v{tmp + 8 * u + k}, a{16 * nb + 8 * u + k}")
        for k in range(4):
            i = 8 * u + 2 * k
            l.append(f"v_cvt_pk_bf16_f32 v{pk + 4 * u + k}, v{tmp + i}, v{tmp + i + 1}")
        l.append(f"buffer_store_dwordx4 {R('v', pk + 4 * u, 4)}, v{vST}, {srd(SWS)}, s56 offen offset:{((nb & 1) * 2 + u) * 1024}{cfg.pstf}")
    return l


VMCOST = 4


def emit_slots(cfg, sc, ops, fill, post, lo, hi, st, stubs, stamps={}, nextops=None):
    LA = cfg.LA
    first = {}
    if nextops:
        ops = ops + [dict(o, step=ops[-1]["step"] + 1) for o in nextops]
    for i, o in enumerate(ops):
        first.setdefault(o["step"], i)
    for i in range(lo, hi):
        nx = st["step"] + 1
        if nextops and nx == ops[-1]["step"] and i >= first[nx] - cfg.LB:
            st["tag"], st["alias"] = "n", 0
            for p, b in st["rebias"].items():
                sc.rebias(p, b)
        if nx in first and i >= first[nx] - (cfg.LB if nx else LA):
            if nx in stamps and stamp(cfg, sc.out, stamps[nx], 0):
                st["lin"].append(None)
            w = "lgkmcnt(0)"
            key = (st["tag"], st.get("alias", nx))
            if key in st["lin"]:
                last = max(k for k, e in enumerate(st["lin"]) if e == key)
                w = f"vmcnt({len(st['lin']) - 1 - last}) " + w
            if cfg.trace == "head" and len(ops) == 144:
                sc.out(f"s_memrealtime s[60:61]\ns_waitcnt lgkmcnt(0)\nv_writelane_b32 v{NEGM}, s60, {nx}")
            if cfg.trace is True and len(ops) >= 400 and 0 < nx < 25:
                sc.out("s_memtime s[60:61]\ns_waitcnt lgkmcnt(0)")
                sc.out(f"v_writelane_b32 v2, s60, {nx}")
            sc.out("s_waitcnt " + w)
            if cfg.trace is True and len(ops) >= 400 and 0 < nx < 25:
                sc.out("s_memtime s[60:61]\ns_waitcnt lgkmcnt(0)")
                sc.out(f"v_writelane_b32 v2, s60, {32 + nx}")
            if not cfg.nobar:
                sc.out("s_barrier")
            st["step"] = nx
        while st["rd"] < min(i + LA + 1, len(ops)) and ops[st["rd"]]["step"] <= st["step"]:
            o = ops[st["rd"]]
            if "x" in o:
                sc.lds("ds_read_b128", R("v", o["x"][0], 4), o["x"][1], o["x"][2])
            fb = sc.fbuf()
            o["areg"] = fb
            if o["a"][0][0] == "b128":
                sc.lds("ds_read_b128", R("v", fb, 4), o["a"][0][1], o["a"][0][2])
            else:
                sc.lds("ds_read_b64_tr_b16", R("v", fb, 2), o["a"][0][1], o["a"][0][2])
                sc.lds("ds_read_b64_tr_b16", R("v", fb + 2, 2), o["a"][1][1], o["a"][1][2])
            st["rd"] += 1
        for f in fill.get(i, []):
            if callable(f):
                f(sc)
            elif isinstance(f, tuple):
                sc.out(f[0])
                st["lin"].append(f[1])
            else:
                sc.out(f)
                if f.startswith("buffer_"):
                    st["lin"].append(None)
        if i < 0:
            continue
        o = ops[i]
        m = parse(f"{MF} {o['d']}, {R('v', o['areg'], 4)}, {o['b']}, {o['c']}")
        if i % cfg.waitgrp == 0:
            for d in range(1, cfg.waitgrp):
                if i + d < st["rd"]:
                    m.rd = set(m.rd) | {("v", ops[i + d]["areg"] + k) for k in range(4)}
        sc.out.ins.append(m)
        if i in post:
            u = post[i]
            tag = f"{u}_{len(stubs)}"
            sc.out(f"s_cbranch_vccnz L_stub_{tag}\nL_back_{tag}:")
            sc.out(f"v_add_f32 v{vL}, v{vL}, v{vBS}")
            stubs.append((tag, u & 1))


def group_request(cfg, pl, fill, slot, g, tag, kind):
    l = []
    want = "k" if g == 0 else "m" if g < 15 else "v" if g == 15 else "w"
    if want != kind:
        l += {"k": [f"v_xor_b32 v{vD + k}, {32 * k}, v{bK}" for k in range(4)],
              "m": [f"v_mov_b32 v{vD}, v{bM}", f"v_xor_b32 v{vD + 1}, s{sXM}, v{bM}", f"v_xor_b32 v{vD + 2}, s{sXM2}, v{bM}", f"v_xor_b32 v{vD + 3}, s{sXM2}, v{vD + 1}"],
              "v": [f"v_mov_b32 v{vD + k}, v{bV}" for k in range(4)],
              "w": [f"v_add_u32 v{vD + k}, {8192 * k}, v{bWo}" for k in range(4)]}[want]
    so, sr, fl = {"k": (f"s_add_u32 s{sTMP}, s{sB0}, 0", SK, cfg.kvf), "m": (f"s_add_u32 s{sTMP}, s{sMB}, {g * 8192}", SM, cfg.kvf),
                  "v": (f"s_add_u32 s{sTMP}, s{sB0}, {14 * 8192}", SV, cfg.kvf),
                  "w": (f"s_add_u32 s{sTMP}, s{sWB}, s{sTC + max(g - 16, 0)}", SWO, cfg.wf)}[want]
    l += [f"s_add_u32 m0, s{sT4K}, {pl.addr[pl.grp[g][0]]}", so]
    fill.setdefault(slot, []).extend(l)
    for k in range(4):
        if not cfg.noload:
            fill.setdefault(slot + k, []).append((f"buffer_load_dwordx4 v{vD + k}, {srd(sr)}, s{sTMP} offen offset:{k * 1024}{fl} lds", (tag, g)))
    if g == 24:
        fill.setdefault(slot + 3, []).append(f"s_add_u32 s{sWB}, s{sWB}, 147456")
    return want


def rare_routine(p):
    A = Prog()
    S, Sn = S0 + 16 * p, S0 + 16 * (1 - p)
    A(f"L_rare{p}:\ns_nop 15\ns_nop 15")
    A("\n".join(rowmax(S)))
    A(f"v_max_f32 v{vM}, 0, v{vM}")
    for i in range(16):
        A(f"v_sub_f32 v{NEGM + i}, v{NEGM + i}, v{vM}\nv_sub_f32 v{S + i}, v{S + i}, v{vM}\nv_sub_f32 v{Sn + i}, v{Sn + i}, v{vM}")
    A(f"v_sub_f32 v{vM2}, 0, v{vM}\nv_exp_f32 v{vM2}, v{vM2}\ns_nop 0\nv_mul_f32 v{vL}, v{vL}, v{vM2}")
    for i in range(64):
        A(f"v_mul_f32 v{O0 + i}, v{O0 + i}, v{vM2}")
    A("\n".join(softmax_ops(p)))
    A("s_nop 3\ns_setpc_b64 s[40:41]")
    ins, _ = hazard_pass(A.ins)
    return ins


def compute(cfg, pl):
    addr = pl.addr
    sc = Sched(cfg)
    A = sc.out
    A(f"s_lshl_b32 s{sT4K}, s{sW}, 12\ns_mov_b32 s{sTHR}, {hex(f2u(cfg.thr))}")
    nsh = {"16x8": 16, "8x16": 8, "4x32": 4}[cfg.mapping]
    xr = 96 // (32 // nsh)
    A(f"v_mov_b32 v21, 0x7fffff00\ns_and_b32 s56, s{sB}, {nsh - 1}\ns_mul_i32 s56, s56, {(576 // nsh) * 8192}\ns_add_u32 s56, s56, s{sWQo}")
    A("v_lshrrev_b32 v16, 1, v0\nv_lshlrev_b32 v16, 13, v16\nv_and_b32 v17, 1, v0\nv_lshl_add_u32 v16, v17, 7, v16\nv_cmp_gt_u32 vcc, 36, v0")
    A(f"s_and_b32 s57, s{sCU}, {32 // nsh - 1}\ns_mul_i32 s57, s57, {xr * 1152}\ns_add_u32 s57, s57, s{sXo}\nv_cndmask_b32 v16, v21, v16, vcc")
    A(f"v_mul_u32_u24 v17, 1152, v0\nv_cmp_gt_u32 vcc, {xr}, v0\ns_and_b32 s58, s{sW}, 2\ns_lshl_b32 s58, s58, 6\ns_add_u32 s57, s57, s58\nv_cndmask_b32 v17, v21, v17, vcc")
    descriptors(A)
    ntouch = 0
    if cfg.pf:
        A(f"s_cmp_lg_u32 s{sW}, 0\ns_cbranch_scc1 L_tx")
        for i in range(1152 // nsh // 36):
            A(f"buffer_load_dword v18, v16, {srd(SWQ)}, s56 offen\ns_add_u32 s56, s56, {18 * 8192}")
        A("s_branch L_tdone\nL_tx:")
        if cfg.pfx:
            for i in range(5):
                A(f"buffer_load_dword v18, v17, {srd(SX)}, s57 offen offset:{256 * i}")
        A("L_tdone:")
    sample_flags(A)
    lane_patterns(A, True)
    A(f"v_lshlrev_b32 v{vST}, 4, v0\nv_add_u32 v{pQ}, s{sT4K}, v{vST}")
    A(f"s_mul_i32 s56, s{sPAIR}, 884736\ns_lshl_b32 s57, s{sW}, 15\ns_add_u32 s56, s56, s57\ns_lshl_b32 s57, s{sCU}, 12\ns_add_u32 s{sWSo}, s56, s57")
    A("v_lshrrev_b32 v1, 3, v0\nv_and_b32 v2, 7, v0\nv_lshrrev_b32 v16, 4, v0\nv_lshlrev_b32 v18, 8, v1\nv_mul_u32_u24 v19, 1152, v1")
    A(f"v_and_b32 v17, 1, v16\nv_lshlrev_b32 v17, 2, v17\nv_xor_b32 v17, v17, v2\nv_lshl_add_u32 v{bWo}, v17, 4, v19")
    kv_offsets(A, bK, bV)
    A(f"s_cmp_lt_u32 s{sW}, 2\ns_cselect_b32 s{SM}, s{SK}, s{SV}\ns_cselect_b32 s{SM + 1}, s{SK + 1}, s{SV + 1}\ns_mov_b32 s{SM + 2}, 0x4000000\ns_mov_b32 s{SM + 3}, 0x20000")
    A(f"s_cselect_b32 s{sXM}, 32, 0\ns_cselect_b32 s{sXM2}, 64, 0\ns_cselect_b64 vcc, -1, 0\ns_add_u32 s56, s{sT4K}, 8192\ns_cmp_lt_u32 s{sW}, 2")
    A(f"s_cselect_b32 s56, s56, {(-8192) & 0xffffffff}\ns_add_u32 s{sMB}, s{sKV}, s56\nv_cndmask_b32 v{bM}, v{bV}, v{bK}, vcc")
    A(f"s_add_u32 s{sB0}, s{sKV}, s{sT4K}")
    A(f"s_mul_i32 s56, s{sW}, 36864\ns_add_u32 s{sWB}, s{sWOo}, s56")
    for i in range(256):
        A(f"v_accvgpr_write_b32 a{i}, 0")
    for i in range(32):
        A(f"v_mov_b32 v{OUTV + i}, 0")
    A("s_waitcnt vmcnt(0)")
    for p in pK + pV + pWq + pWo + [pQ]:
        sc.bias[p] = 0
    qops = q_ops(addr)
    qf = {}
    kind = None
    for t in range(-1, 9):
        for n_, g in enumerate(pl.sreq[t]):
            kind = group_request(cfg, pl, qf, (16 * t - cfg.LB if t > 0 else -cfg.LA + 1 if t == 0 else -cfg.LA - 8) + 4 * n_, g, "n", kind)
    kind0 = kind
    spread(qf, conv_block(0, f"s{sC}", Q0), 135, 138)
    spread(qf, conv_block(1, f"s{sC}", Q0), 139, 143)
    emit_slots(cfg, sc, qops, qf, {}, -cfg.LA - 8, 144, dict(rd=0, step=-1, lin=[], tag="c"), [], {0: 0})
    A("\n".join(conv_block(2, f"s{sC}", Q0) + conv_block(3, f"s{sC}", Q0)))
    if cfg.trace == "head":
        A(f"s_memrealtime s[60:61]\ns_waitcnt lgkmcnt(0)\nv_writelane_b32 v{NEGM}, s60, 9\nv_writelane_b32 v{NEGM}, s101, 10")
        A(f"v_lshlrev_b32 v1, 2, v0\ns_lshl_b32 s62, s2, 10\ns_lshl_b32 s63, s{sW}, 8\ns_add_u32 s62, s62, s63\ns_add_u32 s62, s62, {STAMP_BASE}")
        A(f"buffer_store_dword v{NEGM}, v1, {srd(SWS)}, s62 offen\ns_waitcnt vmcnt(0)")
    k_patterns(A, False)
    for p in pK:
        sc.bias[p] = 0
    for p in pV + pWo:
        sc.rebias(p, 0)
    sc.rebias(pQ, QBUF)
    bias0 = dict(sc.bias)
    sc.nbuf = 0
    ops = item_ops(addr)
    st = dict(rd=0, step=-1, lin=[("c", g) for g in pl.pro for k in range(4)] if not cfg.noload else [], tag="c")
    emit_slots(cfg, sc, ops, {}, {}, -cfg.LA, 0, st, [], {0: 1})
    assert st["rd"] == cfg.LA and 400 % cfg.NB == 0
    bias1 = dict(sc.bias)
    head, pend0 = lgkm_pass(sc.out.ins)
    assert len(pend0) == cfg.LA
    head, nh = hazard_pass(head, verbose=cfg.dbg == "nops")
    sc.out = Prog()
    fill = {}
    split = 272
    bslot = lambda s_: 16 * s_ - cfg.LB if s_ else 0
    late = {}
    wrapped = False
    for s_ in range(25):
        for n_, (g, w) in enumerate(pl.req[s_]):
            slot = bslot(s_) + 4 * n_
            if w and not wrapped:
                wrapped = True
                assert slot < split, "first wrapped request must precede the split"
                fill.setdefault(slot, []).append(f"s_add_u32 s{sB0}, s{sB0}, 0x20000\ns_add_u32 s{sMB}, s{sMB}, 0x20000\ns_cmp_eq_u32 s{sIT}, 3")
                fill[slot].append(f"s_cselect_b32 s{SK + 2}, 0, s{SK + 2}\ns_cselect_b32 s{SM + 2}, 0, s{SM + 2}")
            assert g >= 16 or w == wrapped
            if w and slot >= split:
                kind = group_request(cfg, pl, late, slot, g, "n", None)
            else:
                kind = group_request(cfg, pl, fill, slot, g, "n" if w else "c", None if slot >= split else kind)
    assert kind == kind0
    post = item_fill(cfg, ops, fill)
    stubs = []
    sc.out("L_item:")
    st["lin"] = [e for e in st["lin"] if e]
    emit_slots(cfg, sc, ops, fill, post, 0, split, st, stubs, {16: 2})
    sc.out(f"s_cmp_lg_u32 s{sIT}, 3\ns_cbranch_scc1 L_more")
    common, pend = lgkm_pass(sc.out.ins, pend0)
    common, n0 = hazard_pass(common, history=head[-20:], verbose=cfg.dbg == "nops")
    sa = copy.deepcopy(sc)
    sa.out = Prog()
    sa.out("L_more:")
    fa = {k: list(v) for k, v in fill.items()}
    for k, v in late.items():
        fa[k] = fa.get(k, []) + v
    for p, r0 in ((0, 288), (1, 381)):
        spread(fa, [(lambda s_, i=i, p=p: s_.lds("ds_read_b128", R("v", Q0 + 16 * p + 4 * i, 4), pQ, QBUF + i * 1024)) for i in range(4)], r0, r0 + 3)
    sta = copy.deepcopy(st)
    sta["rebias"] = bias0
    fa.setdefault(390, []).append(f"s_add_u32 s{sIT}, s{sIT}, 1")
    emit_slots(cfg, sa, copy.deepcopy(ops), fa, {}, split, 400, sta, stubs, {25: 1}, nextops=copy.deepcopy(ops[:cfg.LA]))
    assert cfg.noload or [e for e in sta["lin"] if e and e[0] == "n"] == [("n", g) for g in pl.pro for k in range(4)]
    assert sa.bias == bias1 and sta["rd"] == 400 + cfg.LA
    if cfg.trace is True:
        sa.out(f"s_cmp_lg_u32 s{sIT}, 3\ns_cbranch_scc1 L_notr\nv_lshlrev_b32 v1, 2, v0\ns_lshl_b32 s62, s2, 10\ns_lshl_b32 s63, s{sW}, 8\ns_add_u32 s62, s62, s63\ns_add_u32 s62, s62, {STAMP_BASE}")
        sa.out(f"buffer_store_dword v2, v1, {srd(SWS)}, s62 offen\ns_waitcnt vmcnt(0)\nL_notr:")
    sa.out("s_branch L_item")
    conta, pe = lgkm_pass(sa.out.ins, pend)
    assert pe == pend0[len(pend0) - len(pe):]
    conta, n1 = hazard_pass(conta, history=common[-20:])
    sb = copy.deepcopy(sc)
    sb.out = Prog()
    sb.out("L_last:")
    fb = {k: list(v) for k, v in fill.items()}
    for t in range(1, 9):
        s0 = 256 + 16 * t
        spread(fb, store_block(cfg, 2 * t - 2, Q0, P0) + store_block(cfg, 2 * t - 1, Q0 + 16, P0 + 8), s0 + 3, s0 + 15)
    emit_slots(cfg, sb, copy.deepcopy(ops), fb, {}, split, 400, copy.deepcopy(st), stubs)
    T = sb.out
    stamp(cfg, T, 3, 0)
    stamp(cfg, T, 4, 0)
    finish_unit(cfg, T, "c", 7, OUTV, sW, sCU, True)
    contb, _ = lgkm_pass(sb.out.ins, pend)
    contb, n2 = hazard_pass(contb, history=common[-20:], verbose=cfg.dbg == "nops")
    st = Prog()
    for tag, p in stubs:
        st(f"L_stub_{tag}:\ns_call_b64 s[40:41], L_rare{p}\ns_branch L_back_{tag}")
    info = dict(nops=(nh, n0, n1, n2), est_item=est_cycles(common + conta))
    return head + common + contb + conta + st.ins + rare_routine(0) + rare_routine(1), info


def kd(name, vg, acc, sg=102):
    return (f".amdhsa_kernel {name}\n  .amdhsa_next_free_vgpr {vg}\n  .amdhsa_next_free_sgpr {sg}\n  .amdhsa_accum_offset {acc}\n"
            "  .amdhsa_group_segment_fixed_size 0\n  .amdhsa_kernarg_size 104\n  .amdhsa_user_sgpr_count 2\n"
            "  .amdhsa_user_sgpr_kernarg_segment_ptr 1\n  .amdhsa_system_sgpr_workgroup_id_x 1\n.end_amdhsa_kernel\n")


def generate(cfg):
    pl = plan_ring(cfg)
    P = Prog()
    prologue(cfg, P)
    pro, _ = hazard_pass(P.ins)
    comp, info = compute(cfg, pl)
    w3, info3 = wave3(cfg, pl)
    info.update(info3)
    s = HDR + "; @launch grid=(256,1,1) block=(256,1,1) lds=163840\n"
    s += '.amdgcn_target "amdgcn-amd-amdhsa--gfx950"\n.text\n'
    s += f".globl {KNAME}\n.p2align 8\n.type {KNAME},@function\n{KNAME}:\n"
    s += render(pro) + render(comp) + render(w3) + "L_done:\n    s_endpgm\n"
    s += '.section .rodata,"a"\n.p2align 6\n' + kd(KNAME, 512, 256)
    return s, info, pl


if __name__ == "__main__":
    import build
    name = sys.argv[1]
    kw = {}
    for a in sys.argv[2:]:
        k, v = a.split("=", 1)
        try:
            v = eval(v)
        except Exception:
            pass
        kw[k] = v
    s, info, plan = generate(Cfg(**kw))
    open(name, "w").write(s)
    print(info)
    build.build(name)
```

```python
import copy
import math
import struct
import sys

from asmlib import Prog, parse, lgkm_pass, hazard_pass, render, est_cycles, R

KNAME = "concat_heads__mha_block_cached__gqa_block_cached__near_ridge_kernel"
HDR = open("concat_heads__mha_block_cached__gqa_block_cached__near_ridge.s.ref").read().split("; Override launch")[0]


def f2u(x):
    return struct.unpack("<I", struct.pack("<f", x))[0]


class Cfg:
    mapping = "16x8"
    kvf = " nt"
    wf = ""
    xf = ""
    pstf = " sc1"
    gf = " sc1"
    of = ""
    psleep = 2
    LA = 6
    LB = 4
    NB = 8
    colors = "defabcdabcdefabc" + "abc" * 3
    dmax = 99
    dwo = 2
    park = (14, 16, 18)
    kv0 = (4, 5, 6)
    WR = 6
    raq = 4
    waitgrp = 4
    wqbatch = 1
    balance = True
    front = True
    stamp = False
    pf = True
    dbl = False
    pfx = False
    thr = 1024.0
    quota = (13, 24, 20) + (20,) * 12 + (21, 21) + (15,) * 6 + (3, 0)
    pf_wo_step = 1
    pf_wq_step = 12
    pf_wq0_step = 1
    dbg = None
    nobar = False
    noload = False
    delay = 0
    prof = False
    trace = False
    half = 0

    def __init__(self, **kw):
        for k, v in kw.items():
            assert hasattr(Cfg, k), k
            setattr(self, k, v)


pK = [4, 5, 6, 7]
pV = [8, 9]
pWq = [10, 11]
pWo = [12, 13]
vL, vBS = 14, 15
vT = [16, 17, 18, 19]
vM, vM2, vST, vFL = 20, 21, 22, 23
FR0, NEGM, S0, P0, Q0, O0, OUTV, FRX = 24, 48, 64, 96, 112, 144, 208, 240
OF = S0
pQ = 3
bK, bV, bWo, bM = 248, 249, 250, 251
vD = 252
sW, sB, sH = 3, 4, 5
SK, SV, SWQ, SWO, SX, SWS = 16, 20, 24, 28, 32, 36
sKV, sXo, sWQo, sWOo, sTMP, sIT, sC, sTHR, sT4K, sWSo = 42, 43, 44, 45, 46, 47, 48, 49, 50, 51
sJ, sPAIR, sCU = 52, 53, 59
SDB, SOUT = 68, 72
sTC = 80
sFLG = 89
SWQ2 = 92
SM = 96
sMB, sB0, sWB, sXM, sXM2 = 90, 91, 66, 67, 100
WRB = 24 * 4096
MF = "v_mfma_f32_32x32x16_bf16"
QBUF = 31 * 4096
XRES = 34 * 4096
FLAGBASE = 32 << 20
TORD = (0, 1, 2, 7, 8, 3, 4, 5, 6)


def srd(n):
    return f"s[{n}:{n + 3}]"


def w3_quads():
    return [("wq3", p, t, rb) for p in range(2) for t in TORD for rb in range(2)]


def w3_ops(cfg):
    quads = w3_quads()
    ops = []
    for p in range(2):
        pq = quads[18 * p:18 * p + 18]
        groups = [pq[0:2]] + [[q] for q in pq[2:16]] + [pq[16:18]]
        for grp in groups:
            if len(grp) == 2:
                seqv = [(q, s2, hb) for hb in range(2) for q in grp for s2 in range(2)]
            else:
                seqv = [(grp[0], s2, hb) for s2 in range(2) for hb in range(2)]
            for (q, s2, hb) in seqv:
                ks = 4 * q[2] + 2 * q[3] + s2
                for j in range(3):
                    ops.append(dict(q=q, s2=s2, hb=hb, j=j, ks=ks, p=p, first=(q == pq[0] and s2 == 0), last=(q == pq[17] and s2 == 1)))
    assert len(ops) == 432 == sum(cfg.quota)
    i = 0
    for s, n in enumerate(cfg.quota):
        for o in ops[i:i + n]:
            o["step"] = s
        i += n
    for i in range(0, 432, 3):
        for d in range(3):
            ops[i + d]["astep"] = ops[i]["step"]
    return ops


class Plan:
    pass


def plan_ring(cfg):
    pl = Plan()
    grp = [[("k", 0, 0), ("k", 0, 1), ("k", 1, 0), ("k", 1, 1)]]
    for u in range(1, 15):
        grp.append([("k", u + 1, 0), ("k", u + 1, 1), ("v", u - 1, 0), ("v", u - 1, 1)])
    grp.append([("v", 14, 0), ("v", 14, 1), ("v", 15, 0), ("v", 15, 1)])
    for t in range(9):
        grp.append([("wo", t, rb) for rb in range(4)])
    ns = len(grp)
    addr = {}
    for s_, g in enumerate(grp):
        for k, q in enumerate(g):
            addr[q] = (ord(cfg.colors[s_]) - 97) * 16384 + k * 4096
    start = []
    xslot = (QBUF, WRB, WRB + 12288) * 2 + (QBUF, XRES, XRES + 12288)
    for t in range(9):
        wq = [("wq", t, rb, cb) for rb in range(2) for cb in range(2)]
        for k, q in enumerate(wq):
            addr[q] = (ord(cfg.colors[16 + t]) - 97) * 16384 + k * 4096
        for rb in range(3):
            addr[("x", t, rb)] = xslot[t] + rb * 4096
        start.append(wq + [("x", t, rb) for rb in range(3)])
    for i, q in enumerate(w3_quads()):
        addr[q] = WRB + (i % cfg.WR) * 4096
    req = {b: [] for b in range(ns)}
    for g in range(ns):
        gap = next(d for d in range(1, ns + 1) if cfg.colors[(g - d) % ns] == cfg.colors[g])
        lead = min(gap - 1, cfg.dwo if g >= 16 else cfg.dmax)
        if g < len(cfg.park):
            assert ns + g - cfg.park[g] <= lead
            lead = ns + g - cfg.park[g]
        assert lead >= 1
        req[(g - lead) % ns].append((g, g - lead < 0))
    for b in req:
        req[b].sort(key=lambda e: e[1])
    pl.req = req
    pl.pro = [g for b in range(ns) for g, w in req[b] if w]
    pl.sreq = {b: [] for b in range(-1, 9)}
    bb = -1
    for n_, g in enumerate(pl.pro):
        b = next(b for b in range(ns) if (g, True) in req[b])
        bb = max(bb, cfg.kv0[n_] if n_ < len(cfg.kv0) else b - 16)
        assert all(cfg.colors[16 + t] != cfg.colors[g] for t in range(max(bb, 0), 9))
        pl.sreq[bb].append(g)
    sissue = {b: [] for b in range(-1, 9)}
    lastuse = {}
    b = -1
    for t in range(9):
        for q in start[t]:
            lo = addr[q]
            b = max(b, lastuse.get(lo, -9) + 1)
            assert b < t
            sissue[b].append(q)
            lastuse[lo] = t
    pl.slast = lastuse
    pl.grp, pl.start, pl.addr, pl.sissue = grp, start, addr, sissue
    return pl


def prologue(cfg, A):
    A("s_cmp_ge_u32 s2, 256\ns_cbranch_scc1 L_done")
    if cfg.trace == "head":
        A("s_memrealtime s[60:61]\ns_waitcnt lgkmcnt(0)\ns_mov_b32 s101, s60")
    A(f"v_lshrrev_b32 v1, 6, v0\nv_and_b32 v0, 63, v0\nv_readfirstlane_b32 s{sW}, v1")
    A("s_and_b32 s6, s2, 4\ns_mul_i32 s6, s6, 10\ns_add_u32 s6, s0, s6\ns_addc_u32 s7, s1, 0")
    A("s_load_dwordx2 s[40:41], s[6:7], 0\ns_load_dwordx4 s[8:11], s[6:7], 8\ns_load_dwordx4 s[12:15], s[6:7], 24")
    A("s_load_dwordx2 s[54:55], s[0:1], 96\ns_load_dwordx4 s[76:79], s[0:1], 80")
    A(f"s_and_b32 s57, s2, 3\ns_lshr_b32 s{sJ}, s2, 3")
    if cfg.mapping == "16x8":
        A(f"s_lshr_b32 s{sB}, s{sJ}, 1\ns_and_b32 s{sH}, s{sJ}, 1\ns_lshl_b32 s{sH}, s{sH}, 2\ns_lshl_b32 s57, s57, 3\ns_add_u32 s{sH}, s{sH}, s57")
    elif cfg.mapping == "8x16":
        A(f"s_and_b32 s56, s57, 1\ns_lshl_b32 s56, s56, 3\ns_lshr_b32 s{sB}, s{sJ}, 2\ns_add_u32 s{sB}, s{sB}, s56")
        A(f"s_lshr_b32 s56, s57, 1\ns_lshl_b32 s56, s56, 4\ns_and_b32 s{sH}, s{sJ}, 3\ns_lshl_b32 s{sH}, s{sH}, 2\ns_add_u32 s{sH}, s{sH}, s56")
    else:
        A(f"s_lshl_b32 s56, s57, 2\ns_lshr_b32 s{sB}, s{sJ}, 3\ns_add_u32 s{sB}, s{sB}, s56\ns_and_b32 s{sH}, s{sJ}, 7\ns_lshl_b32 s{sH}, s{sH}, 2")
    if cfg.half:
        A(f"s_and_b32 s56, s{sB}, {cfg.half}\ns_cmp_lg_u32 s56, 0\ns_cbranch_scc1 L_done")
    A(f"s_lshl_b32 s{sKV}, s{sB}, 22\ns_lshl_b32 s56, s{sH}, 17\ns_add_u32 s{sKV}, s{sKV}, s56")
    A(f"s_mul_i32 s{sXo}, s{sB}, 110592\ns_lshl_b32 s{sWQo}, s{sH}, 8\ns_mul_i32 s{sWOo}, s{sH}, 147456")
    A(f"s_and_b32 s56, s2, 4\ns_lshl_b32 s56, s56, 2\ns_add_u32 s{sPAIR}, s56, s{sB}\ns_lshr_b32 s{sCU}, s{sH}, 2")
    for tau in range(9):
        A(f"s_add_u32 s56, s{sCU}, {1 + tau}\ns_cmp_ge_u32 s56, 9\ns_cselect_b32 s57, 9, 0\ns_sub_u32 s56, s56, s57\ns_lshl_b32 s{sTC + tau}, s56, 7")
    A(f"s_mov_b32 s{sIT}, 0\ns_mov_b32 s{sC}, {hex(f2u(math.log2(math.e) / math.sqrt(128.0)))}")
    A(f"s_cmp_eq_u32 s{sW}, 3\ns_cselect_b32 s56, s{sCU}, s{sW}\ns_mul_i32 s57, s{sPAIR}, 3\ns_add_u32 s56, s56, s57\ns_lshl_b32 s56, s56, 12\ns_add_u32 s{sFLG}, s56, {FLAGBASE}")
    A(f"s_cmp_eq_u32 s{sW}, 3\ns_cbranch_scc1 L_loader")


def descriptors(A):
    A("s_waitcnt lgkmcnt(0)")
    for d, b, n in ((SWQ, 12, 4718592), (SX, 40, 1769472), (SWS, 54, 290848768), (SK, 8, 0x4000000), (SV, 10, 0x4000000),
                    (SWO, 14, 4718592), (SWQ2, 12, 4718592), (SOUT, 76, 3538944), (SDB, 78, 256)):
        A(f"s_mov_b32 s{d}, s{b}\ns_mov_b32 s{d + 1}, s{b + 1}\ns_mov_b32 s{d + 2}, {n}\ns_mov_b32 s{d + 3}, 0x20000")


def sample_flags(A):
    A(f"v_and_b32 v1, 7, v0\nv_lshlrev_b32 v1, 2, v1\nbuffer_load_dword v{vFL}, v1, {srd(SWS)}, s{sFLG} offen sc1")


STAMP_BASE = 64 << 20


def stamp(cfg, A, k, who):
    if not cfg.stamp:
        return 0
    A("s_memrealtime s[60:61]\ns_memtime s[64:65]\ns_waitcnt lgkmcnt(0)")
    A(f"s_lshl_b32 s62, s2, 10\ns_lshl_b32 s63, s{sIT}, 7\ns_add_u32 s62, s62, s63\ns_add_u32 s62, s62, {STAMP_BASE + who * 512 + 8 * k}")
    t = 18 if who else 0
    if who:
        A(f"v_mov_b32 v{t}, s60\nv_mov_b32 v{t + 1}, s64\nv_mov_b32 v{t + 2}, 0\nbuffer_store_dwordx2 v[{t}:{t + 1}], v{t + 2}, {srd(SWS)}, s62 offen")
    else:
        A(f"v_mov_b32 v0, s60\nv_mov_b32 v1, s64\nv_mov_b32 v2, 0\nbuffer_store_dwordx2 v[0:1], v2, {srd(SWS)}, s62 offen")
        A("s_nop 1\nv_mbcnt_lo_u32_b32 v0, -1, 0\nv_mbcnt_hi_u32_b32 v0, -1, v0")
    return 1


class Sched:
    def __init__(self, cfg):
        self.cfg = cfg
        self.bias = {}
        self.nbuf = 0
        self.out = Prog()

    def fbuf(self):
        i = self.nbuf % self.cfg.NB
        self.nbuf += 1
        return FR0 + 4 * i if i < 6 else FRX + 4 * (i - 6)

    def lds(self, op, reg, preg, a):
        b = self.bias[preg]
        if not (0 <= a - b <= 65535):
            nb = a & ~4095
            self.out(f"v_add_u32 v{preg}, {(nb - b) & 0xffffffff}, v{preg}")
            self.bias[preg] = b = nb
        if op.startswith("ds_read"):
            self.out(f"{op} {reg}, v{preg} offset:{a - b}")
        else:
            self.out(f"{op} v{preg}, {reg} offset:{a - b}")

    def rebias(self, preg, nb):
        b = self.bias[preg]
        if b != nb:
            self.out(f"v_add_u32 v{preg}, {(nb - b) & 0xffffffff}, v{preg}")
            self.bias[preg] = nb


def spread(fill, ops_list, s0, s1):
    n = s1 - s0 + 1
    cost = [2 if isinstance(o, str) and o.startswith("v_exp") else 1 for o in ops_list]
    tot = sum(cost)
    acc = 0
    for o, c in zip(ops_list, cost):
        k = min(n - 1, int((acc + c / 2) * n / tot))
        fill.setdefault(s0 + k, []).append(o)
        acc += c


def spread_bal(cfg, ops, fill, ops_list, s0, s1):
    if not cfg.balance:
        return spread(fill, ops_list, s0, s1)
    base = []
    for i in range(s0, s1 + 1):
        o = ops[min(i + cfg.LA, len(ops) - 1)]
        base.append(len(o["a"]) + (1 if i % cfg.waitgrp == 0 else 0) + sum(VMCOST if isinstance(f, tuple) else 1 for f in fill.get(i, [])))
    cost = [2 if isinstance(o, str) and o.startswith("v_exp") else 1 for o in ops_list]
    level = (sum(cost) + sum(base)) / len(base)
    k, room = 0, level - base[0]
    for o, c in zip(ops_list, cost):
        while k < len(base) - 1 and room < c / 2:
            k += 1
            room += level - base[k]
        fill.setdefault(s0 + k, []).append(o)
        room -= c


def k_patterns(A, xform, off=None):
    A("v_lshrrev_b32 v1, 5, v0\nv_and_b32 v2, 31, v0\nv_lshrrev_b32 v16, 1, v2\nv_and_b32 v16, 7, v16\nv_xor_b32 v16, v16, v1")
    if xform:
        A("v_lshlrev_b32 v2, 7, v2")
        if off:
            A(f"v_add_u32 v2, s{off}, v2")
    else:
        A("v_lshrrev_b32 v17, 2, v2\nv_and_b32 v2, 3, v2\nv_lshlrev_b32 v2, 7, v2\nv_lshl_add_u32 v2, v17, 10, v2")
    for j in range(4):
        A(f"v_xor_b32 v17, {2 * j}, v16\nv_lshl_add_u32 v{pK[j]}, v17, 4, v2")


def lane_patterns(A, with_wave_offset):
    k_patterns(A, True, sT4K if with_wave_offset else None)
    A("v_lshrrev_b32 v2, 2, v0\nv_and_b32 v2, 3, v2\nv_lshrrev_b32 v3, 1, v2\nv_lshlrev_b32 v3, 6, v3")
    A("v_lshrrev_b32 v16, 4, v0\nv_and_b32 v16, 1, v16\nv_and_b32 v17, 1, v0\nv_lshrrev_b32 v18, 1, v0\nv_and_b32 v18, 1, v18")
    A("v_lshl_add_u32 v19, v1, 2, v2\nv_lshlrev_b32 v19, 7, v19\nv_lshl_add_u32 v20, v1, 3, v2\nv_lshlrev_b32 v20, 7, v20")
    A("v_lshlrev_b32 v21, 5, v16\nv_lshl_add_u32 v21, v17, 3, v21\nv_lshl_add_u32 v21, v18, 4, v21\nv_lshl_add_u32 v21, v2, 7, v21\nv_lshl_add_u32 v21, v1, 10, v21")
    A(f"v_add_u32 v{pV[0]}, v21, v3\nv_xor_b32 v{pV[1]}, 64, v{pV[0]}")
    A("v_lshlrev_b32 v21, 5, v16\nv_lshl_add_u32 v21, v17, 4, v21\nv_lshl_add_u32 v21, v18, 3, v21\nv_add_u32 v21, v21, v20")
    A(f"v_add_u32 v{pWq[0]}, v21, v3\nv_xor_b32 v{pWq[1]}, 64, v{pWq[0]}")
    A("v_lshlrev_b32 v21, 5, v17\nv_lshl_add_u32 v21, v16, 4, v21\nv_lshl_add_u32 v21, v18, 3, v21\nv_add_u32 v21, v21, v19")
    A(f"v_add_u32 v{pWo[0]}, v21, v3\nv_xor_b32 v{pWo[1]}, 64, v{pWo[0]}")


def kv_offsets(A, dk, dv):
    A("v_lshrrev_b32 v1, 3, v0\nv_and_b32 v1, 3, v1\nv_and_b32 v2, 7, v0\nv_lshrrev_b32 v16, 5, v0\nv_lshlrev_b32 v16, 7, v16\nv_lshl_add_u32 v16, v1, 8, v16")
    A(f"v_lshrrev_b32 v1, 1, v1\nv_xor_b32 v17, v1, v2\nv_lshl_add_u32 v{dk}, v17, 4, v16")
    A(f"v_lshlrev_b32 v1, 2, v1\nv_xor_b32 v17, v1, v2\nv_lshl_add_u32 v{dv}, v17, 4, v16")


def finish_unit(cfg, A, tag, nsrc, acc, w_sreg, t_sreg, publish, G=32):
    A("v_and_b32 v1, 7, v0\nv_lshlrev_b32 v1, 2, v1\nv_lshlrev_b32 v6, 4, v0")
    A(f"buffer_load_dword v2, v1, {srd(SWS)}, s{sFLG} offen sc1")
    A(f"s_mul_i32 s56, s{sPAIR}, 884736\ns_mul_i32 s57, s{t_sreg}, 3\ns_add_u32 s57, s57, s{w_sreg}\ns_lshl_b32 s57, s57, 15\ns_add_u32 s56, s56, s57")
    A(f"s_mul_i32 s60, s{sB}, 96\ns_lshl_b32 s58, s{w_sreg}, 5\ns_add_u32 s60, s60, s58\ns_mul_i32 s60, s60, 2304\ns_lshl_b32 s58, s{t_sreg}, 7\ns_add_u32 s60, s60, s58")
    A("s_and_b32 s58, s2, 4\ns_mul_i32 s58, s58, 288\ns_add_u32 s60, s60, s58")
    A("v_and_b32 v7, 31, v0\nv_mul_u32_u24 v7, 2304, v7\nv_lshrrev_b32 v3, 5, v0\nv_lshl_add_u32 v7, v3, 5, v7")
    A(f"s_mov_b32 s62, {((1 << nsrc) - 1) << 1}\ns_mov_b32 s58, 0\ns_mov_b32 s64, 1")
    if nsrc == 8:
        for k in range(32):
            A(f"v_mov_b32 v{acc + k}, 0")
    if publish:
        A(f"v_add_u32 v3, 1, v{vFL}\nv_cmp_eq_u32 vcc, s{sCU}, v0\ns_waitcnt vmcnt(0)\ns_and_saveexec_b64 s[66:67], vcc")
        A(f"buffer_store_dword v3, v1, {srd(SWS)}, s{sFLG} offen sc1\ns_mov_b64 exec, s[66:67]\ns_branch L_chk{tag}")
    A(f"L_poll{tag}:\ns_waitcnt vmcnt(0)\nL_chk{tag}:\nv_cmp_ne_u32 vcc, v2, v{vFL}")
    A(f"s_and_b32 s63, vcc_lo, 0xffff\ns_lshr_b32 s63, s63, s{sCU}\ns_and_b32 s63, s63, s62\ns_cbranch_scc1 L_some{tag}")
    A(f"s_add_u32 s58, s58, 1\ns_cmp_gt_u32 s58, 0x100000\ns_cbranch_scc1 L_out{tag}\ns_sleep {cfg.psleep}")
    A(f"buffer_load_dword v2, v1, {srd(SWS)}, s{sFLG} offen sc1\ns_branch L_poll{tag}\nL_some{tag}:")

    def loads(i):
        A(f"s_add_u32 s57, s{sCU}, {i}\ns_and_b32 s57, s57, 7\ns_lshl_b32 s57, s57, 12\ns_add_u32 s57, s57, s56")
        for p in range(4):
            A(f"buffer_load_dwordx4 {R('v', G + 16 * (i - 1) + 4 * p, 4)}, v6, {srd(SWS)}, s57 offen offset:{1024 * p}{cfg.gf}")

    def adds(i):
        for k in range(16):
            r = G + 16 * (i - 1) + k
            A(f"v_lshlrev_b32 v4, 16, v{r}\nv_and_b32 v5, 0xffff0000, v{r}")
            A(f"v_add_f32 v{acc + 2 * k}, v{acc + 2 * k}, v4\nv_add_f32 v{acc + 2 * k + 1}, v{acc + 2 * k + 1}, v5")
    A(f"s_cmp_lg_u32 s63, {((1 << nsrc) - 1) << 1}\ns_cbranch_scc1 L_part{tag}")
    for i in range(1, nsrc + 1):
        loads(i)
    for i in range(1, nsrc + 1):
        A(f"s_waitcnt vmcnt({4 * (nsrc - i)})")
        adds(i)
    A(f"L_out{tag}:")
    for p in range(4):
        for k in range(4):
            A(f"v_cvt_pk_bf16_f32 v{8 + 4 * p + k}, v{acc + 8 * p + 2 * k}, v{acc + 8 * p + 2 * k + 1}")
        A(f"buffer_store_dwordx4 {R('v', 8 + 4 * p, 4)}, v7, {srd(SOUT)}, s60 offen offset:{64 * (p >> 1) + 16 * (p & 1)}{cfg.of}")
    if cfg.stamp and publish:
        A("s_waitcnt vmcnt(0)")
        stamp(cfg, A, 5, 0)
    A(f"s_endpgm\nL_part{tag}:")
    for i in range(1, nsrc + 1):
        A(f"s_bitcmp1_b32 s63, {i}\ns_cbranch_scc0 L_nl{tag}{i}")
        loads(i)
        A(f"L_nl{tag}{i}:")
    A(f"buffer_load_dword v2, v1, {srd(SWS)}, s{sFLG} offen sc1\ns_andn2_b32 s62, s62, s63\ns_waitcnt vmcnt(1)")
    for i in range(1, nsrc + 1):
        A(f"s_cmp_lg_u32 s64, {i}\ns_cbranch_scc1 L_na{tag}{i}\ns_bitcmp1_b32 s62, {i}\ns_cbranch_scc1 L_poll{tag}")
        adds(i)
        A(f"s_mov_b32 s64, {i + 1}\nL_na{tag}{i}:")
    A(f"s_branch L_out{tag}")


vK, vV, vWq, vWo, vX = 24, 28, 32, 36, 176
W3A = 40
W3B = 52
W3X = 76
W3ACC = 160
vTQ, vTO, vTX, vDUM = 12, 13, 14, 15
pQ3 = 22


def xreg(ks, j):
    i = ks * 3 + j
    return R("a", 4 * i, 4) if i < 64 else R("v", W3X + 4 * (i - 64), 4)


def wave3(cfg, pl):
    addr = pl.addr
    sc = Sched(cfg)
    A = sc.out
    A("L_loader:")
    if cfg.prof:
        A("s_mov_b32 s96, 0\ns_mov_b32 s97, 0\ns_mov_b32 s98, 0\ns_mov_b32 s99, 0")
    lane_patterns(A, False)
    A(f"v_lshlrev_b32 v{pQ3}, 4, v0")
    for p in pK + pWq + [pQ3]:
        sc.bias[p] = 0
    A("v_lshrrev_b32 v1, 3, v0\nv_and_b32 v2, 7, v0\nv_lshrrev_b32 v3, 4, v0")
    A("v_and_b32 v16, 1, v3\nv_lshlrev_b32 v16, 2, v16\nv_xor_b32 v16, v16, v2\nv_lshlrev_b32 v16, 4, v16")
    A("v_lshlrev_b32 v18, 8, v1\nv_lshlrev_b32 v19, 13, v1\nv_mul_u32_u24 v20, 1152, v1")
    for g in range(4):
        A(f"v_add_u32 v17, {4 * g}, v3\nv_and_b32 v17, 7, v17\nv_xor_b32 v17, v17, v2\nv_lshlrev_b32 v17, 4, v17")
        A(f"v_add_u32 v17, {g * (9216 - 1024)}, v17\nv_add_u32 v{vX + g}, v17, v20")
        A(f"v_add_u32 v17, {g * (65536 - 1024)}, v16\nv_add_u32 v{vWq + g}, v17, v19")
        A(f"v_add_u32 v17, {g * (9216 - 1024)}, v16\nv_add_u32 v{vWo + g}, v17, v20")
    kv_offsets(A, vK, vV)
    for g in range(1, 4):
        A(f"v_xor_b32 v{vK + g}, {32 * g}, v{vK}\nv_mov_b32 v{vV + g}, v{vV}")
    nsh = {"16x8": 16, "8x16": 8, "4x32": 4}[cfg.mapping]
    xsh = 32 // nsh
    rows = 576 // nsh
    A(f"s_and_b32 s56, s{sB}, {nsh - 1}\nv_mov_b32 v21, 0x7fffff00\nv_cmp_gt_u32 vcc, 36, v0")
    A(f"v_lshrrev_b32 v{vTQ}, 1, v0\nv_lshlrev_b32 v{vTQ}, 13, v{vTQ}\nv_and_b32 v17, 1, v0\nv_lshlrev_b32 v17, 7, v17\nv_add_u32 v{vTQ}, v{vTQ}, v17")
    A(f"s_mul_i32 s57, s56, {rows * 8192}\nv_add_u32 v{vTQ}, s57, v{vTQ}\nv_cndmask_b32 v{vTQ}, v21, v{vTQ}, vcc")
    A(f"v_lshlrev_b32 v{vTO}, 7, v0\ns_mul_i32 s57, s56, {rows * 256}\nv_add_u32 v{vTO}, s57, v{vTO}\nv_cndmask_b32 v{vTO}, v21, v{vTO}, vcc")
    A(f"v_cmp_gt_u32 vcc, 54, v0\nv_lshlrev_b32 v{vTX}, 7, v0\ns_and_b32 s57, s{sCU}, {xsh - 1}\ns_mul_i32 s57, s57, {110592 // xsh}\nv_add_u32 v{vTX}, s57, v{vTX}")
    A(f"v_cndmask_b32 v{vTX}, v21, v{vTX}, vcc")

    def touch_ops(vreg, srd_, base, add, step, nl=rows * 2, per=36):
        l = []
        if not cfg.pf:
            return l
        for i in range(nl // per):
            l.append(f"s_add_u32 s{sTMP}, s{base}, {i * per * step + add}")
            for fl in ((" nt", "") if cfg.dbl else ("",)):
                l.append(("vm", f"buffer_load_dword v{vDUM}, v{vreg}, {srd(srd_)}, s{sTMP} offen{fl}"))
        return l

    def quad_ops(q, w=False):
        k = q[0]
        pre = []
        if k == "k":
            off, base, v, sr, fl = q[1] * 8192 + q[2] * 4096, sKV, vK, SK, cfg.kvf
        elif k == "v":
            off, base, v, sr, fl = q[1] * 8192 + q[2] * 4096, sKV, vV, SV, cfg.kvf
        elif k == "wq":
            off, base, v, sr, fl = (q[1] * 64 + q[2] * 32) * 8192 + q[3] * 128, sWQo, vWq, SWQ, cfg.wf
        elif k == "wq3":
            off, base, v, sr, fl = (q[2] * 64 + q[3] * 32) * 8192 + q[1] * 128 + 256, sWQo, vWq, (SWQ2 if w else SWQ), cfg.wf
        elif k == "x":
            off, base, v, sr, fl = q[2] * 32 * 1152 + q[1] * 128, sXo, vX, SX, cfg.xf
        else:
            pre = [f"s_add_u32 s{sTMP}, s{sWOo}, s{sTC + q[1]}"]
            off, base, v, sr, fl = q[2] * 32 * 1152, sTMP, vWo, SWO, cfg.wf
        l = pre + [f"s_mov_b32 m0, {addr[q]}", f"s_add_u32 s{sTMP}, s{base}, {off}"]
        for g in range(4):
            if not cfg.noload:
                l.append(("vm", f"buffer_load_dwordx4 v{v + g}, {srd(sr)}, s{sTMP} offen offset:{g * 1024}{fl} lds", q, g))
        return l

    lin = []

    def put(sc_, o, gen=0):
        if isinstance(o, tuple):
            sc_.out(o[1])
            lin.append((o[2] if len(o) > 2 else None, gen))
        elif callable(o):
            o(sc_)
        else:
            sc_.out(o)

    def wait_for(sc_, quads, gen):
        if cfg.noload:
            return
        last = max(k for k, e in enumerate(lin) if e[0] in quads and e[1] == gen)
        sc_.out(f"s_waitcnt vmcnt({min(63, len(lin) - 1 - last)})")

    def bar(sc_):
        if not cfg.nobar:
            sc_.out("s_barrier")

    descriptors(A)
    if stamp(cfg, A, 15, 1):
        lin.append((None, 0))
    if cfg.delay:
        A(f"s_and_b32 s56, s{sB}, 1\ns_cmp_eq_u32 s56, 0\ns_cbranch_scc1 L_nodelay")
        for _ in range(cfg.delay):
            A("s_sleep 32")
        A("L_nodelay:")
    for n_, q in enumerate(pl.sissue[-1]):
        for o in quad_ops(q):
            put(sc, o)
        if n_ == 6:
            sample_flags(A)
            lin.append((("flag",), 0))
    bias0 = {p: XRES for p in pK}
    bias0.update({p: WRB for p in pWq})
    bias0[pQ3] = QBUF
    ops = w3_ops(cfg)
    quads = w3_quads()
    ns = len(pl.grp)

    def conv_tile(p, hb, j):
        acc = W3ACC + 16 * (3 * hb + j)
        l = []
        for s in range(2):
            pk = W3B + 8 + 4 * s
            for k in range(4):
                t0 = W3B + 2 * (k & 1)
                r = acc + 8 * s + 2 * k
                l += [f"v_mul_f32 v{t0}, s{sC}, v{r}", f"v_mul_f32 v{t0 + 1}, s{sC}, v{r + 1}", f"v_cvt_pk_bf16_f32 v{pk + k}, v{t0}, v{t0 + 1}"]
            l.append(lambda sc_, pk=pk, a=QBUF + (j * 4 + hb * 2 + s) * 1024: sc_.lds("ds_write_b128", R("v", pk, 4), pQ3, a))
        return l

    def period(last, pro):
        nonlocal lin
        sc2 = Sched(cfg)
        sc2.bias = dict(bias0)
        B = sc2.out
        lin = [(q, 0) for q in pro for g in range(4)] if not cfg.noload else []
        myops = [] if last else copy.deepcopy(ops)
        n = len(myops)
        fill = {}
        bpos = {s: (sum(cfg.quota[:s]) if not last else 0) for s in range(ns + 1)}
        enq = {}
        if not last:
            lastidx = {(o["p"], o["hb"], o["j"]): i for i, o in enumerate(ops) if o["last"]}
            for p, hb in ((0, 0), (1, 0), (0, 1)):
                i0 = lastidx[(p, hb, 2)]
                spread(fill, sum((conv_tile(p, hb, j) for j in range(3)), []), i0 + 4, i0 + 12)
            assert lastidx[(0, 1, 2)] + 16 <= bpos[18] and lastidx[(1, 0, 2)] + 4 >= bpos[19]
            firstop = {q: min(i for i, o in enumerate(ops) if o["q"] == q) for q in quads}
            lastop = {q: max(i for i, o in enumerate(ops) if o["q"] == q) - 2 for q in quads}
            seg = lambda i: max(s for s in range(ns) if bpos[s] <= i)
            at = 0
            for k in range(36, 72):
                prev = max(j for j in range(k) if addr[quads[j % 36]] == addr[quads[k % 36]])
                free = lastop[quads[prev % 36]] + 1 + (prev // 36 - 1) * n
                sneed = seg(firstop[quads[k % 36]]) - cfg.raq
                early = bpos[sneed] if sneed >= 0 else bpos[sneed + ns] - n
                at = max(free, early) if k == 36 else max(at, free, early)
                assert at <= firstop[quads[k % 36]] - 5
                enq.setdefault(at % n if at < 0 else at, []).append((quads[k % 36], at < 0))
        st = dict(wrapq=False, wrapg=False, rdA=0, rdB=0, abuf=0, bbuf=0, step=-1)
        queue = []

        def drain(nvm):
            while queue and nvm > 0:
                o, g = queue.pop(0)
                put(sc2, o, g)
                nvm -= isinstance(o, tuple)

        def open_step(s):
            if cfg.trace is True:
                B(f"s_memtime s[60:61]\ns_waitcnt lgkmcnt(0)\nv_writelane_b32 v2, s60, {s}")
            wait_for(sc2, {pl.grp[s][3]}, 0)
            if cfg.trace is True:
                B(f"s_memtime s[60:61]\ns_waitcnt lgkmcnt(0)\nv_writelane_b32 v2, s60, {32 + s}")
            if s in (0, 16):
                if stamp(cfg, B, {0: 1, 16: 2}[s], 1):
                    lin.append((None, 0))
            if last and s == 16:
                B("v_readfirstlane_b32 s57, v17\ns_mov_b32 s58, 0\nL_chk:\ns_cmp_ge_u32 s57, 8\ns_cbranch_scc1 L_chkend")
                B(f"buffer_load_dword v17, v16, {srd(SDB)}, 0 offen sc1\ns_add_u32 s58, s58, 1\ns_waitcnt vmcnt(0)\nv_readfirstlane_b32 s57, v17")
                B("s_cmp_lt_u32 s58, 0x80000\ns_cbranch_scc1 L_chk\nL_chkend:")
            bar(sc2)
            for g, w in pl.req[s]:
                if w and not st["wrapg"]:
                    st["wrapg"] = True
                    queue.append((f"s_add_u32 s{sKV}, s{sKV}, 0x20000", 0))
                assert g >= 16 or w == st["wrapg"]
                if not (last and w):
                    queue.extend((o, int(w)) for o in quad_ops(pl.grp[g][3]))
            if last and s == 2:
                queue.extend([(f"s_lshl_b32 s56, s{sPAIR}, 2", 0), ("v_mov_b32 v16, s56", 0), (("vm", f"buffer_load_dword v17, v16, {srd(SDB)}, 0 offen sc1"), 0)])
            if s == cfg.pf_wo_step:
                queue.extend((o, 0) for o in touch_ops(vTO, SWO, sWOo, 0, 128))
            if s == cfg.pf_wq_step and not last:
                queue.append((f"s_cmp_eq_u32 s{sIT}, 2\ns_cselect_b32 s{SWQ2 + 2}, 0, s{SWQ2 + 2}", 0))
                queue.extend((o, 0) for o in touch_ops(vTQ, SWQ2, sWQo, 512, 4096))
            if bpos[s + 1] == bpos[s]:
                drain(99)
            st["step"] = s

        for i in range(n):
            while st["step"] + 1 < ns and bpos[st["step"] + 1] <= i:
                open_step(st["step"] + 1)
            for q, w in enq.get(i, []):
                if w and not st["wrapq"]:
                    st["wrapq"] = True
                    queue.append((f"s_add_u32 s{sWQo}, s{sWQo}, 256", 0))
                assert w == st["wrapq"]
                queue.extend((o, int(w)) for o in quad_ops(q, w))
            while st["rdA"] < n and st["rdA"] <= i + 5:
                o = myops[st["rdA"]]
                if st["rdA"] == firstop[o["q"]] and not cfg.noload:
                    while lin.count((o["q"], 0)) < 4:
                        drain(1)
                    wait_for(sc2, {o["q"]}, 0)
                fb = W3A + 4 * (st["abuf"] % 3)
                st["abuf"] += 1
                qa = addr[o["q"]] + 16 * o["s2"] * 128
                sc2.lds("ds_read_b64_tr_b16", R("v", fb, 2), pWq[o["hb"]], qa)
                sc2.lds("ds_read_b64_tr_b16", R("v", fb + 2, 2), pWq[o["hb"]], qa + 4 * 128)
                for d in range(3):
                    myops[st["rdA"] + d]["areg"] = fb
                st["rdA"] += 3
            while st["rdB"] < n and st["rdB"] <= i + 5:
                o = myops[st["rdB"]]
                if o["ks"] < 28:
                    o["breg"] = xreg(o["ks"], o["j"])
                elif o["hb"] == 0:
                    bb = W3B + 4 * (st["bbuf"] % 6)
                    st["bbuf"] += 1
                    sc2.lds("ds_read_b128", R("v", bb, 4), pK[o["ks"] & 3], XRES + (((o["ks"] >> 2) - 7) * 3 + o["j"]) * 4096)
                    assert myops[st["rdB"] + 3]["ks"] == o["ks"]
                    o["breg"] = myops[st["rdB"] + 3]["breg"] = R("v", bb, 4)
                st["rdB"] += 1
            drain(1)
            for o in fill.get(i, []):
                put(sc2, o)
            o = myops[i]
            d = R("v", W3ACC + 16 * (3 * o["hb"] + o["j"]), 16)
            B(f"{MF} {d}, {R('v', o['areg'], 4)}, {o['breg']}, {'0' if o['first'] else d}")
        drain(99)
        if not last:
            for o in sum((conv_tile(1, 1, j) for j in range(3)), []):
                put(sc2, o)
            B("s_waitcnt lgkmcnt(0)")
            assert st["step"] + 1 < ns
        while st["step"] + 1 < ns:
            open_step(st["step"] + 1)
        tailq = [e[0] for e in lin if e[1] == 1][::4]
        if not last:
            B(f"s_add_u32 s{sWOo}, s{sWOo}, 147456")
            for p, b in bias0.items():
                sc2.rebias(p, b)
            if cfg.trace is True:
                B(f"s_cmp_lg_u32 s{sIT}, 2\ns_cbranch_scc1 L_notr3\nv_lshlrev_b32 v1, 2, v0\ns_lshl_b32 s62, s2, 10\ns_add_u32 s62, s62, {STAMP_BASE + 768}")
                B(f"buffer_store_dword v2, v1, {srd(SWS)}, s62 offen\ns_waitcnt vmcnt(0)\nL_notr3:")
            B(f"s_add_u32 s{sIT}, s{sIT}, 1\ns_cmp_lt_u32 s{sIT}, 3\ns_cbranch_scc1 L_w3loop")
        body, pe = lgkm_pass(B.ins)
        assert not pe
        return body, tailq

    lin0 = list(lin)
    _, pro = period(False, [pl.grp[g][3] for g in pl.pro] + quads[:cfg.WR])
    loopbody, pro2 = period(False, pro)
    assert pro2 == pro
    lastp, _ = period(True, pro)
    lin = lin0
    if cfg.noload:
        pro = []
    todo = list(pro)
    for t in range(9):
        wait_for(sc, set(pl.start[t]) | ({("flag",)} if t == 0 else set()), 0)
        A("s_waitcnt lgkmcnt(0)")
        bar(sc)
        if t == 0:
            A(f"s_lshl_b32 s56, s{sPAIR}, 2\nv_mov_b32 v16, s56\nv_mov_b32 v17, 1\ns_mov_b64 exec, 1")
            put(sc, ("vm", f"buffer_atomic_add v17, v16, {srd(SDB)}, 0 offen sc1"))
            A("s_mov_b64 exec, -1")
        if t < 7:
            for s in range(4):
                for j in range(3):
                    sc.lds("ds_read_b128", xreg(4 * t + s, j), pK[s], addr[("x", t, j)])
        if t == cfg.pf_wq0_step:
            for o in touch_ops(vTQ, SWQ, sWQo, 256, 4096):
                put(sc, o)
        for q in pl.sissue[t]:
            for o in quad_ops(q):
                put(sc, o)
        while todo:
            q = todo[0]
            if q[0] == "wq3":
                if pl.slast.get(addr[q], -9) >= t:
                    break
                if any(pl.sissue[b] for b in range(t + 1, 9)):
                    break
            elif not any(pl.grp[g][3] == q for b in range(-1, t + 1) for g in pl.sreq[b]):
                break
            for o in quad_ops(todo.pop(0)):
                put(sc, o)
    assert not todo
    for p, b in bias0.items():
        sc.rebias(p, b)
    A("s_waitcnt lgkmcnt(0)")
    head, pend = lgkm_pass(sc.out.ins)
    loop = [parse("L_w3loop:")] + loopbody
    T = Prog()
    if cfg.prof:
        T(f"v_mov_b32 v16, s96\nv_mov_b32 v17, s97\nv_mov_b32 v18, s98\nv_mov_b32 v19, s99\nv_mov_b32 v20, 0\ns_lshl_b32 s62, s2, 10\ns_add_u32 s62, s62, {STAMP_BASE + 512 + 64}")
        T(f"buffer_store_dwordx4 v[16:19], v20, {srd(SWS)}, s62 offen")
    T(f"s_cmp_ge_u32 s{sCU}, 3\ns_cbranch_scc1 L_done")
    T("s_mov_b32 s61, 8")
    finish_unit(cfg, T, "w3", 8, 192, sCU, 61, False)
    allins, nn = hazard_pass(head + loop + lastp + T.ins, verbose=cfg.dbg == "nops3")
    return allins, dict(w3nops=nn, w3est=est_cycles(loop))


def acc_out(nb):
    return R("a", 16 * nb, 16) if nb < 16 else R("v", OUTV + 16 * (nb - 16), 16)


def q_ops(addr):
    ops = []
    XB = S0
    for t in range(9):
        order = [(s, b) for s in range(4) for b in range(4)] if t < 8 else [(s, b) for b in range(4) for s in range(4)]
        seen = set()
        for (s, b) in order:
            qa = addr[("wq", t, s >> 1, b >> 1)] + (16 * (s & 1)) * 128
            xb = XB + 4 * ((t * 4 + s) % 8)
            o = dict(step=t, a=[("tr", pWq[b & 1], qa), ("tr", pWq[b & 1], qa + 4 * 128)], b=R("v", xb, 4), d=R("v", O0 + 16 * b, 16))
            o["c"] = "0" if (t == 0 and s == 0) else o["d"]
            if s not in seen:
                seen.add(s)
                o["x"] = (xb, pK[s], addr[("x", t, 0)])
            ops.append(o)
    return ops


def item_ops(addr):
    ops = []

    def qk(u, step):
        for ds in range(8):
            d = R("v", S0 + 16 * (u & 1) if u else O0, 16)
            c = d if ds else ("0" if u < 2 else R("v", NEGM, 16))
            ops.append(dict(step=step, a=[("b128", pK[ds & 3], addr[("k", u, 0)] + (ds >> 2) * 512)], b=R("v", Q0 + 4 * ds, 4), d=d, c=c))

    def pv(u, step, bmajor=False):
        order = [(s, b) for s in range(2) for b in range(4)] if not bmajor else [(s, b) for b in range(4) for s in range(2)]
        for (s, b) in order:
            va = addr[("v", u, s)] + (b >> 1) * 512
            d = R("v", O0 + 16 * b, 16)
            ops.append(dict(step=step, a=[("tr", pV[b & 1], va), ("tr", pV[b & 1], va + 2048)],
                            b=R("v", P0 + 8 * (u & 1) + 4 * s, 4), d=d, c="0" if (u == 0 and s == 0) else d))
    qk(0, 0)
    qk(1, 0)
    for u in range(1, 15):
        qk(u + 1, u)
        pv(u - 1, u)
    pv(14, 15)
    pv(15, 15, True)
    for t in range(9):
        for b in range(4):
            for s in range(2):
                for half in range(2):
                    wa = addr[("wo", t, b)] + 16 * s * 128
                    d = acc_out(2 * t + half)
                    ops.append(dict(step=16 + t, a=[("tr", pWo[half], wa), ("tr", pWo[half], wa + 8 * 128)],
                                    b=R("v", OF + 8 * b + 4 * s, 4), d=d, c=d))
    assert len(ops) == 400
    return ops


def softmax_ops(u, first=False):
    S, P = S0 + 16 * (u & 1), P0 + 8 * (u & 1)
    if first:
        S = O0
    l = []
    for k in range(8):
        a, b = vT[2 * (k & 1)], vT[2 * (k & 1) + 1]
        pa, pb = vT[2 * ((k - 1) & 1)], vT[2 * ((k - 1) & 1) + 1]
        l.append(f"v_exp_f32 v{a}, v{S + 2 * k}")
        if k == 1:
            l.append(f"v_add_f32 v{vBS}, v{pa}, v{pb}")
        elif k > 1:
            l.append(f"v_add_f32 v{vBS}, v{vBS}, v{pa}")
        l.append(f"v_exp_f32 v{b}, v{S + 2 * k + 1}")
        if k > 1:
            l.append(f"v_add_f32 v{vBS}, v{vBS}, v{pb}")
        if k >= 1:
            l.append(f"v_cvt_pk_bf16_f32 v{P + k - 1}, v{pa}, v{pb}")
    a, b = vT[2], vT[3]
    l.append(f"v_add_f32 v{vBS}, v{vBS}, v{a}")
    l.append(f"v_cvt_pk_bf16_f32 v{P + 7}, v{a}, v{b}")
    l.append(f"v_add_f32 v{vBS}, v{vBS}, v{b}")
    return l


def conv_block(b, scale, dst):
    l = []
    for k in range(8):
        r = O0 + 16 * b + 2 * k
        l.append(f"v_mul_f32 v{r}, {scale}, v{r}")
        l.append(f"v_mul_f32 v{r + 1}, {scale}, v{r + 1}")
        if k:
            l.append(f"v_cvt_pk_bf16_f32 v{dst + 8 * b + k - 1}, v{r - 2}, v{r - 1}")
    l.append(f"v_cvt_pk_bf16_f32 v{dst + 8 * b + 7}, v{O0 + 16 * b + 14}, v{O0 + 16 * b + 15}")
    return l


def rowmax(S):
    l = [f"v_max3_f32 v{vM}, v{S}, v{S + 1}, v{S + 2}"]
    for k in range(6):
        l.append(f"v_max3_f32 v{vM}, v{vM}, v{S + 3 + 2 * k}, v{S + 4 + 2 * k}")
    l.append(f"v_max_f32 v{vM}, v{vM}, v{S + 15}")
    l.append(f"v_mov_b32 v{vM2}, v{vM}")
    l.append(f"v_permlane32_swap_b32 v{vM}, v{vM2}")
    l.append(f"v_max_f32 v{vM}, v{vM}, v{vM2}")
    return l


def with_subs(S, sm):
    sub = [f"v_sub_f32 v{S + i}, v{S + i}, v{vM}" for i in range(16)]
    l, k = sub[:4], 4
    for o in sm:
        l.append(o)
        if o.startswith("v_exp") and k < 16:
            l.append(sub[k])
            k += 1
    return l


def item_fill(cfg, ops, fill):
    post = {}
    chk = [f"v_cmp_lt_f32 vcc, s{sTHR}, v{vBS}"]
    spread(fill, rowmax(O0) + [f"v_sub_f32 v{NEGM + i}, 0, v{vM}" for i in range(16)], 11, 15)
    spread(fill, with_subs(O0, softmax_ops(0, True)) + [f"v_mov_b32 v{vL}, v{vBS}"], 16, 23)
    spread(fill, with_subs(S0 + 16, softmax_ops(1)) + chk, 24, 31)
    post[31] = 1
    for u in range(2, 15):
        su = 16 * u
        spread_bal(cfg, ops, fill, softmax_ops(u) + chk, su, su + 15)
        post[su + 15] = u
    spread(fill, softmax_ops(15) + chk, 240, 247)
    post[247] = 15
    spread(fill, [f"v_mov_b32 v{vM2}, v{vL}", f"v_permlane32_swap_b32 v{vL}, v{vM2}", f"v_add_f32 v{vL}, v{vL}, v{vM2}",
                  f"v_rcp_f32 v{vM}, v{vL}"], 249, 252)
    spread(fill, conv_block(0, f"v{vM}", OF), 253, 255)
    spread(fill, conv_block(1, f"v{vM}", OF), 256, 259)
    spread(fill, conv_block(2, f"v{vM}", OF), 260, 263)
    spread(fill, conv_block(3, f"v{vM}", OF), 264, 267)
    return post


def store_block(cfg, nb, tmp, pk):
    l = []
    if not nb & 1:
        l += [f"s_mul_i32 s56, s{sTC + (nb >> 1)}, 768", f"s_add_u32 s56, s56, s{sWSo}"]
    for u in range(2):
        for k in range(8):
            l.append(f"v_accvgpr_read_b32 v{tmp + 8 * u + k}, a{16 * nb + 8 * u + k}")
        for k in range(4):
            i = 8 * u + 2 * k
            l.append(f"v_cvt_pk_bf16_f32 v{pk + 4 * u + k}, v{tmp + i}, v{tmp + i + 1}")
        l.append(f"buffer_store_dwordx4 {R('v', pk + 4 * u, 4)}, v{vST}, {srd(SWS)}, s56 offen offset:{((nb & 1) * 2 + u) * 1024}{cfg.pstf}")
    return l


VMCOST = 4


def emit_slots(cfg, sc, ops, fill, post, lo, hi, st, stubs, stamps={}, nextops=None):
    LA = cfg.LA
    first = {}
    if nextops:
        ops = ops + [dict(o, step=ops[-1]["step"] + 1) for o in nextops]
    for i, o in enumerate(ops):
        first.setdefault(o["step"], i)
    for i in range(lo, hi):
        nx = st["step"] + 1
        if nextops and nx == ops[-1]["step"] and i >= first[nx] - cfg.LB:
            st["tag"], st["alias"] = "n", 0
            for p, b in st["rebias"].items():
                sc.rebias(p, b)
        if nx in first and i >= first[nx] - (cfg.LB if nx else LA):
            if nx in stamps and stamp(cfg, sc.out, stamps[nx], 0):
                st["lin"].append(None)
            w = "lgkmcnt(0)"
            key = (st["tag"], st.get("alias", nx))
            if key in st["lin"]:
                last = max(k for k, e in enumerate(st["lin"]) if e == key)
                w = f"vmcnt({len(st['lin']) - 1 - last}) " + w
            if cfg.trace == "head" and len(ops) == 144:
                sc.out(f"s_memrealtime s[60:61]\ns_waitcnt lgkmcnt(0)\nv_writelane_b32 v{NEGM}, s60, {nx}")
            if cfg.trace is True and len(ops) >= 400 and 0 < nx < 25:
                sc.out("s_memtime s[60:61]\ns_waitcnt lgkmcnt(0)")
                sc.out(f"v_writelane_b32 v2, s60, {nx}")
            sc.out("s_waitcnt " + w)
            if cfg.trace is True and len(ops) >= 400 and 0 < nx < 25:
                sc.out("s_memtime s[60:61]\ns_waitcnt lgkmcnt(0)")
                sc.out(f"v_writelane_b32 v2, s60, {32 + nx}")
            if not cfg.nobar:
                sc.out("s_barrier")
            st["step"] = nx
        while st["rd"] < min(i + LA + 1, len(ops)) and ops[st["rd"]]["step"] <= st["step"]:
            o = ops[st["rd"]]
            if "x" in o:
                sc.lds("ds_read_b128", R("v", o["x"][0], 4), o["x"][1], o["x"][2])
            fb = sc.fbuf()
            o["areg"] = fb
            if o["a"][0][0] == "b128":
                sc.lds("ds_read_b128", R("v", fb, 4), o["a"][0][1], o["a"][0][2])
            else:
                sc.lds("ds_read_b64_tr_b16", R("v", fb, 2), o["a"][0][1], o["a"][0][2])
                sc.lds("ds_read_b64_tr_b16", R("v", fb + 2, 2), o["a"][1][1], o["a"][1][2])
            st["rd"] += 1
        for f in fill.get(i, []):
            if callable(f):
                f(sc)
            elif isinstance(f, tuple):
                sc.out(f[0])
                st["lin"].append(f[1])
            else:
                sc.out(f)
                if f.startswith("buffer_"):
                    st["lin"].append(None)
        if i < 0:
            continue
        o = ops[i]
        m = parse(f"{MF} {o['d']}, {R('v', o['areg'], 4)}, {o['b']}, {o['c']}")
        if i % cfg.waitgrp == 0:
            for d in range(1, cfg.waitgrp):
                if i + d < st["rd"]:
                    m.rd = set(m.rd) | {("v", ops[i + d]["areg"] + k) for k in range(4)}
        sc.out.ins.append(m)
        if i in post:
            u = post[i]
            tag = f"{u}_{len(stubs)}"
            sc.out(f"s_cbranch_vccnz L_stub_{tag}\nL_back_{tag}:")
            sc.out(f"v_add_f32 v{vL}, v{vL}, v{vBS}")
            stubs.append((tag, u & 1))


def group_request(cfg, pl, fill, slot, g, tag, kind):
    l = []
    want = "k" if g == 0 else "m" if g < 15 else "v" if g == 15 else "w"
    if want != kind:
        l += {"k": [f"v_xor_b32 v{vD + k}, {32 * k}, v{bK}" for k in range(4)],
              "m": [f"v_mov_b32 v{vD}, v{bM}", f"v_xor_b32 v{vD + 1}, s{sXM}, v{bM}", f"v_xor_b32 v{vD + 2}, s{sXM2}, v{bM}", f"v_xor_b32 v{vD + 3}, s{sXM2}, v{vD + 1}"],
              "v": [f"v_mov_b32 v{vD + k}, v{bV}" for k in range(4)],
              "w": [f"v_add_u32 v{vD + k}, {8192 * k}, v{bWo}" for k in range(4)]}[want]
    so, sr, fl = {"k": (f"s_add_u32 s{sTMP}, s{sB0}, 0", SK, cfg.kvf), "m": (f"s_add_u32 s{sTMP}, s{sMB}, {g * 8192}", SM, cfg.kvf),
                  "v": (f"s_add_u32 s{sTMP}, s{sB0}, {14 * 8192}", SV, cfg.kvf),
                  "w": (f"s_add_u32 s{sTMP}, s{sWB}, s{sTC + max(g - 16, 0)}", SWO, cfg.wf)}[want]
    l += [f"s_add_u32 m0, s{sT4K}, {pl.addr[pl.grp[g][0]]}", so]
    fill.setdefault(slot, []).extend(l)
    for k in range(4):
        if not cfg.noload:
            fill.setdefault(slot + k, []).append((f"buffer_load_dwordx4 v{vD + k}, {srd(sr)}, s{sTMP} offen offset:{k * 1024}{fl} lds", (tag, g)))
    if g == 24:
        fill.setdefault(slot + 3, []).append(f"s_add_u32 s{sWB}, s{sWB}, 147456")
    return want


def rare_routine(p):
    A = Prog()
    S, Sn = S0 + 16 * p, S0 + 16 * (1 - p)
    A(f"L_rare{p}:\ns_nop 15\ns_nop 15")
    A("\n".join(rowmax(S)))
    A(f"v_max_f32 v{vM}, 0, v{vM}")
    for i in range(16):
        A(f"v_sub_f32 v{NEGM + i}, v{NEGM + i}, v{vM}\nv_sub_f32 v{S + i}, v{S + i}, v{vM}\nv_sub_f32 v{Sn + i}, v{Sn + i}, v{vM}")
    A(f"v_sub_f32 v{vM2}, 0, v{vM}\nv_exp_f32 v{vM2}, v{vM2}\ns_nop 0\nv_mul_f32 v{vL}, v{vL}, v{vM2}")
    for i in range(64):
        A(f"v_mul_f32 v{O0 + i}, v{O0 + i}, v{vM2}")
    A("\n".join(softmax_ops(p)))
    A("s_nop 3\ns_setpc_b64 s[40:41]")
    ins, _ = hazard_pass(A.ins)
    return ins


def compute(cfg, pl):
    addr = pl.addr
    sc = Sched(cfg)
    A = sc.out
    A(f"s_lshl_b32 s{sT4K}, s{sW}, 12\ns_mov_b32 s{sTHR}, {hex(f2u(cfg.thr))}")
    nsh = {"16x8": 16, "8x16": 8, "4x32": 4}[cfg.mapping]
    xr = 96 // (32 // nsh)
    A(f"v_mov_b32 v21, 0x7fffff00\ns_and_b32 s56, s{sB}, {nsh - 1}\ns_mul_i32 s56, s56, {(576 // nsh) * 8192}\ns_add_u32 s56, s56, s{sWQo}")
    A("v_lshrrev_b32 v16, 1, v0\nv_lshlrev_b32 v16, 13, v16\nv_and_b32 v17, 1, v0\nv_lshl_add_u32 v16, v17, 7, v16\nv_cmp_gt_u32 vcc, 36, v0")
    A(f"s_and_b32 s57, s{sCU}, {32 // nsh - 1}\ns_mul_i32 s57, s57, {xr * 1152}\ns_add_u32 s57, s57, s{sXo}\nv_cndmask_b32 v16, v21, v16, vcc")
    A(f"v_mul_u32_u24 v17, 1152, v0\nv_cmp_gt_u32 vcc, {xr}, v0\ns_and_b32 s58, s{sW}, 2\ns_lshl_b32 s58, s58, 6\ns_add_u32 s57, s57, s58\nv_cndmask_b32 v17, v21, v17, vcc")
    descriptors(A)
    ntouch = 0
    if cfg.pf:
        A(f"s_cmp_lg_u32 s{sW}, 0\ns_cbranch_scc1 L_tx")
        for i in range(1152 // nsh // 36):
            A(f"buffer_load_dword v{NEGM}, v16, {srd(SWQ)}, s56 offen\ns_add_u32 s56, s56, {18 * 8192}")
        A("s_branch L_tdone\nL_tx:")
        if cfg.pfx:
            for i in range(5):
                A(f"buffer_load_dword v{NEGM}, v17, {srd(SX)}, s57 offen offset:{256 * i}")
        A("L_tdone:")
    sample_flags(A)
    lane_patterns(A, True)
    A(f"v_lshlrev_b32 v{vST}, 4, v0\nv_add_u32 v{pQ}, s{sT4K}, v{vST}")
    A(f"s_mul_i32 s56, s{sPAIR}, 884736\ns_lshl_b32 s57, s{sW}, 15\ns_add_u32 s56, s56, s57\ns_lshl_b32 s57, s{sCU}, 12\ns_add_u32 s{sWSo}, s56, s57")
    A("v_lshrrev_b32 v1, 3, v0\nv_and_b32 v2, 7, v0\nv_lshrrev_b32 v16, 4, v0\nv_lshlrev_b32 v18, 8, v1\nv_mul_u32_u24 v19, 1152, v1")
    A(f"v_and_b32 v17, 1, v16\nv_lshlrev_b32 v17, 2, v17\nv_xor_b32 v17, v17, v2\nv_lshl_add_u32 v{bWo}, v17, 4, v19")
    kv_offsets(A, bK, bV)
    A(f"s_cmp_lt_u32 s{sW}, 2\ns_cselect_b32 s{SM}, s{SK}, s{SV}\ns_cselect_b32 s{SM + 1}, s{SK + 1}, s{SV + 1}\ns_mov_b32 s{SM + 2}, 0x4000000\ns_mov_b32 s{SM + 3}, 0x20000")
    A(f"s_cselect_b32 s{sXM}, 32, 0\ns_cselect_b32 s{sXM2}, 64, 0\ns_cselect_b64 vcc, -1, 0\ns_add_u32 s56, s{sT4K}, 8192\ns_cmp_lt_u32 s{sW}, 2")
    A(f"s_cselect_b32 s56, s56, {(-8192) & 0xffffffff}\ns_add_u32 s{sMB}, s{sKV}, s56\nv_cndmask_b32 v{bM}, v{bV}, v{bK}, vcc")
    A(f"s_add_u32 s{sB0}, s{sKV}, s{sT4K}")
    A(f"s_mul_i32 s56, s{sW}, 36864\ns_add_u32 s{sWB}, s{sWOo}, s56")
    for i in range(256):
        A(f"v_accvgpr_write_b32 a{i}, 0")
    for i in range(32):
        A(f"v_mov_b32 v{OUTV + i}, 0")
    A("s_waitcnt vmcnt(0)")
    for p in pK + pV + pWq + pWo + [pQ]:
        sc.bias[p] = 0
    qops = q_ops(addr)
    qf = {}
    kind = None
    for t in range(-1, 9):
        for n_, g in enumerate(pl.sreq[t]):
            kind = group_request(cfg, pl, qf, (16 * t - cfg.LB if t > 0 else -cfg.LA + 1 if t == 0 else -cfg.LA - 8) + 4 * n_, g, "n", kind)
    kind0 = kind
    spread(qf, conv_block(0, f"s{sC}", Q0), 135, 138)
    spread(qf, conv_block(1, f"s{sC}", Q0), 139, 143)
    emit_slots(cfg, sc, qops, qf, {}, -cfg.LA - 8, 144, dict(rd=0, step=-1, lin=[], tag="c"), [], {0: 0})
    A("\n".join(conv_block(2, f"s{sC}", Q0) + conv_block(3, f"s{sC}", Q0)))
    if cfg.trace == "head":
        A(f"s_memrealtime s[60:61]\ns_waitcnt lgkmcnt(0)\nv_writelane_b32 v{NEGM}, s60, 9\nv_writelane_b32 v{NEGM}, s101, 10")
        A(f"v_lshlrev_b32 v1, 2, v0\ns_lshl_b32 s62, s2, 10\ns_lshl_b32 s63, s{sW}, 8\ns_add_u32 s62, s62, s63\ns_add_u32 s62, s62, {STAMP_BASE}")
        A(f"buffer_store_dword v{NEGM}, v1, {srd(SWS)}, s62 offen\ns_waitcnt vmcnt(0)")
    k_patterns(A, False)
    for p in pK:
        sc.bias[p] = 0
    for p in pV + pWo:
        sc.rebias(p, 0)
    sc.rebias(pQ, QBUF)
    bias0 = dict(sc.bias)
    sc.nbuf = 0
    ops = item_ops(addr)
    st = dict(rd=0, step=-1, lin=[("c", g) for g in pl.pro for k in range(4)] if not cfg.noload else [], tag="c")
    emit_slots(cfg, sc, ops, {}, {}, -cfg.LA, 0, st, [], {0: 1})
    assert st["rd"] == cfg.LA and 400 % cfg.NB == 0
    bias1 = dict(sc.bias)
    head, pend0 = lgkm_pass(sc.out.ins)
    assert len(pend0) == cfg.LA
    head, nh = hazard_pass(head, verbose=cfg.dbg == "nops")
    sc.out = Prog()
    fill = {}
    split = 272
    bslot = lambda s_: 16 * s_ - cfg.LB if s_ else 0
    late = {}
    wrapped = False
    for s_ in range(25):
        for n_, (g, w) in enumerate(pl.req[s_]):
            slot = bslot(s_) + 4 * n_
            if w and not wrapped:
                wrapped = True
                assert slot < split, "first wrapped request must precede the split"
                fill.setdefault(slot, []).append(f"s_add_u32 s{sB0}, s{sB0}, 0x20000\ns_add_u32 s{sMB}, s{sMB}, 0x20000\ns_cmp_eq_u32 s{sIT}, 3")
                fill[slot].append(f"s_cselect_b32 s{SK + 2}, 0, s{SK + 2}\ns_cselect_b32 s{SM + 2}, 0, s{SM + 2}")
            assert g >= 16 or w == wrapped
            if w and slot >= split:
                kind = group_request(cfg, pl, late, slot, g, "n", None)
            else:
                kind = group_request(cfg, pl, fill, slot, g, "n" if w else "c", None if slot >= split else kind)
    assert kind == kind0
    post = item_fill(cfg, ops, fill)
    stubs = []
    sc.out("L_item:")
    st["lin"] = [e for e in st["lin"] if e]
    emit_slots(cfg, sc, ops, fill, post, 0, split, st, stubs, {16: 2})
    sc.out(f"s_cmp_lg_u32 s{sIT}, 3\ns_cbranch_scc1 L_more")
    common, pend = lgkm_pass(sc.out.ins, pend0)
    common, n0 = hazard_pass(common, history=head[-20:], verbose=cfg.dbg == "nops")
    sa = copy.deepcopy(sc)
    sa.out = Prog()
    sa.out("L_more:")
    fa = {k: list(v) for k, v in fill.items()}
    for k, v in late.items():
        fa[k] = fa.get(k, []) + v
    for p, r0 in ((0, 288), (1, 381)):
        spread(fa, [(lambda s_, i=i, p=p: s_.lds("ds_read_b128", R("v", Q0 + 16 * p + 4 * i, 4), pQ, QBUF + i * 1024)) for i in range(4)], r0, r0 + 3)
    sta = copy.deepcopy(st)
    sta["rebias"] = bias0
    fa.setdefault(390, []).append(f"s_add_u32 s{sIT}, s{sIT}, 1")
    emit_slots(cfg, sa, copy.deepcopy(ops), fa, {}, split, 400, sta, stubs, {25: 1}, nextops=copy.deepcopy(ops[:cfg.LA]))
    assert cfg.noload or [e for e in sta["lin"] if e and e[0] == "n"] == [("n", g) for g in pl.pro for k in range(4)]
    assert sa.bias == bias1 and sta["rd"] == 400 + cfg.LA
    if cfg.trace is True:
        sa.out(f"s_cmp_lg_u32 s{sIT}, 3\ns_cbranch_scc1 L_notr\nv_lshlrev_b32 v1, 2, v0\ns_lshl_b32 s62, s2, 10\ns_lshl_b32 s63, s{sW}, 8\ns_add_u32 s62, s62, s63\ns_add_u32 s62, s62, {STAMP_BASE}")
        sa.out(f"buffer_store_dword v2, v1, {srd(SWS)}, s62 offen\ns_waitcnt vmcnt(0)\nL_notr:")
    sa.out("s_branch L_item")
    conta, pe = lgkm_pass(sa.out.ins, pend)
    assert pe == pend0[len(pend0) - len(pe):]
    conta, n1 = hazard_pass(conta, history=common[-20:])
    sb = copy.deepcopy(sc)
    sb.out = Prog()
    sb.out("L_last:")
    fb = {k: list(v) for k, v in fill.items()}
    for t in range(1, 9):
        s0 = 256 + 16 * t
        spread(fb, store_block(cfg, 2 * t - 2, Q0, P0) + store_block(cfg, 2 * t - 1, Q0 + 16, P0 + 8), s0 + 3, s0 + 15)
    emit_slots(cfg, sb, copy.deepcopy(ops), fb, {}, split, 400, copy.deepcopy(st), stubs)
    T = sb.out
    stamp(cfg, T, 3, 0)
    stamp(cfg, T, 4, 0)
    finish_unit(cfg, T, "c", 7, OUTV, sW, sCU, True)
    contb, _ = lgkm_pass(sb.out.ins, pend)
    contb, n2 = hazard_pass(contb, history=common[-20:], verbose=cfg.dbg == "nops")
    st = Prog()
    for tag, p in stubs:
        st(f"L_stub_{tag}:\ns_call_b64 s[40:41], L_rare{p}\ns_branch L_back_{tag}")
    info = dict(nops=(nh, n0, n1, n2), est_item=est_cycles(common + conta))
    return head + common + contb + conta + st.ins + rare_routine(0) + rare_routine(1), info


def kd(name, vg, acc, sg=102):
    return (f".amdhsa_kernel {name}\n  .amdhsa_next_free_vgpr {vg}\n  .amdhsa_next_free_sgpr {sg}\n  .amdhsa_accum_offset {acc}\n"
            "  .amdhsa_group_segment_fixed_size 0\n  .amdhsa_kernarg_size 104\n  .amdhsa_user_sgpr_count 2\n"
            "  .amdhsa_user_sgpr_kernarg_segment_ptr 1\n  .amdhsa_system_sgpr_workgroup_id_x 1\n.end_amdhsa_kernel\n")


def generate(cfg):
    pl = plan_ring(cfg)
    P = Prog()
    prologue(cfg, P)
    pro, _ = hazard_pass(P.ins)
    comp, info = compute(cfg, pl)
    w3, info3 = wave3(cfg, pl)
    info.update(info3)
    s = HDR + "; @launch grid=(256,1,1) block=(256,1,1) lds=163840\n"
    s += '.amdgcn_target "amdgcn-amd-amdhsa--gfx950"\n.text\n'
    s += f".globl {KNAME}\n.p2align 8\n.type {KNAME},@function\n{KNAME}:\n"
    s += render(pro) + render(comp) + render(w3) + "L_done:\n    s_endpgm\n"
    s += '.section .rodata,"a"\n.p2align 6\n' + kd(KNAME, 512, 256)
    return s, info, pl


if __name__ == "__main__":
    import build
    name = sys.argv[1]
    kw = {}
    for a in sys.argv[2:]:
        k, v = a.split("=", 1)
        try:
            v = eval(v)
        except Exception:
            pass
        kw[k] = v
    s, info, plan = generate(Cfg(**kw))
    open(name, "w").write(s)
    print(info)
    build.build(name)
```

```python
import copy
import math
import struct
import sys

from asmlib import Prog, parse, lgkm_pass, hazard_pass, render, est_cycles, R

KNAME = "concat_heads__mha_block_cached__gqa_block_cached__near_ridge_kernel"
HDR = open("concat_heads__mha_block_cached__gqa_block_cached__near_ridge.s.ref").read().split("; Override launch")[0]


def f2u(x):
    return struct.unpack("<I", struct.pack("<f", x))[0]


class Cfg:
    mapping = "16x8"
    kvf = " nt"
    wf = ""
    xf = ""
    pstf = " sc1"
    gf = " sc1"
    of = ""
    psleep = 2
    LA = 6
    LB = 4
    NB = 8
    colors = "defabcdabcdefabc" + "abc" * 3
    dmax = 99
    dwo = 2
    reqs = None
    park = (14, 16, 18)
    kv0 = (4, 5, 6)
    WR = 6
    raq = 4
    waitgrp = 4
    wqbatch = 1
    balance = True
    front = True
    stamp = False
    pf = True
    dbl = False
    pfx = False
    thr = 1024.0
    quota = (13, 24, 20) + (20,) * 12 + (21, 21) + (15,) * 6 + (3, 0)
    pf_wo_step = 1
    pf_wq_step = 12
    pf_wq0_step = 1
    dbg = None
    nobar = False
    noload = False
    delay = 0
    prof = False
    trace = False
    trace_it = 2
    warm = True
    gsp = 1
    mred = True
    half = 0

    def __init__(self, **kw):
        for k, v in kw.items():
            assert hasattr(Cfg, k), k
            setattr(self, k, v)


pK = [4, 5, 6, 7]
pV = [8, 9]
pWq = [10, 11]
pWo = [12, 13]
vL, vBS = 14, 15
vT = [16, 17, 18, 19]
vM, vM2, vST, vFL = 20, 21, 22, 23
FR0, NEGM, S0, P0, Q0, O0, OUTV, FRX = 24, 48, 64, 96, 112, 144, 208, 240
OF = S0
pQ = 3
bK, bV, bWo, bM = 248, 249, 250, 251
vD = 252
sW, sB, sH = 3, 4, 5
SK, SV, SWQ, SWO, SX, SWS = 16, 20, 24, 28, 32, 36
sKV, sXo, sWQo, sWOo, sTMP, sIT, sC, sTHR, sT4K, sWSo = 42, 43, 44, 45, 46, 47, 48, 49, 50, 51
sJ, sPAIR, sCU = 52, 53, 59
SDB, SOUT = 68, 72
sTC = 80
sFLG = 89
SWQ2 = 92
SM = 96
sMB, sB0, sWB, sXM, sXM2 = 90, 91, 66, 67, 100
WRB = 24 * 4096
MF = "v_mfma_f32_32x32x16_bf16"
QBUF = 31 * 4096
XRES = 34 * 4096
FLAGBASE = 32 << 20
TORD = (0, 1, 2, 7, 8, 3, 4, 5, 6)


def srd(n):
    return f"s[{n}:{n + 3}]"


def w3_quads():
    return [("wq3", p, t, rb) for p in range(2) for t in TORD for rb in range(2)]


def w3_ops(cfg):
    quads = w3_quads()
    ops = []
    for p in range(2):
        pq = quads[18 * p:18 * p + 18]
        groups = [pq[0:2]] + [[q] for q in pq[2:16]] + [pq[16:18]]
        for grp in groups:
            if len(grp) == 2:
                seqv = [(q, s2, hb) for hb in range(2) for q in grp for s2 in range(2)]
            else:
                seqv = [(grp[0], s2, hb) for s2 in range(2) for hb in range(2)]
            for (q, s2, hb) in seqv:
                ks = 4 * q[2] + 2 * q[3] + s2
                for j in range(3):
                    ops.append(dict(q=q, s2=s2, hb=hb, j=j, ks=ks, p=p, first=(q == pq[0] and s2 == 0), last=(q == pq[17] and s2 == 1)))
    assert len(ops) == 432 == sum(cfg.quota)
    i = 0
    for s, n in enumerate(cfg.quota):
        for o in ops[i:i + n]:
            o["step"] = s
        i += n
    for i in range(0, 432, 3):
        for d in range(3):
            ops[i + d]["astep"] = ops[i]["step"]
    return ops


class Plan:
    pass


def plan_ring(cfg):
    pl = Plan()
    grp = [[("k", 0, 0), ("k", 0, 1), ("k", 1, 0), ("k", 1, 1)]]
    for u in range(1, 15):
        grp.append([("k", u + 1, 0), ("k", u + 1, 1), ("v", u - 1, 0), ("v", u - 1, 1)])
    grp.append([("v", 14, 0), ("v", 14, 1), ("v", 15, 0), ("v", 15, 1)])
    for t in range(9):
        grp.append([("wo", t, rb) for rb in range(4)])
    ns = len(grp)
    addr = {}
    for s_, g in enumerate(grp):
        for k, q in enumerate(g):
            addr[q] = (ord(cfg.colors[s_]) - 97) * 16384 + k * 4096
    start = []
    xslot = (QBUF, WRB, WRB + 12288) * 2 + (QBUF, XRES, XRES + 12288)
    for t in range(9):
        wq = [("wq", t, rb, cb) for rb in range(2) for cb in range(2)]
        for k, q in enumerate(wq):
            addr[q] = (ord(cfg.colors[16 + t]) - 97) * 16384 + k * 4096
        for rb in range(3):
            addr[("x", t, rb)] = xslot[t] + rb * 4096
        start.append(wq + [("x", t, rb) for rb in range(3)])
    for i, q in enumerate(w3_quads()):
        addr[q] = WRB + (i % cfg.WR) * 4096
    req = {b: [] for b in range(ns)}
    for g in range(ns):
        gap = next(d for d in range(1, ns + 1) if cfg.colors[(g - d) % ns] == cfg.colors[g])
        lead = min(gap - 1, cfg.dwo if g >= 16 else cfg.dmax)
        if cfg.reqs:
            lead = (g - cfg.reqs[g]) % ns
            assert lead <= gap - 1, (g, lead, gap)
        elif g < len(cfg.park):
            assert ns + g - cfg.park[g] <= lead
            lead = ns + g - cfg.park[g]
        assert lead >= 1
        req[(g - lead) % ns].append((g, g - lead < 0))
    for b in req:
        req[b].sort(key=lambda e: (e[0] < 16, e[1]))
    pl.req = req
    pl.pro = [g for b in range(ns) for g, w in req[b] if w]
    pl.sreq = {b: [] for b in range(-1, 9)}
    bb = -1
    for n_, g in enumerate(pl.pro):
        b = next(b for b in range(ns) if (g, True) in req[b])
        bb = max(bb, cfg.kv0[n_] if n_ < len(cfg.kv0) else b - 16)
        assert all(cfg.colors[16 + t] != cfg.colors[g] for t in range(max(bb, 0), 9))
        pl.sreq[bb].append(g)
    sissue = {b: [] for b in range(-1, 9)}
    lastuse = {}
    b = -1
    for t in range(9):
        for q in start[t]:
            lo = addr[q]
            b = max(b, lastuse.get(lo, -9) + 1)
            assert b < t
            sissue[b].append(q)
            lastuse[lo] = t
    pl.slast = lastuse
    pl.grp, pl.start, pl.addr, pl.sissue = grp, start, addr, sissue
    return pl


def prologue(cfg, A):
    A("s_cmp_ge_u32 s2, 256\ns_cbranch_scc1 L_done")
    if cfg.trace == "head":
        A("s_memrealtime s[60:61]\ns_waitcnt lgkmcnt(0)\ns_mov_b32 s101, s60")
    A(f"v_lshrrev_b32 v1, 6, v0\nv_and_b32 v0, 63, v0\nv_readfirstlane_b32 s{sW}, v1")
    A("s_and_b32 s6, s2, 4\ns_mul_i32 s6, s6, 10\ns_add_u32 s6, s0, s6\ns_addc_u32 s7, s1, 0")
    A("s_load_dwordx2 s[40:41], s[6:7], 0\ns_load_dwordx4 s[8:11], s[6:7], 8\ns_load_dwordx4 s[12:15], s[6:7], 24")
    A("s_load_dwordx2 s[54:55], s[0:1], 96\ns_load_dwordx4 s[76:79], s[0:1], 80")
    A(f"s_and_b32 s57, s2, 3\ns_lshr_b32 s{sJ}, s2, 3")
    if cfg.mapping == "16x8":
        A(f"s_lshr_b32 s{sB}, s{sJ}, 1\ns_and_b32 s{sH}, s{sJ}, 1\ns_lshl_b32 s{sH}, s{sH}, 2\ns_lshl_b32 s57, s57, 3\ns_add_u32 s{sH}, s{sH}, s57")
    elif cfg.mapping == "8x16":
        A(f"s_and_b32 s56, s57, 1\ns_lshl_b32 s56, s56, 3\ns_lshr_b32 s{sB}, s{sJ}, 2\ns_add_u32 s{sB}, s{sB}, s56")
        A(f"s_lshr_b32 s56, s57, 1\ns_lshl_b32 s56, s56, 4\ns_and_b32 s{sH}, s{sJ}, 3\ns_lshl_b32 s{sH}, s{sH}, 2\ns_add_u32 s{sH}, s{sH}, s56")
    else:
        A(f"s_lshl_b32 s56, s57, 2\ns_lshr_b32 s{sB}, s{sJ}, 3\ns_add_u32 s{sB}, s{sB}, s56\ns_and_b32 s{sH}, s{sJ}, 7\ns_lshl_b32 s{sH}, s{sH}, 2")
    if cfg.half:
        A(f"s_and_b32 s56, s{sB}, {cfg.half}\ns_cmp_lg_u32 s56, 0\ns_cbranch_scc1 L_done")
    A(f"s_lshl_b32 s{sKV}, s{sB}, 22\ns_lshl_b32 s56, s{sH}, 17\ns_add_u32 s{sKV}, s{sKV}, s56")
    A(f"s_mul_i32 s{sXo}, s{sB}, 110592\ns_lshl_b32 s{sWQo}, s{sH}, 8\ns_mul_i32 s{sWOo}, s{sH}, 147456")
    A(f"s_and_b32 s56, s2, 4\ns_lshl_b32 s56, s56, 2\ns_add_u32 s{sPAIR}, s56, s{sB}\ns_lshr_b32 s{sCU}, s{sH}, 2")
    for tau in range(9):
        A(f"s_add_u32 s56, s{sCU}, {1 + tau}\ns_cmp_ge_u32 s56, 9\ns_cselect_b32 s57, 9, 0\ns_sub_u32 s56, s56, s57\ns_lshl_b32 s{sTC + tau}, s56, 7")
    A(f"s_mov_b32 s{sIT}, 0\ns_mov_b32 s{sC}, {hex(f2u(math.log2(math.e) / math.sqrt(128.0)))}")
    A(f"s_cmp_eq_u32 s{sW}, 3\ns_cselect_b32 s56, s{sCU}, s{sW}\ns_mul_i32 s57, s{sPAIR}, 3\ns_add_u32 s56, s56, s57\ns_lshl_b32 s56, s56, 12\ns_add_u32 s{sFLG}, s56, {FLAGBASE}")
    A(f"s_cmp_eq_u32 s{sW}, 3\ns_cbranch_scc1 L_loader")


def descriptors(A):
    A("s_waitcnt lgkmcnt(0)")
    for d, b, n in ((SWQ, 12, 4718592), (SX, 40, 1769472), (SWS, 54, 290848768), (SK, 8, 0x4000000), (SV, 10, 0x4000000),
                    (SWO, 14, 4718592), (SWQ2, 12, 4718592), (SOUT, 76, 3538944), (SDB, 78, 256)):
        A(f"s_mov_b32 s{d}, s{b}\ns_mov_b32 s{d + 1}, s{b + 1}\ns_mov_b32 s{d + 2}, {n}\ns_mov_b32 s{d + 3}, 0x20000")


def sample_flags(A):
    A(f"v_and_b32 v1, 7, v0\nv_lshlrev_b32 v1, 2, v1\nbuffer_load_dword v{vFL}, v1, {srd(SWS)}, s{sFLG} offen sc1")


STAMP_BASE = 64 << 20


def stamp(cfg, A, k, who):
    if not cfg.stamp:
        return 0
    A("s_memrealtime s[60:61]\ns_memtime s[64:65]\ns_waitcnt lgkmcnt(0)")
    A(f"s_lshl_b32 s62, s2, 10\ns_lshl_b32 s63, s{sIT}, 7\ns_add_u32 s62, s62, s63\ns_add_u32 s62, s62, {STAMP_BASE + who * 512 + 8 * k}")
    t = 18 if who else 0
    if who:
        A(f"v_mov_b32 v{t}, s60\nv_mov_b32 v{t + 1}, s64\nv_mov_b32 v{t + 2}, 0\nbuffer_store_dwordx2 v[{t}:{t + 1}], v{t + 2}, {srd(SWS)}, s62 offen")
    else:
        A(f"v_mov_b32 v0, s60\nv_mov_b32 v1, s64\nv_mov_b32 v2, 0\nbuffer_store_dwordx2 v[0:1], v2, {srd(SWS)}, s62 offen")
        A("s_nop 1\nv_mbcnt_lo_u32_b32 v0, -1, 0\nv_mbcnt_hi_u32_b32 v0, -1, v0")
    return 1


class Sched:
    def __init__(self, cfg):
        self.cfg = cfg
        self.bias = {}
        self.nbuf = 0
        self.out = Prog()

    def fbuf(self):
        i = self.nbuf % self.cfg.NB
        self.nbuf += 1
        return FR0 + 4 * i if i < 6 else FRX + 4 * (i - 6)

    def lds(self, op, reg, preg, a):
        b = self.bias[preg]
        if not (0 <= a - b <= 65535):
            nb = a & ~4095
            self.out(f"v_add_u32 v{preg}, {(nb - b) & 0xffffffff}, v{preg}")
            self.bias[preg] = b = nb
        if op.startswith("ds_read"):
            self.out(f"{op} {reg}, v{preg} offset:{a - b}")
        else:
            self.out(f"{op} v{preg}, {reg} offset:{a - b}")

    def rebias(self, preg, nb):
        b = self.bias[preg]
        if b != nb:
            self.out(f"v_add_u32 v{preg}, {(nb - b) & 0xffffffff}, v{preg}")
            self.bias[preg] = nb


def spread(fill, ops_list, s0, s1):
    n = s1 - s0 + 1
    cost = [2 if isinstance(o, str) and o.startswith("v_exp") else 1 for o in ops_list]
    tot = sum(cost)
    acc = 0
    for o, c in zip(ops_list, cost):
        k = min(n - 1, int((acc + c / 2) * n / tot))
        fill.setdefault(s0 + k, []).append(o)
        acc += c


def spread_bal(cfg, ops, fill, ops_list, s0, s1):
    if not cfg.balance:
        return spread(fill, ops_list, s0, s1)
    base = []
    for i in range(s0, s1 + 1):
        o = ops[min(i + cfg.LA, len(ops) - 1)]
        base.append(len(o["a"]) + (1 if i % cfg.waitgrp == 0 else 0) + sum(VMCOST if isinstance(f, tuple) else 1 for f in fill.get(i, [])))
    cost = [2 if isinstance(o, str) and o.startswith("v_exp") else 1 for o in ops_list]
    level = (sum(cost) + sum(base)) / len(base)
    k, room = 0, level - base[0]
    for o, c in zip(ops_list, cost):
        while k < len(base) - 1 and room < c / 2:
            k += 1
            room += level - base[k]
        fill.setdefault(s0 + k, []).append(o)
        room -= c


def k_patterns(A, xform, off=None):
    A("v_lshrrev_b32 v1, 5, v0\nv_and_b32 v2, 31, v0\nv_lshrrev_b32 v16, 1, v2\nv_and_b32 v16, 7, v16\nv_xor_b32 v16, v16, v1")
    if xform:
        A("v_lshlrev_b32 v2, 7, v2")
        if off:
            A(f"v_add_u32 v2, s{off}, v2")
    else:
        A("v_lshrrev_b32 v17, 2, v2\nv_and_b32 v2, 3, v2\nv_lshlrev_b32 v2, 7, v2\nv_lshl_add_u32 v2, v17, 10, v2")
    for j in range(4):
        A(f"v_xor_b32 v17, {2 * j}, v16\nv_lshl_add_u32 v{pK[j]}, v17, 4, v2")


def lane_patterns(A, with_wave_offset):
    k_patterns(A, True, sT4K if with_wave_offset else None)
    A("v_lshrrev_b32 v2, 2, v0\nv_and_b32 v2, 3, v2\nv_lshrrev_b32 v3, 1, v2\nv_lshlrev_b32 v3, 6, v3")
    A("v_lshrrev_b32 v16, 4, v0\nv_and_b32 v16, 1, v16\nv_and_b32 v17, 1, v0\nv_lshrrev_b32 v18, 1, v0\nv_and_b32 v18, 1, v18")
    A("v_lshl_add_u32 v19, v1, 2, v2\nv_lshlrev_b32 v19, 7, v19\nv_lshl_add_u32 v20, v1, 3, v2\nv_lshlrev_b32 v20, 7, v20")
    A("v_lshlrev_b32 v21, 5, v16\nv_lshl_add_u32 v21, v17, 3, v21\nv_lshl_add_u32 v21, v18, 4, v21\nv_lshl_add_u32 v21, v2, 7, v21\nv_lshl_add_u32 v21, v1, 10, v21")
    A(f"v_add_u32 v{pV[0]}, v21, v3\nv_xor_b32 v{pV[1]}, 64, v{pV[0]}")
    A("v_lshlrev_b32 v21, 5, v16\nv_lshl_add_u32 v21, v17, 4, v21\nv_lshl_add_u32 v21, v18, 3, v21\nv_add_u32 v21, v21, v20")
    A(f"v_add_u32 v{pWq[0]}, v21, v3\nv_xor_b32 v{pWq[1]}, 64, v{pWq[0]}")
    A("v_lshlrev_b32 v21, 5, v17\nv_lshl_add_u32 v21, v16, 4, v21\nv_lshl_add_u32 v21, v18, 3, v21\nv_add_u32 v21, v21, v19")
    A(f"v_add_u32 v{pWo[0]}, v21, v3\nv_xor_b32 v{pWo[1]}, 64, v{pWo[0]}")


def kv_offsets(A, dk, dv):
    A("v_lshrrev_b32 v1, 3, v0\nv_and_b32 v1, 3, v1\nv_and_b32 v2, 7, v0\nv_lshrrev_b32 v16, 5, v0\nv_lshlrev_b32 v16, 7, v16\nv_lshl_add_u32 v16, v1, 8, v16")
    A(f"v_lshrrev_b32 v1, 1, v1\nv_xor_b32 v17, v1, v2\nv_lshl_add_u32 v{dk}, v17, 4, v16")
    A(f"v_lshlrev_b32 v1, 2, v1\nv_xor_b32 v17, v1, v2\nv_lshl_add_u32 v{dv}, v17, 4, v16")


def finish_unit(cfg, A, tag, nsrc, acc, w_sreg, t_sreg, publish, G=32):
    A("v_and_b32 v1, 7, v0\nv_lshlrev_b32 v1, 2, v1\nv_lshlrev_b32 v6, 4, v0")
    A(f"buffer_load_dword v2, v1, {srd(SWS)}, s{sFLG} offen sc1")
    A(f"s_mul_i32 s56, s{sPAIR}, 884736\ns_mul_i32 s57, s{t_sreg}, 3\ns_add_u32 s57, s57, s{w_sreg}\ns_lshl_b32 s57, s57, 15\ns_add_u32 s56, s56, s57")
    A(f"s_mul_i32 s60, s{sB}, 96\ns_lshl_b32 s58, s{w_sreg}, 5\ns_add_u32 s60, s60, s58\ns_mul_i32 s60, s60, 2304\ns_lshl_b32 s58, s{t_sreg}, 7\ns_add_u32 s60, s60, s58")
    A("s_and_b32 s58, s2, 4\ns_mul_i32 s58, s58, 288\ns_add_u32 s60, s60, s58")
    A("v_and_b32 v7, 31, v0\nv_mul_u32_u24 v7, 2304, v7\nv_lshrrev_b32 v3, 5, v0\nv_lshl_add_u32 v7, v3, 5, v7")
    A(f"s_mov_b32 s62, {((1 << nsrc) - 1) << 1}\ns_mov_b32 s58, 0\ns_mov_b32 s64, 1")
    if nsrc == 8:
        for k in range(32):
            A(f"v_mov_b32 v{acc + k}, 0")
    if cfg.mred:
        A("v_and_b32 v4, 31, v0\nv_lshrrev_b32 v5, 5, v0\nv_lshlrev_b32 v5, 2, v5\nv_sub_u32 v4, v4, v5\nv_mov_b32 v8, 0x3f80\nv_mov_b32 v9, 0x3f800000")
        for u in range(2):
            for i in range(4):
                m0 = 16 * u + 8 * (i >> 1) + 2 * (i & 1)
                A(f"v_cmp_eq_u32 vcc, {m0}, v4\nv_cndmask_b32 v5, 0, v8, vcc\nv_cmp_eq_u32 vcc, {m0 + 1}, v4\nv_cndmask_b32 v{24 + 4 * u + i}, v5, v9, vcc")
    if publish:
        A(f"v_add_u32 v3, 1, v{vFL}\nv_cmp_eq_u32 vcc, s{sCU}, v0\ns_waitcnt vmcnt(0)\ns_and_saveexec_b64 s[66:67], vcc")
        A(f"buffer_store_dword v3, v1, {srd(SWS)}, s{sFLG} offen sc1\ns_mov_b64 exec, s[66:67]\ns_branch L_chk{tag}")
    A(f"L_poll{tag}:\ns_waitcnt vmcnt(0)\nL_chk{tag}:\nv_cmp_ne_u32 vcc, v2, v{vFL}")
    A(f"s_and_b32 s63, vcc_lo, 0xffff\ns_lshr_b32 s63, s63, s{sCU}\ns_and_b32 s63, s63, s62\ns_cbranch_scc1 L_some{tag}")
    A(f"s_add_u32 s58, s58, 1\ns_cmp_gt_u32 s58, 0x100000\ns_cbranch_scc1 L_out{tag}\ns_sleep {cfg.psleep}")
    A(f"buffer_load_dword v2, v1, {srd(SWS)}, s{sFLG} offen sc1\ns_branch L_poll{tag}\nL_some{tag}:")

    def loads(i):
        A(f"s_add_u32 s57, s{sCU}, {i}\ns_and_b32 s57, s57, 7\ns_lshl_b32 s57, s57, 12\ns_add_u32 s57, s57, s56")
        for p in range(4):
            A(f"buffer_load_dwordx4 {R('v', G + 16 * (i - 1) + 4 * p, 4)}, v6, {srd(SWS)}, s57 offen offset:{1024 * p}{cfg.gf}")

    def adds(i):
        if cfg.mred:
            for p in range(4):
                d = R("v", acc + 16 * (p >> 1), 16)
                A(f"{MF} {d}, {R('v', 24 + 4 * (p & 1), 4)}, {R('v', G + 16 * (i - 1) + 4 * p, 4)}, {d}")
            return
        for k in range(16):
            r = G + 16 * (i - 1) + k
            A(f"v_lshlrev_b32 v4, 16, v{r}\nv_and_b32 v5, 0xffff0000, v{r}")
            A(f"v_add_f32 v{acc + 2 * k}, v{acc + 2 * k}, v4\nv_add_f32 v{acc + 2 * k + 1}, v{acc + 2 * k + 1}, v5")
    A(f"s_cmp_lg_u32 s63, {((1 << nsrc) - 1) << 1}\ns_cbranch_scc1 L_part{tag}")
    for i in range(1, nsrc + 1):
        loads(i)
    for i in range(1, nsrc + 1):
        A(f"s_waitcnt vmcnt({4 * (nsrc - i)})")
        adds(i)
    A(f"L_out{tag}:")
    if cfg.mred:
        A("s_nop 15")
    for p in range(4):
        for k in range(4):
            A(f"v_cvt_pk_bf16_f32 v{8 + 4 * p + k}, v{acc + 8 * p + 2 * k}, v{acc + 8 * p + 2 * k + 1}")
        A(f"buffer_store_dwordx4 {R('v', 8 + 4 * p, 4)}, v7, {srd(SOUT)}, s60 offen offset:{64 * (p >> 1) + 16 * (p & 1)}{cfg.of}")
    if cfg.stamp and publish:
        A("s_waitcnt vmcnt(0)")
        stamp(cfg, A, 5, 0)
    A(f"s_endpgm\nL_warm_part{tag}:\ns_setpc_b64 s[40:41]\nL_part{tag}:")
    for i in range(1, nsrc + 1):
        A(f"s_bitcmp1_b32 s63, {i}\ns_cbranch_scc0 L_nl{tag}{i}")
        loads(i)
        A(f"L_nl{tag}{i}:")
    A(f"buffer_load_dword v2, v1, {srd(SWS)}, s{sFLG} offen sc1\ns_andn2_b32 s62, s62, s63\ns_waitcnt vmcnt(1)")
    for i in range(1, nsrc + 1):
        A(f"s_cmp_lg_u32 s64, {i}\ns_cbranch_scc1 L_na{tag}{i}\ns_bitcmp1_b32 s62, {i}\ns_cbranch_scc1 L_poll{tag}")
        adds(i)
        A(f"s_mov_b32 s64, {i + 1}\nL_na{tag}{i}:")
    A(f"s_branch L_out{tag}")


vK, vV, vWq, vWo, vX = 24, 28, 32, 36, 176
W3A = 40
W3B = 52
W3X = 76
W3ACC = 160
vTQ, vTO, vTX, vDUM = 12, 13, 14, 15
pQ3 = 22


def xreg(ks, j):
    i = ks * 3 + j
    return R("a", 4 * i, 4) if i < 64 else R("v", W3X + 4 * (i - 64), 4)


def wave3(cfg, pl):
    addr = pl.addr
    sc = Sched(cfg)
    A = sc.out
    A("L_loader:")
    if cfg.prof:
        A("s_mov_b32 s96, 0\ns_mov_b32 s97, 0\ns_mov_b32 s98, 0\ns_mov_b32 s99, 0")
    lane_patterns(A, False)
    A(f"v_lshlrev_b32 v{pQ3}, 4, v0")
    for p in pK + pWq + [pQ3]:
        sc.bias[p] = 0
    A("v_lshrrev_b32 v1, 3, v0\nv_and_b32 v2, 7, v0\nv_lshrrev_b32 v3, 4, v0")
    A("v_and_b32 v16, 1, v3\nv_lshlrev_b32 v16, 2, v16\nv_xor_b32 v16, v16, v2\nv_lshlrev_b32 v16, 4, v16")
    A("v_lshlrev_b32 v18, 8, v1\nv_lshlrev_b32 v19, 13, v1\nv_mul_u32_u24 v20, 1152, v1")
    for g in range(4):
        A(f"v_add_u32 v17, {4 * g}, v3\nv_and_b32 v17, 7, v17\nv_xor_b32 v17, v17, v2\nv_lshlrev_b32 v17, 4, v17")
        A(f"v_add_u32 v17, {g * (9216 - 1024)}, v17\nv_add_u32 v{vX + g}, v17, v20")
        A(f"v_add_u32 v17, {g * (65536 - 1024)}, v16\nv_add_u32 v{vWq + g}, v17, v19")
        A(f"v_add_u32 v17, {g * (9216 - 1024)}, v16\nv_add_u32 v{vWo + g}, v17, v20")
    kv_offsets(A, vK, vV)
    for g in range(1, 4):
        A(f"v_xor_b32 v{vK + g}, {32 * g}, v{vK}\nv_mov_b32 v{vV + g}, v{vV}")
    nsh = {"16x8": 16, "8x16": 8, "4x32": 4}[cfg.mapping]
    xsh = 32 // nsh
    rows = 576 // nsh
    A(f"s_and_b32 s56, s{sB}, {nsh - 1}\nv_mov_b32 v21, 0x7fffff00\nv_cmp_gt_u32 vcc, 36, v0")
    A(f"v_lshrrev_b32 v{vTQ}, 1, v0\nv_lshlrev_b32 v{vTQ}, 13, v{vTQ}\nv_and_b32 v17, 1, v0\nv_lshlrev_b32 v17, 7, v17\nv_add_u32 v{vTQ}, v{vTQ}, v17")
    A(f"s_mul_i32 s57, s56, {rows * 8192}\nv_add_u32 v{vTQ}, s57, v{vTQ}\nv_cndmask_b32 v{vTQ}, v21, v{vTQ}, vcc")
    A(f"v_lshlrev_b32 v{vTO}, 7, v0\ns_mul_i32 s57, s56, {rows * 256}\nv_add_u32 v{vTO}, s57, v{vTO}\nv_cndmask_b32 v{vTO}, v21, v{vTO}, vcc")
    A(f"v_cmp_gt_u32 vcc, 54, v0\nv_lshlrev_b32 v{vTX}, 7, v0\ns_and_b32 s57, s{sCU}, {xsh - 1}\ns_mul_i32 s57, s57, {110592 // xsh}\nv_add_u32 v{vTX}, s57, v{vTX}")
    A(f"v_cndmask_b32 v{vTX}, v21, v{vTX}, vcc")

    def touch_ops(vreg, srd_, base, add, step, nl=rows * 2, per=36):
        l = []
        if not cfg.pf:
            return l
        for i in range(nl // per):
            l.append(f"s_add_u32 s{sTMP}, s{base}, {i * per * step + add}")
            for fl in ((" nt", "") if cfg.dbl else ("",)):
                l.append(("vm", f"buffer_load_dword v{vDUM}, v{vreg}, {srd(srd_)}, s{sTMP} offen{fl}"))
        return l

    def quad_ops(q, w=False):
        k = q[0]
        pre = []
        if k == "k":
            off, base, v, sr, fl = q[1] * 8192 + q[2] * 4096, sKV, vK, SK, cfg.kvf
        elif k == "v":
            off, base, v, sr, fl = q[1] * 8192 + q[2] * 4096, sKV, vV, SV, cfg.kvf
        elif k == "wq":
            off, base, v, sr, fl = (q[1] * 64 + q[2] * 32) * 8192 + q[3] * 128, sWQo, vWq, SWQ, cfg.wf
        elif k == "wq3":
            off, base, v, sr, fl = (q[2] * 64 + q[3] * 32) * 8192 + q[1] * 128 + 256, sWQo, vWq, (SWQ2 if w else SWQ), cfg.wf
        elif k == "x":
            off, base, v, sr, fl = q[2] * 32 * 1152 + q[1] * 128, sXo, vX, SX, cfg.xf
        else:
            pre = [f"s_add_u32 s{sTMP}, s{sWOo}, s{sTC + q[1]}"]
            off, base, v, sr, fl = q[2] * 32 * 1152, sTMP, vWo, SWO, cfg.wf
        l = pre + [f"s_mov_b32 m0, {addr[q]}", f"s_add_u32 s{sTMP}, s{base}, {off}"]
        for g in range(4):
            if not cfg.noload:
                l.append(("vm", f"buffer_load_dwordx4 v{v + g}, {srd(sr)}, s{sTMP} offen offset:{g * 1024}{fl} lds", q, g))
        return l

    lin = []

    def put(sc_, o, gen=0):
        if isinstance(o, tuple):
            sc_.out(o[1])
            lin.append((o[2] if len(o) > 2 else None, gen))
        elif callable(o):
            o(sc_)
        else:
            sc_.out(o)

    def wait_for(sc_, quads, gen):
        if cfg.noload:
            return
        last = max(k for k, e in enumerate(lin) if e[0] in quads and e[1] == gen)
        sc_.out(f"s_waitcnt vmcnt({min(63, len(lin) - 1 - last)})")

    def bar(sc_):
        if not cfg.nobar:
            sc_.out("s_barrier")

    descriptors(A)
    if stamp(cfg, A, 15, 1):
        lin.append((None, 0))
    if cfg.delay:
        A(f"s_and_b32 s56, s{sB}, 1\ns_cmp_eq_u32 s56, 0\ns_cbranch_scc1 L_nodelay")
        for _ in range(cfg.delay):
            A("s_sleep 32")
        A("L_nodelay:")
    for n_, q in enumerate(pl.sissue[-1]):
        for o in quad_ops(q):
            put(sc, o)
        if n_ == 6:
            sample_flags(A)
            lin.append((("flag",), 0))
    bias0 = {p: XRES for p in pK}
    bias0.update({p: WRB for p in pWq})
    bias0[pQ3] = QBUF
    ops = w3_ops(cfg)
    quads = w3_quads()
    ns = len(pl.grp)

    def conv_tile(p, hb, j):
        acc = W3ACC + 16 * (3 * hb + j)
        l = []
        for s in range(2):
            pk = W3B + 8 + 4 * s
            for k in range(4):
                t0 = W3B + 2 * (k & 1)
                r = acc + 8 * s + 2 * k
                l += [f"v_mul_f32 v{t0}, s{sC}, v{r}", f"v_mul_f32 v{t0 + 1}, s{sC}, v{r + 1}", f"v_cvt_pk_bf16_f32 v{pk + k}, v{t0}, v{t0 + 1}"]
            l.append(lambda sc_, pk=pk, a=QBUF + (j * 4 + hb * 2 + s) * 1024: sc_.lds("ds_write_b128", R("v", pk, 4), pQ3, a))
        return l

    def period(last, pro):
        nonlocal lin
        sc2 = Sched(cfg)
        sc2.bias = dict(bias0)
        B = sc2.out
        lin = [(q, 0) for q in pro for g in range(4)] if not cfg.noload else []
        myops = [] if last else copy.deepcopy(ops)
        n = len(myops)
        fill = {}
        bpos = {s: (sum(cfg.quota[:s]) if not last else 0) for s in range(ns + 1)}
        enq = {}
        if not last:
            lastidx = {(o["p"], o["hb"], o["j"]): i for i, o in enumerate(ops) if o["last"]}
            for p, hb in ((0, 0), (1, 0), (0, 1)):
                i0 = lastidx[(p, hb, 2)]
                spread(fill, sum((conv_tile(p, hb, j) for j in range(3)), []), i0 + 4, i0 + 12)
            assert lastidx[(0, 1, 2)] + 16 <= bpos[18] and lastidx[(1, 0, 2)] + 4 >= bpos[19]
            firstop = {q: min(i for i, o in enumerate(ops) if o["q"] == q) for q in quads}
            lastop = {q: max(i for i, o in enumerate(ops) if o["q"] == q) - 2 for q in quads}
            seg = lambda i: max(s for s in range(ns) if bpos[s] <= i)
            at = 0
            for k in range(36, 72):
                prev = max(j for j in range(k) if addr[quads[j % 36]] == addr[quads[k % 36]])
                free = lastop[quads[prev % 36]] + 1 + (prev // 36 - 1) * n
                sneed = seg(firstop[quads[k % 36]]) - cfg.raq
                early = bpos[sneed] if sneed >= 0 else bpos[sneed + ns] - n
                at = max(free, early) if k == 36 else max(at, free, early)
                assert at <= firstop[quads[k % 36]] - 5
                enq.setdefault(at % n if at < 0 else at, []).append((quads[k % 36], at < 0))
        st = dict(wrapq=False, wrapg=False, rdA=0, rdB=0, abuf=0, bbuf=0, step=-1)
        queue = []

        def drain(nvm):
            while queue and nvm > 0:
                o, g = queue.pop(0)
                put(sc2, o, g)
                nvm -= isinstance(o, tuple)

        def open_step(s):
            if cfg.trace is True:
                B(f"s_memtime s[60:61]\ns_waitcnt lgkmcnt(0)\nv_writelane_b32 v2, s60, {s}")
            wait_for(sc2, {pl.grp[s][3]}, 0)
            if cfg.trace is True:
                B(f"s_memtime s[60:61]\ns_waitcnt lgkmcnt(0)\nv_writelane_b32 v2, s60, {32 + s}")
            if s in (0, 16):
                if stamp(cfg, B, {0: 1, 16: 2}[s], 1):
                    lin.append((None, 0))
            if last and s == 16:
                B("v_readfirstlane_b32 s57, v17\ns_mov_b32 s58, 0\nL_chk:\ns_cmp_ge_u32 s57, 8\ns_cbranch_scc1 L_chkend")
                B(f"buffer_load_dword v17, v16, {srd(SDB)}, 0 offen sc1\ns_add_u32 s58, s58, 1\ns_waitcnt vmcnt(0)\nv_readfirstlane_b32 s57, v17")
                B("s_cmp_lt_u32 s58, 0x80000\ns_cbranch_scc1 L_chk\nL_chkend:")
            bar(sc2)
            for g, w in pl.req[s]:
                if w and not st["wrapg"]:
                    st["wrapg"] = True
                    queue.append((f"s_add_u32 s{sKV}, s{sKV}, 0x20000", 0))
                assert g >= 16 or w == st["wrapg"]
                if not (last and w):
                    queue.extend((o, int(w)) for o in quad_ops(pl.grp[g][3]))
            if last and s == 2:
                queue.extend([(f"s_lshl_b32 s56, s{sPAIR}, 2", 0), ("v_mov_b32 v16, s56", 0), (("vm", f"buffer_load_dword v17, v16, {srd(SDB)}, 0 offen sc1"), 0)])
            if s == cfg.pf_wo_step:
                queue.extend((o, 0) for o in touch_ops(vTO, SWO, sWOo, 0, 128))
            if s == cfg.pf_wq_step and not last:
                queue.append((f"s_cmp_eq_u32 s{sIT}, 2\ns_cselect_b32 s{SWQ2 + 2}, 0, s{SWQ2 + 2}", 0))
                queue.extend((o, 0) for o in touch_ops(vTQ, SWQ2, sWQo, 512, 4096))
            if cfg.warm and s == 9:
                queue.append(("s_call_b64 s[40:41], L_warm_partc" if last else "s_call_b64 s[40:41], L_warm_more", 0))
            if bpos[s + 1] == bpos[s]:
                drain(99)
            st["step"] = s

        for i in range(n):
            while st["step"] + 1 < ns and bpos[st["step"] + 1] <= i:
                open_step(st["step"] + 1)
            for q, w in enq.get(i, []):
                if w and not st["wrapq"]:
                    st["wrapq"] = True
                    queue.append((f"s_add_u32 s{sWQo}, s{sWQo}, 256", 0))
                assert w == st["wrapq"]
                queue.extend((o, int(w)) for o in quad_ops(q, w))
            while st["rdA"] < n and st["rdA"] <= i + 5:
                o = myops[st["rdA"]]
                if st["rdA"] == firstop[o["q"]] and not cfg.noload:
                    while lin.count((o["q"], 0)) < 4:
                        drain(1)
                    wait_for(sc2, {o["q"]}, 0)
                fb = W3A + 4 * (st["abuf"] % 3)
                st["abuf"] += 1
                qa = addr[o["q"]] + 16 * o["s2"] * 128
                sc2.lds("ds_read_b64_tr_b16", R("v", fb, 2), pWq[o["hb"]], qa)
                sc2.lds("ds_read_b64_tr_b16", R("v", fb + 2, 2), pWq[o["hb"]], qa + 4 * 128)
                for d in range(3):
                    myops[st["rdA"] + d]["areg"] = fb
                st["rdA"] += 3
            while st["rdB"] < n and st["rdB"] <= i + 5:
                o = myops[st["rdB"]]
                if o["ks"] < 28:
                    o["breg"] = xreg(o["ks"], o["j"])
                elif o["hb"] == 0:
                    bb = W3B + 4 * (st["bbuf"] % 6)
                    st["bbuf"] += 1
                    sc2.lds("ds_read_b128", R("v", bb, 4), pK[o["ks"] & 3], XRES + (((o["ks"] >> 2) - 7) * 3 + o["j"]) * 4096)
                    assert myops[st["rdB"] + 3]["ks"] == o["ks"]
                    o["breg"] = myops[st["rdB"] + 3]["breg"] = R("v", bb, 4)
                st["rdB"] += 1
            drain(1)
            for o in fill.get(i, []):
                put(sc2, o)
            o = myops[i]
            d = R("v", W3ACC + 16 * (3 * o["hb"] + o["j"]), 16)
            B(f"{MF} {d}, {R('v', o['areg'], 4)}, {o['breg']}, {'0' if o['first'] else d}")
        drain(99)
        if not last:
            for o in sum((conv_tile(1, 1, j) for j in range(3)), []):
                put(sc2, o)
            B("s_waitcnt lgkmcnt(0)")
            assert st["step"] + 1 < ns
        while st["step"] + 1 < ns:
            open_step(st["step"] + 1)
        tailq = [e[0] for e in lin if e[1] == 1][::4]
        if not last:
            B(f"s_add_u32 s{sWOo}, s{sWOo}, 147456")
            for p, b in bias0.items():
                sc2.rebias(p, b)
            if cfg.trace is True:
                B(f"s_cmp_lg_u32 s{sIT}, {cfg.trace_it}\ns_cbranch_scc1 L_notr3\nv_lshlrev_b32 v1, 2, v0\ns_lshl_b32 s62, s2, 10\ns_add_u32 s62, s62, {STAMP_BASE + 768}")
                B(f"buffer_store_dword v2, v1, {srd(SWS)}, s62 offen\ns_waitcnt vmcnt(0)\nL_notr3:")
            B(f"s_add_u32 s{sIT}, s{sIT}, 1\ns_cmp_lt_u32 s{sIT}, 3\ns_cbranch_scc1 L_w3loop")
        body, pe = lgkm_pass(B.ins)
        assert not pe
        return body, tailq

    lin0 = list(lin)
    _, pro = period(False, [pl.grp[g][3] for g in pl.pro] + quads[:cfg.WR])
    loopbody, pro2 = period(False, pro)
    assert pro2 == pro
    lastp, _ = period(True, pro)
    lin = lin0
    if cfg.noload:
        pro = []
    todo = list(pro)
    for t in range(9):
        wait_for(sc, set(pl.start[t]) | ({("flag",)} if t == 0 else set()), 0)
        A("s_waitcnt lgkmcnt(0)")
        bar(sc)
        if t == 0:
            A(f"s_lshl_b32 s56, s{sPAIR}, 2\nv_mov_b32 v16, s56\nv_mov_b32 v17, 1\ns_mov_b64 exec, 1")
            put(sc, ("vm", f"buffer_atomic_add v17, v16, {srd(SDB)}, 0 offen sc1"))
            A("s_mov_b64 exec, -1")
        if t < 7:
            for s in range(4):
                for j in range(3):
                    sc.lds("ds_read_b128", xreg(4 * t + s, j), pK[s], addr[("x", t, j)])
        if t == cfg.pf_wq0_step:
            for o in touch_ops(vTQ, SWQ, sWQo, 256, 4096):
                put(sc, o)
        for q in pl.sissue[t]:
            for o in quad_ops(q):
                put(sc, o)
        while todo:
            q = todo[0]
            if q[0] == "wq3":
                if pl.slast.get(addr[q], -9) >= t:
                    break
                if any(pl.sissue[b] for b in range(t + 1, 9)):
                    break
            elif not any(pl.grp[g][3] == q for b in range(-1, t + 1) for g in pl.sreq[b]):
                break
            for o in quad_ops(todo.pop(0)):
                put(sc, o)
    assert not todo
    for p, b in bias0.items():
        sc.rebias(p, b)
    A("s_waitcnt lgkmcnt(0)")
    head, pend = lgkm_pass(sc.out.ins)
    loop = [parse("L_w3loop:")] + loopbody
    T = Prog()
    if cfg.prof:
        T(f"v_mov_b32 v16, s96\nv_mov_b32 v17, s97\nv_mov_b32 v18, s98\nv_mov_b32 v19, s99\nv_mov_b32 v20, 0\ns_lshl_b32 s62, s2, 10\ns_add_u32 s62, s62, {STAMP_BASE + 512 + 64}")
        T(f"buffer_store_dwordx4 v[16:19], v20, {srd(SWS)}, s62 offen")
    T(f"s_cmp_ge_u32 s{sCU}, 3\ns_cbranch_scc1 L_done")
    T("s_mov_b32 s61, 8")
    finish_unit(cfg, T, "w3", 8, 192, sCU, 61, False)
    allins, nn = hazard_pass(head + loop + lastp + T.ins, verbose=cfg.dbg == "nops3")
    return allins, dict(w3nops=nn, w3est=est_cycles(loop))


def acc_out(nb):
    return R("a", 16 * nb, 16) if nb < 16 else R("v", OUTV + 16 * (nb - 16), 16)


def q_ops(addr):
    ops = []
    XB = S0
    for t in range(9):
        order = [(s, b) for s in range(4) for b in range(4)] if t < 8 else [(s, b) for b in range(4) for s in range(4)]
        seen = set()
        for (s, b) in order:
            qa = addr[("wq", t, s >> 1, b >> 1)] + (16 * (s & 1)) * 128
            xb = XB + 4 * ((t * 4 + s) % 8)
            o = dict(step=t, a=[("tr", pWq[b & 1], qa), ("tr", pWq[b & 1], qa + 4 * 128)], b=R("v", xb, 4), d=R("v", O0 + 16 * b, 16))
            o["c"] = "0" if (t == 0 and s == 0) else o["d"]
            if s not in seen:
                seen.add(s)
                o["x"] = (xb, pK[s], addr[("x", t, 0)])
            ops.append(o)
    return ops


def item_ops(addr):
    ops = []

    def qk(u, step):
        for ds in range(8):
            d = R("v", S0 + 16 * (u & 1) if u else O0, 16)
            c = d if ds else ("0" if u < 2 else R("v", NEGM, 16))
            ops.append(dict(step=step, a=[("b128", pK[ds & 3], addr[("k", u, 0)] + (ds >> 2) * 512)], b=R("v", Q0 + 4 * ds, 4), d=d, c=c))

    def pv(u, step, bmajor=False):
        order = [(s, b) for s in range(2) for b in range(4)] if not bmajor else [(s, b) for b in range(4) for s in range(2)]
        for (s, b) in order:
            va = addr[("v", u, s)] + (b >> 1) * 512
            d = R("v", O0 + 16 * b, 16)
            ops.append(dict(step=step, a=[("tr", pV[b & 1], va), ("tr", pV[b & 1], va + 2048)],
                            b=R("v", P0 + 8 * (u & 1) + 4 * s, 4), d=d, c="0" if (u == 0 and s == 0) else d))
    qk(0, 0)
    qk(1, 0)
    for u in range(1, 15):
        qk(u + 1, u)
        pv(u - 1, u)
    pv(14, 15)
    pv(15, 15, True)
    for t in range(9):
        for b in range(4):
            for s in range(2):
                for half in range(2):
                    wa = addr[("wo", t, b)] + 16 * s * 128
                    d = acc_out(2 * t + half)
                    ops.append(dict(step=16 + t, a=[("tr", pWo[half], wa), ("tr", pWo[half], wa + 8 * 128)],
                                    b=R("v", OF + 8 * b + 4 * s, 4), d=d, c=d, alt=(b == 0 and s == 0)))
    assert len(ops) == 400
    return ops


def softmax_ops(u, first=False):
    S, P = S0 + 16 * (u & 1), P0 + 8 * (u & 1)
    if first:
        S = O0
    l = []
    for k in range(8):
        a, b = vT[2 * (k & 1)], vT[2 * (k & 1) + 1]
        pa, pb = vT[2 * ((k - 1) & 1)], vT[2 * ((k - 1) & 1) + 1]
        l.append(f"v_exp_f32 v{a}, v{S + 2 * k}")
        if k == 1:
            l.append(f"v_add_f32 v{vBS}, v{pa}, v{pb}")
        elif k > 1:
            l.append(f"v_add_f32 v{vBS}, v{vBS}, v{pa}")
        l.append(f"v_exp_f32 v{b}, v{S + 2 * k + 1}")
        if k > 1:
            l.append(f"v_add_f32 v{vBS}, v{vBS}, v{pb}")
        if k >= 1:
            l.append(f"v_cvt_pk_bf16_f32 v{P + k - 1}, v{pa}, v{pb}")
    a, b = vT[2], vT[3]
    l.append(f"v_add_f32 v{vBS}, v{vBS}, v{a}")
    l.append(f"v_cvt_pk_bf16_f32 v{P + 7}, v{a}, v{b}")
    l.append(f"v_add_f32 v{vBS}, v{vBS}, v{b}")
    return l


def conv_block(b, scale, dst):
    l = []
    for k in range(8):
        r = O0 + 16 * b + 2 * k
        l.append(f"v_mul_f32 v{r}, {scale}, v{r}")
        l.append(f"v_mul_f32 v{r + 1}, {scale}, v{r + 1}")
        if k:
            l.append(f"v_cvt_pk_bf16_f32 v{dst + 8 * b + k - 1}, v{r - 2}, v{r - 1}")
    l.append(f"v_cvt_pk_bf16_f32 v{dst + 8 * b + 7}, v{O0 + 16 * b + 14}, v{O0 + 16 * b + 15}")
    return l


def rowmax(S):
    l = [f"v_max3_f32 v{vM}, v{S}, v{S + 1}, v{S + 2}"]
    for k in range(6):
        l.append(f"v_max3_f32 v{vM}, v{vM}, v{S + 3 + 2 * k}, v{S + 4 + 2 * k}")
    l.append(f"v_max_f32 v{vM}, v{vM}, v{S + 15}")
    l.append(f"v_mov_b32 v{vM2}, v{vM}")
    l.append(f"v_permlane32_swap_b32 v{vM}, v{vM2}")
    l.append(f"v_max_f32 v{vM}, v{vM}, v{vM2}")
    return l


def with_subs(S, sm):
    sub = [f"v_sub_f32 v{S + i}, v{S + i}, v{vM}" for i in range(16)]
    l, k = sub[:4], 4
    for o in sm:
        l.append(o)
        if o.startswith("v_exp") and k < 16:
            l.append(sub[k])
            k += 1
    return l


def item_fill(cfg, ops, fill):
    post = {}
    chk = [f"v_cmp_lt_f32 vcc, s{sTHR}, v{vBS}"]
    spread(fill, rowmax(O0) + [f"v_sub_f32 v{NEGM + i}, 0, v{vM}" for i in range(16)], 11, 15)
    spread(fill, with_subs(O0, softmax_ops(0, True)) + [f"v_mov_b32 v{vL}, v{vBS}"], 16, 23)
    spread(fill, with_subs(S0 + 16, softmax_ops(1)) + chk, 24, 31)
    post[31] = 1
    for u in range(2, 15):
        su = 16 * u
        spread_bal(cfg, ops, fill, softmax_ops(u) + chk, su, su + 15)
        post[su + 15] = u
    spread(fill, softmax_ops(15) + chk, 240, 247)
    post[247] = 15
    spread(fill, [f"v_mov_b32 v{vM2}, v{vL}", f"v_permlane32_swap_b32 v{vL}, v{vM2}", f"v_add_f32 v{vL}, v{vL}, v{vM2}",
                  f"v_rcp_f32 v{vM}, v{vL}"], 249, 252)
    spread(fill, conv_block(0, f"v{vM}", OF), 253, 255)
    spread(fill, conv_block(1, f"v{vM}", OF), 256, 259)
    spread(fill, conv_block(2, f"v{vM}", OF), 260, 263)
    spread(fill, conv_block(3, f"v{vM}", OF), 264, 267)
    return post


def store_block(cfg, nb, tmp, pk):
    l = []
    if not nb & 1:
        l += [f"s_mul_i32 s56, s{sTC + (nb >> 1)}, 768", f"s_add_u32 s56, s56, s{sWSo}"]
    for u in range(2):
        for k in range(8):
            l.append(f"v_accvgpr_read_b32 v{tmp + 8 * u + k}, a{16 * nb + 8 * u + k}")
        for k in range(4):
            i = 8 * u + 2 * k
            l.append(f"v_cvt_pk_bf16_f32 v{pk + 4 * u + k}, v{tmp + i}, v{tmp + i + 1}")
        l.append(f"buffer_store_dwordx4 {R('v', pk + 4 * u, 4)}, v{vST}, {srd(SWS)}, s56 offen offset:{((nb & 1) * 2 + u) * 1024}{cfg.pstf}")
    return l


VMCOST = 4


def emit_slots(cfg, sc, ops, fill, post, lo, hi, st, stubs, stamps={}, nextops=None):
    LA = cfg.LA
    first = {}
    if nextops:
        ops = ops + [dict(o, step=ops[-1]["step"] + 1) for o in nextops]
    for i, o in enumerate(ops):
        first.setdefault(o["step"], i)
    for i in range(lo, hi):
        nx = st["step"] + 1
        if nextops and nx == ops[-1]["step"] and i >= first[nx] - cfg.LB:
            st["tag"], st["alias"] = "n", 0
            for p, b in st["rebias"].items():
                sc.rebias(p, b)
        if nx in first and i >= first[nx] - (cfg.LB if nx else LA):
            if nx in stamps and stamp(cfg, sc.out, stamps[nx], 0):
                st["lin"].append(None)
            w = "lgkmcnt(0)"
            key = (st["tag"], st.get("alias", nx))
            if key in st["lin"]:
                last = max(k for k, e in enumerate(st["lin"]) if e == key)
                w = f"vmcnt({len(st['lin']) - 1 - last}) " + w
            if cfg.trace == "head" and len(ops) in (144, 432):
                sc.out(f"s_memrealtime s[60:61]\ns_waitcnt lgkmcnt(0)\nv_writelane_b32 v{NEGM + 1}, s60, {nx}")
            if cfg.trace is True and len(ops) in (400, 400 + cfg.LA) and 0 < nx < 25:
                sc.out("s_memtime s[60:61]\ns_waitcnt lgkmcnt(0)")
                sc.out(f"v_writelane_b32 v2, s60, {nx}")
            if cfg.trace == "head2" and len(ops) == 432:
                sc.out(f"s_memtime s[60:61]\ns_waitcnt lgkmcnt(0)\nv_writelane_b32 v{NEGM + 1}, s60, {nx}")
            sc.out("s_waitcnt " + w)
            if cfg.trace == "head2" and len(ops) == 432:
                sc.out(f"s_memtime s[60:61]\ns_waitcnt lgkmcnt(0)\nv_writelane_b32 v{NEGM + 1}, s60, {32 + nx}")
            if cfg.trace is True and len(ops) in (400, 400 + cfg.LA) and 0 < nx < 25:
                sc.out("s_memtime s[60:61]\ns_waitcnt lgkmcnt(0)")
                sc.out(f"v_writelane_b32 v2, s60, {32 + nx}")
            if not cfg.nobar:
                sc.out("s_barrier")
            st["step"] = nx
        while st["rd"] < min(i + LA + 1, len(ops)) and ops[st["rd"]]["step"] <= st["step"]:
            o = ops[st["rd"]]
            if "x" in o:
                sc.lds("ds_read_b128", R("v", o["x"][0], 4), o["x"][1], o["x"][2])
            fb = sc.fbuf()
            o["areg"] = fb
            if o["a"][0][0] == "b128":
                sc.lds("ds_read_b128", R("v", fb, 4), o["a"][0][1], o["a"][0][2])
            else:
                sc.lds("ds_read_b64_tr_b16", R("v", fb, 2), o["a"][0][1], o["a"][0][2])
                sc.lds("ds_read_b64_tr_b16", R("v", fb + 2, 2), o["a"][1][1], o["a"][1][2])
            st["rd"] += 1
        for f in fill.get(i, []):
            if callable(f):
                f(sc)
            elif isinstance(f, tuple):
                sc.out(f[0])
                st["lin"].append(f[1])
            else:
                sc.out(f)
                if f.startswith("buffer_"):
                    st["lin"].append(None)
        if i < 0:
            continue
        o = ops[i]
        m = parse(f"{MF} {o['d']}, {R('v', o['areg'], 4)}, {o['b']}, {o['c']}")
        if i % cfg.waitgrp == 0:
            for d in range(1, cfg.waitgrp):
                if i + d < st["rd"]:
                    m.rd = set(m.rd) | {("v", ops[i + d]["areg"] + k) for k in range(4)}
        if o.get("alt") and st.get("alts") is not None:
            c = parse(f"s_cmp_eq_u32 s{sIT}, 0")
            c.rd = set(c.rd) | {r for r in m.rd if r[0] == "v"}
            n_ = len(st["alts"])
            sc.out.ins.append(c)
            sc.out(f"s_cbranch_scc1 L_alt{n_}")
            sc.out.ins.append(m)
            sc.out(f"s_branch L_altb{n_}\nL_alt{n_}:")
            z = parse(f"{MF} {o['d']}, {R('v', o['areg'], 4)}, {o['b']}, 0")
            z.kind = "altmfma"
            sc.out.ins.append(z)
            sc.out(f"L_altb{n_}:")
            st["alts"].append(n_)
            continue
        sc.out.ins.append(m)
        if i in post:
            u = post[i]
            tag = f"{u}_{len(stubs)}"
            sc.out(f"s_cbranch_vccnz L_stub_{tag}\nL_back_{tag}:")
            sc.out(f"v_add_f32 v{vL}, v{vL}, v{vBS}")
            stubs.append((tag, u & 1))


def group_request(cfg, pl, fill, slot, g, tag, kind, sp=1):
    l = []
    want = "k" if g == 0 else "m" if g < 15 else "v" if g == 15 else "w"
    if want != kind:
        l += {"k": [f"v_xor_b32 v{vD + k}, {32 * k}, v{bK}" for k in range(4)],
              "m": [f"v_mov_b32 v{vD}, v{bM}", f"v_xor_b32 v{vD + 1}, s{sXM}, v{bM}", f"v_xor_b32 v{vD + 2}, s{sXM2}, v{bM}", f"v_xor_b32 v{vD + 3}, s{sXM2}, v{vD + 1}"],
              "v": [f"v_mov_b32 v{vD + k}, v{bV}" for k in range(4)],
              "w": [f"v_add_u32 v{vD + k}, {8192 * k}, v{bWo}" for k in range(4)]}[want]
    so, sr, fl = {"k": (f"s_add_u32 s{sTMP}, s{sB0}, 0", SK, cfg.kvf), "m": (f"s_add_u32 s{sTMP}, s{sMB}, {g * 8192}", SM, cfg.kvf),
                  "v": (f"s_add_u32 s{sTMP}, s{sB0}, {14 * 8192}", SV, cfg.kvf),
                  "w": (f"s_add_u32 s{sTMP}, s{sWB}, s{sTC + max(g - 16, 0)}", SWO, cfg.wf)}[want]
    l += [f"s_add_u32 m0, s{sT4K}, {pl.addr[pl.grp[g][0]]}", so]
    fill.setdefault(slot, []).extend(l)
    for k in range(4):
        if not cfg.noload:
            fill.setdefault(slot + k * sp, []).append((f"buffer_load_dwordx4 v{vD + k}, {srd(sr)}, s{sTMP} offen offset:{k * 1024}{fl} lds", (tag, g)))
    if g == 24:
        fill.setdefault(slot + 3 * sp, []).append(f"s_add_u32 s{sWB}, s{sWB}, 147456")
    return want


def rare_routine(p):
    A = Prog()
    S, Sn = S0 + 16 * p, S0 + 16 * (1 - p)
    A(f"L_rare{p}:\ns_nop 15\ns_nop 15")
    A("\n".join(rowmax(S)))
    A(f"v_max_f32 v{vM}, 0, v{vM}")
    for i in range(16):
        A(f"v_sub_f32 v{NEGM + i}, v{NEGM + i}, v{vM}\nv_sub_f32 v{S + i}, v{S + i}, v{vM}\nv_sub_f32 v{Sn + i}, v{Sn + i}, v{vM}")
    A(f"v_sub_f32 v{vM2}, 0, v{vM}\nv_exp_f32 v{vM2}, v{vM2}\ns_nop 0\nv_mul_f32 v{vL}, v{vL}, v{vM2}")
    for i in range(64):
        A(f"v_mul_f32 v{O0 + i}, v{O0 + i}, v{vM2}")
    A("\n".join(softmax_ops(p)))
    A("s_nop 3\ns_setpc_b64 s[40:41]")
    ins, _ = hazard_pass(A.ins)
    return ins


def compute(cfg, pl):
    addr = pl.addr
    sc = Sched(cfg)
    A = sc.out
    A(f"s_lshl_b32 s{sT4K}, s{sW}, 12\ns_mov_b32 s{sTHR}, {hex(f2u(cfg.thr))}")
    nsh = {"16x8": 16, "8x16": 8, "4x32": 4}[cfg.mapping]
    xr = 96 // (32 // nsh)
    A(f"v_mov_b32 v21, 0x7fffff00\ns_and_b32 s56, s{sB}, {nsh - 1}\ns_mul_i32 s56, s56, {(576 // nsh) * 8192}\ns_add_u32 s56, s56, s{sWQo}")
    A("v_lshrrev_b32 v16, 1, v0\nv_lshlrev_b32 v16, 13, v16\nv_and_b32 v17, 1, v0\nv_lshl_add_u32 v16, v17, 7, v16\nv_cmp_gt_u32 vcc, 36, v0")
    A(f"s_and_b32 s57, s{sCU}, {32 // nsh - 1}\ns_mul_i32 s57, s57, {xr * 1152}\ns_add_u32 s57, s57, s{sXo}\nv_cndmask_b32 v16, v21, v16, vcc")
    A(f"v_mul_u32_u24 v17, 1152, v0\nv_cmp_gt_u32 vcc, {xr}, v0\ns_and_b32 s58, s{sW}, 2\ns_lshl_b32 s58, s58, 6\ns_add_u32 s57, s57, s58\nv_cndmask_b32 v17, v21, v17, vcc")
    descriptors(A)
    ntouch = 0
    if cfg.pf:
        A(f"s_cmp_lg_u32 s{sW}, 0\ns_cbranch_scc1 L_tx")
        for i in range(1152 // nsh // 36):
            A(f"buffer_load_dword v{NEGM}, v16, {srd(SWQ)}, s56 offen\ns_add_u32 s56, s56, {18 * 8192}")
        A("s_branch L_tdone\nL_tx:")
        if cfg.pfx:
            for i in range(5):
                A(f"buffer_load_dword v{NEGM}, v17, {srd(SX)}, s57 offen offset:{256 * i}")
        A("L_tdone:")
    sample_flags(A)
    lane_patterns(A, True)
    A(f"v_lshlrev_b32 v{vST}, 4, v0\nv_add_u32 v{pQ}, s{sT4K}, v{vST}")
    A(f"s_mul_i32 s56, s{sPAIR}, 884736\ns_lshl_b32 s57, s{sW}, 15\ns_add_u32 s56, s56, s57\ns_lshl_b32 s57, s{sCU}, 12\ns_add_u32 s{sWSo}, s56, s57")
    A("v_lshrrev_b32 v1, 3, v0\nv_and_b32 v2, 7, v0\nv_lshrrev_b32 v16, 4, v0\nv_lshlrev_b32 v18, 8, v1\nv_mul_u32_u24 v19, 1152, v1")
    A(f"v_and_b32 v17, 1, v16\nv_lshlrev_b32 v17, 2, v17\nv_xor_b32 v17, v17, v2\nv_lshl_add_u32 v{bWo}, v17, 4, v19")
    kv_offsets(A, bK, bV)
    A(f"s_cmp_lt_u32 s{sW}, 2\ns_cselect_b32 s{SM}, s{SK}, s{SV}\ns_cselect_b32 s{SM + 1}, s{SK + 1}, s{SV + 1}\ns_mov_b32 s{SM + 2}, 0x4000000\ns_mov_b32 s{SM + 3}, 0x20000")
    A(f"s_cselect_b32 s{sXM}, 32, 0\ns_cselect_b32 s{sXM2}, 64, 0\ns_cselect_b64 vcc, -1, 0\ns_add_u32 s56, s{sT4K}, 8192\ns_cmp_lt_u32 s{sW}, 2")
    A(f"s_cselect_b32 s56, s56, {(-8192) & 0xffffffff}\ns_add_u32 s{sMB}, s{sKV}, s56\nv_cndmask_b32 v{bM}, v{bV}, v{bK}, vcc")
    A(f"s_add_u32 s{sB0}, s{sKV}, s{sT4K}")
    A(f"s_mul_i32 s56, s{sW}, 36864\ns_add_u32 s{sWB}, s{sWOo}, s56")
    for i in range(256):
        A(f"v_accvgpr_write_b32 a{i}, 0")
    for i in range(32):
        A(f"v_mov_b32 v{OUTV + i}, 0")
    A("s_waitcnt vmcnt(0)")
    for p in pK + pV + pWq + pWo + [pQ]:
        sc.bias[p] = 0
    qops = q_ops(addr)
    qf = {}
    kind = None
    for t in range(-1, 9):
        for n_, g in enumerate(pl.sreq[t]):
            kind = group_request(cfg, pl, qf, (16 * t - cfg.LB if t > 0 else -cfg.LA + 1 if t == 0 else -cfg.LA - 8) + 4 * n_, g, "n", kind)
    kind0 = kind
    spread(qf, conv_block(0, f"s{sC}", Q0), 135, 138)
    spread(qf, conv_block(1, f"s{sC}", Q0), 139, 143)
    emit_slots(cfg, sc, qops, qf, {}, -cfg.LA - 8, 144, dict(rd=0, step=-1, lin=[], tag="c"), [], {0: 0})
    A("\n".join(conv_block(2, f"s{sC}", Q0) + conv_block(3, f"s{sC}", Q0)))
    if cfg.trace == "head":
        A(f"s_memrealtime s[60:61]\ns_waitcnt lgkmcnt(0)\nv_writelane_b32 v{NEGM}, s60, 9\nv_writelane_b32 v{NEGM}, s101, 10")
        A(f"v_lshlrev_b32 v1, 2, v0\ns_lshl_b32 s62, s2, 10\ns_lshl_b32 s63, s{sW}, 8\ns_add_u32 s62, s62, s63\ns_add_u32 s62, s62, {STAMP_BASE}")
        A(f"buffer_store_dword v{NEGM}, v1, {srd(SWS)}, s62 offen\ns_waitcnt vmcnt(0)")
    k_patterns(A, False)
    for p in pK:
        sc.bias[p] = 0
    for p in pV + pWo:
        sc.rebias(p, 0)
    sc.rebias(pQ, QBUF)
    bias0 = dict(sc.bias)
    sc.nbuf = 0
    ops = item_ops(addr)
    st = dict(rd=0, step=-1, lin=[("c", g) for g in pl.pro for k in range(4)] if not cfg.noload else [], tag="c")
    emit_slots(cfg, sc, ops, {}, {}, -cfg.LA, 0, st, [], {0: 1})
    assert st["rd"] == cfg.LA and 400 % cfg.NB == 0
    bias1 = dict(sc.bias)
    head, pend0 = lgkm_pass(sc.out.ins)
    assert len(pend0) == cfg.LA
    head, nh = hazard_pass(head, verbose=cfg.dbg == "nops")
    sc.out = Prog()
    fill = {}
    split = 272
    bslot = lambda s_: 16 * s_ - cfg.LB if s_ else 0
    kind = None
    late = {}
    wrapped = False
    for s_ in range(25):
        for n_, (g, w) in enumerate(pl.req[s_]):
            sp = cfg.gsp if len(pl.req[s_]) == 1 else min(cfg.gsp, 2) if s_ else 1
            if bslot(s_) < split < bslot(s_) + 4 * sp * len(pl.req[s_]):
                sp = 1
            slot = bslot(s_) + 4 * sp * n_
            if w and not wrapped:
                wrapped = True
                if slot < split:
                    fill.setdefault(slot, []).append(f"s_add_u32 s{sB0}, s{sB0}, 0x20000\ns_add_u32 s{sMB}, s{sMB}, 0x20000\ns_cmp_eq_u32 s{sIT}, 3")
                    fill[slot].append(f"s_cselect_b32 s{SK + 2}, 0, s{SK + 2}\ns_cselect_b32 s{SM + 2}, 0, s{SM + 2}")
                else:
                    late.setdefault(slot, []).append(f"s_add_u32 s{sB0}, s{sB0}, 0x20000\ns_add_u32 s{sMB}, s{sMB}, 0x20000")
            assert g >= 16 or w == wrapped
            if w and slot >= split:
                kind = group_request(cfg, pl, late, slot, g, "n", None, sp)
            else:
                kind = group_request(cfg, pl, fill, slot, g, "n" if w else "c", None if slot >= split else kind, sp)
    cyc_kind = kind
    post = item_fill(cfg, ops, fill)
    stubs = []
    sc.out("L_item:")
    st["lin"] = [e for e in st["lin"] if e]
    emit_slots(cfg, sc, ops, fill, post, 0, split, st, stubs, {16: 2})
    sc.out(f"s_cmp_lg_u32 s{sIT}, 3\ns_cbranch_scc1 L_more")
    common, pend = lgkm_pass(sc.out.ins, pend0)
    common, n0 = hazard_pass(common, history=head[-20:], verbose=cfg.dbg == "nops")
    sa = copy.deepcopy(sc)
    sa.out = Prog()
    sa.out("L_warm_more:\ns_setpc_b64 s[40:41]\nL_more:")
    fa = {k: list(v) for k, v in fill.items()}
    for k, v in late.items():
        fa[k] = fa.get(k, []) + v
    for p, r0 in ((0, 288), (1, 381)):
        spread(fa, [(lambda s_, i=i, p=p: s_.lds("ds_read_b128", R("v", Q0 + 16 * p + 4 * i, 4), pQ, QBUF + i * 1024)) for i in range(4)], r0, r0 + 3)
    sta = copy.deepcopy(st)
    sta["rebias"] = bias0
    fa.setdefault(390, []).append(f"s_add_u32 s{sIT}, s{sIT}, 1")
    emit_slots(cfg, sa, copy.deepcopy(ops), fa, {}, split, 400, sta, stubs, {25: 1}, nextops=copy.deepcopy(ops[:cfg.LA]))
    assert cfg.noload or [e for e in sta["lin"] if e and e[0] == "n"] == [("n", g) for g in pl.pro for k in range(4)]
    assert sa.bias == bias1 and sta["rd"] == 400 + cfg.LA
    if cfg.trace is True:
        sa.out(f"s_cmp_lg_u32 s{sIT}, {cfg.trace_it + 1}\ns_cbranch_scc1 L_notr\nv_lshlrev_b32 v1, 2, v0\ns_lshl_b32 s62, s2, 10\ns_lshl_b32 s63, s{sW}, 8\ns_add_u32 s62, s62, s63\ns_add_u32 s62, s62, {STAMP_BASE}")
        sa.out(f"buffer_store_dword v2, v1, {srd(SWS)}, s62 offen\ns_waitcnt vmcnt(0)\nL_notr:")
    sa.out("s_branch L_item")
    conta, pe = lgkm_pass(sa.out.ins, pend)
    assert pe == pend0[len(pend0) - len(pe):]
    conta, n1 = hazard_pass(conta, history=common[-20:])
    sb = copy.deepcopy(sc)
    sb.out = Prog()
    sb.out("L_last:")
    fb = {k: list(v) for k, v in fill.items()}
    for t in range(1, 9):
        s0 = 256 + 16 * t
        spread(fb, store_block(cfg, 2 * t - 2, Q0, P0) + store_block(cfg, 2 * t - 1, Q0 + 16, P0 + 8), s0 + 3, s0 + 15)
    emit_slots(cfg, sb, copy.deepcopy(ops), fb, {}, split, 400, copy.deepcopy(st), stubs)
    T = sb.out
    stamp(cfg, T, 3, 0)
    stamp(cfg, T, 4, 0)
    finish_unit(cfg, T, "c", 7, OUTV, sW, sCU, True)
    contb, _ = lgkm_pass(sb.out.ins, pend)
    contb, n2 = hazard_pass(contb, history=common[-20:], verbose=cfg.dbg == "nops")
    st = Prog()
    for tag, p in stubs:
        st(f"L_stub_{tag}:\ns_call_b64 s[40:41], L_rare{p}\ns_branch L_back_{tag}")
    info = dict(nops=(nh, n0, n1, n2), est_item=est_cycles(common + conta))
    return head + common + contb + conta + st.ins + rare_routine(0) + rare_routine(1), info


def kd(name, vg, acc, sg=102):
    return (f".amdhsa_kernel {name}\n  .amdhsa_next_free_vgpr {vg}\n  .amdhsa_next_free_sgpr {sg}\n  .amdhsa_accum_offset {acc}\n"
            "  .amdhsa_group_segment_fixed_size 0\n  .amdhsa_kernarg_size 104\n  .amdhsa_user_sgpr_count 2\n"
            "  .amdhsa_user_sgpr_kernarg_segment_ptr 1\n  .amdhsa_system_sgpr_workgroup_id_x 1\n.end_amdhsa_kernel\n")


def generate(cfg):
    pl = plan_ring(cfg)
    P = Prog()
    prologue(cfg, P)
    pro, _ = hazard_pass(P.ins)
    comp, info = compute(cfg, pl)
    w3, info3 = wave3(cfg, pl)
    info.update(info3)
    s = HDR + "; @launch grid=(256,1,1) block=(256,1,1) lds=163840\n"
    s += '.amdgcn_target "amdgcn-amd-amdhsa--gfx950"\n.text\n'
    s += f".globl {KNAME}\n.p2align 8\n.type {KNAME},@function\n{KNAME}:\n"
    s += render(pro) + render(comp) + render(w3) + "L_done:\n    s_endpgm\n"
    s += '.section .rodata,"a"\n.p2align 6\n' + kd(KNAME, 512, 256)
    return s, info, pl


if __name__ == "__main__":
    import build
    name = sys.argv[1]
    kw = {}
    for a in sys.argv[2:]:
        k, v = a.split("=", 1)
        try:
            v = eval(v)
        except Exception:
            pass
        kw[k] = v
    s, info, plan = generate(Cfg(**kw))
    open(name, "w").write(s)
    print(info)
    build.build(name)
```

```python
import copy
import sys

import gen5 as G
from gen5 import *
from asmlib import Prog, parse, lgkm_pass, hazard_pass, render, est_cycles, R


class Cfg(G.Cfg):
    colors = "abcdfehgiacbfhicdegfhiegi"
    reqs = (13, 15, 17, 19, 21, 23, 24, 0, 1, 2, 3, 4, 5, 7, 9, 11) + (6, 8, 10, 13, 14, 16, 18, 20, 22)
    kvq = (26, 28, 30, 32, 34, 34, 34)
    xlead = 8
    slabs = "ifehg"
    pf_wo_step = 19
    pf_wo_q = 16
    first_x = 1
    KS = 2
    xslots = "dc"
    cnt_at = 2
    pk = True
    tfirst = 1
    dsp = 2
    NR = 3
    pflead = 4
    lazy = True

    def __init__(self, **kw):
        for k, v in kw.items():
            assert hasattr(Cfg, k), k
            setattr(self, k, v)


QB = 9 * 16384
NQ = 36
STASH = 224


class Plan:
    pass


def plan(cfg):
    pl = Plan()
    grp = [[("k", 0, 0), ("k", 0, 1), ("k", 1, 0), ("k", 1, 1)]]
    for u in range(1, 15):
        grp.append([("k", u + 1, 0), ("k", u + 1, 1), ("v", u - 1, 0), ("v", u - 1, 1)])
    grp.append([("v", 14, 0), ("v", 14, 1), ("v", 15, 0), ("v", 15, 1)])
    for t in range(9):
        grp.append([("wo", t, rb) for rb in range(4)])
    ns = len(grp)
    slot = lambda c: (ord(c) - 97) * 16384
    addr = {q: slot(cfg.colors[s]) + k * 4096 for s, g in enumerate(grp) for k, q in enumerate(g)}
    req = {b: [] for b in range(ns)}
    for g in range(ns):
        gap = next(d for d in range(1, ns + 1) if cfg.colors[(g - d) % ns] == cfg.colors[g])
        lead = (g - cfg.reqs[g]) % ns
        assert 1 <= lead <= gap - 1, (g, lead, gap)
        req[cfg.reqs[g]].append((g, g - lead < 0))
    for b in req:
        req[b].sort(key=lambda e: (e[0] < 16, e[1]))
    pl.pro = [g for b in range(ns) for g, w in req[b] if w]
    pl.slab = [slot(cfg.slabs[k % len(cfg.slabs)]) for k in range(NQ)]
    xs = [QB] + [slot(c) for c in cfg.xslots]
    pl.xt = [xs[(8 - t) % 3] for t in range(9)]
    KS = cfg.KS
    pl.kvq = {}
    pl.late = []
    for g in sorted(pl.pro):
        a = addr[grp[g][0]]
        busy = max([4 * t + 3 for t in range(9) if pl.xt[t] == a] + [k for k in range(NQ) if pl.slab[k] == a] + [-1])
        b = max(cfg.kvq[g] // KS, busy // KS + 1)
        pl.kvq.setdefault(b, []).append(g)
    pl.grp, pl.addr, pl.req = grp, addr, req
    return pl


def slab_patterns(A, regs):
    A("v_lshrrev_b32 v1, 5, v0\nv_lshrrev_b32 v2, 2, v0\nv_and_b32 v2, 3, v2\nv_lshl_add_u32 v16, v1, 3, v2\nv_lshlrev_b32 v16, 10, v16")
    A("v_lshrrev_b32 v17, 4, v0\nv_and_b32 v17, 1, v17\nv_lshl_add_u32 v16, v17, 5, v16\nv_and_b32 v17, 1, v0\nv_lshl_add_u32 v16, v17, 4, v16")
    A("v_lshrrev_b32 v17, 1, v0\nv_and_b32 v17, 1, v17\nv_lshl_add_u32 v16, v17, 3, v16")
    for j, r in enumerate(regs):
        A(f"v_xor_b32 v17, {j}, v2\nv_lshl_add_u32 v{r}, v17, 6, v16")


def slab_offsets(A, base):
    for k in range(4):
        A(f"v_xor_b32 v17, {k << 2}, v0\nv_lshlrev_b32 v17, 4, v17\nv_add_u32 v{base + k}, {k * (8192 - 1024)}, v17")


def slab_request(cfg, ks, pl, vs, tag):
    l = [f"s_add_u32 m0, s{sT4K}, {pl.slab[ks]}", f"s_add_u32 s{sTMP}, s{sSL}, {ks * 16 * 8192}"]
    if not cfg.noload:
        l += [(f"buffer_load_dwordx4 v{vs + k}, {srd(SWQ)}, s{sTMP} offen offset:{k * 1024}{cfg.wf} lds", (tag, ks)) for k in range(4)]
    return l


sSL, sXW, sC2 = 90, 91, 96


vK3, vV3, vWo3, vS3 = 24, 28, 60, 32
pS3 = [8, 9, 10, 11]
A3, B3, ACC3 = 36, 40 + 0, 64


def wave3(cfg, pl):
    addr = pl.addr
    sc = Sched(cfg)
    A = sc.out
    ns = len(pl.grp)
    nsl = len(cfg.slabs)
    AF = [36, 40, 44]
    BF = [[48, 52, 56], [12, 16, 20]]
    vFL3 = 3
    A("L_loader:")
    A(f"s_lshl_b32 s{sT4K}, s{sW}, 12\ns_add_u32 s{sSL}, s{sWQo}, {12 * 8192}")
    slab_offsets(A, vS3)
    descriptors(A)
    lin = []

    def put(sc_, o, gen=0):
        if isinstance(o, tuple):
            sc_.out(o[0])
            lin.append((o[1], gen))
        elif callable(o):
            o(sc_)
        else:
            sc_.out(o)

    def wait_for(sc_, keys, extra=""):
        idx = [k for k, e in enumerate(lin) if e[0] in keys and e[1] == 0]
        w = f"vmcnt({min(63, len(lin) - 1 - max(idx))}) " if idx else ""
        if w or extra:
            sc_.out("s_waitcnt " + w + extra)

    def quad_ops(q):
        k = q[0]
        pre = []
        if k == "k":
            off, base, v, sr, fl = q[1] * 8192 + q[2] * 4096, sKV, [vK3 + g for g in range(4)], SK, cfg.kvf
        elif k == "v":
            off, base, v, sr, fl = q[1] * 8192 + q[2] * 4096, sKV, [vV3] * 4, SV, cfg.kvf
        else:
            pre = [f"s_add_u32 s{sXW}, s{sWOo}, s{sTC + q[1]}"] if q[2] == 0 else []
            off, base, v, sr, fl = q[2] * 32 * 1152, sXW, [vWo3 + g for g in range(4)], SWO, cfg.wf
        l = pre + [f"s_mov_b32 m0, {addr[q]}", f"s_add_u32 s{sTMP}, s{base}, {off}"]
        if not cfg.noload:
            l += [(f"buffer_load_dwordx4 v{v[g]}, {srd(sr)}, s{sTMP} offen offset:{g * 1024}{fl} lds", q) for g in range(4)]
        return l

    if stamp(cfg, A, 15, 1):
        lin.append((None, 0))
    for ks in range(cfg.KS if cfg.lazy else nsl):
        for o in slab_request(cfg, ks, pl, vS3, "s"):
            put(sc, o)
    A(f"v_and_b32 v1, 7, v0\nv_lshlrev_b32 v1, 2, v1\nbuffer_load_dword v{vFL3}, v1, {srd(SWS)}, s{sFLG} offen sc1")
    lin.append(("flag", 0))
    k_patterns(A, True)
    slab_patterns(A, pS3)
    kv_offsets(A, vK3, vV3)
    for g in range(1, 4):
        A(f"v_xor_b32 v{vK3 + g}, {32 * g}, v{vK3}")
    nsh = {"16x8": 16, "8x16": 8, "4x32": 4}[cfg.mapping]
    vTO3, vDUM3, pQ3_ = 29, 30, 31
    A(f"s_and_b32 s56, s{sB}, {nsh - 1}\nv_mov_b32 v17, 0x7fffff00\nv_cmp_gt_u32 vcc, 36, v0\nv_lshlrev_b32 v{vTO3}, 7, v0")
    A(f"s_mul_i32 s57, s56, {(576 // nsh) * 256}\nv_add_u32 v{vTO3}, s57, v{vTO3}\nv_cndmask_b32 v{vTO3}, v17, v{vTO3}, vcc")

    def touch_wo(add):
        l = []
        if cfg.pf:
            for i in range(1152 // nsh // 36):
                l.append(f"s_add_u32 s{sTMP}, s{sWOo}, {i * 36 * 128 + add}")
                l.append((f"buffer_load_dword v{vDUM3}, v{vTO3}, {srd(SWO)}, s{sTMP} offen", None))
        return l
    for p in pK + pS3:
        sc.bias[p] = 0
    ops = [dict(ks=ks, b=b, j=j) for ks in range(NQ) for b in range(4) for j in range(3)]
    LB3 = 4
    queue = []
    st = dict(step=-1, rdA=0, rdB=0, na=0)

    def drain(sc_, n):
        while queue and n > 0:
            o, g = queue.pop(0)
            put(sc_, o, g)
            n -= isinstance(o, tuple)

    KS = cfg.KS
    for i in range(-LB3, 12 * NQ):
        nx = st["step"] + 1
        if nx < NQ // KS and i >= 12 * KS * nx - LB3:
            drain(sc, 99)
            if cfg.trace == "head2":
                A(f"s_memtime s[60:61]\ns_waitcnt lgkmcnt(0)\nv_writelane_b32 v63, s60, {nx}")
            wait_for(sc, {("s", KS * nx + KS - 1)} | ({"flag"} if nx == cfg.cnt_at else set()), "lgkmcnt(0)")
            if cfg.trace == "head2":
                A(f"s_memtime s[60:61]\ns_waitcnt lgkmcnt(0)\nv_writelane_b32 v63, s60, {32 + nx}")
            if not cfg.nobar:
                A("s_barrier")
            st["step"] = nx
            if nx == cfg.cnt_at:
                A(f"s_lshl_b32 s56, s{sPAIR}, 2\nv_mov_b32 v1, s56\nv_mov_b32 v2, 1\ns_mov_b64 exec, 1")
                put(sc, (f"buffer_atomic_add v2, v1, {srd(SDB)}, 0 offen sc1", None))
                A("s_mov_b64 exec, -1")
            for ks in range(KS * (nx - 1) + nsl if nx else KS, min(NQ, KS * nx + nsl)):
                if nx or cfg.lazy:
                    queue.extend((o, 0) for o in slab_request(cfg, ks, pl, vS3, "s"))
            if nx == cfg.pf_wo_q // KS:
                queue.extend((o, 0) for o in touch_wo(0))
            for g in pl.kvq.get(nx, []):
                for q in pl.grp[g]:
                    queue.extend((o, 0) for o in quad_ops(q))
        while st["rdB"] < 3 * NQ and st["rdB"] // 3 // KS <= st["step"] and 12 * (st["rdB"] // 3) - LB3 <= i:
            ks, j = divmod(st["rdB"], 3)
            sc.lds("ds_read_b128", R("v", BF[ks & 1][j], 4), pK[ks & 3], pl.xt[ks >> 2] + j * 4096)
            st["rdB"] += 1
        while st["rdA"] < 12 * NQ and st["rdA"] <= i + 5 and ops[st["rdA"]]["ks"] // KS <= st["step"]:
            o = ops[st["rdA"]]
            fb = AF[st["na"] % 3]
            st["na"] += 1
            a = pl.slab[o["ks"]] + 3 * 256
            sc.lds("ds_read_b64_tr_b16", R("v", fb, 2), pS3[o["b"]], a)
            sc.lds("ds_read_b64_tr_b16", R("v", fb + 2, 2), pS3[o["b"]], a + 4096)
            for d in range(3):
                ops[st["rdA"] + d]["areg"] = fb
            st["rdA"] += 3
        if i < 0:
            continue
        left = 12 * KS * (st["step"] + 1) - LB3 - i
        nv = sum(isinstance(o, tuple) for o, g in queue)
        if nv > left:
            drain(sc, -(-nv // max(left, 1)))
        elif i % cfg.dsp == 0 or nv * cfg.dsp > left:
            drain(sc, 1)
        o = ops[i]
        d = R("v", ACC3 + 16 * (3 * o["b"] + o["j"]), 16)
        A(f"{MF} {d}, {R('v', o['areg'], 4)}, {R('v', BF[o['ks'] & 1][o['j']], 4)}, {'0' if o['ks'] == 0 else d}")
    drain(sc, 99)
    if cfg.trace == "head2":
        A(f"v_lshlrev_b32 v1, 2, v0\ns_lshl_b32 s62, s2, 10\ns_add_u32 s62, s62, {STAMP_BASE + 768}")
        A(f"buffer_store_dword v63, v1, {srd(SWS)}, s62 offen\ns_waitcnt vmcnt(0)")
    A("s_waitcnt lgkmcnt(0)")
    if not cfg.nobar:
        A("s_barrier")
    for g in pl.kvq.get(NQ // KS, []):
        for q in pl.grp[g]:
            for o in quad_ops(q):
                put(sc, o)

    def conv3(b, j):
        acc = ACC3 + 16 * (3 * b + j)
        l = []
        for k in range(8):
            l += [f"v_mul_f32 v{acc + 2 * k}, s{sC}, v{acc + 2 * k}", f"v_mul_f32 v{acc + 2 * k + 1}, s{sC}, v{acc + 2 * k + 1}"]
        for k in range(8):
            l.append(f"v_cvt_pk_bf16_f32 v{acc + k}, v{acc + 2 * k}, v{acc + 2 * k + 1}")
        for k in range(8):
            l.append(f"v_accvgpr_write_b32 a{96 + 4 * (8 * j + 2 * b) + k}, v{acc + k}")
        return l
    post = ["v_lshrrev_b32 v1, 3, v0\nv_and_b32 v2, 7, v0\nv_lshrrev_b32 v16, 4, v0\nv_and_b32 v16, 1, v16\nv_lshlrev_b32 v16, 2, v16",
            "v_xor_b32 v16, v16, v2\nv_lshlrev_b32 v16, 4, v16\nv_mul_u32_u24 v17, 1152, v1\nv_add_u32 v16, v16, v17"]
    post += [f"v_add_u32 v{vWo3 + g}, {g * 8192}, v16" for g in range(4)]
    post += [
             f"v_lshlrev_b32 v{pQ3_}, 4, v0\nv_add_u32 v{pQ3_}, {QB}, v{pQ3_}\nv_mov_b32 v{vFL}, v{vFL3}"]
    for o in post:
        A(o)
    head, pend = lgkm_pass(sc.out.ins)
    assert not pend
    pro = [q for b in sorted(pl.kvq) for g in pl.kvq[b] for q in pl.grp[g]]

    def period(last, pro_):
        nonlocal lin
        sc2 = Sched(cfg)
        B = sc2.out
        lin = [(q, 0) for q in pro_ for g in range(4)] if not cfg.noload else []
        wrapped = False
        for s in range(ns):
            if cfg.trace is True:
                B(f"s_memtime s[60:61]\ns_waitcnt lgkmcnt(0)\nv_writelane_b32 v2, s60, {s}")
            wait_for(sc2, set(pl.grp[s]), "lgkmcnt(0)")
            if cfg.trace is True:
                B(f"s_memtime s[60:61]\ns_waitcnt lgkmcnt(0)\nv_writelane_b32 v2, s60, {32 + s}")
            if s in (0, 16) and stamp(cfg, B, {0: 1, 16: 2}[s], 1):
                lin.append((None, 0))
            if last and s == 16:
                B("v_readfirstlane_b32 s57, v17\ns_mov_b32 s58, 0\nL_chk:\ns_cmp_ge_u32 s57, 8\ns_cbranch_scc1 L_chkend")
                B(f"buffer_load_dword v17, v16, {srd(SDB)}, 0 offen sc1\ns_add_u32 s58, s58, 1\ns_waitcnt vmcnt(0)\nv_readfirstlane_b32 s57, v17")
                B("s_cmp_lt_u32 s58, 0x80000\ns_cbranch_scc1 L_chk\nL_chkend:")
            if not cfg.nobar:
                B("s_barrier")
            for g, w in pl.req[s]:
                if w and not wrapped:
                    wrapped = True
                    B(f"s_add_u32 s{sKV}, s{sKV}, 0x20000")
                assert g >= 16 or w == wrapped
                if not (last and w):
                    for q in pl.grp[g]:
                        for o in quad_ops(q):
                            put(sc2, o, int(w))
            if last and s == 2:
                B(f"s_lshl_b32 s56, s{sPAIR}, 2\nv_mov_b32 v16, s56")
                put(sc2, (f"buffer_load_dword v17, v16, {srd(SDB)}, 0 offen sc1", None))
            if s == cfg.pf_wo_step and not last:
                for o in touch_wo(147456):
                    put(sc2, o)
            if cfg.warm and s == 9:
                B("s_call_b64 s[40:41], L_warm_partc" if last else "s_call_b64 s[40:41], L_warm_more")
            if last:
                continue
            extra = []
            if s < 6:
                extra = conv3(*divmod(2 * s, 3)) + conv3(*divmod(2 * s + 1, 3))
            elif s in (QS0 + 1, QS1 + 1):
                p = int(s == QS1 + 1)
                extra = [f"ds_read_b128 {R('a', 4 * (8 * j + 4 * p + i), 4)}, v{pQ3_} offset:{(4 * j + i) * 1024}" for j in range(3) for i in range(4)]
            if extra:
                B(f"s_cmp_lg_u32 s{sIT}, 0\ns_cbranch_scc1 L_w3x{s}")
                B("\n".join(extra) + f"\ns_waitcnt lgkmcnt(0)\nL_w3x{s}:")
            if s in (16, 20):
                p = int(s == 20)
                for j in range(3):
                    for i in range(4):
                        B(f"ds_write_b128 v{pQ3_}, {R('a', 4 * (8 * j + 4 * p + i), 4)} offset:{(4 * j + i) * 1024}")
            if s == 22:
                B(f"s_cmp_lg_u32 s{sIT}, 1\ns_cbranch_scc1 L_w3mv")
                for k in range(96):
                    B(f"v_accvgpr_mov_b32 a{k}, a{96 + k}")
                B("L_w3mv:")
        tail = [e[0] for e in lin if e[1] == 1][::4]
        if not last:
            B(f"s_add_u32 s{sWOo}, s{sWOo}, 147456")
            if cfg.trace is True:
                B(f"s_cmp_lg_u32 s{sIT}, {cfg.trace_it}\ns_cbranch_scc1 L_notr3\nv_lshlrev_b32 v1, 2, v0\ns_lshl_b32 s62, s2, 10\ns_add_u32 s62, s62, {STAMP_BASE + 768}")
                B(f"buffer_store_dword v2, v1, {srd(SWS)}, s62 offen\ns_waitcnt vmcnt(0)\nL_notr3:")
            B(f"s_add_u32 s{sIT}, s{sIT}, 1\ns_cmp_lt_u32 s{sIT}, 3\ns_cbranch_scc1 L_w3loop")
        return B.ins, tail

    b1, tail = period(False, pro)
    b2, tail2 = period(False, tail)
    assert tail == tail2 and len(b1) == len(b2) and (cfg.noload or sorted(tail) == sorted(pro))
    import re
    body = []
    for x, y in zip(b1, b2):
        if x.text != y.text:
            n = min(int(re.search(r"vmcnt\((\d+)\)", z.text).group(1)) for z in (x, y))
            x = parse(re.sub(r"vmcnt\(\d+\)", f"vmcnt({n})", x.text))
        body.append(x)
    lastp, _ = period(True, tail)
    T = Prog()
    T(f"s_cmp_ge_u32 s{sCU}, 3\ns_cbranch_scc1 L_done\ns_mov_b32 s61, 8")
    finish_unit(cfg, T, "w3", 8, 192, sCU, 61, False)
    allins, nn = hazard_pass(head + [parse("L_w3loop:")] + body + lastp + T.ins, verbose=cfg.dbg == "nops3")
    return allins, dict(w3nops=nn, w3head=est_cycles(head))


QS0, QS1 = 7, 10


def compute(cfg, pl):
    addr = pl.addr
    sc = Sched(cfg)
    A = sc.out
    nsl = len(cfg.slabs)
    vS, vXo = P0, P0 + 4
    pS = [pWq[0], pWq[1], P0 + 8, P0 + 9]
    TMP = 248
    nsh = {"16x8": 16, "8x16": 8, "4x32": 4}[cfg.mapping]
    A(f"s_lshl_b32 s{sT4K}, s{sW}, 12\ns_mov_b32 s{sTHR}, {hex(f2u(cfg.thr))}")
    A(f"s_lshl_b32 s56, s{sW}, 15\ns_add_u32 s{sSL}, s{sWQo}, s56\ns_mul_i32 s56, s{sW}, 36864\ns_add_u32 s{sXW}, s{sXo}, s56")
    A(f"s_mov_b32 s{sC2}, s{sC}\ns_mov_b32 s{sC2 + 1}, s{sC}")
    slab_offsets(A, vS)
    A("v_lshrrev_b32 v1, 3, v0\nv_and_b32 v2, 7, v0\nv_lshrrev_b32 v3, 4, v0\nv_mul_u32_u24 v20, 1152, v1")
    for g in range(4):
        A(f"v_add_u32 v17, {4 * g}, v3\nv_and_b32 v17, 7, v17\nv_xor_b32 v17, v17, v2\nv_lshlrev_b32 v17, 4, v17")
        A(f"v_add_u32 v17, {g * (9216 - 1024)}, v17\nv_add_u32 v{vXo + g}, v17, v20")
    rows = 576 // nsh
    A(f"v_lshrrev_b32 v16, 3, v0\nv_lshlrev_b32 v16, 13, v16\nv_and_b32 v17, 7, v0\nv_lshl_add_u32 v16, v17, 7, v16")
    rw = rows // cfg.NR // 3
    A(f"s_and_b32 s56, s{sB}, {nsh - 1}\ns_mul_i32 s56, s56, 3\ns_add_u32 s56, s56, s{sW}\ns_mul_i32 s56, s56, {rw * 8192}\ns_add_u32 s98, s56, s{sWQo}")
    assert rw <= 8
    A(f"v_mov_b32 v17, 0x7fffff00\nv_cmp_gt_u32 vcc, {rw * 8}, v0\ns_nop 0\nv_cndmask_b32 v{P0 + 10}, v17, v16, vcc")
    descriptors(A)
    lin = []

    def x_request(t):
        l = [f"s_add_u32 m0, s{sT4K}, {pl.xt[t]}", f"s_add_u32 s{sTMP}, s{sXW}, {t * 128}"]
        if not cfg.noload:
            l += [(f"buffer_load_dwordx4 v{vXo + k}, {srd(SX)}, s{sTMP} offen offset:{k * 1024}{cfg.xf} lds", ("x", 4 * t)) for k in range(4)]
        return l

    def now(l):
        for o in l:
            if isinstance(o, tuple):
                A(o[0])
                lin.append(o[1])
            else:
                A(o)
    KS = cfg.KS
    rs = lambda l: [(o[0], ("c", o[1][1] // KS)) if isinstance(o, tuple) else o for o in l]
    vTA, vTB, vFA = P0 + 10, P0 + 11, P0 + 12
    tq, late_t = {}, []
    if cfg.pf:
        for r in range(cfg.NR):
            l = [f"s_add_u32 s99, s98, {r * (576 // cfg.NR) * 8192}", (f"buffer_load_dword v{NEGM}, v{vTA}, {srd(SWQ)}, s99 offen", None)]
            b = r * (NQ // KS) // cfg.NR - cfg.pflead
            if r < cfg.tfirst:
                now(l)
            elif b <= 0:
                late_t += l
            else:
                tq[b] = l
    now(rs(slab_request(cfg, 0, pl, vS, "c") + x_request(0)))
    for ks in range(1, KS):
        now(rs(slab_request(cfg, ks, pl, vS, "c")))
    rest = list(late_t)
    for ks in range(KS, nsl):
        rest += rs(slab_request(cfg, ks, pl, vS, "c"))
    if cfg.pfx:
        xr = 96 // (32 // nsh) // 3
        vTX_ = P0 + 13
        A(f"v_lshrrev_b32 v17, 2, v0\nv_mul_u32_u24 v17, 1152, v17\nv_and_b32 v{vTX_}, 3, v0\nv_lshl_add_u32 v{vTX_}, v{vTX_}, 7, v17")
        A(f"s_and_b32 s57, s{sCU}, {32 // nsh - 1}\ns_mul_i32 s57, s57, 3\ns_add_u32 s57, s57, s{sW}\ns_mul_i32 s57, s57, {xr * 1152}\ns_add_u32 s101, s57, s{sXo}")
        assert xr == 16
        tx = [(f"buffer_load_dword v{NEGM}, v{vTX_}, {srd(SX)}, s101 offen offset:{128 + 512 * i}", None) for i in range(2)]
        rest = (tx + rest) if cfg.pfx == 1 else (rest + tx)
    xreq = {}
    for t in range(1, 9):
        b = max((4 * t - cfg.xlead) // KS, (4 * (t - 3) + 3) // KS + 1 if t >= 3 else 0)
        if b <= 0:
            rest += rs(x_request(t))
        else:
            xreq[b] = t
    A(f"v_and_b32 v{vFA}, 7, v0\nv_lshlrev_b32 v{vFA}, 2, v{vFA}")
    rest.append((f"buffer_load_dword v{vFL}, v{vFA}, {srd(SWS)}, s{sFLG} offen sc1", ("c", cfg.cnt_at)))
    if not cfg.lazy:
        now(rest)
        rest = []
    lane_patterns(A, True)
    slab_patterns(A, pS)
    A(f"v_lshlrev_b32 v{vST}, 4, v0\nv_add_u32 v{pQ}, s{sT4K}, v{vST}")
    A(f"s_mul_i32 s56, s{sPAIR}, 884736\ns_lshl_b32 s57, s{sW}, 15\ns_add_u32 s56, s56, s57\ns_lshl_b32 s57, s{sCU}, 12\ns_add_u32 s{sWSo}, s56, s57")
    for p in pK + pV + pS + pWo + [pQ]:
        sc.bias[p] = 0
    qops, qf = [], {}
    k = -cfg.LA + 1
    for o in rest:
        qf.setdefault(min(k, 12 * KS - cfg.LB - 1), []).append(o)
        k += isinstance(o, tuple)
    for ks in range(NQ):
        order = list(range(4, 12)) + [0, 1, 2, 3] if ks < NQ - 1 else list(range(12))
        xb = S0 + 4 * (ks % 8)
        for n_, b in enumerate(order):
            a = pl.slab[ks] + (b >> 2) * 256
            d = R("v", O0 + 16 * b, 16) if b < 4 else R("a", 16 * (b - 4), 16)
            o = dict(step=ks // KS, a=[("tr", pS[b & 3], a), ("tr", pS[b & 3], a + 4096)], b=R("v", xb, 4), d=d, c="0" if ks == 0 else d)
            if n_ == 0:
                o["x"] = (xb, pK[ks & 3], pl.xt[ks >> 2])
            qops.append(o)
        if ks % KS == 0 and ks:
            l = []
            for k2 in range(ks - KS + nsl, min(NQ, ks + nsl)):
                l += rs(slab_request(cfg, k2, pl, vS, "c"))
            if ks // KS in xreq:
                l += rs(x_request(xreq[ks // KS]))
            l += tq.get(ks // KS, [])
            k = 12 * ks - cfg.LB
            nv = sum(isinstance(o, tuple) for o in l)
            sp = min(cfg.dsp, (12 * KS - 1) / max(nv, 1))
            kk = 0
            for o in l:
                qf.setdefault(k + int(kk * sp), []).append(o)
                kk += isinstance(o, tuple)
    n = 12 * NQ
    spread(qf, conv_block(0, f"s{sC}", Q0), n - 8, n - 5)
    spread(qf, conv_block(1, f"s{sC}", Q0), n - 4, n - 1)
    emit_slots(cfg, sc, qops, qf, {}, -cfg.LA, n, dict(rd=0, step=-1, lin=lin, tag="c"), [], {0: 0})
    if not cfg.nobar:
        A("s_waitcnt lgkmcnt(0)\ns_barrier")
    A("\n".join(conv_block(2, f"s{sC}", Q0) + conv_block(3, f"s{sC}", Q0)))
    if cfg.trace in ("head", "head2"):
        if cfg.trace == "head":
            A(f"s_memrealtime s[60:61]\ns_waitcnt lgkmcnt(0)\nv_writelane_b32 v{NEGM + 1}, s60, 36\nv_writelane_b32 v{NEGM + 1}, s101, 37")
        A(f"v_lshlrev_b32 v1, 2, v0\ns_lshl_b32 s62, s2, 10\ns_lshl_b32 s63, s{sW}, 8\ns_add_u32 s62, s62, s63\ns_add_u32 s62, s62, {STAMP_BASE}")
        A(f"buffer_store_dword v{NEGM + 1}, v1, {srd(SWS)}, s62 offen\ns_waitcnt vmcnt(0)")

    def pack2(i, dst):
        t = TMP
        l = [f"v_accvgpr_read_b32 v{t + k}, a{2 * i + k}" for k in range(4)]
        if cfg.pk:
            l += [f"v_pk_mul_f32 v[{t + k}:{t + k + 1}], v[{t + k}:{t + k + 1}], s[{sC2}:{sC2 + 1}]" for k in (0, 2)]
        else:
            l += [f"v_mul_f32 v{t + k}, s{sC}, v{t + k}" for k in range(4)]
        return l + [f"v_cvt_pk_bf16_f32 v{dst + k}, v{t + 2 * k}, v{t + 2 * k + 1}" for k in range(2)]
    lumps = {}
    for part in range(8):
        i = 4 * part
        lumps[16 * (2 + part // 2) + 2 + 6 * (part & 1)] = pack2(i, TMP + 4) + pack2(i + 2, TMP + 6) + [
            f"v_accvgpr_write_b32 a{STASH + i + k}, v{TMP + 4 + k}" for k in range(4)]
    for p, s0 in ((0, QS0), (1, QS1)):
        for fr in range(4):
            i = 32 + 16 * p + 4 * fr
            lumps[16 * (s0 - 1 + fr // 2) + 2 + 6 * (fr & 1)] = pack2(i, TMP + 4) + pack2(i + 2, TMP + 6) + [
                f"ds_write_b128 v{pQ}, {R('v', TMP + 4, 4)} offset:{fr * 1024}"]
    k_patterns(A, False)
    for p in pK:
        sc.bias[p] = 0
    for p in pV + pWo:
        sc.rebias(p, 0)
    sc.rebias(pQ, QB)
    for p in pS:
        del sc.bias[p]
    bias0 = dict(sc.bias)
    sc.nbuf = 0
    ops = item_ops(addr)
    st = dict(rd=0, step=-1, lin=[], tag="c")
    emit_slots(cfg, sc, ops, {}, {}, -cfg.LA, 0, st, [], {0: 1})
    assert st["rd"] == cfg.LA and 400 % cfg.NB == 0
    bias1 = dict(sc.bias)
    head, pend0 = lgkm_pass(sc.out.ins)
    assert len(pend0) == cfg.LA
    head, nh = hazard_pass(head, verbose=cfg.dbg == "nops")
    sc.out = Prog()
    fill = {}
    split = 272
    post = item_fill(cfg, ops, fill)
    for s_, l in lumps.items():
        fill.setdefault(s_, []).append(f"s_cmp_lg_u32 s{sIT}, 0\ns_cbranch_scc1 L_lump{s_}\n" + "\n".join(l) + f"\nL_lump{s_}:")
    stubs = []
    sc.out("L_item:")
    st["lin"] = []
    st["alts"] = []
    emit_slots(cfg, sc, ops, fill, post, 0, split, st, stubs, {16: 2})
    sc.out(f"s_cmp_lg_u32 s{sIT}, 3\ns_cbranch_scc1 L_more")
    common, pend = lgkm_pass_skips(sc.out.ins, pend0)
    common, n0 = hazard_pass(common, history=head[-20:], verbose=cfg.dbg == "nops")
    sa = copy.deepcopy(sc)
    sa.out = Prog()
    sa.out("L_warm_more:\ns_setpc_b64 s[40:41]\nL_more:")
    fa = {}
    for p, r0, m0 in ((0, 288, 302), (1, 352, 365)):
        spread(fa, [(lambda s_, i=i, p=p: s_.lds("ds_read_b128", R("v", Q0 + 16 * p + 4 * i, 4), pQ, QB + i * 1024)) for i in range(4)], r0, r0 + 3)
        mv_ = "\n".join(f"v_accvgpr_read_b32 v{Q0 + 16 * p + i}, a{STASH + 16 * p + i}" for i in range(16))
        fa.setdefault(m0, []).append(f"s_cmp_lg_u32 s{sIT}, 0\ns_cbranch_scc1 L_lumpm{p}\n{mv_}\nL_lumpm{p}:")
    sta = copy.deepcopy(st)
    sta["rebias"] = bias0
    fa.setdefault(390, []).append(f"s_add_u32 s{sIT}, s{sIT}, 1")
    emit_slots(cfg, sa, copy.deepcopy(ops), fa, {}, split, 400, sta, stubs, {25: 1}, nextops=copy.deepcopy(ops[:cfg.LA]))
    assert sa.bias == bias1 and sta["rd"] == 400 + cfg.LA
    if cfg.trace is True:
        sa.out(f"s_cmp_lg_u32 s{sIT}, {cfg.trace_it + 1}\ns_cbranch_scc1 L_notr\nv_lshlrev_b32 v1, 2, v0\ns_lshl_b32 s62, s2, 10\ns_lshl_b32 s63, s{sW}, 8\ns_add_u32 s62, s62, s63\ns_add_u32 s62, s62, {STAMP_BASE}")
        sa.out(f"buffer_store_dword v2, v1, {srd(SWS)}, s62 offen\ns_waitcnt vmcnt(0)\nL_notr:")
    sa.out("s_branch L_item")
    conta, pe = lgkm_pass_skips(sa.out.ins, pend)
    assert pe == pend0[len(pend0) - len(pe):]
    conta, n1 = hazard_pass(conta, history=common[-20:], verbose=cfg.dbg == "nops")
    sb = copy.deepcopy(sc)
    sb.out = Prog()
    fb = {}
    for t in range(1, 9):
        s0 = 256 + 16 * t
        spread(fb, store_block(cfg, 2 * t - 2, Q0, P0) + store_block(cfg, 2 * t - 1, Q0 + 16, P0 + 8), s0 + 3, s0 + 15)
    emit_slots(cfg, sb, copy.deepcopy(ops), fb, {}, split, 400, dict(copy.deepcopy(st), alts=None), stubs)
    T = sb.out
    stamp(cfg, T, 3, 0)
    stamp(cfg, T, 4, 0)
    finish_unit(cfg, T, "c", 7, OUTV, sW, sCU, True)
    contb, _ = lgkm_pass(sb.out.ins, pend)
    contb, n2 = hazard_pass(contb, history=common[-20:], verbose=cfg.dbg == "nops")
    stb = Prog()
    for tag, p in stubs:
        stb(f"L_stub_{tag}:\ns_call_b64 s[40:41], L_rare{p}\ns_branch L_back_{tag}")
    info = dict(nops=(nh, n0, n1, n2), est_head=est_cycles(head), est_item=est_cycles(common + conta))
    return head + common + contb + conta + stb.ins + rare_routine(0) + rare_routine(1), info


def lgkm_pass_skips(ins, pending):
    out, seg, pend = [], [], pending
    i = 0
    while i < len(ins):
        x = ins[i]
        if x.kind == "branch" and ("L_lump" in x.text or "L_st0" in x.text or "L_st1" in x.text):
            o, pend = lgkm_pass(seg + [x], pend)
            out += o
            lab = x.text.split()[-1] + ":"
            j = next(k for k in range(i, len(ins)) if ins[k].text == lab)
            o, _ = lgkm_pass(ins[i + 1:j + 1], pend)
            out += o
            seg = []
            i = j + 1
            continue
        seg.append(x)
        i += 1
    o, pend = lgkm_pass(seg, pend)
    return out + o, pend


def generate(cfg):
    pl = plan(cfg)
    P = Prog()
    prologue(cfg, P)
    pro, _ = hazard_pass(P.ins)
    comp, info = compute(cfg, pl)
    w3, info3 = wave3(cfg, pl)
    info.update(info3)
    s = HDR + "; @launch grid=(256,1,1) block=(256,1,1) lds=163840\n"
    s += '.amdgcn_target "amdgcn-amd-amdhsa--gfx950"\n.text\n'
    s += f".globl {KNAME}\n.p2align 8\n.type {KNAME},@function\n{KNAME}:\n"
    s += render(pro) + render(comp) + render(w3) + "L_done:\n    s_endpgm\n"
    s += '.section .rodata,"a"\n.p2align 6\n' + kd(KNAME, 512, 256)
    return s, info, pl


if __name__ == "__main__":
    import build
    name = sys.argv[1]
    kw = {}
    for a in sys.argv[2:]:
        k, v = a.split("=", 1)
        try:
            v = eval(v)
        except Exception:
            pass
        kw[k] = v
    s, info, _ = generate(Cfg(**kw))
    open(name, "w").write(s)
    print(info)
    build.build(name)
```

```python
import re, sys
import gen5, gen6
from gen5 import *
from asmlib import Prog, hazard_pass, render

def generate(kw5, kw6, sel="j1"):
    c5, c6 = gen5.Cfg(**kw5), gen6.Cfg(**kw6)
    P = Prog()
    prologue(c5, P)
    last = P.ins[-2:]
    P.ins = P.ins[:-2]
    if sel == "j1":
        P(f"s_and_b32 s56, s{sJ}, 1\ns_cbranch_scc1 M_entry")
    elif sel == "j0":
        P(f"s_and_b32 s56, s{sJ}, 1\ns_cbranch_scc0 M_entry")
    P.ins += last
    pro, _ = hazard_pass(P.ins)
    pl5, pl6 = gen5.plan_ring(c5), gen6.plan(c6)
    a, i5 = gen5.compute(c5, pl5); b, _ = gen5.wave3(c5, pl5)
    c, i6 = gen6.compute(c6, pl6); d, _ = gen6.wave3(c6, pl6)
    body6 = "M_entry:\n" + render(last) + render(c) + render(d) + "L_done:\n    s_endpgm\n"
    body6 = re.sub(r"\bL_", "M_", body6)
    s = HDR + "; @launch grid=(256,1,1) block=(256,1,1) lds=163840\n"
    s += '.amdgcn_target "amdgcn-amd-amdhsa--gfx950"\n.text\n'
    s += f".globl {KNAME}\n.p2align 8\n.type {KNAME},@function\n{KNAME}:\n"
    s += render(pro) + render(a) + render(b) + "L_done:\n    s_endpgm\n" + body6
    s += '.section .rodata,"a"\n.p2align 6\n' + kd(KNAME, 512, 256)
    return s, (i5, i6)

if __name__ == "__main__":
    import build
    name = sys.argv[1]
    kw5, kw6, sel = {}, {}, "j1"
    for a in sys.argv[2:]:
        k, v = a.split("=", 1)
        try: v = eval(v)
        except Exception: pass
        if k == "sel": sel = v
        elif k.startswith("5."): kw5[k[2:]] = v
        elif k.startswith("6."): kw6[k[2:]] = v
        else: kw5[k] = v; kw6[k] = v
    s, info = generate(kw5, kw6, sel)
    open(name, "w").write(s); print(info); build.build(name)
```

```python
import copy
import math
import struct
import sys

from asmlib import Prog, parse, lgkm_pass, hazard_pass, render, est_cycles, R

KNAME = "concat_heads__mha_block_cached__gqa_block_cached__near_ridge_kernel"
HDR = open("concat_heads__mha_block_cached__gqa_block_cached__near_ridge.s.ref").read().split("; Override launch")[0]


def f2u(x):
    return struct.unpack("<I", struct.pack("<f", x))[0]


class Cfg:
    mapping = "16x8"
    kvf = " nt"
    wf = ""
    xf = ""
    pstf = " sc1"
    gf = " sc1"
    of = ""
    psleep = 2
    LA = 6
    LB = 4
    NB = 8
    colors = "defabcdabcdefabc" + "abc" * 3
    dmax = 99
    dwo = 2
    reqs = None
    park = (14, 16, 18)
    kv0 = (4, 5, 6)
    WR = 6
    raq = 4
    waitgrp = 4
    wqbatch = 1
    balance = True
    front = True
    stamp = False
    pf = True
    dbl = False
    pfx = False
    thr = 1024.0
    quota = (13, 24, 20) + (20,) * 12 + (21, 21) + (15,) * 6 + (3, 0)
    pf_wo_step = 1
    pf_wq_step = 12
    pf_wq0_step = 1
    dbg = None
    nobar = False
    noload = False
    delay = 0
    prof = False
    trace = False
    trace_it = 2
    warm = True
    tlb = 0
    gsp = 1
    pubs = {}
    half = 0

    def __init__(self, **kw):
        for k, v in kw.items():
            assert hasattr(Cfg, k), k
            setattr(self, k, v)


pK = [4, 5, 6, 7]
pV = [8, 9]
pWq = [10, 11]
pWo = [12, 13]
vL, vBS = 14, 15
vT = [16, 17, 18, 19]
vM, vM2, vST, vFL = 20, 21, 22, 23
FR0, NEGM, S0, P0, Q0, O0, OUTV, FRX = 24, 48, 64, 96, 112, 144, 208, 240
OF = S0
pQ = 3
bK, bV, bWo, bM = 248, 249, 250, 251
vD = 252
sW, sB, sH = 3, 4, 5
SK, SV, SWQ, SWO, SX, SWS = 16, 20, 24, 28, 32, 36
sKV, sXo, sWQo, sWOo, sTMP, sIT, sC, sTHR, sT4K, sWSo = 42, 43, 44, 45, 46, 47, 48, 49, 50, 51
sJ, sPAIR, sCU = 52, 53, 59
SDB, SOUT = 68, 72
sTC = 80
sFLG = 89
SWQ2 = 92
SM = 96
sMB, sB0, sWB, sXM, sXM2 = 90, 91, 66, 67, 100
WRB = 24 * 4096
MF = "v_mfma_f32_32x32x16_bf16"
QBUF = 31 * 4096
XRES = 34 * 4096
FLAGBASE = 32 << 20
TORD = (0, 1, 2, 7, 8, 3, 4, 5, 6)


def srd(n):
    return f"s[{n}:{n + 3}]"


def w3_quads():
    return [("wq3", p, t, rb) for p in range(2) for t in TORD for rb in range(2)]


def w3_ops(cfg):
    quads = w3_quads()
    ops = []
    for p in range(2):
        pq = quads[18 * p:18 * p + 18]
        groups = [pq[0:2]] + [[q] for q in pq[2:16]] + [pq[16:18]]
        for grp in groups:
            if len(grp) == 2:
                seqv = [(q, s2, hb) for hb in range(2) for q in grp for s2 in range(2)]
            else:
                seqv = [(grp[0], s2, hb) for s2 in range(2) for hb in range(2)]
            for (q, s2, hb) in seqv:
                ks = 4 * q[2] + 2 * q[3] + s2
                for j in range(3):
                    ops.append(dict(q=q, s2=s2, hb=hb, j=j, ks=ks, p=p, first=(q == pq[0] and s2 == 0), last=(q == pq[17] and s2 == 1)))
    assert len(ops) == 432 == sum(cfg.quota)
    i = 0
    for s, n in enumerate(cfg.quota):
        for o in ops[i:i + n]:
            o["step"] = s
        i += n
    for i in range(0, 432, 3):
        for d in range(3):
            ops[i + d]["astep"] = ops[i]["step"]
    return ops


class Plan:
    pass


def plan_ring(cfg):
    pl = Plan()
    grp = [[("k", 0, 0), ("k", 0, 1), ("k", 1, 0), ("k", 1, 1)]]
    for u in range(1, 15):
        grp.append([("k", u + 1, 0), ("k", u + 1, 1), ("v", u - 1, 0), ("v", u - 1, 1)])
    grp.append([("v", 14, 0), ("v", 14, 1), ("v", 15, 0), ("v", 15, 1)])
    for t in range(9):
        grp.append([("wo", t, rb) for rb in range(4)])
    ns = len(grp)
    addr = {}
    for s_, g in enumerate(grp):
        for k, q in enumerate(g):
            addr[q] = (ord(cfg.colors[s_]) - 97) * 16384 + k * 4096
    start = []
    xslot = (QBUF, WRB, WRB + 12288) * 2 + (QBUF, XRES, XRES + 12288)
    for t in range(9):
        wq = [("wq", t, rb, cb) for rb in range(2) for cb in range(2)]
        for k, q in enumerate(wq):
            addr[q] = (ord(cfg.colors[16 + t]) - 97) * 16384 + k * 4096
        for rb in range(3):
            addr[("x", t, rb)] = xslot[t] + rb * 4096
        start.append(wq + [("x", t, rb) for rb in range(3)])
    for i, q in enumerate(w3_quads()):
        addr[q] = WRB + (i % cfg.WR) * 4096
    req = {b: [] for b in range(ns)}
    for g in range(ns):
        gap = next(d for d in range(1, ns + 1) if cfg.colors[(g - d) % ns] == cfg.colors[g])
        lead = min(gap - 1, cfg.dwo if g >= 16 else cfg.dmax)
        if cfg.reqs:
            lead = (g - cfg.reqs[g]) % ns
            assert lead <= gap - 1, (g, lead, gap)
        elif g < len(cfg.park):
            assert ns + g - cfg.park[g] <= lead
            lead = ns + g - cfg.park[g]
        assert lead >= 1
        req[(g - lead) % ns].append((g, g - lead < 0))
    for b in req:
        req[b].sort(key=lambda e: (e[0] < 16, e[1]))
    pl.req = req
    pl.pro = [g for b in range(ns) for g, w in req[b] if w]
    pl.sreq = {b: [] for b in range(-1, 9)}
    bb = -1
    for n_, g in enumerate(pl.pro):
        b = next(b for b in range(ns) if (g, True) in req[b])
        bb = max(bb, cfg.kv0[n_] if n_ < len(cfg.kv0) else b - 16)
        assert all(cfg.colors[16 + t] != cfg.colors[g] for t in range(max(bb, 0), 9))
        pl.sreq[bb].append(g)
    sissue = {b: [] for b in range(-1, 9)}
    lastuse = {}
    b = -1
    for t in range(9):
        for q in start[t]:
            lo = addr[q]
            b = max(b, lastuse.get(lo, -9) + 1)
            assert b < t
            sissue[b].append(q)
            lastuse[lo] = t
    pl.slast = lastuse
    pl.grp, pl.start, pl.addr, pl.sissue = grp, start, addr, sissue
    return pl


def prologue(cfg, A):
    A("s_cmp_ge_u32 s2, 256\ns_cbranch_scc1 L_done")
    if cfg.trace == "head":
        A("s_memrealtime s[60:61]\ns_waitcnt lgkmcnt(0)\ns_mov_b32 s101, s60")
    A(f"v_lshrrev_b32 v1, 6, v0\nv_and_b32 v0, 63, v0\nv_readfirstlane_b32 s{sW}, v1")
    A("s_and_b32 s6, s2, 4\ns_mul_i32 s6, s6, 10\ns_add_u32 s6, s0, s6\ns_addc_u32 s7, s1, 0")
    A("s_load_dwordx2 s[40:41], s[6:7], 0\ns_load_dwordx4 s[8:11], s[6:7], 8\ns_load_dwordx4 s[12:15], s[6:7], 24")
    A("s_load_dwordx2 s[54:55], s[0:1], 96\ns_load_dwordx4 s[76:79], s[0:1], 80")
    A(f"s_and_b32 s57, s2, 3\ns_lshr_b32 s{sJ}, s2, 3")
    if cfg.mapping == "16x8":
        A(f"s_lshr_b32 s{sB}, s{sJ}, 1\ns_and_b32 s{sH}, s{sJ}, 1\ns_lshl_b32 s{sH}, s{sH}, 2\ns_lshl_b32 s57, s57, 3\ns_add_u32 s{sH}, s{sH}, s57")
    elif cfg.mapping == "8x16":
        A(f"s_and_b32 s56, s57, 1\ns_lshl_b32 s56, s56, 3\ns_lshr_b32 s{sB}, s{sJ}, 2\ns_add_u32 s{sB}, s{sB}, s56")
        A(f"s_lshr_b32 s56, s57, 1\ns_lshl_b32 s56, s56, 4\ns_and_b32 s{sH}, s{sJ}, 3\ns_lshl_b32 s{sH}, s{sH}, 2\ns_add_u32 s{sH}, s{sH}, s56")
    else:
        A(f"s_lshl_b32 s56, s57, 2\ns_lshr_b32 s{sB}, s{sJ}, 3\ns_add_u32 s{sB}, s{sB}, s56\ns_and_b32 s{sH}, s{sJ}, 7\ns_lshl_b32 s{sH}, s{sH}, 2")
    if cfg.half:
        A(f"s_and_b32 s56, s{sB}, {cfg.half}\ns_cmp_lg_u32 s56, 0\ns_cbranch_scc1 L_done")
    A(f"s_lshl_b32 s{sKV}, s{sB}, 22\ns_lshl_b32 s56, s{sH}, 17\ns_add_u32 s{sKV}, s{sKV}, s56")
    A(f"s_mul_i32 s{sXo}, s{sB}, 110592\ns_lshl_b32 s{sWQo}, s{sH}, 8\ns_mul_i32 s{sWOo}, s{sH}, 147456")
    A(f"s_and_b32 s56, s2, 4\ns_lshl_b32 s56, s56, 2\ns_add_u32 s{sPAIR}, s56, s{sB}\ns_lshr_b32 s{sCU}, s{sH}, 2")
    for tau in range(9):
        A(f"s_add_u32 s56, s{sCU}, {1 + tau}\ns_cmp_ge_u32 s56, 9\ns_cselect_b32 s57, 9, 0\ns_sub_u32 s56, s56, s57\ns_lshl_b32 s{sTC + tau}, s56, 7")
    A(f"s_mov_b32 s{sIT}, 0\ns_mov_b32 s{sC}, {hex(f2u(math.log2(math.e) / math.sqrt(128.0)))}")
    A(f"s_cmp_eq_u32 s{sW}, 3\ns_cselect_b32 s56, s{sCU}, s{sW}\ns_mul_i32 s57, s{sPAIR}, 3\ns_add_u32 s56, s56, s57\ns_lshl_b32 s56, s56, 12\ns_add_u32 s{sFLG}, s56, {FLAGBASE}")
    A(f"s_cmp_eq_u32 s{sW}, 3\ns_cbranch_scc1 L_loader")


def descriptors(A):
    A("s_waitcnt lgkmcnt(0)")
    for d, b, n in ((SWQ, 12, 4718592), (SX, 40, 1769472), (SWS, 54, 290848768), (SK, 8, 0x4000000), (SV, 10, 0x4000000),
                    (SWO, 14, 4718592), (SWQ2, 12, 4718592), (SOUT, 76, 3538944), (SDB, 78, 256)):
        A(f"s_mov_b32 s{d}, s{b}\ns_mov_b32 s{d + 1}, s{b + 1}\ns_mov_b32 s{d + 2}, {n}\ns_mov_b32 s{d + 3}, 0x20000")


def tlb_warm(cfg, A, dst, tmp):
    n = 0
    if not cfg.tlb:
        return n
    A(f"v_lshlrev_b32 v{tmp}, {cfg.tlb}, v0\ns_mul_i32 s58, s{sPAIR}, 884736")
    for sr, base, span, fl in ((SK, f"s{sKV}", 1 << 19, " nt"), (SV, f"s{sKV}", 1 << 19, " nt"), (SWO, f"s{sWOo}", 589824, " nt"),
                               (SWQ, f"s{sWQo}", 4718592, " nt"), (SWS, "s58", 884736, " nt")):
        lanes = min(64, -(-span >> cfg.tlb))
        A(f"s_mov_b64 exec, {hex((1 << lanes) - 1)}" if lanes <= 32 else f"s_mov_b32 exec_lo, -1\ns_mov_b32 exec_hi, {hex((1 << (lanes - 32)) - 1)}")
        A(f"buffer_load_dword v{dst}, v{tmp}, {srd(sr)}, {base} offen{fl}")
        n += 1
    A("s_mov_b64 exec, -1")
    return n


def sample_flags(A):
    A(f"v_and_b32 v1, 7, v0\nv_lshlrev_b32 v1, 2, v1\nbuffer_load_dword v{vFL}, v1, {srd(SWS)}, s{sFLG} offen sc1")


STAMP_BASE = 64 << 20


def stamp(cfg, A, k, who):
    if not cfg.stamp:
        return 0
    A("s_memrealtime s[60:61]\ns_memtime s[64:65]\ns_waitcnt lgkmcnt(0)")
    A(f"s_lshl_b32 s62, s2, 10\ns_lshl_b32 s63, s{sIT}, 7\ns_add_u32 s62, s62, s63\ns_add_u32 s62, s62, {STAMP_BASE + who * 512 + 8 * k}")
    t = 18 if who else 0
    if who:
        A(f"v_mov_b32 v{t}, s60\nv_mov_b32 v{t + 1}, s64\nv_mov_b32 v{t + 2}, 0\nbuffer_store_dwordx2 v[{t}:{t + 1}], v{t + 2}, {srd(SWS)}, s62 offen")
    else:
        A(f"v_mov_b32 v0, s60\nv_mov_b32 v1, s64\nv_mov_b32 v2, 0\nbuffer_store_dwordx2 v[0:1], v2, {srd(SWS)}, s62 offen")
        A("s_nop 1\nv_mbcnt_lo_u32_b32 v0, -1, 0\nv_mbcnt_hi_u32_b32 v0, -1, v0")
    return 1


class Sched:
    def __init__(self, cfg):
        self.cfg = cfg
        self.bias = {}
        self.nbuf = 0
        self.out = Prog()

    def fbuf(self):
        i = self.nbuf % self.cfg.NB
        self.nbuf += 1
        return FR0 + 4 * i if i < 6 else FRX + 4 * (i - 6)

    def lds(self, op, reg, preg, a):
        b = self.bias[preg]
        if not (0 <= a - b <= 65535):
            nb = a & ~4095
            self.out(f"v_add_u32 v{preg}, {(nb - b) & 0xffffffff}, v{preg}")
            self.bias[preg] = b = nb
        if op.startswith("ds_read"):
            self.out(f"{op} {reg}, v{preg} offset:{a - b}")
        else:
            self.out(f"{op} v{preg}, {reg} offset:{a - b}")

    def rebias(self, preg, nb):
        b = self.bias[preg]
        if b != nb:
            self.out(f"v_add_u32 v{preg}, {(nb - b) & 0xffffffff}, v{preg}")
            self.bias[preg] = nb


def spread(fill, ops_list, s0, s1):
    n = s1 - s0 + 1
    cost = [2 if isinstance(o, str) and o.startswith("v_exp") else 1 for o in ops_list]
    tot = sum(cost)
    acc = 0
    for o, c in zip(ops_list, cost):
        k = min(n - 1, int((acc + c / 2) * n / tot))
        fill.setdefault(s0 + k, []).append(o)
        acc += c


def spread_bal(cfg, ops, fill, ops_list, s0, s1):
    if not cfg.balance:
        return spread(fill, ops_list, s0, s1)
    base = []
    for i in range(s0, s1 + 1):
        o = ops[min(i + cfg.LA, len(ops) - 1)]
        base.append(len(o["a"]) + (1 if i % cfg.waitgrp == 0 else 0) + sum(VMCOST if isinstance(f, tuple) else 1 for f in fill.get(i, [])))
    cost = [2 if isinstance(o, str) and o.startswith("v_exp") else 1 for o in ops_list]
    level = (sum(cost) + sum(base)) / len(base)
    k, room = 0, level - base[0]
    for o, c in zip(ops_list, cost):
        while k < len(base) - 1 and room < c / 2:
            k += 1
            room += level - base[k]
        fill.setdefault(s0 + k, []).append(o)
        room -= c


def k_patterns(A, xform, off=None):
    A("v_lshrrev_b32 v1, 5, v0\nv_and_b32 v2, 31, v0\nv_lshrrev_b32 v16, 1, v2\nv_and_b32 v16, 7, v16\nv_xor_b32 v16, v16, v1")
    if xform:
        A("v_lshlrev_b32 v2, 7, v2")
        if off:
            A(f"v_add_u32 v2, s{off}, v2")
    else:
        A("v_lshrrev_b32 v17, 2, v2\nv_and_b32 v2, 3, v2\nv_lshlrev_b32 v2, 7, v2\nv_lshl_add_u32 v2, v17, 10, v2")
    for j in range(4):
        A(f"v_xor_b32 v17, {2 * j}, v16\nv_lshl_add_u32 v{pK[j]}, v17, 4, v2")


def lane_patterns(A, with_wave_offset):
    k_patterns(A, True, sT4K if with_wave_offset else None)
    A("v_lshrrev_b32 v2, 2, v0\nv_and_b32 v2, 3, v2\nv_lshrrev_b32 v3, 1, v2\nv_lshlrev_b32 v3, 6, v3")
    A("v_lshrrev_b32 v16, 4, v0\nv_and_b32 v16, 1, v16\nv_and_b32 v17, 1, v0\nv_lshrrev_b32 v18, 1, v0\nv_and_b32 v18, 1, v18")
    A("v_lshl_add_u32 v19, v1, 2, v2\nv_lshlrev_b32 v19, 7, v19\nv_lshl_add_u32 v20, v1, 3, v2\nv_lshlrev_b32 v20, 7, v20")
    A("v_lshlrev_b32 v21, 5, v16\nv_lshl_add_u32 v21, v17, 3, v21\nv_lshl_add_u32 v21, v18, 4, v21\nv_lshl_add_u32 v21, v2, 7, v21\nv_lshl_add_u32 v21, v1, 10, v21")
    A(f"v_add_u32 v{pV[0]}, v21, v3\nv_xor_b32 v{pV[1]}, 64, v{pV[0]}")
    A("v_lshlrev_b32 v21, 5, v16\nv_lshl_add_u32 v21, v17, 4, v21\nv_lshl_add_u32 v21, v18, 3, v21\nv_add_u32 v21, v21, v20")
    A(f"v_add_u32 v{pWq[0]}, v21, v3\nv_xor_b32 v{pWq[1]}, 64, v{pWq[0]}")
    A("v_lshlrev_b32 v21, 5, v17\nv_lshl_add_u32 v21, v16, 4, v21\nv_lshl_add_u32 v21, v18, 3, v21\nv_add_u32 v21, v21, v19")
    A(f"v_add_u32 v{pWo[0]}, v21, v3\nv_xor_b32 v{pWo[1]}, 64, v{pWo[0]}")


def kv_offsets(A, dk, dv):
    A("v_lshrrev_b32 v1, 3, v0\nv_and_b32 v1, 3, v1\nv_and_b32 v2, 7, v0\nv_lshrrev_b32 v16, 5, v0\nv_lshlrev_b32 v16, 7, v16\nv_lshl_add_u32 v16, v1, 8, v16")
    A(f"v_lshrrev_b32 v1, 1, v1\nv_xor_b32 v17, v1, v2\nv_lshl_add_u32 v{dk}, v17, 4, v16")
    A(f"v_lshlrev_b32 v1, 2, v1\nv_xor_b32 v17, v1, v2\nv_lshl_add_u32 v{dv}, v17, 4, v16")


def finish_unit(cfg, A, tag, nsrc, acc, w_sreg, t_sreg, publish, G=32):
    A("v_and_b32 v10, 7, v0\nv_lshlrev_b32 v1, 2, v10\nv_lshlrev_b32 v6, 4, v0")
    A(f"buffer_load_dword v2, v1, {srd(SWS)}, s{sFLG} offen sc1")
    A(f"s_mul_i32 s56, s{sPAIR}, 884736\ns_mul_i32 s57, s{t_sreg}, 3\ns_add_u32 s57, s57, s{w_sreg}\ns_lshl_b32 s57, s57, 15\ns_add_u32 s56, s56, s57")
    A(f"s_mul_i32 s60, s{sB}, 96\ns_lshl_b32 s58, s{w_sreg}, 5\ns_add_u32 s60, s60, s58\ns_mul_i32 s60, s60, 2304\ns_lshl_b32 s58, s{t_sreg}, 7\ns_add_u32 s60, s60, s58")
    A("s_and_b32 s58, s2, 4\ns_mul_i32 s58, s58, 288\ns_add_u32 s60, s60, s58")
    A("v_and_b32 v7, 31, v0\nv_mul_u32_u24 v7, 2304, v7\nv_lshrrev_b32 v3, 5, v0\nv_lshl_add_u32 v7, v3, 5, v7")
    A(f"v_sub_u32 v10, s{t_sreg}, v10\nv_add_u32 v3, 9, v10\nv_cmp_gt_i32 vcc, 1, v10\nv_cndmask_b32 v10, v10, v3, vcc")
    A(f"s_mov_b32 s62, {((1 << nsrc) - 1) << 1}\ns_mov_b32 s58, 0\ns_mov_b32 s64, {nsrc}")
    if nsrc == 8:
        for k in range(32):
            A(f"v_mov_b32 v{acc + k}, 0")
    A("v_and_b32 v4, 31, v0\nv_lshrrev_b32 v5, 5, v0\nv_lshlrev_b32 v5, 2, v5\nv_sub_u32 v4, v4, v5\nv_mov_b32 v8, 0x3f80\nv_mov_b32 v9, 0x3f800000")
    for u in range(2):
        for i in range(4):
            m0 = 16 * u + 8 * (i >> 1) + 2 * (i & 1)
            A(f"v_cmp_eq_u32 vcc, {m0}, v4\nv_cmp_eq_u32 s[66:67], {m0 + 1}, v4\nv_mov_b32 v5, 0\nv_cndmask_b32 v5, v5, v8, vcc\nv_cndmask_b32 v{24 + 4 * u + i}, v5, v9, s[66:67]")
    if publish:
        A(f"v_add_u32 v3, 8, v{vFL}\ns_lshl_b32 s66, 1, s{sCU}\ns_mov_b32 s67, 0\ns_waitcnt vmcnt(0)\ns_mov_b64 exec, s[66:67]")
        A(f"buffer_store_dword v3, v1, {srd(SWS)}, s{sFLG} offen sc1\ns_mov_b64 exec, -1\ns_branch L_chk{tag}")
    A(f"L_poll{tag}:\ns_waitcnt vmcnt(0)\nL_chk{tag}:\nv_sub_u32 v3, v2, v{vFL}\nv_cmp_ge_u32 vcc, v3, v10")
    A(f"s_and_b32 s63, vcc_lo, 0xffff\ns_lshr_b32 s63, s63, s{sCU}\ns_and_b32 s63, s63, s62\ns_cbranch_scc1 L_some{tag}")
    A(f"s_add_u32 s58, s58, 1\ns_cmp_gt_u32 s58, 0x100000\ns_cbranch_scc1 L_out{tag}\ns_sleep {cfg.psleep}")
    A(f"buffer_load_dword v2, v1, {srd(SWS)}, s{sFLG} offen sc1\ns_branch L_poll{tag}\nL_some{tag}:")
    for i in range(nsrc, 0, -1):
        A(f"s_bitcmp1_b32 s63, {i}\ns_cbranch_scc0 L_nl{tag}{i}")
        A(f"s_add_u32 s57, s{sCU}, {i}\ns_and_b32 s57, s57, 7\ns_lshl_b32 s57, s57, 12\ns_add_u32 s57, s57, s56")
        for p in range(4):
            A(f"buffer_load_dwordx4 {R('v', G + 16 * (i - 1) + 4 * p, 4)}, v6, {srd(SWS)}, s57 offen offset:{1024 * p}{cfg.gf}")
        A(f"L_nl{tag}{i}:")
    A(f"buffer_load_dword v2, v1, {srd(SWS)}, s{sFLG} offen sc1\ns_andn2_b32 s62, s62, s63\ns_waitcnt vmcnt(1)")
    for i in range(nsrc, 0, -1):
        A(f"s_cmp_lg_u32 s64, {i}\ns_cbranch_scc1 L_na{tag}{i}\ns_bitcmp1_b32 s62, {i}\ns_cbranch_scc1 L_poll{tag}")
        for p in range(4):
            d = R("v", acc + 16 * (p >> 1), 16)
            A(f"{MF} {d}, {R('v', 24 + 4 * (p & 1), 4)}, {R('v', G + 16 * (i - 1) + 4 * p, 4)}, {d}")
        A(f"s_mov_b32 s64, {i - 1}\nL_na{tag}{i}:")
    A(f"L_out{tag}:\ns_nop 15")
    for p in range(4):
        for k in range(4):
            A(f"v_cvt_pk_bf16_f32 v{8 + 4 * p + k}, v{acc + 8 * p + 2 * k}, v{acc + 8 * p + 2 * k + 1}")
        A(f"buffer_store_dwordx4 {R('v', 8 + 4 * p, 4)}, v7, {srd(SOUT)}, s60 offen offset:{64 * (p >> 1) + 16 * (p & 1)}{cfg.of}")
    if cfg.stamp and publish:
        A("s_waitcnt vmcnt(0)")
        stamp(cfg, A, 5, 0)
    A("s_endpgm")


def last_fill(cfg, fb):
    for t in range(1, 9):
        s0 = 256 + 16 * t
        if t in cfg.pubs:
            fb.setdefault(s0 + 2, []).append({"pub": cfg.pubs[t]})
        spread(fb, store_block(cfg, 2 * t - 2, Q0, P0) + store_block(cfg, 2 * t - 1, Q0 + 16, P0 + 8), s0 + 3, s0 + 15)
    fb.setdefault(274, []).append(f"v_and_b32 v1, 7, v0\nv_lshlrev_b32 v1, 2, v1\ns_lshl_b32 s64, 1, s{sCU}\ns_mov_b32 s65, 0")


vK, vV, vWq, vWo, vX = 24, 28, 32, 36, 176
W3A = 40
W3B = 52
W3X = 76
W3ACC = 160
vTQ, vTO, vTX, vDUM = 12, 13, 14, 15
pQ3 = 22


def xreg(ks, j):
    i = ks * 3 + j
    return R("a", 4 * i, 4) if i < 64 else R("v", W3X + 4 * (i - 64), 4)


def wave3(cfg, pl):
    addr = pl.addr
    sc = Sched(cfg)
    A = sc.out
    A("L_loader:")
    if cfg.prof:
        A("s_mov_b32 s96, 0\ns_mov_b32 s97, 0\ns_mov_b32 s98, 0\ns_mov_b32 s99, 0")
    lane_patterns(A, False)
    A(f"v_lshlrev_b32 v{pQ3}, 4, v0")
    for p in pK + pWq + [pQ3]:
        sc.bias[p] = 0
    A("v_lshrrev_b32 v1, 3, v0\nv_and_b32 v2, 7, v0\nv_lshrrev_b32 v3, 4, v0")
    A("v_and_b32 v16, 1, v3\nv_lshlrev_b32 v16, 2, v16\nv_xor_b32 v16, v16, v2\nv_lshlrev_b32 v16, 4, v16")
    A("v_lshlrev_b32 v18, 8, v1\nv_lshlrev_b32 v19, 13, v1\nv_mul_u32_u24 v20, 1152, v1")
    for g in range(4):
        A(f"v_add_u32 v17, {4 * g}, v3\nv_and_b32 v17, 7, v17\nv_xor_b32 v17, v17, v2\nv_lshlrev_b32 v17, 4, v17")
        A(f"v_add_u32 v17, {g * (9216 - 1024)}, v17\nv_add_u32 v{vX + g}, v17, v20")
        A(f"v_add_u32 v17, {g * (65536 - 1024)}, v16\nv_add_u32 v{vWq + g}, v17, v19")
        A(f"v_add_u32 v17, {g * (9216 - 1024)}, v16\nv_add_u32 v{vWo + g}, v17, v20")
    kv_offsets(A, vK, vV)
    for g in range(1, 4):
        A(f"v_xor_b32 v{vK + g}, {32 * g}, v{vK}\nv_mov_b32 v{vV + g}, v{vV}")
    nsh = {"16x8": 16, "8x16": 8, "4x32": 4}[cfg.mapping]
    xsh = 32 // nsh
    rows = 576 // nsh
    A(f"s_and_b32 s56, s{sB}, {nsh - 1}\nv_mov_b32 v21, 0x7fffff00\nv_cmp_gt_u32 vcc, 36, v0")
    A(f"v_lshrrev_b32 v{vTQ}, 1, v0\nv_lshlrev_b32 v{vTQ}, 13, v{vTQ}\nv_and_b32 v17, 1, v0\nv_lshlrev_b32 v17, 7, v17\nv_add_u32 v{vTQ}, v{vTQ}, v17")
    A(f"s_mul_i32 s57, s56, {rows * 8192}\nv_add_u32 v{vTQ}, s57, v{vTQ}\nv_cndmask_b32 v{vTQ}, v21, v{vTQ}, vcc")
    A(f"v_lshlrev_b32 v{vTO}, 7, v0\ns_mul_i32 s57, s56, {rows * 256}\nv_add_u32 v{vTO}, s57, v{vTO}\nv_cndmask_b32 v{vTO}, v21, v{vTO}, vcc")
    A(f"v_cmp_gt_u32 vcc, 54, v0\nv_lshlrev_b32 v{vTX}, 7, v0\ns_and_b32 s57, s{sCU}, {xsh - 1}\ns_mul_i32 s57, s57, {110592 // xsh}\nv_add_u32 v{vTX}, s57, v{vTX}")
    A(f"v_cndmask_b32 v{vTX}, v21, v{vTX}, vcc")

    def touch_ops(vreg, srd_, base, add, step, nl=rows * 2, per=36):
        l = []
        if not cfg.pf:
            return l
        for i in range(nl // per):
            l.append(f"s_add_u32 s{sTMP}, s{base}, {i * per * step + add}")
            for fl in ((" nt", "") if cfg.dbl else ("",)):
                l.append(("vm", f"buffer_load_dword v{vDUM}, v{vreg}, {srd(srd_)}, s{sTMP} offen{fl}"))
        return l

    def quad_ops(q, w=False):
        k = q[0]
        pre = []
        if k == "k":
            off, base, v, sr, fl = q[1] * 8192 + q[2] * 4096, sKV, vK, SK, cfg.kvf
        elif k == "v":
            off, base, v, sr, fl = q[1] * 8192 + q[2] * 4096, sKV, vV, SV, cfg.kvf
        elif k == "wq":
            off, base, v, sr, fl = (q[1] * 64 + q[2] * 32) * 8192 + q[3] * 128, sWQo, vWq, SWQ, cfg.wf
        elif k == "wq3":
            off, base, v, sr, fl = (q[2] * 64 + q[3] * 32) * 8192 + q[1] * 128 + 256, sWQo, vWq, (SWQ2 if w else SWQ), cfg.wf
        elif k == "x":
            off, base, v, sr, fl = q[2] * 32 * 1152 + q[1] * 128, sXo, vX, SX, cfg.xf
        else:
            pre = [f"s_add_u32 s{sTMP}, s{sWOo}, s{sTC + q[1]}"]
            off, base, v, sr, fl = q[2] * 32 * 1152, sTMP, vWo, SWO, cfg.wf
        l = pre + [f"s_mov_b32 m0, {addr[q]}", f"s_add_u32 s{sTMP}, s{base}, {off}"]
        for g in range(4):
            if not cfg.noload:
                l.append(("vm", f"buffer_load_dwordx4 v{v + g}, {srd(sr)}, s{sTMP} offen offset:{g * 1024}{fl} lds", q, g))
        return l

    lin = []

    def put(sc_, o, gen=0):
        if isinstance(o, tuple):
            sc_.out(o[1])
            lin.append((o[2] if len(o) > 2 else None, gen))
        elif callable(o):
            o(sc_)
        else:
            sc_.out(o)

    def wait_for(sc_, quads, gen):
        if cfg.noload:
            return
        last = max(k for k, e in enumerate(lin) if e[0] in quads and e[1] == gen)
        sc_.out(f"s_waitcnt vmcnt({min(63, len(lin) - 1 - last)})")

    def bar(sc_):
        if not cfg.nobar:
            sc_.out("s_barrier")

    descriptors(A)
    if stamp(cfg, A, 15, 1):
        lin.append((None, 0))
    if cfg.delay:
        A(f"s_and_b32 s56, s{sB}, 1\ns_cmp_eq_u32 s56, 0\ns_cbranch_scc1 L_nodelay")
        for _ in range(cfg.delay):
            A("s_sleep 32")
        A("L_nodelay:")
    for n_, q in enumerate(pl.sissue[-1]):
        for o in quad_ops(q):
            put(sc, o)
        if n_ == 6:
            sample_flags(A)
            lin.append((("flag",), 0))
    bias0 = {p: XRES for p in pK}
    bias0.update({p: WRB for p in pWq})
    bias0[pQ3] = QBUF
    ops = w3_ops(cfg)
    quads = w3_quads()
    ns = len(pl.grp)

    def conv_tile(p, hb, j):
        acc = W3ACC + 16 * (3 * hb + j)
        l = []
        for s in range(2):
            pk = W3B + 8 + 4 * s
            for k in range(4):
                t0 = W3B + 2 * (k & 1)
                r = acc + 8 * s + 2 * k
                l += [f"v_mul_f32 v{t0}, s{sC}, v{r}", f"v_mul_f32 v{t0 + 1}, s{sC}, v{r + 1}", f"v_cvt_pk_bf16_f32 v{pk + k}, v{t0}, v{t0 + 1}"]
            l.append(lambda sc_, pk=pk, a=QBUF + (j * 4 + hb * 2 + s) * 1024: sc_.lds("ds_write_b128", R("v", pk, 4), pQ3, a))
        return l

    def period(last, pro):
        nonlocal lin
        sc2 = Sched(cfg)
        sc2.bias = dict(bias0)
        B = sc2.out
        lin = [(q, 0) for q in pro for g in range(4)] if not cfg.noload else []
        myops = [] if last else copy.deepcopy(ops)
        n = len(myops)
        fill = {}
        bpos = {s: (sum(cfg.quota[:s]) if not last else 0) for s in range(ns + 1)}
        enq = {}
        if not last:
            lastidx = {(o["p"], o["hb"], o["j"]): i for i, o in enumerate(ops) if o["last"]}
            for p, hb in ((0, 0), (1, 0), (0, 1)):
                i0 = lastidx[(p, hb, 2)]
                spread(fill, sum((conv_tile(p, hb, j) for j in range(3)), []), i0 + 4, i0 + 12)
            assert lastidx[(0, 1, 2)] + 16 <= bpos[18] and lastidx[(1, 0, 2)] + 4 >= bpos[19]
            firstop = {q: min(i for i, o in enumerate(ops) if o["q"] == q) for q in quads}
            lastop = {q: max(i for i, o in enumerate(ops) if o["q"] == q) - 2 for q in quads}
            seg = lambda i: max(s for s in range(ns) if bpos[s] <= i)
            at = 0
            for k in range(36, 72):
                prev = max(j for j in range(k) if addr[quads[j % 36]] == addr[quads[k % 36]])
                free = lastop[quads[prev % 36]] + 1 + (prev // 36 - 1) * n
                sneed = seg(firstop[quads[k % 36]]) - cfg.raq
                early = bpos[sneed] if sneed >= 0 else bpos[sneed + ns] - n
                at = max(free, early) if k == 36 else max(at, free, early)
                assert at <= firstop[quads[k % 36]] - 5
                enq.setdefault(at % n if at < 0 else at, []).append((quads[k % 36], at < 0))
        st = dict(wrapq=False, wrapg=False, rdA=0, rdB=0, abuf=0, bbuf=0, step=-1)
        queue = []

        def drain(nvm):
            while queue and nvm > 0:
                o, g = queue.pop(0)
                put(sc2, o, g)
                nvm -= isinstance(o, tuple)

        def open_step(s):
            if cfg.trace is True:
                B(f"s_memtime s[60:61]\ns_waitcnt lgkmcnt(0)\nv_writelane_b32 v2, s60, {s}")
            wait_for(sc2, {pl.grp[s][3]}, 0)
            if cfg.trace is True:
                B(f"s_memtime s[60:61]\ns_waitcnt lgkmcnt(0)\nv_writelane_b32 v2, s60, {32 + s}")
            if s in (0, 16):
                if stamp(cfg, B, {0: 1, 16: 2}[s], 1):
                    lin.append((None, 0))
            if last and s == 16:
                B("v_readfirstlane_b32 s57, v17\ns_mov_b32 s58, 0\nL_chk:\ns_cmp_ge_u32 s57, 8\ns_cbranch_scc1 L_chkend")
                B(f"buffer_load_dword v17, v16, {srd(SDB)}, 0 offen sc1\ns_add_u32 s58, s58, 1\ns_waitcnt vmcnt(0)\nv_readfirstlane_b32 s57, v17")
                B("s_cmp_lt_u32 s58, 0x80000\ns_cbranch_scc1 L_chk\nL_chkend:")
            bar(sc2)
            for g, w in pl.req[s]:
                if w and not st["wrapg"]:
                    st["wrapg"] = True
                    queue.append((f"s_add_u32 s{sKV}, s{sKV}, 0x20000", 0))
                assert g >= 16 or w == st["wrapg"]
                if not (last and w):
                    queue.extend((o, int(w)) for o in quad_ops(pl.grp[g][3]))
            if last and s == 2:
                queue.extend([(f"s_lshl_b32 s56, s{sPAIR}, 2", 0), ("v_mov_b32 v16, s56", 0), (("vm", f"buffer_load_dword v17, v16, {srd(SDB)}, 0 offen sc1"), 0)])
            if s == cfg.pf_wo_step:
                queue.extend((o, 0) for o in touch_ops(vTO, SWO, sWOo, 0, 128))
            if s == cfg.pf_wq_step and not last:
                queue.append((f"s_cmp_eq_u32 s{sIT}, 2\ns_cselect_b32 s{SWQ2 + 2}, 0, s{SWQ2 + 2}", 0))
                queue.extend((o, 0) for o in touch_ops(vTQ, SWQ2, sWQo, 512, 4096))
            if cfg.warm and s == 9 and not last:
                queue.append(("s_call_b64 s[40:41], L_warm_more", 0))
            if bpos[s + 1] == bpos[s]:
                drain(99)
            st["step"] = s

        for i in range(n):
            while st["step"] + 1 < ns and bpos[st["step"] + 1] <= i:
                open_step(st["step"] + 1)
            for q, w in enq.get(i, []):
                if w and not st["wrapq"]:
                    st["wrapq"] = True
                    queue.append((f"s_add_u32 s{sWQo}, s{sWQo}, 256", 0))
                assert w == st["wrapq"]
                queue.extend((o, int(w)) for o in quad_ops(q, w))
            while st["rdA"] < n and st["rdA"] <= i + 5:
                o = myops[st["rdA"]]
                if st["rdA"] == firstop[o["q"]] and not cfg.noload:
                    while lin.count((o["q"], 0)) < 4:
                        drain(1)
                    wait_for(sc2, {o["q"]}, 0)
                fb = W3A + 4 * (st["abuf"] % 3)
                st["abuf"] += 1
                qa = addr[o["q"]] + 16 * o["s2"] * 128
                sc2.lds("ds_read_b64_tr_b16", R("v", fb, 2), pWq[o["hb"]], qa)
                sc2.lds("ds_read_b64_tr_b16", R("v", fb + 2, 2), pWq[o["hb"]], qa + 4 * 128)
                for d in range(3):
                    myops[st["rdA"] + d]["areg"] = fb
                st["rdA"] += 3
            while st["rdB"] < n and st["rdB"] <= i + 5:
                o = myops[st["rdB"]]
                if o["ks"] < 28:
                    o["breg"] = xreg(o["ks"], o["j"])
                elif o["hb"] == 0:
                    bb = W3B + 4 * (st["bbuf"] % 6)
                    st["bbuf"] += 1
                    sc2.lds("ds_read_b128", R("v", bb, 4), pK[o["ks"] & 3], XRES + (((o["ks"] >> 2) - 7) * 3 + o["j"]) * 4096)
                    assert myops[st["rdB"] + 3]["ks"] == o["ks"]
                    o["breg"] = myops[st["rdB"] + 3]["breg"] = R("v", bb, 4)
                st["rdB"] += 1
            drain(1)
            for o in fill.get(i, []):
                put(sc2, o)
            o = myops[i]
            d = R("v", W3ACC + 16 * (3 * o["hb"] + o["j"]), 16)
            B(f"{MF} {d}, {R('v', o['areg'], 4)}, {o['breg']}, {'0' if o['first'] else d}")
        drain(99)
        if not last:
            for o in sum((conv_tile(1, 1, j) for j in range(3)), []):
                put(sc2, o)
            B("s_waitcnt lgkmcnt(0)")
            assert st["step"] + 1 < ns
        while st["step"] + 1 < ns:
            open_step(st["step"] + 1)
        tailq = [e[0] for e in lin if e[1] == 1][::4]
        if not last:
            B(f"s_add_u32 s{sWOo}, s{sWOo}, 147456")
            for p, b in bias0.items():
                sc2.rebias(p, b)
            if cfg.trace is True:
                B(f"s_cmp_lg_u32 s{sIT}, {cfg.trace_it}\ns_cbranch_scc1 L_notr3\nv_lshlrev_b32 v1, 2, v0\ns_lshl_b32 s62, s2, 10\ns_add_u32 s62, s62, {STAMP_BASE + 768}")
                B(f"buffer_store_dword v2, v1, {srd(SWS)}, s62 offen\ns_waitcnt vmcnt(0)\nL_notr3:")
            B(f"s_add_u32 s{sIT}, s{sIT}, 1\ns_cmp_lt_u32 s{sIT}, 3\ns_cbranch_scc1 L_w3loop")
        body, pe = lgkm_pass(B.ins)
        assert not pe
        return body, tailq

    lin0 = list(lin)
    _, pro = period(False, [pl.grp[g][3] for g in pl.pro] + quads[:cfg.WR])
    loopbody, pro2 = period(False, pro)
    assert pro2 == pro
    lastp, _ = period(True, pro)
    lin = lin0
    if cfg.noload:
        pro = []
    todo = list(pro)
    for t in range(9):
        wait_for(sc, set(pl.start[t]) | ({("flag",)} if t == 0 else set()), 0)
        A("s_waitcnt lgkmcnt(0)")
        bar(sc)
        if t == 0:
            A(f"s_lshl_b32 s56, s{sPAIR}, 2\nv_mov_b32 v16, s56\nv_mov_b32 v17, 1\ns_mov_b64 exec, 1")
            put(sc, ("vm", f"buffer_atomic_add v17, v16, {srd(SDB)}, 0 offen sc1"))
            A("s_mov_b64 exec, -1")
        if t < 7:
            for s in range(4):
                for j in range(3):
                    sc.lds("ds_read_b128", xreg(4 * t + s, j), pK[s], addr[("x", t, j)])
        if t == cfg.pf_wq0_step:
            for o in touch_ops(vTQ, SWQ, sWQo, 256, 4096):
                put(sc, o)
        for q in pl.sissue[t]:
            for o in quad_ops(q):
                put(sc, o)
        while todo:
            q = todo[0]
            if q[0] == "wq3":
                if pl.slast.get(addr[q], -9) >= t:
                    break
                if any(pl.sissue[b] for b in range(t + 1, 9)):
                    break
            elif not any(pl.grp[g][3] == q for b in range(-1, t + 1) for g in pl.sreq[b]):
                break
            for o in quad_ops(todo.pop(0)):
                put(sc, o)
    assert not todo
    for p, b in bias0.items():
        sc.rebias(p, b)
    A("s_waitcnt lgkmcnt(0)")
    head, pend = lgkm_pass(sc.out.ins)
    loop = [parse("L_w3loop:")] + loopbody
    T = Prog()
    if cfg.prof:
        T(f"v_mov_b32 v16, s96\nv_mov_b32 v17, s97\nv_mov_b32 v18, s98\nv_mov_b32 v19, s99\nv_mov_b32 v20, 0\ns_lshl_b32 s62, s2, 10\ns_add_u32 s62, s62, {STAMP_BASE + 512 + 64}")
        T(f"buffer_store_dwordx4 v[16:19], v20, {srd(SWS)}, s62 offen")
    T(f"s_cmp_ge_u32 s{sCU}, 3\ns_cbranch_scc1 L_done")
    T("s_mov_b32 s61, 8")
    finish_unit(cfg, T, "w3", 8, 192, sCU, 61, False)
    allins, nn = hazard_pass(head + loop + lastp + T.ins, verbose=cfg.dbg == "nops3")
    return allins, dict(w3nops=nn, w3est=est_cycles(loop))


def acc_out(nb):
    return R("a", 16 * nb, 16) if nb < 16 else R("v", OUTV + 16 * (nb - 16), 16)


def q_ops(addr):
    ops = []
    XB = S0
    for t in range(9):
        order = [(s, b) for s in range(4) for b in range(4)] if t < 8 else [(s, b) for b in range(4) for s in range(4)]
        seen = set()
        for (s, b) in order:
            qa = addr[("wq", t, s >> 1, b >> 1)] + (16 * (s & 1)) * 128
            xb = XB + 4 * ((t * 4 + s) % 8)
            o = dict(step=t, a=[("tr", pWq[b & 1], qa), ("tr", pWq[b & 1], qa + 4 * 128)], b=R("v", xb, 4), d=R("v", O0 + 16 * b, 16))
            o["c"] = "0" if (t == 0 and s == 0) else o["d"]
            if s not in seen:
                seen.add(s)
                o["x"] = (xb, pK[s], addr[("x", t, 0)])
            ops.append(o)
    return ops


def item_ops(addr):
    ops = []

    def qk(u, step):
        for ds in range(8):
            d = R("v", S0 + 16 * (u & 1) if u else O0, 16)
            c = d if ds else ("0" if u < 2 else R("v", NEGM, 16))
            ops.append(dict(step=step, a=[("b128", pK[ds & 3], addr[("k", u, 0)] + (ds >> 2) * 512)], b=R("v", Q0 + 4 * ds, 4), d=d, c=c))

    def pv(u, step, bmajor=False):
        order = [(s, b) for s in range(2) for b in range(4)] if not bmajor else [(s, b) for b in range(4) for s in range(2)]
        for (s, b) in order:
            va = addr[("v", u, s)] + (b >> 1) * 512
            d = R("v", O0 + 16 * b, 16)
            ops.append(dict(step=step, a=[("tr", pV[b & 1], va), ("tr", pV[b & 1], va + 2048)],
                            b=R("v", P0 + 8 * (u & 1) + 4 * s, 4), d=d, c="0" if (u == 0 and s == 0) else d))
    qk(0, 0)
    qk(1, 0)
    for u in range(1, 15):
        qk(u + 1, u)
        pv(u - 1, u)
    pv(14, 15)
    pv(15, 15, True)
    for t in range(9):
        for b in range(4):
            for s in range(2):
                for half in range(2):
                    wa = addr[("wo", t, b)] + 16 * s * 128
                    d = acc_out(2 * t + half)
                    ops.append(dict(step=16 + t, a=[("tr", pWo[half], wa), ("tr", pWo[half], wa + 8 * 128)],
                                    b=R("v", OF + 8 * b + 4 * s, 4), d=d, c=d, alt=(b == 0 and s == 0)))
    assert len(ops) == 400
    return ops


def softmax_ops(u, first=False):
    S, P = S0 + 16 * (u & 1), P0 + 8 * (u & 1)
    if first:
        S = O0
    l = []
    for k in range(8):
        a, b = vT[2 * (k & 1)], vT[2 * (k & 1) + 1]
        pa, pb = vT[2 * ((k - 1) & 1)], vT[2 * ((k - 1) & 1) + 1]
        l.append(f"v_exp_f32 v{a}, v{S + 2 * k}")
        if k == 1:
            l.append(f"v_add_f32 v{vBS}, v{pa}, v{pb}")
        elif k > 1:
            l.append(f"v_add_f32 v{vBS}, v{vBS}, v{pa}")
        l.append(f"v_exp_f32 v{b}, v{S + 2 * k + 1}")
        if k > 1:
            l.append(f"v_add_f32 v{vBS}, v{vBS}, v{pb}")
        if k >= 1:
            l.append(f"v_cvt_pk_bf16_f32 v{P + k - 1}, v{pa}, v{pb}")
    a, b = vT[2], vT[3]
    l.append(f"v_add_f32 v{vBS}, v{vBS}, v{a}")
    l.append(f"v_cvt_pk_bf16_f32 v{P + 7}, v{a}, v{b}")
    l.append(f"v_add_f32 v{vBS}, v{vBS}, v{b}")
    return l


def conv_block(b, scale, dst):
    l = []
    for k in range(8):
        r = O0 + 16 * b + 2 * k
        l.append(f"v_mul_f32 v{r}, {scale}, v{r}")
        l.append(f"v_mul_f32 v{r + 1}, {scale}, v{r + 1}")
        if k:
            l.append(f"v_cvt_pk_bf16_f32 v{dst + 8 * b + k - 1}, v{r - 2}, v{r - 1}")
    l.append(f"v_cvt_pk_bf16_f32 v{dst + 8 * b + 7}, v{O0 + 16 * b + 14}, v{O0 + 16 * b + 15}")
    return l


def rowmax(S):
    l = [f"v_max3_f32 v{vM}, v{S}, v{S + 1}, v{S + 2}"]
    for k in range(6):
        l.append(f"v_max3_f32 v{vM}, v{vM}, v{S + 3 + 2 * k}, v{S + 4 + 2 * k}")
    l.append(f"v_max_f32 v{vM}, v{vM}, v{S + 15}")
    l.append(f"v_mov_b32 v{vM2}, v{vM}")
    l.append(f"v_permlane32_swap_b32 v{vM}, v{vM2}")
    l.append(f"v_max_f32 v{vM}, v{vM}, v{vM2}")
    return l


def with_subs(S, sm):
    sub = [f"v_sub_f32 v{S + i}, v{S + i}, v{vM}" for i in range(16)]
    l, k = sub[:4], 4
    for o in sm:
        l.append(o)
        if o.startswith("v_exp") and k < 16:
            l.append(sub[k])
            k += 1
    return l


def item_fill(cfg, ops, fill):
    post = {}
    chk = [f"v_cmp_lt_f32 vcc, s{sTHR}, v{vBS}"]
    spread(fill, rowmax(O0) + [f"v_sub_f32 v{NEGM + i}, 0, v{vM}" for i in range(16)], 11, 15)
    spread(fill, with_subs(O0, softmax_ops(0, True)) + [f"v_mov_b32 v{vL}, v{vBS}"], 16, 23)
    spread(fill, with_subs(S0 + 16, softmax_ops(1)) + chk, 24, 31)
    post[31] = 1
    for u in range(2, 15):
        su = 16 * u
        spread_bal(cfg, ops, fill, softmax_ops(u) + chk, su, su + 15)
        post[su + 15] = u
    spread(fill, softmax_ops(15) + chk, 240, 247)
    post[247] = 15
    spread(fill, [f"v_mov_b32 v{vM2}, v{vL}", f"v_permlane32_swap_b32 v{vL}, v{vM2}", f"v_add_f32 v{vL}, v{vL}, v{vM2}",
                  f"v_rcp_f32 v{vM}, v{vL}"], 249, 252)
    spread(fill, conv_block(0, f"v{vM}", OF), 253, 255)
    spread(fill, conv_block(1, f"v{vM}", OF), 256, 259)
    spread(fill, conv_block(2, f"v{vM}", OF), 260, 263)
    spread(fill, conv_block(3, f"v{vM}", OF), 264, 267)
    return post


def store_block(cfg, nb, tmp, pk):
    l = []
    if not nb & 1:
        l += [f"s_mul_i32 s56, s{sTC + (nb >> 1)}, 768", f"s_add_u32 s56, s56, s{sWSo}"]
    for u in range(2):
        for k in range(8):
            l.append(f"v_accvgpr_read_b32 v{tmp + 8 * u + k}, a{16 * nb + 8 * u + k}")
        for k in range(4):
            i = 8 * u + 2 * k
            l.append(f"v_cvt_pk_bf16_f32 v{pk + 4 * u + k}, v{tmp + i}, v{tmp + i + 1}")
        l.append((f"buffer_store_dwordx4 {R('v', pk + 4 * u, 4)}, v{vST}, {srd(SWS)}, s56 offen offset:{((nb & 1) * 2 + u) * 1024}{cfg.pstf}", ("st", nb >> 1)))
    return l


VMCOST = 4


def emit_slots(cfg, sc, ops, fill, post, lo, hi, st, stubs, stamps={}, nextops=None):
    LA = cfg.LA
    first = {}
    if nextops:
        ops = ops + [dict(o, step=ops[-1]["step"] + 1) for o in nextops]
    for i, o in enumerate(ops):
        first.setdefault(o["step"], i)
    for i in range(lo, hi):
        nx = st["step"] + 1
        if nextops and nx == ops[-1]["step"] and i >= first[nx] - cfg.LB:
            st["tag"], st["alias"] = "n", 0
            for p, b in st["rebias"].items():
                sc.rebias(p, b)
        if nx in first and i >= first[nx] - (cfg.LB if nx else LA):
            if nx in stamps and stamp(cfg, sc.out, stamps[nx], 0):
                st["lin"].append(None)
            w = "lgkmcnt(0)"
            key = (st["tag"], st.get("alias", nx))
            if key in st["lin"]:
                last = max(k for k, e in enumerate(st["lin"]) if e == key)
                w = f"vmcnt({len(st['lin']) - 1 - last}) " + w
            if cfg.trace == "head" and len(ops) in (144, 432):
                sc.out(f"s_memrealtime s[60:61]\ns_waitcnt lgkmcnt(0)\nv_writelane_b32 v{NEGM + 1}, s60, {nx}")
            if cfg.trace is True and len(ops) in (400, 400 + cfg.LA) and 0 < nx < 25:
                sc.out("s_memtime s[60:61]\ns_waitcnt lgkmcnt(0)")
                sc.out(f"v_writelane_b32 v2, s60, {nx}")
            if cfg.trace == "head2" and len(ops) == 432:
                sc.out(f"s_memtime s[60:61]\ns_waitcnt lgkmcnt(0)\nv_writelane_b32 v{NEGM + 1}, s60, {nx}")
            sc.out("s_waitcnt " + w)
            if cfg.trace == "head2" and len(ops) == 432:
                sc.out(f"s_memtime s[60:61]\ns_waitcnt lgkmcnt(0)\nv_writelane_b32 v{NEGM + 1}, s60, {32 + nx}")
            if cfg.trace is True and len(ops) in (400, 400 + cfg.LA) and 0 < nx < 25:
                sc.out("s_memtime s[60:61]\ns_waitcnt lgkmcnt(0)")
                sc.out(f"v_writelane_b32 v2, s60, {32 + nx}")
            if not cfg.nobar:
                sc.out("s_barrier")
            st["step"] = nx
        while st["rd"] < min(i + LA + 1, len(ops)) and ops[st["rd"]]["step"] <= st["step"]:
            o = ops[st["rd"]]
            if "x" in o:
                sc.lds("ds_read_b128", R("v", o["x"][0], 4), o["x"][1], o["x"][2])
            fb = sc.fbuf()
            o["areg"] = fb
            if o["a"][0][0] == "b128":
                sc.lds("ds_read_b128", R("v", fb, 4), o["a"][0][1], o["a"][0][2])
            else:
                sc.lds("ds_read_b64_tr_b16", R("v", fb, 2), o["a"][0][1], o["a"][0][2])
                sc.lds("ds_read_b64_tr_b16", R("v", fb + 2, 2), o["a"][1][1], o["a"][1][2])
            st["rd"] += 1
        for f in fill.get(i, []):
            if callable(f):
                f(sc)
            elif isinstance(f, dict):
                last = max(k for k, e in enumerate(st["lin"]) if e == ("st", f["pub"] - 1))
                n_ = sum(1 for e in st["lin"][last + 1:] if e and e[0] == "st")
                sc.out(f"v_add_u32 v2, {f['pub']}, v{vFL}\ns_waitcnt vmcnt({n_})\ns_mov_b64 exec, s[64:65]")
                sc.out(f"buffer_store_dword v2, v1, {srd(SWS)}, s{sFLG} offen sc1\ns_mov_b64 exec, -1")
                st["lin"].append(("st", -1))
            elif isinstance(f, tuple):
                sc.out(f[0])
                st["lin"].append(f[1])
            else:
                sc.out(f)
                if f.startswith("buffer_"):
                    st["lin"].append(None)
        if i < 0:
            continue
        o = ops[i]
        m = parse(f"{MF} {o['d']}, {R('v', o['areg'], 4)}, {o['b']}, {o['c']}")
        if i % cfg.waitgrp == 0:
            for d in range(1, cfg.waitgrp):
                if i + d < st["rd"]:
                    m.rd = set(m.rd) | {("v", ops[i + d]["areg"] + k) for k in range(4)}
        if o.get("alt") and st.get("alts") is not None:
            c = parse(f"s_cmp_eq_u32 s{sIT}, 0")
            c.rd = set(c.rd) | {r for r in m.rd if r[0] == "v"}
            n_ = len(st["alts"])
            sc.out.ins.append(c)
            sc.out(f"s_cbranch_scc1 L_alt{n_}")
            sc.out.ins.append(m)
            sc.out(f"s_branch L_altb{n_}\nL_alt{n_}:")
            z = parse(f"{MF} {o['d']}, {R('v', o['areg'], 4)}, {o['b']}, 0")
            z.kind = "altmfma"
            sc.out.ins.append(z)
            sc.out(f"L_altb{n_}:")
            st["alts"].append(n_)
            continue
        sc.out.ins.append(m)
        if i in post:
            u = post[i]
            tag = f"{u}_{len(stubs)}"
            sc.out(f"s_cbranch_vccnz L_stub_{tag}\nL_back_{tag}:")
            sc.out(f"v_add_f32 v{vL}, v{vL}, v{vBS}")
            stubs.append((tag, u & 1))


def group_request(cfg, pl, fill, slot, g, tag, kind, sp=1):
    l = []
    want = "k" if g == 0 else "m" if g < 15 else "v" if g == 15 else "w"
    if want != kind:
        l += {"k": [f"v_xor_b32 v{vD + k}, {32 * k}, v{bK}" for k in range(4)],
              "m": [f"v_mov_b32 v{vD}, v{bM}", f"v_xor_b32 v{vD + 1}, s{sXM}, v{bM}", f"v_xor_b32 v{vD + 2}, s{sXM2}, v{bM}", f"v_xor_b32 v{vD + 3}, s{sXM2}, v{vD + 1}"],
              "v": [f"v_mov_b32 v{vD + k}, v{bV}" for k in range(4)],
              "w": [f"v_add_u32 v{vD + k}, {8192 * k}, v{bWo}" for k in range(4)]}[want]
    so, sr, fl = {"k": (f"s_add_u32 s{sTMP}, s{sB0}, 0", SK, cfg.kvf), "m": (f"s_add_u32 s{sTMP}, s{sMB}, {g * 8192}", SM, cfg.kvf),
                  "v": (f"s_add_u32 s{sTMP}, s{sB0}, {14 * 8192}", SV, cfg.kvf),
                  "w": (f"s_add_u32 s{sTMP}, s{sWB}, s{sTC + max(g - 16, 0)}", SWO, cfg.wf)}[want]
    l += [f"s_add_u32 m0, s{sT4K}, {pl.addr[pl.grp[g][0]]}", so]
    fill.setdefault(slot, []).extend(l)
    for k in range(4):
        if not cfg.noload:
            fill.setdefault(slot + k * sp, []).append((f"buffer_load_dwordx4 v{vD + k}, {srd(sr)}, s{sTMP} offen offset:{k * 1024}{fl} lds", (tag, g)))
    if g == 24:
        fill.setdefault(slot + 3 * sp, []).append(f"s_add_u32 s{sWB}, s{sWB}, 147456")
    return want


def rare_routine(p):
    A = Prog()
    S, Sn = S0 + 16 * p, S0 + 16 * (1 - p)
    A(f"L_rare{p}:\ns_nop 15\ns_nop 15")
    A("\n".join(rowmax(S)))
    A(f"v_max_f32 v{vM}, 0, v{vM}")
    for i in range(16):
        A(f"v_sub_f32 v{NEGM + i}, v{NEGM + i}, v{vM}\nv_sub_f32 v{S + i}, v{S + i}, v{vM}\nv_sub_f32 v{Sn + i}, v{Sn + i}, v{vM}")
    A(f"v_sub_f32 v{vM2}, 0, v{vM}\nv_exp_f32 v{vM2}, v{vM2}\ns_nop 0\nv_mul_f32 v{vL}, v{vL}, v{vM2}")
    for i in range(64):
        A(f"v_mul_f32 v{O0 + i}, v{O0 + i}, v{vM2}")
    A("\n".join(softmax_ops(p)))
    A("s_nop 3\ns_setpc_b64 s[40:41]")
    ins, _ = hazard_pass(A.ins)
    return ins


def compute(cfg, pl):
    addr = pl.addr
    sc = Sched(cfg)
    A = sc.out
    A(f"s_lshl_b32 s{sT4K}, s{sW}, 12\ns_mov_b32 s{sTHR}, {hex(f2u(cfg.thr))}")
    nsh = {"16x8": 16, "8x16": 8, "4x32": 4}[cfg.mapping]
    xr = 96 // (32 // nsh)
    A(f"v_mov_b32 v21, 0x7fffff00\ns_and_b32 s56, s{sB}, {nsh - 1}\ns_mul_i32 s56, s56, {(576 // nsh) * 8192}\ns_add_u32 s56, s56, s{sWQo}")
    A("v_lshrrev_b32 v16, 1, v0\nv_lshlrev_b32 v16, 13, v16\nv_and_b32 v17, 1, v0\nv_lshl_add_u32 v16, v17, 7, v16\nv_cmp_gt_u32 vcc, 36, v0")
    A(f"s_and_b32 s57, s{sCU}, {32 // nsh - 1}\ns_mul_i32 s57, s57, {xr * 1152}\ns_add_u32 s57, s57, s{sXo}\nv_cndmask_b32 v16, v21, v16, vcc")
    A(f"v_mul_u32_u24 v17, 1152, v0\nv_cmp_gt_u32 vcc, {xr}, v0\ns_and_b32 s58, s{sW}, 2\ns_lshl_b32 s58, s58, 6\ns_add_u32 s57, s57, s58\nv_cndmask_b32 v17, v21, v17, vcc")
    descriptors(A)
    ntouch = 0
    if cfg.pf:
        A(f"s_cmp_lg_u32 s{sW}, 0\ns_cbranch_scc1 L_tx")
        for i in range(1152 // nsh // 36):
            A(f"buffer_load_dword v{NEGM}, v16, {srd(SWQ)}, s56 offen\ns_add_u32 s56, s56, {18 * 8192}")
        A("s_branch L_tdone\nL_tx:")
        if cfg.pfx:
            for i in range(5):
                A(f"buffer_load_dword v{NEGM}, v17, {srd(SX)}, s57 offen offset:{256 * i}")
        A("L_tdone:")
    if cfg.tlb:
        A(f"s_cmp_lg_u32 s{sW}, 2\ns_cbranch_scc1 L_notlb")
        tlb_warm(cfg, A, NEGM, 16)
        A("L_notlb:")
    sample_flags(A)
    lane_patterns(A, True)
    A(f"v_lshlrev_b32 v{vST}, 4, v0\nv_add_u32 v{pQ}, s{sT4K}, v{vST}")
    A(f"s_mul_i32 s56, s{sPAIR}, 884736\ns_lshl_b32 s57, s{sW}, 15\ns_add_u32 s56, s56, s57\ns_lshl_b32 s57, s{sCU}, 12\ns_add_u32 s{sWSo}, s56, s57")
    A("v_lshrrev_b32 v1, 3, v0\nv_and_b32 v2, 7, v0\nv_lshrrev_b32 v16, 4, v0\nv_lshlrev_b32 v18, 8, v1\nv_mul_u32_u24 v19, 1152, v1")
    A(f"v_and_b32 v17, 1, v16\nv_lshlrev_b32 v17, 2, v17\nv_xor_b32 v17, v17, v2\nv_lshl_add_u32 v{bWo}, v17, 4, v19")
    kv_offsets(A, bK, bV)
    A(f"s_cmp_lt_u32 s{sW}, 2\ns_cselect_b32 s{SM}, s{SK}, s{SV}\ns_cselect_b32 s{SM + 1}, s{SK + 1}, s{SV + 1}\ns_mov_b32 s{SM + 2}, 0x4000000\ns_mov_b32 s{SM + 3}, 0x20000")
    A(f"s_cselect_b32 s{sXM}, 32, 0\ns_cselect_b32 s{sXM2}, 64, 0\ns_cselect_b64 vcc, -1, 0\ns_add_u32 s56, s{sT4K}, 8192\ns_cmp_lt_u32 s{sW}, 2")
    A(f"s_cselect_b32 s56, s56, {(-8192) & 0xffffffff}\ns_add_u32 s{sMB}, s{sKV}, s56\nv_cndmask_b32 v{bM}, v{bV}, v{bK}, vcc")
    A(f"s_add_u32 s{sB0}, s{sKV}, s{sT4K}")
    A(f"s_mul_i32 s56, s{sW}, 36864\ns_add_u32 s{sWB}, s{sWOo}, s56")
    for i in range(256):
        A(f"v_accvgpr_write_b32 a{i}, 0")
    for i in range(32):
        A(f"v_mov_b32 v{OUTV + i}, 0")
    A("s_waitcnt vmcnt(0)")
    for p in pK + pV + pWq + pWo + [pQ]:
        sc.bias[p] = 0
    qops = q_ops(addr)
    qf = {}
    kind = None
    for t in range(-1, 9):
        for n_, g in enumerate(pl.sreq[t]):
            kind = group_request(cfg, pl, qf, (16 * t - cfg.LB if t > 0 else -cfg.LA + 1 if t == 0 else -cfg.LA - 8) + 4 * n_, g, "n", kind)
    kind0 = kind
    spread(qf, conv_block(0, f"s{sC}", Q0), 135, 138)
    spread(qf, conv_block(1, f"s{sC}", Q0), 139, 143)
    emit_slots(cfg, sc, qops, qf, {}, -cfg.LA - 8, 144, dict(rd=0, step=-1, lin=[], tag="c"), [], {0: 0})
    A("\n".join(conv_block(2, f"s{sC}", Q0) + conv_block(3, f"s{sC}", Q0)))
    if cfg.trace == "head":
        A(f"s_memrealtime s[60:61]\ns_waitcnt lgkmcnt(0)\nv_writelane_b32 v{NEGM}, s60, 9\nv_writelane_b32 v{NEGM}, s101, 10")
        A(f"v_lshlrev_b32 v1, 2, v0\ns_lshl_b32 s62, s2, 10\ns_lshl_b32 s63, s{sW}, 8\ns_add_u32 s62, s62, s63\ns_add_u32 s62, s62, {STAMP_BASE}")
        A(f"buffer_store_dword v{NEGM}, v1, {srd(SWS)}, s62 offen\ns_waitcnt vmcnt(0)")
    k_patterns(A, False)
    for p in pK:
        sc.bias[p] = 0
    for p in pV + pWo:
        sc.rebias(p, 0)
    sc.rebias(pQ, QBUF)
    bias0 = dict(sc.bias)
    sc.nbuf = 0
    ops = item_ops(addr)
    st = dict(rd=0, step=-1, lin=[("c", g) for g in pl.pro for k in range(4)] if not cfg.noload else [], tag="c")
    emit_slots(cfg, sc, ops, {}, {}, -cfg.LA, 0, st, [], {0: 1})
    assert st["rd"] == cfg.LA and 400 % cfg.NB == 0
    bias1 = dict(sc.bias)
    head, pend0 = lgkm_pass(sc.out.ins)
    assert len(pend0) == cfg.LA
    head, nh = hazard_pass(head, verbose=cfg.dbg == "nops")
    sc.out = Prog()
    fill = {}
    split = 272
    bslot = lambda s_: 16 * s_ - cfg.LB if s_ else 0
    kind = None
    late = {}
    wrapped = False
    for s_ in range(25):
        for n_, (g, w) in enumerate(pl.req[s_]):
            sp = cfg.gsp if len(pl.req[s_]) == 1 else min(cfg.gsp, 2) if s_ else 1
            if bslot(s_) < split < bslot(s_) + 4 * sp * len(pl.req[s_]):
                sp = 1
            slot = bslot(s_) + 4 * sp * n_
            if w and not wrapped:
                wrapped = True
                if slot < split:
                    fill.setdefault(slot, []).append(f"s_add_u32 s{sB0}, s{sB0}, 0x20000\ns_add_u32 s{sMB}, s{sMB}, 0x20000\ns_cmp_eq_u32 s{sIT}, 3")
                    fill[slot].append(f"s_cselect_b32 s{SK + 2}, 0, s{SK + 2}\ns_cselect_b32 s{SM + 2}, 0, s{SM + 2}")
                else:
                    late.setdefault(slot, []).append(f"s_add_u32 s{sB0}, s{sB0}, 0x20000\ns_add_u32 s{sMB}, s{sMB}, 0x20000")
            assert g >= 16 or w == wrapped
            if w and slot >= split:
                kind = group_request(cfg, pl, late, slot, g, "n", None, sp)
            else:
                kind = group_request(cfg, pl, fill, slot, g, "n" if w else "c", None if slot >= split else kind, sp)
    cyc_kind = kind
    post = item_fill(cfg, ops, fill)
    stubs = []
    sc.out("L_item:")
    st["lin"] = [e for e in st["lin"] if e]
    emit_slots(cfg, sc, ops, fill, post, 0, split, st, stubs, {16: 2})
    sc.out(f"s_cmp_lg_u32 s{sIT}, 3\ns_cbranch_scc1 L_more")
    common, pend = lgkm_pass(sc.out.ins, pend0)
    common, n0 = hazard_pass(common, history=head[-20:], verbose=cfg.dbg == "nops")
    sa = copy.deepcopy(sc)
    sa.out = Prog()
    sa.out("L_warm_more:\ns_setpc_b64 s[40:41]\nL_more:")
    fa = {k: list(v) for k, v in fill.items()}
    for k, v in late.items():
        fa[k] = fa.get(k, []) + v
    for p, r0 in ((0, 288), (1, 381)):
        spread(fa, [(lambda s_, i=i, p=p: s_.lds("ds_read_b128", R("v", Q0 + 16 * p + 4 * i, 4), pQ, QBUF + i * 1024)) for i in range(4)], r0, r0 + 3)
    sta = copy.deepcopy(st)
    sta["rebias"] = bias0
    fa.setdefault(390, []).append(f"s_add_u32 s{sIT}, s{sIT}, 1")
    emit_slots(cfg, sa, copy.deepcopy(ops), fa, {}, split, 400, sta, stubs, {25: 1}, nextops=copy.deepcopy(ops[:cfg.LA]))
    assert cfg.noload or [e for e in sta["lin"] if e and e[0] == "n"] == [("n", g) for g in pl.pro for k in range(4)]
    assert sa.bias == bias1 and sta["rd"] == 400 + cfg.LA
    if cfg.trace is True:
        sa.out(f"s_cmp_lg_u32 s{sIT}, {cfg.trace_it + 1}\ns_cbranch_scc1 L_notr\nv_lshlrev_b32 v1, 2, v0\ns_lshl_b32 s62, s2, 10\ns_lshl_b32 s63, s{sW}, 8\ns_add_u32 s62, s62, s63\ns_add_u32 s62, s62, {STAMP_BASE}")
        sa.out(f"buffer_store_dword v2, v1, {srd(SWS)}, s62 offen\ns_waitcnt vmcnt(0)\nL_notr:")
    sa.out("s_branch L_item")
    conta, pe = lgkm_pass(sa.out.ins, pend)
    assert pe == pend0[len(pend0) - len(pe):]
    conta, n1 = hazard_pass(conta, history=common[-20:])
    sb = copy.deepcopy(sc)
    sb.out = Prog()
    sb.out("L_last:")
    fb = {k: list(v) for k, v in fill.items()}
    last_fill(cfg, fb)
    emit_slots(cfg, sb, copy.deepcopy(ops), fb, {}, split, 400, copy.deepcopy(st), stubs)
    T = sb.out
    stamp(cfg, T, 3, 0)
    stamp(cfg, T, 4, 0)
    finish_unit(cfg, T, "c", 7, OUTV, sW, sCU, True)
    contb, _ = lgkm_pass(sb.out.ins, pend)
    contb, n2 = hazard_pass(contb, history=common[-20:], verbose=cfg.dbg == "nops")
    st = Prog()
    for tag, p in stubs:
        st(f"L_stub_{tag}:\ns_call_b64 s[40:41], L_rare{p}\ns_branch L_back_{tag}")
    info = dict(nops=(nh, n0, n1, n2), est_item=est_cycles(common + conta))
    return head + common + contb + conta + st.ins + rare_routine(0) + rare_routine(1), info


def kd(name, vg, acc, sg=102):
    return (f".amdhsa_kernel {name}\n  .amdhsa_next_free_vgpr {vg}\n  .amdhsa_next_free_sgpr {sg}\n  .amdhsa_accum_offset {acc}\n"
            "  .amdhsa_group_segment_fixed_size 0\n  .amdhsa_kernarg_size 104\n  .amdhsa_user_sgpr_count 2\n"
            "  .amdhsa_user_sgpr_kernarg_segment_ptr 1\n  .amdhsa_system_sgpr_workgroup_id_x 1\n.end_amdhsa_kernel\n")


def generate(cfg):
    pl = plan_ring(cfg)
    P = Prog()
    prologue(cfg, P)
    pro, _ = hazard_pass(P.ins)
    comp, info = compute(cfg, pl)
    w3, info3 = wave3(cfg, pl)
    info.update(info3)
    s = HDR + "; @launch grid=(256,1,1) block=(256,1,1) lds=163840\n"
    s += '.amdgcn_target "amdgcn-amd-amdhsa--gfx950"\n.text\n'
    s += f".globl {KNAME}\n.p2align 8\n.type {KNAME},@function\n{KNAME}:\n"
    s += render(pro) + render(comp) + render(w3) + "L_done:\n    s_endpgm\n"
    s += '.section .rodata,"a"\n.p2align 6\n' + kd(KNAME, 512, 256)
    return s, info, pl


if __name__ == "__main__":
    import build
    name = sys.argv[1]
    kw = {}
    for a in sys.argv[2:]:
        k, v = a.split("=", 1)
        try:
            v = eval(v)
        except Exception:
            pass
        kw[k] = v
    s, info, plan = generate(Cfg(**kw))
    open(name, "w").write(s)
    print(info)
    build.build(name)
```

```python
import copy
import sys

import gen5 as G
from gen5 import *
from asmlib import Prog, parse, lgkm_pass, hazard_pass, render, est_cycles, R


class Cfg(G.Cfg):
    colors = "abcdfehgiacbfhicdegfhiegi"
    reqs = (13, 15, 17, 19, 21, 23, 24, 0, 1, 2, 3, 4, 5, 7, 9, 11) + (6, 8, 10, 13, 14, 16, 18, 20, 22)
    kvq = (26, 28, 30, 32, 34, 34, 34)
    xlead = 8
    slabs = "ifehg"
    pf_wo_step = 19
    pf_wo_q = 16
    first_x = 1
    KS = 2
    xslots = "dc"
    cnt_at = 2
    pk = True
    cap = 0
    flagfirst = True
    tfirst = 1
    dsp = 2
    NR = 3
    pflead = 4
    lazy = True

    def __init__(self, **kw):
        for k, v in kw.items():
            assert hasattr(Cfg, k), k
            setattr(self, k, v)


QB = 9 * 16384
NQ = 36
STASH = 224


class Plan:
    pass


def plan(cfg):
    pl = Plan()
    grp = [[("k", 0, 0), ("k", 0, 1), ("k", 1, 0), ("k", 1, 1)]]
    for u in range(1, 15):
        grp.append([("k", u + 1, 0), ("k", u + 1, 1), ("v", u - 1, 0), ("v", u - 1, 1)])
    grp.append([("v", 14, 0), ("v", 14, 1), ("v", 15, 0), ("v", 15, 1)])
    for t in range(9):
        grp.append([("wo", t, rb) for rb in range(4)])
    ns = len(grp)
    slot = lambda c: (ord(c) - 97) * 16384
    addr = {q: slot(cfg.colors[s]) + k * 4096 for s, g in enumerate(grp) for k, q in enumerate(g)}
    req = {b: [] for b in range(ns)}
    for g in range(ns):
        gap = next(d for d in range(1, ns + 1) if cfg.colors[(g - d) % ns] == cfg.colors[g])
        lead = (g - cfg.reqs[g]) % ns
        assert 1 <= lead <= gap - 1, (g, lead, gap)
        req[cfg.reqs[g]].append((g, g - lead < 0))
    for b in req:
        req[b].sort(key=lambda e: (e[0] < 16, e[1]))
    pl.pro = [g for b in range(ns) for g, w in req[b] if w]
    pl.slab = [slot(cfg.slabs[k % len(cfg.slabs)]) for k in range(NQ)]
    xs = [QB] + [slot(c) for c in cfg.xslots]
    pl.xt = [xs[(8 - t) % 3] for t in range(9)]
    KS = cfg.KS
    pl.kvq = {}
    pl.late = []
    for g in sorted(pl.pro):
        a = addr[grp[g][0]]
        busy = max([4 * t + 3 for t in range(9) if pl.xt[t] == a] + [k for k in range(NQ) if pl.slab[k] == a] + [-1])
        b = max(cfg.kvq[g] // KS, busy // KS + 1)
        pl.kvq.setdefault(b, []).append(g)
    pl.grp, pl.addr, pl.req = grp, addr, req
    return pl


def slab_patterns(A, regs):
    A("v_lshrrev_b32 v1, 5, v0\nv_lshrrev_b32 v2, 2, v0\nv_and_b32 v2, 3, v2\nv_lshl_add_u32 v16, v1, 3, v2\nv_lshlrev_b32 v16, 10, v16")
    A("v_lshrrev_b32 v17, 4, v0\nv_and_b32 v17, 1, v17\nv_lshl_add_u32 v16, v17, 5, v16\nv_and_b32 v17, 1, v0\nv_lshl_add_u32 v16, v17, 4, v16")
    A("v_lshrrev_b32 v17, 1, v0\nv_and_b32 v17, 1, v17\nv_lshl_add_u32 v16, v17, 3, v16")
    for j, r in enumerate(regs):
        A(f"v_xor_b32 v17, {j}, v2\nv_lshl_add_u32 v{r}, v17, 6, v16")


def slab_offsets(A, base):
    for k in range(4):
        A(f"v_xor_b32 v17, {k << 2}, v0\nv_lshlrev_b32 v17, 4, v17\nv_add_u32 v{base + k}, {k * (8192 - 1024)}, v17")


def slab_request(cfg, ks, pl, vs, tag):
    l = [f"s_add_u32 m0, s{sT4K}, {pl.slab[ks]}", f"s_add_u32 s{sTMP}, s{sSL}, {ks * 16 * 8192}"]
    if not cfg.noload:
        l += [(f"buffer_load_dwordx4 v{vs + k}, {srd(SWQ)}, s{sTMP} offen offset:{k * 1024}{cfg.wf} lds", (tag, ks)) for k in range(4)]
    return l


sSL, sXW, sC2 = 90, 91, 96


vK3, vV3, vWo3, vS3 = 24, 28, 60, 32
pS3 = [8, 9, 10, 11]
A3, B3, ACC3 = 36, 40 + 0, 64


def wave3(cfg, pl):
    addr = pl.addr
    sc = Sched(cfg)
    A = sc.out
    ns = len(pl.grp)
    nsl = len(cfg.slabs)
    AF = [36, 40, 44]
    BF = [[48, 52, 56], [12, 16, 20]]
    vFL3 = 3
    A("L_loader:")
    A(f"s_lshl_b32 s{sT4K}, s{sW}, 12\ns_add_u32 s{sSL}, s{sWQo}, {12 * 8192}")
    slab_offsets(A, vS3)
    descriptors(A)
    lin = []

    def put(sc_, o, gen=0):
        if isinstance(o, tuple):
            sc_.out(o[0])
            lin.append((o[1], gen))
        elif callable(o):
            o(sc_)
        else:
            sc_.out(o)

    def wait_for(sc_, keys, extra=""):
        idx = [k for k, e in enumerate(lin) if e[0] in keys and e[1] == 0]
        w = f"vmcnt({min(63, len(lin) - 1 - max(idx))}) " if idx else ""
        if w or extra:
            sc_.out("s_waitcnt " + w + extra)

    def quad_ops(q):
        k = q[0]
        pre = []
        if k == "k":
            off, base, v, sr, fl = q[1] * 8192 + q[2] * 4096, sKV, [vK3 + g for g in range(4)], SK, cfg.kvf
        elif k == "v":
            off, base, v, sr, fl = q[1] * 8192 + q[2] * 4096, sKV, [vV3] * 4, SV, cfg.kvf
        else:
            pre = [f"s_add_u32 s{sXW}, s{sWOo}, s{sTC + q[1]}"] if q[2] == 0 else []
            off, base, v, sr, fl = q[2] * 32 * 1152, sXW, [vWo3 + g for g in range(4)], SWO, cfg.wf
        l = pre + [f"s_mov_b32 m0, {addr[q]}", f"s_add_u32 s{sTMP}, s{base}, {off}"]
        if not cfg.noload:
            l += [(f"buffer_load_dwordx4 v{v[g]}, {srd(sr)}, s{sTMP} offen offset:{g * 1024}{fl} lds", q) for g in range(4)]
        return l

    if stamp(cfg, A, 15, 1):
        lin.append((None, 0))
    lin += [(None, 0)] * tlb_warm(cfg, A, 62, 61)
    for ks in range(cfg.KS if cfg.lazy else nsl):
        for o in slab_request(cfg, ks, pl, vS3, "s"):
            put(sc, o)
    A(f"v_and_b32 v1, 7, v0\nv_lshlrev_b32 v1, 2, v1\nbuffer_load_dword v{vFL3}, v1, {srd(SWS)}, s{sFLG} offen sc1")
    lin.append(("flag", 0))
    k_patterns(A, True)
    slab_patterns(A, pS3)
    kv_offsets(A, vK3, vV3)
    for g in range(1, 4):
        A(f"v_xor_b32 v{vK3 + g}, {32 * g}, v{vK3}")
    nsh = {"16x8": 16, "8x16": 8, "4x32": 4}[cfg.mapping]
    vTO3, vDUM3, pQ3_ = 29, 30, 31
    A(f"s_and_b32 s56, s{sB}, {nsh - 1}\nv_mov_b32 v17, 0x7fffff00\nv_cmp_gt_u32 vcc, 36, v0\nv_lshlrev_b32 v{vTO3}, 7, v0")
    A(f"s_mul_i32 s57, s56, {(576 // nsh) * 256}\nv_add_u32 v{vTO3}, s57, v{vTO3}\nv_cndmask_b32 v{vTO3}, v17, v{vTO3}, vcc")

    def touch_wo(add):
        l = []
        if cfg.pf:
            for i in range(1152 // nsh // 36):
                l.append(f"s_add_u32 s{sTMP}, s{sWOo}, {i * 36 * 128 + add}")
                l.append((f"buffer_load_dword v{vDUM3}, v{vTO3}, {srd(SWO)}, s{sTMP} offen", None))
        return l
    for p in pK + pS3:
        sc.bias[p] = 0
    ops = [dict(ks=ks, b=b, j=j) for ks in range(NQ) for b in range(4) for j in range(3)]
    LB3 = 4
    queue = []
    st = dict(step=-1, rdA=0, rdB=0, na=0)

    def drain(sc_, n):
        while queue and n > 0:
            o, g = queue.pop(0)
            put(sc_, o, g)
            n -= isinstance(o, tuple)

    KS = cfg.KS
    for i in range(-LB3, 12 * NQ):
        nx = st["step"] + 1
        if nx < NQ // KS and i >= 12 * KS * nx - LB3:
            drain(sc, 99)
            if cfg.trace == "head2":
                A(f"s_memtime s[60:61]\ns_waitcnt lgkmcnt(0)\nv_writelane_b32 v63, s60, {nx}")
            wait_for(sc, {("s", KS * nx + KS - 1)} | ({"flag"} if nx == cfg.cnt_at else set()), "lgkmcnt(0)")
            if cfg.trace == "head2":
                A(f"s_memtime s[60:61]\ns_waitcnt lgkmcnt(0)\nv_writelane_b32 v63, s60, {32 + nx}")
            if not cfg.nobar:
                A("s_barrier")
            st["step"] = nx
            if nx == cfg.cnt_at:
                A(f"s_lshl_b32 s56, s{sPAIR}, 2\nv_mov_b32 v1, s56\nv_mov_b32 v2, 1\ns_mov_b64 exec, 1")
                put(sc, (f"buffer_atomic_add v2, v1, {srd(SDB)}, 0 offen sc1", None))
                A("s_mov_b64 exec, -1")
            for ks in range(KS * (nx - 1) + nsl if nx else KS, min(NQ, KS * nx + nsl)):
                if nx or cfg.lazy:
                    queue.extend((o, 0) for o in slab_request(cfg, ks, pl, vS3, "s"))
            if nx == cfg.pf_wo_q // KS:
                queue.extend((o, 0) for o in touch_wo(0))
            for g in pl.kvq.get(nx, []):
                for q in pl.grp[g]:
                    queue.extend((o, 0) for o in quad_ops(q))
        while st["rdB"] < 3 * NQ and st["rdB"] // 3 // KS <= st["step"] and 12 * (st["rdB"] // 3) - LB3 <= i:
            ks, j = divmod(st["rdB"], 3)
            sc.lds("ds_read_b128", R("v", BF[ks & 1][j], 4), pK[ks & 3], pl.xt[ks >> 2] + j * 4096)
            st["rdB"] += 1
        while st["rdA"] < 12 * NQ and st["rdA"] <= i + 5 and ops[st["rdA"]]["ks"] // KS <= st["step"]:
            o = ops[st["rdA"]]
            fb = AF[st["na"] % 3]
            st["na"] += 1
            a = pl.slab[o["ks"]] + 3 * 256
            sc.lds("ds_read_b64_tr_b16", R("v", fb, 2), pS3[o["b"]], a)
            sc.lds("ds_read_b64_tr_b16", R("v", fb + 2, 2), pS3[o["b"]], a + 4096)
            for d in range(3):
                ops[st["rdA"] + d]["areg"] = fb
            st["rdA"] += 3
        if i < 0:
            continue
        left = 12 * KS * (st["step"] + 1) - LB3 - i
        nv = sum(isinstance(o, tuple) for o, g in queue)
        if nv > left:
            drain(sc, -(-nv // max(left, 1)))
        elif i % cfg.dsp == 0 or nv * cfg.dsp > left:
            drain(sc, 1)
        o = ops[i]
        d = R("v", ACC3 + 16 * (3 * o["b"] + o["j"]), 16)
        A(f"{MF} {d}, {R('v', o['areg'], 4)}, {R('v', BF[o['ks'] & 1][o['j']], 4)}, {'0' if o['ks'] == 0 else d}")
    drain(sc, 99)
    if cfg.trace == "head2":
        A(f"v_lshlrev_b32 v1, 2, v0\ns_lshl_b32 s62, s2, 10\ns_add_u32 s62, s62, {STAMP_BASE + 768}")
        A(f"buffer_store_dword v63, v1, {srd(SWS)}, s62 offen\ns_waitcnt vmcnt(0)")
    A("s_waitcnt lgkmcnt(0)")
    if not cfg.nobar:
        A("s_barrier")
    for g in pl.kvq.get(NQ // KS, []):
        for q in pl.grp[g]:
            for o in quad_ops(q):
                put(sc, o)

    def conv3(b, j):
        acc = ACC3 + 16 * (3 * b + j)
        l = []
        for k in range(8):
            l += [f"v_mul_f32 v{acc + 2 * k}, s{sC}, v{acc + 2 * k}", f"v_mul_f32 v{acc + 2 * k + 1}, s{sC}, v{acc + 2 * k + 1}"]
        for k in range(8):
            l.append(f"v_cvt_pk_bf16_f32 v{acc + k}, v{acc + 2 * k}, v{acc + 2 * k + 1}")
        for k in range(8):
            l.append(f"v_accvgpr_write_b32 a{96 + 4 * (8 * j + 2 * b) + k}, v{acc + k}")
        return l
    post = ["v_lshrrev_b32 v1, 3, v0\nv_and_b32 v2, 7, v0\nv_lshrrev_b32 v16, 4, v0\nv_and_b32 v16, 1, v16\nv_lshlrev_b32 v16, 2, v16",
            "v_xor_b32 v16, v16, v2\nv_lshlrev_b32 v16, 4, v16\nv_mul_u32_u24 v17, 1152, v1\nv_add_u32 v16, v16, v17"]
    post += [f"v_add_u32 v{vWo3 + g}, {g * 8192}, v16" for g in range(4)]
    post += [
             f"v_lshlrev_b32 v{pQ3_}, 4, v0\nv_add_u32 v{pQ3_}, {QB}, v{pQ3_}\nv_mov_b32 v{vFL}, v{vFL3}"]
    for o in post:
        A(o)
    head, pend = lgkm_pass(sc.out.ins)
    assert not pend
    pro = [q for b in sorted(pl.kvq) for g in pl.kvq[b] for q in pl.grp[g]]

    def period(last, pro_):
        nonlocal lin
        sc2 = Sched(cfg)
        B = sc2.out
        lin = [(q, 0) for q in pro_ for g in range(4)] if not cfg.noload else []
        wrapped = False
        for s in range(ns):
            if cfg.trace is True:
                B(f"s_memtime s[60:61]\ns_waitcnt lgkmcnt(0)\nv_writelane_b32 v2, s60, {s}")
            wait_for(sc2, set(pl.grp[s]), "lgkmcnt(0)")
            if cfg.trace is True:
                B(f"s_memtime s[60:61]\ns_waitcnt lgkmcnt(0)\nv_writelane_b32 v2, s60, {32 + s}")
            if s in (0, 16) and stamp(cfg, B, {0: 1, 16: 2}[s], 1):
                lin.append((None, 0))
            if last and s == 16:
                B("v_readfirstlane_b32 s57, v17\ns_mov_b32 s58, 0\nL_chk:\ns_cmp_ge_u32 s57, 8\ns_cbranch_scc1 L_chkend")
                B(f"buffer_load_dword v17, v16, {srd(SDB)}, 0 offen sc1\ns_add_u32 s58, s58, 1\ns_waitcnt vmcnt(0)\nv_readfirstlane_b32 s57, v17")
                B("s_cmp_lt_u32 s58, 0x80000\ns_cbranch_scc1 L_chk\nL_chkend:")
            if not cfg.nobar:
                B("s_barrier")
            for g, w in pl.req[s]:
                if w and not wrapped:
                    wrapped = True
                    B(f"s_add_u32 s{sKV}, s{sKV}, 0x20000")
                assert g >= 16 or w == wrapped
                if not (last and w):
                    for q in pl.grp[g]:
                        if cfg.cap and g < 16:
                            B(f"s_waitcnt vmcnt({cfg.cap - 4})")
                        for o in quad_ops(q):
                            put(sc2, o, int(w))
            if last and s == 2:
                B(f"s_lshl_b32 s56, s{sPAIR}, 2\nv_mov_b32 v16, s56")
                put(sc2, (f"buffer_load_dword v17, v16, {srd(SDB)}, 0 offen sc1", None))
            if s == cfg.pf_wo_step and not last:
                for o in touch_wo(147456):
                    put(sc2, o)
            if cfg.warm and s == 9 and not last:
                B("s_call_b64 s[40:41], L_warm_more")
            if last:
                continue
            extra = []
            if s < 6:
                extra = conv3(*divmod(2 * s, 3)) + conv3(*divmod(2 * s + 1, 3))
            elif s in (QS0 + 1, QS1 + 1):
                p = int(s == QS1 + 1)
                extra = [f"ds_read_b128 {R('a', 4 * (8 * j + 4 * p + i), 4)}, v{pQ3_} offset:{(4 * j + i) * 1024}" for j in range(3) for i in range(4)]
            if extra:
                B(f"s_cmp_lg_u32 s{sIT}, 0\ns_cbranch_scc1 L_w3x{s}")
                B("\n".join(extra) + f"\ns_waitcnt lgkmcnt(0)\nL_w3x{s}:")
            if s in (16, 20):
                p = int(s == 20)
                for j in range(3):
                    for i in range(4):
                        B(f"ds_write_b128 v{pQ3_}, {R('a', 4 * (8 * j + 4 * p + i), 4)} offset:{(4 * j + i) * 1024}")
            if s == 22:
                B(f"s_cmp_lg_u32 s{sIT}, 1\ns_cbranch_scc1 L_w3mv")
                for k in range(96):
                    B(f"v_accvgpr_mov_b32 a{k}, a{96 + k}")
                B("L_w3mv:")
        tail = [e[0] for e in lin if e[1] == 1][::4]
        if not last:
            B(f"s_add_u32 s{sWOo}, s{sWOo}, 147456")
            if cfg.trace is True:
                B(f"s_cmp_lg_u32 s{sIT}, {cfg.trace_it}\ns_cbranch_scc1 L_notr3\nv_lshlrev_b32 v1, 2, v0\ns_lshl_b32 s62, s2, 10\ns_add_u32 s62, s62, {STAMP_BASE + 768}")
                B(f"buffer_store_dword v2, v1, {srd(SWS)}, s62 offen\ns_waitcnt vmcnt(0)\nL_notr3:")
            B(f"s_add_u32 s{sIT}, s{sIT}, 1\ns_cmp_lt_u32 s{sIT}, 3\ns_cbranch_scc1 L_w3loop")
        return B.ins, tail

    b1, tail = period(False, pro)
    b2, tail2 = period(False, tail)
    assert tail == tail2 and len(b1) == len(b2) and (cfg.noload or sorted(tail) == sorted(pro))
    import re
    body = []
    for x, y in zip(b1, b2):
        if x.text != y.text:
            n = min(int(re.search(r"vmcnt\((\d+)\)", z.text).group(1)) for z in (x, y))
            x = parse(re.sub(r"vmcnt\(\d+\)", f"vmcnt({n})", x.text))
        body.append(x)
    lastp, _ = period(True, tail)
    T = Prog()
    T(f"s_cmp_ge_u32 s{sCU}, 3\ns_cbranch_scc1 L_done\ns_mov_b32 s61, 8")
    finish_unit(cfg, T, "w3", 8, 192, sCU, 61, False)
    allins, nn = hazard_pass(head + [parse("L_w3loop:")] + body + lastp + T.ins, verbose=cfg.dbg == "nops3")
    return allins, dict(w3nops=nn, w3head=est_cycles(head))


QS0, QS1 = 7, 10


def compute(cfg, pl):
    addr = pl.addr
    sc = Sched(cfg)
    A = sc.out
    nsl = len(cfg.slabs)
    vS, vXo = P0, P0 + 4
    pS = [pWq[0], pWq[1], P0 + 8, P0 + 9]
    TMP = 248
    nsh = {"16x8": 16, "8x16": 8, "4x32": 4}[cfg.mapping]
    A(f"s_lshl_b32 s{sT4K}, s{sW}, 12\ns_mov_b32 s{sTHR}, {hex(f2u(cfg.thr))}")
    A(f"s_lshl_b32 s56, s{sW}, 15\ns_add_u32 s{sSL}, s{sWQo}, s56\ns_mul_i32 s56, s{sW}, 36864\ns_add_u32 s{sXW}, s{sXo}, s56")
    A(f"s_mov_b32 s{sC2}, s{sC}\ns_mov_b32 s{sC2 + 1}, s{sC}")
    slab_offsets(A, vS)
    A("v_lshrrev_b32 v1, 3, v0\nv_and_b32 v2, 7, v0\nv_lshrrev_b32 v3, 4, v0\nv_mul_u32_u24 v20, 1152, v1")
    for g in range(4):
        A(f"v_add_u32 v17, {4 * g}, v3\nv_and_b32 v17, 7, v17\nv_xor_b32 v17, v17, v2\nv_lshlrev_b32 v17, 4, v17")
        A(f"v_add_u32 v17, {g * (9216 - 1024)}, v17\nv_add_u32 v{vXo + g}, v17, v20")
    rows = 576 // nsh
    A(f"v_lshrrev_b32 v16, 3, v0\nv_lshlrev_b32 v16, 13, v16\nv_and_b32 v17, 7, v0\nv_lshl_add_u32 v16, v17, 7, v16")
    rw = rows // cfg.NR // 3
    A(f"s_and_b32 s56, s{sB}, {nsh - 1}\ns_mul_i32 s56, s56, 3\ns_add_u32 s56, s56, s{sW}\ns_mul_i32 s56, s56, {rw * 8192}\ns_add_u32 s98, s56, s{sWQo}")
    assert rw <= 8
    A(f"v_mov_b32 v17, 0x7fffff00\nv_cmp_gt_u32 vcc, {rw * 8}, v0\ns_nop 0\nv_cndmask_b32 v{P0 + 10}, v17, v16, vcc")
    descriptors(A)
    lin = []

    def x_request(t):
        l = [f"s_add_u32 m0, s{sT4K}, {pl.xt[t]}", f"s_add_u32 s{sTMP}, s{sXW}, {t * 128}"]
        if not cfg.noload:
            l += [(f"buffer_load_dwordx4 v{vXo + k}, {srd(SX)}, s{sTMP} offen offset:{k * 1024}{cfg.xf} lds", ("x", 4 * t)) for k in range(4)]
        return l

    def now(l):
        for o in l:
            if isinstance(o, tuple):
                A(o[0])
                lin.append(o[1])
            else:
                A(o)
    KS = cfg.KS
    rs = lambda l: [(o[0], ("c", o[1][1] // KS)) if isinstance(o, tuple) else o for o in l]
    vTA, vTB, vFA = P0 + 10, P0 + 11, P0 + 12
    tq, late_t = {}, []
    if cfg.pf:
        for r in range(cfg.NR):
            l = [f"s_add_u32 s99, s98, {r * (576 // cfg.NR) * 8192}", (f"buffer_load_dword v{NEGM}, v{vTA}, {srd(SWQ)}, s99 offen", None)]
            b = r * (NQ // KS) // cfg.NR - cfg.pflead
            if r < cfg.tfirst:
                now(l)
            elif b <= 0:
                late_t += l
            else:
                tq[b] = l
    now(rs(slab_request(cfg, 0, pl, vS, "c") + x_request(0)))
    for ks in range(1, KS):
        now(rs(slab_request(cfg, ks, pl, vS, "c")))
    rest = list(late_t)
    for ks in range(KS, nsl):
        rest += rs(slab_request(cfg, ks, pl, vS, "c"))
    if cfg.pfx:
        xr = 96 // (32 // nsh) // 3
        vTX_ = P0 + 13
        A(f"v_lshrrev_b32 v17, 2, v0\nv_mul_u32_u24 v17, 1152, v17\nv_and_b32 v{vTX_}, 3, v0\nv_lshl_add_u32 v{vTX_}, v{vTX_}, 7, v17")
        A(f"s_and_b32 s57, s{sCU}, {32 // nsh - 1}\ns_mul_i32 s57, s57, 3\ns_add_u32 s57, s57, s{sW}\ns_mul_i32 s57, s57, {xr * 1152}\ns_add_u32 s101, s57, s{sXo}")
        assert xr == 16
        tx = [(f"buffer_load_dword v{NEGM}, v{vTX_}, {srd(SX)}, s101 offen offset:{128 + 512 * i}", None) for i in range(2)]
        rest = (tx + rest) if cfg.pfx == 1 else (rest + tx)
    xreq = {}
    for t in range(1, 9):
        b = max((4 * t - cfg.xlead) // KS, (4 * (t - 3) + 3) // KS + 1 if t >= 3 else 0)
        if b <= 0:
            rest += rs(x_request(t))
        else:
            xreq[b] = t
    A(f"v_and_b32 v{vFA}, 7, v0\nv_lshlrev_b32 v{vFA}, 2, v{vFA}")
    fo = (f"buffer_load_dword v{vFL}, v{vFA}, {srd(SWS)}, s{sFLG} offen sc1", ("c", cfg.cnt_at))
    if cfg.flagfirst:
        now([fo])
    else:
        rest.append(fo)
    if not cfg.lazy:
        now(rest)
        rest = []
    lane_patterns(A, True)
    slab_patterns(A, pS)
    A(f"v_lshlrev_b32 v{vST}, 4, v0\nv_add_u32 v{pQ}, s{sT4K}, v{vST}")
    A(f"s_mul_i32 s56, s{sPAIR}, 884736\ns_lshl_b32 s57, s{sW}, 15\ns_add_u32 s56, s56, s57\ns_lshl_b32 s57, s{sCU}, 12\ns_add_u32 s{sWSo}, s56, s57")
    for p in pK + pV + pS + pWo + [pQ]:
        sc.bias[p] = 0
    qops, qf = [], {}
    k = -cfg.LA + 1
    for o in rest:
        qf.setdefault(min(k, 12 * KS - cfg.LB - 1), []).append(o)
        k += isinstance(o, tuple)
    for ks in range(NQ):
        order = list(range(4, 12)) + [0, 1, 2, 3] if ks < NQ - 1 else list(range(12))
        xb = S0 + 4 * (ks % 8)
        for n_, b in enumerate(order):
            a = pl.slab[ks] + (b >> 2) * 256
            d = R("v", O0 + 16 * b, 16) if b < 4 else R("a", 16 * (b - 4), 16)
            o = dict(step=ks // KS, a=[("tr", pS[b & 3], a), ("tr", pS[b & 3], a + 4096)], b=R("v", xb, 4), d=d, c="0" if ks == 0 else d)
            if n_ == 0:
                o["x"] = (xb, pK[ks & 3], pl.xt[ks >> 2])
            qops.append(o)
        if ks % KS == 0 and ks:
            l = []
            for k2 in range(ks - KS + nsl, min(NQ, ks + nsl)):
                l += rs(slab_request(cfg, k2, pl, vS, "c"))
            if ks // KS in xreq:
                l += rs(x_request(xreq[ks // KS]))
            l += tq.get(ks // KS, [])
            k = 12 * ks - cfg.LB
            nv = sum(isinstance(o, tuple) for o in l)
            sp = min(cfg.dsp, (12 * KS - 1) / max(nv, 1))
            kk = 0
            for o in l:
                qf.setdefault(k + int(kk * sp), []).append(o)
                kk += isinstance(o, tuple)
    n = 12 * NQ
    spread(qf, conv_block(0, f"s{sC}", Q0), n - 8, n - 5)
    spread(qf, conv_block(1, f"s{sC}", Q0), n - 4, n - 1)
    emit_slots(cfg, sc, qops, qf, {}, -cfg.LA, n, dict(rd=0, step=-1, lin=lin, tag="c"), [], {0: 0})
    if not cfg.nobar:
        A("s_waitcnt lgkmcnt(0)\ns_barrier")
    A("\n".join(conv_block(2, f"s{sC}", Q0) + conv_block(3, f"s{sC}", Q0)))
    if cfg.trace in ("head", "head2"):
        if cfg.trace == "head":
            A(f"s_memrealtime s[60:61]\ns_waitcnt lgkmcnt(0)\nv_writelane_b32 v{NEGM + 1}, s60, 36\nv_writelane_b32 v{NEGM + 1}, s101, 37")
        A(f"v_lshlrev_b32 v1, 2, v0\ns_lshl_b32 s62, s2, 10\ns_lshl_b32 s63, s{sW}, 8\ns_add_u32 s62, s62, s63\ns_add_u32 s62, s62, {STAMP_BASE}")
        A(f"buffer_store_dword v{NEGM + 1}, v1, {srd(SWS)}, s62 offen\ns_waitcnt vmcnt(0)")

    def pack2(i, dst):
        t = TMP
        l = [f"v_accvgpr_read_b32 v{t + k}, a{2 * i + k}" for k in range(4)]
        if cfg.pk:
            l += [f"v_pk_mul_f32 v[{t + k}:{t + k + 1}], v[{t + k}:{t + k + 1}], s[{sC2}:{sC2 + 1}]" for k in (0, 2)]
        else:
            l += [f"v_mul_f32 v{t + k}, s{sC}, v{t + k}" for k in range(4)]
        return l + [f"v_cvt_pk_bf16_f32 v{dst + k}, v{t + 2 * k}, v{t + 2 * k + 1}" for k in range(2)]
    lumps = {}
    for part in range(8):
        i = 4 * part
        lumps[16 * (2 + part // 2) + 2 + 6 * (part & 1)] = pack2(i, TMP + 4) + pack2(i + 2, TMP + 6) + [
            f"v_accvgpr_write_b32 a{STASH + i + k}, v{TMP + 4 + k}" for k in range(4)]
    for p, s0 in ((0, QS0), (1, QS1)):
        for fr in range(4):
            i = 32 + 16 * p + 4 * fr
            lumps[16 * (s0 - 1 + fr // 2) + 2 + 6 * (fr & 1)] = pack2(i, TMP + 4) + pack2(i + 2, TMP + 6) + [
                f"ds_write_b128 v{pQ}, {R('v', TMP + 4, 4)} offset:{fr * 1024}"]
    k_patterns(A, False)
    for p in pK:
        sc.bias[p] = 0
    for p in pV + pWo:
        sc.rebias(p, 0)
    sc.rebias(pQ, QB)
    for p in pS:
        del sc.bias[p]
    bias0 = dict(sc.bias)
    sc.nbuf = 0
    ops = item_ops(addr)
    st = dict(rd=0, step=-1, lin=[], tag="c")
    emit_slots(cfg, sc, ops, {}, {}, -cfg.LA, 0, st, [], {0: 1})
    assert st["rd"] == cfg.LA and 400 % cfg.NB == 0
    bias1 = dict(sc.bias)
    head, pend0 = lgkm_pass(sc.out.ins)
    assert len(pend0) == cfg.LA
    head, nh = hazard_pass(head, verbose=cfg.dbg == "nops")
    sc.out = Prog()
    fill = {}
    split = 272
    post = item_fill(cfg, ops, fill)
    for s_, l in lumps.items():
        fill.setdefault(s_, []).append(f"s_cmp_lg_u32 s{sIT}, 0\ns_cbranch_scc1 L_lump{s_}\n" + "\n".join(l) + f"\nL_lump{s_}:")
    stubs = []
    sc.out("L_item:")
    st["lin"] = []
    st["alts"] = []
    emit_slots(cfg, sc, ops, fill, post, 0, split, st, stubs, {16: 2})
    sc.out(f"s_cmp_lg_u32 s{sIT}, 3\ns_cbranch_scc1 L_more")
    common, pend = lgkm_pass_skips(sc.out.ins, pend0)
    common, n0 = hazard_pass(common, history=head[-20:], verbose=cfg.dbg == "nops")
    sa = copy.deepcopy(sc)
    sa.out = Prog()
    sa.out("L_warm_more:\ns_setpc_b64 s[40:41]\nL_more:")
    fa = {}
    for p, r0, m0 in ((0, 288, 302), (1, 352, 365)):
        spread(fa, [(lambda s_, i=i, p=p: s_.lds("ds_read_b128", R("v", Q0 + 16 * p + 4 * i, 4), pQ, QB + i * 1024)) for i in range(4)], r0, r0 + 3)
        mv_ = "\n".join(f"v_accvgpr_read_b32 v{Q0 + 16 * p + i}, a{STASH + 16 * p + i}" for i in range(16))
        fa.setdefault(m0, []).append(f"s_cmp_lg_u32 s{sIT}, 0\ns_cbranch_scc1 L_lumpm{p}\n{mv_}\nL_lumpm{p}:")
    sta = copy.deepcopy(st)
    sta["rebias"] = bias0
    fa.setdefault(390, []).append(f"s_add_u32 s{sIT}, s{sIT}, 1")
    emit_slots(cfg, sa, copy.deepcopy(ops), fa, {}, split, 400, sta, stubs, {25: 1}, nextops=copy.deepcopy(ops[:cfg.LA]))
    assert sa.bias == bias1 and sta["rd"] == 400 + cfg.LA
    if cfg.trace is True:
        sa.out(f"s_cmp_lg_u32 s{sIT}, {cfg.trace_it + 1}\ns_cbranch_scc1 L_notr\nv_lshlrev_b32 v1, 2, v0\ns_lshl_b32 s62, s2, 10\ns_lshl_b32 s63, s{sW}, 8\ns_add_u32 s62, s62, s63\ns_add_u32 s62, s62, {STAMP_BASE}")
        sa.out(f"buffer_store_dword v2, v1, {srd(SWS)}, s62 offen\ns_waitcnt vmcnt(0)\nL_notr:")
    sa.out("s_branch L_item")
    conta, pe = lgkm_pass_skips(sa.out.ins, pend)
    assert pe == pend0[len(pend0) - len(pe):]
    conta, n1 = hazard_pass(conta, history=common[-20:], verbose=cfg.dbg == "nops")
    sb = copy.deepcopy(sc)
    sb.out = Prog()
    fb = {}
    last_fill(cfg, fb)
    emit_slots(cfg, sb, copy.deepcopy(ops), fb, {}, split, 400, dict(copy.deepcopy(st), alts=None), stubs)
    T = sb.out
    stamp(cfg, T, 3, 0)
    stamp(cfg, T, 4, 0)
    finish_unit(cfg, T, "c", 7, OUTV, sW, sCU, True)
    contb, _ = lgkm_pass(sb.out.ins, pend)
    contb, n2 = hazard_pass(contb, history=common[-20:], verbose=cfg.dbg == "nops")
    stb = Prog()
    for tag, p in stubs:
        stb(f"L_stub_{tag}:\ns_call_b64 s[40:41], L_rare{p}\ns_branch L_back_{tag}")
    info = dict(nops=(nh, n0, n1, n2), est_head=est_cycles(head), est_item=est_cycles(common + conta))
    return head + common + contb + conta + stb.ins + rare_routine(0) + rare_routine(1), info


def lgkm_pass_skips(ins, pending):
    out, seg, pend = [], [], pending
    i = 0
    while i < len(ins):
        x = ins[i]
        if x.kind == "branch" and ("L_lump" in x.text or "L_st0" in x.text or "L_st1" in x.text):
            o, pend = lgkm_pass(seg + [x], pend)
            out += o
            lab = x.text.split()[-1] + ":"
            j = next(k for k in range(i, len(ins)) if ins[k].text == lab)
            o, _ = lgkm_pass(ins[i + 1:j + 1], pend)
            out += o
            seg = []
            i = j + 1
            continue
        seg.append(x)
        i += 1
    o, pend = lgkm_pass(seg, pend)
    return out + o, pend


def generate(cfg):
    pl = plan(cfg)
    P = Prog()
    prologue(cfg, P)
    pro, _ = hazard_pass(P.ins)
    comp, info = compute(cfg, pl)
    w3, info3 = wave3(cfg, pl)
    info.update(info3)
    s = HDR + "; @launch grid=(256,1,1) block=(256,1,1) lds=163840\n"
    s += '.amdgcn_target "amdgcn-amd-amdhsa--gfx950"\n.text\n'
    s += f".globl {KNAME}\n.p2align 8\n.type {KNAME},@function\n{KNAME}:\n"
    s += render(pro) + render(comp) + render(w3) + "L_done:\n    s_endpgm\n"
    s += '.section .rodata,"a"\n.p2align 6\n' + kd(KNAME, 512, 256)
    return s, info, pl


if __name__ == "__main__":
    import build
    name = sys.argv[1]
    kw = {}
    for a in sys.argv[2:]:
        k, v = a.split("=", 1)
        try:
            v = eval(v)
        except Exception:
            pass
        kw[k] = v
    s, info, _ = generate(Cfg(**kw))
    open(name, "w").write(s)
    print(info)
    build.build(name)
```

```python
import copy
import math
import struct
import sys

from asmlib import Prog, parse, lgkm_pass, hazard_pass, render, est_cycles, R

KNAME = "concat_heads__mha_block_cached__gqa_block_cached__near_ridge_kernel"
HDR = open("concat_heads__mha_block_cached__gqa_block_cached__near_ridge.s.ref").read().split("; Override launch")[0]


def f2u(x):
    return struct.unpack("<I", struct.pack("<f", x))[0]


class Cfg:
    mapping = "16x8"
    kvf = " nt"
    wf = ""
    xf = ""
    pstf = " sc1"
    gf = " sc1"
    of = ""
    psleep = 2
    LA = 6
    LB = 4
    NB = 8
    colors = "defabcdabcdefabc" + "abc" * 3
    dmax = 99
    dwo = 2
    reqs = None
    park = (14, 16, 18)
    kv0 = (4, 5, 6)
    WR = 6
    raq = 4
    waitgrp = 4
    wqbatch = 1
    balance = True
    front = True
    stamp = False
    pf = True
    dbl = False
    pfx = False
    thr = 1024.0
    quota = (13, 24, 20) + (20,) * 12 + (21, 21) + (15,) * 6 + (3, 0)
    pf_wo_step = 1
    pf_wq_step = 12
    pf_wq0_step = 1
    dbg = None
    nobar = False
    noload = False
    delay = 0
    prof = False
    trace = False
    trace_it = 2
    warm = True
    dstamp = False
    tlb = 0
    gsp = 1
    pubs = {}
    half = 0

    def __init__(self, **kw):
        for k, v in kw.items():
            assert hasattr(Cfg, k), k
            setattr(self, k, v)


pK = [4, 5, 6, 7]
pV = [8, 9]
pWq = [10, 11]
pWo = [12, 13]
vL, vBS = 14, 15
vT = [16, 17, 18, 19]
vM, vM2, vST, vFL = 20, 21, 22, 23
FR0, NEGM, S0, P0, Q0, O0, OUTV, FRX = 24, 48, 64, 96, 112, 144, 208, 240
OF = S0
pQ = 3
bK, bV, bWo, bM = 248, 249, 250, 251
vD = 252
sW, sB, sH = 3, 4, 5
SK, SV, SWQ, SWO, SX, SWS = 16, 20, 24, 28, 32, 36
sKV, sXo, sWQo, sWOo, sTMP, sIT, sC, sTHR, sT4K, sWSo = 42, 43, 44, 45, 46, 47, 48, 49, 50, 51
sJ, sPAIR, sCU = 52, 53, 59
SDB, SOUT = 68, 72
sTC = 80
sFLG = 89
SWQ2 = 92
SM = 96
sMB, sB0, sWB, sXM, sXM2 = 90, 91, 66, 67, 100
WRB = 24 * 4096
MF = "v_mfma_f32_32x32x16_bf16"
QBUF = 31 * 4096
XRES = 34 * 4096
FLAGBASE = 32 << 20
TORD = (0, 1, 2, 7, 8, 3, 4, 5, 6)


def srd(n):
    return f"s[{n}:{n + 3}]"


def w3_quads():
    return [("wq3", p, t, rb) for p in range(2) for t in TORD for rb in range(2)]


def w3_ops(cfg):
    quads = w3_quads()
    ops = []
    for p in range(2):
        pq = quads[18 * p:18 * p + 18]
        groups = [pq[0:2]] + [[q] for q in pq[2:16]] + [pq[16:18]]
        for grp in groups:
            if len(grp) == 2:
                seqv = [(q, s2, hb) for hb in range(2) for q in grp for s2 in range(2)]
            else:
                seqv = [(grp[0], s2, hb) for s2 in range(2) for hb in range(2)]
            for (q, s2, hb) in seqv:
                ks = 4 * q[2] + 2 * q[3] + s2
                for j in range(3):
                    ops.append(dict(q=q, s2=s2, hb=hb, j=j, ks=ks, p=p, first=(q == pq[0] and s2 == 0), last=(q == pq[17] and s2 == 1)))
    assert len(ops) == 432 == sum(cfg.quota)
    i = 0
    for s, n in enumerate(cfg.quota):
        for o in ops[i:i + n]:
            o["step"] = s
        i += n
    for i in range(0, 432, 3):
        for d in range(3):
            ops[i + d]["astep"] = ops[i]["step"]
    return ops


class Plan:
    pass


def plan_ring(cfg):
    pl = Plan()
    grp = [[("k", 0, 0), ("k", 0, 1), ("k", 1, 0), ("k", 1, 1)]]
    for u in range(1, 15):
        grp.append([("k", u + 1, 0), ("k", u + 1, 1), ("v", u - 1, 0), ("v", u - 1, 1)])
    grp.append([("v", 14, 0), ("v", 14, 1), ("v", 15, 0), ("v", 15, 1)])
    for t in range(9):
        grp.append([("wo", t, rb) for rb in range(4)])
    ns = len(grp)
    addr = {}
    for s_, g in enumerate(grp):
        for k, q in enumerate(g):
            addr[q] = (ord(cfg.colors[s_]) - 97) * 16384 + k * 4096
    start = []
    xslot = (QBUF, WRB, WRB + 12288) * 2 + (QBUF, XRES, XRES + 12288)
    for t in range(9):
        wq = [("wq", t, rb, cb) for rb in range(2) for cb in range(2)]
        for k, q in enumerate(wq):
            addr[q] = (ord(cfg.colors[16 + t]) - 97) * 16384 + k * 4096
        for rb in range(3):
            addr[("x", t, rb)] = xslot[t] + rb * 4096
        start.append(wq + [("x", t, rb) for rb in range(3)])
    for i, q in enumerate(w3_quads()):
        addr[q] = WRB + (i % cfg.WR) * 4096
    req = {b: [] for b in range(ns)}
    for g in range(ns):
        gap = next(d for d in range(1, ns + 1) if cfg.colors[(g - d) % ns] == cfg.colors[g])
        lead = min(gap - 1, cfg.dwo if g >= 16 else cfg.dmax)
        if cfg.reqs:
            lead = (g - cfg.reqs[g]) % ns
            assert lead <= gap - 1, (g, lead, gap)
        elif g < len(cfg.park):
            assert ns + g - cfg.park[g] <= lead
            lead = ns + g - cfg.park[g]
        assert lead >= 1
        req[(g - lead) % ns].append((g, g - lead < 0))
    for b in req:
        req[b].sort(key=lambda e: (e[0] < 16, e[1]))
    pl.req = req
    pl.pro = [g for b in range(ns) for g, w in req[b] if w]
    pl.sreq = {b: [] for b in range(-1, 9)}
    bb = -1
    for n_, g in enumerate(pl.pro):
        b = next(b for b in range(ns) if (g, True) in req[b])
        bb = max(bb, cfg.kv0[n_] if n_ < len(cfg.kv0) else b - 16)
        assert all(cfg.colors[16 + t] != cfg.colors[g] for t in range(max(bb, 0), 9))
        pl.sreq[bb].append(g)
    sissue = {b: [] for b in range(-1, 9)}
    lastuse = {}
    b = -1
    for t in range(9):
        for q in start[t]:
            lo = addr[q]
            b = max(b, lastuse.get(lo, -9) + 1)
            assert b < t
            sissue[b].append(q)
            lastuse[lo] = t
    pl.slast = lastuse
    pl.grp, pl.start, pl.addr, pl.sissue = grp, start, addr, sissue
    return pl


def prologue(cfg, A):
    A("s_cmp_ge_u32 s2, 256\ns_cbranch_scc1 L_done")
    if cfg.trace == "head":
        A("s_memrealtime s[60:61]\ns_waitcnt lgkmcnt(0)\ns_mov_b32 s101, s60")
    DSTAMP[0] = cfg.dstamp
    A(f"v_lshrrev_b32 v1, 6, v0\nv_and_b32 v0, 63, v0\nv_readfirstlane_b32 s{sW}, v1")
    A("s_and_b32 s6, s2, 4\ns_mul_i32 s6, s6, 10\ns_add_u32 s6, s0, s6\ns_addc_u32 s7, s1, 0")
    A("s_load_dwordx2 s[40:41], s[6:7], 0\ns_load_dwordx4 s[8:11], s[6:7], 8\ns_load_dwordx4 s[12:15], s[6:7], 24")
    A("s_load_dwordx2 s[54:55], s[0:1], 96\ns_load_dwordx4 s[76:79], s[0:1], 80")
    A(f"s_and_b32 s57, s2, 3\ns_lshr_b32 s{sJ}, s2, 3")
    if cfg.mapping == "16x8":
        A(f"s_lshr_b32 s{sB}, s{sJ}, 1\ns_and_b32 s{sH}, s{sJ}, 1\ns_lshl_b32 s{sH}, s{sH}, 2\ns_lshl_b32 s57, s57, 3\ns_add_u32 s{sH}, s{sH}, s57")
    elif cfg.mapping == "8x16":
        A(f"s_and_b32 s56, s57, 1\ns_lshl_b32 s56, s56, 3\ns_lshr_b32 s{sB}, s{sJ}, 2\ns_add_u32 s{sB}, s{sB}, s56")
        A(f"s_lshr_b32 s56, s57, 1\ns_lshl_b32 s56, s56, 4\ns_and_b32 s{sH}, s{sJ}, 3\ns_lshl_b32 s{sH}, s{sH}, 2\ns_add_u32 s{sH}, s{sH}, s56")
    else:
        A(f"s_lshl_b32 s56, s57, 2\ns_lshr_b32 s{sB}, s{sJ}, 3\ns_add_u32 s{sB}, s{sB}, s56\ns_and_b32 s{sH}, s{sJ}, 7\ns_lshl_b32 s{sH}, s{sH}, 2")
    if cfg.half:
        A(f"s_and_b32 s56, s{sB}, {cfg.half}\ns_cmp_lg_u32 s56, 0\ns_cbranch_scc1 L_done")
    A(f"s_lshl_b32 s{sKV}, s{sB}, 22\ns_lshl_b32 s56, s{sH}, 17\ns_add_u32 s{sKV}, s{sKV}, s56")
    A(f"s_mul_i32 s{sXo}, s{sB}, 110592\ns_lshl_b32 s{sWQo}, s{sH}, 8\ns_mul_i32 s{sWOo}, s{sH}, 147456")
    A(f"s_and_b32 s56, s2, 4\ns_lshl_b32 s56, s56, 2\ns_add_u32 s{sPAIR}, s56, s{sB}\ns_lshr_b32 s{sCU}, s{sH}, 2")
    for tau in range(9):
        A(f"s_add_u32 s56, s{sCU}, {1 + tau}\ns_cmp_ge_u32 s56, 9\ns_cselect_b32 s57, 9, 0\ns_sub_u32 s56, s56, s57\ns_lshl_b32 s{sTC + tau}, s56, 7")
    A(f"s_mov_b32 s{sIT}, 0\ns_mov_b32 s{sC}, {hex(f2u(math.log2(math.e) / math.sqrt(128.0)))}")
    A(f"s_cmp_eq_u32 s{sW}, 3\ns_cselect_b32 s56, s{sCU}, s{sW}\ns_mul_i32 s57, s{sPAIR}, 3\ns_add_u32 s56, s56, s57\ns_lshl_b32 s56, s56, 12\ns_add_u32 s{sFLG}, s56, {FLAGBASE}")
    A(f"s_cmp_eq_u32 s{sW}, 3\ns_cbranch_scc1 L_loader")


def descriptors(A):
    A("s_waitcnt lgkmcnt(0)")
    for d, b, n in ((SWQ, 12, 4718592), (SX, 40, 1769472), (SWS, 54, 290848768), (SK, 8, 0x4000000), (SV, 10, 0x4000000),
                    (SWO, 14, 4718592), (SWQ2, 12, 4718592), (SOUT, 76, 3538944), (SDB, 78, 256)):
        A(f"s_mov_b32 s{d}, s{b}\ns_mov_b32 s{d + 1}, s{b + 1}\ns_mov_b32 s{d + 2}, {n}\ns_mov_b32 s{d + 3}, 0x20000")
    if DSTAMP[0]:
        A("s_memrealtime s[60:61]\ns_memtime s[62:63]\ns_waitcnt lgkmcnt(0)\ns_mov_b32 s8, s60\ns_mov_b32 s11, s62")


DSTAMP = [False]


def tlb_warm(cfg, A, dst, tmp):
    n = 0
    if not cfg.tlb:
        return n
    A(f"v_lshlrev_b32 v{tmp}, {cfg.tlb}, v0\ns_mul_i32 s58, s{sPAIR}, 884736")
    for sr, base, span, fl in ((SK, f"s{sKV}", 1 << 19, " nt"), (SV, f"s{sKV}", 1 << 19, " nt"), (SWO, f"s{sWOo}", 589824, " nt"),
                               (SWQ, f"s{sWQo}", 4718592, " nt"), (SWS, "s58", 884736, " nt")):
        lanes = min(64, -(-span >> cfg.tlb))
        A(f"s_mov_b64 exec, {hex((1 << lanes) - 1)}" if lanes <= 32 else f"s_mov_b32 exec_lo, -1\ns_mov_b32 exec_hi, {hex((1 << (lanes - 32)) - 1)}")
        A(f"buffer_load_dword v{dst}, v{tmp}, {srd(sr)}, {base} offen{fl}")
        n += 1
    A("s_mov_b64 exec, -1")
    return n


def sample_flags(A):
    A(f"v_and_b32 v1, 7, v0\nv_lshlrev_b32 v1, 2, v1\nbuffer_load_dword v{vFL}, v1, {srd(SWS)}, s{sFLG} offen sc1")


STAMP_BASE = 64 << 20


def stamp(cfg, A, k, who):
    if not cfg.stamp:
        return 0
    A("s_memrealtime s[60:61]\ns_memtime s[64:65]\ns_waitcnt lgkmcnt(0)")
    A(f"s_lshl_b32 s62, s2, 10\ns_lshl_b32 s63, s{sIT}, 7\ns_add_u32 s62, s62, s63\ns_add_u32 s62, s62, {STAMP_BASE + who * 512 + 8 * k}")
    t = 18 if who else 0
    if who:
        A(f"v_mov_b32 v{t}, s60\nv_mov_b32 v{t + 1}, s64\nv_mov_b32 v{t + 2}, 0\nbuffer_store_dwordx2 v[{t}:{t + 1}], v{t + 2}, {srd(SWS)}, s62 offen")
    else:
        A(f"v_mov_b32 v0, s60\nv_mov_b32 v1, s64\nv_mov_b32 v2, 0\nbuffer_store_dwordx2 v[0:1], v2, {srd(SWS)}, s62 offen")
        A("s_nop 1\nv_mbcnt_lo_u32_b32 v0, -1, 0\nv_mbcnt_hi_u32_b32 v0, -1, v0")
    return 1


class Sched:
    def __init__(self, cfg):
        self.cfg = cfg
        self.bias = {}
        self.nbuf = 0
        self.out = Prog()

    def fbuf(self):
        i = self.nbuf % self.cfg.NB
        self.nbuf += 1
        return FR0 + 4 * i if i < 6 else FRX + 4 * (i - 6)

    def lds(self, op, reg, preg, a):
        b = self.bias[preg]
        if not (0 <= a - b <= 65535):
            nb = a & ~4095
            self.out(f"v_add_u32 v{preg}, {(nb - b) & 0xffffffff}, v{preg}")
            self.bias[preg] = b = nb
        if op.startswith("ds_read"):
            self.out(f"{op} {reg}, v{preg} offset:{a - b}")
        else:
            self.out(f"{op} v{preg}, {reg} offset:{a - b}")

    def rebias(self, preg, nb):
        b = self.bias[preg]
        if b != nb:
            self.out(f"v_add_u32 v{preg}, {(nb - b) & 0xffffffff}, v{preg}")
            self.bias[preg] = nb


def spread(fill, ops_list, s0, s1):
    n = s1 - s0 + 1
    cost = [2 if isinstance(o, str) and o.startswith("v_exp") else 1 for o in ops_list]
    tot = sum(cost)
    acc = 0
    for o, c in zip(ops_list, cost):
        k = min(n - 1, int((acc + c / 2) * n / tot))
        fill.setdefault(s0 + k, []).append(o)
        acc += c


def spread_bal(cfg, ops, fill, ops_list, s0, s1):
    if not cfg.balance:
        return spread(fill, ops_list, s0, s1)
    base = []
    for i in range(s0, s1 + 1):
        o = ops[min(i + cfg.LA, len(ops) - 1)]
        base.append(len(o["a"]) + (1 if i % cfg.waitgrp == 0 else 0) + sum(VMCOST if isinstance(f, tuple) else 1 for f in fill.get(i, [])))
    cost = [2 if isinstance(o, str) and o.startswith("v_exp") else 1 for o in ops_list]
    level = (sum(cost) + sum(base)) / len(base)
    k, room = 0, level - base[0]
    for o, c in zip(ops_list, cost):
        while k < len(base) - 1 and room < c / 2:
            k += 1
            room += level - base[k]
        fill.setdefault(s0 + k, []).append(o)
        room -= c


def k_patterns(A, xform, off=None):
    A("v_lshrrev_b32 v1, 5, v0\nv_and_b32 v2, 31, v0\nv_lshrrev_b32 v16, 1, v2\nv_and_b32 v16, 7, v16\nv_xor_b32 v16, v16, v1")
    if xform:
        A("v_lshlrev_b32 v2, 7, v2")
        if off:
            A(f"v_add_u32 v2, s{off}, v2")
    else:
        A("v_lshrrev_b32 v17, 2, v2\nv_and_b32 v2, 3, v2\nv_lshlrev_b32 v2, 7, v2\nv_lshl_add_u32 v2, v17, 10, v2")
    for j in range(4):
        A(f"v_xor_b32 v17, {2 * j}, v16\nv_lshl_add_u32 v{pK[j]}, v17, 4, v2")


def lane_patterns(A, with_wave_offset):
    k_patterns(A, True, sT4K if with_wave_offset else None)
    A("v_lshrrev_b32 v2, 2, v0\nv_and_b32 v2, 3, v2\nv_lshrrev_b32 v3, 1, v2\nv_lshlrev_b32 v3, 6, v3")
    A("v_lshrrev_b32 v16, 4, v0\nv_and_b32 v16, 1, v16\nv_and_b32 v17, 1, v0\nv_lshrrev_b32 v18, 1, v0\nv_and_b32 v18, 1, v18")
    A("v_lshl_add_u32 v19, v1, 2, v2\nv_lshlrev_b32 v19, 7, v19\nv_lshl_add_u32 v20, v1, 3, v2\nv_lshlrev_b32 v20, 7, v20")
    A("v_lshlrev_b32 v21, 5, v16\nv_lshl_add_u32 v21, v17, 3, v21\nv_lshl_add_u32 v21, v18, 4, v21\nv_lshl_add_u32 v21, v2, 7, v21\nv_lshl_add_u32 v21, v1, 10, v21")
    A(f"v_add_u32 v{pV[0]}, v21, v3\nv_xor_b32 v{pV[1]}, 64, v{pV[0]}")
    A("v_lshlrev_b32 v21, 5, v16\nv_lshl_add_u32 v21, v17, 4, v21\nv_lshl_add_u32 v21, v18, 3, v21\nv_add_u32 v21, v21, v20")
    A(f"v_add_u32 v{pWq[0]}, v21, v3\nv_xor_b32 v{pWq[1]}, 64, v{pWq[0]}")
    A("v_lshlrev_b32 v21, 5, v17\nv_lshl_add_u32 v21, v16, 4, v21\nv_lshl_add_u32 v21, v18, 3, v21\nv_add_u32 v21, v21, v19")
    A(f"v_add_u32 v{pWo[0]}, v21, v3\nv_xor_b32 v{pWo[1]}, 64, v{pWo[0]}")


def kv_offsets(A, dk, dv):
    A("v_lshrrev_b32 v1, 3, v0\nv_and_b32 v1, 3, v1\nv_and_b32 v2, 7, v0\nv_lshrrev_b32 v16, 5, v0\nv_lshlrev_b32 v16, 7, v16\nv_lshl_add_u32 v16, v1, 8, v16")
    A(f"v_lshrrev_b32 v1, 1, v1\nv_xor_b32 v17, v1, v2\nv_lshl_add_u32 v{dk}, v17, 4, v16")
    A(f"v_lshlrev_b32 v1, 2, v1\nv_xor_b32 v17, v1, v2\nv_lshl_add_u32 v{dv}, v17, 4, v16")


def finish_unit(cfg, A, tag, nsrc, acc, w_sreg, t_sreg, publish, G=32):
    A("v_and_b32 v10, 7, v0\nv_lshlrev_b32 v1, 2, v10\nv_lshlrev_b32 v6, 4, v0")
    A(f"buffer_load_dword v2, v1, {srd(SWS)}, s{sFLG} offen sc1")
    A(f"s_mul_i32 s56, s{sPAIR}, 884736\ns_mul_i32 s57, s{t_sreg}, 3\ns_add_u32 s57, s57, s{w_sreg}\ns_lshl_b32 s57, s57, 15\ns_add_u32 s56, s56, s57")
    A(f"s_mul_i32 s60, s{sB}, 96\ns_lshl_b32 s58, s{w_sreg}, 5\ns_add_u32 s60, s60, s58\ns_mul_i32 s60, s60, 2304\ns_lshl_b32 s58, s{t_sreg}, 7\ns_add_u32 s60, s60, s58")
    A("s_and_b32 s58, s2, 4\ns_mul_i32 s58, s58, 288\ns_add_u32 s60, s60, s58")
    A("v_and_b32 v7, 31, v0\nv_mul_u32_u24 v7, 2304, v7\nv_lshrrev_b32 v3, 5, v0\nv_lshl_add_u32 v7, v3, 5, v7")
    A(f"v_sub_u32 v10, s{t_sreg}, v10\nv_add_u32 v3, 9, v10\nv_cmp_gt_i32 vcc, 1, v10\nv_cndmask_b32 v10, v10, v3, vcc")
    A(f"s_mov_b32 s62, {((1 << nsrc) - 1) << 1}\ns_mov_b32 s58, 0\ns_mov_b32 s64, {nsrc}")
    if nsrc == 8:
        for k in range(32):
            A(f"v_mov_b32 v{acc + k}, 0")
    A("v_and_b32 v4, 31, v0\nv_lshrrev_b32 v5, 5, v0\nv_lshlrev_b32 v5, 2, v5\nv_sub_u32 v4, v4, v5\nv_mov_b32 v8, 0x3f80\nv_mov_b32 v9, 0x3f800000")
    for u in range(2):
        for i in range(4):
            m0 = 16 * u + 8 * (i >> 1) + 2 * (i & 1)
            A(f"v_cmp_eq_u32 vcc, {m0}, v4\nv_cmp_eq_u32 s[66:67], {m0 + 1}, v4\nv_mov_b32 v5, 0\nv_cndmask_b32 v5, v5, v8, vcc\nv_cndmask_b32 v{24 + 4 * u + i}, v5, v9, s[66:67]")
    if publish:
        A(f"v_add_u32 v3, 8, v{vFL}\ns_lshl_b32 s66, 1, s{sCU}\ns_mov_b32 s67, 0\ns_waitcnt vmcnt(0)\ns_mov_b64 exec, s[66:67]")
        A(f"buffer_store_dword v3, v1, {srd(SWS)}, s{sFLG} offen sc1\ns_mov_b64 exec, -1\ns_branch L_chk{tag}")
    A(f"L_poll{tag}:\ns_waitcnt vmcnt(0)\nL_chk{tag}:\nv_sub_u32 v3, v2, v{vFL}\nv_cmp_ge_u32 vcc, v3, v10")
    A(f"s_and_b32 s63, vcc_lo, 0xffff\ns_lshr_b32 s63, s63, s{sCU}\ns_and_b32 s63, s63, s62\ns_cbranch_scc1 L_some{tag}")
    A(f"s_add_u32 s58, s58, 1\ns_cmp_gt_u32 s58, 0x100000\ns_cbranch_scc1 L_out{tag}\ns_sleep {cfg.psleep}")
    A(f"buffer_load_dword v2, v1, {srd(SWS)}, s{sFLG} offen sc1\ns_branch L_poll{tag}\nL_some{tag}:")
    for i in range(nsrc, 0, -1):
        A(f"s_bitcmp1_b32 s63, {i}\ns_cbranch_scc0 L_nl{tag}{i}")
        A(f"s_add_u32 s57, s{sCU}, {i}\ns_and_b32 s57, s57, 7\ns_lshl_b32 s57, s57, 12\ns_add_u32 s57, s57, s56")
        for p in range(4):
            A(f"buffer_load_dwordx4 {R('v', G + 16 * (i - 1) + 4 * p, 4)}, v6, {srd(SWS)}, s57 offen offset:{1024 * p}{cfg.gf}")
        A(f"L_nl{tag}{i}:")
    A(f"buffer_load_dword v2, v1, {srd(SWS)}, s{sFLG} offen sc1\ns_andn2_b32 s62, s62, s63\ns_waitcnt vmcnt(1)")
    for i in range(nsrc, 0, -1):
        A(f"s_cmp_lg_u32 s64, {i}\ns_cbranch_scc1 L_na{tag}{i}\ns_bitcmp1_b32 s62, {i}\ns_cbranch_scc1 L_poll{tag}")
        for p in range(4):
            d = R("v", acc + 16 * (p >> 1), 16)
            A(f"{MF} {d}, {R('v', 24 + 4 * (p & 1), 4)}, {R('v', G + 16 * (i - 1) + 4 * p, 4)}, {d}")
        A(f"s_mov_b32 s64, {i - 1}\nL_na{tag}{i}:")
    A(f"L_out{tag}:\ns_nop 15")
    for p in range(4):
        for k in range(4):
            A(f"v_cvt_pk_bf16_f32 v{8 + 4 * p + k}, v{acc + 8 * p + 2 * k}, v{acc + 8 * p + 2 * k + 1}")
        A(f"buffer_store_dwordx4 {R('v', 8 + 4 * p, 4)}, v7, {srd(SOUT)}, s60 offen offset:{64 * (p >> 1) + 16 * (p & 1)}{cfg.of}")
    if cfg.stamp and publish:
        A("s_waitcnt vmcnt(0)")
        stamp(cfg, A, 5, 0)
    if cfg.dstamp and publish:
        A(f"s_waitcnt vmcnt(0)\ns_and_b32 s56, s2, 0xf3\ns_or_b32 s56, s56, s{sW}\ns_cmp_lg_u32 s56, 0\ns_cbranch_scc1 L_nods{tag}")
        A("s_memrealtime s[60:61]\ns_memtime s[62:63]\ns_waitcnt lgkmcnt(0)\ns_sub_u32 s9, s9, s8\ns_sub_u32 s10, s10, s8\ns_sub_u32 s60, s60, s8\ns_sub_u32 s62, s62, s11")
        A(f"v_mov_b32 v4, s9\nv_mov_b32 v5, s10\nv_mov_b32 v6, s60\nv_mov_b32 v7, s62\ns_lshl_b32 s56, s2, 2\nv_mov_b32 v8, s56\ns_mov_b64 exec, 1")
        A(f"buffer_store_dwordx4 v[4:7], v8, {srd(SDB)}, 0 offen\nL_nods{tag}:")
    A("s_endpgm")


def last_fill(cfg, fb):
    for t in range(1, 9):
        s0 = 256 + 16 * t
        if t in cfg.pubs:
            fb.setdefault(s0 + 2, []).append({"pub": cfg.pubs[t]})
        spread(fb, store_block(cfg, 2 * t - 2, Q0, P0) + store_block(cfg, 2 * t - 1, Q0 + 16, P0 + 8), s0 + 3, s0 + 15)
    fb.setdefault(274, []).append(f"v_and_b32 v1, 7, v0\nv_lshlrev_b32 v1, 2, v1\ns_lshl_b32 s64, 1, s{sCU}\ns_mov_b32 s65, 0")


vK, vV, vWq, vWo, vX = 24, 28, 32, 36, 176
W3A = 40
W3B = 52
W3X = 76
W3ACC = 160
vTQ, vTO, vTX, vDUM = 12, 13, 14, 15
pQ3 = 22


def xreg(ks, j):
    i = ks * 3 + j
    return R("a", 4 * i, 4) if i < 64 else R("v", W3X + 4 * (i - 64), 4)


def wave3(cfg, pl):
    addr = pl.addr
    sc = Sched(cfg)
    A = sc.out
    A("L_loader:")
    if cfg.prof:
        A("s_mov_b32 s96, 0\ns_mov_b32 s97, 0\ns_mov_b32 s98, 0\ns_mov_b32 s99, 0")
    lane_patterns(A, False)
    A(f"v_lshlrev_b32 v{pQ3}, 4, v0")
    for p in pK + pWq + [pQ3]:
        sc.bias[p] = 0
    A("v_lshrrev_b32 v1, 3, v0\nv_and_b32 v2, 7, v0\nv_lshrrev_b32 v3, 4, v0")
    A("v_and_b32 v16, 1, v3\nv_lshlrev_b32 v16, 2, v16\nv_xor_b32 v16, v16, v2\nv_lshlrev_b32 v16, 4, v16")
    A("v_lshlrev_b32 v18, 8, v1\nv_lshlrev_b32 v19, 13, v1\nv_mul_u32_u24 v20, 1152, v1")
    for g in range(4):
        A(f"v_add_u32 v17, {4 * g}, v3\nv_and_b32 v17, 7, v17\nv_xor_b32 v17, v17, v2\nv_lshlrev_b32 v17, 4, v17")
        A(f"v_add_u32 v17, {g * (9216 - 1024)}, v17\nv_add_u32 v{vX + g}, v17, v20")
        A(f"v_add_u32 v17, {g * (65536 - 1024)}, v16\nv_add_u32 v{vWq + g}, v17, v19")
        A(f"v_add_u32 v17, {g * (9216 - 1024)}, v16\nv_add_u32 v{vWo + g}, v17, v20")
    kv_offsets(A, vK, vV)
    for g in range(1, 4):
        A(f"v_xor_b32 v{vK + g}, {32 * g}, v{vK}\nv_mov_b32 v{vV + g}, v{vV}")
    nsh = {"16x8": 16, "8x16": 8, "4x32": 4}[cfg.mapping]
    xsh = 32 // nsh
    rows = 576 // nsh
    A(f"s_and_b32 s56, s{sB}, {nsh - 1}\nv_mov_b32 v21, 0x7fffff00\nv_cmp_gt_u32 vcc, 36, v0")
    A(f"v_lshrrev_b32 v{vTQ}, 1, v0\nv_lshlrev_b32 v{vTQ}, 13, v{vTQ}\nv_and_b32 v17, 1, v0\nv_lshlrev_b32 v17, 7, v17\nv_add_u32 v{vTQ}, v{vTQ}, v17")
    A(f"s_mul_i32 s57, s56, {rows * 8192}\nv_add_u32 v{vTQ}, s57, v{vTQ}\nv_cndmask_b32 v{vTQ}, v21, v{vTQ}, vcc")
    A(f"v_lshlrev_b32 v{vTO}, 7, v0\ns_mul_i32 s57, s56, {rows * 256}\nv_add_u32 v{vTO}, s57, v{vTO}\nv_cndmask_b32 v{vTO}, v21, v{vTO}, vcc")
    A(f"v_cmp_gt_u32 vcc, 54, v0\nv_lshlrev_b32 v{vTX}, 7, v0\ns_and_b32 s57, s{sCU}, {xsh - 1}\ns_mul_i32 s57, s57, {110592 // xsh}\nv_add_u32 v{vTX}, s57, v{vTX}")
    A(f"v_cndmask_b32 v{vTX}, v21, v{vTX}, vcc")

    def touch_ops(vreg, srd_, base, add, step, nl=rows * 2, per=36):
        l = []
        if not cfg.pf:
            return l
        for i in range(nl // per):
            l.append(f"s_add_u32 s{sTMP}, s{base}, {i * per * step + add}")
            for fl in ((" nt", "") if cfg.dbl else ("",)):
                l.append(("vm", f"buffer_load_dword v{vDUM}, v{vreg}, {srd(srd_)}, s{sTMP} offen{fl}"))
        return l

    def quad_ops(q, w=False):
        k = q[0]
        pre = []
        if k == "k":
            off, base, v, sr, fl = q[1] * 8192 + q[2] * 4096, sKV, vK, SK, cfg.kvf
        elif k == "v":
            off, base, v, sr, fl = q[1] * 8192 + q[2] * 4096, sKV, vV, SV, cfg.kvf
        elif k == "wq":
            off, base, v, sr, fl = (q[1] * 64 + q[2] * 32) * 8192 + q[3] * 128, sWQo, vWq, SWQ, cfg.wf
        elif k == "wq3":
            off, base, v, sr, fl = (q[2] * 64 + q[3] * 32) * 8192 + q[1] * 128 + 256, sWQo, vWq, (SWQ2 if w else SWQ), cfg.wf
        elif k == "x":
            off, base, v, sr, fl = q[2] * 32 * 1152 + q[1] * 128, sXo, vX, SX, cfg.xf
        else:
            pre = [f"s_add_u32 s{sTMP}, s{sWOo}, s{sTC + q[1]}"]
            off, base, v, sr, fl = q[2] * 32 * 1152, sTMP, vWo, SWO, cfg.wf
        l = pre + [f"s_mov_b32 m0, {addr[q]}", f"s_add_u32 s{sTMP}, s{base}, {off}"]
        for g in range(4):
            if not cfg.noload:
                l.append(("vm", f"buffer_load_dwordx4 v{v + g}, {srd(sr)}, s{sTMP} offen offset:{g * 1024}{fl} lds", q, g))
        return l

    lin = []

    def put(sc_, o, gen=0):
        if isinstance(o, tuple):
            sc_.out(o[1])
            lin.append((o[2] if len(o) > 2 else None, gen))
        elif callable(o):
            o(sc_)
        else:
            sc_.out(o)

    def wait_for(sc_, quads, gen):
        if cfg.noload:
            return
        last = max(k for k, e in enumerate(lin) if e[0] in quads and e[1] == gen)
        sc_.out(f"s_waitcnt vmcnt({min(63, len(lin) - 1 - last)})")

    def bar(sc_):
        if not cfg.nobar:
            sc_.out("s_barrier")

    descriptors(A)
    if stamp(cfg, A, 15, 1):
        lin.append((None, 0))
    if cfg.delay:
        A(f"s_and_b32 s56, s{sB}, 1\ns_cmp_eq_u32 s56, 0\ns_cbranch_scc1 L_nodelay")
        for _ in range(cfg.delay):
            A("s_sleep 32")
        A("L_nodelay:")
    for n_, q in enumerate(pl.sissue[-1]):
        for o in quad_ops(q):
            put(sc, o)
        if n_ == 6:
            sample_flags(A)
            lin.append((("flag",), 0))
    bias0 = {p: XRES for p in pK}
    bias0.update({p: WRB for p in pWq})
    bias0[pQ3] = QBUF
    ops = w3_ops(cfg)
    quads = w3_quads()
    ns = len(pl.grp)

    def conv_tile(p, hb, j):
        acc = W3ACC + 16 * (3 * hb + j)
        l = []
        for s in range(2):
            pk = W3B + 8 + 4 * s
            for k in range(4):
                t0 = W3B + 2 * (k & 1)
                r = acc + 8 * s + 2 * k
                l += [f"v_mul_f32 v{t0}, s{sC}, v{r}", f"v_mul_f32 v{t0 + 1}, s{sC}, v{r + 1}", f"v_cvt_pk_bf16_f32 v{pk + k}, v{t0}, v{t0 + 1}"]
            l.append(lambda sc_, pk=pk, a=QBUF + (j * 4 + hb * 2 + s) * 1024: sc_.lds("ds_write_b128", R("v", pk, 4), pQ3, a))
        return l

    def period(last, pro):
        nonlocal lin
        sc2 = Sched(cfg)
        sc2.bias = dict(bias0)
        B = sc2.out
        lin = [(q, 0) for q in pro for g in range(4)] if not cfg.noload else []
        myops = [] if last else copy.deepcopy(ops)
        n = len(myops)
        fill = {}
        bpos = {s: (sum(cfg.quota[:s]) if not last else 0) for s in range(ns + 1)}
        enq = {}
        if not last:
            lastidx = {(o["p"], o["hb"], o["j"]): i for i, o in enumerate(ops) if o["last"]}
            for p, hb in ((0, 0), (1, 0), (0, 1)):
                i0 = lastidx[(p, hb, 2)]
                spread(fill, sum((conv_tile(p, hb, j) for j in range(3)), []), i0 + 4, i0 + 12)
            assert lastidx[(0, 1, 2)] + 16 <= bpos[18] and lastidx[(1, 0, 2)] + 4 >= bpos[19]
            firstop = {q: min(i for i, o in enumerate(ops) if o["q"] == q) for q in quads}
            lastop = {q: max(i for i, o in enumerate(ops) if o["q"] == q) - 2 for q in quads}
            seg = lambda i: max(s for s in range(ns) if bpos[s] <= i)
            at = 0
            for k in range(36, 72):
                prev = max(j for j in range(k) if addr[quads[j % 36]] == addr[quads[k % 36]])
                free = lastop[quads[prev % 36]] + 1 + (prev // 36 - 1) * n
                sneed = seg(firstop[quads[k % 36]]) - cfg.raq
                early = bpos[sneed] if sneed >= 0 else bpos[sneed + ns] - n
                at = max(free, early) if k == 36 else max(at, free, early)
                assert at <= firstop[quads[k % 36]] - 5
                enq.setdefault(at % n if at < 0 else at, []).append((quads[k % 36], at < 0))
        st = dict(wrapq=False, wrapg=False, rdA=0, rdB=0, abuf=0, bbuf=0, step=-1)
        queue = []

        def drain(nvm):
            while queue and nvm > 0:
                o, g = queue.pop(0)
                put(sc2, o, g)
                nvm -= isinstance(o, tuple)

        def open_step(s):
            if cfg.trace is True:
                B(f"s_memtime s[60:61]\ns_waitcnt lgkmcnt(0)\nv_writelane_b32 v2, s60, {s}")
            wait_for(sc2, {pl.grp[s][3]}, 0)
            if cfg.trace is True:
                B(f"s_memtime s[60:61]\ns_waitcnt lgkmcnt(0)\nv_writelane_b32 v2, s60, {32 + s}")
            if s in (0, 16):
                if stamp(cfg, B, {0: 1, 16: 2}[s], 1):
                    lin.append((None, 0))
            if last and s == 16:
                B("v_readfirstlane_b32 s57, v17\ns_mov_b32 s58, 0\nL_chk:\ns_cmp_ge_u32 s57, 8\ns_cbranch_scc1 L_chkend")
                B(f"buffer_load_dword v17, v16, {srd(SDB)}, 0 offen offset:{128 if cfg.dstamp else 0} sc1\ns_add_u32 s58, s58, 1\ns_waitcnt vmcnt(0)\nv_readfirstlane_b32 s57, v17")
                B("s_cmp_lt_u32 s58, 0x80000\ns_cbranch_scc1 L_chk\nL_chkend:")
            bar(sc2)
            for g, w in pl.req[s]:
                if w and not st["wrapg"]:
                    st["wrapg"] = True
                    queue.append((f"s_add_u32 s{sKV}, s{sKV}, 0x20000", 0))
                assert g >= 16 or w == st["wrapg"]
                if not (last and w):
                    queue.extend((o, int(w)) for o in quad_ops(pl.grp[g][3]))
            if last and s == 2:
                queue.extend([(f"s_lshl_b32 s56, s{sPAIR}, 2", 0), ("v_mov_b32 v16, s56", 0), (("vm", f"buffer_load_dword v17, v16, {srd(SDB)}, 0 offen offset:{128 if cfg.dstamp else 0} sc1"), 0)])
            if s == cfg.pf_wo_step:
                queue.extend((o, 0) for o in touch_ops(vTO, SWO, sWOo, 0, 128))
            if s == cfg.pf_wq_step and not last:
                queue.append((f"s_cmp_eq_u32 s{sIT}, 2\ns_cselect_b32 s{SWQ2 + 2}, 0, s{SWQ2 + 2}", 0))
                queue.extend((o, 0) for o in touch_ops(vTQ, SWQ2, sWQo, 512, 4096))
            if cfg.warm and s == 9 and not last:
                queue.append(("s_call_b64 s[40:41], L_warm_more", 0))
            if bpos[s + 1] == bpos[s]:
                drain(99)
            st["step"] = s

        for i in range(n):
            while st["step"] + 1 < ns and bpos[st["step"] + 1] <= i:
                open_step(st["step"] + 1)
            for q, w in enq.get(i, []):
                if w and not st["wrapq"]:
                    st["wrapq"] = True
                    queue.append((f"s_add_u32 s{sWQo}, s{sWQo}, 256", 0))
                assert w == st["wrapq"]
                queue.extend((o, int(w)) for o in quad_ops(q, w))
            while st["rdA"] < n and st["rdA"] <= i + 5:
                o = myops[st["rdA"]]
                if st["rdA"] == firstop[o["q"]] and not cfg.noload:
                    while lin.count((o["q"], 0)) < 4:
                        drain(1)
                    wait_for(sc2, {o["q"]}, 0)
                fb = W3A + 4 * (st["abuf"] % 3)
                st["abuf"] += 1
                qa = addr[o["q"]] + 16 * o["s2"] * 128
                sc2.lds("ds_read_b64_tr_b16", R("v", fb, 2), pWq[o["hb"]], qa)
                sc2.lds("ds_read_b64_tr_b16", R("v", fb + 2, 2), pWq[o["hb"]], qa + 4 * 128)
                for d in range(3):
                    myops[st["rdA"] + d]["areg"] = fb
                st["rdA"] += 3
            while st["rdB"] < n and st["rdB"] <= i + 5:
                o = myops[st["rdB"]]
                if o["ks"] < 28:
                    o["breg"] = xreg(o["ks"], o["j"])
                elif o["hb"] == 0:
                    bb = W3B + 4 * (st["bbuf"] % 6)
                    st["bbuf"] += 1
                    sc2.lds("ds_read_b128", R("v", bb, 4), pK[o["ks"] & 3], XRES + (((o["ks"] >> 2) - 7) * 3 + o["j"]) * 4096)
                    assert myops[st["rdB"] + 3]["ks"] == o["ks"]
                    o["breg"] = myops[st["rdB"] + 3]["breg"] = R("v", bb, 4)
                st["rdB"] += 1
            drain(1)
            for o in fill.get(i, []):
                put(sc2, o)
            o = myops[i]
            d = R("v", W3ACC + 16 * (3 * o["hb"] + o["j"]), 16)
            B(f"{MF} {d}, {R('v', o['areg'], 4)}, {o['breg']}, {'0' if o['first'] else d}")
        drain(99)
        if not last:
            for o in sum((conv_tile(1, 1, j) for j in range(3)), []):
                put(sc2, o)
            B("s_waitcnt lgkmcnt(0)")
            assert st["step"] + 1 < ns
        while st["step"] + 1 < ns:
            open_step(st["step"] + 1)
        tailq = [e[0] for e in lin if e[1] == 1][::4]
        if not last:
            B(f"s_add_u32 s{sWOo}, s{sWOo}, 147456")
            for p, b in bias0.items():
                sc2.rebias(p, b)
            if cfg.trace is True:
                B(f"s_cmp_lg_u32 s{sIT}, {cfg.trace_it}\ns_cbranch_scc1 L_notr3\nv_lshlrev_b32 v1, 2, v0\ns_lshl_b32 s62, s2, 10\ns_add_u32 s62, s62, {STAMP_BASE + 768}")
                B(f"buffer_store_dword v2, v1, {srd(SWS)}, s62 offen\ns_waitcnt vmcnt(0)\nL_notr3:")
            B(f"s_add_u32 s{sIT}, s{sIT}, 1\ns_cmp_lt_u32 s{sIT}, 3\ns_cbranch_scc1 L_w3loop")
        body, pe = lgkm_pass(B.ins)
        assert not pe
        return body, tailq

    lin0 = list(lin)
    _, pro = period(False, [pl.grp[g][3] for g in pl.pro] + quads[:cfg.WR])
    loopbody, pro2 = period(False, pro)
    assert pro2 == pro
    lastp, _ = period(True, pro)
    lin = lin0
    if cfg.noload:
        pro = []
    todo = list(pro)
    for t in range(9):
        wait_for(sc, set(pl.start[t]) | ({("flag",)} if t == 0 else set()), 0)
        A("s_waitcnt lgkmcnt(0)")
        bar(sc)
        if t == 0:
            A(f"s_lshl_b32 s56, s{sPAIR}, 2\nv_mov_b32 v16, s56\nv_mov_b32 v17, 1\ns_mov_b64 exec, 1")
            put(sc, ("vm", f"buffer_atomic_add v17, v16, {srd(SDB)}, 0 offen offset:{128 if cfg.dstamp else 0} sc1"))
            A("s_mov_b64 exec, -1")
        if t < 7:
            for s in range(4):
                for j in range(3):
                    sc.lds("ds_read_b128", xreg(4 * t + s, j), pK[s], addr[("x", t, j)])
        if t == cfg.pf_wq0_step:
            for o in touch_ops(vTQ, SWQ, sWQo, 256, 4096):
                put(sc, o)
        for q in pl.sissue[t]:
            for o in quad_ops(q):
                put(sc, o)
        while todo:
            q = todo[0]
            if q[0] == "wq3":
                if pl.slast.get(addr[q], -9) >= t:
                    break
                if any(pl.sissue[b] for b in range(t + 1, 9)):
                    break
            elif not any(pl.grp[g][3] == q for b in range(-1, t + 1) for g in pl.sreq[b]):
                break
            for o in quad_ops(todo.pop(0)):
                put(sc, o)
    assert not todo
    for p, b in bias0.items():
        sc.rebias(p, b)
    A("s_waitcnt lgkmcnt(0)")
    head, pend = lgkm_pass(sc.out.ins)
    loop = [parse("L_w3loop:")] + loopbody
    T = Prog()
    if cfg.prof:
        T(f"v_mov_b32 v16, s96\nv_mov_b32 v17, s97\nv_mov_b32 v18, s98\nv_mov_b32 v19, s99\nv_mov_b32 v20, 0\ns_lshl_b32 s62, s2, 10\ns_add_u32 s62, s62, {STAMP_BASE + 512 + 64}")
        T(f"buffer_store_dwordx4 v[16:19], v20, {srd(SWS)}, s62 offen")
    T(f"s_cmp_ge_u32 s{sCU}, 3\ns_cbranch_scc1 L_done")
    T("s_mov_b32 s61, 8")
    finish_unit(cfg, T, "w3", 8, 192, sCU, 61, False)
    allins, nn = hazard_pass(head + loop + lastp + T.ins, verbose=cfg.dbg == "nops3")
    return allins, dict(w3nops=nn, w3est=est_cycles(loop))


def acc_out(nb):
    return R("a", 16 * nb, 16) if nb < 16 else R("v", OUTV + 16 * (nb - 16), 16)


def q_ops(addr):
    ops = []
    XB = S0
    for t in range(9):
        order = [(s, b) for s in range(4) for b in range(4)] if t < 8 else [(s, b) for b in range(4) for s in range(4)]
        seen = set()
        for (s, b) in order:
            qa = addr[("wq", t, s >> 1, b >> 1)] + (16 * (s & 1)) * 128
            xb = XB + 4 * ((t * 4 + s) % 8)
            o = dict(step=t, a=[("tr", pWq[b & 1], qa), ("tr", pWq[b & 1], qa + 4 * 128)], b=R("v", xb, 4), d=R("v", O0 + 16 * b, 16))
            o["c"] = "0" if (t == 0 and s == 0) else o["d"]
            if s not in seen:
                seen.add(s)
                o["x"] = (xb, pK[s], addr[("x", t, 0)])
            ops.append(o)
    return ops


def item_ops(addr):
    ops = []

    def qk(u, step):
        for ds in range(8):
            d = R("v", S0 + 16 * (u & 1) if u else O0, 16)
            c = d if ds else ("0" if u < 2 else R("v", NEGM, 16))
            ops.append(dict(step=step, a=[("b128", pK[ds & 3], addr[("k", u, 0)] + (ds >> 2) * 512)], b=R("v", Q0 + 4 * ds, 4), d=d, c=c))

    def pv(u, step, bmajor=False):
        order = [(s, b) for s in range(2) for b in range(4)] if not bmajor else [(s, b) for b in range(4) for s in range(2)]
        for (s, b) in order:
            va = addr[("v", u, s)] + (b >> 1) * 512
            d = R("v", O0 + 16 * b, 16)
            ops.append(dict(step=step, a=[("tr", pV[b & 1], va), ("tr", pV[b & 1], va + 2048)],
                            b=R("v", P0 + 8 * (u & 1) + 4 * s, 4), d=d, c="0" if (u == 0 and s == 0) else d))
    qk(0, 0)
    qk(1, 0)
    for u in range(1, 15):
        qk(u + 1, u)
        pv(u - 1, u)
    pv(14, 15)
    pv(15, 15, True)
    for t in range(9):
        for b in range(4):
            for s in range(2):
                for half in range(2):
                    wa = addr[("wo", t, b)] + 16 * s * 128
                    d = acc_out(2 * t + half)
                    ops.append(dict(step=16 + t, a=[("tr", pWo[half], wa), ("tr", pWo[half], wa + 8 * 128)],
                                    b=R("v", OF + 8 * b + 4 * s, 4), d=d, c=d, alt=(b == 0 and s == 0)))
    assert len(ops) == 400
    return ops


def softmax_ops(u, first=False):
    S, P = S0 + 16 * (u & 1), P0 + 8 * (u & 1)
    if first:
        S = O0
    l = []
    for k in range(8):
        a, b = vT[2 * (k & 1)], vT[2 * (k & 1) + 1]
        pa, pb = vT[2 * ((k - 1) & 1)], vT[2 * ((k - 1) & 1) + 1]
        l.append(f"v_exp_f32 v{a}, v{S + 2 * k}")
        if k == 1:
            l.append(f"v_add_f32 v{vBS}, v{pa}, v{pb}")
        elif k > 1:
            l.append(f"v_add_f32 v{vBS}, v{vBS}, v{pa}")
        l.append(f"v_exp_f32 v{b}, v{S + 2 * k + 1}")
        if k > 1:
            l.append(f"v_add_f32 v{vBS}, v{vBS}, v{pb}")
        if k >= 1:
            l.append(f"v_cvt_pk_bf16_f32 v{P + k - 1}, v{pa}, v{pb}")
    a, b = vT[2], vT[3]
    l.append(f"v_add_f32 v{vBS}, v{vBS}, v{a}")
    l.append(f"v_cvt_pk_bf16_f32 v{P + 7}, v{a}, v{b}")
    l.append(f"v_add_f32 v{vBS}, v{vBS}, v{b}")
    return l


def conv_block(b, scale, dst):
    l = []
    for k in range(8):
        r = O0 + 16 * b + 2 * k
        l.append(f"v_mul_f32 v{r}, {scale}, v{r}")
        l.append(f"v_mul_f32 v{r + 1}, {scale}, v{r + 1}")
        if k:
            l.append(f"v_cvt_pk_bf16_f32 v{dst + 8 * b + k - 1}, v{r - 2}, v{r - 1}")
    l.append(f"v_cvt_pk_bf16_f32 v{dst + 8 * b + 7}, v{O0 + 16 * b + 14}, v{O0 + 16 * b + 15}")
    return l


def rowmax(S):
    l = [f"v_max3_f32 v{vM}, v{S}, v{S + 1}, v{S + 2}"]
    for k in range(6):
        l.append(f"v_max3_f32 v{vM}, v{vM}, v{S + 3 + 2 * k}, v{S + 4 + 2 * k}")
    l.append(f"v_max_f32 v{vM}, v{vM}, v{S + 15}")
    l.append(f"v_mov_b32 v{vM2}, v{vM}")
    l.append(f"v_permlane32_swap_b32 v{vM}, v{vM2}")
    l.append(f"v_max_f32 v{vM}, v{vM}, v{vM2}")
    return l


def with_subs(S, sm):
    sub = [f"v_sub_f32 v{S + i}, v{S + i}, v{vM}" for i in range(16)]
    l, k = sub[:4], 4
    for o in sm:
        l.append(o)
        if o.startswith("v_exp") and k < 16:
            l.append(sub[k])
            k += 1
    return l


def item_fill(cfg, ops, fill):
    post = {}
    chk = [f"v_cmp_lt_f32 vcc, s{sTHR}, v{vBS}"]
    spread(fill, rowmax(O0) + [f"v_sub_f32 v{NEGM + i}, 0, v{vM}" for i in range(16)], 11, 15)
    spread(fill, with_subs(O0, softmax_ops(0, True)) + [f"v_mov_b32 v{vL}, v{vBS}"], 16, 23)
    spread(fill, with_subs(S0 + 16, softmax_ops(1)) + chk, 24, 31)
    post[31] = 1
    for u in range(2, 15):
        su = 16 * u
        spread_bal(cfg, ops, fill, softmax_ops(u) + chk, su, su + 15)
        post[su + 15] = u
    spread(fill, softmax_ops(15) + chk, 240, 247)
    post[247] = 15
    spread(fill, [f"v_mov_b32 v{vM2}, v{vL}", f"v_permlane32_swap_b32 v{vL}, v{vM2}", f"v_add_f32 v{vL}, v{vL}, v{vM2}",
                  f"v_rcp_f32 v{vM}, v{vL}"], 249, 252)
    spread(fill, conv_block(0, f"v{vM}", OF), 253, 255)
    spread(fill, conv_block(1, f"v{vM}", OF), 256, 259)
    spread(fill, conv_block(2, f"v{vM}", OF), 260, 263)
    spread(fill, conv_block(3, f"v{vM}", OF), 264, 267)
    return post


def store_block(cfg, nb, tmp, pk):
    l = []
    if not nb & 1:
        l += [f"s_mul_i32 s56, s{sTC + (nb >> 1)}, 768", f"s_add_u32 s56, s56, s{sWSo}"]
    for u in range(2):
        for k in range(8):
            l.append(f"v_accvgpr_read_b32 v{tmp + 8 * u + k}, a{16 * nb + 8 * u + k}")
        for k in range(4):
            i = 8 * u + 2 * k
            l.append(f"v_cvt_pk_bf16_f32 v{pk + 4 * u + k}, v{tmp + i}, v{tmp + i + 1}")
        l.append((f"buffer_store_dwordx4 {R('v', pk + 4 * u, 4)}, v{vST}, {srd(SWS)}, s56 offen offset:{((nb & 1) * 2 + u) * 1024}{cfg.pstf}", ("st", nb >> 1)))
    return l


VMCOST = 4


def emit_slots(cfg, sc, ops, fill, post, lo, hi, st, stubs, stamps={}, nextops=None):
    LA = cfg.LA
    first = {}
    if nextops:
        ops = ops + [dict(o, step=ops[-1]["step"] + 1) for o in nextops]
    for i, o in enumerate(ops):
        first.setdefault(o["step"], i)
    for i in range(lo, hi):
        nx = st["step"] + 1
        if nextops and nx == ops[-1]["step"] and i >= first[nx] - cfg.LB:
            st["tag"], st["alias"] = "n", 0
            for p, b in st["rebias"].items():
                sc.rebias(p, b)
        if nx in first and i >= first[nx] - (cfg.LB if nx else LA):
            if cfg.dstamp and nx in stamps and stamps[nx] in (1, 2) and (stamps[nx] == 2 or nx == 0):
                sc.out(f"s_memrealtime s[60:61]\ns_waitcnt lgkmcnt(0)\ns_mov_b32 s{8 + stamps[nx]}, s60")
            if nx in stamps and stamp(cfg, sc.out, stamps[nx], 0):
                st["lin"].append(None)
            w = "lgkmcnt(0)"
            key = (st["tag"], st.get("alias", nx))
            if key in st["lin"]:
                last = max(k for k, e in enumerate(st["lin"]) if e == key)
                w = f"vmcnt({len(st['lin']) - 1 - last}) " + w
            if cfg.trace == "head" and len(ops) in (144, 432):
                sc.out(f"s_memrealtime s[60:61]\ns_waitcnt lgkmcnt(0)\nv_writelane_b32 v{NEGM + 1}, s60, {nx}")
            if cfg.trace is True and len(ops) in (400, 400 + cfg.LA) and 0 < nx < 25:
                sc.out("s_memtime s[60:61]\ns_waitcnt lgkmcnt(0)")
                sc.out(f"v_writelane_b32 v2, s60, {nx}")
            if cfg.trace == "head2" and len(ops) == 432:
                sc.out(f"s_memtime s[60:61]\ns_waitcnt lgkmcnt(0)\nv_writelane_b32 v{NEGM + 1}, s60, {nx}")
            sc.out("s_waitcnt " + w)
            if cfg.trace == "head2" and len(ops) == 432:
                sc.out(f"s_memtime s[60:61]\ns_waitcnt lgkmcnt(0)\nv_writelane_b32 v{NEGM + 1}, s60, {32 + nx}")
            if cfg.trace is True and len(ops) in (400, 400 + cfg.LA) and 0 < nx < 25:
                sc.out("s_memtime s[60:61]\ns_waitcnt lgkmcnt(0)")
                sc.out(f"v_writelane_b32 v2, s60, {32 + nx}")
            if not cfg.nobar:
                sc.out("s_barrier")
            st["step"] = nx
        while st["rd"] < min(i + LA + 1, len(ops)) and ops[st["rd"]]["step"] <= st["step"]:
            o = ops[st["rd"]]
            if "x" in o:
                sc.lds("ds_read_b128", R("v", o["x"][0], 4), o["x"][1], o["x"][2])
            fb = sc.fbuf()
            o["areg"] = fb
            if o["a"][0][0] == "b128":
                sc.lds("ds_read_b128", R("v", fb, 4), o["a"][0][1], o["a"][0][2])
            else:
                sc.lds("ds_read_b64_tr_b16", R("v", fb, 2), o["a"][0][1], o["a"][0][2])
                sc.lds("ds_read_b64_tr_b16", R("v", fb + 2, 2), o["a"][1][1], o["a"][1][2])
            st["rd"] += 1
        for f in fill.get(i, []):
            if callable(f):
                f(sc)
            elif isinstance(f, dict):
                last = max(k for k, e in enumerate(st["lin"]) if e == ("st", f["pub"] - 1))
                n_ = sum(1 for e in st["lin"][last + 1:] if e and e[0] == "st")
                sc.out(f"v_add_u32 v2, {f['pub']}, v{vFL}\ns_waitcnt vmcnt({n_})\ns_mov_b64 exec, s[64:65]")
                sc.out(f"buffer_store_dword v2, v1, {srd(SWS)}, s{sFLG} offen sc1\ns_mov_b64 exec, -1")
                st["lin"].append(("st", -1))
            elif isinstance(f, tuple):
                sc.out(f[0])
                st["lin"].append(f[1])
            else:
                sc.out(f)
                if f.startswith("buffer_"):
                    st["lin"].append(None)
        if i < 0:
            continue
        o = ops[i]
        m = parse(f"{MF} {o['d']}, {R('v', o['areg'], 4)}, {o['b']}, {o['c']}")
        if i % cfg.waitgrp == 0:
            for d in range(1, cfg.waitgrp):
                if i + d < st["rd"]:
                    m.rd = set(m.rd) | {("v", ops[i + d]["areg"] + k) for k in range(4)}
        if o.get("alt") and st.get("alts") is not None:
            c = parse(f"s_cmp_eq_u32 s{sIT}, 0")
            c.rd = set(c.rd) | {r for r in m.rd if r[0] == "v"}
            n_ = len(st["alts"])
            sc.out.ins.append(c)
            sc.out(f"s_cbranch_scc1 L_alt{n_}")
            sc.out.ins.append(m)
            sc.out(f"s_branch L_altb{n_}\nL_alt{n_}:")
            z = parse(f"{MF} {o['d']}, {R('v', o['areg'], 4)}, {o['b']}, 0")
            z.kind = "altmfma"
            sc.out.ins.append(z)
            sc.out(f"L_altb{n_}:")
            st["alts"].append(n_)
            continue
        sc.out.ins.append(m)
        if i in post:
            u = post[i]
            tag = f"{u}_{len(stubs)}"
            sc.out(f"s_cbranch_vccnz L_stub_{tag}\nL_back_{tag}:")
            sc.out(f"v_add_f32 v{vL}, v{vL}, v{vBS}")
            stubs.append((tag, u & 1))


def group_request(cfg, pl, fill, slot, g, tag, kind, sp=1):
    l = []
    want = "k" if g == 0 else "m" if g < 15 else "v" if g == 15 else "w"
    if want != kind:
        l += {"k": [f"v_xor_b32 v{vD + k}, {32 * k}, v{bK}" for k in range(4)],
              "m": [f"v_mov_b32 v{vD}, v{bM}", f"v_xor_b32 v{vD + 1}, s{sXM}, v{bM}", f"v_xor_b32 v{vD + 2}, s{sXM2}, v{bM}", f"v_xor_b32 v{vD + 3}, s{sXM2}, v{vD + 1}"],
              "v": [f"v_mov_b32 v{vD + k}, v{bV}" for k in range(4)],
              "w": [f"v_add_u32 v{vD + k}, {8192 * k}, v{bWo}" for k in range(4)]}[want]
    so, sr, fl = {"k": (f"s_add_u32 s{sTMP}, s{sB0}, 0", SK, cfg.kvf), "m": (f"s_add_u32 s{sTMP}, s{sMB}, {g * 8192}", SM, cfg.kvf),
                  "v": (f"s_add_u32 s{sTMP}, s{sB0}, {14 * 8192}", SV, cfg.kvf),
                  "w": (f"s_add_u32 s{sTMP}, s{sWB}, s{sTC + max(g - 16, 0)}", SWO, cfg.wf)}[want]
    l += [f"s_add_u32 m0, s{sT4K}, {pl.addr[pl.grp[g][0]]}", so]
    fill.setdefault(slot, []).extend(l)
    for k in range(4):
        if not cfg.noload:
            fill.setdefault(slot + k * sp, []).append((f"buffer_load_dwordx4 v{vD + k}, {srd(sr)}, s{sTMP} offen offset:{k * 1024}{fl} lds", (tag, g)))
    if g == 24:
        fill.setdefault(slot + 3 * sp, []).append(f"s_add_u32 s{sWB}, s{sWB}, 147456")
    return want


def rare_routine(p):
    A = Prog()
    S, Sn = S0 + 16 * p, S0 + 16 * (1 - p)
    A(f"L_rare{p}:\ns_nop 15\ns_nop 15")
    A("\n".join(rowmax(S)))
    A(f"v_max_f32 v{vM}, 0, v{vM}")
    for i in range(16):
        A(f"v_sub_f32 v{NEGM + i}, v{NEGM + i}, v{vM}\nv_sub_f32 v{S + i}, v{S + i}, v{vM}\nv_sub_f32 v{Sn + i}, v{Sn + i}, v{vM}")
    A(f"v_sub_f32 v{vM2}, 0, v{vM}\nv_exp_f32 v{vM2}, v{vM2}\ns_nop 0\nv_mul_f32 v{vL}, v{vL}, v{vM2}")
    for i in range(64):
        A(f"v_mul_f32 v{O0 + i}, v{O0 + i}, v{vM2}")
    A("\n".join(softmax_ops(p)))
    A("s_nop 3\ns_setpc_b64 s[40:41]")
    ins, _ = hazard_pass(A.ins)
    return ins


def compute(cfg, pl):
    addr = pl.addr
    sc = Sched(cfg)
    A = sc.out
    A(f"s_lshl_b32 s{sT4K}, s{sW}, 12\ns_mov_b32 s{sTHR}, {hex(f2u(cfg.thr))}")
    nsh = {"16x8": 16, "8x16": 8, "4x32": 4}[cfg.mapping]
    xr = 96 // (32 // nsh)
    A(f"v_mov_b32 v21, 0x7fffff00\ns_and_b32 s56, s{sB}, {nsh - 1}\ns_mul_i32 s56, s56, {(576 // nsh) * 8192}\ns_add_u32 s56, s56, s{sWQo}")
    A("v_lshrrev_b32 v16, 1, v0\nv_lshlrev_b32 v16, 13, v16\nv_and_b32 v17, 1, v0\nv_lshl_add_u32 v16, v17, 7, v16\nv_cmp_gt_u32 vcc, 36, v0")
    A(f"s_and_b32 s57, s{sCU}, {32 // nsh - 1}\ns_mul_i32 s57, s57, {xr * 1152}\ns_add_u32 s57, s57, s{sXo}\nv_cndmask_b32 v16, v21, v16, vcc")
    A(f"v_mul_u32_u24 v17, 1152, v0\nv_cmp_gt_u32 vcc, {xr}, v0\ns_and_b32 s58, s{sW}, 2\ns_lshl_b32 s58, s58, 6\ns_add_u32 s57, s57, s58\nv_cndmask_b32 v17, v21, v17, vcc")
    descriptors(A)
    ntouch = 0
    if cfg.pf:
        A(f"s_cmp_lg_u32 s{sW}, 0\ns_cbranch_scc1 L_tx")
        for i in range(1152 // nsh // 36):
            A(f"buffer_load_dword v{NEGM}, v16, {srd(SWQ)}, s56 offen\ns_add_u32 s56, s56, {18 * 8192}")
        A("s_branch L_tdone\nL_tx:")
        if cfg.pfx:
            for i in range(5):
                A(f"buffer_load_dword v{NEGM}, v17, {srd(SX)}, s57 offen offset:{256 * i}")
        A("L_tdone:")
    if cfg.tlb:
        A(f"s_cmp_lg_u32 s{sW}, 2\ns_cbranch_scc1 L_notlb")
        tlb_warm(cfg, A, NEGM, 16)
        A("L_notlb:")
    sample_flags(A)
    lane_patterns(A, True)
    A(f"v_lshlrev_b32 v{vST}, 4, v0\nv_add_u32 v{pQ}, s{sT4K}, v{vST}")
    A(f"s_mul_i32 s56, s{sPAIR}, 884736\ns_lshl_b32 s57, s{sW}, 15\ns_add_u32 s56, s56, s57\ns_lshl_b32 s57, s{sCU}, 12\ns_add_u32 s{sWSo}, s56, s57")
    A("v_lshrrev_b32 v1, 3, v0\nv_and_b32 v2, 7, v0\nv_lshrrev_b32 v16, 4, v0\nv_lshlrev_b32 v18, 8, v1\nv_mul_u32_u24 v19, 1152, v1")
    A(f"v_and_b32 v17, 1, v16\nv_lshlrev_b32 v17, 2, v17\nv_xor_b32 v17, v17, v2\nv_lshl_add_u32 v{bWo}, v17, 4, v19")
    kv_offsets(A, bK, bV)
    A(f"s_cmp_lt_u32 s{sW}, 2\ns_cselect_b32 s{SM}, s{SK}, s{SV}\ns_cselect_b32 s{SM + 1}, s{SK + 1}, s{SV + 1}\ns_mov_b32 s{SM + 2}, 0x4000000\ns_mov_b32 s{SM + 3}, 0x20000")
    A(f"s_cselect_b32 s{sXM}, 32, 0\ns_cselect_b32 s{sXM2}, 64, 0\ns_cselect_b64 vcc, -1, 0\ns_add_u32 s56, s{sT4K}, 8192\ns_cmp_lt_u32 s{sW}, 2")
    A(f"s_cselect_b32 s56, s56, {(-8192) & 0xffffffff}\ns_add_u32 s{sMB}, s{sKV}, s56\nv_cndmask_b32 v{bM}, v{bV}, v{bK}, vcc")
    A(f"s_add_u32 s{sB0}, s{sKV}, s{sT4K}")
    A(f"s_mul_i32 s56, s{sW}, 36864\ns_add_u32 s{sWB}, s{sWOo}, s56")
    for i in range(256):
        A(f"v_accvgpr_write_b32 a{i}, 0")
    for i in range(32):
        A(f"v_mov_b32 v{OUTV + i}, 0")
    A("s_waitcnt vmcnt(0)")
    for p in pK + pV + pWq + pWo + [pQ]:
        sc.bias[p] = 0
    qops = q_ops(addr)
    qf = {}
    kind = None
    for t in range(-1, 9):
        for n_, g in enumerate(pl.sreq[t]):
            kind = group_request(cfg, pl, qf, (16 * t - cfg.LB if t > 0 else -cfg.LA + 1 if t == 0 else -cfg.LA - 8) + 4 * n_, g, "n", kind)
    kind0 = kind
    spread(qf, conv_block(0, f"s{sC}", Q0), 135, 138)
    spread(qf, conv_block(1, f"s{sC}", Q0), 139, 143)
    emit_slots(cfg, sc, qops, qf, {}, -cfg.LA - 8, 144, dict(rd=0, step=-1, lin=[], tag="c"), [], {0: 0})
    A("\n".join(conv_block(2, f"s{sC}", Q0) + conv_block(3, f"s{sC}", Q0)))
    if cfg.trace == "head":
        A(f"s_memrealtime s[60:61]\ns_waitcnt lgkmcnt(0)\nv_writelane_b32 v{NEGM}, s60, 9\nv_writelane_b32 v{NEGM}, s101, 10")
        A(f"v_lshlrev_b32 v1, 2, v0\ns_lshl_b32 s62, s2, 10\ns_lshl_b32 s63, s{sW}, 8\ns_add_u32 s62, s62, s63\ns_add_u32 s62, s62, {STAMP_BASE}")
        A(f"buffer_store_dword v{NEGM}, v1, {srd(SWS)}, s62 offen\ns_waitcnt vmcnt(0)")
    k_patterns(A, False)
    for p in pK:
        sc.bias[p] = 0
    for p in pV + pWo:
        sc.rebias(p, 0)
    sc.rebias(pQ, QBUF)
    bias0 = dict(sc.bias)
    sc.nbuf = 0
    ops = item_ops(addr)
    st = dict(rd=0, step=-1, lin=[("c", g) for g in pl.pro for k in range(4)] if not cfg.noload else [], tag="c")
    emit_slots(cfg, sc, ops, {}, {}, -cfg.LA, 0, st, [], {0: 1})
    assert st["rd"] == cfg.LA and 400 % cfg.NB == 0
    bias1 = dict(sc.bias)
    head, pend0 = lgkm_pass(sc.out.ins)
    assert len(pend0) == cfg.LA
    head, nh = hazard_pass(head, verbose=cfg.dbg == "nops")
    sc.out = Prog()
    fill = {}
    split = 272
    bslot = lambda s_: 16 * s_ - cfg.LB if s_ else 0
    kind = None
    late = {}
    wrapped = False
    for s_ in range(25):
        for n_, (g, w) in enumerate(pl.req[s_]):
            sp = cfg.gsp if len(pl.req[s_]) == 1 else min(cfg.gsp, 2) if s_ else 1
            if bslot(s_) < split < bslot(s_) + 4 * sp * len(pl.req[s_]):
                sp = 1
            slot = bslot(s_) + 4 * sp * n_
            if w and not wrapped:
                wrapped = True
                if slot < split:
                    fill.setdefault(slot, []).append(f"s_add_u32 s{sB0}, s{sB0}, 0x20000\ns_add_u32 s{sMB}, s{sMB}, 0x20000\ns_cmp_eq_u32 s{sIT}, 3")
                    fill[slot].append(f"s_cselect_b32 s{SK + 2}, 0, s{SK + 2}\ns_cselect_b32 s{SM + 2}, 0, s{SM + 2}")
                else:
                    late.setdefault(slot, []).append(f"s_add_u32 s{sB0}, s{sB0}, 0x20000\ns_add_u32 s{sMB}, s{sMB}, 0x20000")
            assert g >= 16 or w == wrapped
            if w and slot >= split:
                kind = group_request(cfg, pl, late, slot, g, "n", None, sp)
            else:
                kind = group_request(cfg, pl, fill, slot, g, "n" if w else "c", None if slot >= split else kind, sp)
    cyc_kind = kind
    post = item_fill(cfg, ops, fill)
    stubs = []
    sc.out("L_item:")
    st["lin"] = [e for e in st["lin"] if e]
    emit_slots(cfg, sc, ops, fill, post, 0, split, st, stubs, {16: 2})
    sc.out(f"s_cmp_lg_u32 s{sIT}, 3\ns_cbranch_scc1 L_more")
    common, pend = lgkm_pass(sc.out.ins, pend0)
    common, n0 = hazard_pass(common, history=head[-20:], verbose=cfg.dbg == "nops")
    sa = copy.deepcopy(sc)
    sa.out = Prog()
    sa.out("L_warm_more:\ns_setpc_b64 s[40:41]\nL_more:")
    fa = {k: list(v) for k, v in fill.items()}
    for k, v in late.items():
        fa[k] = fa.get(k, []) + v
    for p, r0 in ((0, 288), (1, 381)):
        spread(fa, [(lambda s_, i=i, p=p: s_.lds("ds_read_b128", R("v", Q0 + 16 * p + 4 * i, 4), pQ, QBUF + i * 1024)) for i in range(4)], r0, r0 + 3)
    sta = copy.deepcopy(st)
    sta["rebias"] = bias0
    fa.setdefault(390, []).append(f"s_add_u32 s{sIT}, s{sIT}, 1")
    emit_slots(cfg, sa, copy.deepcopy(ops), fa, {}, split, 400, sta, stubs, {25: 1}, nextops=copy.deepcopy(ops[:cfg.LA]))
    assert cfg.noload or [e for e in sta["lin"] if e and e[0] == "n"] == [("n", g) for g in pl.pro for k in range(4)]
    assert sa.bias == bias1 and sta["rd"] == 400 + cfg.LA
    if cfg.trace is True:
        sa.out(f"s_cmp_lg_u32 s{sIT}, {cfg.trace_it + 1}\ns_cbranch_scc1 L_notr\nv_lshlrev_b32 v1, 2, v0\ns_lshl_b32 s62, s2, 10\ns_lshl_b32 s63, s{sW}, 8\ns_add_u32 s62, s62, s63\ns_add_u32 s62, s62, {STAMP_BASE}")
        sa.out(f"buffer_store_dword v2, v1, {srd(SWS)}, s62 offen\ns_waitcnt vmcnt(0)\nL_notr:")
    sa.out("s_branch L_item")
    conta, pe = lgkm_pass(sa.out.ins, pend)
    assert pe == pend0[len(pend0) - len(pe):]
    conta, n1 = hazard_pass(conta, history=common[-20:])
    sb = copy.deepcopy(sc)
    sb.out = Prog()
    sb.out("L_last:")
    fb = {k: list(v) for k, v in fill.items()}
    last_fill(cfg, fb)
    emit_slots(cfg, sb, copy.deepcopy(ops), fb, {}, split, 400, copy.deepcopy(st), stubs)
    T = sb.out
    stamp(cfg, T, 3, 0)
    stamp(cfg, T, 4, 0)
    finish_unit(cfg, T, "c", 7, OUTV, sW, sCU, True)
    contb, _ = lgkm_pass(sb.out.ins, pend)
    contb, n2 = hazard_pass(contb, history=common[-20:], verbose=cfg.dbg == "nops")
    st = Prog()
    for tag, p in stubs:
        st(f"L_stub_{tag}:\ns_call_b64 s[40:41], L_rare{p}\ns_branch L_back_{tag}")
    info = dict(nops=(nh, n0, n1, n2), est_item=est_cycles(common + conta))
    return head + common + contb + conta + st.ins + rare_routine(0) + rare_routine(1), info


def kd(name, vg, acc, sg=102):
    return (f".amdhsa_kernel {name}\n  .amdhsa_next_free_vgpr {vg}\n  .amdhsa_next_free_sgpr {sg}\n  .amdhsa_accum_offset {acc}\n"
            "  .amdhsa_group_segment_fixed_size 0\n  .amdhsa_kernarg_size 104\n  .amdhsa_user_sgpr_count 2\n"
            "  .amdhsa_user_sgpr_kernarg_segment_ptr 1\n  .amdhsa_system_sgpr_workgroup_id_x 1\n.end_amdhsa_kernel\n")


def generate(cfg):
    pl = plan_ring(cfg)
    P = Prog()
    prologue(cfg, P)
    pro, _ = hazard_pass(P.ins)
    comp, info = compute(cfg, pl)
    w3, info3 = wave3(cfg, pl)
    info.update(info3)
    s = HDR + "; @launch grid=(256,1,1) block=(256,1,1) lds=163840\n"
    s += '.amdgcn_target "amdgcn-amd-amdhsa--gfx950"\n.text\n'
    s += f".globl {KNAME}\n.p2align 8\n.type {KNAME},@function\n{KNAME}:\n"
    s += render(pro) + render(comp) + render(w3) + "L_done:\n    s_endpgm\n"
    s += '.section .rodata,"a"\n.p2align 6\n' + kd(KNAME, 512, 256)
    return s, info, pl


if __name__ == "__main__":
    import build
    name = sys.argv[1]
    kw = {}
    for a in sys.argv[2:]:
        k, v = a.split("=", 1)
        try:
            v = eval(v)
        except Exception:
            pass
        kw[k] = v
    s, info, plan = generate(Cfg(**kw))
    open(name, "w").write(s)
    print(info)
    build.build(name)
```

```python
import copy
import math
import struct
import sys

from asmlib import Prog, parse, lgkm_pass, hazard_pass, render, est_cycles, R

KNAME = "concat_heads__mha_block_cached__gqa_block_cached__near_ridge_kernel"
HDR = open("concat_heads__mha_block_cached__gqa_block_cached__near_ridge.s.ref").read().split("; Override launch")[0]


def f2u(x):
    return struct.unpack("<I", struct.pack("<f", x))[0]


class Cfg:
    mapping = "16x8"
    kvf = " nt"
    wf = ""
    xf = ""
    pstf = " sc1"
    gf = " sc1"
    of = ""
    psleep = 2
    LA = 6
    LB = 4
    NB = 8
    colors = "defabcdabcdefabc" + "abc" * 3
    dmax = 99
    dwo = 2
    reqs = None
    park = (14, 16, 18)
    kv0 = (4, 5, 6)
    WR = 6
    raq = 4
    waitgrp = 4
    wqbatch = 1
    balance = True
    front = True
    stamp = False
    pf = True
    dbl = False
    pfx = False
    thr = 1024.0
    quota = (13, 24, 20) + (20,) * 12 + (21, 21) + (15,) * 6 + (3, 0)
    pf_wo_step = 1
    pf_wq_step = 12
    pf_wq0_step = 1
    dbg = None
    nobar = False
    noload = False
    delay = 0
    prof = False
    trace = False
    trace_it = 2
    warm = True
    vmcost = 2
    mmcost = 2
    dstamp = False
    tlb = 0
    gsp = 1
    pubs = {}
    half = 0

    def __init__(self, **kw):
        for k, v in kw.items():
            assert hasattr(Cfg, k), k
            setattr(self, k, v)


pK = [4, 5, 6, 7]
pV = [8, 9, 12, 13]
pWq = [10, 11]
pWo = []
vDL, vM3 = 10, 11
vL, vBS = 14, 15
vT = [16, 17, 18, 19]
vM, vM2, vST, vFL = 20, 21, 22, 23
FR0, NEGM, S0, P0, Q0, O0, OUTV, FRX = 24, 48, 64, 96, 112, 144, 208, 240
OF = S0
pQ = 3
bK, bV, bWo, bM = 248, 249, 250, 251
vD = 252
sW, sB, sH = 3, 4, 5
SK, SV, SWQ, SWO, SX, SWS = 16, 20, 24, 28, 32, 36
sKV, sXo, sWQo, sWOo, sTMP, sIT, sC, sTHR, sT4K, sWSo = 42, 43, 44, 45, 46, 47, 48, 49, 50, 51
sJ, sPAIR, sCU = 52, 53, 59
SDB, SOUT = 68, 72
sTC = 80
sFLG = 89
SWQ2 = 92
SM = 96
sMB, sB0, sWB, sXM, sXM2, sXV = 90, 91, 66, 67, 100, 15
WRB = 24 * 4096
MF = "v_mfma_f32_32x32x16_bf16"
MF16 = "v_mfma_f32_16x16x32_bf16"
QBUF = 31 * 4096
XRES = 34 * 4096
FLAGBASE = 32 << 20
TORD = (0, 1, 2, 7, 8, 3, 4, 5, 6)


def srd(n):
    return f"s[{n}:{n + 3}]"


def w3_quads():
    return [("wq3", p, t, rb) for p in range(2) for t in TORD for rb in range(2)]


def w3_ops(cfg):
    quads = w3_quads()
    ops = []
    for p in range(2):
        pq = quads[18 * p:18 * p + 18]
        groups = [pq[0:2]] + [[q] for q in pq[2:16]] + [pq[16:18]]
        for grp in groups:
            if len(grp) == 2:
                seqv = [(q, s2, hb) for hb in range(2) for q in grp for s2 in range(2)]
            else:
                seqv = [(grp[0], s2, hb) for s2 in range(2) for hb in range(2)]
            for (q, s2, hb) in seqv:
                ks = 2 * q[2] + q[3]
                for j in range(3):
                    ops.append(dict(q=q, s2=s2, hb=hb, dt=2 * hb + s2, j=j, ks=ks, p=p, first=(q == pq[0]), last=(q == pq[17] and s2 == 1)))
    assert len(ops) == 432 == sum(cfg.quota)
    i = 0
    for s, n in enumerate(cfg.quota):
        for o in ops[i:i + n]:
            o["step"] = s
        i += n
    for i in range(0, 432, 3):
        for d in range(3):
            ops[i + d]["astep"] = ops[i]["step"]
    return ops


class Plan:
    pass


def plan_ring(cfg):
    pl = Plan()
    grp = [[("k", 0, 0), ("k", 0, 1), ("k", 1, 0), ("k", 1, 1)]]
    for u in range(1, 15):
        grp.append([("k", u + 1, 0), ("k", u + 1, 1), ("v", u - 1, 0), ("v", u - 1, 1)])
    grp.append([("v", 14, 0), ("v", 14, 1), ("v", 15, 0), ("v", 15, 1)])
    for t in range(9):
        grp.append([("wo", t, rb) for rb in range(4)])
    ns = len(grp)
    addr = {}
    for s_, g in enumerate(grp):
        for k, q in enumerate(g):
            addr[q] = (ord(cfg.colors[s_]) - 97) * 16384 + k * 4096
    start = []
    xslot = (QBUF, WRB, WRB + 12288) * 2 + (QBUF, XRES, XRES + 12288)
    for t in range(9):
        wq = [("wq", t, rb, cb) for rb in range(2) for cb in range(2)]
        for k, q in enumerate(wq):
            addr[q] = (ord(cfg.colors[16 + t]) - 97) * 16384 + k * 4096
        for rb in range(3):
            addr[("x", t, rb)] = xslot[t] + rb * 4096
        start.append(wq + [("x", t, rb) for rb in range(3)])
    for i, q in enumerate(w3_quads()):
        addr[q] = WRB + (i % cfg.WR) * 4096
    req = {b: [] for b in range(ns)}
    for g in range(ns):
        gap = next(d for d in range(1, ns + 1) if cfg.colors[(g - d) % ns] == cfg.colors[g])
        lead = min(gap - 1, cfg.dwo if g >= 16 else cfg.dmax)
        if cfg.reqs:
            lead = (g - cfg.reqs[g]) % ns
            assert lead <= gap - 1, (g, lead, gap)
        elif g < len(cfg.park):
            assert ns + g - cfg.park[g] <= lead
            lead = ns + g - cfg.park[g]
        assert lead >= 1
        req[(g - lead) % ns].append((g, g - lead < 0))
    for b in req:
        req[b].sort(key=lambda e: (e[0] < 16, e[1]))
    pl.req = req
    pl.pro = [g for b in range(ns) for g, w in req[b] if w]
    pl.sreq = {b: [] for b in range(-1, 9)}
    bb = -1
    for n_, g in enumerate(pl.pro):
        b = next(b for b in range(ns) if (g, True) in req[b])
        bb = max(bb, cfg.kv0[n_] if n_ < len(cfg.kv0) else b - 16)
        assert all(cfg.colors[16 + t] != cfg.colors[g] for t in range(max(bb, 0), 9))
        pl.sreq[bb].append(g)
    sissue = {b: [] for b in range(-1, 9)}
    lastuse = {}
    b = -1
    for t in range(9):
        for q in start[t]:
            lo = addr[q]
            b = max(b, lastuse.get(lo, -9) + 1)
            assert b < t
            sissue[b].append(q)
            lastuse[lo] = t
    pl.slast = lastuse
    pl.grp, pl.start, pl.addr, pl.sissue = grp, start, addr, sissue
    return pl


def prologue(cfg, A):
    A("s_cmp_ge_u32 s2, 256\ns_cbranch_scc1 L_done")
    if cfg.trace == "head":
        A("s_memrealtime s[60:61]\ns_waitcnt lgkmcnt(0)\ns_mov_b32 s101, s60")
    DSTAMP[0] = cfg.dstamp
    A(f"v_lshrrev_b32 v1, 6, v0\nv_and_b32 v0, 63, v0\nv_readfirstlane_b32 s{sW}, v1")
    A("s_and_b32 s6, s2, 4\ns_mul_i32 s6, s6, 10\ns_add_u32 s6, s0, s6\ns_addc_u32 s7, s1, 0")
    A("s_load_dwordx2 s[40:41], s[6:7], 0\ns_load_dwordx4 s[8:11], s[6:7], 8\ns_load_dwordx4 s[12:15], s[6:7], 24")
    A("s_load_dwordx2 s[54:55], s[0:1], 96\ns_load_dwordx4 s[76:79], s[0:1], 80")
    A(f"s_and_b32 s57, s2, 3\ns_lshr_b32 s{sJ}, s2, 3")
    if cfg.mapping == "16x8":
        A(f"s_lshr_b32 s{sB}, s{sJ}, 1\ns_and_b32 s{sH}, s{sJ}, 1\ns_lshl_b32 s{sH}, s{sH}, 2\ns_lshl_b32 s57, s57, 3\ns_add_u32 s{sH}, s{sH}, s57")
    elif cfg.mapping == "8x16":
        A(f"s_and_b32 s56, s57, 1\ns_lshl_b32 s56, s56, 3\ns_lshr_b32 s{sB}, s{sJ}, 2\ns_add_u32 s{sB}, s{sB}, s56")
        A(f"s_lshr_b32 s56, s57, 1\ns_lshl_b32 s56, s56, 4\ns_and_b32 s{sH}, s{sJ}, 3\ns_lshl_b32 s{sH}, s{sH}, 2\ns_add_u32 s{sH}, s{sH}, s56")
    else:
        A(f"s_lshl_b32 s56, s57, 2\ns_lshr_b32 s{sB}, s{sJ}, 3\ns_add_u32 s{sB}, s{sB}, s56\ns_and_b32 s{sH}, s{sJ}, 7\ns_lshl_b32 s{sH}, s{sH}, 2")
    if cfg.half:
        A(f"s_and_b32 s56, s{sB}, {cfg.half}\ns_cmp_lg_u32 s56, 0\ns_cbranch_scc1 L_done")
    A(f"s_lshl_b32 s{sKV}, s{sB}, 22\ns_lshl_b32 s56, s{sH}, 17\ns_add_u32 s{sKV}, s{sKV}, s56")
    A(f"s_mul_i32 s{sXo}, s{sB}, 110592\ns_lshl_b32 s{sWQo}, s{sH}, 8\ns_mul_i32 s{sWOo}, s{sH}, 147456")
    A(f"s_and_b32 s56, s2, 4\ns_lshl_b32 s56, s56, 2\ns_add_u32 s{sPAIR}, s56, s{sB}\ns_lshr_b32 s{sCU}, s{sH}, 2")
    for tau in range(9):
        A(f"s_add_u32 s56, s{sCU}, {1 + tau}\ns_cmp_ge_u32 s56, 9\ns_cselect_b32 s57, 9, 0\ns_sub_u32 s56, s56, s57\ns_lshl_b32 s{sTC + tau}, s56, 7")
    A(f"s_mov_b32 s{sIT}, 0\ns_mov_b32 s{sC}, {hex(f2u(math.log2(math.e) / math.sqrt(128.0)))}")
    A(f"s_cmp_eq_u32 s{sW}, 3\ns_cselect_b32 s56, s{sCU}, s{sW}\ns_mul_i32 s57, s{sPAIR}, 3\ns_add_u32 s56, s56, s57\ns_lshl_b32 s56, s56, 12\ns_add_u32 s{sFLG}, s56, {FLAGBASE}")
    A(f"s_cmp_eq_u32 s{sW}, 3\ns_cbranch_scc1 L_loader")


def descriptors(A):
    A("s_waitcnt lgkmcnt(0)")
    for d, b, n in ((SWQ, 12, 4718592), (SX, 40, 1769472), (SWS, 54, 290848768), (SK, 8, 0x4000000), (SV, 10, 0x4000000),
                    (SWO, 14, 4718592), (SWQ2, 12, 4718592), (SOUT, 76, 3538944), (SDB, 78, 256)):
        A(f"s_mov_b32 s{d}, s{b}\ns_mov_b32 s{d + 1}, s{b + 1}\ns_mov_b32 s{d + 2}, {n}\ns_mov_b32 s{d + 3}, 0x20000")
    if DSTAMP[0]:
        A("s_memrealtime s[60:61]\ns_memtime s[62:63]\ns_waitcnt lgkmcnt(0)\ns_mov_b32 s8, s60\ns_mov_b32 s11, s62")


DSTAMP = [False]


def tlb_warm(cfg, A, dst, tmp):
    n = 0
    if not cfg.tlb:
        return n
    A(f"v_lshlrev_b32 v{tmp}, {cfg.tlb}, v0\ns_mul_i32 s58, s{sPAIR}, 884736")
    for sr, base, span, fl in ((SK, f"s{sKV}", 1 << 19, " nt"), (SV, f"s{sKV}", 1 << 19, " nt"), (SWO, f"s{sWOo}", 589824, " nt"),
                               (SWQ, f"s{sWQo}", 4718592, " nt"), (SWS, "s58", 884736, " nt")):
        lanes = min(64, -(-span >> cfg.tlb))
        A(f"s_mov_b64 exec, {hex((1 << lanes) - 1)}" if lanes <= 32 else f"s_mov_b32 exec_lo, -1\ns_mov_b32 exec_hi, {hex((1 << (lanes - 32)) - 1)}")
        A(f"buffer_load_dword v{dst}, v{tmp}, {srd(sr)}, {base} offen{fl}")
        n += 1
    A("s_mov_b64 exec, -1")
    return n


def sample_flags(A):
    A(f"v_and_b32 v1, 7, v0\nv_lshlrev_b32 v1, 2, v1\nbuffer_load_dword v{vFL}, v1, {srd(SWS)}, s{sFLG} offen sc1")


STAMP_BASE = 64 << 20


def stamp(cfg, A, k, who):
    if not cfg.stamp:
        return 0
    A("s_memrealtime s[60:61]\ns_memtime s[64:65]\ns_waitcnt lgkmcnt(0)")
    A(f"s_lshl_b32 s62, s2, 10\ns_lshl_b32 s63, s{sIT}, 7\ns_add_u32 s62, s62, s63\ns_add_u32 s62, s62, {STAMP_BASE + who * 512 + 8 * k}")
    t = 18 if who else 0
    if who:
        A(f"v_mov_b32 v{t}, s60\nv_mov_b32 v{t + 1}, s64\nv_mov_b32 v{t + 2}, 0\nbuffer_store_dwordx2 v[{t}:{t + 1}], v{t + 2}, {srd(SWS)}, s62 offen")
    else:
        A(f"v_mov_b32 v0, s60\nv_mov_b32 v1, s64\nv_mov_b32 v2, 0\nbuffer_store_dwordx2 v[0:1], v2, {srd(SWS)}, s62 offen")
        A("s_nop 1\nv_mbcnt_lo_u32_b32 v0, -1, 0\nv_mbcnt_hi_u32_b32 v0, -1, v0")
    return 1


class Sched:
    def __init__(self, cfg):
        self.cfg = cfg
        self.bias = {}
        self.nbuf = 0
        self.out = Prog()

    def fbuf(self):
        i = self.nbuf % self.cfg.NB
        self.nbuf += 1
        return FR0 + 4 * i if i < 6 else FRX + 4 * (i - 6)

    def lds(self, op, reg, preg, a):
        b = self.bias[preg]
        if not (0 <= a - b <= 65535):
            nb = a & ~4095
            self.out(f"v_add_u32 v{preg}, {(nb - b) & 0xffffffff}, v{preg}")
            self.bias[preg] = b = nb
        if op.startswith("ds_read"):
            self.out(f"{op} {reg}, v{preg} offset:{a - b}")
        else:
            self.out(f"{op} v{preg}, {reg} offset:{a - b}")

    def rebias(self, preg, nb):
        b = self.bias[preg]
        if b != nb:
            self.out(f"v_add_u32 v{preg}, {(nb - b) & 0xffffffff}, v{preg}")
            self.bias[preg] = nb


def spread(fill, ops_list, s0, s1):
    n = s1 - s0 + 1
    cost = [2 if isinstance(o, str) and o.startswith("v_exp") else 1 for o in ops_list]
    tot = sum(cost)
    acc = 0
    for o, c in zip(ops_list, cost):
        k = min(n - 1, int((acc + c / 2) * n / tot))
        fill.setdefault(s0 + k, []).append(o)
        acc += c


def spread_bal(cfg, ops, fill, ops_list, s0, s1):
    if not cfg.balance:
        return spread(fill, ops_list, s0, s1)
    base = []
    for i in range(s0, s1 + 1):
        o = ops[min(i + cfg.LA, len(ops) - 1)]
        base.append(len(o["a"]) + (cfg.mmcost if "mm" in ops[i] else 0) + (1 if i % cfg.waitgrp == 0 else 0) + sum(cfg.vmcost if isinstance(f, tuple) else 1 for f in fill.get(i, [])))
    cost = [2 if isinstance(o, str) and o.startswith("v_exp") else 1 for o in ops_list]
    level = (sum(cost) + sum(base)) / len(base)
    k, room = 0, level - base[0]
    for o, c in zip(ops_list, cost):
        while k < len(base) - 1 and room < c / 2:
            k += 1
            room += level - base[k]
        fill.setdefault(s0 + k, []).append(o)
        room -= c


def k_patterns(A, xform, off=None):
    A("v_lshrrev_b32 v1, 5, v0\nv_and_b32 v2, 31, v0\nv_lshrrev_b32 v16, 1, v2\nv_and_b32 v16, 7, v16\nv_xor_b32 v16, v16, v1")
    if xform:
        A("v_lshlrev_b32 v2, 7, v2")
        if off:
            A(f"v_add_u32 v2, s{off}, v2")
    else:
        A("v_lshrrev_b32 v17, 2, v2\nv_and_b32 v2, 3, v2\nv_lshlrev_b32 v2, 7, v2\nv_lshl_add_u32 v2, v17, 10, v2")
    for j in range(4):
        A(f"v_xor_b32 v17, {2 * j}, v16\nv_lshl_add_u32 v{pK[j]}, v17, 4, v2")


def lane_patterns(A, with_wave_offset):
    k_patterns(A, True, sT4K if with_wave_offset else None)
    A("v_lshrrev_b32 v2, 2, v0\nv_and_b32 v2, 3, v2\nv_lshrrev_b32 v3, 1, v2\nv_lshlrev_b32 v3, 6, v3")
    A("v_lshrrev_b32 v16, 4, v0\nv_and_b32 v16, 1, v16\nv_and_b32 v17, 1, v0\nv_lshrrev_b32 v18, 1, v0\nv_and_b32 v18, 1, v18")
    A("v_lshl_add_u32 v19, v1, 2, v2\nv_lshlrev_b32 v19, 7, v19\nv_lshl_add_u32 v20, v1, 3, v2\nv_lshlrev_b32 v20, 7, v20")
    A("v_lshlrev_b32 v21, 12, v16\nv_lshl_add_u32 v21, v1, 10, v21\nv_lshl_add_u32 v21, v2, 7, v21\nv_lshl_add_u32 v21, v17, 3, v21")
    A(f"v_lshl_add_u32 v21, v18, 4, v21\nv_lshl_add_u32 v21, v16, 5, v21\nv_add_u32 v{pV[0]}, v21, v3")
    for j in range(1, 4):
        A(f"v_xor_b32 v{pV[j]}, {32 * j}, v{pV[0]}")
    A("v_xor_b32 v21, v16, v1\nv_lshlrev_b32 v21, 5, v21\nv_lshl_add_u32 v21, v17, 4, v21\nv_lshl_add_u32 v21, v18, 3, v21\nv_add_u32 v21, v21, v20")
    A(f"v_add_u32 v{pWq[0]}, v21, v3\nv_xor_b32 v{pWq[1]}, 64, v{pWq[0]}")


def wo_shift(A):
    A(f"v_lshrrev_b32 v16, 4, v0\nv_lshlrev_b32 v{vDL}, 9, v16\nv_and_b32 v17, 1, v16\nv_lshlrev_b32 v17, 12, v17\nv_sub_u32 v{vDL}, v{vDL}, v17")
    A(f"v_lshrrev_b32 v16, 1, v16\nv_lshlrev_b32 v16, 10, v16\nv_sub_u32 v{vDL}, v{vDL}, v16")


def kv_offsets(A, dk, dv):
    A("v_lshrrev_b32 v1, 3, v0\nv_and_b32 v1, 3, v1\nv_and_b32 v2, 7, v0\nv_lshrrev_b32 v16, 5, v0\nv_lshlrev_b32 v16, 7, v16\nv_lshl_add_u32 v16, v1, 8, v16")
    A(f"v_lshrrev_b32 v1, 1, v1\nv_xor_b32 v17, v1, v2\nv_lshl_add_u32 v{dk}, v17, 4, v16")
    A(f"v_lshlrev_b32 v1, 2, v1\nv_xor_b32 v17, v1, v2\nv_lshl_add_u32 v{dv}, v17, 4, v16")


def finish_unit(cfg, A, tag, nsrc, acc, w_sreg, t_sreg, publish, G=32):
    A("v_and_b32 v10, 7, v0\nv_lshlrev_b32 v1, 2, v10\nv_lshlrev_b32 v6, 4, v0")
    A(f"buffer_load_dword v2, v1, {srd(SWS)}, s{sFLG} offen sc1")
    A(f"s_mul_i32 s56, s{sPAIR}, 884736\ns_mul_i32 s57, s{t_sreg}, 3\ns_add_u32 s57, s57, s{w_sreg}\ns_lshl_b32 s57, s57, 15\ns_add_u32 s56, s56, s57")
    A(f"s_mul_i32 s60, s{sB}, 96\ns_lshl_b32 s58, s{w_sreg}, 5\ns_add_u32 s60, s60, s58\ns_mul_i32 s60, s60, 2304\ns_lshl_b32 s58, s{t_sreg}, 7\ns_add_u32 s60, s60, s58")
    A("s_and_b32 s58, s2, 4\ns_mul_i32 s58, s58, 288\ns_add_u32 s60, s60, s58")
    A("v_and_b32 v7, 15, v0\nv_mul_u32_u24 v7, 2304, v7\nv_lshrrev_b32 v3, 5, v0\nv_lshl_add_u32 v7, v3, 4, v7\nv_bfe_u32 v3, v0, 4, 1\nv_lshl_add_u32 v7, v3, 5, v7")
    A(f"v_sub_u32 v10, s{t_sreg}, v10\nv_add_u32 v3, 9, v10\nv_cmp_gt_i32 vcc, 1, v10\nv_cndmask_b32 v10, v10, v3, vcc")
    A(f"s_mov_b32 s62, {((1 << nsrc) - 1) << 1}\ns_mov_b32 s58, 0\ns_mov_b32 s64, {nsrc}")
    if nsrc == 8:
        for k in range(32):
            A(f"v_mov_b32 v{acc + k}, 0")
    A("v_and_b32 v4, 15, v0\nv_lshrrev_b32 v5, 4, v0\nv_lshlrev_b32 v5, 2, v5\nv_sub_u32 v4, v4, v5\nv_mov_b32 v8, 0x3f80\nv_mov_b32 v9, 0x3f800000")
    for i in range(2):
        A(f"v_cmp_eq_u32 vcc, {2 * i}, v4\nv_cmp_eq_u32 s[66:67], {2 * i + 1}, v4\nv_mov_b32 v5, 0\nv_cndmask_b32 v5, v5, v8, vcc\nv_cndmask_b32 v{24 + i}, v5, v9, s[66:67]")
    A("v_mov_b32 v26, 0\nv_mov_b32 v27, 0\nv_mov_b32 v28, v24\nv_mov_b32 v29, v25")
    if publish:
        A(f"v_add_u32 v3, 8, v{vFL}\ns_lshl_b32 s66, 1, s{sCU}\ns_mov_b32 s67, 0\ns_waitcnt vmcnt(0)\ns_mov_b64 exec, s[66:67]")
        A(f"buffer_store_dword v3, v1, {srd(SWS)}, s{sFLG} offen sc1\ns_mov_b64 exec, -1\ns_branch L_chk{tag}")
    A(f"L_poll{tag}:\ns_waitcnt vmcnt(0)\nL_chk{tag}:\nv_sub_u32 v3, v2, v{vFL}\nv_cmp_ge_u32 vcc, v3, v10")
    A(f"s_and_b32 s63, vcc_lo, 0xffff\ns_lshr_b32 s63, s63, s{sCU}\ns_and_b32 s63, s63, s62\ns_cbranch_scc1 L_some{tag}")
    A(f"s_add_u32 s58, s58, 1\ns_cmp_gt_u32 s58, 0x100000\ns_cbranch_scc1 L_out{tag}\ns_sleep {cfg.psleep}")
    A(f"buffer_load_dword v2, v1, {srd(SWS)}, s{sFLG} offen sc1\ns_branch L_poll{tag}\nL_some{tag}:")
    for i in range(nsrc, 0, -1):
        A(f"s_bitcmp1_b32 s63, {i}\ns_cbranch_scc0 L_nl{tag}{i}")
        A(f"s_add_u32 s57, s{sCU}, {i}\ns_and_b32 s57, s57, 7\ns_lshl_b32 s57, s57, 12\ns_add_u32 s57, s57, s56")
        for p in range(4):
            A(f"buffer_load_dwordx4 {R('v', G + 16 * (i - 1) + 4 * p, 4)}, v6, {srd(SWS)}, s57 offen offset:{1024 * p}{cfg.gf}")
        A(f"L_nl{tag}{i}:")
    A(f"buffer_load_dword v2, v1, {srd(SWS)}, s{sFLG} offen sc1\ns_andn2_b32 s62, s62, s63\ns_waitcnt vmcnt(1)")
    for i in range(nsrc, 0, -1):
        A(f"s_cmp_lg_u32 s64, {i}\ns_cbranch_scc1 L_na{tag}{i}\ns_bitcmp1_b32 s62, {i}\ns_cbranch_scc1 L_poll{tag}")
        for u in range(2):
            for p in range(4):
                d = R("v", acc + 16 * (p >> 1) + 4 * (p & 1) + 8 * u, 4)
                A(f"{MF16} {d}, {R('v', 24 + 2 * u, 4)}, {R('v', G + 16 * (i - 1) + 4 * p, 4)}, {d}")
        A(f"s_mov_b32 s64, {i - 1}\nL_na{tag}{i}:")
    A(f"L_out{tag}:\ns_nop 15")
    for p in range(4):
        for k in range(4):
            r = acc + 16 * (p >> 1) + 4 * (p & 1) + 8 * (k >> 1) + 2 * (k & 1)
            A(f"v_cvt_pk_bf16_f32 v{8 + 4 * p + k}, v{r}, v{r + 1}")
    A(f"s_add_u32 s57, s60, {16 * 2304}")
    for p in range(4):
        A(f"v_permlane16_swap_b32 v{8 + 4 * p}, v{10 + 4 * p}\nv_permlane16_swap_b32 v{9 + 4 * p}, v{11 + 4 * p}")
        A(f"buffer_store_dwordx4 {R('v', 8 + 4 * p, 4)}, v7, {srd(SOUT)}, s{57 if p & 1 else 60} offen offset:{64 * (p >> 1)}{cfg.of}")
    if cfg.stamp and publish:
        A("s_waitcnt vmcnt(0)")
        stamp(cfg, A, 5, 0)
    if cfg.dstamp and publish:
        A(f"s_waitcnt vmcnt(0)\ns_and_b32 s56, s2, 0xf3\ns_or_b32 s56, s56, s{sW}\ns_cmp_lg_u32 s56, 0\ns_cbranch_scc1 L_nods{tag}")
        A("s_memrealtime s[60:61]\ns_memtime s[62:63]\ns_waitcnt lgkmcnt(0)\ns_sub_u32 s9, s9, s8\ns_sub_u32 s10, s10, s8\ns_sub_u32 s60, s60, s8\ns_sub_u32 s62, s62, s11")
        A(f"v_mov_b32 v4, s9\nv_mov_b32 v5, s10\nv_mov_b32 v6, s60\nv_mov_b32 v7, s62\ns_lshl_b32 s56, s2, 2\nv_mov_b32 v8, s56\ns_mov_b64 exec, 1")
        A(f"buffer_store_dwordx4 v[4:7], v8, {srd(SDB)}, 0 offen\nL_nods{tag}:")
    A("s_endpgm")


def last_fill(cfg, fb):
    for t in range(1, 9):
        s0 = 256 + 16 * t
        if t in cfg.pubs:
            fb.setdefault(s0 + 2, []).append({"pub": cfg.pubs[t]})
        spread(fb, store_block(cfg, 2 * t - 2, Q0, P0) + store_block(cfg, 2 * t - 1, Q0 + 16, P0 + 8), s0 + 3, s0 + 15)
    fb.setdefault(274, []).append(f"v_and_b32 v1, 7, v0\nv_lshlrev_b32 v1, 2, v1\ns_lshl_b32 s64, 1, s{sCU}\ns_mov_b32 s65, 0")


vK, vV, vWq, vWo, vX = 24, 28, 32, 36, 176
W3A = 40
W3B = 52
W3T = W3B
W3X = 76
W3ACC = 160
vTQ, vTO, vTX, vDUM = 12, 13, 14, 15
pQ3 = 22
pX3, pW3 = [4, 5], [6, 7, 8, 9]


def xreg(ks, j):
    i = ks * 6 + j
    return R("a", 4 * i, 4) if i < 64 else R("v", W3X + 4 * (i - 64), 4)


def wave3(cfg, pl):
    addr = pl.addr
    sc = Sched(cfg)
    A = sc.out
    A("L_loader:")
    if cfg.prof:
        A("s_mov_b32 s96, 0\ns_mov_b32 s97, 0\ns_mov_b32 s98, 0\ns_mov_b32 s99, 0")
    A("v_lshrrev_b32 v1, 4, v0\nv_and_b32 v2, 15, v0\nv_lshrrev_b32 v16, 1, v2\nv_xor_b32 v16, v16, v1\nv_lshlrev_b32 v2, 7, v2")
    A(f"v_lshl_add_u32 v{pX3[0]}, v16, 4, v2\nv_xor_b32 v{pX3[1]}, 64, v{pX3[0]}")
    A("v_lshrrev_b32 v2, 2, v0\nv_and_b32 v2, 3, v2\nv_lshl_add_u32 v16, v1, 3, v2\nv_lshlrev_b32 v16, 7, v16\nv_lshrrev_b32 v2, 1, v2\nv_lshl_add_u32 v16, v2, 6, v16")
    A(f"v_and_b32 v2, 1, v1\nv_lshl_add_u32 v16, v2, 5, v16\nv_and_b32 v2, 3, v0\nv_lshl_add_u32 v{pW3[0]}, v2, 3, v16")
    for j in range(1, 4):
        A(f"v_xor_b32 v{pW3[j]}, {32 * j}, v{pW3[0]}")
    A(f"v_lshlrev_b32 v{pQ3}, 4, v0")
    for p in pX3 + pW3 + [pQ3]:
        sc.bias[p] = 0
    A("v_lshrrev_b32 v1, 3, v0\nv_and_b32 v2, 7, v0\nv_lshrrev_b32 v3, 4, v0")
    A("v_and_b32 v16, 1, v3\nv_lshlrev_b32 v16, 2, v16\nv_xor_b32 v16, v16, v2\nv_lshlrev_b32 v16, 4, v16")
    A("v_lshlrev_b32 v18, 8, v1\nv_lshlrev_b32 v19, 13, v1\nv_mul_u32_u24 v20, 1152, v1")
    for g in range(4):
        A(f"v_add_u32 v17, {4 * g}, v3\nv_and_b32 v17, 7, v17\nv_xor_b32 v17, v17, v2\nv_lshlrev_b32 v17, 4, v17")
        A(f"v_add_u32 v17, {g * (9216 - 1024)}, v17\nv_add_u32 v{vX + g}, v17, v20")
        A(f"v_xor_b32 v17, {32 * (g & 1)}, v16\nv_add_u32 v17, {g * (65536 - 1024)}, v17\nv_add_u32 v{vWq + g}, v17, v19")
        A(f"v_lshrrev_b32 v21, 5, v0\nv_lshlrev_b32 v21, 5, v21\nv_xor_b32 v21, v21, v16\nv_add_u32 v17, {g * (9216 - 1024)}, v21\nv_add_u32 v{vWo + g}, v17, v20")
    kv_offsets(A, vK, vV)
    A(f"v_xor_b32 v{vV}, 32, v{vV}")
    for g in range(1, 4):
        A(f"v_xor_b32 v{vK + g}, {32 * g}, v{vK}\nv_mov_b32 v{vV + g}, v{vV}")
    nsh = {"16x8": 16, "8x16": 8, "4x32": 4}[cfg.mapping]
    xsh = 32 // nsh
    rows = 576 // nsh
    A(f"s_and_b32 s56, s{sB}, {nsh - 1}\nv_mov_b32 v21, 0x7fffff00\nv_cmp_gt_u32 vcc, 36, v0")
    A(f"v_lshrrev_b32 v{vTQ}, 1, v0\nv_lshlrev_b32 v{vTQ}, 13, v{vTQ}\nv_and_b32 v17, 1, v0\nv_lshlrev_b32 v17, 7, v17\nv_add_u32 v{vTQ}, v{vTQ}, v17")
    A(f"s_mul_i32 s57, s56, {rows * 8192}\nv_add_u32 v{vTQ}, s57, v{vTQ}\nv_cndmask_b32 v{vTQ}, v21, v{vTQ}, vcc")
    A(f"v_lshlrev_b32 v{vTO}, 7, v0\ns_mul_i32 s57, s56, {rows * 256}\nv_add_u32 v{vTO}, s57, v{vTO}\nv_cndmask_b32 v{vTO}, v21, v{vTO}, vcc")
    A(f"v_cmp_gt_u32 vcc, 54, v0\nv_lshlrev_b32 v{vTX}, 7, v0\ns_and_b32 s57, s{sCU}, {xsh - 1}\ns_mul_i32 s57, s57, {110592 // xsh}\nv_add_u32 v{vTX}, s57, v{vTX}")
    A(f"v_cndmask_b32 v{vTX}, v21, v{vTX}, vcc")

    def touch_ops(vreg, srd_, base, add, step, nl=rows * 2, per=36):
        l = []
        if not cfg.pf:
            return l
        for i in range(nl // per):
            l.append(f"s_add_u32 s{sTMP}, s{base}, {i * per * step + add}")
            for fl in ((" nt", "") if cfg.dbl else ("",)):
                l.append(("vm", f"buffer_load_dword v{vDUM}, v{vreg}, {srd(srd_)}, s{sTMP} offen{fl}"))
        return l

    def quad_ops(q, w=False):
        k = q[0]
        pre = []
        if k == "k":
            off, base, v, sr, fl = q[1] * 8192 + q[2] * 4096, sKV, vK, SK, cfg.kvf
        elif k == "v":
            off, base, v, sr, fl = q[1] * 8192 + q[2] * 4096, sKV, vV, SV, cfg.kvf
        elif k == "wq":
            off, base, v, sr, fl = (q[1] * 64 + q[2] * 32) * 8192 + q[3] * 128, sWQo, vWq, SWQ, cfg.wf
        elif k == "wq3":
            off, base, v, sr, fl = (q[2] * 64 + q[3] * 32) * 8192 + q[1] * 128 + 256, sWQo, vWq, (SWQ2 if w else SWQ), cfg.wf
        elif k == "x":
            off, base, v, sr, fl = q[2] * 32 * 1152 + q[1] * 128, sXo, vX, SX, cfg.xf
        else:
            pre = [f"s_add_u32 s{sTMP}, s{sWOo}, s{sTC + q[1]}"]
            off, base, v, sr, fl = q[2] * 32 * 1152, sTMP, vWo, SWO, cfg.wf
        l = pre + [f"s_mov_b32 m0, {addr[q]}", f"s_add_u32 s{sTMP}, s{base}, {off}"]
        for g in range(4):
            if not cfg.noload:
                l.append(("vm", f"buffer_load_dwordx4 v{v + g}, {srd(sr)}, s{sTMP} offen offset:{g * 1024}{fl} lds", q, g))
        return l

    lin = []

    def put(sc_, o, gen=0):
        if isinstance(o, tuple):
            sc_.out(o[1])
            lin.append((o[2] if len(o) > 2 else None, gen))
        elif callable(o):
            o(sc_)
        else:
            sc_.out(o)

    def wait_for(sc_, quads, gen):
        if cfg.noload:
            return
        last = max(k for k, e in enumerate(lin) if e[0] in quads and e[1] == gen)
        sc_.out(f"s_waitcnt vmcnt({min(63, len(lin) - 1 - last)})")

    def bar(sc_):
        if not cfg.nobar:
            sc_.out("s_barrier")

    descriptors(A)
    if stamp(cfg, A, 15, 1):
        lin.append((None, 0))
    if cfg.delay:
        A(f"s_and_b32 s56, s{sB}, 1\ns_cmp_eq_u32 s56, 0\ns_cbranch_scc1 L_nodelay")
        for _ in range(cfg.delay):
            A("s_sleep 32")
        A("L_nodelay:")
    for n_, q in enumerate(pl.sissue[-1]):
        for o in quad_ops(q):
            put(sc, o)
        if n_ == 6:
            sample_flags(A)
            lin.append((("flag",), 0))
    bias0 = {p: XRES for p in pX3}
    bias0.update({p: WRB for p in pW3})
    bias0[pQ3] = QBUF
    ops = w3_ops(cfg)
    quads = w3_quads()
    ns = len(pl.grp)

    def conv_tile(p, hb, j):
        l = []
        for x in range(2):
            dt = 2 * hb + x
            pk = W3T + 4 + 4 * x
            for e in range(2):
                acc = W3ACC + 4 * (6 * dt + 2 * j + e)
                for y in range(2):
                    t0 = W3T + 2 * y
                    l += [f"v_mul_f32 v{t0}, s{sC}, v{acc + 2 * y}", f"v_mul_f32 v{t0 + 1}, s{sC}, v{acc + 2 * y + 1}"]
                l += [f"v_cvt_pk_bf16_f32 v{pk + 2 * e + y}, v{W3T + 2 * y}, v{W3T + 2 * y + 1}" for y in range(2)]
            l += ["s_nop 0", f"v_permlane16_swap_b32 v{pk}, v{pk + 2}", f"v_permlane16_swap_b32 v{pk + 1}, v{pk + 3}"]
            l.append(lambda sc_, pk=pk, a=QBUF + (j * 4 + dt) * 1024: sc_.lds("ds_write_b128", R("v", pk, 4), pQ3, a))
        return l

    def period(last, pro):
        nonlocal lin
        sc2 = Sched(cfg)
        sc2.bias = dict(bias0)
        B = sc2.out
        lin = [(q, 0) for q in pro for g in range(4)] if not cfg.noload else []
        myops = [] if last else copy.deepcopy(ops)
        n = len(myops)
        fill = {}
        bpos = {s: (sum(cfg.quota[:s]) if not last else 0) for s in range(ns + 1)}
        enq = {}
        if not last:
            lastidx = {(o["p"], o["hb"], o["j"]): i for i, o in enumerate(ops) if o["last"]}
            for p, hb in ((0, 0), (1, 0), (0, 1)):
                i0 = lastidx[(p, hb, 2)]
                spread(fill, sum((conv_tile(p, hb, j) for j in range(3)), []), i0 + 4, i0 + 12)
            assert lastidx[(0, 1, 2)] + 16 <= bpos[18] and lastidx[(1, 0, 2)] + 4 >= bpos[19]
            firstop = {q: min(i for i, o in enumerate(ops) if o["q"] == q) for q in quads}
            lastop = {q: max(i for i, o in enumerate(ops) if o["q"] == q) - 2 for q in quads}
            seg = lambda i: max(s for s in range(ns) if bpos[s] <= i)
            at = 0
            for k in range(36, 72):
                prev = max(j for j in range(k) if addr[quads[j % 36]] == addr[quads[k % 36]])
                free = lastop[quads[prev % 36]] + 1 + (prev // 36 - 1) * n
                sneed = seg(firstop[quads[k % 36]]) - cfg.raq
                early = bpos[sneed] if sneed >= 0 else bpos[sneed + ns] - n
                at = max(free, early) if k == 36 else max(at, free, early)
                assert at <= firstop[quads[k % 36]] - 5
                enq.setdefault(at % n if at < 0 else at, []).append((quads[k % 36], at < 0))
        st = dict(wrapq=False, wrapg=False, rdA=0, rdB=0, abuf=0, bbuf=0, step=-1)
        queue = []

        def drain(nvm):
            while queue and nvm > 0:
                o, g = queue.pop(0)
                put(sc2, o, g)
                nvm -= isinstance(o, tuple)

        def open_step(s):
            if cfg.trace is True:
                B(f"s_memtime s[60:61]\ns_waitcnt lgkmcnt(0)\nv_writelane_b32 v2, s60, {s}")
            wait_for(sc2, {pl.grp[s][3]}, 0)
            if cfg.trace is True:
                B(f"s_memtime s[60:61]\ns_waitcnt lgkmcnt(0)\nv_writelane_b32 v2, s60, {32 + s}")
            if s in (0, 16):
                if stamp(cfg, B, {0: 1, 16: 2}[s], 1):
                    lin.append((None, 0))
            if last and s == 16:
                B("v_readfirstlane_b32 s57, v17\ns_mov_b32 s58, 0\nL_chk:\ns_cmp_ge_u32 s57, 8\ns_cbranch_scc1 L_chkend")
                B(f"buffer_load_dword v17, v16, {srd(SDB)}, 0 offen offset:{128 if cfg.dstamp else 0} sc1\ns_add_u32 s58, s58, 1\ns_waitcnt vmcnt(0)\nv_readfirstlane_b32 s57, v17")
                B("s_cmp_lt_u32 s58, 0x80000\ns_cbranch_scc1 L_chk\nL_chkend:")
            bar(sc2)
            for g, w in pl.req[s]:
                if w and not st["wrapg"]:
                    st["wrapg"] = True
                    queue.append((f"s_add_u32 s{sKV}, s{sKV}, 0x20000", 0))
                assert g >= 16 or w == st["wrapg"]
                if not (last and w):
                    queue.extend((o, int(w)) for o in quad_ops(pl.grp[g][3]))
            if last and s == 2:
                queue.extend([(f"s_lshl_b32 s56, s{sPAIR}, 2", 0), ("v_mov_b32 v16, s56", 0), (("vm", f"buffer_load_dword v17, v16, {srd(SDB)}, 0 offen offset:{128 if cfg.dstamp else 0} sc1"), 0)])
            if s == cfg.pf_wo_step:
                queue.extend((o, 0) for o in touch_ops(vTO, SWO, sWOo, 0, 128))
            if s == cfg.pf_wq_step and not last:
                queue.append((f"s_cmp_eq_u32 s{sIT}, 2\ns_cselect_b32 s{SWQ2 + 2}, 0, s{SWQ2 + 2}", 0))
                queue.extend((o, 0) for o in touch_ops(vTQ, SWQ2, sWQo, 512, 4096))
            if cfg.warm and s == 9 and not last:
                queue.append(("s_call_b64 s[40:41], L_warm_more", 0))
            if bpos[s + 1] == bpos[s]:
                drain(99)
            st["step"] = s

        for i in range(n):
            while st["step"] + 1 < ns and bpos[st["step"] + 1] <= i:
                open_step(st["step"] + 1)
            for q, w in enq.get(i, []):
                if w and not st["wrapq"]:
                    st["wrapq"] = True
                    queue.append((f"s_add_u32 s{sWQo}, s{sWQo}, 256", 0))
                assert w == st["wrapq"]
                queue.extend((o, int(w)) for o in quad_ops(q, w))
            while st["rdA"] < n and st["rdA"] <= i + 5:
                o = myops[st["rdA"]]
                if st["rdA"] == firstop[o["q"]] and not cfg.noload:
                    while lin.count((o["q"], 0)) < 4:
                        drain(1)
                    wait_for(sc2, {o["q"]}, 0)
                fb = W3A + 4 * (st["abuf"] % 3)
                st["abuf"] += 1
                sc2.lds("ds_read_b64_tr_b16", R("v", fb, 2), pW3[o["dt"]], addr[o["q"]])
                sc2.lds("ds_read_b64_tr_b16", R("v", fb + 2, 2), pW3[o["dt"]], addr[o["q"]] + 4 * 128)
                for d in range(3):
                    myops[st["rdA"] + d]["areg"] = fb
                st["rdA"] += 3
            while st["rdB"] < n and st["rdB"] <= i + 2:
                o = myops[st["rdB"]]
                if o["ks"] >= 14 and st["rdB"] - o["j"] == firstop[o["q"]]:
                    for e in range(2):
                        qt = 2 * o["j"] + e
                        sc2.lds("ds_read_b128", R("v", W3B + 4 * qt, 4), pX3[o["ks"] & 1], XRES + ((o["ks"] >> 1) - 7) * 12288 + qt * 2048)
                st["rdB"] += 1
            o = myops[i]
            fl = fill.get(i, [])
            for e in range(2):
                if e:
                    drain(1)
                for f in (fl[len(fl) // 2:] if e else fl[:len(fl) // 2]):
                    put(sc2, f)
                qt = 2 * o["j"] + e
                d = R("v", W3ACC + 4 * (6 * o["dt"] + qt), 4)
                b = xreg(o["ks"], qt) if o["ks"] < 14 else R("v", W3B + 4 * qt, 4)
                B(f"{MF16} {d}, {R('v', o['areg'], 4)}, {b}, {'0' if o['first'] else d}")
        drain(99)
        if not last:
            for o in sum((conv_tile(1, 1, j) for j in range(3)), []):
                put(sc2, o)
            B("s_waitcnt lgkmcnt(0)")
            assert st["step"] + 1 < ns
        while st["step"] + 1 < ns:
            open_step(st["step"] + 1)
        tailq = [e[0] for e in lin if e[1] == 1][::4]
        if not last:
            B(f"s_add_u32 s{sWOo}, s{sWOo}, 147456")
            for p, b in bias0.items():
                sc2.rebias(p, b)
            if cfg.trace is True:
                B(f"s_cmp_lg_u32 s{sIT}, {cfg.trace_it}\ns_cbranch_scc1 L_notr3\nv_lshlrev_b32 v1, 2, v0\ns_lshl_b32 s62, s2, 10\ns_add_u32 s62, s62, {STAMP_BASE + 768}")
                B(f"buffer_store_dword v2, v1, {srd(SWS)}, s62 offen\ns_waitcnt vmcnt(0)\nL_notr3:")
            B(f"s_add_u32 s{sIT}, s{sIT}, 1\ns_cmp_lt_u32 s{sIT}, 3\ns_cbranch_scc1 L_w3loop")
        body, pe = lgkm_pass(B.ins)
        assert not pe
        return body, tailq

    lin0 = list(lin)
    _, pro = period(False, [pl.grp[g][3] for g in pl.pro] + quads[:cfg.WR])
    loopbody, pro2 = period(False, pro)
    assert pro2 == pro
    lastp, _ = period(True, pro)
    lin = lin0
    if cfg.noload:
        pro = []
    todo = list(pro)
    for t in range(9):
        wait_for(sc, set(pl.start[t]) | ({("flag",)} if t == 0 else set()), 0)
        A("s_waitcnt lgkmcnt(0)")
        bar(sc)
        if t == 0:
            A(f"s_lshl_b32 s56, s{sPAIR}, 2\nv_mov_b32 v16, s56\nv_mov_b32 v17, 1\ns_mov_b64 exec, 1")
            put(sc, ("vm", f"buffer_atomic_add v17, v16, {srd(SDB)}, 0 offen offset:{128 if cfg.dstamp else 0} sc1"))
            A("s_mov_b64 exec, -1")
        if t < 7:
            for s in range(2):
                for j in range(6):
                    sc.lds("ds_read_b128", xreg(2 * t + s, j), pX3[s], addr[("x", t, 0)] + j * 2048)
        if t == cfg.pf_wq0_step:
            for o in touch_ops(vTQ, SWQ, sWQo, 256, 4096):
                put(sc, o)
        for q in pl.sissue[t]:
            for o in quad_ops(q):
                put(sc, o)
        while todo:
            q = todo[0]
            if q[0] == "wq3":
                if pl.slast.get(addr[q], -9) >= t:
                    break
                if any(pl.sissue[b] for b in range(t + 1, 9)):
                    break
            elif not any(pl.grp[g][3] == q for b in range(-1, t + 1) for g in pl.sreq[b]):
                break
            for o in quad_ops(todo.pop(0)):
                put(sc, o)
    assert not todo
    for p, b in bias0.items():
        sc.rebias(p, b)
    A("s_waitcnt lgkmcnt(0)")
    head, pend = lgkm_pass(sc.out.ins)
    loop = [parse("L_w3loop:")] + loopbody
    T = Prog()
    if cfg.prof:
        T(f"v_mov_b32 v16, s96\nv_mov_b32 v17, s97\nv_mov_b32 v18, s98\nv_mov_b32 v19, s99\nv_mov_b32 v20, 0\ns_lshl_b32 s62, s2, 10\ns_add_u32 s62, s62, {STAMP_BASE + 512 + 64}")
        T(f"buffer_store_dwordx4 v[16:19], v20, {srd(SWS)}, s62 offen")
    T(f"s_cmp_ge_u32 s{sCU}, 3\ns_cbranch_scc1 L_done")
    T("s_mov_b32 s61, 8")
    finish_unit(cfg, T, "w3", 8, 192, sCU, 61, False)
    allins, nn = hazard_pass(head + loop + lastp + T.ins, verbose=cfg.dbg == "nops3")
    return allins, dict(w3nops=nn, w3est=est_cycles(loop))


def acc_out(nb):
    return R("a", 16 * nb, 16) if nb < 16 else R("v", OUTV + 16 * (nb - 16), 16)


def q_ops(addr):
    ops = []
    XB = S0
    for t in range(9):
        order = [(s, b) for s in range(4) for b in range(4)] if t < 8 else [(s, b) for b in range(4) for s in range(4)]
        seen = set()
        for (s, b) in order:
            qa = addr[("wq", t, s >> 1, b >> 1)] + (16 * (s & 1)) * 128
            xb = XB + 4 * ((t * 4 + s) % 8)
            o = dict(step=t, a=[("tr", pWq[b & 1], qa), ("tr", pWq[b & 1], qa + 4 * 128)], b=R("v", xb, 4), d=R("v", O0 + 16 * b, 16))
            o["c"] = "0" if (t == 0 and s == 0) else o["d"]
            if s not in seen:
                seen.add(s)
                o["x"] = (xb, pK[s], addr[("x", t, 0)])
            ops.append(o)
    return ops


def item_ops(addr):
    ops = []

    def qk(u, step):
        for ds in range(8):
            d = R("v", S0 + 16 * (u & 1) if u else O0, 16)
            c = d if ds else ("0" if u < 2 else R("v", NEGM, 16))
            ops.append(dict(step=step, a=[("b128", pK[ds & 3], addr[("k", u, 0)] + (ds >> 2) * 512)], b=R("v", Q0 + 4 * ds, 4), d=d, c=c))

    def pv(u, step, bmajor=False):
        for dt in range(8):
            va = addr[("v", u, 0)] + (dt >> 2) * 512
            mm = []
            for e in range(2):
                d = R("v", O0 + 8 * dt + 4 * e, 4)
                mm.append((d, R("v", P0 + 8 * (u & 1) + 4 * e, 4), "0" if u == 0 else d))
            ops.append(dict(step=step, a=[("tr", pV[dt & 3], va), ("tr", pV[dt & 3], va + 2048)], mm=mm))
    qk(0, 0)
    qk(1, 0)
    for u in range(1, 15):
        qk(u + 1, u)
        pv(u - 1, u)
    pv(14, 15)
    pv(15, 15, True)
    for t in range(9):
        for b in range(4):
            for nt in range(4):
                wa = addr[("wo", t, b)]
                mm = []
                for e in range(2):
                    r = 32 * t + 8 * nt + 4 * e
                    d = R("a", r, 4) if t < 8 else R("v", OUTV + r - 256, 4)
                    mm.append((d, R("v", OF + 8 * b + 4 * e, 4), d))
                ops.append(dict(step=16 + t, a=[("tr", pV[nt], wa), ("tr", pV[nt], wa + 2048)], mm=mm, alt=(b == 0)))
    ops[256]["pre"] = [f"v_add_u32 v{p}, v{p}, v{vDL}" for p in pV]
    assert len(ops) == 400
    return ops


def softmax_ops(u, first=False):
    S, P = S0 + 16 * (u & 1), P0 + 8 * (u & 1)
    if first:
        S = O0
    l = []
    for k in range(8):
        a, b = vT[2 * (k & 1)], vT[2 * (k & 1) + 1]
        pa, pb = vT[2 * ((k - 1) & 1)], vT[2 * ((k - 1) & 1) + 1]
        l.append(f"v_exp_f32 v{a}, v{S + 2 * k}")
        if k == 1:
            l.append(f"v_add_f32 v{vBS}, v{pa}, v{pb}")
        elif k > 1:
            l.append(f"v_add_f32 v{vBS}, v{vBS}, v{pa}")
        l.append(f"v_exp_f32 v{b}, v{S + 2 * k + 1}")
        if k > 1:
            l.append(f"v_add_f32 v{vBS}, v{vBS}, v{pb}")
        if k >= 1:
            l.append(f"v_cvt_pk_bf16_f32 v{P + k - 1}, v{pa}, v{pb}")
    a, b = vT[2], vT[3]
    l.append(f"v_cvt_pk_bf16_f32 v{P + 7}, v{a}, v{b}")
    l.append(f"v_add_f32 v{vBS}, v{vBS}, v{a}")
    l.append(f"v_permlane16_swap_b32 v{P + 2}, v{P + 6}")
    l.append(f"v_add_f32 v{vBS}, v{vBS}, v{b}")
    l.append(f"v_permlane16_swap_b32 v{P + 3}, v{P + 7}")
    for k in range(2):
        i = l.index(next(o for o in l if o.startswith(f"v_cvt_pk_bf16_f32 v{P + 4 + k},")))
        l.insert(i + 3, f"v_permlane16_swap_b32 v{P + k}, v{P + 4 + k}")
    return l


def conv_o(b):
    l = []
    for e, sc_ in ((0, vM), (1, vM3)):
        for x in range(2):
            r = O0 + 8 * (2 * b + x) + 4 * e
            l += [f"v_mul_f32 v{r + i}, v{sc_}, v{r + i}" for i in range(4)]
            l += [f"v_cvt_pk_bf16_f32 v{OF + 8 * b + 4 * e + 2 * x + y}, v{r + 2 * y}, v{r + 2 * y + 1}" for y in range(2)]
    return l


def conv_block(b, scale, dst):
    l = []
    for k in range(8):
        r = O0 + 16 * b + 2 * k
        l.append(f"v_mul_f32 v{r}, {scale}, v{r}")
        l.append(f"v_mul_f32 v{r + 1}, {scale}, v{r + 1}")
        if k:
            l.append(f"v_cvt_pk_bf16_f32 v{dst + 8 * b + k - 1}, v{r - 2}, v{r - 1}")
    l.append(f"v_cvt_pk_bf16_f32 v{dst + 8 * b + 7}, v{O0 + 16 * b + 14}, v{O0 + 16 * b + 15}")
    return l


def rowmax(S):
    l = [f"v_max3_f32 v{vM}, v{S}, v{S + 1}, v{S + 2}"]
    for k in range(6):
        l.append(f"v_max3_f32 v{vM}, v{vM}, v{S + 3 + 2 * k}, v{S + 4 + 2 * k}")
    l.append(f"v_max_f32 v{vM}, v{vM}, v{S + 15}")
    l.append(f"v_mov_b32 v{vM2}, v{vM}")
    l.append(f"v_permlane32_swap_b32 v{vM}, v{vM2}")
    l.append(f"v_max_f32 v{vM}, v{vM}, v{vM2}")
    return l


def with_subs(S, sm):
    sub = [f"v_sub_f32 v{S + i}, v{S + i}, v{vM}" for i in range(16)]
    l, k = sub[:4], 4
    for o in sm:
        l.append(o)
        if o.startswith("v_exp") and k < 16:
            l.append(sub[k])
            k += 1
    return l


def item_fill(cfg, ops, fill):
    post = {}
    chk = [f"v_cmp_lt_f32 vcc, s{sTHR}, v{vBS}"]
    spread(fill, rowmax(O0) + [f"v_sub_f32 v{NEGM + i}, 0, v{vM}" for i in range(16)], 11, 15)
    spread(fill, with_subs(O0, softmax_ops(0, True)) + [f"v_mov_b32 v{vL}, v{vBS}"], 16, 23)
    spread(fill, with_subs(S0 + 16, softmax_ops(1)) + chk, 24, 31)
    post[31] = 1
    for u in range(2, 15):
        su = 16 * u
        spread_bal(cfg, ops, fill, softmax_ops(u) + chk, su, su + 15)
        post[su + 15] = u
    spread(fill, softmax_ops(15) + chk, 240, 247)
    post[247] = 15
    spread(fill, [f"v_mov_b32 v{vM2}, v{vL}", f"v_permlane32_swap_b32 v{vL}, v{vM2}", f"v_add_f32 v{vL}, v{vL}, v{vM2}",
                  f"v_rcp_f32 v{vM}, v{vL}", "s_nop 0", f"v_mov_b32 v{vM3}, v{vM}", "s_nop 0", f"v_permlane16_swap_b32 v{vM}, v{vM3}"], 248, 252)
    spread(fill, conv_o(0), 253, 255)
    spread(fill, conv_o(1), 256, 259)
    spread(fill, conv_o(2), 260, 263)
    spread(fill, conv_o(3), 264, 267)
    return post


def store_block(cfg, nb, tmp, pk):
    l = []
    if not nb & 1:
        l += [f"s_mul_i32 s56, s{sTC + (nb >> 1)}, 768", f"s_add_u32 s56, s56, s{sWSo}"]
    for u in range(2):
        for k in range(8):
            l.append(f"v_accvgpr_read_b32 v{tmp + 8 * u + k}, a{16 * nb + 4 * u + 8 * (k >> 2) + (k & 3)}")
        for k in range(4):
            i = 8 * u + 2 * k
            l.append(f"v_cvt_pk_bf16_f32 v{pk + 4 * u + k}, v{tmp + i}, v{tmp + i + 1}")
        l.append((f"buffer_store_dwordx4 {R('v', pk + 4 * u, 4)}, v{vST}, {srd(SWS)}, s56 offen offset:{((nb & 1) * 2 + u) * 1024}{cfg.pstf}", ("st", nb >> 1)))
    return l


VMCOST = 4


def emit_slots(cfg, sc, ops, fill, post, lo, hi, st, stubs, stamps={}, nextops=None):
    LA = cfg.LA
    first = {}
    if nextops:
        ops = ops + [dict(o, step=ops[-1]["step"] + 1) for o in nextops]
    for i, o in enumerate(ops):
        first.setdefault(o["step"], i)
    for i in range(lo, hi):
        nx = st["step"] + 1
        if nextops and nx == ops[-1]["step"] and i >= first[nx] - cfg.LB:
            st["tag"], st["alias"] = "n", 0
            for p, b in st["rebias"].items():
                sc.rebias(p, b)
            for p in pV:
                sc.out(f"v_sub_u32 v{p}, v{p}, v{vDL}")
        if nx in first and i >= first[nx] - (cfg.LB if nx else LA):
            if cfg.dstamp and nx in stamps and stamps[nx] in (1, 2) and (stamps[nx] == 2 or nx == 0):
                sc.out(f"s_memrealtime s[60:61]\ns_waitcnt lgkmcnt(0)\ns_mov_b32 s{8 + stamps[nx]}, s60")
            if nx in stamps and stamp(cfg, sc.out, stamps[nx], 0):
                st["lin"].append(None)
            w = "lgkmcnt(0)"
            key = (st["tag"], st.get("alias", nx))
            if key in st["lin"]:
                last = max(k for k, e in enumerate(st["lin"]) if e == key)
                w = f"vmcnt({len(st['lin']) - 1 - last}) " + w
            if cfg.trace == "head" and len(ops) in (144, 432):
                sc.out(f"s_memrealtime s[60:61]\ns_waitcnt lgkmcnt(0)\nv_writelane_b32 v{NEGM + 1}, s60, {nx}")
            if cfg.trace is True and len(ops) in (400, 400 + cfg.LA) and 0 < nx < 25:
                sc.out("s_memtime s[60:61]\ns_waitcnt lgkmcnt(0)")
                sc.out(f"v_writelane_b32 v2, s60, {nx}")
            if cfg.trace == "head2" and len(ops) == 432:
                sc.out(f"s_memtime s[60:61]\ns_waitcnt lgkmcnt(0)\nv_writelane_b32 v{NEGM + 1}, s60, {nx}")
            sc.out("s_waitcnt " + w)
            if cfg.trace == "head2" and len(ops) == 432:
                sc.out(f"s_memtime s[60:61]\ns_waitcnt lgkmcnt(0)\nv_writelane_b32 v{NEGM + 1}, s60, {32 + nx}")
            if cfg.trace is True and len(ops) in (400, 400 + cfg.LA) and 0 < nx < 25:
                sc.out("s_memtime s[60:61]\ns_waitcnt lgkmcnt(0)")
                sc.out(f"v_writelane_b32 v2, s60, {32 + nx}")
            if not cfg.nobar:
                sc.out("s_barrier")
            st["step"] = nx
        nrd = 0
        while st["rd"] < min(i + LA + 1, len(ops)) and ops[st["rd"]]["step"] <= st["step"]:
            o = ops[st["rd"]]
            nrd += len(o["a"])
            for x in o.get("pre", []):
                sc.out(x)
            if "x" in o:
                sc.lds("ds_read_b128", R("v", o["x"][0], 4), o["x"][1], o["x"][2])
            fb = sc.fbuf()
            o["areg"] = fb
            if o["a"][0][0] == "b128":
                sc.lds("ds_read_b128", R("v", fb, 4), o["a"][0][1], o["a"][0][2])
            else:
                sc.lds("ds_read_b64_tr_b16", R("v", fb, 2), o["a"][0][1], o["a"][0][2])
                sc.lds("ds_read_b64_tr_b16", R("v", fb + 2, 2), o["a"][1][1], o["a"][1][2])
            st["rd"] += 1
        def emit_fill(fl):
            for f in fl:
                if callable(f):
                    f(sc)
                elif isinstance(f, dict):
                    last = max(k for k, e in enumerate(st["lin"]) if e == ("st", f["pub"] - 1))
                    n_ = sum(1 for e in st["lin"][last + 1:] if e and e[0] == "st")
                    sc.out(f"v_add_u32 v2, {f['pub']}, v{vFL}\ns_waitcnt vmcnt({n_})\ns_mov_b64 exec, s[64:65]")
                    sc.out(f"buffer_store_dword v2, v1, {srd(SWS)}, s{sFLG} offen sc1\ns_mov_b64 exec, -1")
                    st["lin"].append(("st", -1))
                elif isinstance(f, tuple):
                    sc.out(f[0])
                    st["lin"].append(f[1])
                else:
                    sc.out(f)
                    if f.startswith("buffer_"):
                        st["lin"].append(None)
        fl = fill.get(i, [])
        if i < 0:
            emit_fill(fl)
            continue
        o = ops[i]
        mm = o.get("mm") or [(o["d"], o["b"], o["c"])]
        op = MF16 if "mm" in o else MF
        ms = [parse(f"{op} {d}, {R('v', o['areg'], 4)}, {b}, {c}") for d, b, c in mm]
        if i % cfg.waitgrp == 0:
            for d in range(1, cfg.waitgrp):
                if i + d < st["rd"]:
                    ms[0].rd = set(ms[0].rd) | {("v", ops[i + d]["areg"] + k) for k in range(4)}
        if o.get("alt") and st.get("alts") is not None:
            emit_fill(fl)
            c = parse(f"s_cmp_eq_u32 s{sIT}, 0")
            c.rd = set(c.rd) | {r for m in ms for r in m.rd if r[0] == "v"}
            n_ = len(st["alts"])
            sc.out.ins.append(c)
            sc.out(f"s_cbranch_scc1 L_alt{n_}")
            sc.out.ins.extend(ms)
            sc.out(f"s_branch L_altb{n_}\nL_alt{n_}:")
            for d, b, c in mm:
                z = parse(f"{op} {d}, {R('v', o['areg'], 4)}, {b}, 0")
                z.kind = "altmfma"
                sc.out.ins.append(z)
            sc.out(f"L_altb{n_}:")
            st["alts"].append(n_)
            continue
        if len(ms) == 1:
            emit_fill(fl)
            sc.out.ins.append(ms[0])
        else:
            need0 = max([k + 1 for k, f in enumerate(fl) if isinstance(f, str) and "\n" not in f and parse(f).wr & ms[0].rd] + [0])
            k0 = max(need0, (len(fl) - nrd + 1) // 2 if len(fl) > nrd else 0)
            emit_fill(fl[:k0])
            sc.out.ins.append(ms[0])
            emit_fill(fl[k0:])
            sc.out.ins.append(ms[1])
        if i in post:
            u = post[i]
            tag = f"{u}_{len(stubs)}"
            sc.out(f"s_cbranch_vccnz L_stub_{tag}\nL_back_{tag}:")
            sc.out(f"v_add_f32 v{vL}, v{vL}, v{vBS}")
            stubs.append((tag, u & 1))


def group_request(cfg, pl, fill, slot, g, tag, kind, sp=1):
    l = []
    want = "k" if g == 0 else "m" if g < 15 else "v" if g == 15 else "w"
    if want != kind:
        l += {"k": [f"v_xor_b32 v{vD + k}, {32 * k}, v{bK}" for k in range(4)],
              "m": [f"v_mov_b32 v{vD}, v{bM}", f"v_xor_b32 v{vD + 1}, s{sXM}, v{bM}", f"v_xor_b32 v{vD + 2}, s{sXM2}, v{bM}", f"v_xor_b32 v{vD + 3}, s{sXM2}, v{vD + 1}"],
              "v": [f"v_xor_b32 v{vD + k}, s{sXV}, v{bV}" for k in range(4)],
              "w": [f"v_add_u32 v{vD + k}, {8192 * k}, v{bWo}" for k in range(4)]}[want]
    so, sr, fl = {"k": (f"s_add_u32 s{sTMP}, s{sB0}, 0", SK, cfg.kvf), "m": (f"s_add_u32 s{sTMP}, s{sMB}, {g * 8192}", SM, cfg.kvf),
                  "v": (f"s_add_u32 s{sTMP}, s{sB0}, {14 * 8192}", SV, cfg.kvf),
                  "w": (f"s_add_u32 s{sTMP}, s{sWB}, s{sTC + max(g - 16, 0)}", SWO, cfg.wf)}[want]
    l += [f"s_add_u32 m0, s{sT4K}, {pl.addr[pl.grp[g][0]]}", so]
    fill.setdefault(slot, []).extend(l)
    for k in range(4):
        if not cfg.noload:
            fill.setdefault(slot + k * sp, []).append((f"buffer_load_dwordx4 v{vD + k}, {srd(sr)}, s{sTMP} offen offset:{k * 1024}{fl} lds", (tag, g)))
    if g == 24:
        fill.setdefault(slot + 3 * sp, []).append(f"s_add_u32 s{sWB}, s{sWB}, 147456")
    return want


def rare_routine(p):
    A = Prog()
    S, Sn = S0 + 16 * p, S0 + 16 * (1 - p)
    A(f"L_rare{p}:\ns_nop 15\ns_nop 15")
    A("\n".join(rowmax(S)))
    A(f"v_max_f32 v{vM}, 0, v{vM}")
    for i in range(16):
        A(f"v_sub_f32 v{NEGM + i}, v{NEGM + i}, v{vM}\nv_sub_f32 v{S + i}, v{S + i}, v{vM}\nv_sub_f32 v{Sn + i}, v{Sn + i}, v{vM}")
    A(f"v_sub_f32 v{vM2}, 0, v{vM}\nv_exp_f32 v{vM2}, v{vM2}\ns_nop 0\nv_mul_f32 v{vL}, v{vL}, v{vM2}")
    A(f"v_mov_b32 v{vM3}, v{vM2}\ns_nop 1\nv_permlane16_swap_b32 v{vM2}, v{vM3}")
    for i in range(64):
        A(f"v_mul_f32 v{O0 + i}, v{O0 + i}, v{vM3 if i & 4 else vM2}")
    A("\n".join(softmax_ops(p)))
    A("s_nop 3\ns_setpc_b64 s[40:41]")
    ins, _ = hazard_pass(A.ins)
    return ins


def compute(cfg, pl):
    addr = pl.addr
    sc = Sched(cfg)
    A = sc.out
    A(f"s_lshl_b32 s{sT4K}, s{sW}, 12\ns_mov_b32 s{sTHR}, {hex(f2u(cfg.thr))}")
    nsh = {"16x8": 16, "8x16": 8, "4x32": 4}[cfg.mapping]
    xr = 96 // (32 // nsh)
    A(f"v_mov_b32 v21, 0x7fffff00\ns_and_b32 s56, s{sB}, {nsh - 1}\ns_mul_i32 s56, s56, {(576 // nsh) * 8192}\ns_add_u32 s56, s56, s{sWQo}")
    A("v_lshrrev_b32 v16, 1, v0\nv_lshlrev_b32 v16, 13, v16\nv_and_b32 v17, 1, v0\nv_lshl_add_u32 v16, v17, 7, v16\nv_cmp_gt_u32 vcc, 36, v0")
    A(f"s_and_b32 s57, s{sCU}, {32 // nsh - 1}\ns_mul_i32 s57, s57, {xr * 1152}\ns_add_u32 s57, s57, s{sXo}\nv_cndmask_b32 v16, v21, v16, vcc")
    A(f"v_mul_u32_u24 v17, 1152, v0\nv_cmp_gt_u32 vcc, {xr}, v0\ns_and_b32 s58, s{sW}, 2\ns_lshl_b32 s58, s58, 6\ns_add_u32 s57, s57, s58\nv_cndmask_b32 v17, v21, v17, vcc")
    descriptors(A)
    ntouch = 0
    if cfg.pf:
        A(f"s_cmp_lg_u32 s{sW}, 0\ns_cbranch_scc1 L_tx")
        for i in range(1152 // nsh // 36):
            A(f"buffer_load_dword v{NEGM}, v16, {srd(SWQ)}, s56 offen\ns_add_u32 s56, s56, {18 * 8192}")
        A("s_branch L_tdone\nL_tx:")
        if cfg.pfx:
            for i in range(5):
                A(f"buffer_load_dword v{NEGM}, v17, {srd(SX)}, s57 offen offset:{256 * i}")
        A("L_tdone:")
    if cfg.tlb:
        A(f"s_cmp_lg_u32 s{sW}, 2\ns_cbranch_scc1 L_notlb")
        tlb_warm(cfg, A, NEGM, 16)
        A("L_notlb:")
    sample_flags(A)
    lane_patterns(A, True)
    A(f"v_lshlrev_b32 v{vST}, 4, v0\nv_add_u32 v{pQ}, s{sT4K}, v{vST}")
    A(f"s_mul_i32 s56, s{sPAIR}, 884736\ns_lshl_b32 s57, s{sW}, 15\ns_add_u32 s56, s56, s57\ns_lshl_b32 s57, s{sCU}, 12\ns_add_u32 s{sWSo}, s56, s57")
    A("v_lshrrev_b32 v1, 3, v0\nv_and_b32 v2, 7, v0\nv_lshrrev_b32 v16, 4, v0\nv_lshlrev_b32 v18, 8, v1\nv_mul_u32_u24 v19, 1152, v1")
    A(f"v_and_b32 v17, 1, v16\nv_lshlrev_b32 v17, 2, v17\nv_xor_b32 v17, v17, v2\nv_lshrrev_b32 v18, 5, v0\nv_lshlrev_b32 v18, 1, v18\nv_xor_b32 v17, v17, v18")
    A(f"v_lshl_add_u32 v{bWo}, v17, 4, v19\ns_and_b32 s{sXV}, s{sW}, 1\ns_lshl_b32 s{sXV}, s{sXV}, 5")
    kv_offsets(A, bK, bV)
    A(f"s_cmp_lt_u32 s{sW}, 2\ns_cselect_b32 s{SM}, s{SK}, s{SV}\ns_cselect_b32 s{SM + 1}, s{SK + 1}, s{SV + 1}\ns_mov_b32 s{SM + 2}, 0x4000000\ns_mov_b32 s{SM + 3}, 0x20000")
    A(f"s_cselect_b32 s{sXM}, 32, 0\ns_cselect_b32 s{sXM2}, 64, 0\ns_cselect_b64 vcc, -1, 0\ns_add_u32 s56, s{sT4K}, 8192\ns_cmp_lt_u32 s{sW}, 2")
    A(f"s_cselect_b32 s56, s56, {(-8192) & 0xffffffff}\ns_add_u32 s{sMB}, s{sKV}, s56\nv_cndmask_b32 v{bM}, v{bV}, v{bK}, vcc")
    A(f"s_add_u32 s{sB0}, s{sKV}, s{sT4K}")
    A(f"s_mul_i32 s56, s{sW}, 36864\ns_add_u32 s{sWB}, s{sWOo}, s56")
    for i in range(256):
        A(f"v_accvgpr_write_b32 a{i}, 0")
    for i in range(32):
        A(f"v_mov_b32 v{OUTV + i}, 0")
    A("s_waitcnt vmcnt(0)")
    for p in pK + pV + pWq + pWo + [pQ]:
        sc.bias[p] = 0
    qops = q_ops(addr)
    qf = {}
    kind = None
    for t in range(-1, 9):
        for n_, g in enumerate(pl.sreq[t]):
            kind = group_request(cfg, pl, qf, (16 * t - cfg.LB if t > 0 else -cfg.LA + 1 if t == 0 else -cfg.LA - 8) + 4 * n_, g, "n", kind)
    kind0 = kind
    spread(qf, conv_block(0, f"s{sC}", Q0), 135, 138)
    spread(qf, conv_block(1, f"s{sC}", Q0), 139, 143)
    emit_slots(cfg, sc, qops, qf, {}, -cfg.LA - 8, 144, dict(rd=0, step=-1, lin=[], tag="c"), [], {0: 0})
    A("\n".join(conv_block(2, f"s{sC}", Q0) + conv_block(3, f"s{sC}", Q0)))
    if cfg.trace == "head":
        A(f"s_memrealtime s[60:61]\ns_waitcnt lgkmcnt(0)\nv_writelane_b32 v{NEGM}, s60, 9\nv_writelane_b32 v{NEGM}, s101, 10")
        A(f"v_lshlrev_b32 v1, 2, v0\ns_lshl_b32 s62, s2, 10\ns_lshl_b32 s63, s{sW}, 8\ns_add_u32 s62, s62, s63\ns_add_u32 s62, s62, {STAMP_BASE}")
        A(f"buffer_store_dword v{NEGM}, v1, {srd(SWS)}, s62 offen\ns_waitcnt vmcnt(0)")
    k_patterns(A, False)
    wo_shift(A)
    for p in pWq:
        del sc.bias[p]
    for p in pK:
        sc.bias[p] = 0
    for p in pV + pWo:
        sc.rebias(p, 0)
    sc.rebias(pQ, QBUF)
    bias0 = dict(sc.bias)
    sc.nbuf = 0
    ops = item_ops(addr)
    st = dict(rd=0, step=-1, lin=[("c", g) for g in pl.pro for k in range(4)] if not cfg.noload else [], tag="c")
    emit_slots(cfg, sc, ops, {}, {}, -cfg.LA, 0, st, [], {0: 1})
    assert st["rd"] == cfg.LA and 400 % cfg.NB == 0
    bias1 = dict(sc.bias)
    head, pend0 = lgkm_pass(sc.out.ins)
    assert len(pend0) == cfg.LA
    head, nh = hazard_pass(head, verbose=cfg.dbg == "nops")
    sc.out = Prog()
    fill = {}
    split = 272
    bslot = lambda s_: 16 * s_ - cfg.LB if s_ else 0
    kind = None
    late = {}
    wrapped = False
    for s_ in range(25):
        for n_, (g, w) in enumerate(pl.req[s_]):
            sp = cfg.gsp if len(pl.req[s_]) == 1 else min(cfg.gsp, 2) if s_ else 1
            if bslot(s_) < split < bslot(s_) + 4 * sp * len(pl.req[s_]):
                sp = 1
            slot = bslot(s_) + 4 * sp * n_
            if w and not wrapped:
                wrapped = True
                if slot < split:
                    fill.setdefault(slot, []).append(f"s_add_u32 s{sB0}, s{sB0}, 0x20000\ns_add_u32 s{sMB}, s{sMB}, 0x20000\ns_cmp_eq_u32 s{sIT}, 3")
                    fill[slot].append(f"s_cselect_b32 s{SK + 2}, 0, s{SK + 2}\ns_cselect_b32 s{SM + 2}, 0, s{SM + 2}")
                else:
                    late.setdefault(slot, []).append(f"s_add_u32 s{sB0}, s{sB0}, 0x20000\ns_add_u32 s{sMB}, s{sMB}, 0x20000")
            assert g >= 16 or w == wrapped
            if w and slot >= split:
                kind = group_request(cfg, pl, late, slot, g, "n", None, sp)
            else:
                kind = group_request(cfg, pl, fill, slot, g, "n" if w else "c", None if slot >= split else kind, sp)
    cyc_kind = kind
    post = item_fill(cfg, ops, fill)
    stubs = []
    sc.out("L_item:")
    st["lin"] = [e for e in st["lin"] if e]
    emit_slots(cfg, sc, ops, fill, post, 0, split, st, stubs, {16: 2})
    sc.out(f"s_cmp_lg_u32 s{sIT}, 3\ns_cbranch_scc1 L_more")
    common, pend = lgkm_pass(sc.out.ins, pend0)
    common, n0 = hazard_pass(common, history=head[-20:], verbose=cfg.dbg == "nops")
    sa = copy.deepcopy(sc)
    sa.out = Prog()
    sa.out("L_warm_more:\ns_setpc_b64 s[40:41]\nL_more:")
    fa = {k: list(v) for k, v in fill.items()}
    for k, v in late.items():
        fa[k] = fa.get(k, []) + v
    for p, r0 in ((0, 288), (1, 381)):
        spread(fa, [(lambda s_, i=i, p=p: s_.lds("ds_read_b128", R("v", Q0 + 16 * p + 4 * i, 4), pQ, QBUF + i * 1024)) for i in range(4)], r0, r0 + 3)
    sta = copy.deepcopy(st)
    sta["rebias"] = bias0
    fa.setdefault(390, []).append(f"s_add_u32 s{sIT}, s{sIT}, 1")
    emit_slots(cfg, sa, copy.deepcopy(ops), fa, {}, split, 400, sta, stubs, {25: 1}, nextops=copy.deepcopy(ops[:cfg.LA]))
    assert cfg.noload or [e for e in sta["lin"] if e and e[0] == "n"] == [("n", g) for g in pl.pro for k in range(4)]
    assert sa.bias == bias1 and sta["rd"] == 400 + cfg.LA
    if cfg.trace is True:
        sa.out(f"s_cmp_lg_u32 s{sIT}, {cfg.trace_it + 1}\ns_cbranch_scc1 L_notr\nv_lshlrev_b32 v1, 2, v0\ns_lshl_b32 s62, s2, 10\ns_lshl_b32 s63, s{sW}, 8\ns_add_u32 s62, s62, s63\ns_add_u32 s62, s62, {STAMP_BASE}")
        sa.out(f"buffer_store_dword v2, v1, {srd(SWS)}, s62 offen\ns_waitcnt vmcnt(0)\nL_notr:")
    sa.out("s_branch L_item")
    conta, pe = lgkm_pass(sa.out.ins, pend)
    assert pe == pend0[len(pend0) - len(pe):]
    conta, n1 = hazard_pass(conta, history=common[-20:])
    sb = copy.deepcopy(sc)
    sb.out = Prog()
    sb.out("L_last:")
    fb = {k: list(v) for k, v in fill.items()}
    last_fill(cfg, fb)
    emit_slots(cfg, sb, copy.deepcopy(ops), fb, {}, split, 400, copy.deepcopy(st), stubs)
    T = sb.out
    stamp(cfg, T, 3, 0)
    stamp(cfg, T, 4, 0)
    finish_unit(cfg, T, "c", 7, OUTV, sW, sCU, True)
    contb, _ = lgkm_pass(sb.out.ins, pend)
    contb, n2 = hazard_pass(contb, history=common[-20:], verbose=cfg.dbg == "nops")
    st = Prog()
    for tag, p in stubs:
        st(f"L_stub_{tag}:\ns_call_b64 s[40:41], L_rare{p}\ns_branch L_back_{tag}")
    info = dict(nops=(nh, n0, n1, n2), est_item=est_cycles(common + conta))
    return head + common + contb + conta + st.ins + rare_routine(0) + rare_routine(1), info


def kd(name, vg, acc, sg=102):
    return (f".amdhsa_kernel {name}\n  .amdhsa_next_free_vgpr {vg}\n  .amdhsa_next_free_sgpr {sg}\n  .amdhsa_accum_offset {acc}\n"
            "  .amdhsa_group_segment_fixed_size 0\n  .amdhsa_kernarg_size 104\n  .amdhsa_user_sgpr_count 2\n"
            "  .amdhsa_user_sgpr_kernarg_segment_ptr 1\n  .amdhsa_system_sgpr_workgroup_id_x 1\n.end_amdhsa_kernel\n")


def generate(cfg):
    pl = plan_ring(cfg)
    P = Prog()
    prologue(cfg, P)
    pro, _ = hazard_pass(P.ins)
    comp, info = compute(cfg, pl)
    w3, info3 = wave3(cfg, pl)
    info.update(info3)
    s = HDR + "; @launch grid=(256,1,1) block=(256,1,1) lds=163840\n"
    s += '.amdgcn_target "amdgcn-amd-amdhsa--gfx950"\n.text\n'
    s += f".globl {KNAME}\n.p2align 8\n.type {KNAME},@function\n{KNAME}:\n"
    s += render(pro) + render(comp) + render(w3) + "L_done:\n    s_endpgm\n"
    s += '.section .rodata,"a"\n.p2align 6\n' + kd(KNAME, 512, 256)
    return s, info, pl


if __name__ == "__main__":
    import build
    name = sys.argv[1]
    kw = {}
    for a in sys.argv[2:]:
        k, v = a.split("=", 1)
        try:
            v = eval(v)
        except Exception:
            pass
        kw[k] = v
    s, info, plan = generate(Cfg(**kw))
    open(name, "w").write(s)
    print(info)
    build.build(name)
```

```python
import copy
import math
import struct
import sys

from asmlib import Prog, parse, lgkm_pass, hazard_pass, render, est_cycles, R

KNAME = "concat_heads__mha_block_cached__gqa_block_cached__near_ridge_kernel"
HDR = open("concat_heads__mha_block_cached__gqa_block_cached__near_ridge.s.ref").read().split("; Override launch")[0]


def f2u(x):
    return struct.unpack("<I", struct.pack("<f", x))[0]


class Cfg:
    mapping = "16x8"
    kvf = " nt"
    wf = ""
    xf = ""
    pstf = " sc1"
    gf = " sc1"
    of = ""
    psleep = 2
    LA = 6
    LB = 4
    NB = 8
    colors = "defabcdabcdefabc" + "abc" * 3
    dmax = 99
    dwo = 2
    reqs = None
    park = (14, 16, 18)
    kv0 = (4, 5, 6)
    WR = 6
    raq = 4
    waitgrp = 4
    wqbatch = 1
    balance = True
    front = True
    stamp = False
    pf = True
    dbl = False
    pfx = False
    thr = 1024.0
    quota = (13, 24, 20) + (20,) * 12 + (21, 21) + (15,) * 6 + (3, 0)
    pf_wo_step = 1
    pf_wq_step = 12
    pf_wq0_step = 1
    dbg = None
    nobar = False
    noload = False
    delay = 0
    prof = False
    trace = False
    trace_it = 2
    warm = True
    vmcost = 4
    mmcost = 2
    dstamp = False
    tlb = 0
    gsp = 1
    pubs = {}
    half = 0

    def __init__(self, **kw):
        for k, v in kw.items():
            assert hasattr(Cfg, k), k
            setattr(self, k, v)


pK = [4, 5, 6, 7]
pV = [8, 9, 12, 13]
pWq = [10, 11]
pWo = []
vDL, vM3 = 10, 11
vL, vBS = 14, 15
vT = [16, 17, 18, 19]
vM, vM2, vST, vFL = 20, 21, 22, 23
FR0, NEGM, S0, P0, Q0, O0, OUTV, FRX = 24, 48, 64, 96, 112, 144, 208, 240
vL1, vBS1, vMX = NEGM + 8, NEGM + 9, NEGM + 10
OF = S0
pQ = 3
bK, bV, bWo, bM = 248, 249, 250, 251
vD = 252
sW, sB, sH = 3, 4, 5
SK, SV, SWQ, SWO, SX, SWS = 16, 20, 24, 28, 32, 36
sKV, sXo, sWQo, sWOo, sTMP, sIT, sC, sTHR, sT4K, sWSo = 42, 43, 44, 45, 46, 47, 48, 49, 50, 51
sJ, sPAIR, sCU = 52, 53, 59
SDB, SOUT = 68, 72
sTC = 80
sFLG = 89
SWQ2 = 92
SM = 96
sMB, sB0, sWB, sXM, sXM2, sXV = 90, 91, 66, 67, 100, 15
WRB = 24 * 4096
MF = "v_mfma_f32_32x32x16_bf16"
MF16 = "v_mfma_f32_16x16x32_bf16"
KX = (0, 16, 64, 80)
QBUF = 31 * 4096
XRES = 34 * 4096
FLAGBASE = 32 << 20
TORD = (0, 1, 2, 7, 8, 3, 4, 5, 6)


def srd(n):
    return f"s[{n}:{n + 3}]"


def w3_quads():
    return [("wq3", p, t, rb) for p in range(2) for t in TORD for rb in range(2)]


def w3_ops(cfg):
    quads = w3_quads()
    ops = []
    for p in range(2):
        pq = quads[18 * p:18 * p + 18]
        groups = [pq[0:2]] + [[q] for q in pq[2:16]] + [pq[16:18]]
        for grp in groups:
            if len(grp) == 2:
                seqv = [(q, s2, hb) for hb in range(2) for q in grp for s2 in range(2)]
            else:
                seqv = [(grp[0], s2, hb) for s2 in range(2) for hb in range(2)]
            for (q, s2, hb) in seqv:
                ks = 2 * q[2] + q[3]
                for j in range(3):
                    ops.append(dict(q=q, s2=s2, hb=hb, dt=2 * hb + s2, j=j, ks=ks, p=p, first=(q == pq[0]), last=(q == pq[17] and s2 == 1)))
    assert len(ops) == 432 == sum(cfg.quota)
    i = 0
    for s, n in enumerate(cfg.quota):
        for o in ops[i:i + n]:
            o["step"] = s
        i += n
    for i in range(0, 432, 3):
        for d in range(3):
            ops[i + d]["astep"] = ops[i]["step"]
    return ops


class Plan:
    pass


def plan_ring(cfg):
    pl = Plan()
    grp = [[("k", 0, 0), ("k", 0, 1), ("k", 1, 0), ("k", 1, 1)]]
    for u in range(1, 15):
        grp.append([("k", u + 1, 0), ("k", u + 1, 1), ("v", u - 1, 0), ("v", u - 1, 1)])
    grp.append([("v", 14, 0), ("v", 14, 1), ("v", 15, 0), ("v", 15, 1)])
    for t in range(9):
        grp.append([("wo", t, rb) for rb in range(4)])
    ns = len(grp)
    addr = {}
    for s_, g in enumerate(grp):
        for k, q in enumerate(g):
            addr[q] = (ord(cfg.colors[s_]) - 97) * 16384 + k * 4096
    start = []
    xslot = (QBUF, WRB, WRB + 12288) * 2 + (QBUF, XRES, XRES + 12288)
    for t in range(9):
        wq = [("wq", t, rb, cb) for rb in range(2) for cb in range(2)]
        for k, q in enumerate(wq):
            addr[q] = (ord(cfg.colors[16 + t]) - 97) * 16384 + k * 4096
        for rb in range(3):
            addr[("x", t, rb)] = xslot[t] + rb * 4096
        start.append(wq + [("x", t, rb) for rb in range(3)])
    for i, q in enumerate(w3_quads()):
        addr[q] = WRB + (i % cfg.WR) * 4096
    req = {b: [] for b in range(ns)}
    for g in range(ns):
        gap = next(d for d in range(1, ns + 1) if cfg.colors[(g - d) % ns] == cfg.colors[g])
        lead = min(gap - 1, cfg.dwo if g >= 16 else cfg.dmax)
        if cfg.reqs:
            lead = (g - cfg.reqs[g]) % ns
            assert lead <= gap - 1, (g, lead, gap)
        elif g < len(cfg.park):
            assert ns + g - cfg.park[g] <= lead
            lead = ns + g - cfg.park[g]
        assert lead >= 1
        req[(g - lead) % ns].append((g, g - lead < 0))
    for b in req:
        req[b].sort(key=lambda e: (e[0] < 16, e[1]))
    pl.req = req
    pl.pro = [g for b in range(ns) for g, w in req[b] if w]
    pl.sreq = {b: [] for b in range(-1, 9)}
    bb = -1
    for n_, g in enumerate(pl.pro):
        b = next(b for b in range(ns) if (g, True) in req[b])
        bb = max(bb, cfg.kv0[n_] if n_ < len(cfg.kv0) else b - 16)
        assert all(cfg.colors[16 + t] != cfg.colors[g] for t in range(max(bb, 0), 9))
        pl.sreq[bb].append(g)
    sissue = {b: [] for b in range(-1, 9)}
    lastuse = {}
    b = -1
    for t in range(9):
        for q in start[t]:
            lo = addr[q]
            b = max(b, lastuse.get(lo, -9) + 1)
            assert b < t
            sissue[b].append(q)
            lastuse[lo] = t
    pl.slast = lastuse
    pl.grp, pl.start, pl.addr, pl.sissue = grp, start, addr, sissue
    return pl


def prologue(cfg, A):
    A("s_cmp_ge_u32 s2, 256\ns_cbranch_scc1 L_done")
    if cfg.trace == "head":
        A("s_memrealtime s[60:61]\ns_waitcnt lgkmcnt(0)\ns_mov_b32 s101, s60")
    DSTAMP[0] = cfg.dstamp
    A(f"v_lshrrev_b32 v1, 6, v0\nv_and_b32 v0, 63, v0\nv_readfirstlane_b32 s{sW}, v1")
    A("s_and_b32 s6, s2, 4\ns_mul_i32 s6, s6, 10\ns_add_u32 s6, s0, s6\ns_addc_u32 s7, s1, 0")
    A("s_load_dwordx2 s[40:41], s[6:7], 0\ns_load_dwordx4 s[8:11], s[6:7], 8\ns_load_dwordx4 s[12:15], s[6:7], 24")
    A("s_load_dwordx2 s[54:55], s[0:1], 96\ns_load_dwordx4 s[76:79], s[0:1], 80")
    A(f"s_and_b32 s57, s2, 3\ns_lshr_b32 s{sJ}, s2, 3")
    if cfg.mapping == "16x8":
        A(f"s_lshr_b32 s{sB}, s{sJ}, 1\ns_and_b32 s{sH}, s{sJ}, 1\ns_lshl_b32 s{sH}, s{sH}, 2\ns_lshl_b32 s57, s57, 3\ns_add_u32 s{sH}, s{sH}, s57")
    elif cfg.mapping == "8x16":
        A(f"s_and_b32 s56, s57, 1\ns_lshl_b32 s56, s56, 3\ns_lshr_b32 s{sB}, s{sJ}, 2\ns_add_u32 s{sB}, s{sB}, s56")
        A(f"s_lshr_b32 s56, s57, 1\ns_lshl_b32 s56, s56, 4\ns_and_b32 s{sH}, s{sJ}, 3\ns_lshl_b32 s{sH}, s{sH}, 2\ns_add_u32 s{sH}, s{sH}, s56")
    else:
        A(f"s_lshl_b32 s56, s57, 2\ns_lshr_b32 s{sB}, s{sJ}, 3\ns_add_u32 s{sB}, s{sB}, s56\ns_and_b32 s{sH}, s{sJ}, 7\ns_lshl_b32 s{sH}, s{sH}, 2")
    if cfg.half:
        A(f"s_and_b32 s56, s{sB}, {cfg.half}\ns_cmp_lg_u32 s56, 0\ns_cbranch_scc1 L_done")
    A(f"s_lshl_b32 s{sKV}, s{sB}, 22\ns_lshl_b32 s56, s{sH}, 17\ns_add_u32 s{sKV}, s{sKV}, s56")
    A(f"s_mul_i32 s{sXo}, s{sB}, 110592\ns_lshl_b32 s{sWQo}, s{sH}, 8\ns_mul_i32 s{sWOo}, s{sH}, 147456")
    A(f"s_and_b32 s56, s2, 4\ns_lshl_b32 s56, s56, 2\ns_add_u32 s{sPAIR}, s56, s{sB}\ns_lshr_b32 s{sCU}, s{sH}, 2")
    for tau in range(9):
        A(f"s_add_u32 s56, s{sCU}, {1 + tau}\ns_cmp_ge_u32 s56, 9\ns_cselect_b32 s57, 9, 0\ns_sub_u32 s56, s56, s57\ns_lshl_b32 s{sTC + tau}, s56, 7")
    A(f"s_mov_b32 s{sIT}, 0\ns_mov_b32 s{sC}, {hex(f2u(math.log2(math.e) / math.sqrt(128.0)))}")
    A(f"s_cmp_eq_u32 s{sW}, 3\ns_cselect_b32 s56, s{sCU}, s{sW}\ns_mul_i32 s57, s{sPAIR}, 3\ns_add_u32 s56, s56, s57\ns_lshl_b32 s56, s56, 12\ns_add_u32 s{sFLG}, s56, {FLAGBASE}")
    A(f"s_cmp_eq_u32 s{sW}, 3\ns_cbranch_scc1 L_loader")


def descriptors(A):
    A("s_waitcnt lgkmcnt(0)")
    for d, b, n in ((SWQ, 12, 4718592), (SX, 40, 1769472), (SWS, 54, 290848768), (SK, 8, 0x4000000), (SV, 10, 0x4000000),
                    (SWO, 14, 4718592), (SWQ2, 12, 4718592), (SOUT, 76, 3538944), (SDB, 78, 256)):
        A(f"s_mov_b32 s{d}, s{b}\ns_mov_b32 s{d + 1}, s{b + 1}\ns_mov_b32 s{d + 2}, {n}\ns_mov_b32 s{d + 3}, 0x20000")
    if DSTAMP[0]:
        A("s_memrealtime s[60:61]\ns_memtime s[62:63]\ns_waitcnt lgkmcnt(0)\ns_mov_b32 s8, s60\ns_mov_b32 s11, s62")


DSTAMP = [False]


def tlb_warm(cfg, A, dst, tmp):
    n = 0
    if not cfg.tlb:
        return n
    A(f"v_lshlrev_b32 v{tmp}, {cfg.tlb}, v0\ns_mul_i32 s58, s{sPAIR}, 884736")
    for sr, base, span, fl in ((SK, f"s{sKV}", 1 << 19, " nt"), (SV, f"s{sKV}", 1 << 19, " nt"), (SWO, f"s{sWOo}", 589824, " nt"),
                               (SWQ, f"s{sWQo}", 4718592, " nt"), (SWS, "s58", 884736, " nt")):
        lanes = min(64, -(-span >> cfg.tlb))
        A(f"s_mov_b64 exec, {hex((1 << lanes) - 1)}" if lanes <= 32 else f"s_mov_b32 exec_lo, -1\ns_mov_b32 exec_hi, {hex((1 << (lanes - 32)) - 1)}")
        A(f"buffer_load_dword v{dst}, v{tmp}, {srd(sr)}, {base} offen{fl}")
        n += 1
    A("s_mov_b64 exec, -1")
    return n


def sample_flags(A):
    A(f"v_and_b32 v1, 7, v0\nv_lshlrev_b32 v1, 2, v1\nbuffer_load_dword v{vFL}, v1, {srd(SWS)}, s{sFLG} offen sc1")


STAMP_BASE = 64 << 20


def stamp(cfg, A, k, who):
    if not cfg.stamp:
        return 0
    A("s_memrealtime s[60:61]\ns_memtime s[64:65]\ns_waitcnt lgkmcnt(0)")
    A(f"s_lshl_b32 s62, s2, 10\ns_lshl_b32 s63, s{sIT}, 7\ns_add_u32 s62, s62, s63\ns_add_u32 s62, s62, {STAMP_BASE + who * 512 + 8 * k}")
    t = 18 if who else 0
    if who:
        A(f"v_mov_b32 v{t}, s60\nv_mov_b32 v{t + 1}, s64\nv_mov_b32 v{t + 2}, 0\nbuffer_store_dwordx2 v[{t}:{t + 1}], v{t + 2}, {srd(SWS)}, s62 offen")
    else:
        A(f"v_mov_b32 v0, s60\nv_mov_b32 v1, s64\nv_mov_b32 v2, 0\nbuffer_store_dwordx2 v[0:1], v2, {srd(SWS)}, s62 offen")
        A("s_nop 1\nv_mbcnt_lo_u32_b32 v0, -1, 0\nv_mbcnt_hi_u32_b32 v0, -1, v0")
    return 1


class Sched:
    def __init__(self, cfg):
        self.cfg = cfg
        self.bias = {}
        self.nbuf = 0
        self.out = Prog()

    def fbuf(self):
        i = self.nbuf % self.cfg.NB
        self.nbuf += 1
        return FR0 + 4 * i if i < 6 else FRX + 4 * (i - 6)

    def lds(self, op, reg, preg, a):
        b = self.bias[preg]
        if not (0 <= a - b <= 65535):
            nb = a & ~4095
            self.out(f"v_add_u32 v{preg}, {(nb - b) & 0xffffffff}, v{preg}")
            self.bias[preg] = b = nb
        if op.startswith("ds_read"):
            self.out(f"{op} {reg}, v{preg} offset:{a - b}")
        else:
            self.out(f"{op} v{preg}, {reg} offset:{a - b}")

    def rebias(self, preg, nb):
        b = self.bias[preg]
        if b != nb:
            self.out(f"v_add_u32 v{preg}, {(nb - b) & 0xffffffff}, v{preg}")
            self.bias[preg] = nb


def spread(fill, ops_list, s0, s1):
    n = s1 - s0 + 1
    cost = [2 if isinstance(o, str) and o.startswith("v_exp") else 1 for o in ops_list]
    tot = sum(cost)
    acc = 0
    for o, c in zip(ops_list, cost):
        k = min(n - 1, int((acc + c / 2) * n / tot))
        fill.setdefault(s0 + k, []).append(o)
        acc += c


def spread_bal(cfg, ops, fill, ops_list, s0, s1):
    if not cfg.balance:
        return spread(fill, ops_list, s0, s1)
    base = []
    for i in range(s0, s1 + 1):
        o = ops[min(i + cfg.LA, len(ops) - 1)]
        base.append(len(o["a"]) + (cfg.mmcost if "mm" in ops[i] else 0) + (1 if i % cfg.waitgrp == 0 else 0) + sum(cfg.vmcost if isinstance(f, tuple) else 1 for f in fill.get(i, [])))
    cost = [2 if isinstance(o, str) and o.startswith("v_exp") else 1 for o in ops_list]
    level = (sum(cost) + sum(base)) / len(base)
    k, room = 0, level - base[0]
    for o, c in zip(ops_list, cost):
        while k < len(base) - 1 and room < c / 2:
            k += 1
            room += level - base[k]
        fill.setdefault(s0 + k, []).append(o)
        room -= c


def k_patterns(A, xform, off=None):
    if xform:
        A("v_lshrrev_b32 v1, 5, v0\nv_and_b32 v2, 31, v0\nv_lshrrev_b32 v16, 1, v2\nv_and_b32 v16, 7, v16\nv_xor_b32 v16, v16, v1")
        A("v_lshlrev_b32 v2, 7, v2")
        if off:
            A(f"v_add_u32 v2, s{off}, v2")
        for j in range(4):
            A(f"v_xor_b32 v17, {2 * j}, v16\nv_lshl_add_u32 v{pK[j]}, v17, 4, v2")
        return
    A("v_bfe_u32 v16, v0, 2, 2\nv_and_b32 v2, 3, v0\nv_lshlrev_b32 v2, 7, v2\nv_lshl_add_u32 v2, v16, 10, v2")
    A("v_bfe_u32 v16, v0, 2, 1\nv_and_b32 v17, 2, v0\nv_or_b32 v16, v16, v17\nv_bfe_u32 v17, v0, 3, 1\nv_lshl_or_b32 v16, v17, 2, v16")
    A("v_bfe_u32 v17, v0, 5, 1\nv_xor_b32 v16, v16, v17\nv_bfe_u32 v17, v0, 4, 1\nv_lshlrev_b32 v17, 1, v17\nv_xor_b32 v16, v16, v17")
    A(f"v_lshl_add_u32 v{pK[0]}, v16, 4, v2\nv_xor_b32 v{pK[1]}, 64, v{pK[0]}")


def lane_patterns(A, with_wave_offset):
    k_patterns(A, True, sT4K if with_wave_offset else None)
    A("v_lshrrev_b32 v2, 2, v0\nv_and_b32 v2, 3, v2\nv_lshrrev_b32 v3, 1, v2\nv_lshlrev_b32 v3, 6, v3")
    A("v_lshrrev_b32 v16, 4, v0\nv_and_b32 v16, 1, v16\nv_and_b32 v17, 1, v0\nv_lshrrev_b32 v18, 1, v0\nv_and_b32 v18, 1, v18")
    A("v_lshl_add_u32 v19, v1, 2, v2\nv_lshlrev_b32 v19, 7, v19\nv_lshl_add_u32 v20, v1, 3, v2\nv_lshlrev_b32 v20, 7, v20")
    A("v_lshlrev_b32 v21, 10, v16\nv_lshl_add_u32 v21, v1, 11, v21\nv_lshl_add_u32 v21, v2, 7, v21\nv_lshl_add_u32 v21, v17, 3, v21")
    A(f"v_lshl_add_u32 v21, v18, 4, v21\nv_lshl_add_u32 v21, v16, 5, v21\nv_add_u32 v{pV[0]}, v21, v3")
    for j in range(1, 4):
        A(f"v_xor_b32 v{pV[j]}, {32 * j}, v{pV[0]}")
    A("v_xor_b32 v21, v16, v1\nv_lshlrev_b32 v21, 5, v21\nv_lshl_add_u32 v21, v17, 4, v21\nv_lshl_add_u32 v21, v18, 3, v21\nv_add_u32 v21, v21, v20")
    A(f"v_add_u32 v{pWq[0]}, v21, v3\nv_xor_b32 v{pWq[1]}, 64, v{pWq[0]}")


def wo_shift(A):
    A(f"v_lshrrev_b32 v16, 4, v0\nv_lshlrev_b32 v16, 9, v16\nv_sub_u32 v{vDL}, 0, v16")


def kv_offsets(A, dk, dv):
    A("v_lshrrev_b32 v1, 3, v0\nv_and_b32 v1, 3, v1\nv_and_b32 v2, 7, v0\nv_lshrrev_b32 v16, 5, v0\nv_lshlrev_b32 v16, 7, v16\nv_lshl_add_u32 v16, v1, 8, v16")
    A(f"v_and_b32 v1, 2, v1\nv_xor_b32 v17, v1, v2\nv_lshl_add_u32 v{dk}, v17, 4, v16")
    A(f"v_lshlrev_b32 v1, 1, v1\nv_xor_b32 v17, v1, v2\nv_lshl_add_u32 v{dv}, v17, 4, v16")


def finish_unit(cfg, A, tag, nsrc, acc, w_sreg, t_sreg, publish, G=32):
    A("v_and_b32 v10, 7, v0\nv_lshlrev_b32 v1, 2, v10\nv_lshlrev_b32 v6, 4, v0")
    A(f"buffer_load_dword v2, v1, {srd(SWS)}, s{sFLG} offen sc1")
    A(f"s_mul_i32 s56, s{sPAIR}, 884736\ns_mul_i32 s57, s{t_sreg}, 3\ns_add_u32 s57, s57, s{w_sreg}\ns_lshl_b32 s57, s57, 15\ns_add_u32 s56, s56, s57")
    A(f"s_mul_i32 s60, s{sB}, 96\ns_lshl_b32 s58, s{w_sreg}, 5\ns_add_u32 s60, s60, s58\ns_mul_i32 s60, s60, 2304\ns_lshl_b32 s58, s{t_sreg}, 7\ns_add_u32 s60, s60, s58")
    A("s_and_b32 s58, s2, 4\ns_mul_i32 s58, s58, 288\ns_add_u32 s60, s60, s58")
    A("v_and_b32 v7, 15, v0\nv_mul_u32_u24 v7, 2304, v7\nv_lshrrev_b32 v3, 5, v0\nv_lshl_add_u32 v7, v3, 4, v7\nv_bfe_u32 v3, v0, 4, 1\nv_lshl_add_u32 v7, v3, 5, v7")
    A(f"v_sub_u32 v10, s{t_sreg}, v10\nv_add_u32 v3, 9, v10\nv_cmp_gt_i32 vcc, 1, v10\nv_cndmask_b32 v10, v10, v3, vcc")
    A(f"s_mov_b32 s62, {((1 << nsrc) - 1) << 1}\ns_mov_b32 s58, 0\ns_mov_b32 s64, {nsrc}")
    if nsrc == 8:
        for k in range(32):
            A(f"v_mov_b32 v{acc + k}, 0")
    A("v_and_b32 v4, 15, v0\nv_lshrrev_b32 v5, 4, v0\nv_lshlrev_b32 v5, 2, v5\nv_sub_u32 v4, v4, v5\nv_mov_b32 v8, 0x3f80\nv_mov_b32 v9, 0x3f800000")
    for i in range(2):
        A(f"v_cmp_eq_u32 vcc, {2 * i}, v4\nv_cmp_eq_u32 s[66:67], {2 * i + 1}, v4\nv_mov_b32 v5, 0\nv_cndmask_b32 v5, v5, v8, vcc\nv_cndmask_b32 v{24 + i}, v5, v9, s[66:67]")
    A("v_mov_b32 v26, 0\nv_mov_b32 v27, 0\nv_mov_b32 v28, v24\nv_mov_b32 v29, v25")
    if publish:
        A(f"v_add_u32 v3, 8, v{vFL}\ns_lshl_b32 s66, 1, s{sCU}\ns_mov_b32 s67, 0\ns_waitcnt vmcnt(0)\ns_mov_b64 exec, s[66:67]")
        A(f"buffer_store_dword v3, v1, {srd(SWS)}, s{sFLG} offen sc1\ns_mov_b64 exec, -1\ns_branch L_chk{tag}")
    A(f"L_poll{tag}:\ns_waitcnt vmcnt(0)\nL_chk{tag}:\nv_sub_u32 v3, v2, v{vFL}\nv_cmp_ge_u32 vcc, v3, v10")
    A(f"s_and_b32 s63, vcc_lo, 0xffff\ns_lshr_b32 s63, s63, s{sCU}\ns_and_b32 s63, s63, s62\ns_cbranch_scc1 L_some{tag}")
    A(f"s_add_u32 s58, s58, 1\ns_cmp_gt_u32 s58, 0x100000\ns_cbranch_scc1 L_out{tag}\ns_sleep {cfg.psleep}")
    A(f"buffer_load_dword v2, v1, {srd(SWS)}, s{sFLG} offen sc1\ns_branch L_poll{tag}\nL_some{tag}:")
    for i in range(nsrc, 0, -1):
        A(f"s_bitcmp1_b32 s63, {i}\ns_cbranch_scc0 L_nl{tag}{i}")
        A(f"s_add_u32 s57, s{sCU}, {i}\ns_and_b32 s57, s57, 7\ns_lshl_b32 s57, s57, 12\ns_add_u32 s57, s57, s56")
        for p in range(4):
            A(f"buffer_load_dwordx4 {R('v', G + 16 * (i - 1) + 4 * p, 4)}, v6, {srd(SWS)}, s57 offen offset:{1024 * p}{cfg.gf}")
        A(f"L_nl{tag}{i}:")
    A(f"buffer_load_dword v2, v1, {srd(SWS)}, s{sFLG} offen sc1\ns_andn2_b32 s62, s62, s63\ns_waitcnt vmcnt(1)")
    for i in range(nsrc, 0, -1):
        A(f"s_cmp_lg_u32 s64, {i}\ns_cbranch_scc1 L_na{tag}{i}\ns_bitcmp1_b32 s62, {i}\ns_cbranch_scc1 L_poll{tag}")
        for u in range(2):
            for p in range(4):
                d = R("v", acc + 16 * (p >> 1) + 4 * (p & 1) + 8 * u, 4)
                A(f"{MF16} {d}, {R('v', 24 + 2 * u, 4)}, {R('v', G + 16 * (i - 1) + 4 * p, 4)}, {d}")
        A(f"s_mov_b32 s64, {i - 1}\nL_na{tag}{i}:")
    A(f"L_out{tag}:\ns_nop 15")
    for p in range(4):
        for k in range(4):
            r = acc + 16 * (p >> 1) + 4 * (p & 1) + 8 * (k >> 1) + 2 * (k & 1)
            A(f"v_cvt_pk_bf16_f32 v{8 + 4 * p + k}, v{r}, v{r + 1}")
    A(f"s_add_u32 s57, s60, {16 * 2304}")
    for p in range(4):
        A(f"v_permlane16_swap_b32 v{8 + 4 * p}, v{10 + 4 * p}\nv_permlane16_swap_b32 v{9 + 4 * p}, v{11 + 4 * p}")
        A(f"buffer_store_dwordx4 {R('v', 8 + 4 * p, 4)}, v7, {srd(SOUT)}, s{57 if p & 1 else 60} offen offset:{64 * (p >> 1)}{cfg.of}")
    if cfg.stamp and publish:
        A("s_waitcnt vmcnt(0)")
        stamp(cfg, A, 5, 0)
    if cfg.dstamp and publish:
        A(f"s_waitcnt vmcnt(0)\ns_and_b32 s56, s2, 0xf3\ns_or_b32 s56, s56, s{sW}\ns_cmp_lg_u32 s56, 0\ns_cbranch_scc1 L_nods{tag}")
        A("s_memrealtime s[60:61]\ns_memtime s[62:63]\ns_waitcnt lgkmcnt(0)\ns_sub_u32 s9, s9, s8\ns_sub_u32 s10, s10, s8\ns_sub_u32 s60, s60, s8\ns_sub_u32 s62, s62, s11")
        A(f"v_mov_b32 v4, s9\nv_mov_b32 v5, s10\nv_mov_b32 v6, s60\nv_mov_b32 v7, s62\ns_lshl_b32 s56, s2, 2\nv_mov_b32 v8, s56\ns_mov_b64 exec, 1")
        A(f"buffer_store_dwordx4 v[4:7], v8, {srd(SDB)}, 0 offen\nL_nods{tag}:")
    A("s_endpgm")


def last_fill(cfg, fb):
    for t in range(1, 9):
        s0 = 256 + 16 * t
        if t in cfg.pubs:
            fb.setdefault(s0 + 2, []).append({"pub": cfg.pubs[t]})
        spread(fb, store_block(cfg, 2 * t - 2, Q0, P0) + store_block(cfg, 2 * t - 1, Q0 + 16, P0 + 8), s0 + 3, s0 + 15)
    fb.setdefault(274, []).append(f"v_and_b32 v1, 7, v0\nv_lshlrev_b32 v1, 2, v1\ns_lshl_b32 s64, 1, s{sCU}\ns_mov_b32 s65, 0")


vK, vV, vWq, vWo, vX = 24, 28, 32, 36, 176
W3A = 40
W3B = 52
W3T = W3B
W3X = 76
W3ACC = 160
vTQ, vTO, vTX, vDUM = 12, 13, 14, 15
pQ3 = 22
pX3, pW3 = [4, 5], [6, 7, 8, 9]


def xreg(ks, j):
    i = ks * 6 + j
    return R("a", 4 * i, 4) if i < 64 else R("v", W3X + 4 * (i - 64), 4)


def wave3(cfg, pl):
    addr = pl.addr
    sc = Sched(cfg)
    A = sc.out
    A("L_loader:")
    if cfg.prof:
        A("s_mov_b32 s96, 0\ns_mov_b32 s97, 0\ns_mov_b32 s98, 0\ns_mov_b32 s99, 0")
    A("v_lshrrev_b32 v1, 4, v0\nv_and_b32 v2, 15, v0\nv_lshrrev_b32 v16, 1, v2\nv_xor_b32 v16, v16, v1\nv_lshlrev_b32 v2, 7, v2")
    A(f"v_lshl_add_u32 v{pX3[0]}, v16, 4, v2\nv_xor_b32 v{pX3[1]}, 64, v{pX3[0]}")
    A("v_lshrrev_b32 v2, 2, v0\nv_and_b32 v2, 3, v2\nv_lshl_add_u32 v16, v1, 3, v2\nv_lshlrev_b32 v16, 7, v16\nv_lshrrev_b32 v2, 1, v2\nv_lshl_add_u32 v16, v2, 6, v16")
    A(f"v_and_b32 v2, 1, v1\nv_lshl_add_u32 v16, v2, 5, v16\nv_and_b32 v2, 3, v0\nv_lshl_add_u32 v{pW3[0]}, v2, 3, v16")
    for j in range(1, 4):
        A(f"v_xor_b32 v{pW3[j]}, {32 * j}, v{pW3[0]}")
    A(f"v_lshlrev_b32 v{pQ3}, 4, v0")
    for p in pX3 + pW3 + [pQ3]:
        sc.bias[p] = 0
    A("v_lshrrev_b32 v1, 3, v0\nv_and_b32 v2, 7, v0\nv_lshrrev_b32 v3, 4, v0")
    A("v_and_b32 v16, 1, v3\nv_lshlrev_b32 v16, 2, v16\nv_xor_b32 v16, v16, v2\nv_lshlrev_b32 v16, 4, v16")
    A("v_lshlrev_b32 v18, 8, v1\nv_lshlrev_b32 v19, 13, v1\nv_mul_u32_u24 v20, 1152, v1")
    for g in range(4):
        A(f"v_add_u32 v17, {4 * g}, v3\nv_and_b32 v17, 7, v17\nv_xor_b32 v17, v17, v2\nv_lshlrev_b32 v17, 4, v17")
        A(f"v_add_u32 v17, {g * (9216 - 1024)}, v17\nv_add_u32 v{vX + g}, v17, v20")
        A(f"v_xor_b32 v17, {32 * (g & 1)}, v16\nv_add_u32 v17, {g * (65536 - 1024)}, v17\nv_add_u32 v{vWq + g}, v17, v19")
        A(f"v_lshrrev_b32 v21, 5, v0\nv_lshlrev_b32 v21, 5, v21\nv_xor_b32 v21, v21, v16\nv_add_u32 v17, {g * (9216 - 1024)}, v21\nv_add_u32 v{vWo + g}, v17, v20")
    kv_offsets(A, vK, vV)
    for g in range(1, 4):
        A(f"v_xor_b32 v{vK + g}, {KX[g]}, v{vK}\nv_xor_b32 v{vV + g}, {32 * (g & 1)}, v{vV}")
    nsh = {"16x8": 16, "8x16": 8, "4x32": 4}[cfg.mapping]
    xsh = 32 // nsh
    rows = 576 // nsh
    A(f"s_and_b32 s56, s{sB}, {nsh - 1}\nv_mov_b32 v21, 0x7fffff00\nv_cmp_gt_u32 vcc, 36, v0")
    A(f"v_lshrrev_b32 v{vTQ}, 1, v0\nv_lshlrev_b32 v{vTQ}, 13, v{vTQ}\nv_and_b32 v17, 1, v0\nv_lshlrev_b32 v17, 7, v17\nv_add_u32 v{vTQ}, v{vTQ}, v17")
    A(f"s_mul_i32 s57, s56, {rows * 8192}\nv_add_u32 v{vTQ}, s57, v{vTQ}\nv_cndmask_b32 v{vTQ}, v21, v{vTQ}, vcc")
    A(f"v_lshlrev_b32 v{vTO}, 7, v0\ns_mul_i32 s57, s56, {rows * 256}\nv_add_u32 v{vTO}, s57, v{vTO}\nv_cndmask_b32 v{vTO}, v21, v{vTO}, vcc")
    A(f"v_cmp_gt_u32 vcc, 54, v0\nv_lshlrev_b32 v{vTX}, 7, v0\ns_and_b32 s57, s{sCU}, {xsh - 1}\ns_mul_i32 s57, s57, {110592 // xsh}\nv_add_u32 v{vTX}, s57, v{vTX}")
    A(f"v_cndmask_b32 v{vTX}, v21, v{vTX}, vcc")

    def touch_ops(vreg, srd_, base, add, step, nl=rows * 2, per=36):
        l = []
        if not cfg.pf:
            return l
        for i in range(nl // per):
            l.append(f"s_add_u32 s{sTMP}, s{base}, {i * per * step + add}")
            for fl in ((" nt", "") if cfg.dbl else ("",)):
                l.append(("vm", f"buffer_load_dword v{vDUM}, v{vreg}, {srd(srd_)}, s{sTMP} offen{fl}"))
        return l

    def quad_ops(q, w=False):
        k = q[0]
        pre = []
        if k == "k":
            off, base, v, sr, fl = q[1] * 8192 + q[2] * 4096, sKV, vK, SK, cfg.kvf
        elif k == "v":
            off, base, v, sr, fl = q[1] * 8192 + q[2] * 4096, sKV, vV, SV, cfg.kvf
        elif k == "wq":
            off, base, v, sr, fl = (q[1] * 64 + q[2] * 32) * 8192 + q[3] * 128, sWQo, vWq, SWQ, cfg.wf
        elif k == "wq3":
            off, base, v, sr, fl = (q[2] * 64 + q[3] * 32) * 8192 + q[1] * 128 + 256, sWQo, vWq, (SWQ2 if w else SWQ), cfg.wf
        elif k == "x":
            off, base, v, sr, fl = q[2] * 32 * 1152 + q[1] * 128, sXo, vX, SX, cfg.xf
        else:
            pre = [f"s_add_u32 s{sTMP}, s{sWOo}, s{sTC + q[1]}"]
            off, base, v, sr, fl = q[2] * 32 * 1152, sTMP, vWo, SWO, cfg.wf
        l = pre + [f"s_mov_b32 m0, {addr[q]}", f"s_add_u32 s{sTMP}, s{base}, {off}"]
        for g in range(4):
            if not cfg.noload:
                l.append(("vm", f"buffer_load_dwordx4 v{v + g}, {srd(sr)}, s{sTMP} offen offset:{g * 1024}{fl} lds", q, g))
        return l

    lin = []

    def put(sc_, o, gen=0):
        if isinstance(o, tuple):
            sc_.out(o[1])
            lin.append((o[2] if len(o) > 2 else None, gen))
        elif callable(o):
            o(sc_)
        else:
            sc_.out(o)

    def wait_for(sc_, quads, gen):
        if cfg.noload:
            return
        last = max(k for k, e in enumerate(lin) if e[0] in quads and e[1] == gen)
        sc_.out(f"s_waitcnt vmcnt({min(63, len(lin) - 1 - last)})")

    def bar(sc_):
        if not cfg.nobar:
            sc_.out("s_barrier")

    descriptors(A)
    if stamp(cfg, A, 15, 1):
        lin.append((None, 0))
    if cfg.delay:
        A(f"s_and_b32 s56, s{sB}, 1\ns_cmp_eq_u32 s56, 0\ns_cbranch_scc1 L_nodelay")
        for _ in range(cfg.delay):
            A("s_sleep 32")
        A("L_nodelay:")
    for n_, q in enumerate(pl.sissue[-1]):
        for o in quad_ops(q):
            put(sc, o)
        if n_ == 6:
            sample_flags(A)
            lin.append((("flag",), 0))
    bias0 = {p: XRES for p in pX3}
    bias0.update({p: WRB for p in pW3})
    bias0[pQ3] = QBUF
    ops = w3_ops(cfg)
    quads = w3_quads()
    ns = len(pl.grp)

    def conv_tile(p, hb, j):
        l = []
        for e in range(2):
            pk = W3T + 4 + 4 * e
            for x in range(2):
                acc = W3ACC + 4 * (6 * (2 * hb + x) + 2 * j + e)
                for y in range(2):
                    t0 = W3T + 2 * y
                    l += [f"v_mul_f32 v{t0}, s{sC}, v{acc + 2 * y}", f"v_mul_f32 v{t0 + 1}, s{sC}, v{acc + 2 * y + 1}"]
                l += [f"v_cvt_pk_bf16_f32 v{pk + 2 * x + y}, v{W3T + 2 * y}, v{W3T + 2 * y + 1}" for y in range(2)]
            l += ["s_nop 0", f"v_permlane16_swap_b32 v{pk}, v{pk + 2}", f"v_permlane16_swap_b32 v{pk + 1}, v{pk + 3}"]
            l.append(lambda sc_, pk=pk, a=QBUF + (j * 4 + 2 * hb + e) * 1024: sc_.lds("ds_write_b128", R("v", pk, 4), pQ3, a))
        return l

    def period(last, pro):
        nonlocal lin
        sc2 = Sched(cfg)
        sc2.bias = dict(bias0)
        B = sc2.out
        lin = [(q, 0) for q in pro for g in range(4)] if not cfg.noload else []
        myops = [] if last else copy.deepcopy(ops)
        n = len(myops)
        fill = {}
        bpos = {s: (sum(cfg.quota[:s]) if not last else 0) for s in range(ns + 1)}
        enq = {}
        if not last:
            lastidx = {(o["p"], o["hb"], o["j"]): i for i, o in enumerate(ops) if o["last"]}
            for p, hb in ((0, 0), (1, 0), (0, 1)):
                i0 = lastidx[(p, hb, 2)]
                spread(fill, sum((conv_tile(p, hb, j) for j in range(3)), []), i0 + 4, i0 + 12)
            assert lastidx[(0, 1, 2)] + 16 <= bpos[18] and lastidx[(1, 0, 2)] + 4 >= bpos[19]
            firstop = {q: min(i for i, o in enumerate(ops) if o["q"] == q) for q in quads}
            lastop = {q: max(i for i, o in enumerate(ops) if o["q"] == q) - 2 for q in quads}
            seg = lambda i: max(s for s in range(ns) if bpos[s] <= i)
            at = 0
            for k in range(36, 72):
                prev = max(j for j in range(k) if addr[quads[j % 36]] == addr[quads[k % 36]])
                free = lastop[quads[prev % 36]] + 1 + (prev // 36 - 1) * n
                sneed = seg(firstop[quads[k % 36]]) - cfg.raq
                early = bpos[sneed] if sneed >= 0 else bpos[sneed + ns] - n
                at = max(free, early) if k == 36 else max(at, free, early)
                assert at <= firstop[quads[k % 36]] - 5
                enq.setdefault(at % n if at < 0 else at, []).append((quads[k % 36], at < 0))
        st = dict(wrapq=False, wrapg=False, rdA=0, rdB=0, abuf=0, bbuf=0, step=-1)
        queue = []

        def drain(nvm):
            while queue and nvm > 0:
                o, g = queue.pop(0)
                put(sc2, o, g)
                nvm -= isinstance(o, tuple)

        def open_step(s):
            if cfg.trace is True:
                B(f"s_memtime s[60:61]\ns_waitcnt lgkmcnt(0)\nv_writelane_b32 v2, s60, {s}")
            wait_for(sc2, {pl.grp[s][3]}, 0)
            if cfg.trace is True:
                B(f"s_memtime s[60:61]\ns_waitcnt lgkmcnt(0)\nv_writelane_b32 v2, s60, {32 + s}")
            if s in (0, 16):
                if stamp(cfg, B, {0: 1, 16: 2}[s], 1):
                    lin.append((None, 0))
            if last and s == 16:
                B("v_readfirstlane_b32 s57, v17\ns_mov_b32 s58, 0\nL_chk:\ns_cmp_ge_u32 s57, 8\ns_cbranch_scc1 L_chkend")
                B(f"buffer_load_dword v17, v16, {srd(SDB)}, 0 offen offset:{128 if cfg.dstamp else 0} sc1\ns_add_u32 s58, s58, 1\ns_waitcnt vmcnt(0)\nv_readfirstlane_b32 s57, v17")
                B("s_cmp_lt_u32 s58, 0x80000\ns_cbranch_scc1 L_chk\nL_chkend:")
            bar(sc2)
            for g, w in pl.req[s]:
                if w and not st["wrapg"]:
                    st["wrapg"] = True
                    queue.append((f"s_add_u32 s{sKV}, s{sKV}, 0x20000", 0))
                assert g >= 16 or w == st["wrapg"]
                if not (last and w):
                    queue.extend((o, int(w)) for o in quad_ops(pl.grp[g][3]))
            if last and s == 2:
                queue.extend([(f"s_lshl_b32 s56, s{sPAIR}, 2", 0), ("v_mov_b32 v16, s56", 0), (("vm", f"buffer_load_dword v17, v16, {srd(SDB)}, 0 offen offset:{128 if cfg.dstamp else 0} sc1"), 0)])
            if s == cfg.pf_wo_step:
                queue.extend((o, 0) for o in touch_ops(vTO, SWO, sWOo, 0, 128))
            if s == cfg.pf_wq_step and not last:
                queue.append((f"s_cmp_eq_u32 s{sIT}, 2\ns_cselect_b32 s{SWQ2 + 2}, 0, s{SWQ2 + 2}", 0))
                queue.extend((o, 0) for o in touch_ops(vTQ, SWQ2, sWQo, 512, 4096))
            if cfg.warm and s == 9 and not last:
                queue.append(("s_call_b64 s[40:41], L_warm_more", 0))
            if bpos[s + 1] == bpos[s]:
                drain(99)
            st["step"] = s

        for i in range(n):
            while st["step"] + 1 < ns and bpos[st["step"] + 1] <= i:
                open_step(st["step"] + 1)
            for q, w in enq.get(i, []):
                if w and not st["wrapq"]:
                    st["wrapq"] = True
                    queue.append((f"s_add_u32 s{sWQo}, s{sWQo}, 256", 0))
                assert w == st["wrapq"]
                queue.extend((o, int(w)) for o in quad_ops(q, w))
            while st["rdA"] < n and st["rdA"] <= i + 5:
                o = myops[st["rdA"]]
                if st["rdA"] == firstop[o["q"]] and not cfg.noload:
                    while lin.count((o["q"], 0)) < 4:
                        drain(1)
                    wait_for(sc2, {o["q"]}, 0)
                fb = W3A + 4 * (st["abuf"] % 3)
                st["abuf"] += 1
                sc2.lds("ds_read_b64_tr_b16", R("v", fb, 2), pW3[o["dt"]], addr[o["q"]])
                sc2.lds("ds_read_b64_tr_b16", R("v", fb + 2, 2), pW3[o["dt"]], addr[o["q"]] + 4 * 128)
                for d in range(3):
                    myops[st["rdA"] + d]["areg"] = fb
                st["rdA"] += 3
            while st["rdB"] < n and st["rdB"] <= i + 2:
                o = myops[st["rdB"]]
                if o["ks"] >= 14 and st["rdB"] - o["j"] == firstop[o["q"]]:
                    for e in range(2):
                        qt = 2 * o["j"] + e
                        sc2.lds("ds_read_b128", R("v", W3B + 4 * qt, 4), pX3[o["ks"] & 1], XRES + ((o["ks"] >> 1) - 7) * 12288 + qt * 2048)
                st["rdB"] += 1
            o = myops[i]
            fl = fill.get(i, [])
            for e in range(2):
                if e:
                    drain(1)
                for f in (fl[len(fl) // 2:] if e else fl[:len(fl) // 2]):
                    put(sc2, f)
                qt = 2 * o["j"] + e
                d = R("v", W3ACC + 4 * (6 * o["dt"] + qt), 4)
                b = xreg(o["ks"], qt) if o["ks"] < 14 else R("v", W3B + 4 * qt, 4)
                B(f"{MF16} {d}, {R('v', o['areg'], 4)}, {b}, {'0' if o['first'] else d}")
        drain(99)
        if not last:
            for o in sum((conv_tile(1, 1, j) for j in range(3)), []):
                put(sc2, o)
            B("s_waitcnt lgkmcnt(0)")
            assert st["step"] + 1 < ns
        while st["step"] + 1 < ns:
            open_step(st["step"] + 1)
        tailq = [e[0] for e in lin if e[1] == 1][::4]
        if not last:
            B(f"s_add_u32 s{sWOo}, s{sWOo}, 147456")
            for p, b in bias0.items():
                sc2.rebias(p, b)
            if cfg.trace is True:
                B(f"s_cmp_lg_u32 s{sIT}, {cfg.trace_it}\ns_cbranch_scc1 L_notr3\nv_lshlrev_b32 v1, 2, v0\ns_lshl_b32 s62, s2, 10\ns_add_u32 s62, s62, {STAMP_BASE + 768}")
                B(f"buffer_store_dword v2, v1, {srd(SWS)}, s62 offen\ns_waitcnt vmcnt(0)\nL_notr3:")
            B(f"s_add_u32 s{sIT}, s{sIT}, 1\ns_cmp_lt_u32 s{sIT}, 3\ns_cbranch_scc1 L_w3loop")
        body, pe = lgkm_pass(B.ins)
        assert not pe
        return body, tailq

    lin0 = list(lin)
    _, pro = period(False, [pl.grp[g][3] for g in pl.pro] + quads[:cfg.WR])
    loopbody, pro2 = period(False, pro)
    assert pro2 == pro
    lastp, _ = period(True, pro)
    lin = lin0
    if cfg.noload:
        pro = []
    todo = list(pro)
    for t in range(9):
        wait_for(sc, set(pl.start[t]) | ({("flag",)} if t == 0 else set()), 0)
        A("s_waitcnt lgkmcnt(0)")
        bar(sc)
        if t == 0:
            A(f"s_lshl_b32 s56, s{sPAIR}, 2\nv_mov_b32 v16, s56\nv_mov_b32 v17, 1\ns_mov_b64 exec, 1")
            put(sc, ("vm", f"buffer_atomic_add v17, v16, {srd(SDB)}, 0 offen offset:{128 if cfg.dstamp else 0} sc1"))
            A("s_mov_b64 exec, -1")
        if t < 7:
            for s in range(2):
                for j in range(6):
                    sc.lds("ds_read_b128", xreg(2 * t + s, j), pX3[s], addr[("x", t, 0)] + j * 2048)
        if t == cfg.pf_wq0_step:
            for o in touch_ops(vTQ, SWQ, sWQo, 256, 4096):
                put(sc, o)
        for q in pl.sissue[t]:
            for o in quad_ops(q):
                put(sc, o)
        while todo:
            q = todo[0]
            if q[0] == "wq3":
                if pl.slast.get(addr[q], -9) >= t:
                    break
                if any(pl.sissue[b] for b in range(t + 1, 9)):
                    break
            elif not any(pl.grp[g][3] == q for b in range(-1, t + 1) for g in pl.sreq[b]):
                break
            for o in quad_ops(todo.pop(0)):
                put(sc, o)
    assert not todo
    for p, b in bias0.items():
        sc.rebias(p, b)
    A("s_waitcnt lgkmcnt(0)")
    head, pend = lgkm_pass(sc.out.ins)
    loop = [parse("L_w3loop:")] + loopbody
    T = Prog()
    if cfg.prof:
        T(f"v_mov_b32 v16, s96\nv_mov_b32 v17, s97\nv_mov_b32 v18, s98\nv_mov_b32 v19, s99\nv_mov_b32 v20, 0\ns_lshl_b32 s62, s2, 10\ns_add_u32 s62, s62, {STAMP_BASE + 512 + 64}")
        T(f"buffer_store_dwordx4 v[16:19], v20, {srd(SWS)}, s62 offen")
    T(f"s_cmp_ge_u32 s{sCU}, 3\ns_cbranch_scc1 L_done")
    T("s_mov_b32 s61, 8")
    finish_unit(cfg, T, "w3", 8, 192, sCU, 61, False)
    allins, nn = hazard_pass(head + loop + lastp + T.ins, verbose=cfg.dbg == "nops3")
    return allins, dict(w3nops=nn, w3est=est_cycles(loop))


def acc_out(nb):
    return R("a", 16 * nb, 16) if nb < 16 else R("v", OUTV + 16 * (nb - 16), 16)


def q_ops(addr):
    ops = []
    XB = S0
    for t in range(9):
        order = [(s, b) for s in range(4) for b in range(4)] if t < 8 else [(s, b) for b in range(4) for s in range(4)]
        seen = set()
        for (s, b) in order:
            qa = addr[("wq", t, s >> 1, b >> 1)] + (16 * (s & 1)) * 128
            xb = XB + 4 * ((t * 4 + s) % 8)
            o = dict(step=t, a=[("tr", pWq[b & 1], qa), ("tr", pWq[b & 1], qa + 4 * 128)], b=R("v", xb, 4), d=R("v", O0 + 16 * b, 16))
            o["c"] = "0" if (t == 0 and s == 0) else o["d"]
            if s not in seen:
                seen.add(s)
                o["x"] = (xb, pK[s], addr[("x", t, 0)])
            ops.append(o)
    return ops


def item_ops(addr):
    ops = []

    def qk(u, step):
        base = S0 + 16 * (u & 1) if u else O0
        for kt in range(2):
            for ds in range(4):
                mm = []
                for e in range(2):
                    d = R("v", base + 8 * e + 4 * kt, 4)
                    mm.append((d, R("v", Q0 + 8 * ds + 4 * e, 4), d if ds else ("0" if u < 2 else R("v", NEGM + 4 * e, 4))))
                ops.append(dict(step=step, a=[("b128", pK[ds & 1], addr[("k", u, kt)] + (ds >> 1) * 512)], mm=mm))

    def pv(u, step, bmajor=False):
        for dt in range(8):
            va = addr[("v", u, 0)] + (dt >> 2) * 512
            mm = []
            for e in range(2):
                d = R("v", O0 + 8 * dt + 4 * e, 4)
                mm.append((d, R("v", P0 + 8 * (u & 1) + 4 * e, 4), "0" if u == 0 else d))
            ops.append(dict(step=step, a=[("tr", pV[dt & 3], va), ("tr", pV[dt & 3], va + 4096)], mm=mm))
    qk(0, 0)
    qk(1, 0)
    for u in range(1, 15):
        qk(u + 1, u)
        pv(u - 1, u)
    pv(14, 15)
    pv(15, 15, True)
    for t in range(9):
        for b in range(4):
            for nt in range(4):
                wa = addr[("wo", t, b)]
                mm = []
                for e in range(2):
                    r = 32 * t + 8 * nt + 4 * e
                    d = R("a", r, 4) if t < 8 else R("v", OUTV + r - 256, 4)
                    mm.append((d, R("v", OF + 8 * b + 4 * e, 4), d))
                ops.append(dict(step=16 + t, a=[("tr", pV[nt], wa), ("tr", pV[nt], wa + 2048)], mm=mm, alt=(b == 0)))
    ops[256]["pre"] = [f"v_add_u32 v{p}, v{p}, v{vDL}" for p in pV]
    assert len(ops) == 400
    return ops


def softmax_ops(u, first=False):
    S, P = S0 + 16 * (u & 1), P0 + 8 * (u & 1)
    if first:
        S = O0
    l = []
    for k in range(9):
        a, b = vT[2 * (k & 1)], vT[2 * (k & 1) + 1]
        pa, pb = vT[2 * ((k - 1) & 1)], vT[2 * ((k - 1) & 1) + 1]
        bs = vBS if k - 1 < 4 else vBS1
        if k < 8:
            l.append(f"v_exp_f32 v{a}, v{S + 2 * k}")
        if k in (1, 5):
            l.append(f"v_add_f32 v{bs}, v{pa}, v{pb}")
        elif k:
            l.append(f"v_add_f32 v{bs}, v{bs}, v{pa}")
        if k < 8:
            l.append(f"v_exp_f32 v{b}, v{S + 2 * k + 1}")
        if k:
            l.append(f"v_cvt_pk_bf16_f32 v{P + k - 1}, v{pa}, v{pb}")
        if k and k not in (1, 5):
            l.append(f"v_add_f32 v{bs}, v{bs}, v{pb}")
    return l


def across(op, x, y, t, mid=()):
    return [f"v_permlane16_swap_b32 v{x}, v{y}", f"{op} v{x}, v{x}, v{y}", f"v_mov_b32 v{t}, v{x}", f"v_permlane32_swap_b32 v{x}, v{t}",
            f"{op} v{x}, v{x}, v{t}"] + list(mid) + [f"v_mov_b32 v{y}, v{x}", f"v_permlane16_swap_b32 v{x}, v{y}"]


def conv_o(b):
    l = []
    for e, sc_ in ((0, vM), (1, vM3)):
        for x in range(2):
            r = O0 + 8 * (2 * b + x) + 4 * e
            l += [f"v_mul_f32 v{r + i}, v{sc_}, v{r + i}" for i in range(4)]
            l += [f"v_cvt_pk_bf16_f32 v{OF + 8 * b + 4 * e + 2 * x + y}, v{r + 2 * y}, v{r + 2 * y + 1}" for y in range(2)]
    return l


def conv_block(b, scale, dst):
    l = []
    for k in range(8):
        r = O0 + 16 * b + 2 * k
        l.append(f"v_mul_f32 v{r}, {scale}, v{r}")
        l.append(f"v_mul_f32 v{r + 1}, {scale}, v{r + 1}")
        if k:
            l.append(f"v_cvt_pk_bf16_f32 v{dst + 8 * b + k - 1}, v{r - 2}, v{r - 1}")
    l.append(f"v_cvt_pk_bf16_f32 v{dst + 8 * b + 7}, v{O0 + 16 * b + 14}, v{O0 + 16 * b + 15}")
    l += [f"v_permlane16_swap_b32 v{dst + 8 * b + k}, v{dst + 8 * b + 4 + k}" for k in range(4)]
    return l


def rowmax(S):
    l = []
    for k in range(4):
        for m, r in ((vM, S), (vM3, S + 8)):
            l.append(f"v_max3_f32 v{m}, v{r}, v{r + 1}, v{r + 2}" if k == 0 else f"v_max3_f32 v{m}, v{m}, v{r + 1 + 2 * k}, v{r + 2 + 2 * k}" if k < 3
                     else f"v_max_f32 v{m}, v{m}, v{r + 7}")
    return l + across("v_max_f32", vM, vM3, vM2)


def with_subs(S, sm):
    sub = [f"v_sub_f32 v{S + i}, v{S + i}, v{vM3 if i & 8 else vM}" for i in range(16)]
    l, k = sub[:4], 4
    for o in sm:
        l.append(o)
        if o.startswith("v_exp") and k < 16:
            l.append(sub[k])
            k += 1
    return l


def item_fill(cfg, ops, fill):
    post = {}
    chk = [f"v_max_f32 v{vMX}, v{vBS}, v{vBS1}", f"v_cmp_lt_f32 vcc, s{sTHR}, v{vMX}"]
    spread(fill, rowmax(O0) + [f"v_sub_f32 v{NEGM + i}, 0, v{vM3 if i & 4 else vM}" for i in range(8)], 10, 15)
    spread(fill, with_subs(O0, softmax_ops(0, True)) + [f"v_mov_b32 v{vL}, v{vBS}", f"v_mov_b32 v{vL1}, v{vBS1}"], 16, 23)
    spread(fill, with_subs(S0 + 16, softmax_ops(1)) + chk, 24, 31)
    post[31] = 1
    for u in range(2, 15):
        su = 16 * u
        spread_bal(cfg, ops, fill, softmax_ops(u) + chk, su, su + 15)
        post[su + 15] = u
    spread(fill, softmax_ops(15) + chk, 240, 247)
    post[247] = 15
    spread(fill, [f"v_mov_b32 v{vM}, v{vL}", f"v_mov_b32 v{vM3}, v{vL1}"] + across("v_add_f32", vM, vM3, vM2, [f"v_rcp_f32 v{vM}, v{vM}"]), 248, 252)
    spread(fill, conv_o(0), 253, 255)
    spread(fill, conv_o(1), 256, 259)
    spread(fill, conv_o(2), 260, 263)
    spread(fill, conv_o(3), 264, 267)
    return post


def store_block(cfg, nb, tmp, pk):
    l = []
    if not nb & 1:
        l += [f"s_mul_i32 s56, s{sTC + (nb >> 1)}, 768", f"s_add_u32 s56, s56, s{sWSo}"]
    for u in range(2):
        for k in range(8):
            l.append(f"v_accvgpr_read_b32 v{tmp + 8 * u + k}, a{16 * nb + 4 * u + 8 * (k >> 2) + (k & 3)}")
        for k in range(4):
            i = 8 * u + 2 * k
            l.append(f"v_cvt_pk_bf16_f32 v{pk + 4 * u + k}, v{tmp + i}, v{tmp + i + 1}")
        l.append((f"buffer_store_dwordx4 {R('v', pk + 4 * u, 4)}, v{vST}, {srd(SWS)}, s56 offen offset:{((nb & 1) * 2 + u) * 1024}{cfg.pstf}", ("st", nb >> 1)))
    return l


VMCOST = 4


def emit_slots(cfg, sc, ops, fill, post, lo, hi, st, stubs, stamps={}, nextops=None):
    LA = cfg.LA
    first = {}
    if nextops:
        ops = ops + [dict(o, step=ops[-1]["step"] + 1) for o in nextops]
    for i, o in enumerate(ops):
        first.setdefault(o["step"], i)
    for i in range(lo, hi):
        nx = st["step"] + 1
        if nextops and nx == ops[-1]["step"] and i >= first[nx] - cfg.LB:
            st["tag"], st["alias"] = "n", 0
            for p, b in st["rebias"].items():
                sc.rebias(p, b)
            for p in pV:
                sc.out(f"v_sub_u32 v{p}, v{p}, v{vDL}")
        if nx in first and i >= first[nx] - (cfg.LB if nx else LA):
            if cfg.dstamp and nx in stamps and stamps[nx] in (1, 2) and (stamps[nx] == 2 or nx == 0):
                sc.out(f"s_memrealtime s[60:61]\ns_waitcnt lgkmcnt(0)\ns_mov_b32 s{8 + stamps[nx]}, s60")
            if nx in stamps and stamp(cfg, sc.out, stamps[nx], 0):
                st["lin"].append(None)
            w = "lgkmcnt(0)"
            key = (st["tag"], st.get("alias", nx))
            if key in st["lin"]:
                last = max(k for k, e in enumerate(st["lin"]) if e == key)
                w = f"vmcnt({len(st['lin']) - 1 - last}) " + w
            if cfg.trace == "head" and len(ops) in (144, 432):
                sc.out(f"s_memrealtime s[60:61]\ns_waitcnt lgkmcnt(0)\nv_writelane_b32 v{NEGM + 1}, s60, {nx}")
            if cfg.trace is True and len(ops) in (400, 400 + cfg.LA) and 0 < nx < 25:
                sc.out("s_memtime s[60:61]\ns_waitcnt lgkmcnt(0)")
                sc.out(f"v_writelane_b32 v2, s60, {nx}")
            if cfg.trace == "head2" and len(ops) == 432:
                sc.out(f"s_memtime s[60:61]\ns_waitcnt lgkmcnt(0)\nv_writelane_b32 v{NEGM + 1}, s60, {nx}")
            sc.out("s_waitcnt " + w)
            if cfg.trace == "head2" and len(ops) == 432:
                sc.out(f"s_memtime s[60:61]\ns_waitcnt lgkmcnt(0)\nv_writelane_b32 v{NEGM + 1}, s60, {32 + nx}")
            if cfg.trace is True and len(ops) in (400, 400 + cfg.LA) and 0 < nx < 25:
                sc.out("s_memtime s[60:61]\ns_waitcnt lgkmcnt(0)")
                sc.out(f"v_writelane_b32 v2, s60, {32 + nx}")
            if not cfg.nobar:
                sc.out("s_barrier")
            st["step"] = nx
        nrd = 0
        while st["rd"] < min(i + LA + 1, len(ops)) and ops[st["rd"]]["step"] <= st["step"]:
            o = ops[st["rd"]]
            nrd += len(o["a"])
            for x in o.get("pre", []):
                sc.out(x)
            if "x" in o:
                sc.lds("ds_read_b128", R("v", o["x"][0], 4), o["x"][1], o["x"][2])
            fb = sc.fbuf()
            o["areg"] = fb
            if o["a"][0][0] == "b128":
                sc.lds("ds_read_b128", R("v", fb, 4), o["a"][0][1], o["a"][0][2])
            else:
                sc.lds("ds_read_b64_tr_b16", R("v", fb, 2), o["a"][0][1], o["a"][0][2])
                sc.lds("ds_read_b64_tr_b16", R("v", fb + 2, 2), o["a"][1][1], o["a"][1][2])
            st["rd"] += 1
        def emit_fill(fl):
            for f in fl:
                if callable(f):
                    f(sc)
                elif isinstance(f, dict):
                    last = max(k for k, e in enumerate(st["lin"]) if e == ("st", f["pub"] - 1))
                    n_ = sum(1 for e in st["lin"][last + 1:] if e and e[0] == "st")
                    sc.out(f"v_add_u32 v2, {f['pub']}, v{vFL}\ns_waitcnt vmcnt({n_})\ns_mov_b64 exec, s[64:65]")
                    sc.out(f"buffer_store_dword v2, v1, {srd(SWS)}, s{sFLG} offen sc1\ns_mov_b64 exec, -1")
                    st["lin"].append(("st", -1))
                elif isinstance(f, tuple):
                    sc.out(f[0])
                    st["lin"].append(f[1])
                else:
                    sc.out(f)
                    if f.startswith("buffer_"):
                        st["lin"].append(None)
        fl = fill.get(i, [])
        if i < 0:
            emit_fill(fl)
            continue
        o = ops[i]
        mm = o.get("mm") or [(o["d"], o["b"], o["c"])]
        op = MF16 if "mm" in o else MF
        ms = [parse(f"{op} {d}, {R('v', o['areg'], 4)}, {b}, {c}") for d, b, c in mm]
        if i % cfg.waitgrp == 0:
            for d in range(1, cfg.waitgrp):
                if i + d < st["rd"]:
                    ms[0].rd = set(ms[0].rd) | {("v", ops[i + d]["areg"] + k) for k in range(4)}
        if o.get("alt") and st.get("alts") is not None:
            emit_fill(fl)
            c = parse(f"s_cmp_eq_u32 s{sIT}, 0")
            c.rd = set(c.rd) | {r for m in ms for r in m.rd if r[0] == "v"}
            n_ = len(st["alts"])
            sc.out.ins.append(c)
            sc.out(f"s_cbranch_scc1 L_alt{n_}")
            sc.out.ins.extend(ms)
            sc.out(f"s_branch L_altb{n_}\nL_alt{n_}:")
            for d, b, c in mm:
                z = parse(f"{op} {d}, {R('v', o['areg'], 4)}, {b}, 0")
                z.kind = "altmfma"
                sc.out.ins.append(z)
            sc.out(f"L_altb{n_}:")
            st["alts"].append(n_)
            continue
        if len(ms) == 1:
            emit_fill(fl)
            sc.out.ins.append(ms[0])
        else:
            need0 = max([k + 1 for k, f in enumerate(fl) if isinstance(f, str) and "\n" not in f and parse(f).wr & ms[0].rd] + [0])
            k0 = max(need0, (len(fl) - nrd + 1) // 2 if len(fl) > nrd else 0)
            emit_fill(fl[:k0])
            sc.out.ins.append(ms[0])
            emit_fill(fl[k0:])
            sc.out.ins.append(ms[1])
        if i in post:
            u = post[i]
            tag = f"{u}_{len(stubs)}"
            sc.out(f"s_cbranch_vccnz L_stub_{tag}\nL_back_{tag}:")
            sc.out(f"v_add_f32 v{vL}, v{vL}, v{vBS}\nv_add_f32 v{vL1}, v{vL1}, v{vBS1}")
            stubs.append((tag, u & 1))


def group_request(cfg, pl, fill, slot, g, tag, kind, sp=1):
    l = []
    want = "k" if g == 0 else "m" if g < 15 else "v" if g == 15 else "w"
    if want != kind:
        l += {"k": [f"v_xor_b32 v{vD + k}, {KX[k]}, v{bK}" for k in range(4)],
              "m": [f"v_mov_b32 v{vD}, v{bM}", f"v_xor_b32 v{vD + 1}, s{sXM}, v{bM}", f"v_xor_b32 v{vD + 2}, s{sXM2}, v{bM}", f"v_xor_b32 v{vD + 3}, s{sXM2}, v{vD + 1}"],
              "v": [f"v_xor_b32 v{vD + k}, {32 * (k & 1)}, v{bV}" for k in range(4)],
              "w": [f"v_add_u32 v{vD + k}, {8192 * k}, v{bWo}" for k in range(4)]}[want]
    so, sr, fl = {"k": (f"s_add_u32 s{sTMP}, s{sB0}, 0", SK, cfg.kvf), "m": (f"s_add_u32 s{sTMP}, s{sMB}, {g * 8192}", SM, cfg.kvf),
                  "v": (f"s_add_u32 s{sTMP}, s{sB0}, {14 * 8192}", SV, cfg.kvf),
                  "w": (f"s_add_u32 s{sTMP}, s{sWB}, s{sTC + max(g - 16, 0)}", SWO, cfg.wf)}[want]
    l += [f"s_add_u32 m0, s{sT4K}, {pl.addr[pl.grp[g][0]]}", so]
    fill.setdefault(slot, []).extend(l)
    for k in range(4):
        if not cfg.noload:
            fill.setdefault(slot + k * sp, []).append((f"buffer_load_dwordx4 v{vD + k}, {srd(sr)}, s{sTMP} offen offset:{k * 1024}{fl} lds", (tag, g)))
    if g == 24:
        fill.setdefault(slot + 3 * sp, []).append(f"s_add_u32 s{sWB}, s{sWB}, 147456")
    return want


def rare_routine(p):
    A = Prog()
    S, Sn = S0 + 16 * p, S0 + 16 * (1 - p)
    A(f"L_rare{p}:\ns_nop 15\ns_nop 15")
    A("\n".join(rowmax(S)))
    A(f"v_max_f32 v{vM}, 0, v{vM}\nv_max_f32 v{vM3}, 0, v{vM3}")
    for i in range(8):
        A(f"v_sub_f32 v{NEGM + i}, v{NEGM + i}, v{vM3 if i & 4 else vM}")
    for i in range(16):
        m = vM3 if i & 8 else vM
        A(f"v_sub_f32 v{S + i}, v{S + i}, v{m}\nv_sub_f32 v{Sn + i}, v{Sn + i}, v{m}")
    A(f"v_exp_f32 v{vM}, -v{vM}\nv_exp_f32 v{vM3}, -v{vM3}\ns_nop 0\nv_mul_f32 v{vL}, v{vL}, v{vM}\nv_mul_f32 v{vL1}, v{vL1}, v{vM3}")
    for i in range(64):
        A(f"v_mul_f32 v{O0 + i}, v{O0 + i}, v{vM3 if i & 4 else vM}")
    A("\n".join(softmax_ops(p)))
    A("s_nop 3\ns_setpc_b64 s[40:41]")
    ins, _ = hazard_pass(A.ins)
    return ins


def compute(cfg, pl):
    addr = pl.addr
    sc = Sched(cfg)
    A = sc.out
    A(f"s_lshl_b32 s{sT4K}, s{sW}, 12\ns_mov_b32 s{sTHR}, {hex(f2u(cfg.thr))}")
    nsh = {"16x8": 16, "8x16": 8, "4x32": 4}[cfg.mapping]
    xr = 96 // (32 // nsh)
    A(f"v_mov_b32 v21, 0x7fffff00\ns_and_b32 s56, s{sB}, {nsh - 1}\ns_mul_i32 s56, s56, {(576 // nsh) * 8192}\ns_add_u32 s56, s56, s{sWQo}")
    A("v_lshrrev_b32 v16, 1, v0\nv_lshlrev_b32 v16, 13, v16\nv_and_b32 v17, 1, v0\nv_lshl_add_u32 v16, v17, 7, v16\nv_cmp_gt_u32 vcc, 36, v0")
    A(f"s_and_b32 s57, s{sCU}, {32 // nsh - 1}\ns_mul_i32 s57, s57, {xr * 1152}\ns_add_u32 s57, s57, s{sXo}\nv_cndmask_b32 v16, v21, v16, vcc")
    A(f"v_mul_u32_u24 v17, 1152, v0\nv_cmp_gt_u32 vcc, {xr}, v0\ns_and_b32 s58, s{sW}, 2\ns_lshl_b32 s58, s58, 6\ns_add_u32 s57, s57, s58\nv_cndmask_b32 v17, v21, v17, vcc")
    descriptors(A)
    ntouch = 0
    if cfg.pf:
        A(f"s_cmp_lg_u32 s{sW}, 0\ns_cbranch_scc1 L_tx")
        for i in range(1152 // nsh // 36):
            A(f"buffer_load_dword v{NEGM}, v16, {srd(SWQ)}, s56 offen\ns_add_u32 s56, s56, {18 * 8192}")
        A("s_branch L_tdone\nL_tx:")
        if cfg.pfx:
            for i in range(5):
                A(f"buffer_load_dword v{NEGM}, v17, {srd(SX)}, s57 offen offset:{256 * i}")
        A("L_tdone:")
    if cfg.tlb:
        A(f"s_cmp_lg_u32 s{sW}, 2\ns_cbranch_scc1 L_notlb")
        tlb_warm(cfg, A, NEGM, 16)
        A("L_notlb:")
    sample_flags(A)
    lane_patterns(A, True)
    A(f"v_lshlrev_b32 v{vST}, 4, v0\nv_add_u32 v{pQ}, s{sT4K}, v{vST}")
    A(f"s_mul_i32 s56, s{sPAIR}, 884736\ns_lshl_b32 s57, s{sW}, 15\ns_add_u32 s56, s56, s57\ns_lshl_b32 s57, s{sCU}, 12\ns_add_u32 s{sWSo}, s56, s57")
    A("v_lshrrev_b32 v1, 3, v0\nv_and_b32 v2, 7, v0\nv_lshrrev_b32 v16, 4, v0\nv_lshlrev_b32 v18, 8, v1\nv_mul_u32_u24 v19, 1152, v1")
    A(f"v_and_b32 v17, 1, v16\nv_lshlrev_b32 v17, 2, v17\nv_xor_b32 v17, v17, v2\nv_lshrrev_b32 v18, 5, v0\nv_lshlrev_b32 v18, 1, v18\nv_xor_b32 v17, v17, v18")
    A(f"v_lshl_add_u32 v{bWo}, v17, 4, v19")
    kv_offsets(A, bK, bV)
    A(f"s_cmp_lt_u32 s{sW}, 2\ns_cselect_b32 s{SM}, s{SK}, s{SV}\ns_cselect_b32 s{SM + 1}, s{SK + 1}, s{SV + 1}\ns_mov_b32 s{SM + 2}, 0x4000000\ns_mov_b32 s{SM + 3}, 0x20000")
    A(f"s_cselect_b32 s{sXM}, 16, 32\ns_cselect_b32 s{sXM2}, 64, 0\ns_cselect_b64 vcc, -1, 0\ns_add_u32 s56, s{sT4K}, 8192\ns_cmp_lt_u32 s{sW}, 2")
    A(f"s_cselect_b32 s56, s56, {(-8192) & 0xffffffff}\ns_add_u32 s{sMB}, s{sKV}, s56\nv_cndmask_b32 v{bM}, v{bV}, v{bK}, vcc")
    A(f"s_add_u32 s{sB0}, s{sKV}, s{sT4K}")
    A(f"s_mul_i32 s56, s{sW}, 36864\ns_add_u32 s{sWB}, s{sWOo}, s56")
    for i in range(256):
        A(f"v_accvgpr_write_b32 a{i}, 0")
    for i in range(32):
        A(f"v_mov_b32 v{OUTV + i}, 0")
    A("s_waitcnt vmcnt(0)")
    for p in pK + pV + pWq + pWo + [pQ]:
        sc.bias[p] = 0
    qops = q_ops(addr)
    qf = {}
    kind = None
    for t in range(-1, 9):
        for n_, g in enumerate(pl.sreq[t]):
            kind = group_request(cfg, pl, qf, (16 * t - cfg.LB if t > 0 else -cfg.LA + 1 if t == 0 else -cfg.LA - 8) + 4 * n_, g, "n", kind)
    kind0 = kind
    spread(qf, conv_block(0, f"s{sC}", Q0), 135, 138)
    spread(qf, conv_block(1, f"s{sC}", Q0), 139, 143)
    emit_slots(cfg, sc, qops, qf, {}, -cfg.LA - 8, 144, dict(rd=0, step=-1, lin=[], tag="c"), [], {0: 0})
    A("\n".join(conv_block(2, f"s{sC}", Q0) + conv_block(3, f"s{sC}", Q0)))
    if cfg.trace == "head":
        A(f"s_memrealtime s[60:61]\ns_waitcnt lgkmcnt(0)\nv_writelane_b32 v{NEGM}, s60, 9\nv_writelane_b32 v{NEGM}, s101, 10")
        A(f"v_lshlrev_b32 v1, 2, v0\ns_lshl_b32 s62, s2, 10\ns_lshl_b32 s63, s{sW}, 8\ns_add_u32 s62, s62, s63\ns_add_u32 s62, s62, {STAMP_BASE}")
        A(f"buffer_store_dword v{NEGM}, v1, {srd(SWS)}, s62 offen\ns_waitcnt vmcnt(0)")
    k_patterns(A, False)
    wo_shift(A)
    for p in pWq + pK[2:]:
        del sc.bias[p]
    for p in pK[:2]:
        sc.bias[p] = 0
    for p in pV + pWo:
        sc.rebias(p, 0)
    sc.rebias(pQ, QBUF)
    bias0 = dict(sc.bias)
    sc.nbuf = 0
    ops = item_ops(addr)
    st = dict(rd=0, step=-1, lin=[("c", g) for g in pl.pro for k in range(4)] if not cfg.noload else [], tag="c")
    emit_slots(cfg, sc, ops, {}, {}, -cfg.LA, 0, st, [], {0: 1})
    assert st["rd"] == cfg.LA and 400 % cfg.NB == 0
    bias1 = dict(sc.bias)
    head, pend0 = lgkm_pass(sc.out.ins)
    assert len(pend0) == cfg.LA
    head, nh = hazard_pass(head, verbose=cfg.dbg == "nops")
    sc.out = Prog()
    fill = {}
    split = 272
    bslot = lambda s_: 16 * s_ - cfg.LB if s_ else 0
    kind = None
    late = {}
    wrapped = False
    for s_ in range(25):
        for n_, (g, w) in enumerate(pl.req[s_]):
            sp = cfg.gsp if len(pl.req[s_]) == 1 else min(cfg.gsp, 2) if s_ else 1
            if bslot(s_) < split < bslot(s_) + 4 * sp * len(pl.req[s_]):
                sp = 1
            slot = bslot(s_) + 4 * sp * n_
            if w and not wrapped:
                wrapped = True
                if slot < split:
                    fill.setdefault(slot, []).append(f"s_add_u32 s{sB0}, s{sB0}, 0x20000\ns_add_u32 s{sMB}, s{sMB}, 0x20000\ns_cmp_eq_u32 s{sIT}, 3")
                    fill[slot].append(f"s_cselect_b32 s{SK + 2}, 0, s{SK + 2}\ns_cselect_b32 s{SM + 2}, 0, s{SM + 2}")
                else:
                    late.setdefault(slot, []).append(f"s_add_u32 s{sB0}, s{sB0}, 0x20000\ns_add_u32 s{sMB}, s{sMB}, 0x20000")
            assert g >= 16 or w == wrapped
            if w and slot >= split:
                kind = group_request(cfg, pl, late, slot, g, "n", None, sp)
            else:
                kind = group_request(cfg, pl, fill, slot, g, "n" if w else "c", None if slot >= split else kind, sp)
    cyc_kind = kind
    post = item_fill(cfg, ops, fill)
    stubs = []
    sc.out("L_item:")
    st["lin"] = [e for e in st["lin"] if e]
    emit_slots(cfg, sc, ops, fill, post, 0, split, st, stubs, {16: 2})
    sc.out(f"s_cmp_lg_u32 s{sIT}, 3\ns_cbranch_scc1 L_more")
    common, pend = lgkm_pass(sc.out.ins, pend0)
    common, n0 = hazard_pass(common, history=head[-20:], verbose=cfg.dbg == "nops")
    sa = copy.deepcopy(sc)
    sa.out = Prog()
    sa.out("L_warm_more:\ns_setpc_b64 s[40:41]\nL_more:")
    fa = {k: list(v) for k, v in fill.items()}
    for k, v in late.items():
        fa[k] = fa.get(k, []) + v
    for p, r0 in ((0, 288), (1, 381)):
        spread(fa, [(lambda s_, i=i, p=p: s_.lds("ds_read_b128", R("v", Q0 + 16 * p + 4 * i, 4), pQ, QBUF + i * 1024)) for i in range(4)], r0, r0 + 3)
    sta = copy.deepcopy(st)
    sta["rebias"] = bias0
    fa.setdefault(390, []).append(f"s_add_u32 s{sIT}, s{sIT}, 1")
    emit_slots(cfg, sa, copy.deepcopy(ops), fa, {}, split, 400, sta, stubs, {25: 1}, nextops=copy.deepcopy(ops[:cfg.LA]))
    assert cfg.noload or [e for e in sta["lin"] if e and e[0] == "n"] == [("n", g) for g in pl.pro for k in range(4)]
    assert sa.bias == bias1 and sta["rd"] == 400 + cfg.LA
    if cfg.trace is True:
        sa.out(f"s_cmp_lg_u32 s{sIT}, {cfg.trace_it + 1}\ns_cbranch_scc1 L_notr\nv_lshlrev_b32 v1, 2, v0\ns_lshl_b32 s62, s2, 10\ns_lshl_b32 s63, s{sW}, 8\ns_add_u32 s62, s62, s63\ns_add_u32 s62, s62, {STAMP_BASE}")
        sa.out(f"buffer_store_dword v2, v1, {srd(SWS)}, s62 offen\ns_waitcnt vmcnt(0)\nL_notr:")
    sa.out("s_branch L_item")
    conta, pe = lgkm_pass(sa.out.ins, pend)
    assert pe == pend0[len(pend0) - len(pe):]
    conta, n1 = hazard_pass(conta, history=common[-20:])
    sb = copy.deepcopy(sc)
    sb.out = Prog()
    sb.out("L_last:")
    fb = {k: list(v) for k, v in fill.items()}
    last_fill(cfg, fb)
    emit_slots(cfg, sb, copy.deepcopy(ops), fb, {}, split, 400, copy.deepcopy(st), stubs)
    T = sb.out
    stamp(cfg, T, 3, 0)
    stamp(cfg, T, 4, 0)
    finish_unit(cfg, T, "c", 7, OUTV, sW, sCU, True)
    contb, _ = lgkm_pass(sb.out.ins, pend)
    contb, n2 = hazard_pass(contb, history=common[-20:], verbose=cfg.dbg == "nops")
    st = Prog()
    for tag, p in stubs:
        st(f"L_stub_{tag}:\ns_call_b64 s[40:41], L_rare{p}\ns_branch L_back_{tag}")
    info = dict(nops=(nh, n0, n1, n2), est_item=est_cycles(common + conta))
    return head + common + contb + conta + st.ins + rare_routine(0) + rare_routine(1), info


def kd(name, vg, acc, sg=102):
    return (f".amdhsa_kernel {name}\n  .amdhsa_next_free_vgpr {vg}\n  .amdhsa_next_free_sgpr {sg}\n  .amdhsa_accum_offset {acc}\n"
            "  .amdhsa_group_segment_fixed_size 0\n  .amdhsa_kernarg_size 104\n  .amdhsa_user_sgpr_count 2\n"
            "  .amdhsa_user_sgpr_kernarg_segment_ptr 1\n  .amdhsa_system_sgpr_workgroup_id_x 1\n.end_amdhsa_kernel\n")


def generate(cfg):
    pl = plan_ring(cfg)
    P = Prog()
    prologue(cfg, P)
    pro, _ = hazard_pass(P.ins)
    comp, info = compute(cfg, pl)
    w3, info3 = wave3(cfg, pl)
    info.update(info3)
    s = HDR + "; @launch grid=(256,1,1) block=(256,1,1) lds=163840\n"
    s += '.amdgcn_target "amdgcn-amd-amdhsa--gfx950"\n.text\n'
    s += f".globl {KNAME}\n.p2align 8\n.type {KNAME},@function\n{KNAME}:\n"
    s += render(pro) + render(comp) + render(w3) + "L_done:\n    s_endpgm\n"
    s += '.section .rodata,"a"\n.p2align 6\n' + kd(KNAME, 512, 256)
    return s, info, pl


if __name__ == "__main__":
    import build
    name = sys.argv[1]
    kw = {}
    for a in sys.argv[2:]:
        k, v = a.split("=", 1)
        try:
            v = eval(v)
        except Exception:
            pass
        kw[k] = v
    s, info, plan = generate(Cfg(**kw))
    open(name, "w").write(s)
    print(info)
    build.build(name)
```

```python
import copy
import math
import struct
import sys

from asmlib import Prog, parse, lgkm_pass, hazard_pass, render, est_cycles, R

KNAME = "concat_heads__mha_block_cached__gqa_block_cached__near_ridge_kernel"
HDR = open("concat_heads__mha_block_cached__gqa_block_cached__near_ridge.s.ref").read().split("; Override launch")[0]


def f2u(x):
    return struct.unpack("<I", struct.pack("<f", x))[0]


class Cfg:
    mapping = "16x8"
    kvf = " nt"
    wf = ""
    xf = ""
    pstf = " sc1"
    gf = " sc1"
    of = ""
    psleep = 2
    LA = 6
    LB = 4
    NB = 8
    colors = "defabcdabcdefabc" + "abc" * 3
    dmax = 99
    dwo = 2
    reqs = None
    park = (14, 16, 18)
    kv0 = (4, 5, 6)
    WR = 6
    raq = 4
    waitgrp = 4
    wqbatch = 1
    balance = True
    front = True
    stamp = False
    pf = True
    dbl = False
    pfx = False
    thr = 1024.0
    quota = (13, 24, 20) + (20,) * 12 + (21, 21) + (15,) * 6 + (3, 0)
    pf_wo_step = 1
    pf_wq_step = 12
    pf_wq0_step = 1
    dbg = None
    nobar = False
    noload = False
    delay = 0
    prof = False
    trace = False
    trace_it = 2
    warm = True
    codesh = 32
    pfc = True
    split = True
    vmcost = 4
    mmcost = 2
    dstamp = False
    tlb = 0
    gsp = 1
    pubs = {}
    half = 0

    def __init__(self, **kw):
        for k, v in kw.items():
            assert hasattr(Cfg, k), k
            setattr(self, k, v)


pK = [4, 5, 6, 7]
pV = [8, 9, 12, 13]
pWq = [10, 11]
pWo = []
vDL, vM3 = 10, 11
vL, vBS = 14, 15
vT = [16, 17, 18, 19]
vM, vM2, vST, vFL = 20, 21, 22, 23
FR0, NEGM, S0, P0, Q0, O0, OUTV, FRX = 24, 48, 64, 96, 112, 144, 208, 240
vL1, vBS1, vMX = NEGM + 8, NEGM + 9, NEGM + 10
OF = S0
pQ = 3
bK, bV, bWo, bM = 248, 249, 250, 251
vD = 252
sW, sB, sH = 3, 4, 5
SK, SV, SWQ, SWO, SX, SWS = 16, 20, 24, 28, 32, 36
sKV, sXo, sWQo, sWOo, sTMP, sIT, sC, sTHR, sT4K, sWSo = 42, 43, 44, 45, 46, 47, 48, 49, 50, 51
sJ, sPAIR, sCU = 52, 53, 59
SDB, SOUT = 68, 72
sTC = 80
sFLG = 89
SWQ2 = 92
SM = 96
sMB, sB0, sWB, sXM, sXM2, sXV = 90, 91, 66, 67, 100, 15
WRB = 24 * 4096
MF = "v_mfma_f32_32x32x16_bf16"
MF16 = "v_mfma_f32_16x16x32_bf16"
KX = (0, 16, 64, 80)
QBUF = 31 * 4096
XRES = 34 * 4096
FLAGBASE = 32 << 20
TORD = (0, 1, 2, 7, 8, 3, 4, 5, 6)


def srd(n):
    return f"s[{n}:{n + 3}]"


def w3_quads():
    return [("wq3", p, t, rb) for p in range(2) for t in TORD for rb in range(2)]


def w3_ops(cfg):
    quads = w3_quads()
    ops = []
    for p in range(2):
        pq = quads[18 * p:18 * p + 18]
        groups = [pq[0:2]] + [[q] for q in pq[2:16]] + [pq[16:18]]
        for grp in groups:
            if len(grp) == 2:
                seqv = [(q, s2, hb) for hb in range(2) for q in grp for s2 in range(2)]
            else:
                seqv = [(grp[0], s2, hb) for s2 in range(2) for hb in range(2)]
            for (q, s2, hb) in seqv:
                ks = 2 * q[2] + q[3]
                for j in range(3):
                    ops.append(dict(q=q, s2=s2, hb=hb, dt=2 * hb + s2, j=j, ks=ks, p=p, first=(q == pq[0]), last=(q == pq[17] and s2 == 1)))
    assert len(ops) == 432 == sum(cfg.quota)
    i = 0
    for s, n in enumerate(cfg.quota):
        for o in ops[i:i + n]:
            o["step"] = s
        i += n
    for i in range(0, 432, 3):
        for d in range(3):
            ops[i + d]["astep"] = ops[i]["step"]
    return ops


class Plan:
    pass


def plan_ring(cfg):
    pl = Plan()
    grp = [[("k", 0, 0), ("k", 0, 1), ("k", 1, 0), ("k", 1, 1)]]
    for u in range(1, 15):
        grp.append([("k", u + 1, 0), ("k", u + 1, 1), ("v", u - 1, 0), ("v", u - 1, 1)])
    grp.append([("v", 14, 0), ("v", 14, 1), ("v", 15, 0), ("v", 15, 1)])
    for t in range(9):
        grp.append([("wo", t, rb) for rb in range(4)])
    ns = len(grp)
    addr = {}
    for s_, g in enumerate(grp):
        for k, q in enumerate(g):
            addr[q] = (ord(cfg.colors[s_]) - 97) * 16384 + k * 4096
    start = []
    xslot = (QBUF, WRB, WRB + 12288) * 2 + (QBUF, XRES, XRES + 12288)
    for t in range(9):
        wq = [("wq", t, rb, cb) for rb in range(2) for cb in range(2)]
        for k, q in enumerate(wq):
            addr[q] = (ord(cfg.colors[16 + t]) - 97) * 16384 + k * 4096
        for rb in range(3):
            addr[("x", t, rb)] = xslot[t] + rb * 4096
        start.append(wq + [("x", t, rb) for rb in range(3)])
    for i, q in enumerate(w3_quads()):
        addr[q] = WRB + (i % cfg.WR) * 4096
    req = {b: [] for b in range(ns)}
    for g in range(ns):
        gap = next(d for d in range(1, ns + 1) if cfg.colors[(g - d) % ns] == cfg.colors[g])
        lead = min(gap - 1, cfg.dwo if g >= 16 else cfg.dmax)
        if cfg.reqs:
            lead = (g - cfg.reqs[g]) % ns
            assert lead <= gap - 1, (g, lead, gap)
        elif g < len(cfg.park):
            assert ns + g - cfg.park[g] <= lead
            lead = ns + g - cfg.park[g]
        assert lead >= 1
        req[(g - lead) % ns].append((g, g - lead < 0))
    for b in req:
        req[b].sort(key=lambda e: (e[0] < 16, e[1]))
    pl.req = req
    pl.pro = [g for b in range(ns) for g, w in req[b] if w]
    pl.sreq = {b: [] for b in range(-1, 9)}
    bb = -1
    for n_, g in enumerate(pl.pro):
        b = next(b for b in range(ns) if (g, True) in req[b])
        bb = max(bb, cfg.kv0[n_] if n_ < len(cfg.kv0) else b - 16)
        assert all(cfg.colors[16 + t] != cfg.colors[g] for t in range(max(bb, 0), 9))
        pl.sreq[bb].append(g)
    sissue = {b: [] for b in range(-1, 9)}
    lastuse = {}
    b = -1
    for t in range(9):
        for q in start[t]:
            lo = addr[q]
            b = max(b, lastuse.get(lo, -9) + 1)
            assert b < t
            sissue[b].append(q)
            lastuse[lo] = t
    pl.slast = lastuse
    pl.grp, pl.start, pl.addr, pl.sissue = grp, start, addr, sissue
    return pl


def prologue(cfg, A):
    A("s_cmp_ge_u32 s2, 256\ns_cbranch_scc1 L_done")
    if cfg.trace == "head":
        A("s_memrealtime s[60:61]\ns_waitcnt lgkmcnt(0)\ns_mov_b32 s101, s60")
    DSTAMP[0] = cfg.dstamp
    A(f"v_lshrrev_b32 v1, 6, v0\nv_and_b32 v0, 63, v0\nv_readfirstlane_b32 s{sW}, v1")
    A("s_and_b32 s6, s2, 4\ns_mul_i32 s6, s6, 10\ns_add_u32 s6, s0, s6\ns_addc_u32 s7, s1, 0")
    A("s_load_dwordx2 s[40:41], s[6:7], 0\ns_load_dwordx4 s[8:11], s[6:7], 8\ns_load_dwordx4 s[12:15], s[6:7], 24")
    A("s_load_dwordx2 s[54:55], s[0:1], 96\ns_load_dwordx4 s[76:79], s[0:1], 80")
    A(f"s_and_b32 s57, s2, 3\ns_lshr_b32 s{sJ}, s2, 3")
    if cfg.mapping == "16x8":
        A(f"s_lshr_b32 s{sB}, s{sJ}, 1\ns_and_b32 s{sH}, s{sJ}, 1\ns_lshl_b32 s{sH}, s{sH}, 2\ns_lshl_b32 s57, s57, 3\ns_add_u32 s{sH}, s{sH}, s57")
    elif cfg.mapping == "8x16":
        A(f"s_and_b32 s56, s57, 1\ns_lshl_b32 s56, s56, 3\ns_lshr_b32 s{sB}, s{sJ}, 2\ns_add_u32 s{sB}, s{sB}, s56")
        A(f"s_lshr_b32 s56, s57, 1\ns_lshl_b32 s56, s56, 4\ns_and_b32 s{sH}, s{sJ}, 3\ns_lshl_b32 s{sH}, s{sH}, 2\ns_add_u32 s{sH}, s{sH}, s56")
    else:
        A(f"s_lshl_b32 s56, s57, 2\ns_lshr_b32 s{sB}, s{sJ}, 3\ns_add_u32 s{sB}, s{sB}, s56\ns_and_b32 s{sH}, s{sJ}, 7\ns_lshl_b32 s{sH}, s{sH}, 2")
    if cfg.half:
        A(f"s_and_b32 s56, s{sB}, {cfg.half}\ns_cmp_lg_u32 s56, 0\ns_cbranch_scc1 L_done")
    A(f"s_lshl_b32 s{sKV}, s{sB}, 22\ns_lshl_b32 s56, s{sH}, 17\ns_add_u32 s{sKV}, s{sKV}, s56")
    A(f"s_mul_i32 s{sXo}, s{sB}, 110592\ns_lshl_b32 s{sWQo}, s{sH}, 8\ns_mul_i32 s{sWOo}, s{sH}, 147456")
    A(f"s_and_b32 s56, s2, 4\ns_lshl_b32 s56, s56, 2\ns_add_u32 s{sPAIR}, s56, s{sB}\ns_lshr_b32 s{sCU}, s{sH}, 2")
    for tau in range(9):
        A(f"s_add_u32 s56, s{sCU}, {1 + tau}\ns_cmp_ge_u32 s56, 9\ns_cselect_b32 s57, 9, 0\ns_sub_u32 s56, s56, s57\ns_lshl_b32 s{sTC + tau}, s56, 7")
    A(f"s_mov_b32 s{sIT}, 0\ns_mov_b32 s{sC}, {hex(f2u(math.log2(math.e) / math.sqrt(128.0)))}")
    A(f"s_cmp_eq_u32 s{sW}, 3\ns_cselect_b32 s56, s{sCU}, s{sW}\ns_mul_i32 s57, s{sPAIR}, 3\ns_add_u32 s56, s56, s57\ns_lshl_b32 s56, s56, 12\ns_add_u32 s{sFLG}, s56, {FLAGBASE}")
    A(f"s_cmp_eq_u32 s{sW}, 3\ns_cbranch_scc1 L_loader")


def descriptors(A):
    A("s_waitcnt lgkmcnt(0)")
    for d, b, n in ((SWQ, 12, 4718592), (SX, 40, 1769472), (SWS, 54, 290848768), (SK, 8, 0x4000000), (SV, 10, 0x4000000),
                    (SWO, 14, 4718592), (SWQ2, 12, 4718592), (SOUT, 76, 3538944), (SDB, 78, 256)):
        A(f"s_mov_b32 s{d}, s{b}\ns_mov_b32 s{d + 1}, s{b + 1}\ns_mov_b32 s{d + 2}, {n}\ns_mov_b32 s{d + 3}, 0x20000")
    if DSTAMP[0]:
        A("s_memrealtime s[60:61]\ns_memtime s[62:63]\ns_waitcnt lgkmcnt(0)\ns_mov_b32 s8, s60\ns_mov_b32 s11, s62")


DSTAMP = [False]


def tlb_warm(cfg, A, dst, tmp):
    n = 0
    if not cfg.tlb:
        return n
    A(f"v_lshlrev_b32 v{tmp}, {cfg.tlb}, v0\ns_mul_i32 s58, s{sPAIR}, 884736")
    for sr, base, span, fl in ((SK, f"s{sKV}", 1 << 19, " nt"), (SV, f"s{sKV}", 1 << 19, " nt"), (SWO, f"s{sWOo}", 589824, " nt"),
                               (SWQ, f"s{sWQo}", 4718592, " nt"), (SWS, "s58", 884736, " nt")):
        lanes = min(64, -(-span >> cfg.tlb))
        A(f"s_mov_b64 exec, {hex((1 << lanes) - 1)}" if lanes <= 32 else f"s_mov_b32 exec_lo, -1\ns_mov_b32 exec_hi, {hex((1 << (lanes - 32)) - 1)}")
        A(f"buffer_load_dword v{dst}, v{tmp}, {srd(sr)}, {base} offen{fl}")
        n += 1
    A("s_mov_b64 exec, -1")
    return n


def code_warm(A, dst, tmp, nsh=32):
    A(f"s_getpc_b64 s[56:57]\nL_pc0:\nv_mov_b32 v{tmp}, (L_done-L_pc0+{128 * nsh - 1})/{128 * nsh}\ns_lshr_b32 s62, s{sJ}, {1 if nsh == 16 else 0}\nv_mul_lo_u32 v{tmp + 1}, v{tmp}, s62\nv_min_u32 v{tmp}, v{tmp}, v0")
    A(f"v_add_u32 v{tmp}, v{tmp}, v{tmp + 1}\nv_lshlrev_b32 v{tmp}, 7, v{tmp}\nv_min_u32 v{tmp}, L_done-L_pc0, v{tmp}\nv_mov_b32 v{tmp + 1}, s57")
    A(f"v_add_co_u32 v{tmp}, vcc, s56, v{tmp}\nv_addc_co_u32 v{tmp + 1}, vcc, 0, v{tmp + 1}, vcc\nglobal_load_dword v{dst}, v[{tmp}:{tmp + 1}], off")


def sample_flags(A):
    A(f"v_and_b32 v1, 7, v0\nv_lshlrev_b32 v1, 2, v1\nbuffer_load_dword v{vFL}, v1, {srd(SWS)}, s{sFLG} offen sc1")


STAMP_BASE = 64 << 20


def stamp(cfg, A, k, who):
    if not cfg.stamp:
        return 0
    A("s_memrealtime s[60:61]\ns_memtime s[64:65]\ns_waitcnt lgkmcnt(0)")
    A(f"s_lshl_b32 s62, s2, 10\ns_lshl_b32 s63, s{sIT}, 7\ns_add_u32 s62, s62, s63\ns_add_u32 s62, s62, {STAMP_BASE + who * 512 + 8 * k}")
    t = 18 if who else 0
    if who:
        A(f"v_mov_b32 v{t}, s60\nv_mov_b32 v{t + 1}, s64\nv_mov_b32 v{t + 2}, 0\nbuffer_store_dwordx2 v[{t}:{t + 1}], v{t + 2}, {srd(SWS)}, s62 offen")
    else:
        A(f"v_mov_b32 v0, s60\nv_mov_b32 v1, s64\nv_mov_b32 v2, 0\nbuffer_store_dwordx2 v[0:1], v2, {srd(SWS)}, s62 offen")
        A("s_nop 1\nv_mbcnt_lo_u32_b32 v0, -1, 0\nv_mbcnt_hi_u32_b32 v0, -1, v0")
    return 1


class Sched:
    def __init__(self, cfg):
        self.cfg = cfg
        self.bias = {}
        self.nbuf = 0
        self.out = Prog()

    def fbuf(self):
        i = self.nbuf % self.cfg.NB
        self.nbuf += 1
        return FR0 + 4 * i if i < 6 else FRX + 4 * (i - 6)

    def lds(self, op, reg, preg, a):
        b = self.bias[preg]
        if not (0 <= a - b <= 65535):
            nb = a & ~4095
            self.out(f"v_add_u32 v{preg}, {(nb - b) & 0xffffffff}, v{preg}")
            self.bias[preg] = b = nb
        if op.startswith("ds_read"):
            self.out(f"{op} {reg}, v{preg} offset:{a - b}")
        else:
            self.out(f"{op} v{preg}, {reg} offset:{a - b}")

    def rebias(self, preg, nb):
        b = self.bias[preg]
        if b != nb:
            self.out(f"v_add_u32 v{preg}, {(nb - b) & 0xffffffff}, v{preg}")
            self.bias[preg] = nb


def spread(fill, ops_list, s0, s1):
    n = s1 - s0 + 1
    cost = [2 if isinstance(o, str) and o.startswith("v_exp") else 1 for o in ops_list]
    tot = sum(cost)
    acc = 0
    for o, c in zip(ops_list, cost):
        k = min(n - 1, int((acc + c / 2) * n / tot))
        fill.setdefault(s0 + k, []).append(o)
        acc += c


def spread_bal(cfg, ops, fill, ops_list, s0, s1):
    if not cfg.balance:
        return spread(fill, ops_list, s0, s1)
    base = []
    for i in range(s0, s1 + 1):
        o = ops[min(i + cfg.LA, len(ops) - 1)]
        base.append(len(o["a"]) + (cfg.mmcost if "mm" in ops[i] else 0) + (1 if i % cfg.waitgrp == 0 else 0) + sum(cfg.vmcost if isinstance(f, tuple) else 1 for f in fill.get(i, [])))
    cost = [2 if isinstance(o, str) and o.startswith("v_exp") else 1 for o in ops_list]
    level = (sum(cost) + sum(base)) / len(base)
    k, room = 0, level - base[0]
    for o, c in zip(ops_list, cost):
        while k < len(base) - 1 and room < c / 2:
            k += 1
            room += level - base[k]
        fill.setdefault(s0 + k, []).append(o)
        room -= c


def k_patterns(A, xform, off=None):
    if xform:
        A("v_lshrrev_b32 v1, 5, v0\nv_and_b32 v2, 31, v0\nv_lshrrev_b32 v16, 1, v2\nv_and_b32 v16, 7, v16\nv_xor_b32 v16, v16, v1")
        A("v_lshlrev_b32 v2, 7, v2")
        if off:
            A(f"v_add_u32 v2, s{off}, v2")
        for j in range(4):
            A(f"v_xor_b32 v17, {2 * j}, v16\nv_lshl_add_u32 v{pK[j]}, v17, 4, v2")
        return
    A("v_bfe_u32 v16, v0, 2, 2\nv_and_b32 v2, 3, v0\nv_lshlrev_b32 v2, 7, v2\nv_lshl_add_u32 v2, v16, 10, v2")
    A("v_bfe_u32 v16, v0, 2, 1\nv_and_b32 v17, 2, v0\nv_or_b32 v16, v16, v17\nv_bfe_u32 v17, v0, 3, 1\nv_lshl_or_b32 v16, v17, 2, v16")
    A("v_bfe_u32 v17, v0, 5, 1\nv_xor_b32 v16, v16, v17\nv_bfe_u32 v17, v0, 4, 1\nv_lshlrev_b32 v17, 1, v17\nv_xor_b32 v16, v16, v17")
    A(f"v_lshl_add_u32 v{pK[0]}, v16, 4, v2\nv_xor_b32 v{pK[1]}, 64, v{pK[0]}")


def lane_patterns(A, with_wave_offset):
    k_patterns(A, True, sT4K if with_wave_offset else None)
    A("v_lshrrev_b32 v2, 2, v0\nv_and_b32 v2, 3, v2\nv_lshrrev_b32 v3, 1, v2\nv_lshlrev_b32 v3, 6, v3")
    A("v_lshrrev_b32 v16, 4, v0\nv_and_b32 v16, 1, v16\nv_and_b32 v17, 1, v0\nv_lshrrev_b32 v18, 1, v0\nv_and_b32 v18, 1, v18")
    A("v_lshl_add_u32 v19, v1, 2, v2\nv_lshlrev_b32 v19, 7, v19\nv_lshl_add_u32 v20, v1, 3, v2\nv_lshlrev_b32 v20, 7, v20")
    A("v_lshlrev_b32 v21, 10, v16\nv_lshl_add_u32 v21, v1, 11, v21\nv_lshl_add_u32 v21, v2, 7, v21\nv_lshl_add_u32 v21, v17, 3, v21")
    A(f"v_lshl_add_u32 v21, v18, 4, v21\nv_lshl_add_u32 v21, v16, 5, v21\nv_add_u32 v{pV[0]}, v21, v3")
    for j in range(1, 4):
        A(f"v_xor_b32 v{pV[j]}, {32 * j}, v{pV[0]}")
    A("v_xor_b32 v21, v16, v1\nv_lshlrev_b32 v21, 5, v21\nv_lshl_add_u32 v21, v17, 4, v21\nv_lshl_add_u32 v21, v18, 3, v21\nv_add_u32 v21, v21, v20")
    A(f"v_add_u32 v{pWq[0]}, v21, v3\nv_xor_b32 v{pWq[1]}, 64, v{pWq[0]}")


def wo_shift(A):
    A(f"v_lshrrev_b32 v16, 4, v0\nv_lshlrev_b32 v16, 9, v16\nv_sub_u32 v{vDL}, 0, v16")


def kv_offsets(A, dk, dv):
    A("v_lshrrev_b32 v1, 3, v0\nv_and_b32 v1, 3, v1\nv_and_b32 v2, 7, v0\nv_lshrrev_b32 v16, 5, v0\nv_lshlrev_b32 v16, 7, v16\nv_lshl_add_u32 v16, v1, 8, v16")
    A(f"v_and_b32 v1, 2, v1\nv_xor_b32 v17, v1, v2\nv_lshl_add_u32 v{dk}, v17, 4, v16")
    A(f"v_lshlrev_b32 v1, 1, v1\nv_xor_b32 v17, v1, v2\nv_lshl_add_u32 v{dv}, v17, 4, v16")


def finish_unit(cfg, A, tag, nsrc, acc, w_sreg, t_sreg, publish, G=32):
    A("v_and_b32 v10, 7, v0\nv_lshlrev_b32 v1, 2, v10\nv_lshlrev_b32 v6, 4, v0")
    A(f"buffer_load_dword v2, v1, {srd(SWS)}, s{sFLG} offen sc1")
    A(f"s_mul_i32 s56, s{sPAIR}, 884736\ns_mul_i32 s57, s{t_sreg}, 3\ns_add_u32 s57, s57, s{w_sreg}\ns_lshl_b32 s57, s57, 15\ns_add_u32 s56, s56, s57")
    A(f"s_mul_i32 s60, s{sB}, 96\ns_lshl_b32 s58, s{w_sreg}, 5\ns_add_u32 s60, s60, s58\ns_mul_i32 s60, s60, 2304\ns_lshl_b32 s58, s{t_sreg}, 7\ns_add_u32 s60, s60, s58")
    A("s_and_b32 s58, s2, 4\ns_mul_i32 s58, s58, 288\ns_add_u32 s60, s60, s58")
    A("v_and_b32 v7, 15, v0\nv_mul_u32_u24 v7, 2304, v7\nv_lshrrev_b32 v3, 5, v0\nv_lshl_add_u32 v7, v3, 4, v7\nv_bfe_u32 v3, v0, 4, 1\nv_lshl_add_u32 v7, v3, 5, v7")
    A(f"v_sub_u32 v10, s{t_sreg}, v10\nv_add_u32 v3, 9, v10\nv_cmp_gt_i32 vcc, 1, v10\nv_cndmask_b32 v10, v10, v3, vcc")
    A(f"s_mov_b32 s62, {((1 << nsrc) - 1) << 1}\ns_mov_b32 s58, 0\ns_mov_b32 s64, {nsrc}")
    if nsrc == 8:
        for k in range(32):
            A(f"v_mov_b32 v{acc + k}, 0")
    A("v_and_b32 v4, 15, v0\nv_lshrrev_b32 v5, 4, v0\nv_lshlrev_b32 v5, 2, v5\nv_sub_u32 v4, v4, v5\nv_mov_b32 v8, 0x3f80\nv_mov_b32 v9, 0x3f800000")
    for i in range(2):
        A(f"v_cmp_eq_u32 vcc, {2 * i}, v4\nv_cmp_eq_u32 s[66:67], {2 * i + 1}, v4\nv_mov_b32 v5, 0\nv_cndmask_b32 v5, v5, v8, vcc\nv_cndmask_b32 v{24 + i}, v5, v9, s[66:67]")
    A("v_mov_b32 v26, 0\nv_mov_b32 v27, 0\nv_mov_b32 v28, v24\nv_mov_b32 v29, v25")
    if publish:
        A(f"v_add_u32 v3, 8, v{vFL}\ns_lshl_b32 s66, 1, s{sCU}\ns_mov_b32 s67, 0\ns_waitcnt vmcnt(0)\ns_mov_b64 exec, s[66:67]")
        A(f"buffer_store_dword v3, v1, {srd(SWS)}, s{sFLG} offen sc1\ns_mov_b64 exec, -1\ns_branch L_chk{tag}")
    A(f"L_poll{tag}:\ns_waitcnt vmcnt(0)\nL_chk{tag}:\nv_sub_u32 v3, v2, v{vFL}\nv_cmp_ge_u32 vcc, v3, v10")
    A(f"s_and_b32 s63, vcc_lo, 0xffff\ns_lshr_b32 s63, s63, s{sCU}\ns_and_b32 s63, s63, s62\ns_cbranch_scc1 L_some{tag}")
    A(f"s_add_u32 s58, s58, 1\ns_cmp_gt_u32 s58, 0x100000\ns_cbranch_scc1 L_out{tag}\ns_sleep {cfg.psleep}")
    A(f"buffer_load_dword v2, v1, {srd(SWS)}, s{sFLG} offen sc1\ns_branch L_poll{tag}\nL_some{tag}:")
    for i in range(nsrc, 0, -1):
        A(f"s_bitcmp1_b32 s63, {i}\ns_cbranch_scc0 L_nl{tag}{i}")
        A(f"s_add_u32 s57, s{sCU}, {i}\ns_and_b32 s57, s57, 7\ns_lshl_b32 s57, s57, 12\ns_add_u32 s57, s57, s56")
        for p in range(4):
            A(f"buffer_load_dwordx4 {R('v', G + 16 * (i - 1) + 4 * p, 4)}, v6, {srd(SWS)}, s57 offen offset:{1024 * p}{cfg.gf}")
        A(f"L_nl{tag}{i}:")
    A(f"buffer_load_dword v2, v1, {srd(SWS)}, s{sFLG} offen sc1\ns_andn2_b32 s62, s62, s63\ns_waitcnt vmcnt(1)")
    for i in range(nsrc, 0, -1):
        A(f"s_cmp_lg_u32 s64, {i}\ns_cbranch_scc1 L_na{tag}{i}\ns_bitcmp1_b32 s62, {i}\ns_cbranch_scc1 L_poll{tag}")
        for u in range(2):
            for p in range(4):
                d = R("v", acc + 16 * (p >> 1) + 4 * (p & 1) + 8 * u, 4)
                A(f"{MF16} {d}, {R('v', 24 + 2 * u, 4)}, {R('v', G + 16 * (i - 1) + 4 * p, 4)}, {d}")
        A(f"s_mov_b32 s64, {i - 1}\nL_na{tag}{i}:")
    A(f"L_out{tag}:\ns_nop 15")
    for p in range(4):
        for k in range(4):
            r = acc + 16 * (p >> 1) + 4 * (p & 1) + 8 * (k >> 1) + 2 * (k & 1)
            A(f"v_cvt_pk_bf16_f32 v{8 + 4 * p + k}, v{r}, v{r + 1}")
    A(f"s_add_u32 s57, s60, {16 * 2304}")
    for p in range(4):
        A(f"v_permlane16_swap_b32 v{8 + 4 * p}, v{10 + 4 * p}\nv_permlane16_swap_b32 v{9 + 4 * p}, v{11 + 4 * p}")
        A(f"buffer_store_dwordx4 {R('v', 8 + 4 * p, 4)}, v7, {srd(SOUT)}, s{57 if p & 1 else 60} offen offset:{64 * (p >> 1)}{cfg.of}")
    if cfg.stamp and publish:
        A("s_waitcnt vmcnt(0)")
        stamp(cfg, A, 5, 0)
    if cfg.dstamp and publish:
        A(f"s_waitcnt vmcnt(0)\ns_and_b32 s56, s2, 0xf3\ns_or_b32 s56, s56, s{sW}\ns_cmp_lg_u32 s56, 0\ns_cbranch_scc1 L_nods{tag}")
        A("s_memrealtime s[60:61]\ns_memtime s[62:63]\ns_waitcnt lgkmcnt(0)\ns_sub_u32 s9, s9, s8\ns_sub_u32 s10, s10, s8\ns_sub_u32 s60, s60, s8\ns_sub_u32 s62, s62, s11")
        A(f"v_mov_b32 v4, s9\nv_mov_b32 v5, s10\nv_mov_b32 v6, s60\nv_mov_b32 v7, s62\ns_lshl_b32 s56, s2, 2\nv_mov_b32 v8, s56\ns_mov_b64 exec, 1")
        A(f"buffer_store_dwordx4 v[4:7], v8, {srd(SDB)}, 0 offen\nL_nods{tag}:")
    A("s_endpgm")


def last_fill(cfg, fb):
    for t in range(1, 9):
        s0 = 256 + 16 * t
        if t in cfg.pubs:
            fb.setdefault(s0 + 2, []).append({"pub": cfg.pubs[t]})
        spread(fb, store_block(cfg, 2 * t - 2, Q0, P0) + store_block(cfg, 2 * t - 1, Q0 + 16, P0 + 8), s0 + 3, s0 + 15)
    fb.setdefault(274, []).append(f"v_and_b32 v1, 7, v0\nv_lshlrev_b32 v1, 2, v1\ns_lshl_b32 s64, 1, s{sCU}\ns_mov_b32 s65, 0")


vK, vV, vWq, vWo, vX = 24, 28, 32, 36, 176
W3A = 40
W3B = 52
W3T = W3B
W3X = 76
W3ACC = 160
vTQ, vTO, vTX, vDUM = 12, 13, 14, 15
pQ3 = 22
pX3, pW3 = [4, 5], [6, 7, 8, 9]


def xreg(ks, j):
    i = ks * 6 + j
    return R("a", 4 * i, 4) if i < 64 else R("v", W3X + 4 * (i - 64), 4)


def wave3(cfg, pl):
    addr = pl.addr
    sc = Sched(cfg)
    A = sc.out
    A("L_loader:")
    if cfg.prof:
        A("s_mov_b32 s96, 0\ns_mov_b32 s97, 0\ns_mov_b32 s98, 0\ns_mov_b32 s99, 0")
    A("v_lshrrev_b32 v1, 4, v0\nv_and_b32 v2, 15, v0\nv_lshrrev_b32 v16, 1, v2\nv_xor_b32 v16, v16, v1\nv_lshlrev_b32 v2, 7, v2")
    A(f"v_lshl_add_u32 v{pX3[0]}, v16, 4, v2\nv_xor_b32 v{pX3[1]}, 64, v{pX3[0]}")
    A("v_lshrrev_b32 v2, 2, v0\nv_and_b32 v2, 3, v2\nv_lshl_add_u32 v16, v1, 3, v2\nv_lshlrev_b32 v16, 7, v16\nv_lshrrev_b32 v2, 1, v2\nv_lshl_add_u32 v16, v2, 6, v16")
    A(f"v_and_b32 v2, 1, v1\nv_lshl_add_u32 v16, v2, 5, v16\nv_and_b32 v2, 3, v0\nv_lshl_add_u32 v{pW3[0]}, v2, 3, v16")
    for j in range(1, 4):
        A(f"v_xor_b32 v{pW3[j]}, {32 * j}, v{pW3[0]}")
    A(f"v_lshlrev_b32 v{pQ3}, 4, v0")
    for p in pX3 + pW3 + [pQ3]:
        sc.bias[p] = 0
    A("v_lshrrev_b32 v1, 3, v0\nv_and_b32 v2, 7, v0\nv_lshrrev_b32 v3, 4, v0")
    A("v_and_b32 v16, 1, v3\nv_lshlrev_b32 v16, 2, v16\nv_xor_b32 v16, v16, v2\nv_lshlrev_b32 v16, 4, v16")
    A("v_lshlrev_b32 v18, 8, v1\nv_lshlrev_b32 v19, 13, v1\nv_mul_u32_u24 v20, 1152, v1")
    for g in range(4):
        A(f"v_add_u32 v17, {4 * g}, v3\nv_and_b32 v17, 7, v17\nv_xor_b32 v17, v17, v2\nv_lshlrev_b32 v17, 4, v17")
        A(f"v_add_u32 v17, {g * (9216 - 1024)}, v17\nv_add_u32 v{vX + g}, v17, v20")
        A(f"v_xor_b32 v17, {32 * (g & 1)}, v16\nv_add_u32 v17, {g * (65536 - 1024)}, v17\nv_add_u32 v{vWq + g}, v17, v19")
        A(f"v_lshrrev_b32 v21, 5, v0\nv_lshlrev_b32 v21, 5, v21\nv_xor_b32 v21, v21, v16\nv_add_u32 v17, {g * (9216 - 1024)}, v21\nv_add_u32 v{vWo + g}, v17, v20")
    kv_offsets(A, vK, vV)
    for g in range(1, 4):
        A(f"v_xor_b32 v{vK + g}, {KX[g]}, v{vK}\nv_xor_b32 v{vV + g}, {32 * (g & 1)}, v{vV}")
    nsh = {"16x8": 16, "8x16": 8, "4x32": 4}[cfg.mapping]
    xsh = 32 // nsh
    rows = 576 // nsh
    A(f"s_and_b32 s56, s{sB}, {nsh - 1}\nv_mov_b32 v21, 0x7fffff00\nv_cmp_gt_u32 vcc, 36, v0")
    A(f"v_lshrrev_b32 v{vTQ}, 1, v0\nv_lshlrev_b32 v{vTQ}, 13, v{vTQ}\nv_and_b32 v17, 1, v0\nv_lshlrev_b32 v17, 7, v17\nv_add_u32 v{vTQ}, v{vTQ}, v17")
    A(f"s_mul_i32 s57, s56, {rows * 8192}\nv_add_u32 v{vTQ}, s57, v{vTQ}\nv_cndmask_b32 v{vTQ}, v21, v{vTQ}, vcc")
    A(f"v_lshlrev_b32 v{vTO}, 7, v0\ns_mul_i32 s57, s56, {rows * 256}\nv_add_u32 v{vTO}, s57, v{vTO}\nv_cndmask_b32 v{vTO}, v21, v{vTO}, vcc")
    A(f"v_cmp_gt_u32 vcc, 54, v0\nv_lshlrev_b32 v{vTX}, 7, v0\ns_and_b32 s57, s{sCU}, {xsh - 1}\ns_mul_i32 s57, s57, {110592 // xsh}\nv_add_u32 v{vTX}, s57, v{vTX}")
    A(f"v_cndmask_b32 v{vTX}, v21, v{vTX}, vcc")

    def touch_ops(vreg, srd_, base, add, step, nl=rows * 2, per=36):
        l = []
        if not cfg.pf:
            return l
        for i in range(nl // per):
            l.append(f"s_add_u32 s{sTMP}, s{base}, {i * per * step + add}")
            for fl in ((" nt", "") if cfg.dbl else ("",)):
                l.append(("vm", f"buffer_load_dword v{vDUM}, v{vreg}, {srd(srd_)}, s{sTMP} offen{fl}"))
        return l

    def quad_ops(q, w=False):
        k = q[0]
        pre = []
        if k == "k":
            off, base, v, sr, fl = q[1] * 8192 + q[2] * 4096, sKV, vK, SK, cfg.kvf
        elif k == "v":
            off, base, v, sr, fl = q[1] * 8192 + q[2] * 4096, sKV, vV, SV, cfg.kvf
        elif k == "wq":
            off, base, v, sr, fl = (q[1] * 64 + q[2] * 32) * 8192 + q[3] * 128, sWQo, vWq, SWQ, cfg.wf
        elif k == "wq3":
            off, base, v, sr, fl = (q[2] * 64 + q[3] * 32) * 8192 + q[1] * 128 + 256, sWQo, vWq, (SWQ2 if w else SWQ), cfg.wf
        elif k == "x":
            off, base, v, sr, fl = q[2] * 32 * 1152 + q[1] * 128, sXo, vX, SX, cfg.xf
        else:
            pre = [f"s_add_u32 s{sTMP}, s{sWOo}, s{sTC + q[1]}"]
            off, base, v, sr, fl = q[2] * 32 * 1152, sTMP, vWo, SWO, cfg.wf
        l = pre + [f"s_mov_b32 m0, {addr[q]}", f"s_add_u32 s{sTMP}, s{base}, {off}"]
        for g in range(4):
            if not cfg.noload:
                l.append(("vm", f"buffer_load_dwordx4 v{v + g}, {srd(sr)}, s{sTMP} offen offset:{g * 1024}{fl} lds", q, g))
        return l

    lin = []

    def put(sc_, o, gen=0):
        if isinstance(o, tuple):
            sc_.out(o[1])
            lin.append((o[2] if len(o) > 2 else None, gen))
        elif callable(o):
            o(sc_)
        else:
            sc_.out(o)

    def wait_for(sc_, quads, gen):
        if cfg.noload:
            return
        last = max(k for k, e in enumerate(lin) if e[0] in quads and e[1] == gen)
        sc_.out(f"s_waitcnt vmcnt({min(63, len(lin) - 1 - last)})")

    def bar(sc_):
        if not cfg.nobar:
            sc_.out("s_barrier")

    descriptors(A)
    if stamp(cfg, A, 15, 1):
        lin.append((None, 0))
    if cfg.delay:
        A(f"s_and_b32 s56, s{sB}, 1\ns_cmp_eq_u32 s56, 0\ns_cbranch_scc1 L_nodelay")
        for _ in range(cfg.delay):
            A("s_sleep 32")
        A("L_nodelay:")
    for n_, q in enumerate(pl.sissue[-1]):
        for o in quad_ops(q):
            put(sc, o)
        if n_ == 6:
            sample_flags(A)
            lin.append((("flag",), 0))
    bias0 = {p: XRES for p in pX3}
    bias0.update({p: WRB for p in pW3})
    bias0[pQ3] = QBUF
    ops = w3_ops(cfg)
    quads = w3_quads()
    ns = len(pl.grp)

    def conv_tile(p, hb, j):
        l = []
        for e in range(2):
            pk = W3T + 4 + 4 * e
            for x in range(2):
                acc = W3ACC + 4 * (6 * (2 * hb + x) + 2 * j + e)
                for y in range(2):
                    t0 = W3T + 2 * y
                    l += [f"v_mul_f32 v{t0}, s{sC}, v{acc + 2 * y}", f"v_mul_f32 v{t0 + 1}, s{sC}, v{acc + 2 * y + 1}"]
                l += [f"v_cvt_pk_bf16_f32 v{pk + 2 * x + y}, v{W3T + 2 * y}, v{W3T + 2 * y + 1}" for y in range(2)]
            l += ["s_nop 0", f"v_permlane16_swap_b32 v{pk}, v{pk + 2}", f"v_permlane16_swap_b32 v{pk + 1}, v{pk + 3}"]
            l.append(lambda sc_, pk=pk, a=QBUF + (j * 4 + 2 * hb + e) * 1024: sc_.lds("ds_write_b128", R("v", pk, 4), pQ3, a))
        return l

    def period(last, pro):
        nonlocal lin
        sc2 = Sched(cfg)
        sc2.bias = dict(bias0)
        B = sc2.out
        lin = [(q, 0) for q in pro for g in range(4)] if not cfg.noload else []
        myops = [] if last else copy.deepcopy(ops)
        n = len(myops)
        fill = {}
        bpos = {s: (sum(cfg.quota[:s]) if not last else 0) for s in range(ns + 1)}
        enq = {}
        if not last:
            lastidx = {(o["p"], o["hb"], o["j"]): i for i, o in enumerate(ops) if o["last"]}
            for p, hb in ((0, 0), (1, 0), (0, 1)):
                i0 = lastidx[(p, hb, 2)]
                spread(fill, sum((conv_tile(p, hb, j) for j in range(3)), []), i0 + 4, i0 + 12)
            assert lastidx[(0, 1, 2)] + 16 <= bpos[18] and lastidx[(1, 0, 2)] + 4 >= bpos[19]
            firstop = {q: min(i for i, o in enumerate(ops) if o["q"] == q) for q in quads}
            lastop = {q: max(i for i, o in enumerate(ops) if o["q"] == q) - 2 for q in quads}
            seg = lambda i: max(s for s in range(ns) if bpos[s] <= i)
            at = 0
            for k in range(36, 72):
                prev = max(j for j in range(k) if addr[quads[j % 36]] == addr[quads[k % 36]])
                free = lastop[quads[prev % 36]] + 1 + (prev // 36 - 1) * n
                sneed = seg(firstop[quads[k % 36]]) - cfg.raq
                early = bpos[sneed] if sneed >= 0 else bpos[sneed + ns] - n
                at = max(free, early) if k == 36 else max(at, free, early)
                assert at <= firstop[quads[k % 36]] - 5
                enq.setdefault(at % n if at < 0 else at, []).append((quads[k % 36], at < 0))
        st = dict(wrapq=False, wrapg=False, rdA=0, rdB=0, abuf=0, bbuf=0, step=-1)
        queue = []

        def drain(nvm):
            while queue and nvm > 0:
                o, g = queue.pop(0)
                put(sc2, o, g)
                nvm -= isinstance(o, tuple)

        def open_step(s):
            if cfg.trace is True:
                B(f"s_memtime s[60:61]\ns_waitcnt lgkmcnt(0)\nv_writelane_b32 v2, s60, {s}")
            wait_for(sc2, {pl.grp[s][3]}, 0)
            if cfg.trace is True:
                B(f"s_memtime s[60:61]\ns_waitcnt lgkmcnt(0)\nv_writelane_b32 v2, s60, {32 + s}")
            if s in (0, 16):
                if stamp(cfg, B, {0: 1, 16: 2}[s], 1):
                    lin.append((None, 0))
            if last and s == 16:
                B("v_readfirstlane_b32 s57, v17\ns_mov_b32 s58, 0\nL_chk:\ns_cmp_ge_u32 s57, 8\ns_cbranch_scc1 L_chkend")
                B(f"buffer_load_dword v17, v16, {srd(SDB)}, 0 offen offset:{128 if cfg.dstamp else 0} sc1\ns_add_u32 s58, s58, 1\ns_waitcnt vmcnt(0)\nv_readfirstlane_b32 s57, v17")
                B("s_cmp_lt_u32 s58, 0x80000\ns_cbranch_scc1 L_chk\nL_chkend:")
            bar(sc2)
            for g, w in pl.req[s]:
                if w and not st["wrapg"]:
                    st["wrapg"] = True
                    queue.append((f"s_add_u32 s{sKV}, s{sKV}, 0x20000", 0))
                assert g >= 16 or w == st["wrapg"]
                if not (last and w):
                    queue.extend((o, int(w)) for o in quad_ops(pl.grp[g][3]))
            if last and s == 2:
                queue.extend([(f"s_lshl_b32 s56, s{sPAIR}, 2", 0), ("v_mov_b32 v16, s56", 0), (("vm", f"buffer_load_dword v17, v16, {srd(SDB)}, 0 offen offset:{128 if cfg.dstamp else 0} sc1"), 0)])
            if s == cfg.pf_wo_step:
                queue.extend((o, 0) for o in touch_ops(vTO, SWO, sWOo, 0, 128))
            if s == cfg.pf_wq_step and not last:
                queue.append((f"s_cmp_eq_u32 s{sIT}, 2\ns_cselect_b32 s{SWQ2 + 2}, 0, s{SWQ2 + 2}", 0))
                queue.extend((o, 0) for o in touch_ops(vTQ, SWQ2, sWQo, 512, 4096))
            if cfg.warm and s == 9 and not last:
                queue.append(("s_call_b64 s[40:41], L_warm_more", 0))
            if bpos[s + 1] == bpos[s]:
                drain(99)
            st["step"] = s

        for i in range(n):
            while st["step"] + 1 < ns and bpos[st["step"] + 1] <= i:
                open_step(st["step"] + 1)
            for q, w in enq.get(i, []):
                if w and not st["wrapq"]:
                    st["wrapq"] = True
                    queue.append((f"s_add_u32 s{sWQo}, s{sWQo}, 256", 0))
                assert w == st["wrapq"]
                queue.extend((o, int(w)) for o in quad_ops(q, w))
            while st["rdA"] < n and st["rdA"] <= i + 5:
                o = myops[st["rdA"]]
                if st["rdA"] == firstop[o["q"]] and not cfg.noload:
                    while lin.count((o["q"], 0)) < 4:
                        drain(1)
                    wait_for(sc2, {o["q"]}, 0)
                fb = W3A + 4 * (st["abuf"] % 3)
                st["abuf"] += 1
                sc2.lds("ds_read_b64_tr_b16", R("v", fb, 2), pW3[o["dt"]], addr[o["q"]])
                sc2.lds("ds_read_b64_tr_b16", R("v", fb + 2, 2), pW3[o["dt"]], addr[o["q"]] + 4 * 128)
                for d in range(3):
                    myops[st["rdA"] + d]["areg"] = fb
                st["rdA"] += 3
            while st["rdB"] < n and st["rdB"] <= i + 2:
                o = myops[st["rdB"]]
                if o["ks"] >= 14 and st["rdB"] - o["j"] == firstop[o["q"]]:
                    for e in range(2):
                        qt = 2 * o["j"] + e
                        sc2.lds("ds_read_b128", R("v", W3B + 4 * qt, 4), pX3[o["ks"] & 1], XRES + ((o["ks"] >> 1) - 7) * 12288 + qt * 2048)
                st["rdB"] += 1
            o = myops[i]
            fl = fill.get(i, [])
            for e in range(2):
                if e:
                    drain(1)
                for f in (fl[len(fl) // 2:] if e else fl[:len(fl) // 2]):
                    put(sc2, f)
                qt = 2 * o["j"] + e
                d = R("v", W3ACC + 4 * (6 * o["dt"] + qt), 4)
                b = xreg(o["ks"], qt) if o["ks"] < 14 else R("v", W3B + 4 * qt, 4)
                B(f"{MF16} {d}, {R('v', o['areg'], 4)}, {b}, {'0' if o['first'] else d}")
        drain(99)
        if not last:
            for o in sum((conv_tile(1, 1, j) for j in range(3)), []):
                put(sc2, o)
            B("s_waitcnt lgkmcnt(0)")
            assert st["step"] + 1 < ns
        while st["step"] + 1 < ns:
            open_step(st["step"] + 1)
        tailq = [e[0] for e in lin if e[1] == 1][::4]
        if not last:
            B(f"s_add_u32 s{sWOo}, s{sWOo}, 147456")
            for p, b in bias0.items():
                sc2.rebias(p, b)
            if cfg.trace is True:
                B(f"s_cmp_lg_u32 s{sIT}, {cfg.trace_it}\ns_cbranch_scc1 L_notr3\nv_lshlrev_b32 v1, 2, v0\ns_lshl_b32 s62, s2, 10\ns_add_u32 s62, s62, {STAMP_BASE + 768}")
                B(f"buffer_store_dword v2, v1, {srd(SWS)}, s62 offen\ns_waitcnt vmcnt(0)\nL_notr3:")
            B(f"s_add_u32 s{sIT}, s{sIT}, 1\ns_cmp_lt_u32 s{sIT}, 3\ns_cbranch_scc1 L_w3loop")
        body, pe = lgkm_pass(B.ins)
        assert not pe
        return body, tailq

    lin0 = list(lin)
    _, pro = period(False, [pl.grp[g][3] for g in pl.pro] + quads[:cfg.WR])
    loopbody, pro2 = period(False, pro)
    assert pro2 == pro
    lastp, _ = period(True, pro)
    lin = lin0
    if cfg.noload:
        pro = []
    todo = list(pro)
    for t in range(9):
        wait_for(sc, set(pl.start[t]) | ({("flag",)} if t == 0 else set()), 0)
        A("s_waitcnt lgkmcnt(0)")
        bar(sc)
        if t == 0:
            A(f"s_lshl_b32 s56, s{sPAIR}, 2\nv_mov_b32 v16, s56\nv_mov_b32 v17, 1\ns_mov_b64 exec, 1")
            put(sc, ("vm", f"buffer_atomic_add v17, v16, {srd(SDB)}, 0 offen offset:{128 if cfg.dstamp else 0} sc1"))
            A("s_mov_b64 exec, -1")
        if t < 7:
            for s in range(2):
                for j in range(6):
                    sc.lds("ds_read_b128", xreg(2 * t + s, j), pX3[s], addr[("x", t, 0)] + j * 2048)
        if t == cfg.pf_wq0_step:
            for o in touch_ops(vTQ, SWQ, sWQo, 256, 4096):
                put(sc, o)
        for q in pl.sissue[t]:
            for o in quad_ops(q):
                put(sc, o)
        while todo:
            q = todo[0]
            if q[0] == "wq3":
                if pl.slast.get(addr[q], -9) >= t:
                    break
                if any(pl.sissue[b] for b in range(t + 1, 9)):
                    break
            elif not any(pl.grp[g][3] == q for b in range(-1, t + 1) for g in pl.sreq[b]):
                break
            for o in quad_ops(todo.pop(0)):
                put(sc, o)
    assert not todo
    for p, b in bias0.items():
        sc.rebias(p, b)
    A("s_waitcnt lgkmcnt(0)")
    head, pend = lgkm_pass(sc.out.ins)
    loop = [parse("L_w3loop:")] + loopbody
    T = Prog()
    if cfg.prof:
        T(f"v_mov_b32 v16, s96\nv_mov_b32 v17, s97\nv_mov_b32 v18, s98\nv_mov_b32 v19, s99\nv_mov_b32 v20, 0\ns_lshl_b32 s62, s2, 10\ns_add_u32 s62, s62, {STAMP_BASE + 512 + 64}")
        T(f"buffer_store_dwordx4 v[16:19], v20, {srd(SWS)}, s62 offen")
    T(f"s_cmp_ge_u32 s{sCU}, 3\ns_cbranch_scc1 L_done")
    T("s_mov_b32 s61, 8")
    finish_unit(cfg, T, "w3", 8, 192, sCU, 61, False)
    allins, nn = hazard_pass(head + loop + lastp + T.ins, verbose=cfg.dbg == "nops3")
    return allins, dict(w3nops=nn, w3est=est_cycles(loop))


def acc_out(nb):
    return R("a", 16 * nb, 16) if nb < 16 else R("v", OUTV + 16 * (nb - 16), 16)


def q_ops(addr):
    ops = []
    XB = S0
    for t in range(9):
        order = [(s, b) for s in range(4) for b in range(4)] if t < 8 else [(s, b) for b in range(4) for s in range(4)]
        seen = set()
        for (s, b) in order:
            qa = addr[("wq", t, s >> 1, b >> 1)] + (16 * (s & 1)) * 128
            xb = XB + 4 * ((t * 4 + s) % 8)
            o = dict(step=t, a=[("tr", pWq[b & 1], qa), ("tr", pWq[b & 1], qa + 4 * 128)], b=R("v", xb, 4), d=R("v", O0 + 16 * b, 16))
            o["c"] = "0" if (t == 0 and s == 0) else o["d"]
            if s not in seen:
                seen.add(s)
                o["x"] = (xb, pK[s], addr[("x", t, 0)])
            ops.append(o)
    return ops


def item_ops(addr):
    ops = []

    def qk(u, step):
        base = S0 + 16 * (u & 1) if u else O0
        for kt in range(2):
            for ds in range(4):
                mm = []
                for e in range(2):
                    d = R("v", base + 8 * e + 4 * kt, 4)
                    mm.append((d, R("v", Q0 + 8 * ds + 4 * e, 4), d if ds else ("0" if u < 2 else R("v", NEGM + 4 * e, 4))))
                ops.append(dict(step=step, a=[("b128", pK[ds & 1], addr[("k", u, kt)] + (ds >> 1) * 512)], mm=mm))

    def pv(u, step, bmajor=False):
        for dt in range(8):
            va = addr[("v", u, 0)] + (dt >> 2) * 512
            mm = []
            for e in range(2):
                d = R("v", O0 + 8 * dt + 4 * e, 4)
                mm.append((d, R("v", P0 + 8 * (u & 1) + 4 * e, 4), "0" if u == 0 else d))
            ops.append(dict(step=step, a=[("tr", pV[dt & 3], va), ("tr", pV[dt & 3], va + 4096)], mm=mm))
    qk(0, 0)
    qk(1, 0)
    for u in range(1, 15):
        qk(u + 1, u)
        pv(u - 1, u)
    pv(14, 15)
    pv(15, 15, True)
    for t in range(9):
        for b in range(4):
            for nt in range(4):
                wa = addr[("wo", t, b)]
                mm = []
                for e in range(2):
                    r = 32 * t + 8 * nt + 4 * e
                    d = R("a", r, 4) if t < 8 else R("v", OUTV + r - 256, 4)
                    mm.append((d, R("v", OF + 8 * b + 4 * e, 4), d))
                ops.append(dict(step=16 + t, a=[("tr", pV[nt], wa), ("tr", pV[nt], wa + 2048)], mm=mm, alt=(b == 0)))
    ops[256]["pre"] = [f"v_add_u32 v{p}, v{p}, v{vDL}" for p in pV]
    assert len(ops) == 400
    return ops


def softmax_ops(u, first=False):
    S, P = S0 + 16 * (u & 1), P0 + 8 * (u & 1)
    if first:
        S = O0
    l = []
    for k in range(9):
        a, b = vT[2 * (k & 1)], vT[2 * (k & 1) + 1]
        pa, pb = vT[2 * ((k - 1) & 1)], vT[2 * ((k - 1) & 1) + 1]
        bs = vBS if k - 1 < 4 else vBS1
        if k < 8:
            l.append(f"v_exp_f32 v{a}, v{S + 2 * k}")
        if k in (1, 5):
            l.append(f"v_add_f32 v{bs}, v{pa}, v{pb}")
        elif k:
            l.append(f"v_add_f32 v{bs}, v{bs}, v{pa}")
        if k < 8:
            l.append(f"v_exp_f32 v{b}, v{S + 2 * k + 1}")
        if k:
            l.append(f"v_cvt_pk_bf16_f32 v{P + k - 1}, v{pa}, v{pb}")
        if k and k not in (1, 5):
            l.append(f"v_add_f32 v{bs}, v{bs}, v{pb}")
    return l


def across(op, x, y, t, mid=()):
    return [f"v_permlane16_swap_b32 v{x}, v{y}", f"{op} v{x}, v{x}, v{y}", f"v_mov_b32 v{t}, v{x}", f"v_permlane32_swap_b32 v{x}, v{t}",
            f"{op} v{x}, v{x}, v{t}"] + list(mid) + [f"v_mov_b32 v{y}, v{x}", f"v_permlane16_swap_b32 v{x}, v{y}"]


def conv_o(b):
    l = []
    for e, sc_ in ((0, vM), (1, vM3)):
        for x in range(2):
            r = O0 + 8 * (2 * b + x) + 4 * e
            l += [f"v_mul_f32 v{r + i}, v{sc_}, v{r + i}" for i in range(4)]
            l += [f"v_cvt_pk_bf16_f32 v{OF + 8 * b + 4 * e + 2 * x + y}, v{r + 2 * y}, v{r + 2 * y + 1}" for y in range(2)]
    return l


def conv_block(b, scale, dst):
    l = []
    for k in range(8):
        r = O0 + 16 * b + 2 * k
        l.append(f"v_mul_f32 v{r}, {scale}, v{r}")
        l.append(f"v_mul_f32 v{r + 1}, {scale}, v{r + 1}")
        if k:
            l.append(f"v_cvt_pk_bf16_f32 v{dst + 8 * b + k - 1}, v{r - 2}, v{r - 1}")
    l.append(f"v_cvt_pk_bf16_f32 v{dst + 8 * b + 7}, v{O0 + 16 * b + 14}, v{O0 + 16 * b + 15}")
    l += [f"v_permlane16_swap_b32 v{dst + 8 * b + k}, v{dst + 8 * b + 4 + k}" for k in range(4)]
    return l


def rowmax(S):
    l = []
    for k in range(4):
        for m, r in ((vM, S), (vM3, S + 8)):
            l.append(f"v_max3_f32 v{m}, v{r}, v{r + 1}, v{r + 2}" if k == 0 else f"v_max3_f32 v{m}, v{m}, v{r + 1 + 2 * k}, v{r + 2 + 2 * k}" if k < 3
                     else f"v_max_f32 v{m}, v{m}, v{r + 7}")
    return l + across("v_max_f32", vM, vM3, vM2)


def with_subs(S, sm):
    sub = [f"v_sub_f32 v{S + i}, v{S + i}, v{vM3 if i & 8 else vM}" for i in range(16)]
    l, k = sub[:4], 4
    for o in sm:
        l.append(o)
        if o.startswith("v_exp") and k < 16:
            l.append(sub[k])
            k += 1
    return l


def item_fill(cfg, ops, fill):
    post = {}
    chk = [f"v_max_f32 v{vMX}, v{vBS}, v{vBS1}", f"v_cmp_lt_f32 vcc, s{sTHR}, v{vMX}"]
    spread(fill, rowmax(O0) + [f"v_sub_f32 v{NEGM + i}, 0, v{vM3 if i & 4 else vM}" for i in range(8)], 10, 15)
    spread(fill, with_subs(O0, softmax_ops(0, True)) + [f"v_mov_b32 v{vL}, v{vBS}", f"v_mov_b32 v{vL1}, v{vBS1}"], 16, 23)
    spread(fill, with_subs(S0 + 16, softmax_ops(1)) + chk, 24, 31)
    post[31] = 1
    for u in range(2, 15):
        su = 16 * u
        spread_bal(cfg, ops, fill, softmax_ops(u) + chk, su, su + 15)
        post[su + 15] = u
    spread(fill, softmax_ops(15) + chk, 240, 247)
    post[247] = 15
    spread(fill, [f"v_mov_b32 v{vM}, v{vL}", f"v_mov_b32 v{vM3}, v{vL1}"] + across("v_add_f32", vM, vM3, vM2, [f"v_rcp_f32 v{vM}, v{vM}"]), 248, 252)
    spread(fill, conv_o(0), 253, 255)
    spread(fill, conv_o(1), 256, 259)
    spread(fill, conv_o(2), 260, 263)
    spread(fill, conv_o(3), 264, 267)
    return post


def store_block(cfg, nb, tmp, pk):
    l = []
    if not nb & 1:
        l += [f"s_mul_i32 s56, s{sTC + (nb >> 1)}, 768", f"s_add_u32 s56, s56, s{sWSo}"]
    for u in range(2):
        for k in range(8):
            l.append(f"v_accvgpr_read_b32 v{tmp + 8 * u + k}, a{16 * nb + 4 * u + 8 * (k >> 2) + (k & 3)}")
        for k in range(4):
            i = 8 * u + 2 * k
            l.append(f"v_cvt_pk_bf16_f32 v{pk + 4 * u + k}, v{tmp + i}, v{tmp + i + 1}")
        l.append((f"buffer_store_dwordx4 {R('v', pk + 4 * u, 4)}, v{vST}, {srd(SWS)}, s56 offen offset:{((nb & 1) * 2 + u) * 1024}{cfg.pstf}", ("st", nb >> 1)))
    return l


VMCOST = 4


def emit_slots(cfg, sc, ops, fill, post, lo, hi, st, stubs, stamps={}, nextops=None):
    LA = cfg.LA
    first = {}
    if nextops:
        ops = ops + [dict(o, step=ops[-1]["step"] + 1) for o in nextops]
    for i, o in enumerate(ops):
        first.setdefault(o["step"], i)
    for i in range(lo, hi):
        nx = st["step"] + 1
        if nextops and nx == ops[-1]["step"] and i >= first[nx] - cfg.LB:
            st["tag"], st["alias"] = "n", 0
            for p, b in st["rebias"].items():
                sc.rebias(p, b)
            for p in pV:
                sc.out(f"v_sub_u32 v{p}, v{p}, v{vDL}")
        if nx in first and i >= first[nx] - (cfg.LB if nx else LA):
            if cfg.dstamp and nx in stamps and stamps[nx] in (1, 2) and (stamps[nx] == 2 or nx == 0):
                sc.out(f"s_memrealtime s[60:61]\ns_waitcnt lgkmcnt(0)\ns_mov_b32 s{8 + stamps[nx]}, s60")
            if nx in stamps and stamp(cfg, sc.out, stamps[nx], 0):
                st["lin"].append(None)
            w = "lgkmcnt(0)"
            key = (st["tag"], st.get("alias", nx))
            if key in st["lin"]:
                last = max(k for k, e in enumerate(st["lin"]) if e == key)
                w = f"vmcnt({len(st['lin']) - 1 - last}) " + w
            if cfg.trace == "head" and len(ops) in (144, 432):
                sc.out(f"s_memrealtime s[60:61]\ns_waitcnt lgkmcnt(0)\nv_writelane_b32 v{NEGM + 1}, s60, {nx}")
            if cfg.trace is True and len(ops) in (400, 400 + cfg.LA) and 0 < nx < 25:
                sc.out("s_memtime s[60:61]\ns_waitcnt lgkmcnt(0)")
                sc.out(f"v_writelane_b32 v2, s60, {nx}")
            if cfg.trace == "head2" and len(ops) == 432:
                sc.out(f"s_memtime s[60:61]\ns_waitcnt lgkmcnt(0)\nv_writelane_b32 v{NEGM + 1}, s60, {nx}")
            sc.out("s_waitcnt " + w)
            if cfg.trace == "head2" and len(ops) == 432:
                sc.out(f"s_memtime s[60:61]\ns_waitcnt lgkmcnt(0)\nv_writelane_b32 v{NEGM + 1}, s60, {32 + nx}")
            if cfg.trace is True and len(ops) in (400, 400 + cfg.LA) and 0 < nx < 25:
                sc.out("s_memtime s[60:61]\ns_waitcnt lgkmcnt(0)")
                sc.out(f"v_writelane_b32 v2, s60, {32 + nx}")
            if not cfg.nobar:
                sc.out("s_barrier")
            st["step"] = nx
        nrd = 0
        held = []
        while st["rd"] < min(i + LA + 1, len(ops)) and ops[st["rd"]]["step"] <= st["step"]:
            o = ops[st["rd"]]
            nrd += len(o["a"])
            for x in o.get("pre", []):
                sc.out(x)
            if "x" in o:
                sc.lds("ds_read_b128", R("v", o["x"][0], 4), o["x"][1], o["x"][2])
            fb = sc.fbuf()
            o["areg"] = fb
            if o["a"][0][0] == "b128":
                sc.lds("ds_read_b128", R("v", fb, 4), o["a"][0][1], o["a"][0][2])
            else:
                sc.lds("ds_read_b64_tr_b16", R("v", fb, 2), o["a"][0][1], o["a"][0][2])
                if held:
                    held.pop()(sc)
                held.append(lambda s_, fb=fb, o=o: s_.lds("ds_read_b64_tr_b16", R("v", fb + 2, 2), o["a"][1][1], o["a"][1][2]))
            st["rd"] += 1
        if held and not (cfg.split and i >= 0 and "mm" in ops[i] and not (ops[i].get("alt") and st.get("alts") is not None)
                         and not ops[min(st["rd"], len(ops) - 1)].get("pre")):
            held.pop()(sc)

        def emit_fill(fl):
            for f in fl:
                if callable(f):
                    f(sc)
                elif isinstance(f, dict):
                    last = max(k for k, e in enumerate(st["lin"]) if e == ("st", f["pub"] - 1))
                    n_ = sum(1 for e in st["lin"][last + 1:] if e and e[0] == "st")
                    sc.out(f"v_add_u32 v2, {f['pub']}, v{vFL}\ns_waitcnt vmcnt({n_})\ns_mov_b64 exec, s[64:65]")
                    sc.out(f"buffer_store_dword v2, v1, {srd(SWS)}, s{sFLG} offen sc1\ns_mov_b64 exec, -1")
                    st["lin"].append(("st", -1))
                elif isinstance(f, tuple):
                    sc.out(f[0])
                    st["lin"].append(f[1])
                else:
                    sc.out(f)
                    if f.startswith("buffer_"):
                        st["lin"].append(None)
        fl = fill.get(i, [])
        if i < 0:
            emit_fill(fl)
            continue
        o = ops[i]
        mm = o.get("mm") or [(o["d"], o["b"], o["c"])]
        op = MF16 if "mm" in o else MF
        ms = [parse(f"{op} {d}, {R('v', o['areg'], 4)}, {b}, {c}") for d, b, c in mm]
        if i % cfg.waitgrp == 0:
            for d in range(1, cfg.waitgrp):
                if i + d < st["rd"]:
                    ms[0].rd = set(ms[0].rd) | {("v", ops[i + d]["areg"] + k) for k in range(4)}
        if o.get("alt") and st.get("alts") is not None:
            emit_fill(fl)
            c = parse(f"s_cmp_eq_u32 s{sIT}, 0")
            c.rd = set(c.rd) | {r for m in ms for r in m.rd if r[0] == "v"}
            n_ = len(st["alts"])
            sc.out.ins.append(c)
            sc.out(f"s_cbranch_scc1 L_alt{n_}")
            sc.out.ins.extend(ms)
            sc.out(f"s_branch L_altb{n_}\nL_alt{n_}:")
            for d, b, c in mm:
                z = parse(f"{op} {d}, {R('v', o['areg'], 4)}, {b}, 0")
                z.kind = "altmfma"
                sc.out.ins.append(z)
            sc.out(f"L_altb{n_}:")
            st["alts"].append(n_)
            continue
        if len(ms) == 1:
            emit_fill(fl)
            sc.out.ins.append(ms[0])
        else:
            cost = lambda f: cfg.vmcost if isinstance(f, tuple) else 1 if not isinstance(f, str) else (2 if f.startswith("v_exp") else f.count("\n") + 1)
            need0 = max([k + 1 for k, f in enumerate(fl) if isinstance(f, str) and "\n" not in f and parse(f).wr & ms[0].rd] + [0])
            c0 = nrd - len(held) + (i % cfg.waitgrp == 0) + (3 if i - 1 in post else 0)
            k0 = min(range(need0, len(fl) + 1), key=lambda k: abs(c0 + sum(map(cost, fl[:k])) - len(held) - sum(map(cost, fl[k:]))))
            emit_fill(fl[:k0])
            sc.out.ins.append(ms[0])
            emit_fill(held + fl[k0:])
            sc.out.ins.append(ms[1])
        if i in post:
            u = post[i]
            tag = f"{u}_{len(stubs)}"
            sc.out(f"s_cbranch_vccnz L_stub_{tag}\nL_back_{tag}:")
            sc.out(f"v_add_f32 v{vL}, v{vL}, v{vBS}\nv_add_f32 v{vL1}, v{vL1}, v{vBS1}")
            stubs.append((tag, u & 1))


def group_request(cfg, pl, fill, slot, g, tag, kind, sp=1):
    l = []
    want = "k" if g == 0 else "m" if g < 15 else "v" if g == 15 else "w"
    if want != kind:
        l += {"k": [f"v_xor_b32 v{vD + k}, {KX[k]}, v{bK}" for k in range(4)],
              "m": [f"v_mov_b32 v{vD}, v{bM}", f"v_xor_b32 v{vD + 1}, s{sXM}, v{bM}", f"v_xor_b32 v{vD + 2}, s{sXM2}, v{bM}", f"v_xor_b32 v{vD + 3}, s{sXM2}, v{vD + 1}"],
              "v": [f"v_xor_b32 v{vD + k}, {32 * (k & 1)}, v{bV}" for k in range(4)],
              "w": [f"v_add_u32 v{vD + k}, {8192 * k}, v{bWo}" for k in range(4)]}[want]
    so, sr, fl = {"k": (f"s_add_u32 s{sTMP}, s{sB0}, 0", SK, cfg.kvf), "m": (f"s_add_u32 s{sTMP}, s{sMB}, {g * 8192}", SM, cfg.kvf),
                  "v": (f"s_add_u32 s{sTMP}, s{sB0}, {14 * 8192}", SV, cfg.kvf),
                  "w": (f"s_add_u32 s{sTMP}, s{sWB}, s{sTC + max(g - 16, 0)}", SWO, cfg.wf)}[want]
    l += [f"s_add_u32 m0, s{sT4K}, {pl.addr[pl.grp[g][0]]}", so]
    fill.setdefault(slot, []).extend(l)
    for k in range(4):
        if not cfg.noload:
            fill.setdefault(slot + k * sp, []).append((f"buffer_load_dwordx4 v{vD + k}, {srd(sr)}, s{sTMP} offen offset:{k * 1024}{fl} lds", (tag, g)))
    if g == 24:
        fill.setdefault(slot + 3 * sp, []).append(f"s_add_u32 s{sWB}, s{sWB}, 147456")
    return want


def rare_routine(p):
    A = Prog()
    S, Sn = S0 + 16 * p, S0 + 16 * (1 - p)
    A(f"L_rare{p}:\ns_nop 15\ns_nop 15")
    A("\n".join(rowmax(S)))
    A(f"v_max_f32 v{vM}, 0, v{vM}\nv_max_f32 v{vM3}, 0, v{vM3}")
    for i in range(8):
        A(f"v_sub_f32 v{NEGM + i}, v{NEGM + i}, v{vM3 if i & 4 else vM}")
    for i in range(16):
        m = vM3 if i & 8 else vM
        A(f"v_sub_f32 v{S + i}, v{S + i}, v{m}\nv_sub_f32 v{Sn + i}, v{Sn + i}, v{m}")
    A(f"v_exp_f32 v{vM}, -v{vM}\nv_exp_f32 v{vM3}, -v{vM3}\ns_nop 0\nv_mul_f32 v{vL}, v{vL}, v{vM}\nv_mul_f32 v{vL1}, v{vL1}, v{vM3}")
    for i in range(64):
        A(f"v_mul_f32 v{O0 + i}, v{O0 + i}, v{vM3 if i & 4 else vM}")
    A("\n".join(softmax_ops(p)))
    A("s_nop 3\ns_setpc_b64 s[40:41]")
    ins, _ = hazard_pass(A.ins)
    return ins


def compute(cfg, pl):
    addr = pl.addr
    sc = Sched(cfg)
    A = sc.out
    A(f"s_lshl_b32 s{sT4K}, s{sW}, 12\ns_mov_b32 s{sTHR}, {hex(f2u(cfg.thr))}")
    nsh = {"16x8": 16, "8x16": 8, "4x32": 4}[cfg.mapping]
    xr = 96 // (32 // nsh)
    A(f"v_mov_b32 v21, 0x7fffff00\ns_and_b32 s56, s{sB}, {nsh - 1}\ns_mul_i32 s56, s56, {(576 // nsh) * 8192}\ns_add_u32 s56, s56, s{sWQo}")
    A("v_lshrrev_b32 v16, 1, v0\nv_lshlrev_b32 v16, 13, v16\nv_and_b32 v17, 1, v0\nv_lshl_add_u32 v16, v17, 7, v16\nv_cmp_gt_u32 vcc, 36, v0")
    A(f"s_and_b32 s57, s{sCU}, {32 // nsh - 1}\ns_mul_i32 s57, s57, {xr * 1152}\ns_add_u32 s57, s57, s{sXo}\nv_cndmask_b32 v16, v21, v16, vcc")
    A(f"v_mul_u32_u24 v17, 1152, v0\nv_cmp_gt_u32 vcc, {xr}, v0\ns_and_b32 s58, s{sW}, 2\ns_lshl_b32 s58, s58, 6\ns_add_u32 s57, s57, s58\nv_cndmask_b32 v17, v21, v17, vcc")
    if cfg.pfc:
        A(f"s_cmp_lg_u32 s{sW}, 2\ns_cbranch_scc1 L_nopfc\ns_mov_b32 s60, s56\ns_mov_b32 s61, s57")
        code_warm(A, NEGM + 2, NEGM + 4, cfg.codesh)
        A("s_mov_b32 s56, s60\ns_mov_b32 s57, s61\nL_nopfc:")
    descriptors(A)
    ntouch = 0
    if cfg.pf:
        A(f"s_cmp_lg_u32 s{sW}, 0\ns_cbranch_scc1 L_tx")
        for i in range(1152 // nsh // 36):
            A(f"buffer_load_dword v{NEGM}, v16, {srd(SWQ)}, s56 offen\ns_add_u32 s56, s56, {18 * 8192}")
        A("s_branch L_tdone\nL_tx:")
        if cfg.pfx:
            for i in range(5):
                A(f"buffer_load_dword v{NEGM}, v17, {srd(SX)}, s57 offen offset:{256 * i}")
        A("L_tdone:")
    if cfg.tlb:
        A(f"s_cmp_lg_u32 s{sW}, 2\ns_cbranch_scc1 L_notlb")
        tlb_warm(cfg, A, NEGM, 16)
        A("L_notlb:")
    sample_flags(A)
    lane_patterns(A, True)
    A(f"v_lshlrev_b32 v{vST}, 4, v0\nv_add_u32 v{pQ}, s{sT4K}, v{vST}")
    A(f"s_mul_i32 s56, s{sPAIR}, 884736\ns_lshl_b32 s57, s{sW}, 15\ns_add_u32 s56, s56, s57\ns_lshl_b32 s57, s{sCU}, 12\ns_add_u32 s{sWSo}, s56, s57")
    A("v_lshrrev_b32 v1, 3, v0\nv_and_b32 v2, 7, v0\nv_lshrrev_b32 v16, 4, v0\nv_lshlrev_b32 v18, 8, v1\nv_mul_u32_u24 v19, 1152, v1")
    A(f"v_and_b32 v17, 1, v16\nv_lshlrev_b32 v17, 2, v17\nv_xor_b32 v17, v17, v2\nv_lshrrev_b32 v18, 5, v0\nv_lshlrev_b32 v18, 1, v18\nv_xor_b32 v17, v17, v18")
    A(f"v_lshl_add_u32 v{bWo}, v17, 4, v19")
    kv_offsets(A, bK, bV)
    A(f"s_cmp_lt_u32 s{sW}, 2\ns_cselect_b32 s{SM}, s{SK}, s{SV}\ns_cselect_b32 s{SM + 1}, s{SK + 1}, s{SV + 1}\ns_mov_b32 s{SM + 2}, 0x4000000\ns_mov_b32 s{SM + 3}, 0x20000")
    A(f"s_cselect_b32 s{sXM}, 16, 32\ns_cselect_b32 s{sXM2}, 64, 0\ns_cselect_b64 vcc, -1, 0\ns_add_u32 s56, s{sT4K}, 8192\ns_cmp_lt_u32 s{sW}, 2")
    A(f"s_cselect_b32 s56, s56, {(-8192) & 0xffffffff}\ns_add_u32 s{sMB}, s{sKV}, s56\nv_cndmask_b32 v{bM}, v{bV}, v{bK}, vcc")
    A(f"s_add_u32 s{sB0}, s{sKV}, s{sT4K}")
    A(f"s_mul_i32 s56, s{sW}, 36864\ns_add_u32 s{sWB}, s{sWOo}, s56")
    for i in range(256):
        A(f"v_accvgpr_write_b32 a{i}, 0")
    for i in range(32):
        A(f"v_mov_b32 v{OUTV + i}, 0")
    A("s_waitcnt vmcnt(0)")
    for p in pK + pV + pWq + pWo + [pQ]:
        sc.bias[p] = 0
    qops = q_ops(addr)
    qf = {}
    kind = None
    for t in range(-1, 9):
        for n_, g in enumerate(pl.sreq[t]):
            kind = group_request(cfg, pl, qf, (16 * t - cfg.LB if t > 0 else -cfg.LA + 1 if t == 0 else -cfg.LA - 8) + 4 * n_, g, "n", kind)
    kind0 = kind
    spread(qf, conv_block(0, f"s{sC}", Q0), 135, 138)
    spread(qf, conv_block(1, f"s{sC}", Q0), 139, 143)
    emit_slots(cfg, sc, qops, qf, {}, -cfg.LA - 8, 144, dict(rd=0, step=-1, lin=[], tag="c"), [], {0: 0})
    A("\n".join(conv_block(2, f"s{sC}", Q0) + conv_block(3, f"s{sC}", Q0)))
    if cfg.trace == "head":
        A(f"s_memrealtime s[60:61]\ns_waitcnt lgkmcnt(0)\nv_writelane_b32 v{NEGM}, s60, 9\nv_writelane_b32 v{NEGM}, s101, 10")
        A(f"v_lshlrev_b32 v1, 2, v0\ns_lshl_b32 s62, s2, 10\ns_lshl_b32 s63, s{sW}, 8\ns_add_u32 s62, s62, s63\ns_add_u32 s62, s62, {STAMP_BASE}")
        A(f"buffer_store_dword v{NEGM}, v1, {srd(SWS)}, s62 offen\ns_waitcnt vmcnt(0)")
    k_patterns(A, False)
    wo_shift(A)
    for p in pWq + pK[2:]:
        del sc.bias[p]
    for p in pK[:2]:
        sc.bias[p] = 0
    for p in pV + pWo:
        sc.rebias(p, 0)
    sc.rebias(pQ, QBUF)
    bias0 = dict(sc.bias)
    sc.nbuf = 0
    ops = item_ops(addr)
    st = dict(rd=0, step=-1, lin=[("c", g) for g in pl.pro for k in range(4)] if not cfg.noload else [], tag="c")
    emit_slots(cfg, sc, ops, {}, {}, -cfg.LA, 0, st, [], {0: 1})
    assert st["rd"] == cfg.LA and 400 % cfg.NB == 0
    bias1 = dict(sc.bias)
    head, pend0 = lgkm_pass(sc.out.ins)
    assert len(pend0) == cfg.LA
    head, nh = hazard_pass(head, verbose=cfg.dbg == "nops")
    sc.out = Prog()
    fill = {}
    split = 272
    bslot = lambda s_: 16 * s_ - cfg.LB if s_ else 0
    kind = None
    late = {}
    wrapped = False
    for s_ in range(25):
        for n_, (g, w) in enumerate(pl.req[s_]):
            sp = cfg.gsp if len(pl.req[s_]) == 1 else min(cfg.gsp, 2) if s_ else 1
            if bslot(s_) < split < bslot(s_) + 4 * sp * len(pl.req[s_]):
                sp = 1
            slot = bslot(s_) + 4 * sp * n_
            if w and not wrapped:
                wrapped = True
                if slot < split:
                    fill.setdefault(slot, []).append(f"s_add_u32 s{sB0}, s{sB0}, 0x20000\ns_add_u32 s{sMB}, s{sMB}, 0x20000\ns_cmp_eq_u32 s{sIT}, 3")
                    fill[slot].append(f"s_cselect_b32 s{SK + 2}, 0, s{SK + 2}\ns_cselect_b32 s{SM + 2}, 0, s{SM + 2}")
                else:
                    late.setdefault(slot, []).append(f"s_add_u32 s{sB0}, s{sB0}, 0x20000\ns_add_u32 s{sMB}, s{sMB}, 0x20000")
            assert g >= 16 or w == wrapped
            if w and slot >= split:
                kind = group_request(cfg, pl, late, slot, g, "n", None, sp)
            else:
                kind = group_request(cfg, pl, fill, slot, g, "n" if w else "c", None if slot >= split else kind, sp)
    cyc_kind = kind
    post = item_fill(cfg, ops, fill)
    stubs = []
    sc.out("L_item:")
    st["lin"] = [e for e in st["lin"] if e]
    emit_slots(cfg, sc, ops, fill, post, 0, split, st, stubs, {16: 2})
    sc.out(f"s_cmp_lg_u32 s{sIT}, 3\ns_cbranch_scc1 L_more")
    common, pend = lgkm_pass(sc.out.ins, pend0)
    common, n0 = hazard_pass(common, history=head[-20:], verbose=cfg.dbg == "nops")
    sa = copy.deepcopy(sc)
    sa.out = Prog()
    sa.out("L_warm_more:\ns_setpc_b64 s[40:41]\nL_more:")
    fa = {k: list(v) for k, v in fill.items()}
    for k, v in late.items():
        fa[k] = fa.get(k, []) + v
    for p, r0 in ((0, 288), (1, 381)):
        spread(fa, [(lambda s_, i=i, p=p: s_.lds("ds_read_b128", R("v", Q0 + 16 * p + 4 * i, 4), pQ, QBUF + i * 1024)) for i in range(4)], r0, r0 + 3)
    sta = copy.deepcopy(st)
    sta["rebias"] = bias0
    fa.setdefault(390, []).append(f"s_add_u32 s{sIT}, s{sIT}, 1")
    emit_slots(cfg, sa, copy.deepcopy(ops), fa, {}, split, 400, sta, stubs, {25: 1}, nextops=copy.deepcopy(ops[:cfg.LA]))
    assert cfg.noload or [e for e in sta["lin"] if e and e[0] == "n"] == [("n", g) for g in pl.pro for k in range(4)]
    assert sa.bias == bias1 and sta["rd"] == 400 + cfg.LA
    if cfg.trace is True:
        sa.out(f"s_cmp_lg_u32 s{sIT}, {cfg.trace_it + 1}\ns_cbranch_scc1 L_notr\nv_lshlrev_b32 v1, 2, v0\ns_lshl_b32 s62, s2, 10\ns_lshl_b32 s63, s{sW}, 8\ns_add_u32 s62, s62, s63\ns_add_u32 s62, s62, {STAMP_BASE}")
        sa.out(f"buffer_store_dword v2, v1, {srd(SWS)}, s62 offen\ns_waitcnt vmcnt(0)\nL_notr:")
    sa.out("s_branch L_item")
    conta, pe = lgkm_pass(sa.out.ins, pend)
    assert pe == pend0[len(pend0) - len(pe):]
    conta, n1 = hazard_pass(conta, history=common[-20:])
    sb = copy.deepcopy(sc)
    sb.out = Prog()
    sb.out("L_last:")
    fb = {k: list(v) for k, v in fill.items()}
    last_fill(cfg, fb)
    emit_slots(cfg, sb, copy.deepcopy(ops), fb, {}, split, 400, copy.deepcopy(st), stubs)
    T = sb.out
    stamp(cfg, T, 3, 0)
    stamp(cfg, T, 4, 0)
    finish_unit(cfg, T, "c", 7, OUTV, sW, sCU, True)
    contb, _ = lgkm_pass(sb.out.ins, pend)
    contb, n2 = hazard_pass(contb, history=common[-20:], verbose=cfg.dbg == "nops")
    st = Prog()
    for tag, p in stubs:
        st(f"L_stub_{tag}:\ns_call_b64 s[40:41], L_rare{p}\ns_branch L_back_{tag}")
    info = dict(nops=(nh, n0, n1, n2), est_item=est_cycles(common + conta))
    return head + common + contb + conta + st.ins + rare_routine(0) + rare_routine(1), info


def kd(name, vg, acc, sg=102):
    return (f".amdhsa_kernel {name}\n  .amdhsa_next_free_vgpr {vg}\n  .amdhsa_next_free_sgpr {sg}\n  .amdhsa_accum_offset {acc}\n"
            "  .amdhsa_group_segment_fixed_size 0\n  .amdhsa_kernarg_size 104\n  .amdhsa_user_sgpr_count 2\n"
            "  .amdhsa_user_sgpr_kernarg_segment_ptr 1\n  .amdhsa_system_sgpr_workgroup_id_x 1\n.end_amdhsa_kernel\n")


def generate(cfg):
    pl = plan_ring(cfg)
    P = Prog()
    prologue(cfg, P)
    pro, _ = hazard_pass(P.ins)
    comp, info = compute(cfg, pl)
    w3, info3 = wave3(cfg, pl)
    info.update(info3)
    s = HDR + "; @launch grid=(256,1,1) block=(256,1,1) lds=163840\n"
    s += '.amdgcn_target "amdgcn-amd-amdhsa--gfx950"\n.text\n'
    s += f".globl {KNAME}\n.p2align 8\n.type {KNAME},@function\n{KNAME}:\n"
    s += render(pro) + render(comp) + render(w3) + "L_done:\n    s_endpgm\n"
    s += '.section .rodata,"a"\n.p2align 6\n' + kd(KNAME, 512, 256)
    return s, info, pl


if __name__ == "__main__":
    import build
    name = sys.argv[1]
    kw = {}
    for a in sys.argv[2:]:
        k, v = a.split("=", 1)
        try:
            v = eval(v)
        except Exception:
            pass
        kw[k] = v
    s, info, plan = generate(Cfg(**kw))
    open(name, "w").write(s)
    print(info)
    build.build(name)
```

```python
import copy
import sys

import gen9a as G
from gen9a import *
from asmlib import Prog, parse, lgkm_pass, hazard_pass, render, est_cycles, R


class Cfg(G.Cfg):
    colors = "abcdfehgiacbfhicdegfhiegi"
    reqs = (13, 15, 17, 19, 21, 23, 24, 0, 1, 2, 3, 4, 5, 7, 9, 11) + (6, 8, 10, 13, 14, 16, 18, 20, 22)
    kvq = (26, 28, 30, 32, 34, 34, 34)
    xlead = 8
    slabs = "ifehg"
    pf_wo_step = 19
    pf_wo_q = 16
    first_x = 1
    KS = 2
    xslots = "dc"
    cnt_at = 2
    pk = True
    cap = 0
    flagfirst = True
    tfirst = 1
    dsp = 2
    NR = 3
    pflead = 4
    lazy = True

    def __init__(self, **kw):
        for k, v in kw.items():
            assert hasattr(Cfg, k), k
            setattr(self, k, v)


QB = 9 * 16384
NQ = 36
STASH = 224


class Plan:
    pass


def plan(cfg):
    pl = Plan()
    grp = [[("k", 0, 0), ("k", 0, 1), ("k", 1, 0), ("k", 1, 1)]]
    for u in range(1, 15):
        grp.append([("k", u + 1, 0), ("k", u + 1, 1), ("v", u - 1, 0), ("v", u - 1, 1)])
    grp.append([("v", 14, 0), ("v", 14, 1), ("v", 15, 0), ("v", 15, 1)])
    for t in range(9):
        grp.append([("wo", t, rb) for rb in range(4)])
    ns = len(grp)
    slot = lambda c: (ord(c) - 97) * 16384
    addr = {q: slot(cfg.colors[s]) + k * 4096 for s, g in enumerate(grp) for k, q in enumerate(g)}
    req = {b: [] for b in range(ns)}
    for g in range(ns):
        gap = next(d for d in range(1, ns + 1) if cfg.colors[(g - d) % ns] == cfg.colors[g])
        lead = (g - cfg.reqs[g]) % ns
        assert 1 <= lead <= gap - 1, (g, lead, gap)
        req[cfg.reqs[g]].append((g, g - lead < 0))
    for b in req:
        req[b].sort(key=lambda e: (e[0] < 16, e[1]))
    pl.pro = [g for b in range(ns) for g, w in req[b] if w]
    pl.slab = [slot(cfg.slabs[k % len(cfg.slabs)]) for k in range(NQ)]
    xs = [QB] + [slot(c) for c in cfg.xslots]
    pl.xt = [xs[(8 - t) % 3] for t in range(9)]
    KS = cfg.KS
    pl.kvq = {}
    pl.late = []
    for g in sorted(pl.pro):
        a = addr[grp[g][0]]
        busy = max([4 * t + 3 for t in range(9) if pl.xt[t] == a] + [k for k in range(NQ) if pl.slab[k] == a] + [-1])
        b = max(cfg.kvq[g] // KS, busy // KS + 1)
        pl.kvq.setdefault(b, []).append(g)
    pl.grp, pl.addr, pl.req = grp, addr, req
    return pl


def slab_patterns(A, regs):
    A("v_lshrrev_b32 v1, 5, v0\nv_lshrrev_b32 v2, 2, v0\nv_and_b32 v2, 3, v2\nv_lshl_add_u32 v16, v1, 3, v2\nv_lshlrev_b32 v16, 10, v16")
    A("v_lshrrev_b32 v17, 4, v0\nv_and_b32 v17, 1, v17\nv_lshl_add_u32 v16, v17, 5, v16\nv_and_b32 v17, 1, v0\nv_lshl_add_u32 v16, v17, 4, v16")
    A("v_lshrrev_b32 v17, 1, v0\nv_and_b32 v17, 1, v17\nv_lshl_add_u32 v16, v17, 3, v16")
    for j, r in enumerate(regs):
        A(f"v_xor_b32 v17, {j}, v2\nv_lshl_add_u32 v{r}, v17, 6, v16")


def slab_offsets(A, base):
    for k in range(4):
        A(f"v_xor_b32 v17, {k << 2}, v0\nv_lshlrev_b32 v17, 4, v17\nv_add_u32 v{base + k}, {k * (8192 - 1024)}, v17")


def slab_request(cfg, ks, pl, vs, tag):
    l = [f"s_add_u32 m0, s{sT4K}, {pl.slab[ks]}", f"s_add_u32 s{sTMP}, s{sSL}, {ks * 16 * 8192}"]
    if not cfg.noload:
        l += [(f"buffer_load_dwordx4 v{vs + k}, {srd(SWQ)}, s{sTMP} offen offset:{k * 1024}{cfg.wf} lds", (tag, ks)) for k in range(4)]
    return l


sSL, sXW, sC2 = 90, 91, 96


vK3, vV3, vWo3, vS3 = 24, 28, 60, 32
pS3 = [8, 9, 10, 11]
vV3x = 3
A3, B3, ACC3 = 36, 40 + 0, 64


def wave3(cfg, pl):
    addr = pl.addr
    sc = Sched(cfg)
    A = sc.out
    ns = len(pl.grp)
    nsl = len(cfg.slabs)
    AF = [36, 40, 44]
    BF = [[48, 52, 56], [12, 16, 20]]
    vFL3 = 63
    A("L_loader:")
    A(f"s_lshl_b32 s{sT4K}, s{sW}, 12\ns_add_u32 s{sSL}, s{sWQo}, {12 * 8192}")
    slab_offsets(A, vS3)
    descriptors(A)
    lin = []

    def put(sc_, o, gen=0):
        if isinstance(o, tuple):
            sc_.out(o[0])
            lin.append((o[1], gen))
        elif callable(o):
            o(sc_)
        else:
            sc_.out(o)

    def wait_for(sc_, keys, extra=""):
        idx = [k for k, e in enumerate(lin) if e[0] in keys and e[1] == 0]
        w = f"vmcnt({min(63, len(lin) - 1 - max(idx))}) " if idx else ""
        if w or extra:
            sc_.out("s_waitcnt " + w + extra)

    def quad_ops(q):
        k = q[0]
        pre = []
        if k == "k":
            off, base, v, sr, fl = q[1] * 8192 + q[2] * 4096, sKV, [vK3 + g for g in range(4)], SK, cfg.kvf
        elif k == "v":
            off, base, v, sr, fl = q[1] * 8192 + q[2] * 4096, sKV, [vV3, vV3x] * 2, SV, cfg.kvf
        else:
            pre = [f"s_add_u32 s{sXW}, s{sWOo}, s{sTC + q[1]}"] if q[2] == 0 else []
            off, base, v, sr, fl = q[2] * 32 * 1152, sXW, [vWo3 + g for g in range(4)], SWO, cfg.wf
        l = pre + [f"s_mov_b32 m0, {addr[q]}", f"s_add_u32 s{sTMP}, s{base}, {off}"]
        if not cfg.noload:
            l += [(f"buffer_load_dwordx4 v{v[g]}, {srd(sr)}, s{sTMP} offen offset:{g * 1024}{fl} lds", q) for g in range(4)]
        return l

    if stamp(cfg, A, 15, 1):
        lin.append((None, 0))
    lin += [(None, 0)] * tlb_warm(cfg, A, 62, 61)
    for ks in range(cfg.KS if cfg.lazy else nsl):
        for o in slab_request(cfg, ks, pl, vS3, "s"):
            put(sc, o)
    A(f"v_and_b32 v1, 7, v0\nv_lshlrev_b32 v1, 2, v1\nbuffer_load_dword v{vFL3}, v1, {srd(SWS)}, s{sFLG} offen sc1")
    lin.append(("flag", 0))
    k_patterns(A, True)
    slab_patterns(A, pS3)
    kv_offsets(A, vK3, vV3)
    A(f"v_xor_b32 v{vV3x}, 32, v{vV3}")
    for g in range(1, 4):
        A(f"v_xor_b32 v{vK3 + g}, {KX[g]}, v{vK3}")
    nsh = {"16x8": 16, "8x16": 8, "4x32": 4}[cfg.mapping]
    vTO3, vDUM3, pQ3_ = 29, 30, 31
    A(f"s_and_b32 s56, s{sB}, {nsh - 1}\nv_mov_b32 v17, 0x7fffff00\nv_cmp_gt_u32 vcc, 36, v0\nv_lshlrev_b32 v{vTO3}, 7, v0")
    A(f"s_mul_i32 s57, s56, {(576 // nsh) * 256}\nv_add_u32 v{vTO3}, s57, v{vTO3}\nv_cndmask_b32 v{vTO3}, v17, v{vTO3}, vcc")

    def touch_wo(add):
        l = []
        if cfg.pf:
            for i in range(1152 // nsh // 36):
                l.append(f"s_add_u32 s{sTMP}, s{sWOo}, {i * 36 * 128 + add}")
                l.append((f"buffer_load_dword v{vDUM3}, v{vTO3}, {srd(SWO)}, s{sTMP} offen", None))
        return l
    for p in pK + pS3:
        sc.bias[p] = 0
    ops = [dict(ks=ks, b=b, j=j) for ks in range(NQ) for b in range(4) for j in range(3)]
    LB3 = 4
    queue = []
    st = dict(step=-1, rdA=0, rdB=0, na=0)

    def drain(sc_, n):
        while queue and n > 0:
            o, g = queue.pop(0)
            put(sc_, o, g)
            n -= isinstance(o, tuple)

    KS = cfg.KS
    for i in range(-LB3, 12 * NQ):
        nx = st["step"] + 1
        if nx < NQ // KS and i >= 12 * KS * nx - LB3:
            drain(sc, 99)
            if cfg.trace == "head2":
                A(f"s_memtime s[60:61]\ns_waitcnt lgkmcnt(0)\nv_writelane_b32 v63, s60, {nx}")
            wait_for(sc, {("s", KS * nx + KS - 1)} | ({"flag"} if nx == cfg.cnt_at else set()), "lgkmcnt(0)")
            if cfg.trace == "head2":
                A(f"s_memtime s[60:61]\ns_waitcnt lgkmcnt(0)\nv_writelane_b32 v63, s60, {32 + nx}")
            if not cfg.nobar:
                A("s_barrier")
            st["step"] = nx
            if nx == cfg.cnt_at:
                A(f"s_lshl_b32 s56, s{sPAIR}, 2\nv_mov_b32 v1, s56\nv_mov_b32 v2, 1\ns_mov_b64 exec, 1")
                put(sc, (f"buffer_atomic_add v2, v1, {srd(SDB)}, 0 offen offset:{128 if cfg.dstamp else 0} sc1", None))
                A("s_mov_b64 exec, -1")
            for ks in range(KS * (nx - 1) + nsl if nx else KS, min(NQ, KS * nx + nsl)):
                if nx or cfg.lazy:
                    queue.extend((o, 0) for o in slab_request(cfg, ks, pl, vS3, "s"))
            if nx == cfg.pf_wo_q // KS:
                queue.extend((o, 0) for o in touch_wo(0))
            for g in pl.kvq.get(nx, []):
                for q in pl.grp[g]:
                    queue.extend((o, 0) for o in quad_ops(q))
        while st["rdB"] < 3 * NQ and st["rdB"] // 3 // KS <= st["step"] and 12 * (st["rdB"] // 3) - LB3 <= i:
            ks, j = divmod(st["rdB"], 3)
            sc.lds("ds_read_b128", R("v", BF[ks & 1][j], 4), pK[ks & 3], pl.xt[ks >> 2] + j * 4096)
            st["rdB"] += 1
        while st["rdA"] < 12 * NQ and st["rdA"] <= i + 5 and ops[st["rdA"]]["ks"] // KS <= st["step"]:
            o = ops[st["rdA"]]
            fb = AF[st["na"] % 3]
            st["na"] += 1
            a = pl.slab[o["ks"]] + 3 * 256
            sc.lds("ds_read_b64_tr_b16", R("v", fb, 2), pS3[o["b"]], a)
            sc.lds("ds_read_b64_tr_b16", R("v", fb + 2, 2), pS3[o["b"]], a + 4096)
            for d in range(3):
                ops[st["rdA"] + d]["areg"] = fb
            st["rdA"] += 3
        if i < 0:
            continue
        left = 12 * KS * (st["step"] + 1) - LB3 - i
        nv = sum(isinstance(o, tuple) for o, g in queue)
        if nv > left:
            drain(sc, -(-nv // max(left, 1)))
        elif i % cfg.dsp == 0 or nv * cfg.dsp > left:
            drain(sc, 1)
        o = ops[i]
        d = R("v", ACC3 + 16 * (3 * o["b"] + o["j"]), 16)
        A(f"{MF} {d}, {R('v', o['areg'], 4)}, {R('v', BF[o['ks'] & 1][o['j']], 4)}, {'0' if o['ks'] == 0 else d}")
    drain(sc, 99)
    if cfg.trace == "head2":
        A(f"v_lshlrev_b32 v1, 2, v0\ns_lshl_b32 s62, s2, 10\ns_add_u32 s62, s62, {STAMP_BASE + 768}")
        A(f"buffer_store_dword v63, v1, {srd(SWS)}, s62 offen\ns_waitcnt vmcnt(0)")
    A("s_waitcnt lgkmcnt(0)")
    if not cfg.nobar:
        A("s_barrier")
    for g in pl.kvq.get(NQ // KS, []):
        for q in pl.grp[g]:
            for o in quad_ops(q):
                put(sc, o)

    def conv3(b, j):
        acc = ACC3 + 16 * (3 * b + j)
        l = []
        for k in range(8):
            l += [f"v_mul_f32 v{acc + 2 * k}, s{sC}, v{acc + 2 * k}", f"v_mul_f32 v{acc + 2 * k + 1}, s{sC}, v{acc + 2 * k + 1}"]
        for k in range(8):
            l.append(f"v_cvt_pk_bf16_f32 v{acc + k}, v{acc + 2 * k}, v{acc + 2 * k + 1}")
        l += ["s_nop 0"] + [f"v_permlane16_swap_b32 v{acc + k}, v{acc + 4 + k}" for k in range(4)]
        for k in range(8):
            l.append(f"v_accvgpr_write_b32 a{96 + 4 * (8 * j + 2 * b) + k}, v{acc + k}")
        return l
    post = ["v_lshrrev_b32 v1, 3, v0\nv_and_b32 v2, 7, v0\nv_lshrrev_b32 v16, 4, v0\nv_and_b32 v16, 1, v16\nv_lshlrev_b32 v16, 2, v16",
            f"v_mov_b32 v{vFL}, v{vFL3}\nv_lshrrev_b32 v17, 5, v0\nv_lshlrev_b32 v17, 1, v17\nv_xor_b32 v16, v16, v17",
            "v_xor_b32 v16, v16, v2\nv_lshlrev_b32 v16, 4, v16\nv_mul_u32_u24 v17, 1152, v1\nv_add_u32 v16, v16, v17"]
    post += [f"v_add_u32 v{vWo3 + g}, {g * 8192}, v16" for g in range(4)]
    post += [
             f"v_lshlrev_b32 v{pQ3_}, 4, v0\nv_add_u32 v{pQ3_}, {QB}, v{pQ3_}"]
    for o in post:
        A(o)
    head, pend = lgkm_pass(sc.out.ins)
    assert not pend
    pro = [q for b in sorted(pl.kvq) for g in pl.kvq[b] for q in pl.grp[g]]

    def period(last, pro_):
        nonlocal lin
        sc2 = Sched(cfg)
        B = sc2.out
        lin = [(q, 0) for q in pro_ for g in range(4)] if not cfg.noload else []
        wrapped = False
        for s in range(ns):
            if cfg.trace is True:
                B(f"s_memtime s[60:61]\ns_waitcnt lgkmcnt(0)\nv_writelane_b32 v2, s60, {s}")
            wait_for(sc2, set(pl.grp[s]), "lgkmcnt(0)")
            if cfg.trace is True:
                B(f"s_memtime s[60:61]\ns_waitcnt lgkmcnt(0)\nv_writelane_b32 v2, s60, {32 + s}")
            if s in (0, 16) and stamp(cfg, B, {0: 1, 16: 2}[s], 1):
                lin.append((None, 0))
            if last and s == 16:
                B("v_readfirstlane_b32 s57, v17\ns_mov_b32 s58, 0\nL_chk:\ns_cmp_ge_u32 s57, 8\ns_cbranch_scc1 L_chkend")
                B(f"buffer_load_dword v17, v16, {srd(SDB)}, 0 offen offset:{128 if cfg.dstamp else 0} sc1\ns_add_u32 s58, s58, 1\ns_waitcnt vmcnt(0)\nv_readfirstlane_b32 s57, v17")
                B("s_cmp_lt_u32 s58, 0x80000\ns_cbranch_scc1 L_chk\nL_chkend:")
            if not cfg.nobar:
                B("s_barrier")
            for g, w in pl.req[s]:
                if w and not wrapped:
                    wrapped = True
                    B(f"s_add_u32 s{sKV}, s{sKV}, 0x20000")
                assert g >= 16 or w == wrapped
                if not (last and w):
                    for q in pl.grp[g]:
                        if cfg.cap and g < 16:
                            B(f"s_waitcnt vmcnt({cfg.cap - 4})")
                        for o in quad_ops(q):
                            put(sc2, o, int(w))
            if last and s == 2:
                B(f"s_lshl_b32 s56, s{sPAIR}, 2\nv_mov_b32 v16, s56")
                put(sc2, (f"buffer_load_dword v17, v16, {srd(SDB)}, 0 offen offset:{128 if cfg.dstamp else 0} sc1", None))
            if s == cfg.pf_wo_step and not last:
                for o in touch_wo(147456):
                    put(sc2, o)
            if cfg.warm and s == 9 and not last:
                B("s_call_b64 s[40:41], L_warm_more")
            if last:
                continue
            extra = []
            if s < 6:
                extra = conv3(*divmod(2 * s, 3)) + conv3(*divmod(2 * s + 1, 3))
            elif s in (QS0 + 1, QS1 + 1):
                p = int(s == QS1 + 1)
                extra = [f"ds_read_b128 {R('a', 4 * (8 * j + 4 * p + i), 4)}, v{pQ3_} offset:{(4 * j + i) * 1024}" for j in range(3) for i in range(4)]
            if extra:
                B(f"s_cmp_lg_u32 s{sIT}, 0\ns_cbranch_scc1 L_w3x{s}")
                B("\n".join(extra) + f"\ns_waitcnt lgkmcnt(0)\nL_w3x{s}:")
            if s in (16, 20):
                p = int(s == 20)
                for j in range(3):
                    for i in range(4):
                        B(f"ds_write_b128 v{pQ3_}, {R('a', 4 * (8 * j + 4 * p + i), 4)} offset:{(4 * j + i) * 1024}")
            if s == 22:
                B(f"s_cmp_lg_u32 s{sIT}, 1\ns_cbranch_scc1 L_w3mv")
                for k in range(96):
                    B(f"v_accvgpr_mov_b32 a{k}, a{96 + k}")
                B("L_w3mv:")
        tail = [e[0] for e in lin if e[1] == 1][::4]
        if not last:
            B(f"s_add_u32 s{sWOo}, s{sWOo}, 147456")
            if cfg.trace is True:
                B(f"s_cmp_lg_u32 s{sIT}, {cfg.trace_it}\ns_cbranch_scc1 L_notr3\nv_lshlrev_b32 v1, 2, v0\ns_lshl_b32 s62, s2, 10\ns_add_u32 s62, s62, {STAMP_BASE + 768}")
                B(f"buffer_store_dword v2, v1, {srd(SWS)}, s62 offen\ns_waitcnt vmcnt(0)\nL_notr3:")
            B(f"s_add_u32 s{sIT}, s{sIT}, 1\ns_cmp_lt_u32 s{sIT}, 3\ns_cbranch_scc1 L_w3loop")
        return B.ins, tail

    b1, tail = period(False, pro)
    b2, tail2 = period(False, tail)
    assert tail == tail2 and len(b1) == len(b2) and (cfg.noload or sorted(tail) == sorted(pro))
    import re
    body = []
    for x, y in zip(b1, b2):
        if x.text != y.text:
            n = min(int(re.search(r"vmcnt\((\d+)\)", z.text).group(1)) for z in (x, y))
            x = parse(re.sub(r"vmcnt\(\d+\)", f"vmcnt({n})", x.text))
        body.append(x)
    lastp, _ = period(True, tail)
    T = Prog()
    T(f"s_cmp_ge_u32 s{sCU}, 3\ns_cbranch_scc1 L_done\ns_mov_b32 s61, 8")
    finish_unit(cfg, T, "w3", 8, 192, sCU, 61, False)
    allins, nn = hazard_pass(head + [parse("L_w3loop:")] + body + lastp + T.ins, verbose=cfg.dbg == "nops3")
    return allins, dict(w3nops=nn, w3head=est_cycles(head))


QS0, QS1 = 7, 10


def compute(cfg, pl):
    addr = pl.addr
    sc = Sched(cfg)
    A = sc.out
    nsl = len(cfg.slabs)
    vS, vXo = P0, P0 + 4
    pS = [pWq[0], pWq[1], P0 + 8, P0 + 9]
    TMP = 248
    nsh = {"16x8": 16, "8x16": 8, "4x32": 4}[cfg.mapping]
    A(f"s_lshl_b32 s{sT4K}, s{sW}, 12\ns_mov_b32 s{sTHR}, {hex(f2u(cfg.thr))}")
    A(f"s_lshl_b32 s56, s{sW}, 15\ns_add_u32 s{sSL}, s{sWQo}, s56\ns_mul_i32 s56, s{sW}, 36864\ns_add_u32 s{sXW}, s{sXo}, s56")
    A(f"s_mov_b32 s{sC2}, s{sC}\ns_mov_b32 s{sC2 + 1}, s{sC}")
    slab_offsets(A, vS)
    A("v_lshrrev_b32 v1, 3, v0\nv_and_b32 v2, 7, v0\nv_lshrrev_b32 v3, 4, v0\nv_mul_u32_u24 v20, 1152, v1")
    for g in range(4):
        A(f"v_add_u32 v17, {4 * g}, v3\nv_and_b32 v17, 7, v17\nv_xor_b32 v17, v17, v2\nv_lshlrev_b32 v17, 4, v17")
        A(f"v_add_u32 v17, {g * (9216 - 1024)}, v17\nv_add_u32 v{vXo + g}, v17, v20")
    rows = 576 // nsh
    A(f"v_lshrrev_b32 v16, 3, v0\nv_lshlrev_b32 v16, 13, v16\nv_and_b32 v17, 7, v0\nv_lshl_add_u32 v16, v17, 7, v16")
    rw = rows // cfg.NR // 3
    A(f"s_and_b32 s56, s{sB}, {nsh - 1}\ns_mul_i32 s56, s56, 3\ns_add_u32 s56, s56, s{sW}\ns_mul_i32 s56, s56, {rw * 8192}\ns_add_u32 s98, s56, s{sWQo}")
    assert rw <= 8
    A(f"v_mov_b32 v17, 0x7fffff00\nv_cmp_gt_u32 vcc, {rw * 8}, v0\ns_nop 0\nv_cndmask_b32 v{P0 + 10}, v17, v16, vcc")
    if cfg.pfc:
        A(f"s_cmp_lg_u32 s{sW}, 2\ns_cbranch_scc1 L_nopfc")
        code_warm(A, NEGM + 2, NEGM + 4, cfg.codesh)
        A("L_nopfc:")
    descriptors(A)
    lin = []

    def x_request(t):
        l = [f"s_add_u32 m0, s{sT4K}, {pl.xt[t]}", f"s_add_u32 s{sTMP}, s{sXW}, {t * 128}"]
        if not cfg.noload:
            l += [(f"buffer_load_dwordx4 v{vXo + k}, {srd(SX)}, s{sTMP} offen offset:{k * 1024}{cfg.xf} lds", ("x", 4 * t)) for k in range(4)]
        return l

    def now(l):
        for o in l:
            if isinstance(o, tuple):
                A(o[0])
                lin.append(o[1])
            else:
                A(o)
    KS = cfg.KS
    rs = lambda l: [(o[0], ("c", o[1][1] // KS)) if isinstance(o, tuple) else o for o in l]
    vTA, vTB, vFA = P0 + 10, P0 + 11, P0 + 12
    tq, late_t = {}, []
    if cfg.pf:
        for r in range(cfg.NR):
            l = [f"s_add_u32 s99, s98, {r * (576 // cfg.NR) * 8192}", (f"buffer_load_dword v{NEGM}, v{vTA}, {srd(SWQ)}, s99 offen", None)]
            b = r * (NQ // KS) // cfg.NR - cfg.pflead
            if r < cfg.tfirst:
                now(l)
            elif b <= 0:
                late_t += l
            else:
                tq[b] = l
    now(rs(slab_request(cfg, 0, pl, vS, "c") + x_request(0)))
    for ks in range(1, KS):
        now(rs(slab_request(cfg, ks, pl, vS, "c")))
    rest = list(late_t)
    for ks in range(KS, nsl):
        rest += rs(slab_request(cfg, ks, pl, vS, "c"))
    if cfg.pfx:
        xr = 96 // (32 // nsh) // 3
        vTX_ = P0 + 13
        A(f"v_lshrrev_b32 v17, 2, v0\nv_mul_u32_u24 v17, 1152, v17\nv_and_b32 v{vTX_}, 3, v0\nv_lshl_add_u32 v{vTX_}, v{vTX_}, 7, v17")
        A(f"s_and_b32 s57, s{sCU}, {32 // nsh - 1}\ns_mul_i32 s57, s57, 3\ns_add_u32 s57, s57, s{sW}\ns_mul_i32 s57, s57, {xr * 1152}\ns_add_u32 s101, s57, s{sXo}")
        assert xr == 16
        tx = [(f"buffer_load_dword v{NEGM}, v{vTX_}, {srd(SX)}, s101 offen offset:{128 + 512 * i}", None) for i in range(2)]
        rest = (tx + rest) if cfg.pfx == 1 else (rest + tx)
    xreq = {}
    for t in range(1, 9):
        b = max((4 * t - cfg.xlead) // KS, (4 * (t - 3) + 3) // KS + 1 if t >= 3 else 0)
        if b <= 0:
            rest += rs(x_request(t))
        else:
            xreq[b] = t
    A(f"v_and_b32 v{vFA}, 7, v0\nv_lshlrev_b32 v{vFA}, 2, v{vFA}")
    fo = (f"buffer_load_dword v{vFL}, v{vFA}, {srd(SWS)}, s{sFLG} offen sc1", ("c", cfg.cnt_at))
    if cfg.flagfirst:
        now([fo])
    else:
        rest.append(fo)
    if not cfg.lazy:
        now(rest)
        rest = []
    lane_patterns(A, True)
    slab_patterns(A, pS)
    A(f"v_lshlrev_b32 v{vST}, 4, v0\nv_add_u32 v{pQ}, s{sT4K}, v{vST}")
    A(f"s_mul_i32 s56, s{sPAIR}, 884736\ns_lshl_b32 s57, s{sW}, 15\ns_add_u32 s56, s56, s57\ns_lshl_b32 s57, s{sCU}, 12\ns_add_u32 s{sWSo}, s56, s57")
    for p in pK + pV + pS + pWo + [pQ]:
        sc.bias[p] = 0
    qops, qf = [], {}
    k = -cfg.LA + 1
    for o in rest:
        qf.setdefault(min(k, 12 * KS - cfg.LB - 1), []).append(o)
        k += isinstance(o, tuple)
    for ks in range(NQ):
        order = list(range(4, 12)) + [0, 1, 2, 3] if ks < NQ - 1 else list(range(12))
        xb = S0 + 4 * (ks % 8)
        for n_, b in enumerate(order):
            a = pl.slab[ks] + (b >> 2) * 256
            d = R("v", O0 + 16 * b, 16) if b < 4 else R("a", 16 * (b - 4), 16)
            o = dict(step=ks // KS, a=[("tr", pS[b & 3], a), ("tr", pS[b & 3], a + 4096)], b=R("v", xb, 4), d=d, c="0" if ks == 0 else d)
            if n_ == 0:
                o["x"] = (xb, pK[ks & 3], pl.xt[ks >> 2])
            qops.append(o)
        if ks % KS == 0 and ks:
            l = []
            for k2 in range(ks - KS + nsl, min(NQ, ks + nsl)):
                l += rs(slab_request(cfg, k2, pl, vS, "c"))
            if ks // KS in xreq:
                l += rs(x_request(xreq[ks // KS]))
            l += tq.get(ks // KS, [])
            k = 12 * ks - cfg.LB
            nv = sum(isinstance(o, tuple) for o in l)
            sp = min(cfg.dsp, (12 * KS - 1) / max(nv, 1))
            kk = 0
            for o in l:
                qf.setdefault(k + int(kk * sp), []).append(o)
                kk += isinstance(o, tuple)
    n = 12 * NQ
    spread(qf, conv_block(0, f"s{sC}", Q0), n - 8, n - 5)
    spread(qf, conv_block(1, f"s{sC}", Q0), n - 4, n - 1)
    emit_slots(cfg, sc, qops, qf, {}, -cfg.LA, n, dict(rd=0, step=-1, lin=lin, tag="c"), [], {0: 0})
    if not cfg.nobar:
        A("s_waitcnt lgkmcnt(0)\ns_barrier")
    A("\n".join(conv_block(2, f"s{sC}", Q0) + conv_block(3, f"s{sC}", Q0)))
    if cfg.trace in ("head", "head2"):
        if cfg.trace == "head":
            A(f"s_memrealtime s[60:61]\ns_waitcnt lgkmcnt(0)\nv_writelane_b32 v{NEGM + 1}, s60, 36\nv_writelane_b32 v{NEGM + 1}, s101, 37")
        A(f"v_lshlrev_b32 v1, 2, v0\ns_lshl_b32 s62, s2, 10\ns_lshl_b32 s63, s{sW}, 8\ns_add_u32 s62, s62, s63\ns_add_u32 s62, s62, {STAMP_BASE}")
        A(f"buffer_store_dword v{NEGM + 1}, v1, {srd(SWS)}, s62 offen\ns_waitcnt vmcnt(0)")

    def pack2(i, j, dst):
        t = TMP
        l = [f"v_accvgpr_read_b32 v{t + k}, a{2 * (j if k & 2 else i) + (k & 1)}" for k in range(4)]
        l += [f"v_pk_mul_f32 v[{t + k}:{t + k + 1}], v[{t + k}:{t + k + 1}], s[{sC2}:{sC2 + 1}]" for k in (0, 2)]
        return l + [f"v_cvt_pk_bf16_f32 v{dst + k}, v{t + 2 * k}, v{t + 2 * k + 1}" for k in range(2)]
    lumps = {}
    for part in range(8):
        i = 8 * (part >> 1) + 2 * (part & 1)
        lumps[16 * (2 + part // 2) + 2 + 6 * (part & 1)] = pack2(i, i + 4, TMP + 4) + pack2(i + 1, i + 5, TMP + 6) + [
            f"v_permlane16_swap_b32 v{TMP + 4}, v{TMP + 5}", "s_nop 0", f"v_permlane16_swap_b32 v{TMP + 6}, v{TMP + 7}"] + [
            f"v_accvgpr_write_b32 a{STASH + i + (k >> 1) + 4 * (k & 1)}, v{TMP + 4 + k}" for k in range(4)]
    for p, s0 in ((0, QS0), (1, QS1)):
        for fr in range(4):
            i = 32 + 16 * p + 8 * (fr >> 1) + 2 * (fr & 1)
            a = (fr >> 1) * 2048 + (fr & 1) * 8
            pa, pb = pack2(i, i + 4, TMP + 4), pack2(i + 1, i + 5, TMP + 4)
            pa[-1] = pa[-1].replace(f"v{TMP + 5},", f"v{TMP + 6},", 1)
            pb[-2] = pb[-2].replace(f"v{TMP + 4},", f"v{TMP + 5},", 1)
            pb[-1] = pb[-1].replace(f"v{TMP + 5},", f"v{TMP + 7},", 1)
            lumps[16 * (s0 - 1 + fr // 2) + 2 + 6 * (fr & 1)] = pa + pb + [
                f"v_permlane16_swap_b32 v{TMP + 4}, v{TMP + 6}", "s_nop 0", f"v_permlane16_swap_b32 v{TMP + 5}, v{TMP + 7}",
                f"ds_write_b64 v{pQ}, {R('v', TMP + 4, 2)} offset:{a}", f"ds_write_b64 v{pQ}, {R('v', TMP + 6, 2)} offset:{a + 1024}"]
    k_patterns(A, False)
    wo_shift(A)
    for p in pK[2:]:
        del sc.bias[p]
    for p in pK[:2]:
        sc.bias[p] = 0
    for p in pV + pWo:
        sc.rebias(p, 0)
    sc.rebias(pQ, QB)
    for p in pS:
        del sc.bias[p]
    bias0 = dict(sc.bias)
    sc.nbuf = 0
    ops = item_ops(addr)
    st = dict(rd=0, step=-1, lin=[], tag="c")
    emit_slots(cfg, sc, ops, {}, {}, -cfg.LA, 0, st, [], {0: 1})
    assert st["rd"] == cfg.LA and 400 % cfg.NB == 0
    bias1 = dict(sc.bias)
    head, pend0 = lgkm_pass(sc.out.ins)
    assert len(pend0) == cfg.LA
    head, nh = hazard_pass(head, verbose=cfg.dbg == "nops")
    sc.out = Prog()
    fill = {}
    split = 272
    post = item_fill(cfg, ops, fill)
    for s_, l in lumps.items():
        fill.setdefault(s_, []).append(f"s_cmp_lg_u32 s{sIT}, 0\ns_cbranch_scc1 L_lump{s_}\n" + "\n".join(l) + f"\nL_lump{s_}:")
    stubs = []
    sc.out("L_item:")
    st["lin"] = []
    st["alts"] = []
    emit_slots(cfg, sc, ops, fill, post, 0, split, st, stubs, {16: 2})
    sc.out(f"s_cmp_lg_u32 s{sIT}, 3\ns_cbranch_scc1 L_more")
    common, pend = lgkm_pass_skips(sc.out.ins, pend0)
    common, n0 = hazard_pass(common, history=head[-20:], verbose=cfg.dbg == "nops")
    sa = copy.deepcopy(sc)
    sa.out = Prog()
    sa.out("L_warm_more:\ns_setpc_b64 s[40:41]\nL_more:")
    fa = {}
    for p, r0, m0 in ((0, 288, 302), (1, 352, 365)):
        spread(fa, [(lambda s_, i=i, p=p: s_.lds("ds_read_b128", R("v", Q0 + 16 * p + 4 * i, 4), pQ, QB + i * 1024)) for i in range(4)], r0, r0 + 3)
        mv_ = "\n".join(f"v_accvgpr_read_b32 v{Q0 + 16 * p + i}, a{STASH + 16 * p + i}" for i in range(16))
        fa.setdefault(m0, []).append(f"s_cmp_lg_u32 s{sIT}, 0\ns_cbranch_scc1 L_lumpm{p}\n{mv_}\nL_lumpm{p}:")
    sta = copy.deepcopy(st)
    sta["rebias"] = bias0
    fa.setdefault(390, []).append(f"s_add_u32 s{sIT}, s{sIT}, 1")
    emit_slots(cfg, sa, copy.deepcopy(ops), fa, {}, split, 400, sta, stubs, {25: 1}, nextops=copy.deepcopy(ops[:cfg.LA]))
    assert sa.bias == bias1 and sta["rd"] == 400 + cfg.LA
    if cfg.trace is True:
        sa.out(f"s_cmp_lg_u32 s{sIT}, {cfg.trace_it + 1}\ns_cbranch_scc1 L_notr\nv_lshlrev_b32 v1, 2, v0\ns_lshl_b32 s62, s2, 10\ns_lshl_b32 s63, s{sW}, 8\ns_add_u32 s62, s62, s63\ns_add_u32 s62, s62, {STAMP_BASE}")
        sa.out(f"buffer_store_dword v2, v1, {srd(SWS)}, s62 offen\ns_waitcnt vmcnt(0)\nL_notr:")
    sa.out("s_branch L_item")
    conta, pe = lgkm_pass_skips(sa.out.ins, pend)
    assert pe == pend0[len(pend0) - len(pe):]
    conta, n1 = hazard_pass(conta, history=common[-20:], verbose=cfg.dbg == "nops")
    sb = copy.deepcopy(sc)
    sb.out = Prog()
    fb = {}
    last_fill(cfg, fb)
    emit_slots(cfg, sb, copy.deepcopy(ops), fb, {}, split, 400, dict(copy.deepcopy(st), alts=None), stubs)
    T = sb.out
    stamp(cfg, T, 3, 0)
    stamp(cfg, T, 4, 0)
    finish_unit(cfg, T, "c", 7, OUTV, sW, sCU, True)
    contb, _ = lgkm_pass(sb.out.ins, pend)
    contb, n2 = hazard_pass(contb, history=common[-20:], verbose=cfg.dbg == "nops")
    stb = Prog()
    for tag, p in stubs:
        stb(f"L_stub_{tag}:\ns_call_b64 s[40:41], L_rare{p}\ns_branch L_back_{tag}")
    info = dict(nops=(nh, n0, n1, n2), est_head=est_cycles(head), est_item=est_cycles(common + conta))
    return head + common + contb + conta + stb.ins + rare_routine(0) + rare_routine(1), info


def lgkm_pass_skips(ins, pending):
    out, seg, pend = [], [], pending
    i = 0
    while i < len(ins):
        x = ins[i]
        if x.kind == "branch" and ("L_lump" in x.text or "L_st0" in x.text or "L_st1" in x.text):
            o, pend = lgkm_pass(seg + [x], pend)
            out += o
            lab = x.text.split()[-1] + ":"
            j = next(k for k in range(i, len(ins)) if ins[k].text == lab)
            o, _ = lgkm_pass(ins[i + 1:j + 1], pend)
            out += o
            seg = []
            i = j + 1
            continue
        seg.append(x)
        i += 1
    o, pend = lgkm_pass(seg, pend)
    return out + o, pend


def generate(cfg):
    pl = plan(cfg)
    P = Prog()
    prologue(cfg, P)
    pro, _ = hazard_pass(P.ins)
    comp, info = compute(cfg, pl)
    w3, info3 = wave3(cfg, pl)
    info.update(info3)
    s = HDR + "; @launch grid=(256,1,1) block=(256,1,1) lds=163840\n"
    s += '.amdgcn_target "amdgcn-amd-amdhsa--gfx950"\n.text\n'
    s += f".globl {KNAME}\n.p2align 8\n.type {KNAME},@function\n{KNAME}:\n"
    s += render(pro) + render(comp) + render(w3) + "L_done:\n    s_endpgm\n"
    s += '.section .rodata,"a"\n.p2align 6\n' + kd(KNAME, 512, 256)
    return s, info, pl


if __name__ == "__main__":
    import build
    name = sys.argv[1]
    kw = {}
    for a in sys.argv[2:]:
        k, v = a.split("=", 1)
        try:
            v = eval(v)
        except Exception:
            pass
        kw[k] = v
    s, info, _ = generate(Cfg(**kw))
    open(name, "w").write(s)
    print(info)
    build.build(name)
```

```python
import re, sys
import gen9a as gen5, gen9b as gen6
from gen9a import *
from asmlib import Prog, hazard_pass, render

def generate(kw5, kw6, sel="j1"):
    c5, c6 = gen5.Cfg(codesh=16, **kw5), gen6.Cfg(codesh=16, **kw6)
    P = Prog()
    prologue(c5, P)
    last = P.ins[-2:]
    P.ins = P.ins[:-2]
    if sel == "j1":
        P(f"s_and_b32 s56, s{sJ}, 1\ns_cbranch_scc1 M_entry")
    elif sel == "j0":
        P(f"s_and_b32 s56, s{sJ}, 1\ns_cbranch_scc0 M_entry")
    P.ins += last
    pro, _ = hazard_pass(P.ins)
    pl5, pl6 = gen5.plan_ring(c5), gen6.plan(c6)
    a, i5 = gen5.compute(c5, pl5); b, _ = gen5.wave3(c5, pl5)
    c, i6 = gen6.compute(c6, pl6); d, _ = gen6.wave3(c6, pl6)
    body6 = "M_entry:\n" + render(last) + render(c) + render(d) + "L_done:\n    s_endpgm\n"
    body6 = re.sub(r"\bL_", "M_", body6)
    s = HDR + "; @launch grid=(256,1,1) block=(256,1,1) lds=163840\n"
    s += '.amdgcn_target "amdgcn-amd-amdhsa--gfx950"\n.text\n'
    s += f".globl {KNAME}\n.p2align 8\n.type {KNAME},@function\n{KNAME}:\n"
    s += render(pro) + render(a) + render(b) + "L_done:\n    s_endpgm\n" + body6
    s += '.section .rodata,"a"\n.p2align 6\n' + kd(KNAME, 512, 256)
    return s, (i5, i6)

if __name__ == "__main__":
    import build
    name = sys.argv[1]
    kw5, kw6, sel = {}, {}, "j1"
    for a in sys.argv[2:]:
        k, v = a.split("=", 1)
        try: v = eval(v)
        except Exception: pass
        if k == "sel": sel = v
        elif k.startswith("5."): kw5[k[2:]] = v
        elif k.startswith("6."): kw6[k[2:]] = v
        else: kw5[k] = v; kw6[k] = v
    s, info = generate(kw5, kw6, sel)
    open(name, "w").write(s); print(info); build.build(name)
```

```python
import copy
import math
import struct
import sys

from asmlib import Prog, parse, lgkm_pass, hazard_pass, render, est_cycles, R

KNAME = "concat_heads__mha_block_cached__gqa_block_cached__near_ridge_kernel"
HDR = open("concat_heads__mha_block_cached__gqa_block_cached__near_ridge.s.ref").read().split("; Override launch")[0]


def f2u(x):
    return struct.unpack("<I", struct.pack("<f", x))[0]


class Cfg:
    mapping = "16x8"
    kvf = " nt"
    wf = ""
    xf = ""
    pstf = " sc1"
    gf = " sc1"
    of = ""
    psleep = 2
    LA = 6
    LB = 4
    NB = 8
    colors = "defabcdabcdefabc" + "abc" * 3
    dmax = 99
    dwo = 2
    reqs = None
    park = (14, 16, 18)
    kv0 = (4, 5, 6)
    WR = 6
    raq = 4
    waitgrp = 4
    wqbatch = 1
    balance = True
    front = True
    stamp = False
    pf = True
    dbl = False
    pfx = False
    thr = 1024.0
    quota = (13, 24, 20) + (20,) * 12 + (21, 21) + (15,) * 6 + (3, 0)
    pf_wo_step = 1
    pf_wq_step = 12
    pf_wq0_step = 1
    dbg = None
    nobar = False
    noload = False
    delay = 0
    prof = False
    trace = False
    trace_it = 2
    warm = True
    codesh = 32
    pfc = True
    split = True
    vmcost = 4
    mmcost = 2
    dstamp = False
    tlb = 0
    gsp = 1
    pubs = {}
    half = 0

    def __init__(self, **kw):
        for k, v in kw.items():
            assert hasattr(Cfg, k), k
            setattr(self, k, v)


pK = [4, 5]
pV = [8, 9, 12, 13]
pWq = [6, 7, 10, 11]
pWo = []
vDL, vM3 = 10, 11
vL, vBS = 14, 15
vT = [16, 17, 18, 19]
vM, vM2, vST, vFL = 20, 21, 22, 23
FR0, NEGM, S0, P0, Q0, O0, OUTV, FRX = 24, 48, 64, 96, 112, 144, 208, 240
vL1, vBS1, vMX = NEGM + 8, NEGM + 9, NEGM + 10
OF = S0
pQ = 3
bK, bV, bWo, bM = 248, 249, 250, 251
vD = 252
sW, sB, sH = 3, 4, 5
SK, SV, SWQ, SWO, SX, SWS = 16, 20, 24, 28, 32, 36
sKV, sXo, sWQo, sWOo, sTMP, sIT, sC, sTHR, sT4K, sWSo = 42, 43, 44, 45, 46, 47, 48, 49, 50, 51
sJ, sPAIR, sCU = 52, 53, 59
SDB, SOUT = 68, 72
sTC = 80
sFLG = 89
SWQ2 = 92
SM = 96
sMB, sB0, sWB, sXM, sXM2, sXV = 90, 91, 66, 67, 100, 15
WRB = 24 * 4096
MF = "v_mfma_f32_32x32x16_bf16"
MF16 = "v_mfma_f32_16x16x32_bf16"
KX = (0, 16, 64, 80)
QBUF = 31 * 4096
XRES = 34 * 4096
FLAGBASE = 32 << 20
TORD = (0, 1, 2, 7, 8, 3, 4, 5, 6)


def srd(n):
    return f"s[{n}:{n + 3}]"


def w3_quads():
    return [("wq3", p, t, rb) for p in range(2) for t in TORD for rb in range(2)]


def w3_ops(cfg):
    quads = w3_quads()
    ops = []
    for p in range(2):
        pq = quads[18 * p:18 * p + 18]
        groups = [pq[0:2]] + [[q] for q in pq[2:16]] + [pq[16:18]]
        for grp in groups:
            if len(grp) == 2:
                seqv = [(q, s2, hb) for hb in range(2) for q in grp for s2 in range(2)]
            else:
                seqv = [(grp[0], s2, hb) for s2 in range(2) for hb in range(2)]
            for (q, s2, hb) in seqv:
                ks = 2 * q[2] + q[3]
                for j in range(3):
                    ops.append(dict(q=q, s2=s2, hb=hb, dt=2 * hb + s2, j=j, ks=ks, p=p, first=(q == pq[0]), last=(q == pq[17] and s2 == 1)))
    assert len(ops) == 432 == sum(cfg.quota)
    i = 0
    for s, n in enumerate(cfg.quota):
        for o in ops[i:i + n]:
            o["step"] = s
        i += n
    for i in range(0, 432, 3):
        for d in range(3):
            ops[i + d]["astep"] = ops[i]["step"]
    return ops


class Plan:
    pass


def plan_ring(cfg):
    pl = Plan()
    grp = [[("k", 0, 0), ("k", 0, 1), ("k", 1, 0), ("k", 1, 1)]]
    for u in range(1, 15):
        grp.append([("k", u + 1, 0), ("k", u + 1, 1), ("v", u - 1, 0), ("v", u - 1, 1)])
    grp.append([("v", 14, 0), ("v", 14, 1), ("v", 15, 0), ("v", 15, 1)])
    for t in range(9):
        grp.append([("wo", t, rb) for rb in range(4)])
    ns = len(grp)
    addr = {}
    for s_, g in enumerate(grp):
        for k, q in enumerate(g):
            addr[q] = (ord(cfg.colors[s_]) - 97) * 16384 + k * 4096
    start = []
    xslot = (QBUF, WRB, WRB + 12288) * 2 + (QBUF, XRES, XRES + 12288)
    for t in range(9):
        wq = [("wq", t, rb, cb) for rb in range(2) for cb in range(2)]
        for k, q in enumerate(wq):
            addr[q] = (ord(cfg.colors[16 + t]) - 97) * 16384 + k * 4096
        for rb in range(3):
            addr[("x", t, rb)] = xslot[t] + rb * 4096
        start.append(wq + [("x", t, rb) for rb in range(3)])
    for i, q in enumerate(w3_quads()):
        addr[q] = WRB + (i % cfg.WR) * 4096
    req = {b: [] for b in range(ns)}
    for g in range(ns):
        gap = next(d for d in range(1, ns + 1) if cfg.colors[(g - d) % ns] == cfg.colors[g])
        lead = min(gap - 1, cfg.dwo if g >= 16 else cfg.dmax)
        if cfg.reqs:
            lead = (g - cfg.reqs[g]) % ns
            assert lead <= gap - 1, (g, lead, gap)
        elif g < len(cfg.park):
            assert ns + g - cfg.park[g] <= lead
            lead = ns + g - cfg.park[g]
        assert lead >= 1
        req[(g - lead) % ns].append((g, g - lead < 0))
    for b in req:
        req[b].sort(key=lambda e: (e[0] < 16, e[1]))
    pl.req = req
    pl.pro = [g for b in range(ns) for g, w in req[b] if w]
    pl.sreq = {b: [] for b in range(-1, 9)}
    bb = -1
    for n_, g in enumerate(pl.pro):
        b = next(b for b in range(ns) if (g, True) in req[b])
        bb = max(bb, cfg.kv0[n_] if n_ < len(cfg.kv0) else b - 16)
        assert all(cfg.colors[16 + t] != cfg.colors[g] for t in range(max(bb, 0), 9))
        pl.sreq[bb].append(g)
    sissue = {b: [] for b in range(-1, 9)}
    lastuse = {}
    b = -1
    for t in range(9):
        for q in start[t]:
            lo = addr[q]
            b = max(b, lastuse.get(lo, -9) + 1)
            assert b < t
            sissue[b].append(q)
            lastuse[lo] = t
    pl.slast = lastuse
    pl.grp, pl.start, pl.addr, pl.sissue = grp, start, addr, sissue
    return pl


def prologue(cfg, A):
    A("s_cmp_ge_u32 s2, 256\ns_cbranch_scc1 L_done")
    if cfg.trace == "head":
        A("s_memrealtime s[60:61]\ns_waitcnt lgkmcnt(0)\ns_mov_b32 s101, s60")
    DSTAMP[0] = cfg.dstamp
    A(f"v_lshrrev_b32 v1, 6, v0\nv_and_b32 v0, 63, v0\nv_readfirstlane_b32 s{sW}, v1")
    A("s_and_b32 s6, s2, 4\ns_mul_i32 s6, s6, 10\ns_add_u32 s6, s0, s6\ns_addc_u32 s7, s1, 0")
    A("s_load_dwordx2 s[40:41], s[6:7], 0\ns_load_dwordx4 s[8:11], s[6:7], 8\ns_load_dwordx4 s[12:15], s[6:7], 24")
    A("s_load_dwordx2 s[54:55], s[0:1], 96\ns_load_dwordx4 s[76:79], s[0:1], 80")
    A(f"s_and_b32 s57, s2, 3\ns_lshr_b32 s{sJ}, s2, 3")
    if cfg.mapping == "16x8":
        A(f"s_lshr_b32 s{sB}, s{sJ}, 1\ns_and_b32 s{sH}, s{sJ}, 1\ns_lshl_b32 s{sH}, s{sH}, 2\ns_lshl_b32 s57, s57, 3\ns_add_u32 s{sH}, s{sH}, s57")
    elif cfg.mapping == "8x16":
        A(f"s_and_b32 s56, s57, 1\ns_lshl_b32 s56, s56, 3\ns_lshr_b32 s{sB}, s{sJ}, 2\ns_add_u32 s{sB}, s{sB}, s56")
        A(f"s_lshr_b32 s56, s57, 1\ns_lshl_b32 s56, s56, 4\ns_and_b32 s{sH}, s{sJ}, 3\ns_lshl_b32 s{sH}, s{sH}, 2\ns_add_u32 s{sH}, s{sH}, s56")
    else:
        A(f"s_lshl_b32 s56, s57, 2\ns_lshr_b32 s{sB}, s{sJ}, 3\ns_add_u32 s{sB}, s{sB}, s56\ns_and_b32 s{sH}, s{sJ}, 7\ns_lshl_b32 s{sH}, s{sH}, 2")
    if cfg.half:
        A(f"s_and_b32 s56, s{sB}, {cfg.half}\ns_cmp_lg_u32 s56, 0\ns_cbranch_scc1 L_done")
    A(f"s_lshl_b32 s{sKV}, s{sB}, 22\ns_lshl_b32 s56, s{sH}, 17\ns_add_u32 s{sKV}, s{sKV}, s56")
    A(f"s_mul_i32 s{sXo}, s{sB}, 110592\ns_lshl_b32 s{sWQo}, s{sH}, 8\ns_mul_i32 s{sWOo}, s{sH}, 147456")
    A(f"s_and_b32 s56, s2, 4\ns_lshl_b32 s56, s56, 2\ns_add_u32 s{sPAIR}, s56, s{sB}\ns_lshr_b32 s{sCU}, s{sH}, 2")
    for tau in range(9):
        A(f"s_add_u32 s56, s{sCU}, {1 + tau}\ns_cmp_ge_u32 s56, 9\ns_cselect_b32 s57, 9, 0\ns_sub_u32 s56, s56, s57\ns_lshl_b32 s{sTC + tau}, s56, 7")
    A(f"s_mov_b32 s{sIT}, 0\ns_mov_b32 s{sC}, {hex(f2u(math.log2(math.e) / math.sqrt(128.0)))}")
    A(f"s_cmp_eq_u32 s{sW}, 3\ns_cselect_b32 s56, s{sCU}, s{sW}\ns_mul_i32 s57, s{sPAIR}, 3\ns_add_u32 s56, s56, s57\ns_lshl_b32 s56, s56, 12\ns_add_u32 s{sFLG}, s56, {FLAGBASE}")
    A(f"s_cmp_eq_u32 s{sW}, 3\ns_cbranch_scc1 L_loader")


def descriptors(A):
    A("s_waitcnt lgkmcnt(0)")
    for d, b, n in ((SWQ, 12, 4718592), (SX, 40, 1769472), (SWS, 54, 290848768), (SK, 8, 0x4000000), (SV, 10, 0x4000000),
                    (SWO, 14, 4718592), (SWQ2, 12, 4718592), (SOUT, 76, 3538944), (SDB, 78, 256)):
        A(f"s_mov_b32 s{d}, s{b}\ns_mov_b32 s{d + 1}, s{b + 1}\ns_mov_b32 s{d + 2}, {n}\ns_mov_b32 s{d + 3}, 0x20000")
    if DSTAMP[0]:
        A("s_memrealtime s[60:61]\ns_memtime s[62:63]\ns_waitcnt lgkmcnt(0)\ns_mov_b32 s8, s60\ns_mov_b32 s11, s62")


DSTAMP = [False]


def tlb_warm(cfg, A, dst, tmp):
    n = 0
    if not cfg.tlb:
        return n
    A(f"v_lshlrev_b32 v{tmp}, {cfg.tlb}, v0\ns_mul_i32 s58, s{sPAIR}, 884736")
    for sr, base, span, fl in ((SK, f"s{sKV}", 1 << 19, " nt"), (SV, f"s{sKV}", 1 << 19, " nt"), (SWO, f"s{sWOo}", 589824, " nt"),
                               (SWQ, f"s{sWQo}", 4718592, " nt"), (SWS, "s58", 884736, " nt")):
        lanes = min(64, -(-span >> cfg.tlb))
        A(f"s_mov_b64 exec, {hex((1 << lanes) - 1)}" if lanes <= 32 else f"s_mov_b32 exec_lo, -1\ns_mov_b32 exec_hi, {hex((1 << (lanes - 32)) - 1)}")
        A(f"buffer_load_dword v{dst}, v{tmp}, {srd(sr)}, {base} offen{fl}")
        n += 1
    A("s_mov_b64 exec, -1")
    return n


def code_warm(A, dst, tmp, nsh=32):
    A(f"s_getpc_b64 s[56:57]\nL_pc0:\nv_mov_b32 v{tmp}, (L_done-L_pc0+{128 * nsh - 1})/{128 * nsh}\ns_lshr_b32 s62, s{sJ}, {1 if nsh == 16 else 0}\nv_mul_lo_u32 v{tmp + 1}, v{tmp}, s62\nv_min_u32 v{tmp}, v{tmp}, v0")
    A(f"v_add_u32 v{tmp}, v{tmp}, v{tmp + 1}\nv_lshlrev_b32 v{tmp}, 7, v{tmp}\nv_min_u32 v{tmp}, L_done-L_pc0, v{tmp}\nv_mov_b32 v{tmp + 1}, s57")
    A(f"v_add_co_u32 v{tmp}, vcc, s56, v{tmp}\nv_addc_co_u32 v{tmp + 1}, vcc, 0, v{tmp + 1}, vcc\nglobal_load_dword v{dst}, v[{tmp}:{tmp + 1}], off")


def sample_flags(A):
    A(f"v_and_b32 v1, 7, v0\nv_lshlrev_b32 v1, 2, v1\nbuffer_load_dword v{vFL}, v1, {srd(SWS)}, s{sFLG} offen sc1")


STAMP_BASE = 64 << 20


def stamp(cfg, A, k, who):
    if not cfg.stamp:
        return 0
    A("s_memrealtime s[60:61]\ns_memtime s[64:65]\ns_waitcnt lgkmcnt(0)")
    A(f"s_lshl_b32 s62, s2, 10\ns_lshl_b32 s63, s{sIT}, 7\ns_add_u32 s62, s62, s63\ns_add_u32 s62, s62, {STAMP_BASE + who * 512 + 8 * k}")
    t = 18 if who else 0
    if who:
        A(f"v_mov_b32 v{t}, s60\nv_mov_b32 v{t + 1}, s64\nv_mov_b32 v{t + 2}, 0\nbuffer_store_dwordx2 v[{t}:{t + 1}], v{t + 2}, {srd(SWS)}, s62 offen")
    else:
        A(f"v_mov_b32 v0, s60\nv_mov_b32 v1, s64\nv_mov_b32 v2, 0\nbuffer_store_dwordx2 v[0:1], v2, {srd(SWS)}, s62 offen")
        A("s_nop 1\nv_mbcnt_lo_u32_b32 v0, -1, 0\nv_mbcnt_hi_u32_b32 v0, -1, v0")
    return 1


class Sched:
    def __init__(self, cfg):
        self.cfg = cfg
        self.bias = {}
        self.nbuf = 0
        self.out = Prog()

    def fbuf(self):
        i = self.nbuf % self.cfg.NB
        self.nbuf += 1
        return FR0 + 4 * i if i < 6 else FRX + 4 * (i - 6)

    def lds(self, op, reg, preg, a):
        b = self.bias[preg]
        if not (0 <= a - b <= 65535):
            nb = a & ~4095
            self.out(f"v_add_u32 v{preg}, {(nb - b) & 0xffffffff}, v{preg}")
            self.bias[preg] = b = nb
        if op.startswith("ds_read"):
            self.out(f"{op} {reg}, v{preg} offset:{a - b}")
        else:
            self.out(f"{op} v{preg}, {reg} offset:{a - b}")

    def rebias(self, preg, nb):
        b = self.bias[preg]
        if b != nb:
            self.out(f"v_add_u32 v{preg}, {(nb - b) & 0xffffffff}, v{preg}")
            self.bias[preg] = nb


def spread(fill, ops_list, s0, s1):
    n = s1 - s0 + 1
    cost = [2 if isinstance(o, str) and o.startswith("v_exp") else 1 for o in ops_list]
    tot = sum(cost)
    acc = 0
    for o, c in zip(ops_list, cost):
        k = min(n - 1, int((acc + c / 2) * n / tot))
        fill.setdefault(s0 + k, []).append(o)
        acc += c


def spread_bal(cfg, ops, fill, ops_list, s0, s1):
    if not cfg.balance:
        return spread(fill, ops_list, s0, s1)
    base = []
    for i in range(s0, s1 + 1):
        o = ops[min(i + cfg.LA, len(ops) - 1)]
        base.append(len(o["a"]) + (cfg.mmcost if "mm" in ops[i] else 0) + (1 if i % cfg.waitgrp == 0 else 0) + sum(cfg.vmcost if isinstance(f, tuple) else 1 for f in fill.get(i, [])))
    cost = [2 if isinstance(o, str) and o.startswith("v_exp") else 1 for o in ops_list]
    level = (sum(cost) + sum(base)) / len(base)
    k, room = 0, level - base[0]
    for o, c in zip(ops_list, cost):
        while k < len(base) - 1 and room < c / 2:
            k += 1
            room += level - base[k]
        fill.setdefault(s0 + k, []).append(o)
        room -= c


def k_patterns(A, xform, off=None):
    A("v_bfe_u32 v16, v0, 2, 2\nv_and_b32 v2, 3, v0\nv_lshlrev_b32 v2, 7, v2\nv_lshl_add_u32 v2, v16, 10, v2")
    A("v_bfe_u32 v16, v0, 2, 1\nv_and_b32 v17, 2, v0\nv_or_b32 v16, v16, v17\nv_bfe_u32 v17, v0, 3, 1\nv_lshl_or_b32 v16, v17, 2, v16")
    A("v_bfe_u32 v17, v0, 5, 1\nv_xor_b32 v16, v16, v17\nv_bfe_u32 v17, v0, 4, 1\nv_lshlrev_b32 v17, 1, v17\nv_xor_b32 v16, v16, v17")
    A(f"v_lshl_add_u32 v{pK[0]}, v16, 4, v2\nv_xor_b32 v{pK[1]}, 64, v{pK[0]}")


def v_patterns(A):
    A("v_lshrrev_b32 v1, 4, v0\nv_bfe_u32 v2, v0, 2, 2\nv_lshlrev_b32 v16, 10, v1\nv_lshl_add_u32 v16, v2, 7, v16\nv_lshrrev_b32 v2, 1, v2")
    A("v_lshl_add_u32 v16, v2, 6, v16\nv_and_b32 v2, 1, v1\nv_lshl_add_u32 v16, v2, 5, v16\nv_and_b32 v2, 3, v0")
    A(f"v_lshl_add_u32 v{pV[0]}, v2, 3, v16")
    for j in range(1, 4):
        A(f"v_xor_b32 v{pV[j]}, {32 * j}, v{pV[0]}")


def x16_patterns(A, regs, off=None):
    A("v_lshrrev_b32 v1, 4, v0\nv_and_b32 v2, 15, v0\nv_lshrrev_b32 v16, 1, v2\nv_xor_b32 v16, v16, v1\nv_lshlrev_b32 v2, 7, v2")
    if off:
        A(f"v_add_u32 v2, s{off}, v2")
    A(f"v_lshl_add_u32 v{regs[0]}, v16, 4, v2\nv_xor_b32 v{regs[1]}, 64, v{regs[0]}")


def wq16_patterns(A, regs):
    A("v_lshrrev_b32 v1, 4, v0\nv_lshrrev_b32 v2, 2, v0\nv_and_b32 v2, 3, v2\nv_lshl_add_u32 v16, v1, 3, v2\nv_lshlrev_b32 v16, 7, v16")
    A("v_lshrrev_b32 v2, 1, v2\nv_lshl_add_u32 v16, v2, 6, v16\nv_and_b32 v2, 1, v1\nv_lshl_add_u32 v16, v2, 5, v16")
    A(f"v_and_b32 v2, 3, v0\nv_lshl_add_u32 v{regs[0]}, v2, 3, v16")
    for j in range(1, 4):
        A(f"v_xor_b32 v{regs[j]}, {32 * j}, v{regs[0]}")


def wo_shift(A):
    A(f"v_lshrrev_b32 v16, 4, v0\nv_lshlrev_b32 v16, 9, v16\nv_sub_u32 v{vDL}, 0, v16")


def kv_offsets(A, dk, dv):
    A("v_lshrrev_b32 v1, 3, v0\nv_and_b32 v1, 3, v1\nv_and_b32 v2, 7, v0\nv_lshrrev_b32 v16, 5, v0\nv_lshlrev_b32 v16, 7, v16\nv_lshl_add_u32 v16, v1, 8, v16")
    A(f"v_and_b32 v1, 2, v1\nv_xor_b32 v17, v1, v2\nv_lshl_add_u32 v{dk}, v17, 4, v16")
    A(f"v_lshlrev_b32 v1, 1, v1\nv_xor_b32 v17, v1, v2\nv_lshl_add_u32 v{dv}, v17, 4, v16")


def finish_unit(cfg, A, tag, nsrc, acc, w_sreg, t_sreg, publish, G=32):
    A("v_and_b32 v10, 7, v0\nv_lshlrev_b32 v1, 2, v10\nv_lshlrev_b32 v6, 4, v0")
    A(f"buffer_load_dword v2, v1, {srd(SWS)}, s{sFLG} offen sc1")
    A(f"s_mul_i32 s56, s{sPAIR}, 884736\ns_mul_i32 s57, s{t_sreg}, 3\ns_add_u32 s57, s57, s{w_sreg}\ns_lshl_b32 s57, s57, 15\ns_add_u32 s56, s56, s57")
    A(f"s_mul_i32 s60, s{sB}, 96\ns_lshl_b32 s58, s{w_sreg}, 5\ns_add_u32 s60, s60, s58\ns_mul_i32 s60, s60, 2304\ns_lshl_b32 s58, s{t_sreg}, 7\ns_add_u32 s60, s60, s58")
    A("s_and_b32 s58, s2, 4\ns_mul_i32 s58, s58, 288\ns_add_u32 s60, s60, s58")
    A("v_and_b32 v7, 15, v0\nv_mul_u32_u24 v7, 2304, v7\nv_lshrrev_b32 v3, 5, v0\nv_lshl_add_u32 v7, v3, 4, v7\nv_bfe_u32 v3, v0, 4, 1\nv_lshl_add_u32 v7, v3, 5, v7")
    A(f"v_sub_u32 v10, s{t_sreg}, v10\nv_add_u32 v3, 9, v10\nv_cmp_gt_i32 vcc, 1, v10\nv_cndmask_b32 v10, v10, v3, vcc")
    A(f"s_mov_b32 s62, {((1 << nsrc) - 1) << 1}\ns_mov_b32 s58, 0\ns_mov_b32 s64, {nsrc}")
    if nsrc == 8:
        for k in range(32):
            A(f"v_mov_b32 v{acc + k}, 0")
    A("v_and_b32 v4, 15, v0\nv_lshrrev_b32 v5, 4, v0\nv_lshlrev_b32 v5, 2, v5\nv_sub_u32 v4, v4, v5\nv_mov_b32 v8, 0x3f80\nv_mov_b32 v9, 0x3f800000")
    for i in range(2):
        A(f"v_cmp_eq_u32 vcc, {2 * i}, v4\nv_cmp_eq_u32 s[66:67], {2 * i + 1}, v4\nv_mov_b32 v5, 0\nv_cndmask_b32 v5, v5, v8, vcc\nv_cndmask_b32 v{24 + i}, v5, v9, s[66:67]")
    A("v_mov_b32 v26, 0\nv_mov_b32 v27, 0\nv_mov_b32 v28, v24\nv_mov_b32 v29, v25")
    if publish:
        A(f"v_add_u32 v3, 8, v{vFL}\ns_lshl_b32 s66, 1, s{sCU}\ns_mov_b32 s67, 0\ns_waitcnt vmcnt(0)\ns_mov_b64 exec, s[66:67]")
        A(f"buffer_store_dword v3, v1, {srd(SWS)}, s{sFLG} offen sc1\ns_mov_b64 exec, -1\ns_branch L_chk{tag}")
    A(f"L_poll{tag}:\ns_waitcnt vmcnt(0)\nL_chk{tag}:\nv_sub_u32 v3, v2, v{vFL}\nv_cmp_ge_u32 vcc, v3, v10")
    A(f"s_and_b32 s63, vcc_lo, 0xffff\ns_lshr_b32 s63, s63, s{sCU}\ns_and_b32 s63, s63, s62\ns_cbranch_scc1 L_some{tag}")
    A(f"s_add_u32 s58, s58, 1\ns_cmp_gt_u32 s58, 0x100000\ns_cbranch_scc1 L_out{tag}\ns_sleep {cfg.psleep}")
    A(f"buffer_load_dword v2, v1, {srd(SWS)}, s{sFLG} offen sc1\ns_branch L_poll{tag}\nL_some{tag}:")
    for i in range(nsrc, 0, -1):
        A(f"s_bitcmp1_b32 s63, {i}\ns_cbranch_scc0 L_nl{tag}{i}")
        A(f"s_add_u32 s57, s{sCU}, {i}\ns_and_b32 s57, s57, 7\ns_lshl_b32 s57, s57, 12\ns_add_u32 s57, s57, s56")
        for p in range(4):
            A(f"buffer_load_dwordx4 {R('v', G + 16 * (i - 1) + 4 * p, 4)}, v6, {srd(SWS)}, s57 offen offset:{1024 * p}{cfg.gf}")
        A(f"L_nl{tag}{i}:")
    A(f"buffer_load_dword v2, v1, {srd(SWS)}, s{sFLG} offen sc1\ns_andn2_b32 s62, s62, s63\ns_waitcnt vmcnt(1)")
    for i in range(nsrc, 0, -1):
        A(f"s_cmp_lg_u32 s64, {i}\ns_cbranch_scc1 L_na{tag}{i}\ns_bitcmp1_b32 s62, {i}\ns_cbranch_scc1 L_poll{tag}")
        for u in range(2):
            for p in range(4):
                d = R("v", acc + 16 * (p >> 1) + 4 * (p & 1) + 8 * u, 4)
                A(f"{MF16} {d}, {R('v', 24 + 2 * u, 4)}, {R('v', G + 16 * (i - 1) + 4 * p, 4)}, {d}")
        A(f"s_mov_b32 s64, {i - 1}\nL_na{tag}{i}:")
    A(f"L_out{tag}:\ns_nop 15")
    for p in range(4):
        for k in range(4):
            r = acc + 16 * (p >> 1) + 4 * (p & 1) + 8 * (k >> 1) + 2 * (k & 1)
            A(f"v_cvt_pk_bf16_f32 v{8 + 4 * p + k}, v{r}, v{r + 1}")
    A(f"s_add_u32 s57, s60, {16 * 2304}")
    for p in range(4):
        A(f"v_permlane16_swap_b32 v{8 + 4 * p}, v{10 + 4 * p}\nv_permlane16_swap_b32 v{9 + 4 * p}, v{11 + 4 * p}")
        A(f"buffer_store_dwordx4 {R('v', 8 + 4 * p, 4)}, v7, {srd(SOUT)}, s{57 if p & 1 else 60} offen offset:{64 * (p >> 1)}{cfg.of}")
    if cfg.stamp and publish:
        A("s_waitcnt vmcnt(0)")
        stamp(cfg, A, 5, 0)
    if cfg.dstamp and publish:
        A(f"s_waitcnt vmcnt(0)\ns_and_b32 s56, s2, 0xf3\ns_or_b32 s56, s56, s{sW}\ns_cmp_lg_u32 s56, 0\ns_cbranch_scc1 L_nods{tag}")
        A("s_memrealtime s[60:61]\ns_memtime s[62:63]\ns_waitcnt lgkmcnt(0)\ns_sub_u32 s9, s9, s8\ns_sub_u32 s10, s10, s8\ns_sub_u32 s60, s60, s8\ns_sub_u32 s62, s62, s11")
        A(f"v_mov_b32 v4, s9\nv_mov_b32 v5, s10\nv_mov_b32 v6, s60\nv_mov_b32 v7, s62\ns_lshl_b32 s56, s2, 2\nv_mov_b32 v8, s56\ns_mov_b64 exec, 1")
        A(f"buffer_store_dwordx4 v[4:7], v8, {srd(SDB)}, 0 offen\nL_nods{tag}:")
    A("s_endpgm")


def last_fill(cfg, fb):
    for t in range(1, 9):
        s0 = 256 + 16 * t
        if t in cfg.pubs:
            fb.setdefault(s0 + 2, []).append({"pub": cfg.pubs[t]})
        spread(fb, store_block(cfg, 2 * t - 2, Q0, P0) + store_block(cfg, 2 * t - 1, Q0 + 16, P0 + 8), s0 + 3, s0 + 15)
    fb.setdefault(274, []).append(f"v_and_b32 v1, 7, v0\nv_lshlrev_b32 v1, 2, v1\ns_lshl_b32 s64, 1, s{sCU}\ns_mov_b32 s65, 0")


vK, vV, vWq, vWo, vX = 24, 28, 32, 36, 176
W3A = 40
W3B = 52
W3T = W3B
W3X = 76
W3ACC = 160
vTQ, vTO, vTX, vDUM = 12, 13, 14, 15
pQ3 = 22
pX3, pW3 = [4, 5], [6, 7, 8, 9]


def xreg(ks, j):
    i = ks * 6 + j
    return R("a", 4 * i, 4) if i < 64 else R("v", W3X + 4 * (i - 64), 4)


def wave3(cfg, pl):
    addr = pl.addr
    sc = Sched(cfg)
    A = sc.out
    A("L_loader:")
    if cfg.prof:
        A("s_mov_b32 s96, 0\ns_mov_b32 s97, 0\ns_mov_b32 s98, 0\ns_mov_b32 s99, 0")
    x16_patterns(A, pX3)
    wq16_patterns(A, pW3)
    A(f"v_lshlrev_b32 v{pQ3}, 4, v0")
    for p in pX3 + pW3 + [pQ3]:
        sc.bias[p] = 0
    A("v_lshrrev_b32 v1, 3, v0\nv_and_b32 v2, 7, v0\nv_lshrrev_b32 v3, 4, v0")
    A("v_and_b32 v16, 1, v3\nv_lshlrev_b32 v16, 2, v16\nv_xor_b32 v16, v16, v2\nv_lshlrev_b32 v16, 4, v16")
    A("v_lshlrev_b32 v18, 8, v1\nv_lshlrev_b32 v19, 13, v1\nv_mul_u32_u24 v20, 1152, v1")
    for g in range(4):
        A(f"v_add_u32 v17, {4 * g}, v3\nv_and_b32 v17, 7, v17\nv_xor_b32 v17, v17, v2\nv_lshlrev_b32 v17, 4, v17")
        A(f"v_add_u32 v17, {g * (9216 - 1024)}, v17\nv_add_u32 v{vX + g}, v17, v20")
        A(f"v_xor_b32 v17, {32 * (g & 1)}, v16\nv_add_u32 v17, {g * (65536 - 1024)}, v17\nv_add_u32 v{vWq + g}, v17, v19")
        A(f"v_lshrrev_b32 v21, 5, v0\nv_lshlrev_b32 v21, 5, v21\nv_xor_b32 v21, v21, v16\nv_add_u32 v17, {g * (9216 - 1024)}, v21\nv_add_u32 v{vWo + g}, v17, v20")
    kv_offsets(A, vK, vV)
    for g in range(1, 4):
        A(f"v_xor_b32 v{vK + g}, {KX[g]}, v{vK}\nv_xor_b32 v{vV + g}, {32 * (g & 1)}, v{vV}")
    nsh = {"16x8": 16, "8x16": 8, "4x32": 4}[cfg.mapping]
    xsh = 32 // nsh
    rows = 576 // nsh
    A(f"s_and_b32 s56, s{sB}, {nsh - 1}\nv_mov_b32 v21, 0x7fffff00\nv_cmp_gt_u32 vcc, 36, v0")
    A(f"v_lshrrev_b32 v{vTQ}, 1, v0\nv_lshlrev_b32 v{vTQ}, 13, v{vTQ}\nv_and_b32 v17, 1, v0\nv_lshlrev_b32 v17, 7, v17\nv_add_u32 v{vTQ}, v{vTQ}, v17")
    A(f"s_mul_i32 s57, s56, {rows * 8192}\nv_add_u32 v{vTQ}, s57, v{vTQ}\nv_cndmask_b32 v{vTQ}, v21, v{vTQ}, vcc")
    A(f"v_lshlrev_b32 v{vTO}, 7, v0\ns_mul_i32 s57, s56, {rows * 256}\nv_add_u32 v{vTO}, s57, v{vTO}\nv_cndmask_b32 v{vTO}, v21, v{vTO}, vcc")
    A(f"v_cmp_gt_u32 vcc, 54, v0\nv_lshlrev_b32 v{vTX}, 7, v0\ns_and_b32 s57, s{sCU}, {xsh - 1}\ns_mul_i32 s57, s57, {110592 // xsh}\nv_add_u32 v{vTX}, s57, v{vTX}")
    A(f"v_cndmask_b32 v{vTX}, v21, v{vTX}, vcc")

    def touch_ops(vreg, srd_, base, add, step, nl=rows * 2, per=36):
        l = []
        if not cfg.pf:
            return l
        for i in range(nl // per):
            l.append(f"s_add_u32 s{sTMP}, s{base}, {i * per * step + add}")
            for fl in ((" nt", "") if cfg.dbl else ("",)):
                l.append(("vm", f"buffer_load_dword v{vDUM}, v{vreg}, {srd(srd_)}, s{sTMP} offen{fl}"))
        return l

    def quad_ops(q, w=False):
        k = q[0]
        pre = []
        if k == "k":
            off, base, v, sr, fl = q[1] * 8192 + q[2] * 4096, sKV, vK, SK, cfg.kvf
        elif k == "v":
            off, base, v, sr, fl = q[1] * 8192 + q[2] * 4096, sKV, vV, SV, cfg.kvf
        elif k == "wq":
            off, base, v, sr, fl = (q[1] * 64 + q[2] * 32) * 8192 + q[3] * 128, sWQo, vWq, SWQ, cfg.wf
        elif k == "wq3":
            off, base, v, sr, fl = (q[2] * 64 + q[3] * 32) * 8192 + q[1] * 128 + 256, sWQo, vWq, (SWQ2 if w else SWQ), cfg.wf
        elif k == "x":
            off, base, v, sr, fl = q[2] * 32 * 1152 + q[1] * 128, sXo, vX, SX, cfg.xf
        else:
            pre = [f"s_add_u32 s{sTMP}, s{sWOo}, s{sTC + q[1]}"]
            off, base, v, sr, fl = q[2] * 32 * 1152, sTMP, vWo, SWO, cfg.wf
        l = pre + [f"s_mov_b32 m0, {addr[q]}", f"s_add_u32 s{sTMP}, s{base}, {off}"]
        for g in range(4):
            if not cfg.noload:
                l.append(("vm", f"buffer_load_dwordx4 v{v + g}, {srd(sr)}, s{sTMP} offen offset:{g * 1024}{fl} lds", q, g))
        return l

    lin = []

    def put(sc_, o, gen=0):
        if isinstance(o, tuple):
            sc_.out(o[1])
            lin.append((o[2] if len(o) > 2 else None, gen))
        elif callable(o):
            o(sc_)
        else:
            sc_.out(o)

    def wait_for(sc_, quads, gen):
        if cfg.noload:
            return
        last = max(k for k, e in enumerate(lin) if e[0] in quads and e[1] == gen)
        sc_.out(f"s_waitcnt vmcnt({min(63, len(lin) - 1 - last)})")

    def bar(sc_):
        if not cfg.nobar:
            sc_.out("s_barrier")

    descriptors(A)
    if stamp(cfg, A, 15, 1):
        lin.append((None, 0))
    if cfg.delay:
        A(f"s_and_b32 s56, s{sB}, 1\ns_cmp_eq_u32 s56, 0\ns_cbranch_scc1 L_nodelay")
        for _ in range(cfg.delay):
            A("s_sleep 32")
        A("L_nodelay:")
    for n_, q in enumerate(pl.sissue[-1]):
        for o in quad_ops(q):
            put(sc, o)
        if n_ == 6:
            sample_flags(A)
            lin.append((("flag",), 0))
    bias0 = {p: XRES for p in pX3}
    bias0.update({p: WRB for p in pW3})
    bias0[pQ3] = QBUF
    ops = w3_ops(cfg)
    quads = w3_quads()
    ns = len(pl.grp)

    def conv_tile(p, hb, j):
        l = []
        for e in range(2):
            pk = W3T + 4 + 4 * e
            for x in range(2):
                acc = W3ACC + 4 * (6 * (2 * hb + x) + 2 * j + e)
                for y in range(2):
                    t0 = W3T + 2 * y
                    l += [f"v_mul_f32 v{t0}, s{sC}, v{acc + 2 * y}", f"v_mul_f32 v{t0 + 1}, s{sC}, v{acc + 2 * y + 1}"]
                l += [f"v_cvt_pk_bf16_f32 v{pk + 2 * x + y}, v{W3T + 2 * y}, v{W3T + 2 * y + 1}" for y in range(2)]
            l += ["s_nop 0", f"v_permlane16_swap_b32 v{pk}, v{pk + 2}", f"v_permlane16_swap_b32 v{pk + 1}, v{pk + 3}"]
            l.append(lambda sc_, pk=pk, a=QBUF + (j * 4 + 2 * hb + e) * 1024: sc_.lds("ds_write_b128", R("v", pk, 4), pQ3, a))
        return l

    def period(last, pro):
        nonlocal lin
        sc2 = Sched(cfg)
        sc2.bias = dict(bias0)
        B = sc2.out
        lin = [(q, 0) for q in pro for g in range(4)] if not cfg.noload else []
        myops = [] if last else copy.deepcopy(ops)
        n = len(myops)
        fill = {}
        bpos = {s: (sum(cfg.quota[:s]) if not last else 0) for s in range(ns + 1)}
        enq = {}
        if not last:
            lastidx = {(o["p"], o["hb"], o["j"]): i for i, o in enumerate(ops) if o["last"]}
            for p, hb in ((0, 0), (1, 0), (0, 1)):
                i0 = lastidx[(p, hb, 2)]
                spread(fill, sum((conv_tile(p, hb, j) for j in range(3)), []), i0 + 4, i0 + 12)
            assert lastidx[(0, 1, 2)] + 16 <= bpos[18] and lastidx[(1, 0, 2)] + 4 >= bpos[19]
            firstop = {q: min(i for i, o in enumerate(ops) if o["q"] == q) for q in quads}
            lastop = {q: max(i for i, o in enumerate(ops) if o["q"] == q) - 2 for q in quads}
            seg = lambda i: max(s for s in range(ns) if bpos[s] <= i)
            at = 0
            for k in range(36, 72):
                prev = max(j for j in range(k) if addr[quads[j % 36]] == addr[quads[k % 36]])
                free = lastop[quads[prev % 36]] + 1 + (prev // 36 - 1) * n
                sneed = seg(firstop[quads[k % 36]]) - cfg.raq
                early = bpos[sneed] if sneed >= 0 else bpos[sneed + ns] - n
                at = max(free, early) if k == 36 else max(at, free, early)
                assert at <= firstop[quads[k % 36]] - 5
                enq.setdefault(at % n if at < 0 else at, []).append((quads[k % 36], at < 0))
        st = dict(wrapq=False, wrapg=False, rdA=0, rdB=0, abuf=0, bbuf=0, step=-1)
        queue = []

        def drain(nvm):
            while queue and nvm > 0:
                o, g = queue.pop(0)
                put(sc2, o, g)
                nvm -= isinstance(o, tuple)

        def open_step(s):
            if cfg.trace is True:
                B(f"s_memtime s[60:61]\ns_waitcnt lgkmcnt(0)\nv_writelane_b32 v2, s60, {s}")
            wait_for(sc2, {pl.grp[s][3]}, 0)
            if cfg.trace is True:
                B(f"s_memtime s[60:61]\ns_waitcnt lgkmcnt(0)\nv_writelane_b32 v2, s60, {32 + s}")
            if s in (0, 16):
                if stamp(cfg, B, {0: 1, 16: 2}[s], 1):
                    lin.append((None, 0))
            if last and s == 16:
                B("v_readfirstlane_b32 s57, v17\ns_mov_b32 s58, 0\nL_chk:\ns_cmp_ge_u32 s57, 8\ns_cbranch_scc1 L_chkend")
                B(f"buffer_load_dword v17, v16, {srd(SDB)}, 0 offen offset:{128 if cfg.dstamp else 0} sc1\ns_add_u32 s58, s58, 1\ns_waitcnt vmcnt(0)\nv_readfirstlane_b32 s57, v17")
                B("s_cmp_lt_u32 s58, 0x80000\ns_cbranch_scc1 L_chk\nL_chkend:")
            bar(sc2)
            for g, w in pl.req[s]:
                if w and not st["wrapg"]:
                    st["wrapg"] = True
                    queue.append((f"s_add_u32 s{sKV}, s{sKV}, 0x20000", 0))
                assert g >= 16 or w == st["wrapg"]
                if not (last and w):
                    queue.extend((o, int(w)) for o in quad_ops(pl.grp[g][3]))
            if last and s == 2:
                queue.extend([(f"s_lshl_b32 s56, s{sPAIR}, 2", 0), ("v_mov_b32 v16, s56", 0), (("vm", f"buffer_load_dword v17, v16, {srd(SDB)}, 0 offen offset:{128 if cfg.dstamp else 0} sc1"), 0)])
            if s == cfg.pf_wo_step:
                queue.extend((o, 0) for o in touch_ops(vTO, SWO, sWOo, 0, 128))
            if s == cfg.pf_wq_step and not last:
                queue.append((f"s_cmp_eq_u32 s{sIT}, 2\ns_cselect_b32 s{SWQ2 + 2}, 0, s{SWQ2 + 2}", 0))
                queue.extend((o, 0) for o in touch_ops(vTQ, SWQ2, sWQo, 512, 4096))
            if cfg.warm and s == 9 and not last:
                queue.append(("s_call_b64 s[40:41], L_warm_more", 0))
            if bpos[s + 1] == bpos[s]:
                drain(99)
            st["step"] = s

        for i in range(n):
            while st["step"] + 1 < ns and bpos[st["step"] + 1] <= i:
                open_step(st["step"] + 1)
            for q, w in enq.get(i, []):
                if w and not st["wrapq"]:
                    st["wrapq"] = True
                    queue.append((f"s_add_u32 s{sWQo}, s{sWQo}, 256", 0))
                assert w == st["wrapq"]
                queue.extend((o, int(w)) for o in quad_ops(q, w))
            while st["rdA"] < n and st["rdA"] <= i + 5:
                o = myops[st["rdA"]]
                if st["rdA"] == firstop[o["q"]] and not cfg.noload:
                    while lin.count((o["q"], 0)) < 4:
                        drain(1)
                    wait_for(sc2, {o["q"]}, 0)
                fb = W3A + 4 * (st["abuf"] % 3)
                st["abuf"] += 1
                sc2.lds("ds_read_b64_tr_b16", R("v", fb, 2), pW3[o["dt"]], addr[o["q"]])
                sc2.lds("ds_read_b64_tr_b16", R("v", fb + 2, 2), pW3[o["dt"]], addr[o["q"]] + 4 * 128)
                for d in range(3):
                    myops[st["rdA"] + d]["areg"] = fb
                st["rdA"] += 3
            while st["rdB"] < n and st["rdB"] <= i + 2:
                o = myops[st["rdB"]]
                if o["ks"] >= 14 and st["rdB"] - o["j"] == firstop[o["q"]]:
                    for e in range(2):
                        qt = 2 * o["j"] + e
                        sc2.lds("ds_read_b128", R("v", W3B + 4 * qt, 4), pX3[o["ks"] & 1], XRES + ((o["ks"] >> 1) - 7) * 12288 + qt * 2048)
                st["rdB"] += 1
            o = myops[i]
            fl = fill.get(i, [])
            for e in range(2):
                if e:
                    drain(1)
                for f in (fl[len(fl) // 2:] if e else fl[:len(fl) // 2]):
                    put(sc2, f)
                qt = 2 * o["j"] + e
                d = R("v", W3ACC + 4 * (6 * o["dt"] + qt), 4)
                b = xreg(o["ks"], qt) if o["ks"] < 14 else R("v", W3B + 4 * qt, 4)
                B(f"{MF16} {d}, {R('v', o['areg'], 4)}, {b}, {'0' if o['first'] else d}")
        drain(99)
        if not last:
            for o in sum((conv_tile(1, 1, j) for j in range(3)), []):
                put(sc2, o)
            B("s_waitcnt lgkmcnt(0)")
            assert st["step"] + 1 < ns
        while st["step"] + 1 < ns:
            open_step(st["step"] + 1)
        tailq = [e[0] for e in lin if e[1] == 1][::4]
        if not last:
            B(f"s_add_u32 s{sWOo}, s{sWOo}, 147456")
            for p, b in bias0.items():
                sc2.rebias(p, b)
            if cfg.trace is True:
                B(f"s_cmp_lg_u32 s{sIT}, {cfg.trace_it}\ns_cbranch_scc1 L_notr3\nv_lshlrev_b32 v1, 2, v0\ns_lshl_b32 s62, s2, 10\ns_add_u32 s62, s62, {STAMP_BASE + 768}")
                B(f"buffer_store_dword v2, v1, {srd(SWS)}, s62 offen\ns_waitcnt vmcnt(0)\nL_notr3:")
            B(f"s_add_u32 s{sIT}, s{sIT}, 1\ns_cmp_lt_u32 s{sIT}, 3\ns_cbranch_scc1 L_w3loop")
        body, pe = lgkm_pass(B.ins)
        assert not pe
        return body, tailq

    lin0 = list(lin)
    _, pro = period(False, [pl.grp[g][3] for g in pl.pro] + quads[:cfg.WR])
    loopbody, pro2 = period(False, pro)
    assert pro2 == pro
    lastp, _ = period(True, pro)
    lin = lin0
    if cfg.noload:
        pro = []
    todo = list(pro)
    for t in range(9):
        wait_for(sc, set(pl.start[t]) | ({("flag",)} if t == 0 else set()), 0)
        A("s_waitcnt lgkmcnt(0)")
        bar(sc)
        if t == 0:
            A(f"s_lshl_b32 s56, s{sPAIR}, 2\nv_mov_b32 v16, s56\nv_mov_b32 v17, 1\ns_mov_b64 exec, 1")
            put(sc, ("vm", f"buffer_atomic_add v17, v16, {srd(SDB)}, 0 offen offset:{128 if cfg.dstamp else 0} sc1"))
            A("s_mov_b64 exec, -1")
        if t < 7:
            for s in range(2):
                for j in range(6):
                    sc.lds("ds_read_b128", xreg(2 * t + s, j), pX3[s], addr[("x", t, 0)] + j * 2048)
        if t == cfg.pf_wq0_step:
            for o in touch_ops(vTQ, SWQ, sWQo, 256, 4096):
                put(sc, o)
        for q in pl.sissue[t]:
            for o in quad_ops(q):
                put(sc, o)
        while todo:
            q = todo[0]
            if q[0] == "wq3":
                if pl.slast.get(addr[q], -9) >= t:
                    break
                if any(pl.sissue[b] for b in range(t + 1, 9)):
                    break
            elif not any(pl.grp[g][3] == q for b in range(-1, t + 1) for g in pl.sreq[b]):
                break
            for o in quad_ops(todo.pop(0)):
                put(sc, o)
    assert not todo
    for p, b in bias0.items():
        sc.rebias(p, b)
    A("s_waitcnt lgkmcnt(0)")
    head, pend = lgkm_pass(sc.out.ins)
    loop = [parse("L_w3loop:")] + loopbody
    T = Prog()
    if cfg.prof:
        T(f"v_mov_b32 v16, s96\nv_mov_b32 v17, s97\nv_mov_b32 v18, s98\nv_mov_b32 v19, s99\nv_mov_b32 v20, 0\ns_lshl_b32 s62, s2, 10\ns_add_u32 s62, s62, {STAMP_BASE + 512 + 64}")
        T(f"buffer_store_dwordx4 v[16:19], v20, {srd(SWS)}, s62 offen")
    T(f"s_cmp_ge_u32 s{sCU}, 3\ns_cbranch_scc1 L_done")
    T("s_mov_b32 s61, 8")
    finish_unit(cfg, T, "w3", 8, 192, sCU, 61, False)
    allins, nn = hazard_pass(head + loop + lastp + T.ins, verbose=cfg.dbg == "nops3")
    return allins, dict(w3nops=nn, w3est=est_cycles(loop))


def acc_out(nb):
    return R("a", 16 * nb, 16) if nb < 16 else R("v", OUTV + 16 * (nb - 16), 16)


def q_ops(addr):
    ops = []
    for t in range(9):
        order = [(rb, dt) for rb in range(2) for dt in range(8)] if t < 8 else [(rb, 2 * b + x) for b in range(4) for rb in range(2) for x in range(2)]
        seen = set()
        for (rb, dt) in order:
            qa = addr[("wq", t, rb, dt >> 2)]
            xb = S0 + 8 * ((t * 2 + rb) % 4)
            mm = []
            for e in range(2):
                d = R("v", O0 + 8 * dt + 4 * e, 4)
                mm.append((d, R("v", xb + 4 * e, 4), "0" if (t == 0 and rb == 0) else d))
            o = dict(step=t, a=[("tr", pWq[dt & 3], qa), ("tr", pWq[dt & 3], qa + 512)], mm=mm)
            if rb not in seen:
                seen.add(rb)
                o["x"] = [(xb + 4 * e, pK[rb], addr[("x", t, 0)] + 2048 * e) for e in range(2)]
            ops.append(o)
    return ops


def item_ops(addr):
    ops = []

    def qk(u, step):
        base = S0 + 16 * (u & 1) if u else O0
        for kt in range(2):
            for ds in range(4):
                mm = []
                for e in range(2):
                    d = R("v", base + 8 * e + 4 * kt, 4)
                    mm.append((d, R("v", Q0 + 8 * ds + 4 * e, 4), d if ds else ("0" if u < 2 else R("v", NEGM + 4 * e, 4))))
                ops.append(dict(step=step, a=[("b128", pK[ds & 1], addr[("k", u, kt)] + (ds >> 1) * 512)], mm=mm))

    def pv(u, step, bmajor=False):
        for dt in range(8):
            va = addr[("v", u, 0)] + (dt >> 2) * 512
            mm = []
            for e in range(2):
                d = R("v", O0 + 8 * dt + 4 * e, 4)
                mm.append((d, R("v", P0 + 8 * (u & 1) + 4 * e, 4), "0" if u == 0 else d))
            ops.append(dict(step=step, a=[("tr", pV[dt & 3], va), ("tr", pV[dt & 3], va + 4096)], mm=mm))
    qk(0, 0)
    qk(1, 0)
    for u in range(1, 15):
        qk(u + 1, u)
        pv(u - 1, u)
    pv(14, 15)
    pv(15, 15, True)
    for t in range(9):
        for b in range(4):
            for nt in range(4):
                wa = addr[("wo", t, b)]
                mm = []
                for e in range(2):
                    r = 32 * t + 8 * nt + 4 * e
                    d = R("a", r, 4) if t < 8 else R("v", OUTV + r - 256, 4)
                    mm.append((d, R("v", OF + 8 * b + 4 * e, 4), d))
                ops.append(dict(step=16 + t, a=[("tr", pV[nt], wa), ("tr", pV[nt], wa + 2048)], mm=mm, alt=(b == 0)))
    ops[256]["pre"] = [f"v_add_u32 v{p}, v{p}, v{vDL}" for p in pV]
    assert len(ops) == 400
    return ops


def softmax_ops(u, first=False):
    S, P = S0 + 16 * (u & 1), P0 + 8 * (u & 1)
    if first:
        S = O0
    l = []
    for k in range(9):
        a, b = vT[2 * (k & 1)], vT[2 * (k & 1) + 1]
        pa, pb = vT[2 * ((k - 1) & 1)], vT[2 * ((k - 1) & 1) + 1]
        bs = vBS if k - 1 < 4 else vBS1
        if k < 8:
            l.append(f"v_exp_f32 v{a}, v{S + 2 * k}")
        if k in (1, 5):
            l.append(f"v_add_f32 v{bs}, v{pa}, v{pb}")
        elif k:
            l.append(f"v_add_f32 v{bs}, v{bs}, v{pa}")
        if k < 8:
            l.append(f"v_exp_f32 v{b}, v{S + 2 * k + 1}")
        if k:
            l.append(f"v_cvt_pk_bf16_f32 v{P + k - 1}, v{pa}, v{pb}")
        if k and k not in (1, 5):
            l.append(f"v_add_f32 v{bs}, v{bs}, v{pb}")
    return l


def across(op, x, y, t, mid=()):
    return [f"v_permlane16_swap_b32 v{x}, v{y}", f"{op} v{x}, v{x}, v{y}", f"v_mov_b32 v{t}, v{x}", f"v_permlane32_swap_b32 v{x}, v{t}",
            f"{op} v{x}, v{x}, v{t}"] + list(mid) + [f"v_mov_b32 v{y}, v{x}", f"v_permlane16_swap_b32 v{x}, v{y}"]


def conv_o(b):
    l = []
    for e, sc_ in ((0, vM), (1, vM3)):
        for x in range(2):
            r = O0 + 8 * (2 * b + x) + 4 * e
            l += [f"v_mul_f32 v{r + i}, v{sc_}, v{r + i}" for i in range(4)]
            l += [f"v_cvt_pk_bf16_f32 v{OF + 8 * b + 4 * e + 2 * x + y}, v{r + 2 * y}, v{r + 2 * y + 1}" for y in range(2)]
    return l


def conv_q(b):
    l = []
    for e in range(2):
        dst = Q0 + 8 * b + 4 * e
        for x in range(2):
            r = O0 + 8 * (2 * b + x) + 4 * e
            l += [f"v_mul_f32 v{r + i}, s{sC}, v{r + i}" for i in range(4)]
            l += [f"v_cvt_pk_bf16_f32 v{dst + 2 * x + y}, v{r + 2 * y}, v{r + 2 * y + 1}" for y in range(2)]
    for e in range(2):
        dst = Q0 + 8 * b + 4 * e
        l += [f"v_permlane16_swap_b32 v{dst}, v{dst + 2}", f"v_permlane16_swap_b32 v{dst + 1}, v{dst + 3}"]
    return l


def rowmax(S):
    l = []
    for k in range(4):
        for m, r in ((vM, S), (vM3, S + 8)):
            l.append(f"v_max3_f32 v{m}, v{r}, v{r + 1}, v{r + 2}" if k == 0 else f"v_max3_f32 v{m}, v{m}, v{r + 1 + 2 * k}, v{r + 2 + 2 * k}" if k < 3
                     else f"v_max_f32 v{m}, v{m}, v{r + 7}")
    return l + across("v_max_f32", vM, vM3, vM2)


def with_subs(S, sm):
    sub = [f"v_sub_f32 v{S + i}, v{S + i}, v{vM3 if i & 8 else vM}" for i in range(16)]
    l, k = sub[:4], 4
    for o in sm:
        l.append(o)
        if o.startswith("v_exp") and k < 16:
            l.append(sub[k])
            k += 1
    return l


def item_fill(cfg, ops, fill):
    post = {}
    chk = [f"v_max_f32 v{vMX}, v{vBS}, v{vBS1}", f"v_cmp_lt_f32 vcc, s{sTHR}, v{vMX}"]
    spread(fill, rowmax(O0) + [f"v_sub_f32 v{NEGM + i}, 0, v{vM3 if i & 4 else vM}" for i in range(8)], 10, 15)
    spread(fill, with_subs(O0, softmax_ops(0, True)) + [f"v_mov_b32 v{vL}, v{vBS}", f"v_mov_b32 v{vL1}, v{vBS1}"], 16, 23)
    spread(fill, with_subs(S0 + 16, softmax_ops(1)) + chk, 24, 31)
    post[31] = 1
    for u in range(2, 15):
        su = 16 * u
        spread_bal(cfg, ops, fill, softmax_ops(u) + chk, su, su + 15)
        post[su + 15] = u
    spread(fill, softmax_ops(15) + chk, 240, 247)
    post[247] = 15
    spread(fill, [f"v_mov_b32 v{vM}, v{vL}", f"v_mov_b32 v{vM3}, v{vL1}"] + across("v_add_f32", vM, vM3, vM2, [f"v_rcp_f32 v{vM}, v{vM}"]), 248, 252)
    spread(fill, conv_o(0), 253, 255)
    spread(fill, conv_o(1), 256, 259)
    spread(fill, conv_o(2), 260, 263)
    spread(fill, conv_o(3), 264, 267)
    return post


def store_block(cfg, nb, tmp, pk):
    l = []
    if not nb & 1:
        l += [f"s_mul_i32 s56, s{sTC + (nb >> 1)}, 768", f"s_add_u32 s56, s56, s{sWSo}"]
    for u in range(2):
        for k in range(8):
            l.append(f"v_accvgpr_read_b32 v{tmp + 8 * u + k}, a{16 * nb + 4 * u + 8 * (k >> 2) + (k & 3)}")
        for k in range(4):
            i = 8 * u + 2 * k
            l.append(f"v_cvt_pk_bf16_f32 v{pk + 4 * u + k}, v{tmp + i}, v{tmp + i + 1}")
        l.append((f"buffer_store_dwordx4 {R('v', pk + 4 * u, 4)}, v{vST}, {srd(SWS)}, s56 offen offset:{((nb & 1) * 2 + u) * 1024}{cfg.pstf}", ("st", nb >> 1)))
    return l


VMCOST = 4


def emit_slots(cfg, sc, ops, fill, post, lo, hi, st, stubs, stamps={}, nextops=None):
    LA = cfg.LA
    first = {}
    if nextops:
        ops = ops + [dict(o, step=ops[-1]["step"] + 1) for o in nextops]
    for i, o in enumerate(ops):
        first.setdefault(o["step"], i)
    for i in range(lo, hi):
        nx = st["step"] + 1
        if nextops and nx == ops[-1]["step"] and i >= first[nx] - cfg.LB:
            st["tag"], st["alias"] = "n", 0
            for p, b in st["rebias"].items():
                sc.rebias(p, b)
            for p in pV:
                sc.out(f"v_sub_u32 v{p}, v{p}, v{vDL}")
        if nx in first and i >= first[nx] - (cfg.LB if nx else LA):
            if cfg.dstamp and nx in stamps and stamps[nx] in (1, 2) and (stamps[nx] == 2 or nx == 0):
                sc.out(f"s_memrealtime s[60:61]\ns_waitcnt lgkmcnt(0)\ns_mov_b32 s{8 + stamps[nx]}, s60")
            if nx in stamps and stamp(cfg, sc.out, stamps[nx], 0):
                st["lin"].append(None)
            w = "lgkmcnt(0)"
            key = (st["tag"], st.get("alias", nx))
            if key in st["lin"]:
                last = max(k for k, e in enumerate(st["lin"]) if e == key)
                w = f"vmcnt({len(st['lin']) - 1 - last}) " + w
            if cfg.trace == "head" and len(ops) in (144, 432):
                sc.out(f"s_memrealtime s[60:61]\ns_waitcnt lgkmcnt(0)\nv_writelane_b32 v{NEGM + 1}, s60, {nx}")
            if cfg.trace is True and len(ops) in (400, 400 + cfg.LA) and 0 < nx < 25:
                sc.out("s_memtime s[60:61]\ns_waitcnt lgkmcnt(0)")
                sc.out(f"v_writelane_b32 v2, s60, {nx}")
            if cfg.trace == "head2" and len(ops) == 432:
                sc.out(f"s_memtime s[60:61]\ns_waitcnt lgkmcnt(0)\nv_writelane_b32 v{NEGM + 1}, s60, {nx}")
            sc.out("s_waitcnt " + w)
            if cfg.trace == "head2" and len(ops) == 432:
                sc.out(f"s_memtime s[60:61]\ns_waitcnt lgkmcnt(0)\nv_writelane_b32 v{NEGM + 1}, s60, {32 + nx}")
            if cfg.trace is True and len(ops) in (400, 400 + cfg.LA) and 0 < nx < 25:
                sc.out("s_memtime s[60:61]\ns_waitcnt lgkmcnt(0)")
                sc.out(f"v_writelane_b32 v2, s60, {32 + nx}")
            if not cfg.nobar:
                sc.out("s_barrier")
            st["step"] = nx
        nrd = 0
        held = []
        while st["rd"] < min(i + LA + 1, len(ops)) and ops[st["rd"]]["step"] <= st["step"]:
            o = ops[st["rd"]]
            nrd += len(o["a"])
            for x in o.get("pre", []):
                sc.out(x)
            for xd, xp, xa in o.get("x", []):
                sc.lds("ds_read_b128", R("v", xd, 4), xp, xa)
                nrd += 1
            fb = sc.fbuf()
            o["areg"] = fb
            if o["a"][0][0] == "b128":
                sc.lds("ds_read_b128", R("v", fb, 4), o["a"][0][1], o["a"][0][2])
            else:
                sc.lds("ds_read_b64_tr_b16", R("v", fb, 2), o["a"][0][1], o["a"][0][2])
                if held:
                    held.pop()(sc)
                held.append(lambda s_, fb=fb, o=o: s_.lds("ds_read_b64_tr_b16", R("v", fb + 2, 2), o["a"][1][1], o["a"][1][2]))
            st["rd"] += 1
        if held and not (cfg.split and i >= 0 and "mm" in ops[i] and not (ops[i].get("alt") and st.get("alts") is not None)
                         and not ops[min(st["rd"], len(ops) - 1)].get("pre")):
            held.pop()(sc)

        def emit_fill(fl):
            for f in fl:
                if callable(f):
                    f(sc)
                elif isinstance(f, dict):
                    last = max(k for k, e in enumerate(st["lin"]) if e == ("st", f["pub"] - 1))
                    n_ = sum(1 for e in st["lin"][last + 1:] if e and e[0] == "st")
                    sc.out(f"v_add_u32 v2, {f['pub']}, v{vFL}\ns_waitcnt vmcnt({n_})\ns_mov_b64 exec, s[64:65]")
                    sc.out(f"buffer_store_dword v2, v1, {srd(SWS)}, s{sFLG} offen sc1\ns_mov_b64 exec, -1")
                    st["lin"].append(("st", -1))
                elif isinstance(f, tuple):
                    sc.out(f[0])
                    st["lin"].append(f[1])
                else:
                    sc.out(f)
                    if f.startswith("buffer_"):
                        st["lin"].append(None)
        fl = fill.get(i, [])
        if i < 0:
            emit_fill(fl)
            continue
        o = ops[i]
        mm = o.get("mm") or [(o["d"], o["b"], o["c"])]
        op = MF16 if "mm" in o else MF
        ms = [parse(f"{op} {d}, {R('v', o['areg'], 4)}, {b}, {c}") for d, b, c in mm]
        if i % cfg.waitgrp == 0:
            for d in range(1, cfg.waitgrp):
                if i + d < st["rd"]:
                    ms[0].rd = set(ms[0].rd) | {("v", ops[i + d]["areg"] + k) for k in range(4)}
        if o.get("alt") and st.get("alts") is not None:
            emit_fill(fl)
            c = parse(f"s_cmp_eq_u32 s{sIT}, 0")
            c.rd = set(c.rd) | {r for m in ms for r in m.rd if r[0] == "v"}
            n_ = len(st["alts"])
            sc.out.ins.append(c)
            sc.out(f"s_cbranch_scc1 L_alt{n_}")
            sc.out.ins.extend(ms)
            sc.out(f"s_branch L_altb{n_}\nL_alt{n_}:")
            for d, b, c in mm:
                z = parse(f"{op} {d}, {R('v', o['areg'], 4)}, {b}, 0")
                z.kind = "altmfma"
                sc.out.ins.append(z)
            sc.out(f"L_altb{n_}:")
            st["alts"].append(n_)
            continue
        if len(ms) == 1:
            emit_fill(fl)
            sc.out.ins.append(ms[0])
        else:
            cost = lambda f: cfg.vmcost if isinstance(f, tuple) else 1 if not isinstance(f, str) else (2 if f.startswith("v_exp") else f.count("\n") + 1)
            need0 = max([k + 1 for k, f in enumerate(fl) if isinstance(f, str) and "\n" not in f and parse(f).wr & ms[0].rd] + [0])
            c0 = nrd - len(held) + (i % cfg.waitgrp == 0) + (3 if i - 1 in post else 0)
            k0 = min(range(need0, len(fl) + 1), key=lambda k: abs(c0 + sum(map(cost, fl[:k])) - len(held) - sum(map(cost, fl[k:]))))
            emit_fill(fl[:k0])
            sc.out.ins.append(ms[0])
            emit_fill(held + fl[k0:])
            sc.out.ins.append(ms[1])
        if i in post:
            u = post[i]
            tag = f"{u}_{len(stubs)}"
            sc.out(f"s_cbranch_vccnz L_stub_{tag}\nL_back_{tag}:")
            sc.out(f"v_add_f32 v{vL}, v{vL}, v{vBS}\nv_add_f32 v{vL1}, v{vL1}, v{vBS1}")
            stubs.append((tag, u & 1))


def group_request(cfg, pl, fill, slot, g, tag, kind, sp=1):
    l = []
    want = "k" if g == 0 else "m" if g < 15 else "v" if g == 15 else "w"
    if want != kind:
        l += {"k": [f"v_xor_b32 v{vD + k}, {KX[k]}, v{bK}" for k in range(4)],
              "m": [f"v_mov_b32 v{vD}, v{bM}", f"v_xor_b32 v{vD + 1}, s{sXM}, v{bM}", f"v_xor_b32 v{vD + 2}, s{sXM2}, v{bM}", f"v_xor_b32 v{vD + 3}, s{sXM2}, v{vD + 1}"],
              "v": [f"v_xor_b32 v{vD + k}, {32 * (k & 1)}, v{bV}" for k in range(4)],
              "w": [f"v_add_u32 v{vD + k}, {8192 * k}, v{bWo}" for k in range(4)]}[want]
    so, sr, fl = {"k": (f"s_add_u32 s{sTMP}, s{sB0}, 0", SK, cfg.kvf), "m": (f"s_add_u32 s{sTMP}, s{sMB}, {g * 8192}", SM, cfg.kvf),
                  "v": (f"s_add_u32 s{sTMP}, s{sB0}, {14 * 8192}", SV, cfg.kvf),
                  "w": (f"s_add_u32 s{sTMP}, s{sWB}, s{sTC + max(g - 16, 0)}", SWO, cfg.wf)}[want]
    l += [f"s_add_u32 m0, s{sT4K}, {pl.addr[pl.grp[g][0]]}", so]
    fill.setdefault(slot, []).extend(l)
    for k in range(4):
        if not cfg.noload:
            fill.setdefault(slot + k * sp, []).append((f"buffer_load_dwordx4 v{vD + k}, {srd(sr)}, s{sTMP} offen offset:{k * 1024}{fl} lds", (tag, g)))
    if g == 24:
        fill.setdefault(slot + 3 * sp, []).append(f"s_add_u32 s{sWB}, s{sWB}, 147456")
    return want


def rare_routine(p):
    A = Prog()
    S, Sn = S0 + 16 * p, S0 + 16 * (1 - p)
    A(f"L_rare{p}:\ns_nop 15\ns_nop 15")
    A("\n".join(rowmax(S)))
    A(f"v_max_f32 v{vM}, 0, v{vM}\nv_max_f32 v{vM3}, 0, v{vM3}")
    for i in range(8):
        A(f"v_sub_f32 v{NEGM + i}, v{NEGM + i}, v{vM3 if i & 4 else vM}")
    for i in range(16):
        m = vM3 if i & 8 else vM
        A(f"v_sub_f32 v{S + i}, v{S + i}, v{m}\nv_sub_f32 v{Sn + i}, v{Sn + i}, v{m}")
    A(f"v_exp_f32 v{vM}, -v{vM}\nv_exp_f32 v{vM3}, -v{vM3}\ns_nop 0\nv_mul_f32 v{vL}, v{vL}, v{vM}\nv_mul_f32 v{vL1}, v{vL1}, v{vM3}")
    for i in range(64):
        A(f"v_mul_f32 v{O0 + i}, v{O0 + i}, v{vM3 if i & 4 else vM}")
    A("\n".join(softmax_ops(p)))
    A("s_nop 3\ns_setpc_b64 s[40:41]")
    ins, _ = hazard_pass(A.ins)
    return ins


def compute(cfg, pl):
    addr = pl.addr
    sc = Sched(cfg)
    A = sc.out
    A(f"s_lshl_b32 s{sT4K}, s{sW}, 12\ns_mov_b32 s{sTHR}, {hex(f2u(cfg.thr))}")
    nsh = {"16x8": 16, "8x16": 8, "4x32": 4}[cfg.mapping]
    xr = 96 // (32 // nsh)
    A(f"v_mov_b32 v21, 0x7fffff00\ns_and_b32 s56, s{sB}, {nsh - 1}\ns_mul_i32 s56, s56, {(576 // nsh) * 8192}\ns_add_u32 s56, s56, s{sWQo}")
    A("v_lshrrev_b32 v16, 1, v0\nv_lshlrev_b32 v16, 13, v16\nv_and_b32 v17, 1, v0\nv_lshl_add_u32 v16, v17, 7, v16\nv_cmp_gt_u32 vcc, 36, v0")
    A(f"s_and_b32 s57, s{sCU}, {32 // nsh - 1}\ns_mul_i32 s57, s57, {xr * 1152}\ns_add_u32 s57, s57, s{sXo}\nv_cndmask_b32 v16, v21, v16, vcc")
    A(f"v_mul_u32_u24 v17, 1152, v0\nv_cmp_gt_u32 vcc, {xr}, v0\ns_and_b32 s58, s{sW}, 2\ns_lshl_b32 s58, s58, 6\ns_add_u32 s57, s57, s58\nv_cndmask_b32 v17, v21, v17, vcc")
    if cfg.pfc:
        A(f"s_cmp_lg_u32 s{sW}, 2\ns_cbranch_scc1 L_nopfc\ns_mov_b32 s60, s56\ns_mov_b32 s61, s57")
        code_warm(A, NEGM + 2, NEGM + 4, cfg.codesh)
        A("s_mov_b32 s56, s60\ns_mov_b32 s57, s61\nL_nopfc:")
    descriptors(A)
    ntouch = 0
    if cfg.pf:
        A(f"s_cmp_lg_u32 s{sW}, 0\ns_cbranch_scc1 L_tx")
        for i in range(1152 // nsh // 36):
            A(f"buffer_load_dword v{NEGM}, v16, {srd(SWQ)}, s56 offen\ns_add_u32 s56, s56, {18 * 8192}")
        A("s_branch L_tdone\nL_tx:")
        if cfg.pfx:
            for i in range(5):
                A(f"buffer_load_dword v{NEGM}, v17, {srd(SX)}, s57 offen offset:{256 * i}")
        A("L_tdone:")
    if cfg.tlb:
        A(f"s_cmp_lg_u32 s{sW}, 2\ns_cbranch_scc1 L_notlb")
        tlb_warm(cfg, A, NEGM, 16)
        A("L_notlb:")
    sample_flags(A)
    v_patterns(A)
    x16_patterns(A, pK, sT4K)
    wq16_patterns(A, pWq)
    A(f"v_lshlrev_b32 v{vST}, 4, v0\nv_add_u32 v{pQ}, s{sT4K}, v{vST}")
    A(f"s_mul_i32 s56, s{sPAIR}, 884736\ns_lshl_b32 s57, s{sW}, 15\ns_add_u32 s56, s56, s57\ns_lshl_b32 s57, s{sCU}, 12\ns_add_u32 s{sWSo}, s56, s57")
    A("v_lshrrev_b32 v1, 3, v0\nv_and_b32 v2, 7, v0\nv_lshrrev_b32 v16, 4, v0\nv_lshlrev_b32 v18, 8, v1\nv_mul_u32_u24 v19, 1152, v1")
    A(f"v_and_b32 v17, 1, v16\nv_lshlrev_b32 v17, 2, v17\nv_xor_b32 v17, v17, v2\nv_lshrrev_b32 v18, 5, v0\nv_lshlrev_b32 v18, 1, v18\nv_xor_b32 v17, v17, v18")
    A(f"v_lshl_add_u32 v{bWo}, v17, 4, v19")
    kv_offsets(A, bK, bV)
    A(f"s_cmp_lt_u32 s{sW}, 2\ns_cselect_b32 s{SM}, s{SK}, s{SV}\ns_cselect_b32 s{SM + 1}, s{SK + 1}, s{SV + 1}\ns_mov_b32 s{SM + 2}, 0x4000000\ns_mov_b32 s{SM + 3}, 0x20000")
    A(f"s_cselect_b32 s{sXM}, 16, 32\ns_cselect_b32 s{sXM2}, 64, 0\ns_cselect_b64 vcc, -1, 0\ns_add_u32 s56, s{sT4K}, 8192\ns_cmp_lt_u32 s{sW}, 2")
    A(f"s_cselect_b32 s56, s56, {(-8192) & 0xffffffff}\ns_add_u32 s{sMB}, s{sKV}, s56\nv_cndmask_b32 v{bM}, v{bV}, v{bK}, vcc")
    A(f"s_add_u32 s{sB0}, s{sKV}, s{sT4K}")
    A(f"s_mul_i32 s56, s{sW}, 36864\ns_add_u32 s{sWB}, s{sWOo}, s56")
    for i in range(256):
        A(f"v_accvgpr_write_b32 a{i}, 0")
    for i in range(32):
        A(f"v_mov_b32 v{OUTV + i}, 0")
    A("s_waitcnt vmcnt(0)")
    for p in pK + pV + pWq + pWo + [pQ]:
        sc.bias[p] = 0
    qops = q_ops(addr)
    qf = {}
    kind = None
    for t in range(-1, 9):
        for n_, g in enumerate(pl.sreq[t]):
            kind = group_request(cfg, pl, qf, (16 * t - cfg.LB if t > 0 else -cfg.LA + 1 if t == 0 else -cfg.LA - 8) + 4 * n_, g, "n", kind)
    kind0 = kind
    spread(qf, conv_q(0), 134, 138)
    spread(qf, conv_q(1), 139, 143)
    emit_slots(cfg, sc, qops, qf, {}, -cfg.LA - 8, 144, dict(rd=0, step=-1, lin=[], tag="c"), [], {0: 0})
    A("\n".join(conv_q(2) + conv_q(3)))
    if cfg.trace == "head":
        A(f"s_memrealtime s[60:61]\ns_waitcnt lgkmcnt(0)\nv_writelane_b32 v{NEGM}, s60, 9\nv_writelane_b32 v{NEGM}, s101, 10")
        A(f"v_lshlrev_b32 v1, 2, v0\ns_lshl_b32 s62, s2, 10\ns_lshl_b32 s63, s{sW}, 8\ns_add_u32 s62, s62, s63\ns_add_u32 s62, s62, {STAMP_BASE}")
        A(f"buffer_store_dword v{NEGM}, v1, {srd(SWS)}, s62 offen\ns_waitcnt vmcnt(0)")
    k_patterns(A, False)
    wo_shift(A)
    for p in pWq:
        del sc.bias[p]
    for p in pK:
        sc.bias[p] = 0
    for p in pV + pWo:
        sc.rebias(p, 0)
    sc.rebias(pQ, QBUF)
    bias0 = dict(sc.bias)
    sc.nbuf = 0
    ops = item_ops(addr)
    st = dict(rd=0, step=-1, lin=[("c", g) for g in pl.pro for k in range(4)] if not cfg.noload else [], tag="c")
    emit_slots(cfg, sc, ops, {}, {}, -cfg.LA, 0, st, [], {0: 1})
    assert st["rd"] == cfg.LA and 400 % cfg.NB == 0
    bias1 = dict(sc.bias)
    head, pend0 = lgkm_pass(sc.out.ins)
    assert len(pend0) == cfg.LA
    head, nh = hazard_pass(head, verbose=cfg.dbg == "nops")
    sc.out = Prog()
    fill = {}
    split = 272
    bslot = lambda s_: 16 * s_ - cfg.LB if s_ else 0
    kind = None
    late = {}
    wrapped = False
    for s_ in range(25):
        for n_, (g, w) in enumerate(pl.req[s_]):
            sp = cfg.gsp if len(pl.req[s_]) == 1 else min(cfg.gsp, 2) if s_ else 1
            if bslot(s_) < split < bslot(s_) + 4 * sp * len(pl.req[s_]):
                sp = 1
            slot = bslot(s_) + 4 * sp * n_
            if w and not wrapped:
                wrapped = True
                if slot < split:
                    fill.setdefault(slot, []).append(f"s_add_u32 s{sB0}, s{sB0}, 0x20000\ns_add_u32 s{sMB}, s{sMB}, 0x20000\ns_cmp_eq_u32 s{sIT}, 3")
                    fill[slot].append(f"s_cselect_b32 s{SK + 2}, 0, s{SK + 2}\ns_cselect_b32 s{SM + 2}, 0, s{SM + 2}")
                else:
                    late.setdefault(slot, []).append(f"s_add_u32 s{sB0}, s{sB0}, 0x20000\ns_add_u32 s{sMB}, s{sMB}, 0x20000")
            assert g >= 16 or w == wrapped
            if w and slot >= split:
                kind = group_request(cfg, pl, late, slot, g, "n", None, sp)
            else:
                kind = group_request(cfg, pl, fill, slot, g, "n" if w else "c", None if slot >= split else kind, sp)
    cyc_kind = kind
    post = item_fill(cfg, ops, fill)
    stubs = []
    sc.out("L_item:")
    st["lin"] = [e for e in st["lin"] if e]
    emit_slots(cfg, sc, ops, fill, post, 0, split, st, stubs, {16: 2})
    sc.out(f"s_cmp_lg_u32 s{sIT}, 3\ns_cbranch_scc1 L_more")
    common, pend = lgkm_pass(sc.out.ins, pend0)
    common, n0 = hazard_pass(common, history=head[-20:], verbose=cfg.dbg == "nops")
    sa = copy.deepcopy(sc)
    sa.out = Prog()
    sa.out("L_warm_more:\ns_setpc_b64 s[40:41]\nL_more:")
    fa = {k: list(v) for k, v in fill.items()}
    for k, v in late.items():
        fa[k] = fa.get(k, []) + v
    for p, r0 in ((0, 288), (1, 381)):
        spread(fa, [(lambda s_, i=i, p=p: s_.lds("ds_read_b128", R("v", Q0 + 16 * p + 4 * i, 4), pQ, QBUF + i * 1024)) for i in range(4)], r0, r0 + 3)
    sta = copy.deepcopy(st)
    sta["rebias"] = bias0
    fa.setdefault(390, []).append(f"s_add_u32 s{sIT}, s{sIT}, 1")
    emit_slots(cfg, sa, copy.deepcopy(ops), fa, {}, split, 400, sta, stubs, {25: 1}, nextops=copy.deepcopy(ops[:cfg.LA]))
    assert cfg.noload or [e for e in sta["lin"] if e and e[0] == "n"] == [("n", g) for g in pl.pro for k in range(4)]
    assert sa.bias == bias1 and sta["rd"] == 400 + cfg.LA
    if cfg.trace is True:
        sa.out(f"s_cmp_lg_u32 s{sIT}, {cfg.trace_it + 1}\ns_cbranch_scc1 L_notr\nv_lshlrev_b32 v1, 2, v0\ns_lshl_b32 s62, s2, 10\ns_lshl_b32 s63, s{sW}, 8\ns_add_u32 s62, s62, s63\ns_add_u32 s62, s62, {STAMP_BASE}")
        sa.out(f"buffer_store_dword v2, v1, {srd(SWS)}, s62 offen\ns_waitcnt vmcnt(0)\nL_notr:")
    sa.out("s_branch L_item")
    conta, pe = lgkm_pass(sa.out.ins, pend)
    assert pe == pend0[len(pend0) - len(pe):]
    conta, n1 = hazard_pass(conta, history=common[-20:])
    sb = copy.deepcopy(sc)
    sb.out = Prog()
    sb.out("L_last:")
    fb = {k: list(v) for k, v in fill.items()}
    last_fill(cfg, fb)
    emit_slots(cfg, sb, copy.deepcopy(ops), fb, {}, split, 400, copy.deepcopy(st), stubs)
    T = sb.out
    stamp(cfg, T, 3, 0)
    stamp(cfg, T, 4, 0)
    finish_unit(cfg, T, "c", 7, OUTV, sW, sCU, True)
    contb, _ = lgkm_pass(sb.out.ins, pend)
    contb, n2 = hazard_pass(contb, history=common[-20:], verbose=cfg.dbg == "nops")
    st = Prog()
    for tag, p in stubs:
        st(f"L_stub_{tag}:\ns_call_b64 s[40:41], L_rare{p}\ns_branch L_back_{tag}")
    info = dict(nops=(nh, n0, n1, n2), est_item=est_cycles(common + conta))
    return head + common + contb + conta + st.ins + rare_routine(0) + rare_routine(1), info


def kd(name, vg, acc, sg=102):
    return (f".amdhsa_kernel {name}\n  .amdhsa_next_free_vgpr {vg}\n  .amdhsa_next_free_sgpr {sg}\n  .amdhsa_accum_offset {acc}\n"
            "  .amdhsa_group_segment_fixed_size 0\n  .amdhsa_kernarg_size 104\n  .amdhsa_user_sgpr_count 2\n"
            "  .amdhsa_user_sgpr_kernarg_segment_ptr 1\n  .amdhsa_system_sgpr_workgroup_id_x 1\n.end_amdhsa_kernel\n")


def generate(cfg):
    pl = plan_ring(cfg)
    P = Prog()
    prologue(cfg, P)
    pro, _ = hazard_pass(P.ins)
    comp, info = compute(cfg, pl)
    w3, info3 = wave3(cfg, pl)
    info.update(info3)
    s = HDR + "; @launch grid=(256,1,1) block=(256,1,1) lds=163840\n"
    s += '.amdgcn_target "amdgcn-amd-amdhsa--gfx950"\n.text\n'
    s += f".globl {KNAME}\n.p2align 8\n.type {KNAME},@function\n{KNAME}:\n"
    s += render(pro) + render(comp) + render(w3) + "L_done:\n    s_endpgm\n"
    s += '.section .rodata,"a"\n.p2align 6\n' + kd(KNAME, 512, 256)
    return s, info, pl


if __name__ == "__main__":
    import build
    name = sys.argv[1]
    kw = {}
    for a in sys.argv[2:]:
        k, v = a.split("=", 1)
        try:
            v = eval(v)
        except Exception:
            pass
        kw[k] = v
    s, info, plan = generate(Cfg(**kw))
    open(name, "w").write(s)
    print(info)
    build.build(name)
```

```python
import copy
import sys

import gen9a as G
from gen9a import *
from asmlib import Prog, parse, lgkm_pass, hazard_pass, render, est_cycles, R


class Cfg(G.Cfg):
    colors = "abcdfehgiacbfhicdegfhiegi"
    reqs = (13, 15, 17, 19, 21, 23, 24, 0, 1, 2, 3, 4, 5, 7, 9, 11) + (6, 8, 10, 13, 14, 16, 18, 20, 22)
    kvq = (26, 28, 30, 32, 34, 34, 34)
    xlead = 8
    slabs = "ifehg"
    pf_wo_step = 19
    pf_wo_q = 16
    first_x = 1
    KS = 2
    xslots = "dc"
    cnt_at = 2
    pk = True
    cap = 0
    flagfirst = True
    tfirst = 1
    dsp = 2
    NR = 3
    pflead = 4
    lazy = True

    def __init__(self, **kw):
        for k, v in kw.items():
            assert hasattr(Cfg, k), k
            setattr(self, k, v)


QB = 9 * 16384
NQ = 36
STASH = 224


class Plan:
    pass


def plan(cfg):
    pl = Plan()
    grp = [[("k", 0, 0), ("k", 0, 1), ("k", 1, 0), ("k", 1, 1)]]
    for u in range(1, 15):
        grp.append([("k", u + 1, 0), ("k", u + 1, 1), ("v", u - 1, 0), ("v", u - 1, 1)])
    grp.append([("v", 14, 0), ("v", 14, 1), ("v", 15, 0), ("v", 15, 1)])
    for t in range(9):
        grp.append([("wo", t, rb) for rb in range(4)])
    ns = len(grp)
    slot = lambda c: (ord(c) - 97) * 16384
    addr = {q: slot(cfg.colors[s]) + k * 4096 for s, g in enumerate(grp) for k, q in enumerate(g)}
    req = {b: [] for b in range(ns)}
    for g in range(ns):
        gap = next(d for d in range(1, ns + 1) if cfg.colors[(g - d) % ns] == cfg.colors[g])
        lead = (g - cfg.reqs[g]) % ns
        assert 1 <= lead <= gap - 1, (g, lead, gap)
        req[cfg.reqs[g]].append((g, g - lead < 0))
    for b in req:
        req[b].sort(key=lambda e: (e[0] < 16, e[1]))
    pl.pro = [g for b in range(ns) for g, w in req[b] if w]
    pl.slab = [slot(cfg.slabs[k % len(cfg.slabs)]) for k in range(NQ)]
    xs = [QB] + [slot(c) for c in cfg.xslots]
    pl.xt = [xs[(8 - t) % 3] for t in range(9)]
    KS = cfg.KS
    pl.kvq = {}
    pl.late = []
    for g in sorted(pl.pro):
        a = addr[grp[g][0]]
        busy = max([4 * t + 3 for t in range(9) if pl.xt[t] == a] + [k for k in range(NQ) if pl.slab[k] == a] + [-1])
        b = max(cfg.kvq[g] // KS, busy // KS + 1)
        pl.kvq.setdefault(b, []).append(g)
    pl.grp, pl.addr, pl.req = grp, addr, req
    return pl


def slab_patterns(A, regs):
    A("v_lshrrev_b32 v1, 4, v0\nv_bfe_u32 v2, v0, 2, 2\nv_lshl_add_u32 v16, v1, 3, v2\nv_lshlrev_b32 v16, 9, v16\nv_lshl_add_u32 v16, v2, 6, v16")
    A(f"v_and_b32 v2, 1, v1\nv_lshl_add_u32 v16, v2, 5, v16\nv_and_b32 v2, 3, v0\nv_lshl_add_u32 v{regs[0]}, v2, 3, v16")
    for j in range(1, 8):
        A(f"v_xor_b32 v{regs[j]}, {32 * j}, v{regs[0]}")


def slab_offsets(A, base):
    A(f"v_lshrrev_b32 v1, 5, v0\nv_and_b32 v2, 31, v0\nv_lshlrev_b32 v16, 2, v1\nv_xor_b32 v2, v2, v16\ns_and_b32 s56, s{sW}, 1\ns_lshl_b32 s56, s56, 1")
    A("v_xor_b32 v2, s56, v2\nv_lshlrev_b32 v2, 4, v2\nv_lshl_add_u32 v2, v1, 13, v2")
    for k in range(4):
        A(f"v_xor_b32 v17, {128 * (k & 1)}, v2\nv_add_u32 v{base + k}, {k * (16384 - 1024)}, v17")


def slab_request(cfg, ks, pl, vs, tag):
    l = [f"s_add_u32 m0, s{sT4K}, {pl.slab[ks]}", f"s_add_u32 s{sTMP}, s{sSL}, {(ks >> 1) * 32 * 8192 + (ks & 1) * 512}"]
    if not cfg.noload:
        l += [(f"buffer_load_dwordx4 v{vs + k}, {srd(SWQ)}, s{sTMP} offen offset:{k * 1024}{cfg.wf} lds", (tag, ks)) for k in range(4)]
    return l


sSL, sXW, sC2 = 90, 91, 96


vK3, vV3, vWo3, vS3 = 24, 28, 60, 32
pS3 = [6, 7, 8, 9, 10, 11, 60, 61]
vV3x = 3
A3, B3, ACC3 = 36, 40 + 0, 64


def wave3(cfg, pl):
    addr = pl.addr
    sc = Sched(cfg)
    A = sc.out
    ns = len(pl.grp)
    nsl = len(cfg.slabs)
    AF = [36, 40, 44]
    BF = [48, 52, 56, 12, 16, 20]
    vFL3 = 63
    A("L_loader:")
    A(f"s_lshl_b32 s{sT4K}, s{sW}, 12\ns_add_u32 s{sSL}, s{sWQo}, {24 * 8192}")
    slab_offsets(A, vS3)
    descriptors(A)
    lin = []

    def put(sc_, o, gen=0):
        if isinstance(o, tuple):
            sc_.out(o[0])
            lin.append((o[1], gen))
        elif callable(o):
            o(sc_)
        else:
            sc_.out(o)

    def wait_for(sc_, keys, extra=""):
        idx = [k for k, e in enumerate(lin) if e[0] in keys and e[1] == 0]
        w = f"vmcnt({min(63, len(lin) - 1 - max(idx))}) " if idx else ""
        if w or extra:
            sc_.out("s_waitcnt " + w + extra)

    def quad_ops(q):
        k = q[0]
        pre = []
        if k == "k":
            off, base, v, sr, fl = q[1] * 8192 + q[2] * 4096, sKV, [vK3 + g for g in range(4)], SK, cfg.kvf
        elif k == "v":
            off, base, v, sr, fl = q[1] * 8192 + q[2] * 4096, sKV, [vV3, vV3x] * 2, SV, cfg.kvf
        else:
            pre = [f"s_add_u32 s{sXW}, s{sWOo}, s{sTC + q[1]}"] if q[2] == 0 else []
            off, base, v, sr, fl = q[2] * 32 * 1152, sXW, [vWo3 + g for g in range(4)], SWO, cfg.wf
        l = pre + [f"s_mov_b32 m0, {addr[q]}", f"s_add_u32 s{sTMP}, s{base}, {off}"]
        if not cfg.noload:
            l += [(f"buffer_load_dwordx4 v{v[g]}, {srd(sr)}, s{sTMP} offen offset:{g * 1024}{fl} lds", q) for g in range(4)]
        return l

    if stamp(cfg, A, 15, 1):
        lin.append((None, 0))
    lin += [(None, 0)] * tlb_warm(cfg, A, 62, 61)
    for ks in range(cfg.KS if cfg.lazy else nsl):
        for o in slab_request(cfg, ks, pl, vS3, "s"):
            put(sc, o)
    A(f"v_and_b32 v1, 7, v0\nv_lshlrev_b32 v1, 2, v1\nbuffer_load_dword v{vFL3}, v1, {srd(SWS)}, s{sFLG} offen sc1")
    lin.append(("flag", 0))
    x16_patterns(A, pK)
    slab_patterns(A, pS3)
    kv_offsets(A, vK3, vV3)
    A(f"v_xor_b32 v{vV3x}, 32, v{vV3}")
    for g in range(1, 4):
        A(f"v_xor_b32 v{vK3 + g}, {KX[g]}, v{vK3}")
    nsh = {"16x8": 16, "8x16": 8, "4x32": 4}[cfg.mapping]
    vTO3, vDUM3, pQ3_ = 29, 30, 31
    A(f"s_and_b32 s56, s{sB}, {nsh - 1}\nv_mov_b32 v17, 0x7fffff00\nv_cmp_gt_u32 vcc, 36, v0\nv_lshlrev_b32 v{vTO3}, 7, v0")
    A(f"s_mul_i32 s57, s56, {(576 // nsh) * 256}\nv_add_u32 v{vTO3}, s57, v{vTO3}\nv_cndmask_b32 v{vTO3}, v17, v{vTO3}, vcc")

    def touch_wo(add):
        l = []
        if cfg.pf:
            for i in range(1152 // nsh // 36):
                l.append(f"s_add_u32 s{sTMP}, s{sWOo}, {i * 36 * 128 + add}")
                l.append((f"buffer_load_dword v{vDUM3}, v{vTO3}, {srd(SWO)}, s{sTMP} offen", None))
        return l
    for p in pK + pS3:
        sc.bias[p] = 0
    assert cfg.KS == 2
    ops = [dict(k2=k2, dt=dt, j=j) for k2 in range(NQ // 2) for dt in range(8) for j in range(3)]
    LB3 = 4
    queue = []
    st = dict(step=-1, rdA=0, rdB=0, na=0)

    def drain(sc_, n):
        while queue and n > 0:
            o, g = queue.pop(0)
            put(sc_, o, g)
            n -= isinstance(o, tuple)

    KS = cfg.KS
    for i in range(-LB3, 12 * NQ):
        nx = st["step"] + 1
        if nx < NQ // KS and i >= 12 * KS * nx - LB3:
            drain(sc, 99)
            if cfg.trace == "head2":
                A(f"s_memtime s[60:61]\ns_waitcnt lgkmcnt(0)\nv_writelane_b32 v63, s60, {nx}")
            wait_for(sc, {("s", KS * nx + KS - 1)} | ({"flag"} if nx == cfg.cnt_at else set()), "lgkmcnt(0)")
            if cfg.trace == "head2":
                A(f"s_memtime s[60:61]\ns_waitcnt lgkmcnt(0)\nv_writelane_b32 v63, s60, {32 + nx}")
            if not cfg.nobar:
                A("s_barrier")
            st["step"] = nx
            if nx == cfg.cnt_at:
                A(f"s_lshl_b32 s56, s{sPAIR}, 2\nv_mov_b32 v1, s56\nv_mov_b32 v2, 1\ns_mov_b64 exec, 1")
                put(sc, (f"buffer_atomic_add v2, v1, {srd(SDB)}, 0 offen offset:{128 if cfg.dstamp else 0} sc1", None))
                A("s_mov_b64 exec, -1")
            for ks in range(KS * (nx - 1) + nsl if nx else KS, min(NQ, KS * nx + nsl)):
                if nx or cfg.lazy:
                    queue.extend((o, 0) for o in slab_request(cfg, ks, pl, vS3, "s"))
            if nx == cfg.pf_wo_q // KS:
                queue.extend((o, 0) for o in touch_wo(0))
            for g in pl.kvq.get(nx, []):
                for q in pl.grp[g]:
                    queue.extend((o, 0) for o in quad_ops(q))
        while st["rdB"] < 3 * (NQ // 2) and st["rdB"] // 3 <= st["step"] and 24 * (st["rdB"] // 3) + st["rdB"] % 3 - 2 <= max(i, -2 + st["rdB"] if st["rdB"] < 3 else i):
            k2, j = divmod(st["rdB"], 3)
            for e in range(2):
                sc.lds("ds_read_b128", R("v", BF[2 * j + e], 4), pK[k2 & 1], pl.xt[k2 >> 1] + (2 * j + e) * 2048)
            st["rdB"] += 1
        while st["rdA"] < 12 * NQ and st["rdA"] <= i + 5 and ops[st["rdA"]]["k2"] <= st["step"]:
            o = ops[st["rdA"]]
            fb = AF[st["na"] % 3]
            st["na"] += 1
            a = pl.slab[2 * o["k2"] + 1] + 256
            sc.lds("ds_read_b64_tr_b16", R("v", fb, 2), pS3[o["dt"]], a)
            sc.lds("ds_read_b64_tr_b16", R("v", fb + 2, 2), pS3[o["dt"]], a + 2048)
            for d in range(3):
                ops[st["rdA"] + d]["areg"] = fb
            st["rdA"] += 3
        if i < 0:
            continue
        o = ops[i]
        for e in range(2):
            if e:
                left = 12 * KS * (st["step"] + 1) - LB3 - i
                nv = sum(isinstance(o_, tuple) for o_, g in queue)
                if nv > left:
                    drain(sc, -(-nv // max(left, 1)))
                elif i % cfg.dsp == 0 or nv * cfg.dsp > left:
                    drain(sc, 1)
            d = R("v", ACC3 + 4 * (6 * o["dt"] + 2 * o["j"] + e), 4)
            A(f"{MF16} {d}, {R('v', o['areg'], 4)}, {R('v', BF[2 * o['j'] + e], 4)}, {'0' if o['k2'] == 0 else d}")
    drain(sc, 99)
    if cfg.trace == "head2":
        A(f"v_lshlrev_b32 v1, 2, v0\ns_lshl_b32 s62, s2, 10\ns_add_u32 s62, s62, {STAMP_BASE + 768}")
        A(f"buffer_store_dword v63, v1, {srd(SWS)}, s62 offen\ns_waitcnt vmcnt(0)")
    A("s_waitcnt lgkmcnt(0)")
    if not cfg.nobar:
        A("s_barrier")
    for g in pl.kvq.get(NQ // KS, []):
        for q in pl.grp[g]:
            for o in quad_ops(q):
                put(sc, o)

    def conv3(b, j):
        l = []
        for e in range(2):
            r0, r1 = (ACC3 + 4 * (6 * (2 * b + x) + 2 * j + e) for x in range(2))
            l += [f"v_mul_f32 v{r + i}, s{sC}, v{r + i}" for r in (r0, r1) for i in range(4)]
            l += [f"v_cvt_pk_bf16_f32 v{r + y}, v{r + 2 * y}, v{r + 2 * y + 1}" for r in (r0, r1) for y in range(2)]
            l += ["s_nop 0", f"v_permlane16_swap_b32 v{r0}, v{r1}", f"v_permlane16_swap_b32 v{r0 + 1}, v{r1 + 1}"]
            l += [f"v_accvgpr_write_b32 a{96 + 4 * (8 * j + 2 * b + e) + k}, v{(r0, r0 + 1, r1, r1 + 1)[k]}" for k in range(4)]
        return l
    post = ["v_lshrrev_b32 v1, 3, v0\nv_and_b32 v2, 7, v0\nv_lshrrev_b32 v16, 4, v0\nv_and_b32 v16, 1, v16\nv_lshlrev_b32 v16, 2, v16",
            f"v_mov_b32 v{vFL}, v{vFL3}\nv_lshrrev_b32 v17, 5, v0\nv_lshlrev_b32 v17, 1, v17\nv_xor_b32 v16, v16, v17",
            "v_xor_b32 v16, v16, v2\nv_lshlrev_b32 v16, 4, v16\nv_mul_u32_u24 v17, 1152, v1\nv_add_u32 v16, v16, v17"]
    post += [f"v_add_u32 v{vWo3 + g}, {g * 8192}, v16" for g in range(4)]
    post += [
             f"v_lshlrev_b32 v{pQ3_}, 4, v0\nv_add_u32 v{pQ3_}, {QB}, v{pQ3_}"]
    for o in post:
        A(o)
    head, pend = lgkm_pass(sc.out.ins)
    assert not pend
    pro = [q for b in sorted(pl.kvq) for g in pl.kvq[b] for q in pl.grp[g]]

    def period(last, pro_):
        nonlocal lin
        sc2 = Sched(cfg)
        B = sc2.out
        lin = [(q, 0) for q in pro_ for g in range(4)] if not cfg.noload else []
        wrapped = False
        for s in range(ns):
            if cfg.trace is True:
                B(f"s_memtime s[60:61]\ns_waitcnt lgkmcnt(0)\nv_writelane_b32 v2, s60, {s}")
            wait_for(sc2, set(pl.grp[s]), "lgkmcnt(0)")
            if cfg.trace is True:
                B(f"s_memtime s[60:61]\ns_waitcnt lgkmcnt(0)\nv_writelane_b32 v2, s60, {32 + s}")
            if s in (0, 16) and stamp(cfg, B, {0: 1, 16: 2}[s], 1):
                lin.append((None, 0))
            if last and s == 16:
                B("v_readfirstlane_b32 s57, v17\ns_mov_b32 s58, 0\nL_chk:\ns_cmp_ge_u32 s57, 8\ns_cbranch_scc1 L_chkend")
                B(f"buffer_load_dword v17, v16, {srd(SDB)}, 0 offen offset:{128 if cfg.dstamp else 0} sc1\ns_add_u32 s58, s58, 1\ns_waitcnt vmcnt(0)\nv_readfirstlane_b32 s57, v17")
                B("s_cmp_lt_u32 s58, 0x80000\ns_cbranch_scc1 L_chk\nL_chkend:")
            if not cfg.nobar:
                B("s_barrier")
            for g, w in pl.req[s]:
                if w and not wrapped:
                    wrapped = True
                    B(f"s_add_u32 s{sKV}, s{sKV}, 0x20000")
                assert g >= 16 or w == wrapped
                if not (last and w):
                    for q in pl.grp[g]:
                        if cfg.cap and g < 16:
                            B(f"s_waitcnt vmcnt({cfg.cap - 4})")
                        for o in quad_ops(q):
                            put(sc2, o, int(w))
            if last and s == 2:
                B(f"s_lshl_b32 s56, s{sPAIR}, 2\nv_mov_b32 v16, s56")
                put(sc2, (f"buffer_load_dword v17, v16, {srd(SDB)}, 0 offen offset:{128 if cfg.dstamp else 0} sc1", None))
            if s == cfg.pf_wo_step and not last:
                for o in touch_wo(147456):
                    put(sc2, o)
            if cfg.warm and s == 9 and not last:
                B("s_call_b64 s[40:41], L_warm_more")
            if last:
                continue
            extra = []
            if s < 6:
                extra = conv3(*divmod(2 * s, 3)) + conv3(*divmod(2 * s + 1, 3))
            elif s in (QS0 + 1, QS1 + 1):
                p = int(s == QS1 + 1)
                extra = [f"ds_read_b128 {R('a', 4 * (8 * j + 4 * p + i), 4)}, v{pQ3_} offset:{(4 * j + i) * 1024}" for j in range(3) for i in range(4)]
            if extra:
                B(f"s_cmp_lg_u32 s{sIT}, 0\ns_cbranch_scc1 L_w3x{s}")
                B("\n".join(extra) + f"\ns_waitcnt lgkmcnt(0)\nL_w3x{s}:")
            if s in (16, 20):
                p = int(s == 20)
                for j in range(3):
                    for i in range(4):
                        B(f"ds_write_b128 v{pQ3_}, {R('a', 4 * (8 * j + 4 * p + i), 4)} offset:{(4 * j + i) * 1024}")
            if s == 22:
                B(f"s_cmp_lg_u32 s{sIT}, 1\ns_cbranch_scc1 L_w3mv")
                for k in range(96):
                    B(f"v_accvgpr_mov_b32 a{k}, a{96 + k}")
                B("L_w3mv:")
        tail = [e[0] for e in lin if e[1] == 1][::4]
        if not last:
            B(f"s_add_u32 s{sWOo}, s{sWOo}, 147456")
            if cfg.trace is True:
                B(f"s_cmp_lg_u32 s{sIT}, {cfg.trace_it}\ns_cbranch_scc1 L_notr3\nv_lshlrev_b32 v1, 2, v0\ns_lshl_b32 s62, s2, 10\ns_add_u32 s62, s62, {STAMP_BASE + 768}")
                B(f"buffer_store_dword v2, v1, {srd(SWS)}, s62 offen\ns_waitcnt vmcnt(0)\nL_notr3:")
            B(f"s_add_u32 s{sIT}, s{sIT}, 1\ns_cmp_lt_u32 s{sIT}, 3\ns_cbranch_scc1 L_w3loop")
        return B.ins, tail

    b1, tail = period(False, pro)
    b2, tail2 = period(False, tail)
    assert tail == tail2 and len(b1) == len(b2) and (cfg.noload or sorted(tail) == sorted(pro))
    import re
    body = []
    for x, y in zip(b1, b2):
        if x.text != y.text:
            n = min(int(re.search(r"vmcnt\((\d+)\)", z.text).group(1)) for z in (x, y))
            x = parse(re.sub(r"vmcnt\(\d+\)", f"vmcnt({n})", x.text))
        body.append(x)
    lastp, _ = period(True, tail)
    T = Prog()
    T(f"s_cmp_ge_u32 s{sCU}, 3\ns_cbranch_scc1 L_done\ns_mov_b32 s61, 8")
    finish_unit(cfg, T, "w3", 8, 192, sCU, 61, False)
    allins, nn = hazard_pass(head + [parse("L_w3loop:")] + body + lastp + T.ins, verbose=cfg.dbg == "nops3")
    return allins, dict(w3nops=nn, w3head=est_cycles(head))


QS0, QS1 = 7, 10


def compute(cfg, pl):
    addr = pl.addr
    sc = Sched(cfg)
    A = sc.out
    nsl = len(cfg.slabs)
    vS, vXo = P0, P0 + 4
    pS = pWq + [OUTV + k for k in range(4)]
    TMP = 248
    nsh = {"16x8": 16, "8x16": 8, "4x32": 4}[cfg.mapping]
    A(f"s_lshl_b32 s{sT4K}, s{sW}, 12\ns_mov_b32 s{sTHR}, {hex(f2u(cfg.thr))}")
    A(f"s_lshl_b32 s56, s{sW}, 16\ns_add_u32 s{sSL}, s{sWQo}, s56\ns_mul_i32 s56, s{sW}, 36864\ns_add_u32 s{sXW}, s{sXo}, s56")
    A(f"s_mov_b32 s{sC2}, s{sC}\ns_mov_b32 s{sC2 + 1}, s{sC}")
    slab_offsets(A, vS)
    A("v_lshrrev_b32 v1, 3, v0\nv_and_b32 v2, 7, v0\nv_lshrrev_b32 v3, 4, v0\nv_mul_u32_u24 v20, 1152, v1")
    for g in range(4):
        A(f"v_add_u32 v17, {4 * g}, v3\nv_and_b32 v17, 7, v17\nv_xor_b32 v17, v17, v2\nv_lshlrev_b32 v17, 4, v17")
        A(f"v_add_u32 v17, {g * (9216 - 1024)}, v17\nv_add_u32 v{vXo + g}, v17, v20")
    rows = 576 // nsh
    A(f"v_lshrrev_b32 v16, 3, v0\nv_lshlrev_b32 v16, 13, v16\nv_and_b32 v17, 7, v0\nv_lshl_add_u32 v16, v17, 7, v16")
    rw = rows // cfg.NR // 3
    A(f"s_and_b32 s56, s{sB}, {nsh - 1}\ns_mul_i32 s56, s56, 3\ns_add_u32 s56, s56, s{sW}\ns_mul_i32 s56, s56, {rw * 8192}\ns_add_u32 s98, s56, s{sWQo}")
    assert rw <= 8
    A(f"v_mov_b32 v17, 0x7fffff00\nv_cmp_gt_u32 vcc, {rw * 8}, v0\ns_nop 0\nv_cndmask_b32 v{P0 + 10}, v17, v16, vcc")
    if cfg.pfc:
        A(f"s_cmp_lg_u32 s{sW}, 2\ns_cbranch_scc1 L_nopfc")
        code_warm(A, NEGM + 2, NEGM + 4, cfg.codesh)
        A("L_nopfc:")
    descriptors(A)
    lin = []

    def x_request(t):
        l = [f"s_add_u32 m0, s{sT4K}, {pl.xt[t]}", f"s_add_u32 s{sTMP}, s{sXW}, {t * 128}"]
        if not cfg.noload:
            l += [(f"buffer_load_dwordx4 v{vXo + k}, {srd(SX)}, s{sTMP} offen offset:{k * 1024}{cfg.xf} lds", ("x", 4 * t)) for k in range(4)]
        return l

    def now(l):
        for o in l:
            if isinstance(o, tuple):
                A(o[0])
                lin.append(o[1])
            else:
                A(o)
    KS = cfg.KS
    rs = lambda l: [(o[0], ("c", o[1][1] // KS)) if isinstance(o, tuple) else o for o in l]
    vTA, vTB, vFA = P0 + 10, P0 + 11, P0 + 12
    tq, late_t = {}, []
    if cfg.pf:
        for r in range(cfg.NR):
            l = [f"s_add_u32 s99, s98, {r * (576 // cfg.NR) * 8192}", (f"buffer_load_dword v{NEGM}, v{vTA}, {srd(SWQ)}, s99 offen", None)]
            b = r * (NQ // KS) // cfg.NR - cfg.pflead
            if r < cfg.tfirst:
                now(l)
            elif b <= 0:
                late_t += l
            else:
                tq[b] = l
    now(rs(slab_request(cfg, 0, pl, vS, "c") + x_request(0)))
    for ks in range(1, KS):
        now(rs(slab_request(cfg, ks, pl, vS, "c")))
    rest = list(late_t)
    for ks in range(KS, nsl):
        rest += rs(slab_request(cfg, ks, pl, vS, "c"))
    if cfg.pfx:
        xr = 96 // (32 // nsh) // 3
        vTX_ = P0 + 13
        A(f"v_lshrrev_b32 v17, 2, v0\nv_mul_u32_u24 v17, 1152, v17\nv_and_b32 v{vTX_}, 3, v0\nv_lshl_add_u32 v{vTX_}, v{vTX_}, 7, v17")
        A(f"s_and_b32 s57, s{sCU}, {32 // nsh - 1}\ns_mul_i32 s57, s57, 3\ns_add_u32 s57, s57, s{sW}\ns_mul_i32 s57, s57, {xr * 1152}\ns_add_u32 s101, s57, s{sXo}")
        assert xr == 16
        tx = [(f"buffer_load_dword v{NEGM}, v{vTX_}, {srd(SX)}, s101 offen offset:{128 + 512 * i}", None) for i in range(2)]
        rest = (tx + rest) if cfg.pfx == 1 else (rest + tx)
    xreq = {}
    for t in range(1, 9):
        b = max((4 * t - cfg.xlead) // KS, (4 * (t - 3) + 3) // KS + 1 if t >= 3 else 0)
        if b <= 0:
            rest += rs(x_request(t))
        else:
            xreq[b] = t
    A(f"v_and_b32 v{vFA}, 7, v0\nv_lshlrev_b32 v{vFA}, 2, v{vFA}")
    fo = (f"buffer_load_dword v{vFL}, v{vFA}, {srd(SWS)}, s{sFLG} offen sc1", ("c", cfg.cnt_at))
    if cfg.flagfirst:
        now([fo])
    else:
        rest.append(fo)
    if not cfg.lazy:
        now(rest)
        rest = []
    v_patterns(A)
    x16_patterns(A, pK, sT4K)
    slab_patterns(A, pS)
    A(f"v_lshlrev_b32 v{vST}, 4, v0\nv_add_u32 v{pQ}, s{sT4K}, v{vST}")
    A(f"s_mul_i32 s56, s{sPAIR}, 884736\ns_lshl_b32 s57, s{sW}, 15\ns_add_u32 s56, s56, s57\ns_lshl_b32 s57, s{sCU}, 12\ns_add_u32 s{sWSo}, s56, s57")
    for p in pK + pV + pS + pWo + [pQ]:
        sc.bias[p] = 0
    qops, qf = [], {}
    k = -cfg.LA + 1
    for o in rest:
        qf.setdefault(min(k, 12 * KS - cfg.LB - 1), []).append(o)
        k += isinstance(o, tuple)
    for ks in range(NQ):
        k2 = ks >> 1
        xb = S0 + 8 * (k2 % 4)
        tiles = (list(range(8, 24)) + list(range(8))) if k2 < NQ // 2 - 1 else list(range(24))
        for n_, dt in enumerate(tiles[12 * (ks & 1):12 * (ks & 1) + 12]):
            a = pl.slab[2 * k2 + (dt >> 4)] + ((dt >> 3) & 1) * 256
            mm = []
            for e in range(2):
                d = R("v", O0 + 8 * dt + 4 * e, 4) if dt < 8 else R("a", 8 * (dt - 8) + 4 * e, 4)
                mm.append((d, R("v", xb + 4 * e, 4), "0" if k2 == 0 else d))
            o = dict(step=k2, a=[("tr", pS[dt & 7], a), ("tr", pS[dt & 7], a + 2048)], mm=mm)
            if n_ == 0 and not ks & 1:
                o["x"] = [(xb + 4 * e, pK[k2 & 1], pl.xt[k2 >> 1] + 2048 * e) for e in range(2)]
            qops.append(o)
        if ks % KS == 0 and ks:
            l = []
            for k2 in range(ks - KS + nsl, min(NQ, ks + nsl)):
                l += rs(slab_request(cfg, k2, pl, vS, "c"))
            if ks // KS in xreq:
                l += rs(x_request(xreq[ks // KS]))
            l += tq.get(ks // KS, [])
            k = 12 * ks - cfg.LB
            nv = sum(isinstance(o, tuple) for o in l)
            sp = min(cfg.dsp, (12 * KS - 1) / max(nv, 1))
            kk = 0
            for o in l:
                qf.setdefault(k + int(kk * sp), []).append(o)
                kk += isinstance(o, tuple)
    n = 12 * NQ
    for b in range(4):
        spread(qf, conv_q(b), n - 16 + 4 * b, n - 13 + 4 * b)
    emit_slots(cfg, sc, qops, qf, {}, -cfg.LA, n, dict(rd=0, step=-1, lin=lin, tag="c"), [], {0: 0})
    if not cfg.nobar:
        A("s_waitcnt lgkmcnt(0)\ns_barrier")
    if cfg.trace in ("head", "head2"):
        if cfg.trace == "head":
            A(f"s_memrealtime s[60:61]\ns_waitcnt lgkmcnt(0)\nv_writelane_b32 v{NEGM + 1}, s60, 36\nv_writelane_b32 v{NEGM + 1}, s101, 37")
        A(f"v_lshlrev_b32 v1, 2, v0\ns_lshl_b32 s62, s2, 10\ns_lshl_b32 s63, s{sW}, 8\ns_add_u32 s62, s62, s63\ns_add_u32 s62, s62, {STAMP_BASE}")
        A(f"buffer_store_dword v{NEGM + 1}, v1, {srd(SWS)}, s62 offen\ns_waitcnt vmcnt(0)")

    def pack(hd, ds, e):
        l = []
        for x in range(2):
            r = 64 * hd + 8 * (2 * ds + x) + 4 * e
            l += [f"v_accvgpr_read_b32 v{TMP + k}, a{r + k}" for k in range(4)]
            l += [f"v_pk_mul_f32 v[{TMP + k}:{TMP + k + 1}], v[{TMP + k}:{TMP + k + 1}], s[{sC2}:{sC2 + 1}]" for k in (0, 2)]
            l += [f"v_cvt_pk_bf16_f32 v{TMP + 4 + 2 * x + y}, v{TMP + 2 * y}, v{TMP + 2 * y + 1}" for y in range(2)]
        return l + ["s_nop 0", f"v_permlane16_swap_b32 v{TMP + 4}, v{TMP + 6}", f"v_permlane16_swap_b32 v{TMP + 5}, v{TMP + 7}"]
    lumps = {}
    for part in range(8):
        lumps[16 * (2 + part // 2) + 2 + 6 * (part & 1)] = pack(0, part >> 1, part & 1) + [
            f"v_accvgpr_write_b32 a{STASH + 4 * part + k}, v{TMP + 4 + k}" for k in range(4)]
    for p, s0 in ((0, QS0), (1, QS1)):
        for fr in range(4):
            lumps[16 * (s0 - 1 + fr // 2) + 2 + 6 * (fr & 1)] = pack(1, 2 * p + (fr >> 1), fr & 1) + [
                f"ds_write_b128 v{pQ}, {R('v', TMP + 4, 4)} offset:{fr * 1024}"]
    k_patterns(A, False)
    wo_shift(A)
    for p in pK:
        sc.bias[p] = 0
    for p in pV + pWo:
        sc.rebias(p, 0)
    sc.rebias(pQ, QB)
    for p in pS:
        del sc.bias[p]
    bias0 = dict(sc.bias)
    sc.nbuf = 0
    ops = item_ops(addr)
    st = dict(rd=0, step=-1, lin=[], tag="c")
    emit_slots(cfg, sc, ops, {}, {}, -cfg.LA, 0, st, [], {0: 1})
    assert st["rd"] == cfg.LA and 400 % cfg.NB == 0
    bias1 = dict(sc.bias)
    head, pend0 = lgkm_pass(sc.out.ins)
    assert len(pend0) == cfg.LA
    head, nh = hazard_pass(head, verbose=cfg.dbg == "nops")
    sc.out = Prog()
    fill = {}
    split = 272
    post = item_fill(cfg, ops, fill)
    for s_, l in lumps.items():
        fill.setdefault(s_, []).append(f"s_cmp_lg_u32 s{sIT}, 0\ns_cbranch_scc1 L_lump{s_}\n" + "\n".join(l) + f"\nL_lump{s_}:")
    stubs = []
    sc.out("L_item:")
    st["lin"] = []
    st["alts"] = []
    emit_slots(cfg, sc, ops, fill, post, 0, split, st, stubs, {16: 2})
    sc.out(f"s_cmp_lg_u32 s{sIT}, 3\ns_cbranch_scc1 L_more")
    common, pend = lgkm_pass_skips(sc.out.ins, pend0)
    common, n0 = hazard_pass(common, history=head[-20:], verbose=cfg.dbg == "nops")
    sa = copy.deepcopy(sc)
    sa.out = Prog()
    sa.out("L_warm_more:\ns_setpc_b64 s[40:41]\nL_more:")
    fa = {}
    for p, r0, m0 in ((0, 288, 302), (1, 352, 365)):
        spread(fa, [(lambda s_, i=i, p=p: s_.lds("ds_read_b128", R("v", Q0 + 16 * p + 4 * i, 4), pQ, QB + i * 1024)) for i in range(4)], r0, r0 + 3)
        mv_ = "\n".join(f"v_accvgpr_read_b32 v{Q0 + 16 * p + i}, a{STASH + 16 * p + i}" for i in range(16))
        fa.setdefault(m0, []).append(f"s_cmp_lg_u32 s{sIT}, 0\ns_cbranch_scc1 L_lumpm{p}\n{mv_}\nL_lumpm{p}:")
    sta = copy.deepcopy(st)
    sta["rebias"] = bias0
    fa.setdefault(390, []).append(f"s_add_u32 s{sIT}, s{sIT}, 1")
    emit_slots(cfg, sa, copy.deepcopy(ops), fa, {}, split, 400, sta, stubs, {25: 1}, nextops=copy.deepcopy(ops[:cfg.LA]))
    assert sa.bias == bias1 and sta["rd"] == 400 + cfg.LA
    if cfg.trace is True:
        sa.out(f"s_cmp_lg_u32 s{sIT}, {cfg.trace_it + 1}\ns_cbranch_scc1 L_notr\nv_lshlrev_b32 v1, 2, v0\ns_lshl_b32 s62, s2, 10\ns_lshl_b32 s63, s{sW}, 8\ns_add_u32 s62, s62, s63\ns_add_u32 s62, s62, {STAMP_BASE}")
        sa.out(f"buffer_store_dword v2, v1, {srd(SWS)}, s62 offen\ns_waitcnt vmcnt(0)\nL_notr:")
    sa.out("s_branch L_item")
    conta, pe = lgkm_pass_skips(sa.out.ins, pend)
    assert pe == pend0[len(pend0) - len(pe):]
    conta, n1 = hazard_pass(conta, history=common[-20:], verbose=cfg.dbg == "nops")
    sb = copy.deepcopy(sc)
    sb.out = Prog()
    fb = {}
    last_fill(cfg, fb)
    emit_slots(cfg, sb, copy.deepcopy(ops), fb, {}, split, 400, dict(copy.deepcopy(st), alts=None), stubs)
    T = sb.out
    stamp(cfg, T, 3, 0)
    stamp(cfg, T, 4, 0)
    finish_unit(cfg, T, "c", 7, OUTV, sW, sCU, True)
    contb, _ = lgkm_pass(sb.out.ins, pend)
    contb, n2 = hazard_pass(contb, history=common[-20:], verbose=cfg.dbg == "nops")
    stb = Prog()
    for tag, p in stubs:
        stb(f"L_stub_{tag}:\ns_call_b64 s[40:41], L_rare{p}\ns_branch L_back_{tag}")
    info = dict(nops=(nh, n0, n1, n2), est_head=est_cycles(head), est_item=est_cycles(common + conta))
    return head + common + contb + conta + stb.ins + rare_routine(0) + rare_routine(1), info


def lgkm_pass_skips(ins, pending):
    out, seg, pend = [], [], pending
    i = 0
    while i < len(ins):
        x = ins[i]
        if x.kind == "branch" and ("L_lump" in x.text or "L_st0" in x.text or "L_st1" in x.text):
            o, pend = lgkm_pass(seg + [x], pend)
            out += o
            lab = x.text.split()[-1] + ":"
            j = next(k for k in range(i, len(ins)) if ins[k].text == lab)
            o, _ = lgkm_pass(ins[i + 1:j + 1], pend)
            out += o
            seg = []
            i = j + 1
            continue
        seg.append(x)
        i += 1
    o, pend = lgkm_pass(seg, pend)
    return out + o, pend


def generate(cfg):
    pl = plan(cfg)
    P = Prog()
    prologue(cfg, P)
    pro, _ = hazard_pass(P.ins)
    comp, info = compute(cfg, pl)
    w3, info3 = wave3(cfg, pl)
    info.update(info3)
    s = HDR + "; @launch grid=(256,1,1) block=(256,1,1) lds=163840\n"
    s += '.amdgcn_target "amdgcn-amd-amdhsa--gfx950"\n.text\n'
    s += f".globl {KNAME}\n.p2align 8\n.type {KNAME},@function\n{KNAME}:\n"
    s += render(pro) + render(comp) + render(w3) + "L_done:\n    s_endpgm\n"
    s += '.section .rodata,"a"\n.p2align 6\n' + kd(KNAME, 512, 256)
    return s, info, pl


if __name__ == "__main__":
    import build
    name = sys.argv[1]
    kw = {}
    for a in sys.argv[2:]:
        k, v = a.split("=", 1)
        try:
            v = eval(v)
        except Exception:
            pass
        kw[k] = v
    s, info, _ = generate(Cfg(**kw))
    open(name, "w").write(s)
    print(info)
    build.build(name)
```

```python
import copy
import math
import struct
import sys

from asmlib import Prog, parse, lgkm_pass, hazard_pass, render, est_cycles, R

KNAME = "concat_heads__mha_block_cached__gqa_block_cached__near_ridge_kernel"
HDR = open("concat_heads__mha_block_cached__gqa_block_cached__near_ridge.s.ref").read().split("; Override launch")[0]


def f2u(x):
    return struct.unpack("<I", struct.pack("<f", x))[0]


class Cfg:
    mapping = "16x8"
    kvf = " nt"
    wf = ""
    xf = ""
    pstf = " sc1"
    gf = " sc1"
    of = ""
    psleep = 8
    LA = 6
    LB = 4
    NB = 8
    colors = "defabcdabcdefabc" + "abc" * 3
    dmax = 99
    dwo = 2
    reqs = None
    park = (14, 16, 18)
    kv0 = (4, 5, 6)
    WR = 6
    raq = 4
    waitgrp = 4
    wqbatch = 1
    balance = True
    front = True
    stamp = False
    pf = True
    dbl = False
    pfx = False
    thr = 1024.0
    quota = (13, 24, 20) + (20,) * 12 + (21, 21) + (15,) * 6 + (3, 0)
    pf_wo_step = 1
    pf_wq_step = 12
    pf_wq0_step = 1
    dbg = None
    nobar = False
    noload = False
    delay = 0
    prof = False
    trace = False
    trace_it = 2
    warm = True
    pksum = False
    lag = 1
    krot = "bq"
    qbit = 0
    codesh = 32
    pfc = True
    split = True
    vmcost = 4
    mmcost = 2
    dstamp = False
    tlb = 0
    gsp = 1
    pubs = {}
    half = 0

    def __init__(self, **kw):
        for k, v in kw.items():
            assert hasattr(Cfg, k), k
            setattr(self, k, v)


pK = [4, 5]
pV = [8, 9, 12, 13]
pWq = [6, 7, 10, 11]
pWo = []
vDL, vM3 = 10, 11
vL, vBS = 14, 15
vT = [16, 17, 18, 19]
vM, vM2, vST, vFL = 20, 21, 22, 23
FR0, NEGM, S0, P0, Q0, O0, OUTV, FRX = 24, 48, 64, 96, 112, 144, 208, 240
vL1, vBS1, vMX = NEGM + 8, NEGM + 9, NEGM + 10
OF = S0
pQ = 3
bK, bV, bWo, bM = 248, 249, 250, 251
vD = 252
sW, sB, sH = 3, 4, 5
SK, SV, SWQ, SWO, SX, SWS = 16, 20, 24, 28, 32, 36
sKV, sXo, sWQo, sWOo, sTMP, sIT, sC, sTHR, sT4K, sWSo = 42, 43, 44, 45, 46, 47, 48, 49, 50, 51
sJ, sPAIR, sCU = 52, 53, 59
SDB, SOUT = 68, 72
sTC = 80
sFLG = 89
SWQ2 = 92
SM = 96
sMB, sB0, sWB, sXM, sXM2 = 90, 91, 66, 67, 100
sROT, sR0 = 15, 14
WRB = 24 * 4096
MF = "v_mfma_f32_32x32x16_bf16"
MF16 = "v_mfma_f32_16x16x32_bf16"
KX = (0, 16, 64, 80)
QBUF = 31 * 4096
XRES = 34 * 4096
FLAGBASE = 32 << 20
TORD = (0, 1, 2, 7, 8, 3, 4, 5, 6)


def srd(n):
    return f"s[{n}:{n + 3}]"


def w3_quads():
    return [("wq3", p, t, rb) for p in range(2) for t in TORD for rb in range(2)]


def w3_ops(cfg):
    quads = w3_quads()
    ops = []
    for p in range(2):
        pq = quads[18 * p:18 * p + 18]
        groups = [pq[0:2]] + [[q] for q in pq[2:16]] + [pq[16:18]]
        for grp in groups:
            if len(grp) == 2:
                seqv = [(q, s2, hb) for hb in range(2) for q in grp for s2 in range(2)]
            else:
                seqv = [(grp[0], s2, hb) for s2 in range(2) for hb in range(2)]
            for (q, s2, hb) in seqv:
                ks = 2 * q[2] + q[3]
                for j in range(3):
                    ops.append(dict(q=q, s2=s2, hb=hb, dt=2 * hb + s2, j=j, ks=ks, p=p, first=(q == pq[0]), last=(q == pq[17] and s2 == 1)))
    assert len(ops) == 432 == sum(cfg.quota)
    i = 0
    for s, n in enumerate(cfg.quota):
        for o in ops[i:i + n]:
            o["step"] = s
        i += n
    for i in range(0, 432, 3):
        for d in range(3):
            ops[i + d]["astep"] = ops[i]["step"]
    return ops


class Plan:
    pass


def plan_ring(cfg):
    pl = Plan()
    grp = [[("k", 0, 0), ("k", 0, 1), ("k", 1, 0), ("k", 1, 1)]]
    for u in range(1, 15):
        grp.append([("k", u + 1, 0), ("k", u + 1, 1), ("v", u - 1, 0), ("v", u - 1, 1)])
    grp.append([("v", 14, 0), ("v", 14, 1), ("v", 15, 0), ("v", 15, 1)])
    for t in range(9):
        grp.append([("wo", t, rb) for rb in range(4)])
    ns = len(grp)
    addr = {}
    for s_, g in enumerate(grp):
        for k, q in enumerate(g):
            addr[q] = (ord(cfg.colors[s_]) - 97) * 16384 + k * 4096
    start = []
    xslot = (QBUF, WRB, WRB + 12288) * 2 + (QBUF, XRES, XRES + 12288)
    for t in range(9):
        wq = [("wq", t, rb, cb) for rb in range(2) for cb in range(2)]
        for k, q in enumerate(wq):
            addr[q] = (ord(cfg.colors[16 + t]) - 97) * 16384 + k * 4096
        for rb in range(3):
            addr[("x", t, rb)] = xslot[t] + rb * 4096
        start.append(wq + [("x", t, rb) for rb in range(3)])
    for i, q in enumerate(w3_quads()):
        addr[q] = WRB + (i % cfg.WR) * 4096
    req = {b: [] for b in range(ns)}
    for g in range(ns):
        gap = next(d for d in range(1, ns + 1) if cfg.colors[(g - d) % ns] == cfg.colors[g])
        lead = min(gap - 1, cfg.dwo if g >= 16 else cfg.dmax)
        if cfg.reqs:
            lead = (g - cfg.reqs[g]) % ns
            assert lead <= gap - 1, (g, lead, gap)
        elif g < len(cfg.park):
            assert ns + g - cfg.park[g] <= lead
            lead = ns + g - cfg.park[g]
        assert lead >= 1
        req[(g - lead) % ns].append((g, g - lead < 0))
    for b in req:
        req[b].sort(key=lambda e: (e[0] < 16, e[1]))
    pl.req = req
    pl.pro = [g for b in range(ns) for g, w in req[b] if w]
    pl.sreq = {b: [] for b in range(-1, 9)}
    bb = -1
    for n_, g in enumerate(pl.pro):
        b = next(b for b in range(ns) if (g, True) in req[b])
        bb = max(bb, cfg.kv0[n_] if n_ < len(cfg.kv0) else b - 16)
        assert all(cfg.colors[16 + t] != cfg.colors[g] for t in range(max(bb, 0), 9))
        pl.sreq[bb].append(g)
    sissue = {b: [] for b in range(-1, 9)}
    lastuse = {}
    b = -1
    for t in range(9):
        for q in start[t]:
            lo = addr[q]
            b = max(b, lastuse.get(lo, -9) + 1)
            assert b < t
            sissue[b].append(q)
            lastuse[lo] = t
    pl.slast = lastuse
    pl.grp, pl.start, pl.addr, pl.sissue = grp, start, addr, sissue
    return pl


def prologue(cfg, A):
    A("s_cmp_ge_u32 s2, 256\ns_cbranch_scc1 L_done")
    if cfg.trace == "head":
        A("s_memrealtime s[60:61]\ns_waitcnt lgkmcnt(0)\ns_mov_b32 s101, s60")
    DSTAMP[0] = cfg.dstamp
    A(f"v_lshrrev_b32 v1, 6, v0\nv_and_b32 v0, 63, v0\nv_readfirstlane_b32 s{sW}, v1")
    A("s_and_b32 s6, s2, 4\ns_mul_i32 s6, s6, 10\ns_add_u32 s6, s0, s6\ns_addc_u32 s7, s1, 0")
    A("s_load_dwordx2 s[40:41], s[6:7], 0\ns_load_dwordx4 s[8:11], s[6:7], 8\ns_load_dwordx4 s[12:15], s[6:7], 24")
    A("s_load_dwordx2 s[54:55], s[0:1], 96\ns_load_dwordx4 s[76:79], s[0:1], 80")
    A(f"s_and_b32 s57, s2, 3\ns_lshr_b32 s{sJ}, s2, 3")
    if cfg.qbit:
        k = cfg.qbit
        A(f"s_lshr_b32 s56, s{sJ}, {k}\ns_and_b32 s58, s56, 1\ns_lshr_b32 s56, s56, 1\ns_lshl_b32 s56, s56, {k}\ns_and_b32 s{sJ}, s{sJ}, {(1 << k) - 1}")
        A(f"s_or_b32 s{sJ}, s{sJ}, s56\ns_lshl_b32 s{sJ}, s{sJ}, 1\ns_or_b32 s{sJ}, s{sJ}, s58")
    if cfg.mapping == "16x8":
        A(f"s_lshr_b32 s{sB}, s{sJ}, 1\ns_and_b32 s{sH}, s{sJ}, 1\ns_lshl_b32 s{sH}, s{sH}, 2\ns_lshl_b32 s57, s57, 3\ns_add_u32 s{sH}, s{sH}, s57")
    elif cfg.mapping == "8x16":
        A(f"s_and_b32 s56, s57, 1\ns_lshl_b32 s56, s56, 3\ns_lshr_b32 s{sB}, s{sJ}, 2\ns_add_u32 s{sB}, s{sB}, s56")
        A(f"s_lshr_b32 s56, s57, 1\ns_lshl_b32 s56, s56, 4\ns_and_b32 s{sH}, s{sJ}, 3\ns_lshl_b32 s{sH}, s{sH}, 2\ns_add_u32 s{sH}, s{sH}, s56")
    else:
        A(f"s_lshl_b32 s56, s57, 2\ns_lshr_b32 s{sB}, s{sJ}, 3\ns_add_u32 s{sB}, s{sB}, s56\ns_and_b32 s{sH}, s{sJ}, 7\ns_lshl_b32 s{sH}, s{sH}, 2")
    if cfg.half:
        A(f"s_and_b32 s56, s{sB}, {cfg.half}\ns_cmp_lg_u32 s56, 0\ns_cbranch_scc1 L_done")
    A(f"s_lshl_b32 s{sKV}, s{sB}, 22\ns_lshl_b32 s56, s{sH}, 17\ns_add_u32 s{sKV}, s{sKV}, s56")
    A(f"s_mul_i32 s{sXo}, s{sB}, 110592\ns_lshl_b32 s{sWQo}, s{sH}, 8\ns_mul_i32 s{sWOo}, s{sH}, 147456")
    A(f"s_and_b32 s56, s2, 4\ns_lshl_b32 s56, s56, 2\ns_add_u32 s{sPAIR}, s56, s{sB}\ns_lshr_b32 s{sCU}, s{sH}, 2")
    for tau in range(9):
        A(f"s_add_u32 s56, s{sCU}, {1 + tau}\ns_cmp_ge_u32 s56, 9\ns_cselect_b32 s57, 9, 0\ns_sub_u32 s56, s56, s57\ns_lshl_b32 s{sTC + tau}, s56, 7")
    A(f"s_mov_b32 s{sIT}, 0\ns_mov_b32 s{sC}, {hex(f2u(math.log2(math.e) / math.sqrt(128.0)))}")
    A(f"s_cmp_eq_u32 s{sW}, 3\ns_cselect_b32 s56, s{sCU}, s{sW}\ns_mul_i32 s57, s{sPAIR}, 3\ns_add_u32 s56, s56, s57\ns_lshl_b32 s56, s56, 12\ns_add_u32 s{sFLG}, s56, {FLAGBASE}")
    A(f"s_cmp_eq_u32 s{sW}, 3\ns_cbranch_scc1 L_loader")


def rotation(cfg, A):
    if cfg.krot == "b":
        A(f"s_lshl_b32 s{sROT}, s{sB}, 13")
    elif cfg.krot == "bq":
        A(f"s_lshl_b32 s{sROT}, s{sCU}, 1\ns_add_u32 s{sROT}, s{sROT}, s{sB}\ns_lshl_b32 s{sROT}, s{sROT}, 13")
    elif cfg.krot == "q":
        A(f"s_lshl_b32 s{sROT}, s{sCU}, 14")
    else:
        A(f"s_mov_b32 s{sROT}, 0")


def kv_soffset(blk, half):
    return [f"s_add_u32 s{sTMP}, s{sROT}, {blk * 8192}", f"s_and_b32 s{sTMP}, s{sTMP}, 0x1ffff", f"s_add_u32 s{sTMP}, s{sTMP}, s{sKV}"], half * 4096


def descriptors(A):
    A("s_waitcnt lgkmcnt(0)")
    for d, b, n in ((SWQ, 12, 4718592), (SX, 40, 1769472), (SWS, 54, 290848768), (SK, 8, 0x4000000), (SV, 10, 0x4000000),
                    (SWO, 14, 4718592), (SWQ2, 12, 4718592), (SOUT, 76, 3538944), (SDB, 78, 256)):
        A(f"s_mov_b32 s{d}, s{b}\ns_mov_b32 s{d + 1}, s{b + 1}\ns_mov_b32 s{d + 2}, {n}\ns_mov_b32 s{d + 3}, 0x20000")
    if DSTAMP[0]:
        A("s_memrealtime s[60:61]\ns_memtime s[62:63]\ns_waitcnt lgkmcnt(0)\ns_mov_b32 s8, s60\ns_mov_b32 s11, s62")


DSTAMP = [False]


def tlb_warm(cfg, A, dst, tmp):
    n = 0
    if not cfg.tlb:
        return n
    A(f"v_lshlrev_b32 v{tmp}, {cfg.tlb}, v0\ns_mul_i32 s58, s{sPAIR}, 884736")
    for sr, base, span, fl in ((SK, f"s{sKV}", 1 << 19, " nt"), (SV, f"s{sKV}", 1 << 19, " nt"), (SWO, f"s{sWOo}", 589824, " nt"),
                               (SWQ, f"s{sWQo}", 4718592, " nt"), (SWS, "s58", 884736, " nt")):
        lanes = min(64, -(-span >> cfg.tlb))
        A(f"s_mov_b64 exec, {hex((1 << lanes) - 1)}" if lanes <= 32 else f"s_mov_b32 exec_lo, -1\ns_mov_b32 exec_hi, {hex((1 << (lanes - 32)) - 1)}")
        A(f"buffer_load_dword v{dst}, v{tmp}, {srd(sr)}, {base} offen{fl}")
        n += 1
    A("s_mov_b64 exec, -1")
    return n


def code_warm(A, dst, tmp, nsh=32):
    A(f"s_getpc_b64 s[56:57]\nL_pc0:\nv_mov_b32 v{tmp}, (L_done-L_pc0+{128 * nsh - 1})/{128 * nsh}\ns_lshr_b32 s62, s{sJ}, {1 if nsh == 16 else 0}\nv_mul_lo_u32 v{tmp + 1}, v{tmp}, s62\nv_min_u32 v{tmp}, v{tmp}, v0")
    A(f"v_add_u32 v{tmp}, v{tmp}, v{tmp + 1}\nv_lshlrev_b32 v{tmp}, 7, v{tmp}\nv_min_u32 v{tmp}, L_done-L_pc0, v{tmp}\nv_mov_b32 v{tmp + 1}, s57")
    A(f"v_add_co_u32 v{tmp}, vcc, s56, v{tmp}\nv_addc_co_u32 v{tmp + 1}, vcc, 0, v{tmp + 1}, vcc\nglobal_load_dword v{dst}, v[{tmp}:{tmp + 1}], off")


def sample_flags(A):
    A(f"v_and_b32 v1, 7, v0\nv_lshlrev_b32 v1, 2, v1\nbuffer_load_dword v{vFL}, v1, {srd(SWS)}, s{sFLG} offen sc1")


STAMP_BASE = 64 << 20


def stamp(cfg, A, k, who):
    if not cfg.stamp:
        return 0
    A("s_memrealtime s[60:61]\ns_memtime s[64:65]\ns_waitcnt lgkmcnt(0)")
    A(f"s_lshl_b32 s62, s2, 10\ns_lshl_b32 s63, s{sIT}, 7\ns_add_u32 s62, s62, s63\ns_add_u32 s62, s62, {STAMP_BASE + who * 512 + 8 * k}")
    t = 18 if who else 0
    if who:
        A(f"v_mov_b32 v{t}, s60\nv_mov_b32 v{t + 1}, s64\nv_mov_b32 v{t + 2}, 0\nbuffer_store_dwordx2 v[{t}:{t + 1}], v{t + 2}, {srd(SWS)}, s62 offen")
    else:
        A(f"v_mov_b32 v0, s60\nv_mov_b32 v1, s64\nv_mov_b32 v2, 0\nbuffer_store_dwordx2 v[0:1], v2, {srd(SWS)}, s62 offen")
        A("s_nop 1\nv_mbcnt_lo_u32_b32 v0, -1, 0\nv_mbcnt_hi_u32_b32 v0, -1, v0")
    return 1


class Sched:
    def __init__(self, cfg):
        self.cfg = cfg
        self.bias = {}
        self.nbuf = 0
        self.out = Prog()

    def fbuf(self):
        i = self.nbuf % self.cfg.NB
        self.nbuf += 1
        return FR0 + 4 * i if i < 6 else FRX + 4 * (i - 6)

    def lds(self, op, reg, preg, a):
        b = self.bias[preg]
        if not (0 <= a - b <= 65535):
            nb = a & ~4095
            self.out(f"v_add_u32 v{preg}, {(nb - b) & 0xffffffff}, v{preg}")
            self.bias[preg] = b = nb
        if op.startswith("ds_read"):
            self.out(f"{op} {reg}, v{preg} offset:{a - b}")
        else:
            self.out(f"{op} v{preg}, {reg} offset:{a - b}")

    def rebias(self, preg, nb):
        b = self.bias[preg]
        if b != nb:
            self.out(f"v_add_u32 v{preg}, {(nb - b) & 0xffffffff}, v{preg}")
            self.bias[preg] = nb


def spread(fill, ops_list, s0, s1):
    n = s1 - s0 + 1
    cost = [2 if isinstance(o, str) and o.startswith("v_exp") else 1 for o in ops_list]
    tot = sum(cost)
    acc = 0
    for o, c in zip(ops_list, cost):
        k = min(n - 1, int((acc + c / 2) * n / tot))
        fill.setdefault(s0 + k, []).append(o)
        acc += c


def spread_bal(cfg, ops, fill, ops_list, s0, s1):
    if not cfg.balance:
        return spread(fill, ops_list, s0, s1)
    base = []
    for i in range(s0, s1 + 1):
        o = ops[min(i + cfg.LA, len(ops) - 1)]
        base.append(len(o["a"]) + (cfg.mmcost if "mm" in ops[i] else 0) + (1 if i % cfg.waitgrp == 0 else 0) + sum(cfg.vmcost if isinstance(f, tuple) else 1 for f in fill.get(i, [])))
    cost = [2 if isinstance(o, str) and o.startswith("v_exp") else 1 for o in ops_list]
    level = (sum(cost) + sum(base)) / len(base)
    k, room = 0, level - base[0]
    for o, c in zip(ops_list, cost):
        while k < len(base) - 1 and room < c / 2:
            k += 1
            room += level - base[k]
        fill.setdefault(s0 + k, []).append(o)
        room -= c


def k_patterns(A, xform, off=None):
    A("v_bfe_u32 v16, v0, 2, 2\nv_and_b32 v2, 3, v0\nv_lshlrev_b32 v2, 7, v2\nv_lshl_add_u32 v2, v16, 10, v2")
    A("v_bfe_u32 v16, v0, 2, 1\nv_and_b32 v17, 2, v0\nv_or_b32 v16, v16, v17\nv_bfe_u32 v17, v0, 3, 1\nv_lshl_or_b32 v16, v17, 2, v16")
    A("v_bfe_u32 v17, v0, 5, 1\nv_xor_b32 v16, v16, v17\nv_bfe_u32 v17, v0, 4, 1\nv_lshlrev_b32 v17, 1, v17\nv_xor_b32 v16, v16, v17")
    A(f"v_lshl_add_u32 v{pK[0]}, v16, 4, v2\nv_xor_b32 v{pK[1]}, 64, v{pK[0]}")


def v_patterns(A):
    A("v_lshrrev_b32 v1, 4, v0\nv_bfe_u32 v2, v0, 2, 2\nv_lshlrev_b32 v16, 10, v1\nv_lshl_add_u32 v16, v2, 7, v16\nv_lshrrev_b32 v2, 1, v2")
    A("v_lshl_add_u32 v16, v2, 6, v16\nv_and_b32 v2, 1, v1\nv_lshl_add_u32 v16, v2, 5, v16\nv_and_b32 v2, 3, v0")
    A(f"v_lshl_add_u32 v{pV[0]}, v2, 3, v16")
    for j in range(1, 4):
        A(f"v_xor_b32 v{pV[j]}, {32 * j}, v{pV[0]}")


def x16_patterns(A, regs, off=None):
    A("v_lshrrev_b32 v1, 4, v0\nv_and_b32 v2, 15, v0\nv_lshrrev_b32 v16, 1, v2\nv_xor_b32 v16, v16, v1\nv_lshlrev_b32 v2, 7, v2")
    if off:
        A(f"v_add_u32 v2, s{off}, v2")
    A(f"v_lshl_add_u32 v{regs[0]}, v16, 4, v2\nv_xor_b32 v{regs[1]}, 64, v{regs[0]}")


def wq16_patterns(A, regs):
    A("v_lshrrev_b32 v1, 4, v0\nv_lshrrev_b32 v2, 2, v0\nv_and_b32 v2, 3, v2\nv_lshl_add_u32 v16, v1, 3, v2\nv_lshlrev_b32 v16, 7, v16")
    A("v_lshrrev_b32 v2, 1, v2\nv_lshl_add_u32 v16, v2, 6, v16\nv_and_b32 v2, 1, v1\nv_lshl_add_u32 v16, v2, 5, v16")
    A(f"v_and_b32 v2, 3, v0\nv_lshl_add_u32 v{regs[0]}, v2, 3, v16")
    for j in range(1, 4):
        A(f"v_xor_b32 v{regs[j]}, {32 * j}, v{regs[0]}")


def wo_shift(A):
    A(f"v_lshrrev_b32 v16, 4, v0\nv_lshlrev_b32 v16, 9, v16\nv_sub_u32 v{vDL}, 0, v16")


def kv_offsets(A, dk, dv):
    A("v_lshrrev_b32 v1, 3, v0\nv_and_b32 v1, 3, v1\nv_and_b32 v2, 7, v0\nv_lshrrev_b32 v16, 5, v0\nv_lshlrev_b32 v16, 7, v16\nv_lshl_add_u32 v16, v1, 8, v16")
    A(f"v_and_b32 v1, 2, v1\nv_xor_b32 v17, v1, v2\nv_lshl_add_u32 v{dk}, v17, 4, v16")
    A(f"v_lshlrev_b32 v1, 1, v1\nv_xor_b32 v17, v1, v2\nv_lshl_add_u32 v{dv}, v17, 4, v16")


def finish_unit(cfg, A, tag, nsrc, acc, w_sreg, t_sreg, publish, G=32):
    A("v_and_b32 v10, 7, v0\nv_lshlrev_b32 v1, 2, v10\nv_lshlrev_b32 v6, 4, v0")
    A(f"buffer_load_dword v2, v1, {srd(SWS)}, s{sFLG} offen sc1")
    A(f"s_mul_i32 s56, s{sPAIR}, 884736\ns_mul_i32 s57, s{t_sreg}, 3\ns_add_u32 s57, s57, s{w_sreg}\ns_lshl_b32 s57, s57, 15\ns_add_u32 s56, s56, s57")
    A(f"s_mul_i32 s60, s{sB}, 96\ns_lshl_b32 s58, s{w_sreg}, 5\ns_add_u32 s60, s60, s58\ns_mul_i32 s60, s60, 2304\ns_lshl_b32 s58, s{t_sreg}, 7\ns_add_u32 s60, s60, s58")
    A("s_and_b32 s58, s2, 4\ns_mul_i32 s58, s58, 288\ns_add_u32 s60, s60, s58")
    A("v_and_b32 v7, 15, v0\nv_mul_u32_u24 v7, 2304, v7\nv_lshrrev_b32 v3, 5, v0\nv_lshl_add_u32 v7, v3, 4, v7\nv_bfe_u32 v3, v0, 4, 1\nv_lshl_add_u32 v7, v3, 5, v7")
    A(f"v_sub_u32 v10, s{t_sreg}, v10\nv_add_u32 v3, 9, v10\nv_cmp_gt_i32 vcc, 1, v10\nv_cndmask_b32 v10, v10, v3, vcc")
    A(f"s_mov_b32 s62, {((1 << nsrc) - 1) << 1}\ns_mov_b32 s58, 0\ns_mov_b32 s64, {nsrc}")
    if nsrc == 8:
        for k in range(32):
            A(f"v_mov_b32 v{acc + k}, 0")
    A("v_and_b32 v4, 15, v0\nv_lshrrev_b32 v5, 4, v0\nv_lshlrev_b32 v5, 2, v5\nv_sub_u32 v4, v4, v5\nv_mov_b32 v8, 0x3f80\nv_mov_b32 v9, 0x3f800000")
    for i in range(2):
        A(f"v_cmp_eq_u32 vcc, {2 * i}, v4\nv_cmp_eq_u32 s[66:67], {2 * i + 1}, v4\nv_mov_b32 v5, 0\nv_cndmask_b32 v5, v5, v8, vcc\nv_cndmask_b32 v{24 + i}, v5, v9, s[66:67]")
    A("v_mov_b32 v26, 0\nv_mov_b32 v27, 0\nv_mov_b32 v28, v24\nv_mov_b32 v29, v25")
    if publish:
        A(f"v_add_u32 v3, 8, v{vFL}\ns_lshl_b32 s66, 1, s{sCU}\ns_mov_b32 s67, 0\ns_waitcnt vmcnt(0)\ns_mov_b64 exec, s[66:67]")
        A(f"buffer_store_dword v3, v1, {srd(SWS)}, s{sFLG} offen sc1\ns_mov_b64 exec, -1\ns_branch L_chk{tag}")
    A(f"L_poll{tag}:\ns_waitcnt vmcnt(0)\nL_chk{tag}:\nv_sub_u32 v3, v2, v{vFL}\nv_cmp_ge_u32 vcc, v3, v10")
    A(f"s_and_b32 s63, vcc_lo, 0xffff\ns_lshr_b32 s63, s63, s{sCU}\ns_and_b32 s63, s63, s62\ns_cbranch_scc1 L_some{tag}")
    A(f"s_add_u32 s58, s58, 1\ns_cmp_gt_u32 s58, 0x100000\ns_cbranch_scc1 L_out{tag}\ns_sleep {cfg.psleep}")
    A(f"buffer_load_dword v2, v1, {srd(SWS)}, s{sFLG} offen sc1\ns_branch L_poll{tag}\nL_some{tag}:")
    for i in range(nsrc, 0, -1):
        A(f"s_bitcmp1_b32 s63, {i}\ns_cbranch_scc0 L_nl{tag}{i}")
        A(f"s_add_u32 s57, s{sCU}, {i}\ns_and_b32 s57, s57, 7\ns_lshl_b32 s57, s57, 12\ns_add_u32 s57, s57, s56")
        for p in range(4):
            A(f"buffer_load_dwordx4 {R('v', G + 16 * (i - 1) + 4 * p, 4)}, v6, {srd(SWS)}, s57 offen offset:{1024 * p}{cfg.gf}")
        A(f"L_nl{tag}{i}:")
    A(f"buffer_load_dword v2, v1, {srd(SWS)}, s{sFLG} offen sc1\ns_andn2_b32 s62, s62, s63\ns_waitcnt vmcnt(1)")
    for i in range(nsrc, 0, -1):
        A(f"s_cmp_lg_u32 s64, {i}\ns_cbranch_scc1 L_na{tag}{i}\ns_bitcmp1_b32 s62, {i}\ns_cbranch_scc1 L_poll{tag}")
        for u in range(2):
            for p in range(4):
                d = R("v", acc + 16 * (p >> 1) + 4 * (p & 1) + 8 * u, 4)
                A(f"{MF16} {d}, {R('v', 24 + 2 * u, 4)}, {R('v', G + 16 * (i - 1) + 4 * p, 4)}, {d}")
        A(f"s_mov_b32 s64, {i - 1}\nL_na{tag}{i}:")
    A(f"L_out{tag}:\ns_nop 15")
    for p in range(4):
        for k in range(4):
            r = acc + 16 * (p >> 1) + 4 * (p & 1) + 8 * (k >> 1) + 2 * (k & 1)
            A(f"v_cvt_pk_bf16_f32 v{8 + 4 * p + k}, v{r}, v{r + 1}")
    A(f"s_add_u32 s57, s60, {16 * 2304}")
    for p in range(4):
        A(f"v_permlane16_swap_b32 v{8 + 4 * p}, v{10 + 4 * p}\nv_permlane16_swap_b32 v{9 + 4 * p}, v{11 + 4 * p}")
        A(f"buffer_store_dwordx4 {R('v', 8 + 4 * p, 4)}, v7, {srd(SOUT)}, s{57 if p & 1 else 60} offen offset:{64 * (p >> 1)}{cfg.of}")
    if cfg.stamp and publish:
        A("s_waitcnt vmcnt(0)")
        stamp(cfg, A, 5, 0)
    if cfg.dstamp and publish:
        A(f"s_waitcnt vmcnt(0)\ns_and_b32 s56, s2, 0xf3\ns_or_b32 s56, s56, s{sW}\ns_cmp_lg_u32 s56, 0\ns_cbranch_scc1 L_nods{tag}")
        A("s_memrealtime s[60:61]\ns_memtime s[62:63]\ns_waitcnt lgkmcnt(0)\ns_sub_u32 s9, s9, s8\ns_sub_u32 s10, s10, s8\ns_sub_u32 s60, s60, s8\ns_sub_u32 s62, s62, s11")
        A(f"v_mov_b32 v4, s9\nv_mov_b32 v5, s10\nv_mov_b32 v6, s60\nv_mov_b32 v7, s62\ns_lshl_b32 s56, s2, 2\nv_mov_b32 v8, s56\ns_mov_b64 exec, 1")
        A(f"buffer_store_dwordx4 v[4:7], v8, {srd(SDB)}, 0 offen\nL_nods{tag}:")
    A("s_endpgm")


def last_fill(cfg, fb):
    for t in range(1, 9):
        s0 = 256 + 16 * t
        if t in cfg.pubs:
            fb.setdefault(s0 + 2, []).append({"pub": cfg.pubs[t]})
        spread(fb, store_block(cfg, 2 * t - 2, Q0, P0) + store_block(cfg, 2 * t - 1, Q0 + 16, P0 + 8), s0 + 3, s0 + 15)
    fb.setdefault(274, []).append(f"v_and_b32 v1, 7, v0\nv_lshlrev_b32 v1, 2, v1\ns_lshl_b32 s64, 1, s{sCU}\ns_mov_b32 s65, 0")


vK, vV, vWq, vWo, vX = 24, 28, 32, 36, 176
W3A = 40
W3B = 52
W3T = W3B
W3X = 76
W3ACC = 160
vTQ, vTO, vTX, vDUM = 12, 13, 14, 15
pQ3 = 22
pX3, pW3 = [4, 5], [6, 7, 8, 9]


def xreg(ks, j):
    i = ks * 6 + j
    return R("a", 4 * i, 4) if i < 64 else R("v", W3X + 4 * (i - 64), 4)


def wave3(cfg, pl):
    addr = pl.addr
    sc = Sched(cfg)
    A = sc.out
    A("L_loader:")
    if cfg.prof:
        A("s_mov_b32 s96, 0\ns_mov_b32 s97, 0\ns_mov_b32 s98, 0\ns_mov_b32 s99, 0")
    x16_patterns(A, pX3)
    wq16_patterns(A, pW3)
    A(f"v_lshlrev_b32 v{pQ3}, 4, v0")
    for p in pX3 + pW3 + [pQ3]:
        sc.bias[p] = 0
    A("v_lshrrev_b32 v1, 3, v0\nv_and_b32 v2, 7, v0\nv_lshrrev_b32 v3, 4, v0")
    A("v_and_b32 v16, 1, v3\nv_lshlrev_b32 v16, 2, v16\nv_xor_b32 v16, v16, v2\nv_lshlrev_b32 v16, 4, v16")
    A("v_lshlrev_b32 v18, 8, v1\nv_lshlrev_b32 v19, 13, v1\nv_mul_u32_u24 v20, 1152, v1")
    for g in range(4):
        A(f"v_add_u32 v17, {4 * g}, v3\nv_and_b32 v17, 7, v17\nv_xor_b32 v17, v17, v2\nv_lshlrev_b32 v17, 4, v17")
        A(f"v_add_u32 v17, {g * (9216 - 1024)}, v17\nv_add_u32 v{vX + g}, v17, v20")
        A(f"v_xor_b32 v17, {32 * (g & 1)}, v16\nv_add_u32 v17, {g * (65536 - 1024)}, v17\nv_add_u32 v{vWq + g}, v17, v19")
        A(f"v_lshrrev_b32 v21, 5, v0\nv_lshlrev_b32 v21, 5, v21\nv_xor_b32 v21, v21, v16\nv_add_u32 v17, {g * (9216 - 1024)}, v21\nv_add_u32 v{vWo + g}, v17, v20")
    kv_offsets(A, vK, vV)
    for g in range(1, 4):
        A(f"v_xor_b32 v{vK + g}, {KX[g]}, v{vK}\nv_xor_b32 v{vV + g}, {32 * (g & 1)}, v{vV}")
    nsh = {"16x8": 16, "8x16": 8, "4x32": 4}[cfg.mapping]
    xsh = 32 // nsh
    rows = 576 // nsh
    A(f"s_and_b32 s56, s{sB}, {nsh - 1}\nv_mov_b32 v21, 0x7fffff00\nv_cmp_gt_u32 vcc, 36, v0")
    A(f"v_lshrrev_b32 v{vTQ}, 1, v0\nv_lshlrev_b32 v{vTQ}, 13, v{vTQ}\nv_and_b32 v17, 1, v0\nv_lshlrev_b32 v17, 7, v17\nv_add_u32 v{vTQ}, v{vTQ}, v17")
    A(f"s_mul_i32 s57, s56, {rows * 8192}\nv_add_u32 v{vTQ}, s57, v{vTQ}\nv_cndmask_b32 v{vTQ}, v21, v{vTQ}, vcc")
    A(f"v_lshlrev_b32 v{vTO}, 7, v0\ns_mul_i32 s57, s56, {rows * 256}\nv_add_u32 v{vTO}, s57, v{vTO}\nv_cndmask_b32 v{vTO}, v21, v{vTO}, vcc")
    A(f"v_cmp_gt_u32 vcc, 54, v0\nv_lshlrev_b32 v{vTX}, 7, v0\ns_and_b32 s57, s{sCU}, {xsh - 1}\ns_mul_i32 s57, s57, {110592 // xsh}\nv_add_u32 v{vTX}, s57, v{vTX}")
    A(f"v_cndmask_b32 v{vTX}, v21, v{vTX}, vcc")

    def touch_ops(vreg, srd_, base, add, step, nl=rows * 2, per=36):
        l = []
        if not cfg.pf:
            return l
        for i in range(nl // per):
            l.append(f"s_add_u32 s{sTMP}, s{base}, {i * per * step + add}")
            for fl in ((" nt", "") if cfg.dbl else ("",)):
                l.append(("vm", f"buffer_load_dword v{vDUM}, v{vreg}, {srd(srd_)}, s{sTMP} offen{fl}"))
        return l

    def quad_ops(q, w=False):
        k = q[0]
        pre = []
        if k == "k":
            pre, off = kv_soffset(q[1], q[2])
            base, v, sr, fl = sTMP, vK, SK, cfg.kvf
        elif k == "v":
            pre, off = kv_soffset(q[1], q[2])
            base, v, sr, fl = sTMP, vV, SV, cfg.kvf
        elif k == "wq":
            off, base, v, sr, fl = (q[1] * 64 + q[2] * 32) * 8192 + q[3] * 128, sWQo, vWq, SWQ, cfg.wf
        elif k == "wq3":
            off, base, v, sr, fl = (q[2] * 64 + q[3] * 32) * 8192 + q[1] * 128 + 256, sWQo, vWq, (SWQ2 if w else SWQ), cfg.wf
        elif k == "x":
            off, base, v, sr, fl = q[2] * 32 * 1152 + q[1] * 128, sXo, vX, SX, cfg.xf
        else:
            pre = [f"s_add_u32 s{sTMP}, s{sWOo}, s{sTC + q[1]}"]
            off, base, v, sr, fl = q[2] * 32 * 1152, sTMP, vWo, SWO, cfg.wf
        l = pre + [f"s_mov_b32 m0, {addr[q]}", f"s_add_u32 s{sTMP}, s{base}, {off}"]
        for g in range(4):
            if not cfg.noload:
                l.append(("vm", f"buffer_load_dwordx4 v{v + g}, {srd(sr)}, s{sTMP} offen offset:{g * 1024}{fl} lds", q, g))
        return l

    lin = []

    def put(sc_, o, gen=0):
        if isinstance(o, tuple):
            sc_.out(o[1])
            lin.append((o[2] if len(o) > 2 else None, gen))
        elif callable(o):
            o(sc_)
        else:
            sc_.out(o)

    def wait_for(sc_, quads, gen):
        if cfg.noload:
            return
        last = max(k for k, e in enumerate(lin) if e[0] in quads and e[1] == gen)
        sc_.out(f"s_waitcnt vmcnt({min(63, len(lin) - 1 - last)})")

    def bar(sc_):
        if not cfg.nobar:
            sc_.out("s_barrier")

    descriptors(A)
    rotation(cfg, A)
    if stamp(cfg, A, 15, 1):
        lin.append((None, 0))
    if cfg.delay:
        A(f"s_and_b32 s56, s{sB}, 1\ns_cmp_eq_u32 s56, 0\ns_cbranch_scc1 L_nodelay")
        for _ in range(cfg.delay):
            A("s_sleep 32")
        A("L_nodelay:")
    for n_, q in enumerate(pl.sissue[-1]):
        for o in quad_ops(q):
            put(sc, o)
        if n_ == 6:
            sample_flags(A)
            lin.append((("flag",), 0))
    bias0 = {p: XRES for p in pX3}
    bias0.update({p: WRB for p in pW3})
    bias0[pQ3] = QBUF
    ops = w3_ops(cfg)
    quads = w3_quads()
    ns = len(pl.grp)

    def conv_tile(p, hb, j):
        l = []
        for e in range(2):
            pk = W3T + 4 + 4 * e
            for x in range(2):
                acc = W3ACC + 4 * (6 * (2 * hb + x) + 2 * j + e)
                for y in range(2):
                    t0 = W3T + 2 * y
                    l += [f"v_mul_f32 v{t0}, s{sC}, v{acc + 2 * y}", f"v_mul_f32 v{t0 + 1}, s{sC}, v{acc + 2 * y + 1}"]
                l += [f"v_cvt_pk_bf16_f32 v{pk + 2 * x + y}, v{W3T + 2 * y}, v{W3T + 2 * y + 1}" for y in range(2)]
            l += ["s_nop 0", f"v_permlane16_swap_b32 v{pk}, v{pk + 2}", f"v_permlane16_swap_b32 v{pk + 1}, v{pk + 3}"]
            l.append(lambda sc_, pk=pk, a=QBUF + (j * 4 + 2 * hb + e) * 1024: sc_.lds("ds_write_b128", R("v", pk, 4), pQ3, a))
        return l

    def period(last, pro):
        nonlocal lin
        sc2 = Sched(cfg)
        sc2.bias = dict(bias0)
        B = sc2.out
        lin = [(q, 0) for q in pro for g in range(4)] if not cfg.noload else []
        myops = [] if last else copy.deepcopy(ops)
        n = len(myops)
        fill = {}
        bpos = {s: (sum(cfg.quota[:s]) if not last else 0) for s in range(ns + 1)}
        enq = {}
        if not last:
            lastidx = {(o["p"], o["hb"], o["j"]): i for i, o in enumerate(ops) if o["last"]}
            for p, hb in ((0, 0), (1, 0), (0, 1)):
                i0 = lastidx[(p, hb, 2)]
                spread(fill, sum((conv_tile(p, hb, j) for j in range(3)), []), i0 + 4, i0 + 12)
            assert lastidx[(0, 1, 2)] + 16 <= bpos[18] and lastidx[(1, 0, 2)] + 4 >= bpos[19]
            firstop = {q: min(i for i, o in enumerate(ops) if o["q"] == q) for q in quads}
            lastop = {q: max(i for i, o in enumerate(ops) if o["q"] == q) - 2 for q in quads}
            seg = lambda i: max(s for s in range(ns) if bpos[s] <= i)
            at = 0
            for k in range(36, 72):
                prev = max(j for j in range(k) if addr[quads[j % 36]] == addr[quads[k % 36]])
                free = lastop[quads[prev % 36]] + 1 + (prev // 36 - 1) * n
                sneed = seg(firstop[quads[k % 36]]) - cfg.raq
                early = bpos[sneed] if sneed >= 0 else bpos[sneed + ns] - n
                at = max(free, early) if k == 36 else max(at, free, early)
                assert at <= firstop[quads[k % 36]] - 5
                enq.setdefault(at % n if at < 0 else at, []).append((quads[k % 36], at < 0))
        st = dict(wrapq=False, wrapg=False, rdA=0, rdB=0, abuf=0, bbuf=0, step=-1)
        queue = []

        def drain(nvm):
            while queue and nvm > 0:
                o, g = queue.pop(0)
                put(sc2, o, g)
                nvm -= isinstance(o, tuple)

        def open_step(s):
            if cfg.trace is True:
                B(f"s_memtime s[60:61]\ns_waitcnt lgkmcnt(0)\nv_writelane_b32 v2, s60, {s}")
            wait_for(sc2, {pl.grp[s][3]}, 0)
            if cfg.trace is True:
                B(f"s_memtime s[60:61]\ns_waitcnt lgkmcnt(0)\nv_writelane_b32 v2, s60, {32 + s}")
            if s in (0, 16):
                if stamp(cfg, B, {0: 1, 16: 2}[s], 1):
                    lin.append((None, 0))
            if last and s == 16:
                B("v_readfirstlane_b32 s57, v17\ns_mov_b32 s58, 0\nL_chk:\ns_cmp_ge_u32 s57, 8\ns_cbranch_scc1 L_chkend")
                B(f"buffer_load_dword v17, v16, {srd(SDB)}, 0 offen offset:{128 if cfg.dstamp else 0} sc1\ns_add_u32 s58, s58, 1\ns_waitcnt vmcnt(0)\nv_readfirstlane_b32 s57, v17")
                B("s_cmp_lt_u32 s58, 0x80000\ns_cbranch_scc1 L_chk\nL_chkend:")
            bar(sc2)
            for g, w in pl.req[s]:
                if w and not st["wrapg"]:
                    st["wrapg"] = True
                    queue.append((f"s_add_u32 s{sKV}, s{sKV}, 0x20000", 0))
                assert g >= 16 or w == st["wrapg"]
                if not (last and w):
                    queue.extend((o, int(w)) for o in quad_ops(pl.grp[g][3]))
            if last and s == 2:
                queue.extend([(f"s_lshl_b32 s56, s{sPAIR}, 2", 0), ("v_mov_b32 v16, s56", 0), (("vm", f"buffer_load_dword v17, v16, {srd(SDB)}, 0 offen offset:{128 if cfg.dstamp else 0} sc1"), 0)])
            if s == cfg.pf_wo_step:
                queue.extend((o, 0) for o in touch_ops(vTO, SWO, sWOo, 0, 128))
            if s == cfg.pf_wq_step and not last:
                queue.append((f"s_cmp_eq_u32 s{sIT}, 2\ns_cselect_b32 s{SWQ2 + 2}, 0, s{SWQ2 + 2}", 0))
                queue.extend((o, 0) for o in touch_ops(vTQ, SWQ2, sWQo, 512, 4096))
            if cfg.warm and s == 9 and not last:
                queue.append(("s_call_b64 s[40:41], L_warm_more", 0))
            if bpos[s + 1] == bpos[s]:
                drain(99)
            st["step"] = s

        for i in range(n):
            while st["step"] + 1 < ns and bpos[st["step"] + 1] <= i:
                open_step(st["step"] + 1)
            for q, w in enq.get(i, []):
                if w and not st["wrapq"]:
                    st["wrapq"] = True
                    queue.append((f"s_add_u32 s{sWQo}, s{sWQo}, 256", 0))
                assert w == st["wrapq"]
                queue.extend((o, int(w)) for o in quad_ops(q, w))
            while st["rdA"] < n and st["rdA"] <= i + 5:
                o = myops[st["rdA"]]
                if st["rdA"] == firstop[o["q"]] and not cfg.noload:
                    while lin.count((o["q"], 0)) < 4:
                        drain(1)
                    wait_for(sc2, {o["q"]}, 0)
                fb = W3A + 4 * (st["abuf"] % 3)
                st["abuf"] += 1
                sc2.lds("ds_read_b64_tr_b16", R("v", fb, 2), pW3[o["dt"]], addr[o["q"]])
                sc2.lds("ds_read_b64_tr_b16", R("v", fb + 2, 2), pW3[o["dt"]], addr[o["q"]] + 4 * 128)
                for d in range(3):
                    myops[st["rdA"] + d]["areg"] = fb
                st["rdA"] += 3
            while st["rdB"] < n and st["rdB"] <= i + 2:
                o = myops[st["rdB"]]
                if o["ks"] >= 14 and st["rdB"] - o["j"] == firstop[o["q"]]:
                    for e in range(2):
                        qt = 2 * o["j"] + e
                        sc2.lds("ds_read_b128", R("v", W3B + 4 * qt, 4), pX3[o["ks"] & 1], XRES + ((o["ks"] >> 1) - 7) * 12288 + qt * 2048)
                st["rdB"] += 1
            o = myops[i]
            fl = fill.get(i, [])
            for e in range(2):
                if e:
                    drain(1)
                for f in (fl[len(fl) // 2:] if e else fl[:len(fl) // 2]):
                    put(sc2, f)
                qt = 2 * o["j"] + e
                d = R("v", W3ACC + 4 * (6 * o["dt"] + qt), 4)
                b = xreg(o["ks"], qt) if o["ks"] < 14 else R("v", W3B + 4 * qt, 4)
                B(f"{MF16} {d}, {R('v', o['areg'], 4)}, {b}, {'0' if o['first'] else d}")
        drain(99)
        if not last:
            for o in sum((conv_tile(1, 1, j) for j in range(3)), []):
                put(sc2, o)
            B("s_waitcnt lgkmcnt(0)")
            assert st["step"] + 1 < ns
        while st["step"] + 1 < ns:
            open_step(st["step"] + 1)
        tailq = [e[0] for e in lin if e[1] == 1][::4]
        if not last:
            B(f"s_add_u32 s{sWOo}, s{sWOo}, 147456")
            for p, b in bias0.items():
                sc2.rebias(p, b)
            if cfg.trace is True:
                B(f"s_cmp_lg_u32 s{sIT}, {cfg.trace_it}\ns_cbranch_scc1 L_notr3\nv_lshlrev_b32 v1, 2, v0\ns_lshl_b32 s62, s2, 10\ns_add_u32 s62, s62, {STAMP_BASE + 768}")
                B(f"buffer_store_dword v2, v1, {srd(SWS)}, s62 offen\ns_waitcnt vmcnt(0)\nL_notr3:")
            B(f"s_add_u32 s{sIT}, s{sIT}, 1\ns_cmp_lt_u32 s{sIT}, 3\ns_cbranch_scc1 L_w3loop")
        body, pe = lgkm_pass(B.ins)
        assert not pe
        return body, tailq

    lin0 = list(lin)
    _, pro = period(False, [pl.grp[g][3] for g in pl.pro] + quads[:cfg.WR])
    loopbody, pro2 = period(False, pro)
    assert pro2 == pro
    lastp, _ = period(True, pro)
    lin = lin0
    if cfg.noload:
        pro = []
    todo = list(pro)
    for t in range(9):
        wait_for(sc, set(pl.start[t]) | ({("flag",)} if t == 0 else set()), 0)
        A("s_waitcnt lgkmcnt(0)")
        bar(sc)
        if t == 0:
            A(f"s_lshl_b32 s56, s{sPAIR}, 2\nv_mov_b32 v16, s56\nv_mov_b32 v17, 1\ns_mov_b64 exec, 1")
            put(sc, ("vm", f"buffer_atomic_add v17, v16, {srd(SDB)}, 0 offen offset:{128 if cfg.dstamp else 0} sc1"))
            A("s_mov_b64 exec, -1")
        if t < 7:
            for s in range(2):
                for j in range(6):
                    sc.lds("ds_read_b128", xreg(2 * t + s, j), pX3[s], addr[("x", t, 0)] + j * 2048)
        if t == cfg.pf_wq0_step:
            for o in touch_ops(vTQ, SWQ, sWQo, 256, 4096):
                put(sc, o)
        for q in pl.sissue[t]:
            for o in quad_ops(q):
                put(sc, o)
        while todo:
            q = todo[0]
            if q[0] == "wq3":
                if pl.slast.get(addr[q], -9) >= t:
                    break
                if any(pl.sissue[b] for b in range(t + 1, 9)):
                    break
            elif not any(pl.grp[g][3] == q for b in range(-1, t + 1) for g in pl.sreq[b]):
                break
            for o in quad_ops(todo.pop(0)):
                put(sc, o)
    assert not todo
    for p, b in bias0.items():
        sc.rebias(p, b)
    A("s_waitcnt lgkmcnt(0)")
    head, pend = lgkm_pass(sc.out.ins)
    loop = [parse("L_w3loop:")] + loopbody
    T = Prog()
    if cfg.prof:
        T(f"v_mov_b32 v16, s96\nv_mov_b32 v17, s97\nv_mov_b32 v18, s98\nv_mov_b32 v19, s99\nv_mov_b32 v20, 0\ns_lshl_b32 s62, s2, 10\ns_add_u32 s62, s62, {STAMP_BASE + 512 + 64}")
        T(f"buffer_store_dwordx4 v[16:19], v20, {srd(SWS)}, s62 offen")
    T(f"s_cmp_ge_u32 s{sCU}, 3\ns_cbranch_scc1 L_done")
    T("s_mov_b32 s61, 8")
    finish_unit(cfg, T, "w3", 8, 192, sCU, 61, False)
    allins, nn = hazard_pass(head + loop + lastp + T.ins, verbose=cfg.dbg == "nops3")
    return allins, dict(w3nops=nn, w3est=est_cycles(loop))


def acc_out(nb):
    return R("a", 16 * nb, 16) if nb < 16 else R("v", OUTV + 16 * (nb - 16), 16)


def q_ops(addr):
    ops = []
    for t in range(9):
        order = [(rb, dt) for rb in range(2) for dt in range(8)] if t < 8 else [(rb, 2 * b + x) for b in range(4) for rb in range(2) for x in range(2)]
        seen = set()
        for (rb, dt) in order:
            qa = addr[("wq", t, rb, dt >> 2)]
            xb = S0 + 8 * ((t * 2 + rb) % 4)
            mm = []
            for e in range(2):
                d = R("v", O0 + 8 * dt + 4 * e, 4)
                mm.append((d, R("v", xb + 4 * e, 4), "0" if (t == 0 and rb == 0) else d))
            o = dict(step=t, a=[("tr", pWq[dt & 3], qa), ("tr", pWq[dt & 3], qa + 512)], mm=mm)
            if rb not in seen:
                seen.add(rb)
                o["x"] = [(xb + 4 * e, pK[rb], addr[("x", t, 0)] + 2048 * e) for e in range(2)]
            ops.append(o)
    return ops


def item_ops(addr):
    ops = []

    def qk(u, step):
        base = S0 + 16 * (u & 1) if u else O0
        for kt in range(2):
            for ds in range(4):
                mm = []
                for e in range(2):
                    d = R("v", base + 8 * e + 4 * kt, 4)
                    mm.append((d, R("v", Q0 + 8 * ds + 4 * e, 4), d if ds else ("0" if u < 2 else R("v", NEGM + 4 * e, 4))))
                ops.append(dict(step=step, a=[("b128", pK[ds & 1], addr[("k", u, kt)] + (ds >> 1) * 512)], mm=mm))

    def pv(u, step, bmajor=False):
        for dt in range(8):
            va = addr[("v", u, 0)] + (dt >> 2) * 512
            mm = []
            for e in range(2):
                d = R("v", O0 + 8 * dt + 4 * e, 4)
                mm.append((d, R("v", P0 + 8 * (u & 1) + 4 * e, 4), "0" if u == 0 else d))
            ops.append(dict(step=step, a=[("tr", pV[dt & 3], va), ("tr", pV[dt & 3], va + 4096)], mm=mm))
    qk(0, 0)
    qk(1, 0)
    for u in range(1, 15):
        qk(u + 1, u)
        pv(u - 1, u)
    pv(14, 15)
    pv(15, 15, True)
    for t in range(9):
        for b in range(4):
            for nt in range(4):
                wa = addr[("wo", t, b)]
                mm = []
                for e in range(2):
                    r = 32 * t + 8 * nt + 4 * e
                    d = R("a", r, 4) if t < 8 else R("v", OUTV + r - 256, 4)
                    mm.append((d, R("v", OF + 8 * b + 4 * e, 4), d))
                ops.append(dict(step=16 + t, a=[("tr", pV[nt], wa), ("tr", pV[nt], wa + 2048)], mm=mm, alt=(b == 0)))
    ops[256]["pre"] = [f"v_add_u32 v{p}, v{p}, v{vDL}" for p in pV]
    assert len(ops) == 400
    return ops


PKS = [False]
LAG = [2]
B2, L2 = (NEGM + 8, NEGM + 10), (NEGM + 12, NEGM + 14)


def pk(op, d, a, b):
    return f"{op} v[{d}:{d + 1}], v[{a}:{a + 1}], v[{b}:{b + 1}]"


def sum_into_l(first=False):
    if PKS[0]:
        return [f"v_mov_b32 v{L2[e] + y}, v{B2[e] + y}" for e in range(2) for y in range(2)] if first else [pk("v_pk_add_f32", L2[e], L2[e], B2[e]) for e in range(2)]
    return [f"v_mov_b32 v{vL}, v{vBS}", f"v_mov_b32 v{vL1}, v{vBS1}"] if first else [f"v_add_f32 v{vL}, v{vL}, v{vBS}", f"v_add_f32 v{vL1}, v{vL1}, v{vBS1}"]


def softmax_ops(u, first=False):
    S, P = S0 + 16 * (u & 1), P0 + 8 * (u & 1)
    if first:
        S = O0
    l = []
    if PKS[0]:
        for k in range(9):
            a, pa = vT[2 * (k & 1)], vT[2 * ((k - 1) & 1)]
            acc = B2[(k - 1) >> 2]
            if k and (k - 1) & 3 == 1:
                l.append(pk("v_pk_add_f32", acc, a, pa))
            if k < 8:
                l.append(f"v_exp_f32 v{a}, v{S + 2 * k}")
            if k:
                l.append(f"v_cvt_pk_bf16_f32 v{P + k - 1}, v{pa}, v{pa + 1}")
            if k < 8:
                l.append(f"v_exp_f32 v{a + 1}, v{S + 2 * k + 1}")
            if k and (k - 1) & 3 > 1:
                l.append(pk("v_pk_add_f32", acc, acc, pa))
        return l
    if LAG[0] == 2:
        T = ((vT[0], vT[1]), (vT[2], vT[3]), (6, 7))
        for k in range(10):
            a, b = T[k % 3]
            pa, pb = T[(k - 2) % 3]
            bs = vBS if k - 2 < 4 else vBS1
            if k < 8:
                l.append(f"v_exp_f32 v{a}, v{S + 2 * k}")
            if k in (2, 6):
                l.append(f"v_add_f32 v{bs}, v{pa}, v{pb}")
            elif k > 2:
                l.append(f"v_add_f32 v{bs}, v{bs}, v{pa}")
            if k >= 2:
                l.append(f"v_cvt_pk_bf16_f32 v{P + k - 2}, v{pa}, v{pb}")
            if k < 8:
                l.append(f"v_exp_f32 v{b}, v{S + 2 * k + 1}")
            if k > 2 and k != 6:
                l.append(f"v_add_f32 v{bs}, v{bs}, v{pb}")
        return l
    for k in range(9):
        a, b = vT[2 * (k & 1)], vT[2 * (k & 1) + 1]
        pa, pb = vT[2 * ((k - 1) & 1)], vT[2 * ((k - 1) & 1) + 1]
        bs = vBS if k - 1 < 4 else vBS1
        if k < 8:
            l.append(f"v_exp_f32 v{a}, v{S + 2 * k}")
        if k in (1, 5):
            l.append(f"v_add_f32 v{bs}, v{pa}, v{pb}")
        elif k:
            l.append(f"v_add_f32 v{bs}, v{bs}, v{pa}")
        if k < 8:
            l.append(f"v_exp_f32 v{b}, v{S + 2 * k + 1}")
        if k:
            l.append(f"v_cvt_pk_bf16_f32 v{P + k - 1}, v{pa}, v{pb}")
        if k and k not in (1, 5):
            l.append(f"v_add_f32 v{bs}, v{bs}, v{pb}")
    return l


def across(op, x, y, t, mid=()):
    return [f"v_permlane16_swap_b32 v{x}, v{y}", f"{op} v{x}, v{x}, v{y}", f"v_mov_b32 v{t}, v{x}", f"v_permlane32_swap_b32 v{x}, v{t}",
            f"{op} v{x}, v{x}, v{t}"] + list(mid) + [f"v_mov_b32 v{y}, v{x}", f"v_permlane16_swap_b32 v{x}, v{y}"]


def conv_o(b):
    l = []
    for e, sc_ in ((0, vM), (1, vM3)):
        for x in range(2):
            r = O0 + 8 * (2 * b + x) + 4 * e
            l += [f"v_mul_f32 v{r + i}, v{sc_}, v{r + i}" for i in range(4)]
            l += [f"v_cvt_pk_bf16_f32 v{OF + 8 * b + 4 * e + 2 * x + y}, v{r + 2 * y}, v{r + 2 * y + 1}" for y in range(2)]
    return l


def conv_q(b):
    l = []
    for e in range(2):
        dst = Q0 + 8 * b + 4 * e
        for x in range(2):
            r = O0 + 8 * (2 * b + x) + 4 * e
            l += [f"v_mul_f32 v{r + i}, s{sC}, v{r + i}" for i in range(4)]
            l += [f"v_cvt_pk_bf16_f32 v{dst + 2 * x + y}, v{r + 2 * y}, v{r + 2 * y + 1}" for y in range(2)]
    for e in range(2):
        dst = Q0 + 8 * b + 4 * e
        l += [f"v_permlane16_swap_b32 v{dst}, v{dst + 2}", f"v_permlane16_swap_b32 v{dst + 1}, v{dst + 3}"]
    return l


def rowmax(S):
    l = []
    for k in range(4):
        for m, r in ((vM, S), (vM3, S + 8)):
            l.append(f"v_max3_f32 v{m}, v{r}, v{r + 1}, v{r + 2}" if k == 0 else f"v_max3_f32 v{m}, v{m}, v{r + 1 + 2 * k}, v{r + 2 + 2 * k}" if k < 3
                     else f"v_max_f32 v{m}, v{m}, v{r + 7}")
    return l + across("v_max_f32", vM, vM3, vM2)


def with_subs(S, sm):
    sub = [f"v_sub_f32 v{S + i}, v{S + i}, v{vM3 if i & 8 else vM}" for i in range(16)]
    l, k = sub[:4], 4
    for o in sm:
        l.append(o)
        if o.startswith("v_exp") and k < 16:
            l.append(sub[k])
            k += 1
    return l


def item_fill(cfg, ops, fill):
    post = {}
    PKS[0] = cfg.pksum
    LAG[0] = cfg.lag
    chk = [f"v_max_f32 v{vMX}, v{vBS}, v{vBS1}", f"v_cmp_lt_f32 vcc, s{sTHR}, v{vMX}"]
    if cfg.pksum:
        chk = [f"v_max3_f32 v{vBS}, v{B2[0]}, v{B2[0] + 1}, v{B2[1]}", f"v_max_f32 v{vBS}, v{vBS}, v{B2[1] + 1}", f"v_cmp_lt_f32 vcc, s{sTHR}, v{vBS}"]
    spread(fill, rowmax(O0) + [f"v_sub_f32 v{NEGM + i}, 0, v{vM3 if i & 4 else vM}" for i in range(8)], 10, 15)
    spread(fill, with_subs(O0, softmax_ops(0, True)) + sum_into_l(True), 16, 23)
    spread(fill, with_subs(S0 + 16, softmax_ops(1)) + chk, 24, 31)
    post[31] = 1
    for u in range(2, 15):
        su = 16 * u
        spread_bal(cfg, ops, fill, softmax_ops(u) + chk, su, su + 15)
        post[su + 15] = u
    spread(fill, softmax_ops(15) + chk, 240, 247)
    post[247] = 15
    fin = [f"v_add_f32 v{m}, v{L2[e]}, v{L2[e] + 1}" for e, m in enumerate((vM, vM3))] if cfg.pksum else [f"v_mov_b32 v{vM}, v{vL}", f"v_mov_b32 v{vM3}, v{vL1}"]
    spread(fill, fin + across("v_add_f32", vM, vM3, vM2, [f"v_rcp_f32 v{vM}, v{vM}"]), 248, 252)
    spread(fill, conv_o(0), 253, 255)
    spread(fill, conv_o(1), 256, 259)
    spread(fill, conv_o(2), 260, 263)
    spread(fill, conv_o(3), 264, 267)
    return post


def store_block(cfg, nb, tmp, pk):
    l = []
    if not nb & 1:
        l += [f"s_mul_i32 s56, s{sTC + (nb >> 1)}, 768", f"s_add_u32 s56, s56, s{sWSo}"]
    for u in range(2):
        for k in range(8):
            l.append(f"v_accvgpr_read_b32 v{tmp + 8 * u + k}, a{16 * nb + 4 * u + 8 * (k >> 2) + (k & 3)}")
        for k in range(4):
            i = 8 * u + 2 * k
            l.append(f"v_cvt_pk_bf16_f32 v{pk + 4 * u + k}, v{tmp + i}, v{tmp + i + 1}")
        l.append((f"buffer_store_dwordx4 {R('v', pk + 4 * u, 4)}, v{vST}, {srd(SWS)}, s56 offen offset:{((nb & 1) * 2 + u) * 1024}{cfg.pstf}", ("st", nb >> 1)))
    return l


VMCOST = 4


def emit_slots(cfg, sc, ops, fill, post, lo, hi, st, stubs, stamps={}, nextops=None):
    LA = cfg.LA
    first = {}
    if nextops:
        ops = ops + [dict(o, step=ops[-1]["step"] + 1) for o in nextops]
    for i, o in enumerate(ops):
        first.setdefault(o["step"], i)
    for i in range(lo, hi):
        nx = st["step"] + 1
        if nextops and nx == ops[-1]["step"] and i >= first[nx] - cfg.LB:
            st["tag"], st["alias"] = "n", 0
            for p, b in st["rebias"].items():
                sc.rebias(p, b)
            for p in pV:
                sc.out(f"v_sub_u32 v{p}, v{p}, v{vDL}")
        if nx in first and i >= first[nx] - (cfg.LB if nx else LA):
            if cfg.dstamp and nx in stamps and stamps[nx] in (1, 2) and (stamps[nx] == 2 or nx == 0):
                sc.out(f"s_memrealtime s[60:61]\ns_waitcnt lgkmcnt(0)\ns_mov_b32 s{8 + stamps[nx]}, s60")
            if nx in stamps and stamp(cfg, sc.out, stamps[nx], 0):
                st["lin"].append(None)
            w = "lgkmcnt(0)"
            key = (st["tag"], st.get("alias", nx))
            if key in st["lin"]:
                last = max(k for k, e in enumerate(st["lin"]) if e == key)
                w = f"vmcnt({len(st['lin']) - 1 - last}) " + w
            if cfg.trace == "head" and len(ops) in (144, 432):
                sc.out(f"s_memrealtime s[60:61]\ns_waitcnt lgkmcnt(0)\nv_writelane_b32 v{NEGM + 1}, s60, {nx}")
            if cfg.trace is True and len(ops) in (400, 400 + cfg.LA) and 0 < nx < 25:
                sc.out("s_memtime s[60:61]\ns_waitcnt lgkmcnt(0)")
                sc.out(f"v_writelane_b32 v2, s60, {nx}")
            if cfg.trace == "head2" and len(ops) == 432:
                sc.out(f"s_memtime s[60:61]\ns_waitcnt lgkmcnt(0)\nv_writelane_b32 v{NEGM + 1}, s60, {nx}")
            sc.out("s_waitcnt " + w)
            if cfg.trace == "head2" and len(ops) == 432:
                sc.out(f"s_memtime s[60:61]\ns_waitcnt lgkmcnt(0)\nv_writelane_b32 v{NEGM + 1}, s60, {32 + nx}")
            if cfg.trace is True and len(ops) in (400, 400 + cfg.LA) and 0 < nx < 25:
                sc.out("s_memtime s[60:61]\ns_waitcnt lgkmcnt(0)")
                sc.out(f"v_writelane_b32 v2, s60, {32 + nx}")
            if not cfg.nobar:
                sc.out("s_barrier")
            st["step"] = nx
        nrd = 0
        held = []
        while st["rd"] < min(i + LA + 1, len(ops)) and ops[st["rd"]]["step"] <= st["step"]:
            o = ops[st["rd"]]
            nrd += len(o["a"])
            for x in o.get("pre", []):
                sc.out(x)
            for xd, xp, xa in o.get("x", []):
                sc.lds("ds_read_b128", R("v", xd, 4), xp, xa)
                nrd += 1
            fb = sc.fbuf()
            o["areg"] = fb
            if o["a"][0][0] == "b128":
                sc.lds("ds_read_b128", R("v", fb, 4), o["a"][0][1], o["a"][0][2])
            else:
                sc.lds("ds_read_b64_tr_b16", R("v", fb, 2), o["a"][0][1], o["a"][0][2])
                if held:
                    held.pop()(sc)
                held.append(lambda s_, fb=fb, o=o: s_.lds("ds_read_b64_tr_b16", R("v", fb + 2, 2), o["a"][1][1], o["a"][1][2]))
            st["rd"] += 1
        if held and not (cfg.split and i >= 0 and "mm" in ops[i] and not (ops[i].get("alt") and st.get("alts") is not None)
                         and not ops[min(st["rd"], len(ops) - 1)].get("pre")):
            held.pop()(sc)

        def emit_fill(fl):
            for f in fl:
                if callable(f):
                    f(sc)
                elif isinstance(f, dict):
                    last = max(k for k, e in enumerate(st["lin"]) if e == ("st", f["pub"] - 1))
                    n_ = sum(1 for e in st["lin"][last + 1:] if e and e[0] == "st")
                    sc.out(f"v_add_u32 v2, {f['pub']}, v{vFL}\ns_waitcnt vmcnt({n_})\ns_mov_b64 exec, s[64:65]")
                    sc.out(f"buffer_store_dword v2, v1, {srd(SWS)}, s{sFLG} offen sc1\ns_mov_b64 exec, -1")
                    st["lin"].append(("st", -1))
                elif isinstance(f, tuple):
                    sc.out(f[0])
                    st["lin"].append(f[1])
                else:
                    sc.out(f)
                    if f.startswith("buffer_"):
                        st["lin"].append(None)
        fl = fill.get(i, [])
        if i < 0:
            emit_fill(fl)
            continue
        o = ops[i]
        mm = o.get("mm") or [(o["d"], o["b"], o["c"])]
        op = MF16 if "mm" in o else MF
        ms = [parse(f"{op} {d}, {R('v', o['areg'], 4)}, {b}, {c}") for d, b, c in mm]
        if i % cfg.waitgrp == 0:
            for d in range(1, cfg.waitgrp):
                if i + d < st["rd"]:
                    ms[0].rd = set(ms[0].rd) | {("v", ops[i + d]["areg"] + k) for k in range(4)}
        if o.get("alt") and st.get("alts") is not None:
            emit_fill(fl)
            c = parse(f"s_cmp_eq_u32 s{sIT}, 0")
            c.rd = set(c.rd) | {r for m in ms for r in m.rd if r[0] == "v"}
            n_ = len(st["alts"])
            sc.out.ins.append(c)
            sc.out(f"s_cbranch_scc1 L_alt{n_}")
            sc.out.ins.extend(ms)
            sc.out(f"s_branch L_altb{n_}\nL_alt{n_}:")
            for d, b, c in mm:
                z = parse(f"{op} {d}, {R('v', o['areg'], 4)}, {b}, 0")
                z.kind = "altmfma"
                sc.out.ins.append(z)
            sc.out(f"L_altb{n_}:")
            st["alts"].append(n_)
            continue
        if len(ms) == 1:
            emit_fill(fl)
            sc.out.ins.append(ms[0])
        else:
            cost = lambda f: cfg.vmcost if isinstance(f, tuple) else 1 if not isinstance(f, str) else (2 if f.startswith("v_exp") else f.count("\n") + 1)
            need0 = max([k + 1 for k, f in enumerate(fl) if isinstance(f, str) and "\n" not in f and parse(f).wr & ms[0].rd] + [0])
            c0 = nrd - len(held) + (i % cfg.waitgrp == 0) + (3 if i - 1 in post else 0)
            k0 = min(range(need0, len(fl) + 1), key=lambda k: abs(c0 + sum(map(cost, fl[:k])) - len(held) - sum(map(cost, fl[k:]))))
            emit_fill(fl[:k0])
            sc.out.ins.append(ms[0])
            emit_fill(held + fl[k0:])
            sc.out.ins.append(ms[1])
        if i in post:
            u = post[i]
            tag = f"{u}_{len(stubs)}"
            sc.out(f"s_cbranch_vccnz L_stub_{tag}\nL_back_{tag}:")
            sc.out("\n".join(sum_into_l()))
            stubs.append((tag, u & 1))


def group_request(cfg, pl, fill, slot, g, tag, kind, sp=1):
    l = []
    want = "k" if g == 0 else "m" if g < 15 else "v" if g == 15 else "w"
    if want != kind:
        l += {"k": [f"v_xor_b32 v{vD + k}, {KX[k]}, v{bK}" for k in range(4)],
              "m": [f"v_mov_b32 v{vD}, v{bM}", f"v_xor_b32 v{vD + 1}, s{sXM}, v{bM}", f"v_xor_b32 v{vD + 2}, s{sXM2}, v{bM}", f"v_xor_b32 v{vD + 3}, s{sXM2}, v{vD + 1}"],
              "v": [f"v_xor_b32 v{vD + k}, {32 * (k & 1)}, v{bV}" for k in range(4)],
              "w": [f"v_add_u32 v{vD + k}, {8192 * k}, v{bWo}" for k in range(4)]}[want]
    rot = lambda r, n: f"s_add_u32 s{sTMP}, s{r}, {n * 8192}\ns_and_b32 s{sTMP}, s{sTMP}, 0x1ffff\ns_add_u32 s{sTMP}, s{sTMP}, s{sB0}"
    so, sr, fl = {"k": (rot(sR0, 0), SK, cfg.kvf), "m": (rot(sMB, g), SM, cfg.kvf), "v": (rot(sR0, 14), SV, cfg.kvf),
                  "w": (f"s_add_u32 s{sTMP}, s{sWB}, s{sTC + max(g - 16, 0)}", SWO, cfg.wf)}[want]
    l += [f"s_add_u32 m0, s{sT4K}, {pl.addr[pl.grp[g][0]]}", so]
    fill.setdefault(slot, []).extend(l)
    for k in range(4):
        if not cfg.noload:
            fill.setdefault(slot + k * sp, []).append((f"buffer_load_dwordx4 v{vD + k}, {srd(sr)}, s{sTMP} offen offset:{k * 1024}{fl} lds", (tag, g)))
    if g == 24:
        fill.setdefault(slot + 3 * sp, []).append(f"s_add_u32 s{sWB}, s{sWB}, 147456")
    return want


def rare_routine(p):
    A = Prog()
    S, Sn = S0 + 16 * p, S0 + 16 * (1 - p)
    A(f"L_rare{p}:\ns_nop 15\ns_nop 15")
    A("\n".join(rowmax(S)))
    A(f"v_max_f32 v{vM}, 0, v{vM}\nv_max_f32 v{vM3}, 0, v{vM3}")
    for i in range(8):
        A(f"v_sub_f32 v{NEGM + i}, v{NEGM + i}, v{vM3 if i & 4 else vM}")
    for i in range(16):
        m = vM3 if i & 8 else vM
        A(f"v_sub_f32 v{S + i}, v{S + i}, v{m}\nv_sub_f32 v{Sn + i}, v{Sn + i}, v{m}")
    A(f"v_exp_f32 v{vM}, -v{vM}\nv_exp_f32 v{vM3}, -v{vM3}\ns_nop 0")
    if PKS[0]:
        A("\n".join(f"v_mul_f32 v{L2[e] + y}, v{L2[e] + y}, v{(vM, vM3)[e]}" for e in range(2) for y in range(2)))
    else:
        A(f"v_mul_f32 v{vL}, v{vL}, v{vM}\nv_mul_f32 v{vL1}, v{vL1}, v{vM3}")
    for i in range(64):
        A(f"v_mul_f32 v{O0 + i}, v{O0 + i}, v{vM3 if i & 4 else vM}")
    A("\n".join(softmax_ops(p)))
    A("s_nop 3\ns_setpc_b64 s[40:41]")
    ins, _ = hazard_pass(A.ins)
    return ins


def compute(cfg, pl):
    addr = pl.addr
    sc = Sched(cfg)
    A = sc.out
    A(f"s_lshl_b32 s{sT4K}, s{sW}, 12\ns_mov_b32 s{sTHR}, {hex(f2u(cfg.thr))}")
    nsh = {"16x8": 16, "8x16": 8, "4x32": 4}[cfg.mapping]
    xr = 96 // (32 // nsh)
    A(f"v_mov_b32 v21, 0x7fffff00\ns_and_b32 s56, s{sB}, {nsh - 1}\ns_mul_i32 s56, s56, {(576 // nsh) * 8192}\ns_add_u32 s56, s56, s{sWQo}")
    A("v_lshrrev_b32 v16, 1, v0\nv_lshlrev_b32 v16, 13, v16\nv_and_b32 v17, 1, v0\nv_lshl_add_u32 v16, v17, 7, v16\nv_cmp_gt_u32 vcc, 36, v0")
    A(f"s_and_b32 s57, s{sCU}, {32 // nsh - 1}\ns_mul_i32 s57, s57, {xr * 1152}\ns_add_u32 s57, s57, s{sXo}\nv_cndmask_b32 v16, v21, v16, vcc")
    A(f"v_mul_u32_u24 v17, 1152, v0\nv_cmp_gt_u32 vcc, {xr}, v0\ns_and_b32 s58, s{sW}, 2\ns_lshl_b32 s58, s58, 6\ns_add_u32 s57, s57, s58\nv_cndmask_b32 v17, v21, v17, vcc")
    if cfg.pfc:
        A(f"s_cmp_lg_u32 s{sW}, 2\ns_cbranch_scc1 L_nopfc\ns_mov_b32 s60, s56\ns_mov_b32 s61, s57")
        code_warm(A, NEGM + 2, NEGM + 4, cfg.codesh)
        A("s_mov_b32 s56, s60\ns_mov_b32 s57, s61\nL_nopfc:")
    descriptors(A)
    ntouch = 0
    if cfg.pf:
        A(f"s_cmp_lg_u32 s{sW}, 0\ns_cbranch_scc1 L_tx")
        for i in range(1152 // nsh // 36):
            A(f"buffer_load_dword v{NEGM}, v16, {srd(SWQ)}, s56 offen\ns_add_u32 s56, s56, {18 * 8192}")
        A("s_branch L_tdone\nL_tx:")
        if cfg.pfx:
            for i in range(5):
                A(f"buffer_load_dword v{NEGM}, v17, {srd(SX)}, s57 offen offset:{256 * i}")
        A("L_tdone:")
    if cfg.tlb:
        A(f"s_cmp_lg_u32 s{sW}, 2\ns_cbranch_scc1 L_notlb")
        tlb_warm(cfg, A, NEGM, 16)
        A("L_notlb:")
    sample_flags(A)
    v_patterns(A)
    x16_patterns(A, pK, sT4K)
    wq16_patterns(A, pWq)
    A(f"v_lshlrev_b32 v{vST}, 4, v0\nv_add_u32 v{pQ}, s{sT4K}, v{vST}")
    A(f"s_mul_i32 s56, s{sPAIR}, 884736\ns_lshl_b32 s57, s{sW}, 15\ns_add_u32 s56, s56, s57\ns_lshl_b32 s57, s{sCU}, 12\ns_add_u32 s{sWSo}, s56, s57")
    A("v_lshrrev_b32 v1, 3, v0\nv_and_b32 v2, 7, v0\nv_lshrrev_b32 v16, 4, v0\nv_lshlrev_b32 v18, 8, v1\nv_mul_u32_u24 v19, 1152, v1")
    A(f"v_and_b32 v17, 1, v16\nv_lshlrev_b32 v17, 2, v17\nv_xor_b32 v17, v17, v2\nv_lshrrev_b32 v18, 5, v0\nv_lshlrev_b32 v18, 1, v18\nv_xor_b32 v17, v17, v18")
    A(f"v_lshl_add_u32 v{bWo}, v17, 4, v19")
    kv_offsets(A, bK, bV)
    A(f"s_cmp_lt_u32 s{sW}, 2\ns_cselect_b32 s{SM}, s{SK}, s{SV}\ns_cselect_b32 s{SM + 1}, s{SK + 1}, s{SV + 1}\ns_mov_b32 s{SM + 2}, 0x4000000\ns_mov_b32 s{SM + 3}, 0x20000")
    A(f"s_cselect_b32 s{sXM}, 16, 32\ns_cselect_b32 s{sXM2}, 64, 0\ns_cselect_b64 vcc, -1, 0\ns_cselect_b32 s56, 1, 15\ns_lshl_b32 s56, s56, 13")
    rotation(cfg, A)
    A(f"s_add_u32 s{sMB}, s{sROT}, s56\nv_cndmask_b32 v{bM}, v{bV}, v{bK}, vcc\ns_lshr_b32 s56, s{sW}, 1\ns_lshl_b32 s56, s56, 13\ns_add_u32 s{sR0}, s{sROT}, s56")
    A(f"s_and_b32 s56, s{sW}, 1\ns_lshl_b32 s56, s56, 12\ns_add_u32 s{sB0}, s{sKV}, s56")
    A(f"s_mul_i32 s56, s{sW}, 36864\ns_add_u32 s{sWB}, s{sWOo}, s56")
    for i in range(256):
        A(f"v_accvgpr_write_b32 a{i}, 0")
    for i in range(32):
        A(f"v_mov_b32 v{OUTV + i}, 0")
    A("s_waitcnt vmcnt(0)")
    for p in pK + pV + pWq + pWo + [pQ]:
        sc.bias[p] = 0
    qops = q_ops(addr)
    qf = {}
    kind = None
    for t in range(-1, 9):
        for n_, g in enumerate(pl.sreq[t]):
            kind = group_request(cfg, pl, qf, (16 * t - cfg.LB if t > 0 else -cfg.LA + 1 if t == 0 else -cfg.LA - 8) + 4 * n_, g, "n", kind)
    kind0 = kind
    spread(qf, conv_q(0), 134, 138)
    spread(qf, conv_q(1), 139, 143)
    emit_slots(cfg, sc, qops, qf, {}, -cfg.LA - 8, 144, dict(rd=0, step=-1, lin=[], tag="c"), [], {0: 0})
    A("\n".join(conv_q(2) + conv_q(3)))
    if cfg.trace == "head":
        A(f"s_memrealtime s[60:61]\ns_waitcnt lgkmcnt(0)\nv_writelane_b32 v{NEGM}, s60, 9\nv_writelane_b32 v{NEGM}, s101, 10")
        A(f"v_lshlrev_b32 v1, 2, v0\ns_lshl_b32 s62, s2, 10\ns_lshl_b32 s63, s{sW}, 8\ns_add_u32 s62, s62, s63\ns_add_u32 s62, s62, {STAMP_BASE}")
        A(f"buffer_store_dword v{NEGM}, v1, {srd(SWS)}, s62 offen\ns_waitcnt vmcnt(0)")
    k_patterns(A, False)
    wo_shift(A)
    for p in pWq:
        del sc.bias[p]
    for p in pK:
        sc.bias[p] = 0
    for p in pV + pWo:
        sc.rebias(p, 0)
    sc.rebias(pQ, QBUF)
    bias0 = dict(sc.bias)
    sc.nbuf = 0
    ops = item_ops(addr)
    st = dict(rd=0, step=-1, lin=[("c", g) for g in pl.pro for k in range(4)] if not cfg.noload else [], tag="c")
    emit_slots(cfg, sc, ops, {}, {}, -cfg.LA, 0, st, [], {0: 1})
    assert st["rd"] == cfg.LA and 400 % cfg.NB == 0
    bias1 = dict(sc.bias)
    head, pend0 = lgkm_pass(sc.out.ins)
    assert len(pend0) == cfg.LA
    head, nh = hazard_pass(head, verbose=cfg.dbg == "nops")
    sc.out = Prog()
    fill = {}
    split = 272
    bslot = lambda s_: 16 * s_ - cfg.LB if s_ else 0
    kind = None
    late = {}
    wrapped = False
    for s_ in range(25):
        for n_, (g, w) in enumerate(pl.req[s_]):
            sp = cfg.gsp if len(pl.req[s_]) == 1 else min(cfg.gsp, 2) if s_ else 1
            if bslot(s_) < split < bslot(s_) + 4 * sp * len(pl.req[s_]):
                sp = 1
            slot = bslot(s_) + 4 * sp * n_
            if w and not wrapped:
                wrapped = True
                if slot < split:
                    fill.setdefault(slot, []).append(f"s_add_u32 s{sB0}, s{sB0}, 0x20000\ns_cmp_eq_u32 s{sIT}, 3")
                    fill[slot].append(f"s_cselect_b32 s{SK + 2}, 0, s{SK + 2}\ns_cselect_b32 s{SM + 2}, 0, s{SM + 2}")
                else:
                    late.setdefault(slot, []).append(f"s_add_u32 s{sB0}, s{sB0}, 0x20000")
            assert g >= 16 or w == wrapped
            if w and slot >= split:
                kind = group_request(cfg, pl, late, slot, g, "n", None, sp)
            else:
                kind = group_request(cfg, pl, fill, slot, g, "n" if w else "c", None if slot >= split else kind, sp)
    cyc_kind = kind
    post = item_fill(cfg, ops, fill)
    stubs = []
    sc.out("L_item:")
    st["lin"] = [e for e in st["lin"] if e]
    emit_slots(cfg, sc, ops, fill, post, 0, split, st, stubs, {16: 2})
    sc.out(f"s_cmp_lg_u32 s{sIT}, 3\ns_cbranch_scc1 L_more")
    common, pend = lgkm_pass(sc.out.ins, pend0)
    common, n0 = hazard_pass(common, history=head[-20:], verbose=cfg.dbg == "nops")
    sa = copy.deepcopy(sc)
    sa.out = Prog()
    sa.out("L_warm_more:\ns_setpc_b64 s[40:41]\nL_more:")
    fa = {k: list(v) for k, v in fill.items()}
    for k, v in late.items():
        fa[k] = fa.get(k, []) + v
    for p, r0 in ((0, 288), (1, 381)):
        spread(fa, [(lambda s_, i=i, p=p: s_.lds("ds_read_b128", R("v", Q0 + 16 * p + 4 * i, 4), pQ, QBUF + i * 1024)) for i in range(4)], r0, r0 + 3)
    sta = copy.deepcopy(st)
    sta["rebias"] = bias0
    fa.setdefault(390, []).append(f"s_add_u32 s{sIT}, s{sIT}, 1")
    emit_slots(cfg, sa, copy.deepcopy(ops), fa, {}, split, 400, sta, stubs, {25: 1}, nextops=copy.deepcopy(ops[:cfg.LA]))
    assert cfg.noload or [e for e in sta["lin"] if e and e[0] == "n"] == [("n", g) for g in pl.pro for k in range(4)]
    assert sa.bias == bias1 and sta["rd"] == 400 + cfg.LA
    if cfg.trace is True:
        sa.out(f"s_cmp_lg_u32 s{sIT}, {cfg.trace_it + 1}\ns_cbranch_scc1 L_notr\nv_lshlrev_b32 v1, 2, v0\ns_lshl_b32 s62, s2, 10\ns_lshl_b32 s63, s{sW}, 8\ns_add_u32 s62, s62, s63\ns_add_u32 s62, s62, {STAMP_BASE}")
        sa.out(f"buffer_store_dword v2, v1, {srd(SWS)}, s62 offen\ns_waitcnt vmcnt(0)\nL_notr:")
    sa.out("s_branch L_item")
    conta, pe = lgkm_pass(sa.out.ins, pend)
    assert pe == pend0[len(pend0) - len(pe):]
    conta, n1 = hazard_pass(conta, history=common[-20:])
    sb = copy.deepcopy(sc)
    sb.out = Prog()
    sb.out("L_last:")
    fb = {k: list(v) for k, v in fill.items()}
    last_fill(cfg, fb)
    emit_slots(cfg, sb, copy.deepcopy(ops), fb, {}, split, 400, copy.deepcopy(st), stubs)
    T = sb.out
    stamp(cfg, T, 3, 0)
    stamp(cfg, T, 4, 0)
    finish_unit(cfg, T, "c", 7, OUTV, sW, sCU, True)
    contb, _ = lgkm_pass(sb.out.ins, pend)
    contb, n2 = hazard_pass(contb, history=common[-20:], verbose=cfg.dbg == "nops")
    st = Prog()
    for tag, p in stubs:
        st(f"L_stub_{tag}:\ns_call_b64 s[40:41], L_rare{p}\ns_branch L_back_{tag}")
    info = dict(nops=(nh, n0, n1, n2), est_item=est_cycles(common + conta))
    return head + common + contb + conta + st.ins + rare_routine(0) + rare_routine(1), info


def kd(name, vg, acc, sg=102):
    return (f".amdhsa_kernel {name}\n  .amdhsa_next_free_vgpr {vg}\n  .amdhsa_next_free_sgpr {sg}\n  .amdhsa_accum_offset {acc}\n"
            "  .amdhsa_group_segment_fixed_size 0\n  .amdhsa_kernarg_size 104\n  .amdhsa_user_sgpr_count 2\n"
            "  .amdhsa_user_sgpr_kernarg_segment_ptr 1\n  .amdhsa_system_sgpr_workgroup_id_x 1\n.end_amdhsa_kernel\n")


def generate(cfg):
    pl = plan_ring(cfg)
    P = Prog()
    prologue(cfg, P)
    pro, _ = hazard_pass(P.ins)
    comp, info = compute(cfg, pl)
    w3, info3 = wave3(cfg, pl)
    info.update(info3)
    s = HDR + "; @launch grid=(256,1,1) block=(256,1,1) lds=163840\n"
    s += '.amdgcn_target "amdgcn-amd-amdhsa--gfx950"\n.text\n'
    s += f".globl {KNAME}\n.p2align 8\n.type {KNAME},@function\n{KNAME}:\n"
    s += render(pro) + render(comp) + render(w3) + "L_done:\n    s_endpgm\n"
    s += '.section .rodata,"a"\n.p2align 6\n' + kd(KNAME, 512, 256)
    return s, info, pl


if __name__ == "__main__":
    import build
    name = sys.argv[1]
    kw = {}
    for a in sys.argv[2:]:
        k, v = a.split("=", 1)
        try:
            v = eval(v)
        except Exception:
            pass
        kw[k] = v
    s, info, plan = generate(Cfg(**kw))
    open(name, "w").write(s)
    print(info)
    build.build(name)
```

```python
import copy
import sys

import gen9a as G
from gen9a import *
from asmlib import Prog, parse, lgkm_pass, hazard_pass, render, est_cycles, R


class Cfg(G.Cfg):
    colors = "abcdfehgiacbfhicdegfhiegi"
    reqs = (13, 15, 17, 19, 21, 23, 24, 0, 1, 2, 3, 4, 5, 7, 9, 11) + (6, 8, 10, 13, 14, 16, 18, 20, 22)
    kvq = (30, 32, 32, 34, 36, 36, 36)
    xlead = 8
    slabs = "ifehg"
    pf_wo_step = 19
    pf_wo_q = 16
    first_x = 1
    KS = 2
    xslots = "dc"
    cnt_at = 2
    pk = True
    alt = False
    cap = 0
    flagfirst = True
    tfirst = 1
    dsp = 2
    NR = 3
    pflead = 4
    lazy = True

    def __init__(self, **kw):
        for k, v in kw.items():
            assert hasattr(Cfg, k), k
            setattr(self, k, v)


QB = 9 * 16384
NQ = 36
STASH = 224


class Plan:
    pass


def plan(cfg):
    pl = Plan()
    grp = [[("k", 0, 0), ("k", 0, 1), ("k", 1, 0), ("k", 1, 1)]]
    for u in range(1, 15):
        grp.append([("k", u + 1, 0), ("k", u + 1, 1), ("v", u - 1, 0), ("v", u - 1, 1)])
    grp.append([("v", 14, 0), ("v", 14, 1), ("v", 15, 0), ("v", 15, 1)])
    for t in range(9):
        grp.append([("wo", t, rb) for rb in range(4)])
    ns = len(grp)
    slot = lambda c: (ord(c) - 97) * 16384
    addr = {q: slot(cfg.colors[s]) + k * 4096 for s, g in enumerate(grp) for k, q in enumerate(g)}
    req = {b: [] for b in range(ns)}
    for g in range(ns):
        gap = next(d for d in range(1, ns + 1) if cfg.colors[(g - d) % ns] == cfg.colors[g])
        lead = (g - cfg.reqs[g]) % ns
        assert 1 <= lead <= gap - 1, (g, lead, gap)
        req[cfg.reqs[g]].append((g, g - lead < 0))
    for b in req:
        req[b].sort(key=lambda e: (e[0] < 16, e[1]))
    pl.pro = [g for b in range(ns) for g, w in req[b] if w]
    pl.slab = [slot(cfg.slabs[k % len(cfg.slabs)]) for k in range(NQ)]
    xs = [QB] + [slot(c) for c in cfg.xslots]
    pl.xt = [xs[(8 - t) % 3] for t in range(9)]
    KS = cfg.KS
    pl.kvq = {}
    pl.late = []
    for g in sorted(pl.pro):
        a = addr[grp[g][0]]
        busy = max([4 * t + 3 for t in range(9) if pl.xt[t] == a] + [k for k in range(NQ) if pl.slab[k] == a] + [-1])
        b = max(cfg.kvq[g] // KS, busy // KS + 1)
        pl.kvq.setdefault(b, []).append(g)
    pl.grp, pl.addr, pl.req = grp, addr, req
    return pl


def slab_patterns(A, regs):
    A("v_lshrrev_b32 v1, 4, v0\nv_bfe_u32 v2, v0, 2, 2\nv_lshl_add_u32 v16, v1, 3, v2\nv_lshlrev_b32 v16, 9, v16\nv_lshl_add_u32 v16, v2, 6, v16")
    A(f"v_and_b32 v2, 1, v1\nv_lshl_add_u32 v16, v2, 5, v16\nv_and_b32 v2, 3, v0\nv_lshl_add_u32 v{regs[0]}, v2, 3, v16")
    for j in range(1, 8):
        A(f"v_xor_b32 v{regs[j]}, {32 * j}, v{regs[0]}")


def slab_offsets(A, base):
    A(f"v_lshrrev_b32 v1, 5, v0\nv_and_b32 v2, 31, v0\nv_lshlrev_b32 v16, 2, v1\nv_xor_b32 v2, v2, v16\ns_and_b32 s56, s{sW}, 1\ns_lshl_b32 s56, s56, 1")
    A("v_xor_b32 v2, s56, v2\nv_lshlrev_b32 v2, 4, v2\nv_lshl_add_u32 v2, v1, 13, v2")
    for k in range(4):
        A(f"v_xor_b32 v17, {128 * (k & 1)}, v2\nv_add_u32 v{base + k}, {k * (16384 - 1024)}, v17")


def slab_request(cfg, ks, pl, vs, tag):
    l = [f"s_add_u32 m0, s{sT4K}, {pl.slab[ks]}", f"s_add_u32 s{sTMP}, s{sSL}, {(ks >> 1) * 32 * 8192 + (ks & 1) * 512}"]
    if not cfg.noload:
        l += [(f"buffer_load_dwordx4 v{vs + k}, {srd(SWQ)}, s{sTMP} offen offset:{k * 1024}{cfg.wf} lds", (tag, ks)) for k in range(4)]
    return l


sSL, sXW, sC2 = 90, 91, 96


vK3, vV3, vWo3, vS3 = 24, 28, 60, 32
pS3 = [6, 7, 8, 9, 10, 11, 60, 61]
vV3x = 3
A3, B3, ACC3 = 36, 40 + 0, 64


def wave3(cfg, pl):
    addr = pl.addr
    sc = Sched(cfg)
    A = sc.out
    ns = len(pl.grp)
    nsl = len(cfg.slabs)
    AF = [36, 40, 44]
    BF = [48, 52, 56, 12, 16, 20]
    vFL3 = 63
    A("L_loader:")
    A(f"s_lshl_b32 s{sT4K}, s{sW}, 12\ns_add_u32 s{sSL}, s{sWQo}, {24 * 8192}")
    slab_offsets(A, vS3)
    descriptors(A)
    rotation(cfg, A)
    lin = []

    def put(sc_, o, gen=0):
        if isinstance(o, tuple):
            sc_.out(o[0])
            lin.append((o[1], gen))
        elif callable(o):
            o(sc_)
        else:
            sc_.out(o)

    def wait_for(sc_, keys, extra=""):
        idx = [k for k, e in enumerate(lin) if e[0] in keys and e[1] == 0]
        w = f"vmcnt({min(63, len(lin) - 1 - max(idx))}) " if idx else ""
        if w or extra:
            sc_.out("s_waitcnt " + w + extra)

    def quad_ops(q):
        k = q[0]
        pre = []
        if k == "k":
            pre, off = kv_soffset(q[1], q[2])
            base, v, sr, fl = sTMP, [vK3 + g for g in range(4)], SK, cfg.kvf
        elif k == "v":
            pre, off = kv_soffset(q[1], q[2])
            base, v, sr, fl = sTMP, [vV3, vV3x] * 2, SV, cfg.kvf
        else:
            pre = [f"s_add_u32 s{sXW}, s{sWOo}, s{sTC + q[1]}"] if q[2] == 0 else []
            off, base, v, sr, fl = q[2] * 32 * 1152, sXW, [vWo3 + g for g in range(4)], SWO, cfg.wf
        l = pre + [f"s_mov_b32 m0, {addr[q]}", f"s_add_u32 s{sTMP}, s{base}, {off}"]
        if not cfg.noload:
            l += [(f"buffer_load_dwordx4 v{v[g]}, {srd(sr)}, s{sTMP} offen offset:{g * 1024}{fl} lds", q) for g in range(4)]
        return l

    if stamp(cfg, A, 15, 1):
        lin.append((None, 0))
    lin += [(None, 0)] * tlb_warm(cfg, A, 62, 61)
    for ks in range(cfg.KS if cfg.lazy else nsl):
        for o in slab_request(cfg, ks, pl, vS3, "s"):
            put(sc, o)
    A(f"v_and_b32 v1, 7, v0\nv_lshlrev_b32 v1, 2, v1\nbuffer_load_dword v{vFL3}, v1, {srd(SWS)}, s{sFLG} offen sc1")
    lin.append(("flag", 0))
    x16_patterns(A, pK)
    slab_patterns(A, pS3)
    kv_offsets(A, vK3, vV3)
    A(f"v_xor_b32 v{vV3x}, 32, v{vV3}")
    for g in range(1, 4):
        A(f"v_xor_b32 v{vK3 + g}, {KX[g]}, v{vK3}")
    nsh = {"16x8": 16, "8x16": 8, "4x32": 4}[cfg.mapping]
    vTO3, vDUM3, pQ3_ = 29, 30, 31
    A(f"s_and_b32 s56, s{sB}, {nsh - 1}\nv_mov_b32 v17, 0x7fffff00\nv_cmp_gt_u32 vcc, 36, v0\nv_lshlrev_b32 v{vTO3}, 7, v0")
    A(f"s_mul_i32 s57, s56, {(576 // nsh) * 256}\nv_add_u32 v{vTO3}, s57, v{vTO3}\nv_cndmask_b32 v{vTO3}, v17, v{vTO3}, vcc")

    def touch_wo(add):
        l = []
        if cfg.pf:
            for i in range(1152 // nsh // 36):
                l.append(f"s_add_u32 s{sTMP}, s{sWOo}, {i * 36 * 128 + add}")
                l.append((f"buffer_load_dword v{vDUM3}, v{vTO3}, {srd(SWO)}, s{sTMP} offen", None))
        return l
    for p in pK + pS3:
        sc.bias[p] = 0
    assert cfg.KS == 2
    ops = [dict(k2=k2, dt=dt, j=j) for k2 in range(NQ // 2) for dt in range(8) for j in range(3)]
    LB3 = 4
    queue = []
    st = dict(step=-1, rdA=0, rdB=0, na=0)

    def drain(sc_, n):
        while queue and n > 0:
            o, g = queue.pop(0)
            put(sc_, o, g)
            n -= isinstance(o, tuple)

    KS = cfg.KS
    for i in range(-LB3, 12 * NQ):
        nx = st["step"] + 1
        if nx < NQ // KS and i >= 12 * KS * nx - LB3:
            drain(sc, 99)
            if cfg.trace == "head2":
                A(f"s_memtime s[60:61]\ns_waitcnt lgkmcnt(0)\nv_writelane_b32 v63, s60, {nx}")
            wait_for(sc, {("s", KS * nx + KS - 1)} | ({"flag"} if nx == cfg.cnt_at else set()), "lgkmcnt(0)")
            if cfg.trace == "head2":
                A(f"s_memtime s[60:61]\ns_waitcnt lgkmcnt(0)\nv_writelane_b32 v63, s60, {32 + nx}")
            if not cfg.nobar:
                A("s_barrier")
            st["step"] = nx
            if nx == cfg.cnt_at:
                A(f"s_lshl_b32 s56, s{sPAIR}, 2\nv_mov_b32 v1, s56\nv_mov_b32 v2, 1\ns_mov_b64 exec, 1")
                put(sc, (f"buffer_atomic_add v2, v1, {srd(SDB)}, 0 offen offset:{128 if cfg.dstamp else 0} sc1", None))
                A("s_mov_b64 exec, -1")
            for ks in range(KS * (nx - 1) + nsl if nx else KS, min(NQ, KS * nx + nsl)):
                if nx or cfg.lazy:
                    queue.extend((o, 0) for o in slab_request(cfg, ks, pl, vS3, "s"))
            if nx == cfg.pf_wo_q // KS:
                queue.extend((o, 0) for o in touch_wo(0))
            for g in pl.kvq.get(nx, []):
                for q in pl.grp[g]:
                    queue.extend((o, 0) for o in quad_ops(q))
        while st["rdB"] < 3 * (NQ // 2) and st["rdB"] // 3 <= st["step"] and 24 * (st["rdB"] // 3) + st["rdB"] % 3 - 2 <= max(i, -2 + st["rdB"] if st["rdB"] < 3 else i):
            k2, j = divmod(st["rdB"], 3)
            for e in range(2):
                sc.lds("ds_read_b128", R("v", BF[2 * j + e], 4), pK[k2 & 1], pl.xt[k2 >> 1] + (2 * j + e) * 2048)
            st["rdB"] += 1
        while st["rdA"] < 12 * NQ and st["rdA"] <= i + 5 and ops[st["rdA"]]["k2"] <= st["step"]:
            o = ops[st["rdA"]]
            fb = AF[st["na"] % 3]
            st["na"] += 1
            a = pl.slab[2 * o["k2"] + 1] + 256
            sc.lds("ds_read_b64_tr_b16", R("v", fb, 2), pS3[o["dt"]], a)
            sc.lds("ds_read_b64_tr_b16", R("v", fb + 2, 2), pS3[o["dt"]], a + 2048)
            for d in range(3):
                ops[st["rdA"] + d]["areg"] = fb
            st["rdA"] += 3
        if i < 0:
            continue
        o = ops[i]
        for e in range(2):
            if e:
                left = 12 * KS * (st["step"] + 1) - LB3 - i
                nv = sum(isinstance(o_, tuple) for o_, g in queue)
                if nv > left:
                    drain(sc, -(-nv // max(left, 1)))
                elif i % cfg.dsp == 0 or nv * cfg.dsp > left:
                    drain(sc, 1)
            d = R("v", ACC3 + 4 * (6 * o["dt"] + 2 * o["j"] + e), 4)
            A(f"{MF16} {d}, {R('v', o['areg'], 4)}, {R('v', BF[2 * o['j'] + e], 4)}, {'0' if o['k2'] == 0 else d}")
    drain(sc, 99)
    if cfg.trace == "head2":
        A(f"v_lshlrev_b32 v1, 2, v0\ns_lshl_b32 s62, s2, 10\ns_add_u32 s62, s62, {STAMP_BASE + 768}")
        A(f"buffer_store_dword v63, v1, {srd(SWS)}, s62 offen\ns_waitcnt vmcnt(0)")
    A("s_waitcnt lgkmcnt(0)")
    if not cfg.nobar:
        A("s_barrier")
    for g in pl.kvq.get(NQ // KS, []):
        for q in pl.grp[g]:
            for o in quad_ops(q):
                put(sc, o)

    def conv3(b, j):
        l = []
        for e in range(2):
            r0, r1 = (ACC3 + 4 * (6 * (2 * b + x) + 2 * j + e) for x in range(2))
            l += [f"v_mul_f32 v{r + i}, s{sC}, v{r + i}" for r in (r0, r1) for i in range(4)]
            l += [f"v_cvt_pk_bf16_f32 v{r + y}, v{r + 2 * y}, v{r + 2 * y + 1}" for r in (r0, r1) for y in range(2)]
            l += ["s_nop 0", f"v_permlane16_swap_b32 v{r0}, v{r1}", f"v_permlane16_swap_b32 v{r0 + 1}, v{r1 + 1}"]
            l += [f"v_accvgpr_write_b32 a{96 + 4 * (8 * j + 2 * b + e) + k}, v{(r0, r0 + 1, r1, r1 + 1)[k]}" for k in range(4)]
        return l
    post = ["v_lshrrev_b32 v1, 3, v0\nv_and_b32 v2, 7, v0\nv_lshrrev_b32 v16, 4, v0\nv_and_b32 v16, 1, v16\nv_lshlrev_b32 v16, 2, v16",
            f"v_mov_b32 v{vFL}, v{vFL3}\nv_lshrrev_b32 v17, 5, v0\nv_lshlrev_b32 v17, 1, v17\nv_xor_b32 v16, v16, v17",
            "v_xor_b32 v16, v16, v2\nv_lshlrev_b32 v16, 4, v16\nv_mul_u32_u24 v17, 1152, v1\nv_add_u32 v16, v16, v17"]
    post += [f"v_add_u32 v{vWo3 + g}, {g * 8192}, v16" for g in range(4)]
    post += [
             f"v_lshlrev_b32 v{pQ3_}, 4, v0\nv_add_u32 v{pQ3_}, {QB}, v{pQ3_}"]
    for o in post:
        A(o)
    head, pend = lgkm_pass(sc.out.ins)
    assert not pend
    pro = [q for b in sorted(pl.kvq) for g in pl.kvq[b] for q in pl.grp[g]]

    def period(last, pro_):
        nonlocal lin
        sc2 = Sched(cfg)
        B = sc2.out
        lin = [(q, 0) for q in pro_ for g in range(4)] if not cfg.noload else []
        wrapped = False
        for s in range(ns):
            if cfg.trace is True:
                B(f"s_memtime s[60:61]\ns_waitcnt lgkmcnt(0)\nv_writelane_b32 v2, s60, {s}")
            wait_for(sc2, set(pl.grp[s]), "lgkmcnt(0)")
            if cfg.trace is True:
                B(f"s_memtime s[60:61]\ns_waitcnt lgkmcnt(0)\nv_writelane_b32 v2, s60, {32 + s}")
            if s in (0, 16) and stamp(cfg, B, {0: 1, 16: 2}[s], 1):
                lin.append((None, 0))
            if last and s == 16:
                B("v_readfirstlane_b32 s57, v17\ns_mov_b32 s58, 0\nL_chk:\ns_cmp_ge_u32 s57, 8\ns_cbranch_scc1 L_chkend")
                B(f"buffer_load_dword v17, v16, {srd(SDB)}, 0 offen offset:{128 if cfg.dstamp else 0} sc1\ns_add_u32 s58, s58, 1\ns_waitcnt vmcnt(0)\nv_readfirstlane_b32 s57, v17")
                B("s_cmp_lt_u32 s58, 0x80000\ns_cbranch_scc1 L_chk\nL_chkend:")
            if not cfg.nobar:
                B("s_barrier")
            for g, w in pl.req[s]:
                if w and not wrapped:
                    wrapped = True
                    B(f"s_add_u32 s{sKV}, s{sKV}, 0x20000")
                assert g >= 16 or w == wrapped
                if not (last and w):
                    for q in pl.grp[g]:
                        if cfg.cap and g < 16:
                            B(f"s_waitcnt vmcnt({cfg.cap - 4})")
                        for o in quad_ops(q):
                            put(sc2, o, int(w))
            if last and s == 2:
                B(f"s_lshl_b32 s56, s{sPAIR}, 2\nv_mov_b32 v16, s56")
                put(sc2, (f"buffer_load_dword v17, v16, {srd(SDB)}, 0 offen offset:{128 if cfg.dstamp else 0} sc1", None))
            if s == cfg.pf_wo_step and not last:
                for o in touch_wo(147456):
                    put(sc2, o)
            if cfg.warm and s == 9 and not last:
                B("s_call_b64 s[40:41], L_warm_more")
            if last:
                continue
            extra = []
            if s < 6:
                extra = conv3(*divmod(2 * s, 3)) + conv3(*divmod(2 * s + 1, 3))
            elif s in (QS0 + 1, QS1 + 1):
                p = int(s == QS1 + 1)
                extra = [f"ds_read_b128 {R('a', 4 * (8 * j + 4 * p + i), 4)}, v{pQ3_} offset:{(4 * j + i) * 1024}" for j in range(3) for i in range(4)]
            if extra:
                B(f"s_cmp_lg_u32 s{sIT}, 0\ns_cbranch_scc1 L_w3x{s}")
                B("\n".join(extra) + f"\ns_waitcnt lgkmcnt(0)\nL_w3x{s}:")
            if s in (16, 20):
                p = int(s == 20)
                for j in range(3):
                    for i in range(4):
                        B(f"ds_write_b128 v{pQ3_}, {R('a', 4 * (8 * j + 4 * p + i), 4)} offset:{(4 * j + i) * 1024}")
            if s == 22:
                B(f"s_cmp_lg_u32 s{sIT}, 1\ns_cbranch_scc1 L_w3mv")
                for k in range(96):
                    B(f"v_accvgpr_mov_b32 a{k}, a{96 + k}")
                B("L_w3mv:")
        tail = [e[0] for e in lin if e[1] == 1][::4]
        if not last:
            B(f"s_add_u32 s{sWOo}, s{sWOo}, 147456")
            if cfg.trace is True:
                B(f"s_cmp_lg_u32 s{sIT}, {cfg.trace_it}\ns_cbranch_scc1 L_notr3\nv_lshlrev_b32 v1, 2, v0\ns_lshl_b32 s62, s2, 10\ns_add_u32 s62, s62, {STAMP_BASE + 768}")
                B(f"buffer_store_dword v2, v1, {srd(SWS)}, s62 offen\ns_waitcnt vmcnt(0)\nL_notr3:")
            B(f"s_add_u32 s{sIT}, s{sIT}, 1\ns_cmp_lt_u32 s{sIT}, 3\ns_cbranch_scc1 L_w3loop")
        return B.ins, tail

    b1, tail = period(False, pro)
    b2, tail2 = period(False, tail)
    assert tail == tail2 and len(b1) == len(b2) and (cfg.noload or sorted(tail) == sorted(pro))
    import re
    body = []
    for x, y in zip(b1, b2):
        if x.text != y.text:
            n = min(int(re.search(r"vmcnt\((\d+)\)", z.text).group(1)) for z in (x, y))
            x = parse(re.sub(r"vmcnt\(\d+\)", f"vmcnt({n})", x.text))
        body.append(x)
    lastp, _ = period(True, tail)
    T = Prog()
    T(f"s_cmp_ge_u32 s{sCU}, 3\ns_cbranch_scc1 L_done\ns_mov_b32 s61, 8")
    finish_unit(cfg, T, "w3", 8, 192, sCU, 61, False)
    allins, nn = hazard_pass(head + [parse("L_w3loop:")] + body + lastp + T.ins, verbose=cfg.dbg == "nops3")
    return allins, dict(w3nops=nn, w3head=est_cycles(head))


QS0, QS1 = 7, 10


def compute(cfg, pl):
    addr = pl.addr
    sc = Sched(cfg)
    A = sc.out
    nsl = len(cfg.slabs)
    vS, vXo = P0, P0 + 4
    pS = pWq + [OUTV + k for k in range(4)]
    TMP = 248
    nsh = {"16x8": 16, "8x16": 8, "4x32": 4}[cfg.mapping]
    A(f"s_lshl_b32 s{sT4K}, s{sW}, 12\ns_mov_b32 s{sTHR}, {hex(f2u(cfg.thr))}")
    A(f"s_lshl_b32 s56, s{sW}, 16\ns_add_u32 s{sSL}, s{sWQo}, s56\ns_mul_i32 s56, s{sW}, 36864\ns_add_u32 s{sXW}, s{sXo}, s56")
    A(f"s_mov_b32 s{sC2}, s{sC}\ns_mov_b32 s{sC2 + 1}, s{sC}")
    slab_offsets(A, vS)
    A("v_lshrrev_b32 v1, 3, v0\nv_and_b32 v2, 7, v0\nv_lshrrev_b32 v3, 4, v0\nv_mul_u32_u24 v20, 1152, v1")
    for g in range(4):
        A(f"v_add_u32 v17, {4 * g}, v3\nv_and_b32 v17, 7, v17\nv_xor_b32 v17, v17, v2\nv_lshlrev_b32 v17, 4, v17")
        A(f"v_add_u32 v17, {g * (9216 - 1024)}, v17\nv_add_u32 v{vXo + g}, v17, v20")
    rows = 576 // nsh
    A(f"v_lshrrev_b32 v16, 3, v0\nv_lshlrev_b32 v16, 13, v16\nv_and_b32 v17, 7, v0\nv_lshl_add_u32 v16, v17, 7, v16")
    rw = rows // cfg.NR // 3
    A(f"s_and_b32 s56, s{sB}, {nsh - 1}\ns_mul_i32 s56, s56, 3\ns_add_u32 s56, s56, s{sW}\ns_mul_i32 s56, s56, {rw * 8192}\ns_add_u32 s98, s56, s{sWQo}")
    assert rw <= 8
    A(f"v_mov_b32 v17, 0x7fffff00\nv_cmp_gt_u32 vcc, {rw * 8}, v0\ns_nop 0\nv_cndmask_b32 v{P0 + 10}, v17, v16, vcc")
    if cfg.pfc:
        A(f"s_cmp_lg_u32 s{sW}, 2\ns_cbranch_scc1 L_nopfc")
        code_warm(A, NEGM + 2, NEGM + 4, cfg.codesh)
        A("L_nopfc:")
    descriptors(A)
    lin = []

    def x_request(t):
        l = [f"s_add_u32 m0, s{sT4K}, {pl.xt[t]}", f"s_add_u32 s{sTMP}, s{sXW}, {t * 128}"]
        if not cfg.noload:
            l += [(f"buffer_load_dwordx4 v{vXo + k}, {srd(SX)}, s{sTMP} offen offset:{k * 1024}{cfg.xf} lds", ("x", 4 * t)) for k in range(4)]
        return l

    def now(l):
        for o in l:
            if isinstance(o, tuple):
                A(o[0])
                lin.append(o[1])
            else:
                A(o)
    KS = cfg.KS
    rs = lambda l: [(o[0], ("c", o[1][1] // KS)) if isinstance(o, tuple) else o for o in l]
    vTA, vTB, vFA = P0 + 10, P0 + 11, P0 + 12
    tq, late_t = {}, []
    if cfg.pf:
        for r in range(cfg.NR):
            l = [f"s_add_u32 s99, s98, {r * (576 // cfg.NR) * 8192}", (f"buffer_load_dword v{NEGM}, v{vTA}, {srd(SWQ)}, s99 offen", None)]
            b = r * (NQ // KS) // cfg.NR - cfg.pflead
            if r < cfg.tfirst:
                now(l)
            elif b <= 0:
                late_t += l
            else:
                tq[b] = l
    now(rs(slab_request(cfg, 0, pl, vS, "c") + x_request(0)))
    for ks in range(1, KS):
        now(rs(slab_request(cfg, ks, pl, vS, "c")))
    rest = list(late_t)
    for ks in range(KS, nsl):
        rest += rs(slab_request(cfg, ks, pl, vS, "c"))
    if cfg.pfx:
        xr = 96 // (32 // nsh) // 3
        vTX_ = P0 + 13
        A(f"v_lshrrev_b32 v17, 2, v0\nv_mul_u32_u24 v17, 1152, v17\nv_and_b32 v{vTX_}, 3, v0\nv_lshl_add_u32 v{vTX_}, v{vTX_}, 7, v17")
        A(f"s_and_b32 s57, s{sCU}, {32 // nsh - 1}\ns_mul_i32 s57, s57, 3\ns_add_u32 s57, s57, s{sW}\ns_mul_i32 s57, s57, {xr * 1152}\ns_add_u32 s101, s57, s{sXo}")
        assert xr == 16
        tx = [(f"buffer_load_dword v{NEGM}, v{vTX_}, {srd(SX)}, s101 offen offset:{128 + 512 * i}", None) for i in range(2)]
        rest = (tx + rest) if cfg.pfx == 1 else (rest + tx)
    xreq = {}
    for t in range(1, 9):
        b = max((4 * t - cfg.xlead) // KS, (4 * (t - 3) + 3) // KS + 1 if t >= 3 else 0)
        if b <= 0:
            rest += rs(x_request(t))
        else:
            xreq[b] = t
    A(f"v_and_b32 v{vFA}, 7, v0\nv_lshlrev_b32 v{vFA}, 2, v{vFA}")
    fo = (f"buffer_load_dword v{vFL}, v{vFA}, {srd(SWS)}, s{sFLG} offen sc1", ("c", cfg.cnt_at))
    if cfg.flagfirst:
        now([fo])
    else:
        rest.append(fo)
    if not cfg.lazy:
        now(rest)
        rest = []
    v_patterns(A)
    x16_patterns(A, pK, sT4K)
    slab_patterns(A, pS)
    A(f"v_lshlrev_b32 v{vST}, 4, v0\nv_add_u32 v{pQ}, s{sT4K}, v{vST}")
    A(f"s_mul_i32 s56, s{sPAIR}, 884736\ns_lshl_b32 s57, s{sW}, 15\ns_add_u32 s56, s56, s57\ns_lshl_b32 s57, s{sCU}, 12\ns_add_u32 s{sWSo}, s56, s57")
    if not cfg.alt:
        for i in range(128, STASH):
            A(f"v_accvgpr_write_b32 a{i}, 0")
        for i in range(4, 32):
            A(f"v_mov_b32 v{OUTV + i}, 0")
    for p in pK + pV + pS + pWo + [pQ]:
        sc.bias[p] = 0
    qops, qf = [], {}
    k = -cfg.LA + 1
    for o in rest:
        qf.setdefault(min(k, 12 * KS - cfg.LB - 1), []).append(o)
        k += isinstance(o, tuple)
    for ks in range(NQ):
        k2 = ks >> 1
        xb = S0 + 8 * (k2 % 4)
        tiles = (list(range(8, 24)) + list(range(8))) if k2 < NQ // 2 - 1 else list(range(24))
        for n_, dt in enumerate(tiles[12 * (ks & 1):12 * (ks & 1) + 12]):
            a = pl.slab[2 * k2 + (dt >> 4)] + ((dt >> 3) & 1) * 256
            mm = []
            for e in range(2):
                d = R("v", O0 + 8 * dt + 4 * e, 4) if dt < 8 else R("a", 8 * (dt - 8) + 4 * e, 4)
                mm.append((d, R("v", xb + 4 * e, 4), "0" if k2 == 0 else d))
            o = dict(step=k2, a=[("tr", pS[dt & 7], a), ("tr", pS[dt & 7], a + 2048)], mm=mm)
            if n_ == 0 and not ks & 1:
                o["x"] = [(xb + 4 * e, pK[k2 & 1], pl.xt[k2 >> 1] + 2048 * e) for e in range(2)]
            qops.append(o)
        if ks % KS == 0 and ks:
            l = []
            for k2 in range(ks - KS + nsl, min(NQ, ks + nsl)):
                l += rs(slab_request(cfg, k2, pl, vS, "c"))
            if ks // KS in xreq:
                l += rs(x_request(xreq[ks // KS]))
            l += tq.get(ks // KS, [])
            k = 12 * ks - cfg.LB
            nv = sum(isinstance(o, tuple) for o in l)
            sp = min(cfg.dsp, (12 * KS - 1) / max(nv, 1))
            kk = 0
            for o in l:
                qf.setdefault(k + int(kk * sp), []).append(o)
                kk += isinstance(o, tuple)
    n = 12 * NQ
    for b in range(4):
        spread(qf, conv_q(b), n - 16 + 4 * b, n - 13 + 4 * b)
    emit_slots(cfg, sc, qops, qf, {}, -cfg.LA, n, dict(rd=0, step=-1, lin=lin, tag="c"), [], {0: 0})
    if not cfg.nobar:
        A("s_waitcnt lgkmcnt(0)\ns_barrier")
    if cfg.trace in ("head", "head2"):
        if cfg.trace == "head":
            A(f"s_memrealtime s[60:61]\ns_waitcnt lgkmcnt(0)\nv_writelane_b32 v{NEGM + 1}, s60, 36\nv_writelane_b32 v{NEGM + 1}, s101, 37")
        A(f"v_lshlrev_b32 v1, 2, v0\ns_lshl_b32 s62, s2, 10\ns_lshl_b32 s63, s{sW}, 8\ns_add_u32 s62, s62, s63\ns_add_u32 s62, s62, {STAMP_BASE}")
        A(f"buffer_store_dword v{NEGM + 1}, v1, {srd(SWS)}, s62 offen\ns_waitcnt vmcnt(0)")

    def pack(hd, ds, e):
        l = []
        for x in range(2):
            r = 64 * hd + 8 * (2 * ds + x) + 4 * e
            l += [f"v_accvgpr_read_b32 v{TMP + k}, a{r + k}" for k in range(4)]
            l += [f"v_accvgpr_write_b32 a{r + k}, 0" for k in range(4) if not cfg.alt]
            l += [f"v_pk_mul_f32 v[{TMP + k}:{TMP + k + 1}], v[{TMP + k}:{TMP + k + 1}], s[{sC2}:{sC2 + 1}]" for k in (0, 2)]
            l += [f"v_cvt_pk_bf16_f32 v{TMP + 4 + 2 * x + y}, v{TMP + 2 * y}, v{TMP + 2 * y + 1}" for y in range(2)]
        return l + ["s_nop 0", f"v_permlane16_swap_b32 v{TMP + 4}, v{TMP + 6}", f"v_permlane16_swap_b32 v{TMP + 5}, v{TMP + 7}"]
    lumps = {}
    for part in range(8):
        lumps[16 * (2 + part // 2) + 2 + 6 * (part & 1)] = pack(0, part >> 1, part & 1) + [
            f"v_accvgpr_write_b32 a{STASH + 4 * part + k}, v{TMP + 4 + k}" for k in range(4)]
    for p, s0 in ((0, QS0), (1, QS1)):
        for fr in range(4):
            lumps[16 * (s0 - 1 + fr // 2) + 2 + 6 * (fr & 1)] = pack(1, 2 * p + (fr >> 1), fr & 1) + [
                f"ds_write_b128 v{pQ}, {R('v', TMP + 4, 4)} offset:{fr * 1024}"]
    if not cfg.alt:
        for i in range(4):
            A(f"v_mov_b32 v{OUTV + i}, 0")
    k_patterns(A, False)
    wo_shift(A)
    for p in pK:
        sc.bias[p] = 0
    for p in pV + pWo:
        sc.rebias(p, 0)
    sc.rebias(pQ, QB)
    for p in pS:
        del sc.bias[p]
    bias0 = dict(sc.bias)
    sc.nbuf = 0
    ops = item_ops(addr)
    st = dict(rd=0, step=-1, lin=[], tag="c")
    emit_slots(cfg, sc, ops, {}, {}, -cfg.LA, 0, st, [], {0: 1})
    assert st["rd"] == cfg.LA and 400 % cfg.NB == 0
    bias1 = dict(sc.bias)
    head, pend0 = lgkm_pass(sc.out.ins)
    assert len(pend0) == cfg.LA
    head, nh = hazard_pass(head, verbose=cfg.dbg == "nops")
    sc.out = Prog()
    fill = {}
    split = 272
    post = item_fill(cfg, ops, fill)
    for s_, l in lumps.items():
        fill.setdefault(s_, []).append(f"s_cmp_lg_u32 s{sIT}, 0\ns_cbranch_scc1 L_lump{s_}\n" + "\n".join(l) + f"\nL_lump{s_}:")
    stubs = []
    sc.out("L_item:")
    st["lin"] = []
    st["alts"] = [] if cfg.alt else None
    emit_slots(cfg, sc, ops, fill, post, 0, split, st, stubs, {16: 2})
    sc.out(f"s_cmp_lg_u32 s{sIT}, 3\ns_cbranch_scc1 L_more")
    common, pend = lgkm_pass_skips(sc.out.ins, pend0)
    common, n0 = hazard_pass(common, history=head[-20:], verbose=cfg.dbg == "nops")
    sa = copy.deepcopy(sc)
    sa.out = Prog()
    sa.out("L_warm_more:\ns_setpc_b64 s[40:41]\nL_more:")
    fa = {}
    for p, r0, m0 in ((0, 288, 302), (1, 352, 365)):
        spread(fa, [(lambda s_, i=i, p=p: s_.lds("ds_read_b128", R("v", Q0 + 16 * p + 4 * i, 4), pQ, QB + i * 1024)) for i in range(4)], r0, r0 + 3)
        mv_ = "\n".join(f"v_accvgpr_read_b32 v{Q0 + 16 * p + i}, a{STASH + 16 * p + i}" + ("" if cfg.alt else f"\nv_accvgpr_write_b32 a{STASH + 16 * p + i}, 0") for i in range(16))
        fa.setdefault(m0, []).append(f"s_cmp_lg_u32 s{sIT}, 0\ns_cbranch_scc1 L_lumpm{p}\n{mv_}\nL_lumpm{p}:")
    sta = copy.deepcopy(st)
    sta["rebias"] = bias0
    fa.setdefault(390, []).append(f"s_add_u32 s{sIT}, s{sIT}, 1")
    emit_slots(cfg, sa, copy.deepcopy(ops), fa, {}, split, 400, sta, stubs, {25: 1}, nextops=copy.deepcopy(ops[:cfg.LA]))
    assert sa.bias == bias1 and sta["rd"] == 400 + cfg.LA
    if cfg.trace is True:
        sa.out(f"s_cmp_lg_u32 s{sIT}, {cfg.trace_it + 1}\ns_cbranch_scc1 L_notr\nv_lshlrev_b32 v1, 2, v0\ns_lshl_b32 s62, s2, 10\ns_lshl_b32 s63, s{sW}, 8\ns_add_u32 s62, s62, s63\ns_add_u32 s62, s62, {STAMP_BASE}")
        sa.out(f"buffer_store_dword v2, v1, {srd(SWS)}, s62 offen\ns_waitcnt vmcnt(0)\nL_notr:")
    sa.out("s_branch L_item")
    conta, pe = lgkm_pass_skips(sa.out.ins, pend)
    assert pe == pend0[len(pend0) - len(pe):]
    conta, n1 = hazard_pass(conta, history=common[-20:], verbose=cfg.dbg == "nops")
    sb = copy.deepcopy(sc)
    sb.out = Prog()
    fb = {}
    last_fill(cfg, fb)
    emit_slots(cfg, sb, copy.deepcopy(ops), fb, {}, split, 400, dict(copy.deepcopy(st), alts=None), stubs)
    T = sb.out
    stamp(cfg, T, 3, 0)
    stamp(cfg, T, 4, 0)
    finish_unit(cfg, T, "c", 7, OUTV, sW, sCU, True)
    contb, _ = lgkm_pass(sb.out.ins, pend)
    contb, n2 = hazard_pass(contb, history=common[-20:], verbose=cfg.dbg == "nops")
    stb = Prog()
    for tag, p in stubs:
        stb(f"L_stub_{tag}:\ns_call_b64 s[40:41], L_rare{p}\ns_branch L_back_{tag}")
    info = dict(nops=(nh, n0, n1, n2), est_head=est_cycles(head), est_item=est_cycles(common + conta))
    return head + common + contb + conta + stb.ins + rare_routine(0) + rare_routine(1), info


def lgkm_pass_skips(ins, pending):
    out, seg, pend = [], [], pending
    i = 0
    while i < len(ins):
        x = ins[i]
        if x.kind == "branch" and ("L_lump" in x.text or "L_st0" in x.text or "L_st1" in x.text):
            o, pend = lgkm_pass(seg + [x], pend)
            out += o
            lab = x.text.split()[-1] + ":"
            j = next(k for k in range(i, len(ins)) if ins[k].text == lab)
            o, _ = lgkm_pass(ins[i + 1:j + 1], pend)
            out += o
            seg = []
            i = j + 1
            continue
        seg.append(x)
        i += 1
    o, pend = lgkm_pass(seg, pend)
    return out + o, pend


def generate(cfg):
    pl = plan(cfg)
    P = Prog()
    prologue(cfg, P)
    pro, _ = hazard_pass(P.ins)
    comp, info = compute(cfg, pl)
    w3, info3 = wave3(cfg, pl)
    info.update(info3)
    s = HDR + "; @launch grid=(256,1,1) block=(256,1,1) lds=163840\n"
    s += '.amdgcn_target "amdgcn-amd-amdhsa--gfx950"\n.text\n'
    s += f".globl {KNAME}\n.p2align 8\n.type {KNAME},@function\n{KNAME}:\n"
    s += render(pro) + render(comp) + render(w3) + "L_done:\n    s_endpgm\n"
    s += '.section .rodata,"a"\n.p2align 6\n' + kd(KNAME, 512, 256)
    return s, info, pl


if __name__ == "__main__":
    import build
    name = sys.argv[1]
    kw = {}
    for a in sys.argv[2:]:
        k, v = a.split("=", 1)
        try:
            v = eval(v)
        except Exception:
            pass
        kw[k] = v
    s, info, _ = generate(Cfg(**kw))
    open(name, "w").write(s)
    print(info)
    build.build(name)
```

```python
import copy
import math
import struct
import sys

from asmlib import Prog, parse, lgkm_pass, hazard_pass, render, est_cycles, R

KNAME = "concat_heads__mha_block_cached__gqa_block_cached__near_ridge_kernel"
HDR = open("concat_heads__mha_block_cached__gqa_block_cached__near_ridge.s.ref").read().split("; Override launch")[0]


def f2u(x):
    return struct.unpack("<I", struct.pack("<f", x))[0]


class Cfg:
    mapping = "16x8"
    kvf = " nt"
    wf = ""
    xf = ""
    pstf = " sc1"
    gf = " sc1"
    of = ""
    psleep = 8
    LA = 6
    LB = 4
    NB = 8
    colors = "defabcdabcdefabc" + "abc" * 3
    dmax = 99
    dwo = 2
    reqs = None
    park = (14, 16, 18)
    kv0 = (4, 5, 6)
    WR = 6
    raq = 4
    waitgrp = 4
    wqbatch = 1
    balance = True
    front = True
    stamp = False
    pf = True
    dbl = False
    pfx = False
    thr = 1024.0
    quota = (16, 27, 23, 19, 18, 18, 20, 19, 20, 19, 12, 10, 12, 20, 21, 22, 26, 16, 19, 17, 18, 16, 15, 8, 1)
    pf_wo_step = 1
    pf_wq_step = 12
    pf_wq0_step = 1
    dbg = None
    nobar = False
    noload = False
    delay = 0
    prof = False
    trace = False
    trace_it = 2
    warm = True
    merge = False
    lateq = True
    pksum = False
    lag = 1
    krot = "bq"
    qbit = 0
    codesh = 32
    pfc = True
    split = True
    vmcost = 4
    mmcost = 2
    dstamp = False
    tlb = 0
    gsp = 1
    pubs = {}
    half = 0

    def __init__(self, **kw):
        for k, v in kw.items():
            assert hasattr(Cfg, k), k
            setattr(self, k, v)


pK = [4, 5]
pV = [8, 9, 12, 13]
pWq = [6, 7, 10, 11]
pWo = []
vDL, vM3 = 10, 11
vL, vBS = 14, 15
vT = [16, 17, 18, 19]
vM, vM2, vST, vFL = 20, 21, 22, 23
FR0, NEGM, S0, P0, Q0, O0, OUTV, FRX = 24, 48, 64, 96, 112, 144, 208, 240
vL1, vBS1, vMX = NEGM + 8, NEGM + 9, NEGM + 10
OF = S0
pQ = 3
bK, bV, bWo, bM = 248, 249, 250, 251
vD = 252
sW, sB, sH = 3, 4, 5
SK, SV, SWQ, SWO, SX, SWS = 16, 20, 24, 28, 32, 36
sKV, sXo, sWQo, sWOo, sTMP, sIT, sC, sTHR, sT4K, sWSo = 42, 43, 44, 45, 46, 47, 48, 49, 50, 51
sJ, sPAIR, sCU = 52, 53, 59
SDB, SOUT = 68, 72
sTC = 80
sFLG = 89
SWQ2 = 92
SM = 96
sMB, sB0, sWB, sXM, sXM2 = 90, 91, 66, 67, 100
sROT, sR0 = 15, 14
WRB = 24 * 4096
MF = "v_mfma_f32_32x32x16_bf16"
MF16 = "v_mfma_f32_16x16x32_bf16"
KX = (0, 16, 64, 80)
QBUF = 31 * 4096
XRES = 34 * 4096
FLAGBASE = 32 << 20
TORD = (0, 1, 2, 7, 8, 3, 4, 5, 6)


def srd(n):
    return f"s[{n}:{n + 3}]"


def w3_quads():
    return [("wq3", p, t, rb) for p in range(2) for t in TORD for rb in range(2)]


def w3_ops(cfg):
    quads = w3_quads()
    ops = []
    for p in range(2):
        pq = quads[18 * p:18 * p + 18]
        groups = [pq[0:2]] + [[q] for q in pq[2:16]] + [pq[16:18]]
        for grp in groups:
            if len(grp) == 2:
                seqv = [(q, s2, hb) for hb in range(2) for q in grp for s2 in range(2)]
            else:
                seqv = [(grp[0], s2, hb) for s2 in range(2) for hb in range(2)]
            for (q, s2, hb) in seqv:
                ks = 2 * q[2] + q[3]
                for j in range(3):
                    ops.append(dict(q=q, s2=s2, hb=hb, dt=2 * hb + s2, j=j, ks=ks, p=p, first=(q == pq[0]), last=(q == pq[17] and s2 == 1)))
    assert len(ops) == 432 == sum(cfg.quota)
    i = 0
    for s, n in enumerate(cfg.quota):
        for o in ops[i:i + n]:
            o["step"] = s
        i += n
    for i in range(0, 432, 3):
        for d in range(3):
            ops[i + d]["astep"] = ops[i]["step"]
    return ops


class Plan:
    pass


def plan_ring(cfg):
    pl = Plan()
    grp = [[("k", 0, 0), ("k", 0, 1), ("k", 1, 0), ("k", 1, 1)]]
    for u in range(1, 15):
        grp.append([("k", u + 1, 0), ("k", u + 1, 1), ("v", u - 1, 0), ("v", u - 1, 1)])
    grp.append([("v", 14, 0), ("v", 14, 1), ("v", 15, 0), ("v", 15, 1)])
    for t in range(9):
        grp.append([("wo", t, rb) for rb in range(4)])
    ns = len(grp)
    addr = {}
    for s_, g in enumerate(grp):
        for k, q in enumerate(g):
            addr[q] = (ord(cfg.colors[s_]) - 97) * 16384 + k * 4096
    start = []
    xslot = (QBUF, WRB, WRB + 12288) * 2 + (QBUF, XRES, XRES + 12288)
    for t in range(9):
        wq = [("wq", t, rb, cb) for rb in range(2) for cb in range(2)]
        for k, q in enumerate(wq):
            addr[q] = (ord(cfg.colors[16 + t]) - 97) * 16384 + k * 4096
        for rb in range(3):
            addr[("x", t, rb)] = xslot[t] + rb * 4096
        start.append(wq + [("x", t, rb) for rb in range(3)])
    for i, q in enumerate(w3_quads()):
        addr[q] = WRB + (i % cfg.WR) * 4096
    req = {b: [] for b in range(ns)}
    for g in range(ns):
        gap = next(d for d in range(1, ns + 1) if cfg.colors[(g - d) % ns] == cfg.colors[g])
        lead = min(gap - 1, cfg.dwo if g >= 16 else cfg.dmax)
        if cfg.reqs:
            lead = (g - cfg.reqs[g]) % ns
            assert lead <= gap - 1, (g, lead, gap)
        elif g < len(cfg.park):
            assert ns + g - cfg.park[g] <= lead
            lead = ns + g - cfg.park[g]
        assert lead >= 1
        req[(g - lead) % ns].append((g, g - lead < 0))
    for b in req:
        req[b].sort(key=lambda e: (e[0] < 16, e[1]))
    pl.req = req
    pl.pro = [g for b in range(ns) for g, w in req[b] if w]
    pl.sreq = {b: [] for b in range(-1, 9)}
    bb = -1
    for n_, g in enumerate(pl.pro):
        b = next(b for b in range(ns) if (g, True) in req[b])
        bb = max(bb, cfg.kv0[n_] if n_ < len(cfg.kv0) else b - 16)
        assert all(cfg.colors[16 + t] != cfg.colors[g] for t in range(max(bb, 0), 9))
        pl.sreq[bb].append(g)
    sissue = {b: [] for b in range(-1, 9)}
    lastuse = {}
    b = -1
    for t in range(9):
        for q in start[t]:
            lo = addr[q]
            b = max(b, lastuse.get(lo, -9) + 1)
            assert b < t
            sissue[b].append(q)
            lastuse[lo] = t
    pl.slast = lastuse
    pl.grp, pl.start, pl.addr, pl.sissue = grp, start, addr, sissue
    return pl


def prologue(cfg, A):
    A("s_cmp_ge_u32 s2, 256\ns_cbranch_scc1 L_done")
    if cfg.trace == "head":
        A("s_memrealtime s[60:61]\ns_waitcnt lgkmcnt(0)\ns_mov_b32 s101, s60")
    DSTAMP[0] = cfg.dstamp
    A(f"v_lshrrev_b32 v1, 6, v0\nv_and_b32 v0, 63, v0\nv_readfirstlane_b32 s{sW}, v1")
    A("s_and_b32 s6, s2, 4\ns_mul_i32 s6, s6, 10\ns_add_u32 s6, s0, s6\ns_addc_u32 s7, s1, 0")
    A("s_load_dwordx2 s[40:41], s[6:7], 0\ns_load_dwordx4 s[8:11], s[6:7], 8\ns_load_dwordx4 s[12:15], s[6:7], 24")
    A("s_load_dwordx2 s[54:55], s[0:1], 96\ns_load_dwordx4 s[76:79], s[0:1], 80")
    A(f"s_and_b32 s57, s2, 3\ns_lshr_b32 s{sJ}, s2, 3")
    if cfg.qbit:
        k = cfg.qbit
        A(f"s_lshr_b32 s56, s{sJ}, {k}\ns_and_b32 s58, s56, 1\ns_lshr_b32 s56, s56, 1\ns_lshl_b32 s56, s56, {k}\ns_and_b32 s{sJ}, s{sJ}, {(1 << k) - 1}")
        A(f"s_or_b32 s{sJ}, s{sJ}, s56\ns_lshl_b32 s{sJ}, s{sJ}, 1\ns_or_b32 s{sJ}, s{sJ}, s58")
    if cfg.mapping == "16x8":
        A(f"s_lshr_b32 s{sB}, s{sJ}, 1\ns_and_b32 s{sH}, s{sJ}, 1\ns_lshl_b32 s{sH}, s{sH}, 2\ns_lshl_b32 s57, s57, 3\ns_add_u32 s{sH}, s{sH}, s57")
    elif cfg.mapping == "8x16":
        A(f"s_and_b32 s56, s57, 1\ns_lshl_b32 s56, s56, 3\ns_lshr_b32 s{sB}, s{sJ}, 2\ns_add_u32 s{sB}, s{sB}, s56")
        A(f"s_lshr_b32 s56, s57, 1\ns_lshl_b32 s56, s56, 4\ns_and_b32 s{sH}, s{sJ}, 3\ns_lshl_b32 s{sH}, s{sH}, 2\ns_add_u32 s{sH}, s{sH}, s56")
    else:
        A(f"s_lshl_b32 s56, s57, 2\ns_lshr_b32 s{sB}, s{sJ}, 3\ns_add_u32 s{sB}, s{sB}, s56\ns_and_b32 s{sH}, s{sJ}, 7\ns_lshl_b32 s{sH}, s{sH}, 2")
    if cfg.half:
        A(f"s_and_b32 s56, s{sB}, {cfg.half}\ns_cmp_lg_u32 s56, 0\ns_cbranch_scc1 L_done")
    A(f"s_lshl_b32 s{sKV}, s{sB}, 22\ns_lshl_b32 s56, s{sH}, 17\ns_add_u32 s{sKV}, s{sKV}, s56")
    A(f"s_mul_i32 s{sXo}, s{sB}, 110592\ns_lshl_b32 s{sWQo}, s{sH}, 8\ns_mul_i32 s{sWOo}, s{sH}, 147456")
    A(f"s_and_b32 s56, s2, 4\ns_lshl_b32 s56, s56, 2\ns_add_u32 s{sPAIR}, s56, s{sB}\ns_lshr_b32 s{sCU}, s{sH}, 2")
    for tau in range(9):
        A(f"s_add_u32 s56, s{sCU}, {1 + tau}\ns_cmp_ge_u32 s56, 9\ns_cselect_b32 s57, 9, 0\ns_sub_u32 s56, s56, s57\ns_lshl_b32 s{sTC + tau}, s56, 7")
    A(f"s_mov_b32 s{sIT}, 0\ns_mov_b32 s{sC}, {hex(f2u(math.log2(math.e) / math.sqrt(128.0)))}")
    A(f"s_cmp_eq_u32 s{sW}, 3\ns_cselect_b32 s56, s{sCU}, s{sW}\ns_mul_i32 s57, s{sPAIR}, 3\ns_add_u32 s56, s56, s57\ns_lshl_b32 s56, s56, 12\ns_add_u32 s{sFLG}, s56, {FLAGBASE}")
    A(f"s_cmp_eq_u32 s{sW}, 3\ns_cbranch_scc1 L_loader")


def rotation(cfg, A):
    if cfg.krot == "b":
        A(f"s_lshl_b32 s{sROT}, s{sB}, 13")
    elif cfg.krot == "bq":
        A(f"s_lshl_b32 s{sROT}, s{sCU}, 1\ns_add_u32 s{sROT}, s{sROT}, s{sB}\ns_lshl_b32 s{sROT}, s{sROT}, 13")
    elif cfg.krot == "q":
        A(f"s_lshl_b32 s{sROT}, s{sCU}, 14")
    else:
        A(f"s_mov_b32 s{sROT}, 0")


def kv_soffset(blk, half):
    return [f"s_add_u32 s{sTMP}, s{sROT}, {blk * 8192}", f"s_and_b32 s{sTMP}, s{sTMP}, 0x1ffff", f"s_add_u32 s{sTMP}, s{sTMP}, s{sKV}"], half * 4096


def descriptors(A):
    A("s_waitcnt lgkmcnt(0)")
    for d, b, n in ((SWQ, 12, 4718592), (SX, 40, 1769472), (SWS, 54, 290848768), (SK, 8, 0x4000000), (SV, 10, 0x4000000),
                    (SWO, 14, 4718592), (SWQ2, 12, 4718592), (SOUT, 76, 3538944), (SDB, 78, 256)):
        A(f"s_mov_b32 s{d}, s{b}\ns_mov_b32 s{d + 1}, s{b + 1}\ns_mov_b32 s{d + 2}, {n}\ns_mov_b32 s{d + 3}, 0x20000")
    if DSTAMP[0]:
        A("s_memrealtime s[60:61]\ns_memtime s[62:63]\ns_waitcnt lgkmcnt(0)\ns_mov_b32 s8, s60\ns_mov_b32 s11, s62")


DSTAMP = [False]


def tlb_warm(cfg, A, dst, tmp):
    n = 0
    if not cfg.tlb:
        return n
    A(f"v_lshlrev_b32 v{tmp}, {cfg.tlb}, v0\ns_mul_i32 s58, s{sPAIR}, 884736")
    for sr, base, span, fl in ((SK, f"s{sKV}", 1 << 19, " nt"), (SV, f"s{sKV}", 1 << 19, " nt"), (SWO, f"s{sWOo}", 589824, " nt"),
                               (SWQ, f"s{sWQo}", 4718592, " nt"), (SWS, "s58", 884736, " nt")):
        lanes = min(64, -(-span >> cfg.tlb))
        A(f"s_mov_b64 exec, {hex((1 << lanes) - 1)}" if lanes <= 32 else f"s_mov_b32 exec_lo, -1\ns_mov_b32 exec_hi, {hex((1 << (lanes - 32)) - 1)}")
        A(f"buffer_load_dword v{dst}, v{tmp}, {srd(sr)}, {base} offen{fl}")
        n += 1
    A("s_mov_b64 exec, -1")
    return n


def code_warm(A, dst, tmp, nsh=32):
    A(f"s_getpc_b64 s[56:57]\nL_pc0:\nv_mov_b32 v{tmp}, (L_done-L_pc0+{128 * nsh - 1})/{128 * nsh}\ns_lshr_b32 s62, s{sJ}, {1 if nsh == 16 else 0}\nv_mul_lo_u32 v{tmp + 1}, v{tmp}, s62\nv_min_u32 v{tmp}, v{tmp}, v0")
    A(f"v_add_u32 v{tmp}, v{tmp}, v{tmp + 1}\nv_lshlrev_b32 v{tmp}, 7, v{tmp}\nv_min_u32 v{tmp}, L_done-L_pc0, v{tmp}\nv_mov_b32 v{tmp + 1}, s57")
    A(f"v_add_co_u32 v{tmp}, vcc, s56, v{tmp}\nv_addc_co_u32 v{tmp + 1}, vcc, 0, v{tmp + 1}, vcc\nglobal_load_dword v{dst}, v[{tmp}:{tmp + 1}], off")


def sample_flags(A):
    A(f"v_and_b32 v1, 7, v0\nv_lshlrev_b32 v1, 2, v1\nbuffer_load_dword v{vFL}, v1, {srd(SWS)}, s{sFLG} offen sc1")


STAMP_BASE = 64 << 20


def stamp(cfg, A, k, who):
    if not cfg.stamp:
        return 0
    A("s_memrealtime s[60:61]\ns_memtime s[64:65]\ns_waitcnt lgkmcnt(0)")
    A(f"s_lshl_b32 s62, s2, 10\ns_lshl_b32 s63, s{sIT}, 7\ns_add_u32 s62, s62, s63\ns_add_u32 s62, s62, {STAMP_BASE + who * 512 + 8 * k}")
    t = 18 if who else 0
    if who:
        A(f"v_mov_b32 v{t}, s60\nv_mov_b32 v{t + 1}, s64\nv_mov_b32 v{t + 2}, 0\nbuffer_store_dwordx2 v[{t}:{t + 1}], v{t + 2}, {srd(SWS)}, s62 offen")
    else:
        A(f"v_mov_b32 v0, s60\nv_mov_b32 v1, s64\nv_mov_b32 v2, 0\nbuffer_store_dwordx2 v[0:1], v2, {srd(SWS)}, s62 offen")
        A("s_nop 1\nv_mbcnt_lo_u32_b32 v0, -1, 0\nv_mbcnt_hi_u32_b32 v0, -1, v0")
    return 1


class Sched:
    def __init__(self, cfg):
        self.cfg = cfg
        self.bias = {}
        self.nbuf = 0
        self.out = Prog()

    def fbuf(self):
        i = self.nbuf % self.cfg.NB
        self.nbuf += 1
        return FR0 + 4 * i if i < 6 else FRX + 4 * (i - 6)

    def lds(self, op, reg, preg, a):
        b = self.bias[preg]
        if not (0 <= a - b <= 65535):
            nb = a & ~4095
            self.out(f"v_add_u32 v{preg}, {(nb - b) & 0xffffffff}, v{preg}")
            self.bias[preg] = b = nb
        if op.startswith("ds_read"):
            self.out(f"{op} {reg}, v{preg} offset:{a - b}")
        else:
            self.out(f"{op} v{preg}, {reg} offset:{a - b}")

    def rebias(self, preg, nb):
        b = self.bias[preg]
        if b != nb:
            self.out(f"v_add_u32 v{preg}, {(nb - b) & 0xffffffff}, v{preg}")
            self.bias[preg] = nb


def spread(fill, ops_list, s0, s1):
    n = s1 - s0 + 1
    cost = [2 if isinstance(o, str) and o.startswith("v_exp") else 1 for o in ops_list]
    tot = sum(cost)
    acc = 0
    for o, c in zip(ops_list, cost):
        k = min(n - 1, int((acc + c / 2) * n / tot))
        fill.setdefault(s0 + k, []).append(o)
        acc += c


def spread_bal(cfg, ops, fill, ops_list, s0, s1):
    if not cfg.balance:
        return spread(fill, ops_list, s0, s1)
    base = []
    for i in range(s0, s1 + 1):
        o = ops[min(i + cfg.LA, len(ops) - 1)]
        base.append(len(o["a"]) + (cfg.mmcost if "mm" in ops[i] else 0) + (1 if i % cfg.waitgrp == 0 else 0) + sum(cfg.vmcost if isinstance(f, tuple) else 1 for f in fill.get(i, [])))
    cost = [2 if isinstance(o, str) and o.startswith("v_exp") else 1 for o in ops_list]
    level = (sum(cost) + sum(base)) / len(base)
    k, room = 0, level - base[0]
    for o, c in zip(ops_list, cost):
        while k < len(base) - 1 and room < c / 2:
            k += 1
            room += level - base[k]
        fill.setdefault(s0 + k, []).append(o)
        room -= c


def k_patterns(A, xform, off=None):
    A("v_bfe_u32 v16, v0, 2, 2\nv_and_b32 v2, 3, v0\nv_lshlrev_b32 v2, 7, v2\nv_lshl_add_u32 v2, v16, 10, v2")
    A("v_bfe_u32 v16, v0, 2, 1\nv_and_b32 v17, 2, v0\nv_or_b32 v16, v16, v17\nv_bfe_u32 v17, v0, 3, 1\nv_lshl_or_b32 v16, v17, 2, v16")
    A("v_bfe_u32 v17, v0, 5, 1\nv_xor_b32 v16, v16, v17\nv_bfe_u32 v17, v0, 4, 1\nv_lshlrev_b32 v17, 1, v17\nv_xor_b32 v16, v16, v17")
    A(f"v_lshl_add_u32 v{pK[0]}, v16, 4, v2\nv_xor_b32 v{pK[1]}, 64, v{pK[0]}")


def v_patterns(A):
    A("v_lshrrev_b32 v1, 4, v0\nv_bfe_u32 v2, v0, 2, 2\nv_lshlrev_b32 v16, 10, v1\nv_lshl_add_u32 v16, v2, 7, v16\nv_lshrrev_b32 v2, 1, v2")
    A("v_lshl_add_u32 v16, v2, 6, v16\nv_and_b32 v2, 1, v1\nv_lshl_add_u32 v16, v2, 5, v16\nv_and_b32 v2, 3, v0")
    A(f"v_lshl_add_u32 v{pV[0]}, v2, 3, v16")
    for j in range(1, 4):
        A(f"v_xor_b32 v{pV[j]}, {32 * j}, v{pV[0]}")


def x16_patterns(A, regs, off=None):
    A("v_lshrrev_b32 v1, 4, v0\nv_and_b32 v2, 15, v0\nv_lshrrev_b32 v16, 1, v2\nv_xor_b32 v16, v16, v1\nv_lshlrev_b32 v2, 7, v2")
    if off:
        A(f"v_add_u32 v2, s{off}, v2")
    A(f"v_lshl_add_u32 v{regs[0]}, v16, 4, v2\nv_xor_b32 v{regs[1]}, 64, v{regs[0]}")


def wq16_patterns(A, regs):
    A("v_lshrrev_b32 v1, 4, v0\nv_lshrrev_b32 v2, 2, v0\nv_and_b32 v2, 3, v2\nv_lshl_add_u32 v16, v1, 3, v2\nv_lshlrev_b32 v16, 7, v16")
    A("v_lshrrev_b32 v2, 1, v2\nv_lshl_add_u32 v16, v2, 6, v16\nv_and_b32 v2, 1, v1\nv_lshl_add_u32 v16, v2, 5, v16")
    A(f"v_and_b32 v2, 3, v0\nv_lshl_add_u32 v{regs[0]}, v2, 3, v16")
    for j in range(1, 4):
        A(f"v_xor_b32 v{regs[j]}, {32 * j}, v{regs[0]}")


def wo_shift(A):
    A(f"v_lshrrev_b32 v16, 4, v0\nv_lshlrev_b32 v16, 9, v16\nv_sub_u32 v{vDL}, 0, v16")


def kv_offsets(A, dk, dv):
    A("v_lshrrev_b32 v1, 3, v0\nv_and_b32 v1, 3, v1\nv_and_b32 v2, 7, v0\nv_lshrrev_b32 v16, 5, v0\nv_lshlrev_b32 v16, 7, v16\nv_lshl_add_u32 v16, v1, 8, v16")
    A(f"v_and_b32 v1, 2, v1\nv_xor_b32 v17, v1, v2\nv_lshl_add_u32 v{dk}, v17, 4, v16")
    A(f"v_lshlrev_b32 v1, 1, v1\nv_xor_b32 v17, v1, v2\nv_lshl_add_u32 v{dv}, v17, 4, v16")


def finish_unit(cfg, A, tag, nsrc, acc, w_sreg, t_sreg, publish, G=32):
    A("v_and_b32 v10, 7, v0\nv_lshlrev_b32 v1, 2, v10\nv_lshlrev_b32 v6, 4, v0")
    A(f"buffer_load_dword v2, v1, {srd(SWS)}, s{sFLG} offen sc1")
    A(f"s_mul_i32 s56, s{sPAIR}, 884736\ns_mul_i32 s57, s{t_sreg}, 3\ns_add_u32 s57, s57, s{w_sreg}\ns_lshl_b32 s57, s57, 15\ns_add_u32 s56, s56, s57")
    A(f"s_mul_i32 s60, s{sB}, 96\ns_lshl_b32 s58, s{w_sreg}, 5\ns_add_u32 s60, s60, s58\ns_mul_i32 s60, s60, 2304\ns_lshl_b32 s58, s{t_sreg}, 7\ns_add_u32 s60, s60, s58")
    A("s_and_b32 s58, s2, 4\ns_mul_i32 s58, s58, 288\ns_add_u32 s60, s60, s58")
    A("v_and_b32 v7, 15, v0\nv_mul_u32_u24 v7, 2304, v7\nv_lshrrev_b32 v3, 5, v0\nv_lshl_add_u32 v7, v3, 4, v7\nv_bfe_u32 v3, v0, 4, 1\nv_lshl_add_u32 v7, v3, 5, v7")
    A(f"v_sub_u32 v10, s{t_sreg}, v10\nv_add_u32 v3, 9, v10\nv_cmp_gt_i32 vcc, 1, v10\nv_cndmask_b32 v10, v10, v3, vcc")
    A(f"s_mov_b32 s62, {((1 << nsrc) - 1) << 1}\ns_mov_b32 s58, 0\ns_mov_b32 s64, {nsrc}")
    if nsrc == 8:
        for k in range(32):
            A(f"v_mov_b32 v{acc + k}, 0")
    A("v_and_b32 v4, 15, v0\nv_lshrrev_b32 v5, 4, v0\nv_lshlrev_b32 v5, 2, v5\nv_sub_u32 v4, v4, v5\nv_mov_b32 v8, 0x3f80\nv_mov_b32 v9, 0x3f800000")
    for i in range(2):
        A(f"v_cmp_eq_u32 vcc, {2 * i}, v4\nv_cmp_eq_u32 s[66:67], {2 * i + 1}, v4\nv_mov_b32 v5, 0\nv_cndmask_b32 v5, v5, v8, vcc\nv_cndmask_b32 v{24 + i}, v5, v9, s[66:67]")
    A("v_mov_b32 v26, 0\nv_mov_b32 v27, 0\nv_mov_b32 v28, v24\nv_mov_b32 v29, v25")
    if publish:
        A(f"v_add_u32 v3, 8, v{vFL}\ns_lshl_b32 s66, 1, s{sCU}\ns_mov_b32 s67, 0\ns_waitcnt vmcnt(0)\ns_mov_b64 exec, s[66:67]")
        A(f"buffer_store_dword v3, v1, {srd(SWS)}, s{sFLG} offen sc1\ns_mov_b64 exec, -1\ns_branch L_chk{tag}")
    A(f"L_poll{tag}:\ns_waitcnt vmcnt(0)\nL_chk{tag}:\nv_sub_u32 v3, v2, v{vFL}\nv_cmp_ge_u32 vcc, v3, v10")
    A(f"s_and_b32 s63, vcc_lo, 0xffff\ns_lshr_b32 s63, s63, s{sCU}\ns_and_b32 s63, s63, s62\ns_cbranch_scc1 L_some{tag}")
    A(f"s_add_u32 s58, s58, 1\ns_cmp_gt_u32 s58, 0x100000\ns_cbranch_scc1 L_out{tag}\ns_sleep {cfg.psleep}")
    A(f"buffer_load_dword v2, v1, {srd(SWS)}, s{sFLG} offen sc1\ns_branch L_poll{tag}\nL_some{tag}:")
    for i in range(nsrc, 0, -1):
        A(f"s_bitcmp1_b32 s63, {i}\ns_cbranch_scc0 L_nl{tag}{i}")
        A(f"s_add_u32 s57, s{sCU}, {i}\ns_and_b32 s57, s57, 7\ns_lshl_b32 s57, s57, 12\ns_add_u32 s57, s57, s56")
        for p in range(4):
            A(f"buffer_load_dwordx4 {R('v', G + 16 * (i - 1) + 4 * p, 4)}, v6, {srd(SWS)}, s57 offen offset:{1024 * p}{cfg.gf}")
        A(f"L_nl{tag}{i}:")
    A(f"buffer_load_dword v2, v1, {srd(SWS)}, s{sFLG} offen sc1\ns_andn2_b32 s62, s62, s63\ns_waitcnt vmcnt(1)")
    for i in range(nsrc, 0, -1):
        A(f"s_cmp_lg_u32 s64, {i}\ns_cbranch_scc1 L_na{tag}{i}\ns_bitcmp1_b32 s62, {i}\ns_cbranch_scc1 L_poll{tag}")
        for u in range(2):
            for p in range(4):
                d = R("v", acc + 16 * (p >> 1) + 4 * (p & 1) + 8 * u, 4)
                A(f"{MF16} {d}, {R('v', 24 + 2 * u, 4)}, {R('v', G + 16 * (i - 1) + 4 * p, 4)}, {d}")
        A(f"s_mov_b32 s64, {i - 1}\nL_na{tag}{i}:")
    A(f"L_out{tag}:\ns_nop 15")
    for p in range(4):
        for k in range(4):
            r = acc + 16 * (p >> 1) + 4 * (p & 1) + 8 * (k >> 1) + 2 * (k & 1)
            A(f"v_cvt_pk_bf16_f32 v{8 + 4 * p + k}, v{r}, v{r + 1}")
    A(f"s_add_u32 s57, s60, {16 * 2304}")
    for p in range(4):
        A(f"v_permlane16_swap_b32 v{8 + 4 * p}, v{10 + 4 * p}\nv_permlane16_swap_b32 v{9 + 4 * p}, v{11 + 4 * p}")
        A(f"buffer_store_dwordx4 {R('v', 8 + 4 * p, 4)}, v7, {srd(SOUT)}, s{57 if p & 1 else 60} offen offset:{64 * (p >> 1)}{cfg.of}")
    if cfg.stamp and publish:
        A("s_waitcnt vmcnt(0)")
        stamp(cfg, A, 5, 0)
    if cfg.dstamp and publish:
        A(f"s_waitcnt vmcnt(0)\ns_and_b32 s56, s2, 0xf3\ns_or_b32 s56, s56, s{sW}\ns_cmp_lg_u32 s56, 0\ns_cbranch_scc1 L_nods{tag}")
        A("s_memrealtime s[60:61]\ns_memtime s[62:63]\ns_waitcnt lgkmcnt(0)\ns_sub_u32 s9, s9, s8\ns_sub_u32 s10, s10, s8\ns_sub_u32 s60, s60, s8\ns_sub_u32 s62, s62, s11")
        A(f"v_mov_b32 v4, s9\nv_mov_b32 v5, s10\nv_mov_b32 v6, s60\nv_mov_b32 v7, s62\ns_lshl_b32 s56, s2, 2\nv_mov_b32 v8, s56\ns_mov_b64 exec, 1")
        A(f"buffer_store_dwordx4 v[4:7], v8, {srd(SDB)}, 0 offen\nL_nods{tag}:")
    A("s_endpgm")


def last_fill(cfg, fb):
    if cfg.merge:
        assert not cfg.pubs
        for t in range(8):
            lo, hi = 290 + (110 * t) // 8, 289 + (110 * (t + 1)) // 8
            assert lo >= 274 + 16 * t
            spread(fb, store_block(cfg, 2 * t, Q0, P0) + store_block(cfg, 2 * t + 1, Q0 + 16, P0 + 8), lo, hi)
        return
    for t in range(1, 9):
        s0 = 256 + 16 * t
        if t in cfg.pubs:
            fb.setdefault(s0 + 2, []).append({"pub": cfg.pubs[t]})
        spread(fb, store_block(cfg, 2 * t - 2, Q0, P0) + store_block(cfg, 2 * t - 1, Q0 + 16, P0 + 8), s0 + 3, s0 + 15)
    fb.setdefault(274, []).append(f"v_and_b32 v1, 7, v0\nv_lshlrev_b32 v1, 2, v1\ns_lshl_b32 s64, 1, s{sCU}\ns_mov_b32 s65, 0")


vK, vV, vWq, vWo, vX = 24, 28, 32, 36, 176
W3A = 40
W3B = 52
W3T = W3B
W3X = 76
W3ACC = 160
vTQ, vTO, vTX, vDUM = 12, 13, 14, 15
pQ3 = 22
pX3, pW3 = [4, 5], [6, 7, 8, 9]


def xreg(ks, j):
    i = ks * 6 + j
    return R("a", 4 * i, 4) if i < 64 else R("v", W3X + 4 * (i - 64), 4)


def wave3(cfg, pl):
    addr = pl.addr
    sc = Sched(cfg)
    A = sc.out
    A("L_loader:")
    if cfg.prof:
        A("s_mov_b32 s96, 0\ns_mov_b32 s97, 0\ns_mov_b32 s98, 0\ns_mov_b32 s99, 0")
    x16_patterns(A, pX3)
    wq16_patterns(A, pW3)
    A(f"v_lshlrev_b32 v{pQ3}, 4, v0")
    for p in pX3 + pW3 + [pQ3]:
        sc.bias[p] = 0
    A("v_lshrrev_b32 v1, 3, v0\nv_and_b32 v2, 7, v0\nv_lshrrev_b32 v3, 4, v0")
    A("v_and_b32 v16, 1, v3\nv_lshlrev_b32 v16, 2, v16\nv_xor_b32 v16, v16, v2\nv_lshlrev_b32 v16, 4, v16")
    A("v_lshlrev_b32 v18, 8, v1\nv_lshlrev_b32 v19, 13, v1\nv_mul_u32_u24 v20, 1152, v1")
    for g in range(4):
        A(f"v_add_u32 v17, {4 * g}, v3\nv_and_b32 v17, 7, v17\nv_xor_b32 v17, v17, v2\nv_lshlrev_b32 v17, 4, v17")
        A(f"v_add_u32 v17, {g * (9216 - 1024)}, v17\nv_add_u32 v{vX + g}, v17, v20")
        A(f"v_xor_b32 v17, {32 * (g & 1)}, v16\nv_add_u32 v17, {g * (65536 - 1024)}, v17\nv_add_u32 v{vWq + g}, v17, v19")
        A(f"v_lshrrev_b32 v21, 5, v0\nv_lshlrev_b32 v21, 5, v21\nv_xor_b32 v21, v21, v16\nv_add_u32 v17, {g * (9216 - 1024)}, v21\nv_add_u32 v{vWo + g}, v17, v20")
    kv_offsets(A, vK, vV)
    for g in range(1, 4):
        A(f"v_xor_b32 v{vK + g}, {KX[g]}, v{vK}\nv_xor_b32 v{vV + g}, {32 * (g & 1)}, v{vV}")
    nsh = {"16x8": 16, "8x16": 8, "4x32": 4}[cfg.mapping]
    xsh = 32 // nsh
    rows = 576 // nsh
    A(f"s_and_b32 s56, s{sB}, {nsh - 1}\nv_mov_b32 v21, 0x7fffff00\nv_cmp_gt_u32 vcc, 36, v0")
    A(f"v_lshrrev_b32 v{vTQ}, 1, v0\nv_lshlrev_b32 v{vTQ}, 13, v{vTQ}\nv_and_b32 v17, 1, v0\nv_lshlrev_b32 v17, 7, v17\nv_add_u32 v{vTQ}, v{vTQ}, v17")
    A(f"s_mul_i32 s57, s56, {rows * 8192}\nv_add_u32 v{vTQ}, s57, v{vTQ}\nv_cndmask_b32 v{vTQ}, v21, v{vTQ}, vcc")
    A(f"v_lshlrev_b32 v{vTO}, 7, v0\ns_mul_i32 s57, s56, {rows * 256}\nv_add_u32 v{vTO}, s57, v{vTO}\nv_cndmask_b32 v{vTO}, v21, v{vTO}, vcc")
    A(f"v_cmp_gt_u32 vcc, 54, v0\nv_lshlrev_b32 v{vTX}, 7, v0\ns_and_b32 s57, s{sCU}, {xsh - 1}\ns_mul_i32 s57, s57, {110592 // xsh}\nv_add_u32 v{vTX}, s57, v{vTX}")
    A(f"v_cndmask_b32 v{vTX}, v21, v{vTX}, vcc")

    def touch_ops(vreg, srd_, base, add, step, nl=rows * 2, per=36):
        l = []
        if not cfg.pf:
            return l
        for i in range(nl // per):
            l.append(f"s_add_u32 s{sTMP}, s{base}, {i * per * step + add}")
            for fl in ((" nt", "") if cfg.dbl else ("",)):
                l.append(("vm", f"buffer_load_dword v{vDUM}, v{vreg}, {srd(srd_)}, s{sTMP} offen{fl}"))
        return l

    def quad_ops(q, w=False):
        k = q[0]
        pre = []
        if k == "k":
            pre, off = kv_soffset(q[1], q[2])
            base, v, sr, fl = sTMP, vK, SK, cfg.kvf
        elif k == "v":
            pre, off = kv_soffset(q[1], q[2])
            base, v, sr, fl = sTMP, vV, SV, cfg.kvf
        elif k == "wq":
            off, base, v, sr, fl = (q[1] * 64 + q[2] * 32) * 8192 + q[3] * 128, sWQo, vWq, SWQ, cfg.wf
        elif k == "wq3":
            off, base, v, sr, fl = (q[2] * 64 + q[3] * 32) * 8192 + q[1] * 128 + 256, sWQo, vWq, (SWQ2 if w else SWQ), cfg.wf
        elif k == "x":
            off, base, v, sr, fl = q[2] * 32 * 1152 + q[1] * 128, sXo, vX, SX, cfg.xf
        else:
            pre = [f"s_add_u32 s{sTMP}, s{sWOo}, s{sTC + q[1]}"]
            off, base, v, sr, fl = q[2] * 32 * 1152, sTMP, vWo, SWO, cfg.wf
        l = pre + [f"s_mov_b32 m0, {addr[q]}", f"s_add_u32 s{sTMP}, s{base}, {off}"]
        for g in range(4):
            if not cfg.noload:
                l.append(("vm", f"buffer_load_dwordx4 v{v + g}, {srd(sr)}, s{sTMP} offen offset:{g * 1024}{fl} lds", q, g))
        return l

    lin = []

    def put(sc_, o, gen=0):
        if isinstance(o, tuple):
            sc_.out(o[1])
            lin.append((o[2] if len(o) > 2 else None, gen))
        elif callable(o):
            o(sc_)
        else:
            sc_.out(o)

    def wait_for(sc_, quads, gen):
        if cfg.noload:
            return
        last = max(k for k, e in enumerate(lin) if e[0] in quads and e[1] == gen)
        sc_.out(f"s_waitcnt vmcnt({min(63, len(lin) - 1 - last)})")

    def bar(sc_):
        if not cfg.nobar:
            sc_.out("s_barrier")

    descriptors(A)
    rotation(cfg, A)
    if stamp(cfg, A, 15, 1):
        lin.append((None, 0))
    if cfg.delay:
        A(f"s_and_b32 s56, s{sB}, 1\ns_cmp_eq_u32 s56, 0\ns_cbranch_scc1 L_nodelay")
        for _ in range(cfg.delay):
            A("s_sleep 32")
        A("L_nodelay:")
    for n_, q in enumerate(pl.sissue[-1]):
        for o in quad_ops(q):
            put(sc, o)
        if n_ == 6:
            sample_flags(A)
            lin.append((("flag",), 0))
    bias0 = {p: XRES for p in pX3}
    bias0.update({p: WRB for p in pW3})
    bias0[pQ3] = QBUF
    ops = w3_ops(cfg)
    quads = w3_quads()
    ns = len(pl.grp)

    def conv_tile(p, hb, j):
        l = []
        for e in range(2):
            pk = W3T + 4 + 4 * e
            for x in range(2):
                acc = W3ACC + 4 * (6 * (2 * hb + x) + 2 * j + e)
                for y in range(2):
                    t0 = W3T + 2 * y
                    l += [f"v_mul_f32 v{t0}, s{sC}, v{acc + 2 * y}", f"v_mul_f32 v{t0 + 1}, s{sC}, v{acc + 2 * y + 1}"]
                l += [f"v_cvt_pk_bf16_f32 v{pk + 2 * x + y}, v{W3T + 2 * y}, v{W3T + 2 * y + 1}" for y in range(2)]
            l += ["s_nop 0", f"v_permlane16_swap_b32 v{pk}, v{pk + 2}", f"v_permlane16_swap_b32 v{pk + 1}, v{pk + 3}"]
            l.append(lambda sc_, pk=pk, a=QBUF + (j * 4 + 2 * hb + e) * 1024: sc_.lds("ds_write_b128", R("v", pk, 4), pQ3, a))
        return l

    def period(last, pro):
        nonlocal lin
        sc2 = Sched(cfg)
        sc2.bias = dict(bias0)
        B = sc2.out
        lin = [(q, 0) for q in pro for g in range(4)] if not cfg.noload else []
        myops = [] if last else copy.deepcopy(ops)
        n = len(myops)
        fill = {}
        bpos = {s: (sum(cfg.quota[:s]) if not last else 0) for s in range(ns + 1)}
        enq = {}
        if not last:
            lastidx = {(o["p"], o["hb"], o["j"]): i for i, o in enumerate(ops) if o["last"]}
            for p, hb in ((0, 0), (1, 0), (0, 1)):
                i0 = lastidx[(p, hb, 2)]
                spread(fill, sum((conv_tile(p, hb, j) for j in range(3)), []), i0 + 4, i0 + 12)
            assert lastidx[(0, 1, 2)] + 16 <= bpos[18] and lastidx[(1, 0, 2)] + 4 >= bpos[19]
            firstop = {q: min(i for i, o in enumerate(ops) if o["q"] == q) for q in quads}
            lastop = {q: max(i for i, o in enumerate(ops) if o["q"] == q) - 2 for q in quads}
            seg = lambda i: max(s for s in range(ns) if bpos[s] <= i)
            at = 0
            for k in range(36, 72):
                prev = max(j for j in range(k) if addr[quads[j % 36]] == addr[quads[k % 36]])
                free = lastop[quads[prev % 36]] + 1 + (prev // 36 - 1) * n
                sneed = seg(firstop[quads[k % 36]]) - cfg.raq
                early = bpos[sneed] if sneed >= 0 else bpos[sneed + ns] - n
                at = max(free, early) if k == 36 else max(at, free, early)
                assert at <= firstop[quads[k % 36]] - 5
                enq.setdefault(at % n if at < 0 else at, []).append((quads[k % 36], at < 0))
        st = dict(wrapq=False, wrapg=False, rdA=0, rdB=0, abuf=0, bbuf=0, step=-1)
        queue = []

        def drain(nvm):
            while queue and nvm > 0:
                o, g = queue.pop(0)
                put(sc2, o, g)
                nvm -= isinstance(o, tuple)

        def open_step(s):
            if cfg.trace is True:
                B(f"s_memtime s[60:61]\ns_waitcnt lgkmcnt(0)\nv_writelane_b32 v2, s60, {s}")
            wait_for(sc2, {pl.grp[s][3]}, 0)
            if cfg.trace is True:
                B(f"s_memtime s[60:61]\ns_waitcnt lgkmcnt(0)\nv_writelane_b32 v2, s60, {32 + s}")
            if s in (0, 16):
                if stamp(cfg, B, {0: 1, 16: 2}[s], 1):
                    lin.append((None, 0))
            if last and s == 16:
                B("v_readfirstlane_b32 s57, v17\ns_mov_b32 s58, 0\nL_chk:\ns_cmp_ge_u32 s57, 8\ns_cbranch_scc1 L_chkend")
                B(f"buffer_load_dword v17, v16, {srd(SDB)}, 0 offen offset:{128 if cfg.dstamp else 0} sc1\ns_add_u32 s58, s58, 1\ns_waitcnt vmcnt(0)\nv_readfirstlane_b32 s57, v17")
                B("s_cmp_lt_u32 s58, 0x80000\ns_cbranch_scc1 L_chk\nL_chkend:")
            bar(sc2)
            for g, w in pl.req[s]:
                if w and not st["wrapg"]:
                    st["wrapg"] = True
                    queue.append((f"s_add_u32 s{sKV}, s{sKV}, 0x20000", 0))
                assert g >= 16 or w == st["wrapg"]
                if not (last and w):
                    queue.extend((o, int(w)) for o in quad_ops(pl.grp[g][3]))
            if last and s == 2:
                queue.extend([(f"s_lshl_b32 s56, s{sPAIR}, 2", 0), ("v_mov_b32 v16, s56", 0), (("vm", f"buffer_load_dword v17, v16, {srd(SDB)}, 0 offen offset:{128 if cfg.dstamp else 0} sc1"), 0)])
            if s == cfg.pf_wo_step:
                queue.extend((o, 0) for o in touch_ops(vTO, SWO, sWOo, 0, 128))
            if s == cfg.pf_wq_step and not last:
                queue.append((f"s_cmp_eq_u32 s{sIT}, 2\ns_cselect_b32 s{SWQ2 + 2}, 0, s{SWQ2 + 2}", 0))
                queue.extend((o, 0) for o in touch_ops(vTQ, SWQ2, sWQo, 512, 4096))
            if cfg.warm and s == 9 and not last:
                queue.append(("s_call_b64 s[40:41], L_warm_more", 0))
            if bpos[s + 1] == bpos[s]:
                drain(99)
            st["step"] = s

        for i in range(n):
            while st["step"] + 1 < ns and bpos[st["step"] + 1] <= i:
                open_step(st["step"] + 1)
            for q, w in enq.get(i, []):
                if w and not st["wrapq"]:
                    st["wrapq"] = True
                    queue.append((f"s_add_u32 s{sWQo}, s{sWQo}, 256", 0))
                assert w == st["wrapq"]
                queue.extend((o, int(w)) for o in quad_ops(q, w))
            while st["rdA"] < n and st["rdA"] <= i + 5:
                o = myops[st["rdA"]]
                if st["rdA"] == firstop[o["q"]] and not cfg.noload:
                    while lin.count((o["q"], 0)) < 4:
                        drain(1)
                    wait_for(sc2, {o["q"]}, 0)
                fb = W3A + 4 * (st["abuf"] % 3)
                st["abuf"] += 1
                sc2.lds("ds_read_b64_tr_b16", R("v", fb, 2), pW3[o["dt"]], addr[o["q"]])
                sc2.lds("ds_read_b64_tr_b16", R("v", fb + 2, 2), pW3[o["dt"]], addr[o["q"]] + 4 * 128)
                for d in range(3):
                    myops[st["rdA"] + d]["areg"] = fb
                st["rdA"] += 3
            while st["rdB"] < n and st["rdB"] <= i + 2:
                o = myops[st["rdB"]]
                if o["ks"] >= 14 and st["rdB"] - o["j"] == firstop[o["q"]]:
                    for e in range(2):
                        qt = 2 * o["j"] + e
                        sc2.lds("ds_read_b128", R("v", W3B + 4 * qt, 4), pX3[o["ks"] & 1], XRES + ((o["ks"] >> 1) - 7) * 12288 + qt * 2048)
                st["rdB"] += 1
            o = myops[i]
            fl = fill.get(i, [])
            for e in range(2):
                if e:
                    drain(1)
                for f in (fl[len(fl) // 2:] if e else fl[:len(fl) // 2]):
                    put(sc2, f)
                qt = 2 * o["j"] + e
                d = R("v", W3ACC + 4 * (6 * o["dt"] + qt), 4)
                b = xreg(o["ks"], qt) if o["ks"] < 14 else R("v", W3B + 4 * qt, 4)
                B(f"{MF16} {d}, {R('v', o['areg'], 4)}, {b}, {'0' if o['first'] else d}")
        drain(99)
        if not last:
            for o in sum((conv_tile(1, 1, j) for j in range(3)), []):
                put(sc2, o)
            B("s_waitcnt lgkmcnt(0)")
            assert cfg.lateq or st["step"] + 1 < ns
        while st["step"] + 1 < ns:
            open_step(st["step"] + 1)
        tailq = [e[0] for e in lin if e[1] == 1][::4]
        if not last:
            B(f"s_add_u32 s{sWOo}, s{sWOo}, 147456")
            for p, b in bias0.items():
                sc2.rebias(p, b)
            if cfg.trace is True:
                B(f"s_cmp_lg_u32 s{sIT}, {cfg.trace_it}\ns_cbranch_scc1 L_notr3\nv_lshlrev_b32 v1, 2, v0\ns_lshl_b32 s62, s2, 10\ns_add_u32 s62, s62, {STAMP_BASE + 768}")
                B(f"buffer_store_dword v2, v1, {srd(SWS)}, s62 offen\ns_waitcnt vmcnt(0)\nL_notr3:")
            B(f"s_add_u32 s{sIT}, s{sIT}, 1\ns_cmp_lt_u32 s{sIT}, 3\ns_cbranch_scc1 L_w3loop")
        body, pe = lgkm_pass(B.ins)
        assert not pe
        return body, tailq

    lin0 = list(lin)
    _, pro = period(False, [pl.grp[g][3] for g in pl.pro] + quads[:cfg.WR])
    loopbody, pro2 = period(False, pro)
    assert pro2 == pro
    lastp, _ = period(True, pro)
    lin = lin0
    if cfg.noload:
        pro = []
    todo = list(pro)
    for t in range(9):
        wait_for(sc, set(pl.start[t]) | ({("flag",)} if t == 0 else set()), 0)
        A("s_waitcnt lgkmcnt(0)")
        bar(sc)
        if t == 0:
            A(f"s_lshl_b32 s56, s{sPAIR}, 2\nv_mov_b32 v16, s56\nv_mov_b32 v17, 1\ns_mov_b64 exec, 1")
            put(sc, ("vm", f"buffer_atomic_add v17, v16, {srd(SDB)}, 0 offen offset:{128 if cfg.dstamp else 0} sc1"))
            A("s_mov_b64 exec, -1")
        if t < 7:
            for s in range(2):
                for j in range(6):
                    sc.lds("ds_read_b128", xreg(2 * t + s, j), pX3[s], addr[("x", t, 0)] + j * 2048)
        if t == cfg.pf_wq0_step:
            for o in touch_ops(vTQ, SWQ, sWQo, 256, 4096):
                put(sc, o)
        for q in pl.sissue[t]:
            for o in quad_ops(q):
                put(sc, o)
        while todo:
            q = todo[0]
            if q[0] == "wq3":
                if pl.slast.get(addr[q], -9) >= t:
                    break
                if any(pl.sissue[b] for b in range(t + 1, 9)):
                    break
            elif not any(pl.grp[g][3] == q for b in range(-1, t + 1) for g in pl.sreq[b]):
                break
            for o in quad_ops(todo.pop(0)):
                put(sc, o)
    assert not todo
    for p, b in bias0.items():
        sc.rebias(p, b)
    A("s_waitcnt lgkmcnt(0)")
    head, pend = lgkm_pass(sc.out.ins)
    loop = [parse("L_w3loop:")] + loopbody
    T = Prog()
    if cfg.prof:
        T(f"v_mov_b32 v16, s96\nv_mov_b32 v17, s97\nv_mov_b32 v18, s98\nv_mov_b32 v19, s99\nv_mov_b32 v20, 0\ns_lshl_b32 s62, s2, 10\ns_add_u32 s62, s62, {STAMP_BASE + 512 + 64}")
        T(f"buffer_store_dwordx4 v[16:19], v20, {srd(SWS)}, s62 offen")
    T(f"s_cmp_ge_u32 s{sCU}, 3\ns_cbranch_scc1 L_done")
    T("s_mov_b32 s61, 8")
    finish_unit(cfg, T, "w3", 8, 192, sCU, 61, False)
    allins, nn = hazard_pass(head + loop + lastp + T.ins, verbose=cfg.dbg == "nops3")
    return allins, dict(w3nops=nn, w3est=est_cycles(loop))


def acc_out(nb):
    return R("a", 16 * nb, 16) if nb < 16 else R("v", OUTV + 16 * (nb - 16), 16)


def q_ops(addr):
    ops = []
    for t in range(9):
        order = [(rb, dt) for rb in range(2) for dt in range(8)] if t < 8 else [(rb, 2 * b + x) for b in range(4) for rb in range(2) for x in range(2)]
        seen = set()
        for (rb, dt) in order:
            qa = addr[("wq", t, rb, dt >> 2)]
            xb = S0 + 8 * ((t * 2 + rb) % 4)
            mm = []
            for e in range(2):
                d = R("v", O0 + 8 * dt + 4 * e, 4)
                mm.append((d, R("v", xb + 4 * e, 4), "0" if (t == 0 and rb == 0) else d))
            o = dict(step=t, a=[("tr", pWq[dt & 3], qa), ("tr", pWq[dt & 3], qa + 512)], mm=mm)
            if rb not in seen:
                seen.add(rb)
                o["x"] = [(xb + 4 * e, pK[rb], addr[("x", t, 0)] + 2048 * e) for e in range(2)]
            ops.append(o)
    return ops


def item_ops(addr, merge=False):
    ops = []

    def qk(u, step):
        base = S0 + 16 * (u & 1) if u else O0
        for kt in range(2):
            for ds in range(4):
                mm = []
                for e in range(2):
                    d = R("v", base + 8 * e + 4 * kt, 4)
                    mm.append((d, R("v", Q0 + 8 * ds + 4 * e, 4), d if ds else ("0" if u < 2 else R("v", NEGM + 4 * e, 4))))
                ops.append(dict(step=step, a=[("b128", pK[ds & 1], addr[("k", u, kt)] + (ds >> 1) * 512)], mm=mm))

    def pv(u, step, bmajor=False):
        for dt in range(8):
            va = addr[("v", u, 0)] + (dt >> 2) * 512
            mm = []
            for e in range(2):
                d = R("v", O0 + 8 * dt + 4 * e, 4)
                mm.append((d, R("v", P0 + 8 * (u & 1) + 4 * e, 4), "0" if u == 0 else d))
            ops.append(dict(step=step, a=[("tr", pV[dt & 3], va), ("tr", pV[dt & 3], va + 4096)], mm=mm))
    qk(0, 0)
    qk(1, 0)
    for u in range(1, 15):
        qk(u + 1, u)
        pv(u - 1, u)
    pv(14, 15)
    pv(15, 15, True)
    order = [(t, b) for t in range(9) for b in range(4)]
    if merge:
        order[:8] = [(t, b) for b in range(4) for t in range(2)]
    for n_, (t, b) in enumerate(order):
        for nt in range(4):
            wa = addr[("wo", t, b)]
            mm = []
            for e in range(2):
                r = 32 * t + 8 * nt + 4 * e
                d = R("a", r, 4) if t < 8 else R("v", OUTV + r - 256, 4)
                mm.append((d, R("v", OF + 8 * b + 4 * e, 4), d))
            ops.append(dict(step=16 + n_ // 4, a=[("tr", pV[nt], wa), ("tr", pV[nt], wa + 2048)], mm=mm, alt=(b == 0)))
    ops[256]["pre"] = [f"v_add_u32 v{p}, v{p}, v{vDL}" for p in pV]
    assert len(ops) == 400
    return ops


PKS = [False]
LAG = [2]
B2, L2 = (NEGM + 8, NEGM + 10), (NEGM + 12, NEGM + 14)


def pk(op, d, a, b):
    return f"{op} v[{d}:{d + 1}], v[{a}:{a + 1}], v[{b}:{b + 1}]"


def sum_into_l(first=False):
    if PKS[0]:
        return [f"v_mov_b32 v{L2[e] + y}, v{B2[e] + y}" for e in range(2) for y in range(2)] if first else [pk("v_pk_add_f32", L2[e], L2[e], B2[e]) for e in range(2)]
    return [f"v_mov_b32 v{vL}, v{vBS}", f"v_mov_b32 v{vL1}, v{vBS1}"] if first else [f"v_add_f32 v{vL}, v{vL}, v{vBS}", f"v_add_f32 v{vL1}, v{vL1}, v{vBS1}"]


def softmax_ops(u, first=False):
    S, P = S0 + 16 * (u & 1), P0 + 8 * (u & 1)
    if first:
        S = O0
    l = []
    if PKS[0]:
        for k in range(9):
            a, pa = vT[2 * (k & 1)], vT[2 * ((k - 1) & 1)]
            acc = B2[(k - 1) >> 2]
            if k and (k - 1) & 3 == 1:
                l.append(pk("v_pk_add_f32", acc, a, pa))
            if k < 8:
                l.append(f"v_exp_f32 v{a}, v{S + 2 * k}")
            if k:
                l.append(f"v_cvt_pk_bf16_f32 v{P + k - 1}, v{pa}, v{pa + 1}")
            if k < 8:
                l.append(f"v_exp_f32 v{a + 1}, v{S + 2 * k + 1}")
            if k and (k - 1) & 3 > 1:
                l.append(pk("v_pk_add_f32", acc, acc, pa))
        return l
    if LAG[0] == 2:
        T = ((vT[0], vT[1]), (vT[2], vT[3]), (6, 7))
        for k in range(10):
            a, b = T[k % 3]
            pa, pb = T[(k - 2) % 3]
            bs = vBS if k - 2 < 4 else vBS1
            if k < 8:
                l.append(f"v_exp_f32 v{a}, v{S + 2 * k}")
            if k in (2, 6):
                l.append(f"v_add_f32 v{bs}, v{pa}, v{pb}")
            elif k > 2:
                l.append(f"v_add_f32 v{bs}, v{bs}, v{pa}")
            if k >= 2:
                l.append(f"v_cvt_pk_bf16_f32 v{P + k - 2}, v{pa}, v{pb}")
            if k < 8:
                l.append(f"v_exp_f32 v{b}, v{S + 2 * k + 1}")
            if k > 2 and k != 6:
                l.append(f"v_add_f32 v{bs}, v{bs}, v{pb}")
        return l
    for k in range(9):
        a, b = vT[2 * (k & 1)], vT[2 * (k & 1) + 1]
        pa, pb = vT[2 * ((k - 1) & 1)], vT[2 * ((k - 1) & 1) + 1]
        bs = vBS if k - 1 < 4 else vBS1
        if k < 8:
            l.append(f"v_exp_f32 v{a}, v{S + 2 * k}")
        if k in (1, 5):
            l.append(f"v_add_f32 v{bs}, v{pa}, v{pb}")
        elif k:
            l.append(f"v_add_f32 v{bs}, v{bs}, v{pa}")
        if k < 8:
            l.append(f"v_exp_f32 v{b}, v{S + 2 * k + 1}")
        if k:
            l.append(f"v_cvt_pk_bf16_f32 v{P + k - 1}, v{pa}, v{pb}")
        if k and k not in (1, 5):
            l.append(f"v_add_f32 v{bs}, v{bs}, v{pb}")
    return l


def across(op, x, y, t, mid=()):
    return [f"v_permlane16_swap_b32 v{x}, v{y}", f"{op} v{x}, v{x}, v{y}", f"v_mov_b32 v{t}, v{x}", f"v_permlane32_swap_b32 v{x}, v{t}",
            f"{op} v{x}, v{x}, v{t}"] + list(mid) + [f"v_mov_b32 v{y}, v{x}", f"v_permlane16_swap_b32 v{x}, v{y}"]


def conv_o(b):
    l = []
    for e, sc_ in ((0, vM), (1, vM3)):
        for x in range(2):
            r = O0 + 8 * (2 * b + x) + 4 * e
            l += [f"v_mul_f32 v{r + i}, v{sc_}, v{r + i}" for i in range(4)]
            l += [f"v_cvt_pk_bf16_f32 v{OF + 8 * b + 4 * e + 2 * x + y}, v{r + 2 * y}, v{r + 2 * y + 1}" for y in range(2)]
    return l


def conv_q(b):
    l = []
    for e in range(2):
        dst = Q0 + 8 * b + 4 * e
        for x in range(2):
            r = O0 + 8 * (2 * b + x) + 4 * e
            l += [f"v_mul_f32 v{r + i}, s{sC}, v{r + i}" for i in range(4)]
            l += [f"v_cvt_pk_bf16_f32 v{dst + 2 * x + y}, v{r + 2 * y}, v{r + 2 * y + 1}" for y in range(2)]
    for e in range(2):
        dst = Q0 + 8 * b + 4 * e
        l += [f"v_permlane16_swap_b32 v{dst}, v{dst + 2}", f"v_permlane16_swap_b32 v{dst + 1}, v{dst + 3}"]
    return l


def rowmax(S):
    l = []
    for k in range(4):
        for m, r in ((vM, S), (vM3, S + 8)):
            l.append(f"v_max3_f32 v{m}, v{r}, v{r + 1}, v{r + 2}" if k == 0 else f"v_max3_f32 v{m}, v{m}, v{r + 1 + 2 * k}, v{r + 2 + 2 * k}" if k < 3
                     else f"v_max_f32 v{m}, v{m}, v{r + 7}")
    return l + across("v_max_f32", vM, vM3, vM2)


def with_subs(S, sm):
    sub = [f"v_sub_f32 v{S + i}, v{S + i}, v{vM3 if i & 8 else vM}" for i in range(16)]
    l, k = sub[:4], 4
    for o in sm:
        l.append(o)
        if o.startswith("v_exp") and k < 16:
            l.append(sub[k])
            k += 1
    return l


def item_fill(cfg, ops, fill):
    post = {}
    PKS[0] = cfg.pksum
    LAG[0] = cfg.lag
    chk = [f"v_max_f32 v{vMX}, v{vBS}, v{vBS1}", f"v_cmp_lt_f32 vcc, s{sTHR}, v{vMX}"]
    if cfg.pksum:
        chk = [f"v_max3_f32 v{vBS}, v{B2[0]}, v{B2[0] + 1}, v{B2[1]}", f"v_max_f32 v{vBS}, v{vBS}, v{B2[1] + 1}", f"v_cmp_lt_f32 vcc, s{sTHR}, v{vBS}"]
    spread(fill, rowmax(O0) + [f"v_sub_f32 v{NEGM + i}, 0, v{vM3 if i & 4 else vM}" for i in range(8)], 10, 15)
    spread(fill, with_subs(O0, softmax_ops(0, True)) + sum_into_l(True), 16, 23)
    spread(fill, with_subs(S0 + 16, softmax_ops(1)) + chk, 24, 31)
    post[31] = 1
    for u in range(2, 15):
        su = 16 * u
        spread_bal(cfg, ops, fill, softmax_ops(u) + chk, su, su + 15)
        post[su + 15] = u
    spread(fill, softmax_ops(15) + chk, 240, 247)
    post[247] = 15
    fin = [f"v_add_f32 v{m}, v{L2[e]}, v{L2[e] + 1}" for e, m in enumerate((vM, vM3))] if cfg.pksum else [f"v_mov_b32 v{vM}, v{vL}", f"v_mov_b32 v{vM3}, v{vL1}"]
    spread(fill, fin + across("v_add_f32", vM, vM3, vM2, [f"v_rcp_f32 v{vM}, v{vM}"]), 248, 252)
    spread(fill, conv_o(0), 253, 255)
    if cfg.merge:
        for b in range(1, 4):
            spread(fill, conv_o(b), 248 + 8 * b, 255 + 8 * b)
    else:
        spread(fill, conv_o(1), 256, 259)
        spread(fill, conv_o(2), 260, 263)
        spread(fill, conv_o(3), 264, 267)
    return post


def store_block(cfg, nb, tmp, pk):
    l = []
    if not nb & 1:
        l += [f"s_mul_i32 s56, s{sTC + (nb >> 1)}, 768", f"s_add_u32 s56, s56, s{sWSo}"]
    for u in range(2):
        for k in range(8):
            l.append(f"v_accvgpr_read_b32 v{tmp + 8 * u + k}, a{16 * nb + 4 * u + 8 * (k >> 2) + (k & 3)}")
        for k in range(4):
            i = 8 * u + 2 * k
            l.append(f"v_cvt_pk_bf16_f32 v{pk + 4 * u + k}, v{tmp + i}, v{tmp + i + 1}")
        l.append((f"buffer_store_dwordx4 {R('v', pk + 4 * u, 4)}, v{vST}, {srd(SWS)}, s56 offen offset:{((nb & 1) * 2 + u) * 1024}{cfg.pstf}", ("st", nb >> 1)))
    return l


VMCOST = 4


def emit_slots(cfg, sc, ops, fill, post, lo, hi, st, stubs, stamps={}, nextops=None):
    LA = cfg.LA
    first = {}
    if nextops:
        ops = ops + [dict(o, step=ops[-1]["step"] + 1) for o in nextops]
    for i, o in enumerate(ops):
        first.setdefault(o["step"], i)
    for i in range(lo, hi):
        nx = st["step"] + 1
        if nextops and nx == ops[-1]["step"] and i >= first[nx] - cfg.LB:
            st["tag"], st["alias"] = "n", 0
            for p, b in st["rebias"].items():
                sc.rebias(p, b)
            for p in pV:
                sc.out(f"v_sub_u32 v{p}, v{p}, v{vDL}")
        if nx in first and i >= first[nx] - (cfg.LB if nx else LA):
            if cfg.dstamp and nx in stamps and stamps[nx] in (1, 2) and (stamps[nx] == 2 or nx == 0):
                sc.out(f"s_memrealtime s[60:61]\ns_waitcnt lgkmcnt(0)\ns_mov_b32 s{8 + stamps[nx]}, s60")
            if nx in stamps and stamp(cfg, sc.out, stamps[nx], 0):
                st["lin"].append(None)
            w = "lgkmcnt(0)"
            key = (st["tag"], st.get("alias", nx))
            if key in st["lin"]:
                last = max(k for k, e in enumerate(st["lin"]) if e == key)
                w = f"vmcnt({len(st['lin']) - 1 - last}) " + w
            if cfg.trace == "head" and len(ops) in (144, 432):
                sc.out(f"s_memrealtime s[60:61]\ns_waitcnt lgkmcnt(0)\nv_writelane_b32 v{NEGM + 1}, s60, {nx}")
            if cfg.trace is True and len(ops) in (400, 400 + cfg.LA) and 0 < nx < 25:
                sc.out("s_memtime s[60:61]\ns_waitcnt lgkmcnt(0)")
                sc.out(f"v_writelane_b32 v2, s60, {nx}")
            if cfg.trace == "head2" and len(ops) == 432:
                sc.out(f"s_memtime s[60:61]\ns_waitcnt lgkmcnt(0)\nv_writelane_b32 v{NEGM + 1}, s60, {nx}")
            sc.out("s_waitcnt " + w)
            if cfg.trace == "head2" and len(ops) == 432:
                sc.out(f"s_memtime s[60:61]\ns_waitcnt lgkmcnt(0)\nv_writelane_b32 v{NEGM + 1}, s60, {32 + nx}")
            if cfg.trace is True and len(ops) in (400, 400 + cfg.LA) and 0 < nx < 25:
                sc.out("s_memtime s[60:61]\ns_waitcnt lgkmcnt(0)")
                sc.out(f"v_writelane_b32 v2, s60, {32 + nx}")
            if not cfg.nobar:
                sc.out("s_barrier")
            st["step"] = nx
        nrd = 0
        held = []
        while st["rd"] < min(i + LA + 1, len(ops)) and ops[st["rd"]]["step"] <= st["step"]:
            o = ops[st["rd"]]
            nrd += len(o["a"])
            for x in o.get("pre", []):
                sc.out(x)
            for xd, xp, xa in o.get("x", []):
                sc.lds("ds_read_b128", R("v", xd, 4), xp, xa)
                nrd += 1
            fb = sc.fbuf()
            o["areg"] = fb
            if o["a"][0][0] == "b128":
                sc.lds("ds_read_b128", R("v", fb, 4), o["a"][0][1], o["a"][0][2])
            else:
                sc.lds("ds_read_b64_tr_b16", R("v", fb, 2), o["a"][0][1], o["a"][0][2])
                if held:
                    held.pop()(sc)
                held.append(lambda s_, fb=fb, o=o: s_.lds("ds_read_b64_tr_b16", R("v", fb + 2, 2), o["a"][1][1], o["a"][1][2]))
            st["rd"] += 1
        if held and not (cfg.split and i >= 0 and "mm" in ops[i] and not (ops[i].get("alt") and st.get("alts") is not None)
                         and not ops[min(st["rd"], len(ops) - 1)].get("pre")):
            held.pop()(sc)

        def emit_fill(fl):
            for f in fl:
                if callable(f):
                    f(sc)
                elif isinstance(f, dict):
                    last = max(k for k, e in enumerate(st["lin"]) if e == ("st", f["pub"] - 1))
                    n_ = sum(1 for e in st["lin"][last + 1:] if e and e[0] == "st")
                    sc.out(f"v_add_u32 v2, {f['pub']}, v{vFL}\ns_waitcnt vmcnt({n_})\ns_mov_b64 exec, s[64:65]")
                    sc.out(f"buffer_store_dword v2, v1, {srd(SWS)}, s{sFLG} offen sc1\ns_mov_b64 exec, -1")
                    st["lin"].append(("st", -1))
                elif isinstance(f, tuple):
                    sc.out(f[0])
                    st["lin"].append(f[1])
                else:
                    sc.out(f)
                    if f.startswith("buffer_"):
                        st["lin"].append(None)
        fl = fill.get(i, [])
        if i < 0:
            emit_fill(fl)
            continue
        o = ops[i]
        mm = o.get("mm") or [(o["d"], o["b"], o["c"])]
        op = MF16 if "mm" in o else MF
        ms = [parse(f"{op} {d}, {R('v', o['areg'], 4)}, {b}, {c}") for d, b, c in mm]
        if i % cfg.waitgrp == 0:
            for d in range(1, cfg.waitgrp):
                if i + d < st["rd"]:
                    ms[0].rd = set(ms[0].rd) | {("v", ops[i + d]["areg"] + k) for k in range(4)}
        if o.get("alt") and st.get("alts") is not None:
            emit_fill(fl)
            c = parse(f"s_cmp_eq_u32 s{sIT}, 0")
            c.rd = set(c.rd) | {r for m in ms for r in m.rd if r[0] == "v"}
            n_ = len(st["alts"])
            sc.out.ins.append(c)
            sc.out(f"s_cbranch_scc1 L_alt{n_}")
            sc.out.ins.extend(ms)
            sc.out(f"s_branch L_altb{n_}\nL_alt{n_}:")
            for d, b, c in mm:
                z = parse(f"{op} {d}, {R('v', o['areg'], 4)}, {b}, 0")
                z.kind = "altmfma"
                sc.out.ins.append(z)
            sc.out(f"L_altb{n_}:")
            st["alts"].append(n_)
            continue
        if len(ms) == 1:
            emit_fill(fl)
            sc.out.ins.append(ms[0])
        else:
            cost = lambda f: cfg.vmcost if isinstance(f, tuple) else 1 if not isinstance(f, str) else (2 if f.startswith("v_exp") else f.count("\n") + 1)
            need0 = max([k + 1 for k, f in enumerate(fl) if isinstance(f, str) and "\n" not in f and parse(f).wr & ms[0].rd] + [0])
            c0 = nrd - len(held) + (i % cfg.waitgrp == 0) + (3 if i - 1 in post else 0)
            k0 = min(range(need0, len(fl) + 1), key=lambda k: abs(c0 + sum(map(cost, fl[:k])) - len(held) - sum(map(cost, fl[k:]))))
            emit_fill(fl[:k0])
            sc.out.ins.append(ms[0])
            emit_fill(held + fl[k0:])
            sc.out.ins.append(ms[1])
        if i in post:
            u = post[i]
            tag = f"{u}_{len(stubs)}"
            sc.out(f"s_cbranch_vccnz L_stub_{tag}\nL_back_{tag}:")
            sc.out("\n".join(sum_into_l()))
            stubs.append((tag, u & 1))


def group_request(cfg, pl, fill, slot, g, tag, kind, sp=1):
    l = []
    want = "k" if g == 0 else "m" if g < 15 else "v" if g == 15 else "w"
    if want != kind:
        l += {"k": [f"v_xor_b32 v{vD + k}, {KX[k]}, v{bK}" for k in range(4)],
              "m": [f"v_mov_b32 v{vD}, v{bM}", f"v_xor_b32 v{vD + 1}, s{sXM}, v{bM}", f"v_xor_b32 v{vD + 2}, s{sXM2}, v{bM}", f"v_xor_b32 v{vD + 3}, s{sXM2}, v{vD + 1}"],
              "v": [f"v_xor_b32 v{vD + k}, {32 * (k & 1)}, v{bV}" for k in range(4)],
              "w": [f"v_add_u32 v{vD + k}, {8192 * k}, v{bWo}" for k in range(4)]}[want]
    rot = lambda r, n: f"s_add_u32 s{sTMP}, s{r}, {n * 8192}\ns_and_b32 s{sTMP}, s{sTMP}, 0x1ffff\ns_add_u32 s{sTMP}, s{sTMP}, s{sB0}"
    so, sr, fl = {"k": (rot(sR0, 0), SK, cfg.kvf), "m": (rot(sMB, g), SM, cfg.kvf), "v": (rot(sR0, 14), SV, cfg.kvf),
                  "w": (f"s_add_u32 s{sTMP}, s{sWB}, s{sTC + max(g - 16, 0)}", SWO, cfg.wf)}[want]
    l += [f"s_add_u32 m0, s{sT4K}, {pl.addr[pl.grp[g][0]]}", so]
    fill.setdefault(slot, []).extend(l)
    for k in range(4):
        if not cfg.noload:
            fill.setdefault(slot + k * sp, []).append((f"buffer_load_dwordx4 v{vD + k}, {srd(sr)}, s{sTMP} offen offset:{k * 1024}{fl} lds", (tag, g)))
    if g == 24:
        fill.setdefault(slot + 3 * sp, []).append(f"s_add_u32 s{sWB}, s{sWB}, 147456")
    return want


def rare_routine(p):
    A = Prog()
    S, Sn = S0 + 16 * p, S0 + 16 * (1 - p)
    A(f"L_rare{p}:\ns_nop 15\ns_nop 15")
    A("\n".join(rowmax(S)))
    A(f"v_max_f32 v{vM}, 0, v{vM}\nv_max_f32 v{vM3}, 0, v{vM3}")
    for i in range(8):
        A(f"v_sub_f32 v{NEGM + i}, v{NEGM + i}, v{vM3 if i & 4 else vM}")
    for i in range(16):
        m = vM3 if i & 8 else vM
        A(f"v_sub_f32 v{S + i}, v{S + i}, v{m}\nv_sub_f32 v{Sn + i}, v{Sn + i}, v{m}")
    A(f"v_exp_f32 v{vM}, -v{vM}\nv_exp_f32 v{vM3}, -v{vM3}\ns_nop 0")
    if PKS[0]:
        A("\n".join(f"v_mul_f32 v{L2[e] + y}, v{L2[e] + y}, v{(vM, vM3)[e]}" for e in range(2) for y in range(2)))
    else:
        A(f"v_mul_f32 v{vL}, v{vL}, v{vM}\nv_mul_f32 v{vL1}, v{vL1}, v{vM3}")
    for i in range(64):
        A(f"v_mul_f32 v{O0 + i}, v{O0 + i}, v{vM3 if i & 4 else vM}")
    A("\n".join(softmax_ops(p)))
    A("s_nop 3\ns_setpc_b64 s[40:41]")
    ins, _ = hazard_pass(A.ins)
    return ins


def compute(cfg, pl):
    addr = pl.addr
    sc = Sched(cfg)
    A = sc.out
    A(f"s_lshl_b32 s{sT4K}, s{sW}, 12\ns_mov_b32 s{sTHR}, {hex(f2u(cfg.thr))}")
    nsh = {"16x8": 16, "8x16": 8, "4x32": 4}[cfg.mapping]
    xr = 96 // (32 // nsh)
    A(f"v_mov_b32 v21, 0x7fffff00\ns_and_b32 s56, s{sB}, {nsh - 1}\ns_mul_i32 s56, s56, {(576 // nsh) * 8192}\ns_add_u32 s56, s56, s{sWQo}")
    A("v_lshrrev_b32 v16, 1, v0\nv_lshlrev_b32 v16, 13, v16\nv_and_b32 v17, 1, v0\nv_lshl_add_u32 v16, v17, 7, v16\nv_cmp_gt_u32 vcc, 36, v0")
    A(f"s_and_b32 s57, s{sCU}, {32 // nsh - 1}\ns_mul_i32 s57, s57, {xr * 1152}\ns_add_u32 s57, s57, s{sXo}\nv_cndmask_b32 v16, v21, v16, vcc")
    A(f"v_mul_u32_u24 v17, 1152, v0\nv_cmp_gt_u32 vcc, {xr}, v0\ns_and_b32 s58, s{sW}, 2\ns_lshl_b32 s58, s58, 6\ns_add_u32 s57, s57, s58\nv_cndmask_b32 v17, v21, v17, vcc")
    if cfg.pfc:
        A(f"s_cmp_lg_u32 s{sW}, 2\ns_cbranch_scc1 L_nopfc\ns_mov_b32 s60, s56\ns_mov_b32 s61, s57")
        code_warm(A, NEGM + 2, NEGM + 4, cfg.codesh)
        A("s_mov_b32 s56, s60\ns_mov_b32 s57, s61\nL_nopfc:")
    descriptors(A)
    ntouch = 0
    if cfg.pf:
        A(f"s_cmp_lg_u32 s{sW}, 0\ns_cbranch_scc1 L_tx")
        for i in range(1152 // nsh // 36):
            A(f"buffer_load_dword v{NEGM}, v16, {srd(SWQ)}, s56 offen\ns_add_u32 s56, s56, {18 * 8192}")
        A("s_branch L_tdone\nL_tx:")
        if cfg.pfx:
            for i in range(5):
                A(f"buffer_load_dword v{NEGM}, v17, {srd(SX)}, s57 offen offset:{256 * i}")
        A("L_tdone:")
    if cfg.tlb:
        A(f"s_cmp_lg_u32 s{sW}, 2\ns_cbranch_scc1 L_notlb")
        tlb_warm(cfg, A, NEGM, 16)
        A("L_notlb:")
    sample_flags(A)
    v_patterns(A)
    x16_patterns(A, pK, sT4K)
    wq16_patterns(A, pWq)
    A(f"v_lshlrev_b32 v{vST}, 4, v0\nv_add_u32 v{pQ}, s{sT4K}, v{vST}")
    A(f"s_mul_i32 s56, s{sPAIR}, 884736\ns_lshl_b32 s57, s{sW}, 15\ns_add_u32 s56, s56, s57\ns_lshl_b32 s57, s{sCU}, 12\ns_add_u32 s{sWSo}, s56, s57")
    A("v_lshrrev_b32 v1, 3, v0\nv_and_b32 v2, 7, v0\nv_lshrrev_b32 v16, 4, v0\nv_lshlrev_b32 v18, 8, v1\nv_mul_u32_u24 v19, 1152, v1")
    A(f"v_and_b32 v17, 1, v16\nv_lshlrev_b32 v17, 2, v17\nv_xor_b32 v17, v17, v2\nv_lshrrev_b32 v18, 5, v0\nv_lshlrev_b32 v18, 1, v18\nv_xor_b32 v17, v17, v18")
    A(f"v_lshl_add_u32 v{bWo}, v17, 4, v19")
    kv_offsets(A, bK, bV)
    A(f"s_cmp_lt_u32 s{sW}, 2\ns_cselect_b32 s{SM}, s{SK}, s{SV}\ns_cselect_b32 s{SM + 1}, s{SK + 1}, s{SV + 1}\ns_mov_b32 s{SM + 2}, 0x4000000\ns_mov_b32 s{SM + 3}, 0x20000")
    A(f"s_cselect_b32 s{sXM}, 16, 32\ns_cselect_b32 s{sXM2}, 64, 0\ns_cselect_b64 vcc, -1, 0\ns_cselect_b32 s56, 1, 15\ns_lshl_b32 s56, s56, 13")
    rotation(cfg, A)
    A(f"s_add_u32 s{sMB}, s{sROT}, s56\nv_cndmask_b32 v{bM}, v{bV}, v{bK}, vcc\ns_lshr_b32 s56, s{sW}, 1\ns_lshl_b32 s56, s56, 13\ns_add_u32 s{sR0}, s{sROT}, s56")
    A(f"s_and_b32 s56, s{sW}, 1\ns_lshl_b32 s56, s56, 12\ns_add_u32 s{sB0}, s{sKV}, s56")
    A(f"s_mul_i32 s56, s{sW}, 36864\ns_add_u32 s{sWB}, s{sWOo}, s56")
    for i in range(256):
        A(f"v_accvgpr_write_b32 a{i}, 0")
    for i in range(32):
        A(f"v_mov_b32 v{OUTV + i}, 0")
    A("s_waitcnt vmcnt(0)")
    for p in pK + pV + pWq + pWo + [pQ]:
        sc.bias[p] = 0
    qops = q_ops(addr)
    qf = {}
    kind = None
    for t in range(-1, 9):
        for n_, g in enumerate(pl.sreq[t]):
            kind = group_request(cfg, pl, qf, (16 * t - cfg.LB if t > 0 else -cfg.LA + 1 if t == 0 else -cfg.LA - 8) + 4 * n_, g, "n", kind)
    kind0 = kind
    spread(qf, conv_q(0), 134, 138)
    spread(qf, conv_q(1), 139, 143)
    emit_slots(cfg, sc, qops, qf, {}, -cfg.LA - 8, 144, dict(rd=0, step=-1, lin=[], tag="c"), [], {0: 0})
    A("\n".join(conv_q(2) + conv_q(3)))
    if cfg.trace == "head":
        A(f"s_memrealtime s[60:61]\ns_waitcnt lgkmcnt(0)\nv_writelane_b32 v{NEGM}, s60, 9\nv_writelane_b32 v{NEGM}, s101, 10")
        A(f"v_lshlrev_b32 v1, 2, v0\ns_lshl_b32 s62, s2, 10\ns_lshl_b32 s63, s{sW}, 8\ns_add_u32 s62, s62, s63\ns_add_u32 s62, s62, {STAMP_BASE}")
        A(f"buffer_store_dword v{NEGM}, v1, {srd(SWS)}, s62 offen\ns_waitcnt vmcnt(0)")
    k_patterns(A, False)
    wo_shift(A)
    for p in pWq:
        del sc.bias[p]
    for p in pK:
        sc.bias[p] = 0
    for p in pV + pWo:
        sc.rebias(p, 0)
    sc.rebias(pQ, QBUF)
    bias0 = dict(sc.bias)
    sc.nbuf = 0
    ops = item_ops(addr)
    st = dict(rd=0, step=-1, lin=[("c", g) for g in pl.pro for k in range(4)] if not cfg.noload else [], tag="c")
    emit_slots(cfg, sc, ops, {}, {}, -cfg.LA, 0, st, [], {0: 1})
    assert st["rd"] == cfg.LA and 400 % cfg.NB == 0
    bias1 = dict(sc.bias)
    head, pend0 = lgkm_pass(sc.out.ins)
    assert len(pend0) == cfg.LA
    if cfg.lateq:
        pend0 = [{("v", Q0 + 16 + 4 * i + k) for k in range(4)} for i in range(4)] + pend0
    head, nh = hazard_pass(head, verbose=cfg.dbg == "nops")
    sc.out = Prog()
    fill = {}
    split = 272
    bslot = lambda s_: 16 * s_ - cfg.LB if s_ else 0
    kind = None
    late = {}
    wrapped = False
    for s_ in range(25):
        for n_, (g, w) in enumerate(pl.req[s_]):
            sp = cfg.gsp if len(pl.req[s_]) == 1 else min(cfg.gsp, 2) if s_ else 1
            if bslot(s_) < split < bslot(s_) + 4 * sp * len(pl.req[s_]):
                sp = 1
            slot = bslot(s_) + 4 * sp * n_
            if w and not wrapped:
                wrapped = True
                if slot < split:
                    fill.setdefault(slot, []).append(f"s_add_u32 s{sB0}, s{sB0}, 0x20000\ns_cmp_eq_u32 s{sIT}, 3")
                    fill[slot].append(f"s_cselect_b32 s{SK + 2}, 0, s{SK + 2}\ns_cselect_b32 s{SM + 2}, 0, s{SM + 2}")
                else:
                    late.setdefault(slot, []).append(f"s_add_u32 s{sB0}, s{sB0}, 0x20000")
            assert g >= 16 or w == wrapped
            if w and slot >= split:
                kind = group_request(cfg, pl, late, slot, g, "n", None, sp)
            else:
                kind = group_request(cfg, pl, fill, slot, g, "n" if w else "c", None if slot >= split else kind, sp)
    cyc_kind = kind
    post = item_fill(cfg, ops, fill)
    stubs = []
    sc.out("L_item:")
    st["lin"] = [e for e in st["lin"] if e]
    emit_slots(cfg, sc, ops, fill, post, 0, split, st, stubs, {16: 2})
    sc.out(f"s_cmp_lg_u32 s{sIT}, 3\ns_cbranch_scc1 L_more")
    common, pend = lgkm_pass(sc.out.ins, pend0)
    common, n0 = hazard_pass(common, history=head[-20:], verbose=cfg.dbg == "nops")
    sa = copy.deepcopy(sc)
    sa.out = Prog()
    sa.out("L_warm_more:\ns_setpc_b64 s[40:41]\nL_more:")
    fa = {k: list(v) for k, v in fill.items()}
    for k, v in late.items():
        fa[k] = fa.get(k, []) + v
    nextops = copy.deepcopy(ops[:cfg.LA])
    if cfg.lateq:
        nextops[0]["pre"] = [f"ds_read_b128 {R('v', Q0 + 16 + 4 * i, 4)}, v{pQ} offset:{i * 1024}" for i in range(4)]
    for p, r0 in ((0, 288), (1, 381))[:1 if cfg.lateq else 2]:
        spread(fa, [(lambda s_, i=i, p=p: s_.lds("ds_read_b128", R("v", Q0 + 16 * p + 4 * i, 4), pQ, QBUF + i * 1024)) for i in range(4)], r0, r0 + 3)
    sta = copy.deepcopy(st)
    sta["rebias"] = bias0
    fa.setdefault(390, []).append(f"s_add_u32 s{sIT}, s{sIT}, 1")
    emit_slots(cfg, sa, copy.deepcopy(ops), fa, {}, split, 400, sta, stubs, {25: 1}, nextops=nextops)
    assert cfg.noload or [e for e in sta["lin"] if e and e[0] == "n"] == [("n", g) for g in pl.pro for k in range(4)]
    assert sa.bias == bias1 and sta["rd"] == 400 + cfg.LA
    if cfg.trace is True:
        sa.out(f"s_cmp_lg_u32 s{sIT}, {cfg.trace_it + 1}\ns_cbranch_scc1 L_notr\nv_lshlrev_b32 v1, 2, v0\ns_lshl_b32 s62, s2, 10\ns_lshl_b32 s63, s{sW}, 8\ns_add_u32 s62, s62, s63\ns_add_u32 s62, s62, {STAMP_BASE}")
        sa.out(f"buffer_store_dword v2, v1, {srd(SWS)}, s62 offen\ns_waitcnt vmcnt(0)\nL_notr:")
    sa.out("s_branch L_item")
    conta, pe = lgkm_pass(sa.out.ins, pend)
    assert pe == pend0[len(pend0) - len(pe):]
    conta, n1 = hazard_pass(conta, history=common[-20:])
    sb = copy.deepcopy(sc)
    sb.out = Prog()
    sb.out("L_last:")
    fb = {k: list(v) for k, v in fill.items()}
    last_fill(cfg, fb)
    emit_slots(cfg, sb, copy.deepcopy(ops), fb, {}, split, 400, copy.deepcopy(st), stubs)
    T = sb.out
    stamp(cfg, T, 3, 0)
    stamp(cfg, T, 4, 0)
    finish_unit(cfg, T, "c", 7, OUTV, sW, sCU, True)
    contb, _ = lgkm_pass(sb.out.ins, pend)
    contb, n2 = hazard_pass(contb, history=common[-20:], verbose=cfg.dbg == "nops")
    st = Prog()
    for tag, p in stubs:
        st(f"L_stub_{tag}:\ns_call_b64 s[40:41], L_rare{p}\ns_branch L_back_{tag}")
    info = dict(nops=(nh, n0, n1, n2), est_item=est_cycles(common + conta))
    return head + common + contb + conta + st.ins + rare_routine(0) + rare_routine(1), info


def kd(name, vg, acc, sg=102):
    return (f".amdhsa_kernel {name}\n  .amdhsa_next_free_vgpr {vg}\n  .amdhsa_next_free_sgpr {sg}\n  .amdhsa_accum_offset {acc}\n"
            "  .amdhsa_group_segment_fixed_size 0\n  .amdhsa_kernarg_size 104\n  .amdhsa_user_sgpr_count 2\n"
            "  .amdhsa_user_sgpr_kernarg_segment_ptr 1\n  .amdhsa_system_sgpr_workgroup_id_x 1\n.end_amdhsa_kernel\n")


def generate(cfg):
    pl = plan_ring(cfg)
    P = Prog()
    prologue(cfg, P)
    pro, _ = hazard_pass(P.ins)
    comp, info = compute(cfg, pl)
    w3, info3 = wave3(cfg, pl)
    info.update(info3)
    s = HDR + "; @launch grid=(256,1,1) block=(256,1,1) lds=163840\n"
    s += '.amdgcn_target "amdgcn-amd-amdhsa--gfx950"\n.text\n'
    s += f".globl {KNAME}\n.p2align 8\n.type {KNAME},@function\n{KNAME}:\n"
    s += render(pro) + render(comp) + render(w3) + "L_done:\n    s_endpgm\n"
    s += '.section .rodata,"a"\n.p2align 6\n' + kd(KNAME, 512, 256)
    return s, info, pl


if __name__ == "__main__":
    import build
    name = sys.argv[1]
    kw = {}
    for a in sys.argv[2:]:
        k, v = a.split("=", 1)
        try:
            v = eval(v)
        except Exception:
            pass
        kw[k] = v
    s, info, plan = generate(Cfg(**kw))
    open(name, "w").write(s)
    print(info)
    build.build(name)
```

```python
import copy
import sys

import gen9a as G
from gen9a import *
from asmlib import Prog, parse, lgkm_pass, hazard_pass, render, est_cycles, R


class Cfg(G.Cfg):
    colors = "abcdfehgiacbfhicdegfhiegi"
    reqs = (13, 15, 17, 19, 21, 23, 24, 0, 1, 2, 3, 4, 5, 7, 9, 11) + (6, 8, 10, 13, 14, 16, 18, 20, 22)
    kvq = (30, 32, 32, 34, 36, 36, 36)
    xlead = 8
    slabs = "ifehg"
    pf_wo_step = 19
    pf_wo_q = 16
    first_x = 1
    KS = 2
    xslots = "dc"
    cnt_at = 2
    pk = True
    merge = True
    mzero = True
    onelump = True
    alt = False
    cap = 0
    flagfirst = True
    tfirst = 1
    dsp = 2
    NR = 3
    pflead = 4
    lazy = True

    def __init__(self, **kw):
        for k, v in kw.items():
            assert hasattr(Cfg, k), k
            setattr(self, k, v)


QB = 9 * 16384
NQ = 36
STASH = 224


class Plan:
    pass


def plan(cfg):
    pl = Plan()
    grp = [[("k", 0, 0), ("k", 0, 1), ("k", 1, 0), ("k", 1, 1)]]
    for u in range(1, 15):
        grp.append([("k", u + 1, 0), ("k", u + 1, 1), ("v", u - 1, 0), ("v", u - 1, 1)])
    grp.append([("v", 14, 0), ("v", 14, 1), ("v", 15, 0), ("v", 15, 1)])
    for t in range(9):
        grp.append([("wo", t, rb) for rb in range(4)])
    ns = len(grp)
    slot = lambda c: (ord(c) - 97) * 16384
    addr = {q: slot(cfg.colors[s]) + k * 4096 for s, g in enumerate(grp) for k, q in enumerate(g)}
    req = {b: [] for b in range(ns)}
    for g in range(ns):
        gap = next(d for d in range(1, ns + 1) if cfg.colors[(g - d) % ns] == cfg.colors[g])
        lead = (g - cfg.reqs[g]) % ns
        assert 1 <= lead <= gap - 1 - (cfg.merge and (g - gap) % ns == 16), (g, lead, gap)
        assert not (cfg.merge and g == 17) or lead >= 2
        req[cfg.reqs[g]].append((g, g - lead < 0))
    for b in req:
        req[b].sort(key=lambda e: (e[0] < 16, e[1]))
    pl.pro = [g for b in range(ns) for g, w in req[b] if w]
    pl.slab = [slot(cfg.slabs[k % len(cfg.slabs)]) for k in range(NQ)]
    xs = [QB] + [slot(c) for c in cfg.xslots]
    pl.xt = [xs[(8 - t) % 3] for t in range(9)]
    KS = cfg.KS
    pl.kvq = {}
    pl.late = []
    for g in sorted(pl.pro):
        a = addr[grp[g][0]]
        busy = max([4 * t + 3 for t in range(9) if pl.xt[t] == a] + [k for k in range(NQ) if pl.slab[k] == a] + [-1])
        b = max(cfg.kvq[g] // KS, busy // KS + 1)
        pl.kvq.setdefault(b, []).append(g)
    pl.grp, pl.addr, pl.req = grp, addr, req
    return pl


def slab_patterns(A, regs):
    A("v_lshrrev_b32 v1, 4, v0\nv_bfe_u32 v2, v0, 2, 2\nv_lshl_add_u32 v16, v1, 3, v2\nv_lshlrev_b32 v16, 9, v16\nv_lshl_add_u32 v16, v2, 6, v16")
    A(f"v_and_b32 v2, 1, v1\nv_lshl_add_u32 v16, v2, 5, v16\nv_and_b32 v2, 3, v0\nv_lshl_add_u32 v{regs[0]}, v2, 3, v16")
    for j in range(1, 8):
        A(f"v_xor_b32 v{regs[j]}, {32 * j}, v{regs[0]}")


def slab_offsets(A, base):
    A(f"v_lshrrev_b32 v1, 5, v0\nv_and_b32 v2, 31, v0\nv_lshlrev_b32 v16, 2, v1\nv_xor_b32 v2, v2, v16\ns_and_b32 s56, s{sW}, 1\ns_lshl_b32 s56, s56, 1")
    A("v_xor_b32 v2, s56, v2\nv_lshlrev_b32 v2, 4, v2\nv_lshl_add_u32 v2, v1, 13, v2")
    for k in range(4):
        A(f"v_xor_b32 v17, {128 * (k & 1)}, v2\nv_add_u32 v{base + k}, {k * (16384 - 1024)}, v17")


def slab_request(cfg, ks, pl, vs, tag):
    l = [f"s_add_u32 m0, s{sT4K}, {pl.slab[ks]}", f"s_add_u32 s{sTMP}, s{sSL}, {(ks >> 1) * 32 * 8192 + (ks & 1) * 512}"]
    if not cfg.noload:
        l += [(f"buffer_load_dwordx4 v{vs + k}, {srd(SWQ)}, s{sTMP} offen offset:{k * 1024}{cfg.wf} lds", (tag, ks)) for k in range(4)]
    return l


sSL, sXW, sC2 = 90, 91, 96


vK3, vV3, vWo3, vS3 = 24, 28, 60, 32
pS3 = [6, 7, 8, 9, 10, 11, 60, 61]
vV3x = 3
A3, B3, ACC3 = 36, 40 + 0, 64


def wave3(cfg, pl):
    addr = pl.addr
    sc = Sched(cfg)
    A = sc.out
    ns = len(pl.grp)
    nsl = len(cfg.slabs)
    AF = [36, 40, 44]
    BF = [48, 52, 56, 12, 16, 20]
    vFL3 = 63
    A("L_loader:")
    A(f"s_lshl_b32 s{sT4K}, s{sW}, 12\ns_add_u32 s{sSL}, s{sWQo}, {24 * 8192}")
    slab_offsets(A, vS3)
    descriptors(A)
    rotation(cfg, A)
    lin = []

    def put(sc_, o, gen=0):
        if isinstance(o, tuple):
            sc_.out(o[0])
            lin.append((o[1], gen))
        elif callable(o):
            o(sc_)
        else:
            sc_.out(o)

    def wait_for(sc_, keys, extra=""):
        idx = [k for k, e in enumerate(lin) if e[0] in keys and e[1] == 0]
        w = f"vmcnt({min(63, len(lin) - 1 - max(idx))}) " if idx else ""
        if w or extra:
            sc_.out("s_waitcnt " + w + extra)

    def quad_ops(q):
        k = q[0]
        pre = []
        if k == "k":
            pre, off = kv_soffset(q[1], q[2])
            base, v, sr, fl = sTMP, [vK3 + g for g in range(4)], SK, cfg.kvf
        elif k == "v":
            pre, off = kv_soffset(q[1], q[2])
            base, v, sr, fl = sTMP, [vV3, vV3x] * 2, SV, cfg.kvf
        else:
            pre = [f"s_add_u32 s{sXW}, s{sWOo}, s{sTC + q[1]}"] if q[2] == 0 else []
            off, base, v, sr, fl = q[2] * 32 * 1152, sXW, [vWo3 + g for g in range(4)], SWO, cfg.wf
        l = pre + [f"s_mov_b32 m0, {addr[q]}", f"s_add_u32 s{sTMP}, s{base}, {off}"]
        if not cfg.noload:
            l += [(f"buffer_load_dwordx4 v{v[g]}, {srd(sr)}, s{sTMP} offen offset:{g * 1024}{fl} lds", q) for g in range(4)]
        return l

    if stamp(cfg, A, 15, 1):
        lin.append((None, 0))
    lin += [(None, 0)] * tlb_warm(cfg, A, 62, 61)
    for ks in range(cfg.KS if cfg.lazy else nsl):
        for o in slab_request(cfg, ks, pl, vS3, "s"):
            put(sc, o)
    A(f"v_and_b32 v1, 7, v0\nv_lshlrev_b32 v1, 2, v1\nbuffer_load_dword v{vFL3}, v1, {srd(SWS)}, s{sFLG} offen sc1")
    lin.append(("flag", 0))
    x16_patterns(A, pK)
    slab_patterns(A, pS3)
    kv_offsets(A, vK3, vV3)
    A(f"v_xor_b32 v{vV3x}, 32, v{vV3}")
    for g in range(1, 4):
        A(f"v_xor_b32 v{vK3 + g}, {KX[g]}, v{vK3}")
    nsh = {"16x8": 16, "8x16": 8, "4x32": 4}[cfg.mapping]
    vTO3, vDUM3, pQ3_ = 29, 30, 31
    A(f"s_and_b32 s56, s{sB}, {nsh - 1}\nv_mov_b32 v17, 0x7fffff00\nv_cmp_gt_u32 vcc, 36, v0\nv_lshlrev_b32 v{vTO3}, 7, v0")
    A(f"s_mul_i32 s57, s56, {(576 // nsh) * 256}\nv_add_u32 v{vTO3}, s57, v{vTO3}\nv_cndmask_b32 v{vTO3}, v17, v{vTO3}, vcc")

    def touch_wo(add):
        l = []
        if cfg.pf:
            for i in range(1152 // nsh // 36):
                l.append(f"s_add_u32 s{sTMP}, s{sWOo}, {i * 36 * 128 + add}")
                l.append((f"buffer_load_dword v{vDUM3}, v{vTO3}, {srd(SWO)}, s{sTMP} offen", None))
        return l
    for p in pK + pS3:
        sc.bias[p] = 0
    assert cfg.KS == 2
    ops = [dict(k2=k2, dt=dt, j=j) for k2 in range(NQ // 2) for dt in range(8) for j in range(3)]
    LB3 = 4
    queue = []
    st = dict(step=-1, rdA=0, rdB=0, na=0)

    def drain(sc_, n):
        while queue and n > 0:
            o, g = queue.pop(0)
            put(sc_, o, g)
            n -= isinstance(o, tuple)

    KS = cfg.KS
    for i in range(-LB3, 12 * NQ):
        nx = st["step"] + 1
        if nx < NQ // KS and i >= 12 * KS * nx - LB3:
            drain(sc, 99)
            if cfg.trace == "head2":
                A(f"s_memtime s[60:61]\ns_waitcnt lgkmcnt(0)\nv_writelane_b32 v62, s60, {nx}")
            wait_for(sc, {("s", KS * nx + KS - 1)} | ({"flag"} if nx == cfg.cnt_at else set()), "lgkmcnt(0)")
            if cfg.trace == "head2":
                A(f"s_memtime s[60:61]\ns_waitcnt lgkmcnt(0)\nv_writelane_b32 v62, s60, {32 + nx}")
            if not cfg.nobar:
                A("s_barrier")
            st["step"] = nx
            if nx == cfg.cnt_at:
                A(f"s_lshl_b32 s56, s{sPAIR}, 2\nv_mov_b32 v1, s56\nv_mov_b32 v2, 1\ns_mov_b64 exec, 1")
                put(sc, (f"buffer_atomic_add v2, v1, {srd(SDB)}, 0 offen offset:{128 if cfg.dstamp else 0} sc1", None))
                A("s_mov_b64 exec, -1")
            for ks in range(KS * (nx - 1) + nsl if nx else KS, min(NQ, KS * nx + nsl)):
                if nx or cfg.lazy:
                    queue.extend((o, 0) for o in slab_request(cfg, ks, pl, vS3, "s"))
            if nx == cfg.pf_wo_q // KS:
                queue.extend((o, 0) for o in touch_wo(0))
            for g in pl.kvq.get(nx, []):
                for q in pl.grp[g]:
                    queue.extend((o, 0) for o in quad_ops(q))
        while st["rdB"] < 3 * (NQ // 2) and st["rdB"] // 3 <= st["step"] and 24 * (st["rdB"] // 3) + st["rdB"] % 3 - 2 <= max(i, -2 + st["rdB"] if st["rdB"] < 3 else i):
            k2, j = divmod(st["rdB"], 3)
            for e in range(2):
                sc.lds("ds_read_b128", R("v", BF[2 * j + e], 4), pK[k2 & 1], pl.xt[k2 >> 1] + (2 * j + e) * 2048)
            st["rdB"] += 1
        while st["rdA"] < 12 * NQ and st["rdA"] <= i + 5 and ops[st["rdA"]]["k2"] <= st["step"]:
            o = ops[st["rdA"]]
            fb = AF[st["na"] % 3]
            st["na"] += 1
            a = pl.slab[2 * o["k2"] + 1] + 256
            sc.lds("ds_read_b64_tr_b16", R("v", fb, 2), pS3[o["dt"]], a)
            sc.lds("ds_read_b64_tr_b16", R("v", fb + 2, 2), pS3[o["dt"]], a + 2048)
            for d in range(3):
                ops[st["rdA"] + d]["areg"] = fb
            st["rdA"] += 3
        if i < 0:
            continue
        o = ops[i]
        for e in range(2):
            if e:
                left = 12 * KS * (st["step"] + 1) - LB3 - i
                nv = sum(isinstance(o_, tuple) for o_, g in queue)
                if nv > left:
                    drain(sc, -(-nv // max(left, 1)))
                elif i % cfg.dsp == 0 or nv * cfg.dsp > left:
                    drain(sc, 1)
            d = R("v", ACC3 + 4 * (6 * o["dt"] + 2 * o["j"] + e), 4)
            A(f"{MF16} {d}, {R('v', o['areg'], 4)}, {R('v', BF[2 * o['j'] + e], 4)}, {'0' if o['k2'] == 0 else d}")
    drain(sc, 99)
    if cfg.trace == "head2":
        A(f"v_lshlrev_b32 v1, 2, v0\ns_lshl_b32 s62, s2, 10\ns_add_u32 s62, s62, {STAMP_BASE + 768}")
        A(f"buffer_store_dword v62, v1, {srd(SWS)}, s62 offen\ns_waitcnt vmcnt(0)")
    A("s_waitcnt lgkmcnt(0)")
    if not cfg.nobar:
        A("s_barrier")
    for g in pl.kvq.get(NQ // KS, []):
        for q in pl.grp[g]:
            for o in quad_ops(q):
                put(sc, o)

    def conv3(b, j):
        l = []
        for e in range(2):
            r0, r1 = (ACC3 + 4 * (6 * (2 * b + x) + 2 * j + e) for x in range(2))
            l += [f"v_mul_f32 v{r + i}, s{sC}, v{r + i}" for r in (r0, r1) for i in range(4)]
            l += [f"v_cvt_pk_bf16_f32 v{r + y}, v{r + 2 * y}, v{r + 2 * y + 1}" for r in (r0, r1) for y in range(2)]
            l += ["s_nop 0", f"v_permlane16_swap_b32 v{r0}, v{r1}", f"v_permlane16_swap_b32 v{r0 + 1}, v{r1 + 1}"]
            l += [f"v_accvgpr_write_b32 a{96 + 4 * (8 * j + 2 * b + e) + k}, v{(r0, r0 + 1, r1, r1 + 1)[k]}" for k in range(4)]
        return l
    post = ["v_lshrrev_b32 v1, 3, v0\nv_and_b32 v2, 7, v0\nv_lshrrev_b32 v16, 4, v0\nv_and_b32 v16, 1, v16\nv_lshlrev_b32 v16, 2, v16",
            f"v_mov_b32 v{vFL}, v{vFL3}\nv_lshrrev_b32 v17, 5, v0\nv_lshlrev_b32 v17, 1, v17\nv_xor_b32 v16, v16, v17",
            "v_xor_b32 v16, v16, v2\nv_lshlrev_b32 v16, 4, v16\nv_mul_u32_u24 v17, 1152, v1\nv_add_u32 v16, v16, v17"]
    post += [f"v_add_u32 v{vWo3 + g}, {g * 8192}, v16" for g in range(4)]
    post += [
             f"v_lshlrev_b32 v{pQ3_}, 4, v0\nv_add_u32 v{pQ3_}, {QB}, v{pQ3_}"]
    for o in post:
        A(o)
    head, pend = lgkm_pass(sc.out.ins)
    assert not pend
    pro = [q for b in sorted(pl.kvq) for g in pl.kvq[b] for q in pl.grp[g]]

    def period(last, pro_):
        nonlocal lin
        sc2 = Sched(cfg)
        B = sc2.out
        lin = [(q, 0) for q in pro_ for g in range(4)] if not cfg.noload else []
        wrapped = False
        for s in range(ns):
            if cfg.trace is True:
                B(f"s_memtime s[60:61]\ns_waitcnt lgkmcnt(0)\nv_writelane_b32 v2, s60, {s}")
            wait_for(sc2, set(pl.grp[s]) | (set(pl.grp[17]) if cfg.merge and s == 16 else set()), "lgkmcnt(0)")
            if cfg.trace is True:
                B(f"s_memtime s[60:61]\ns_waitcnt lgkmcnt(0)\nv_writelane_b32 v2, s60, {32 + s}")
            if s in (0, 16) and stamp(cfg, B, {0: 1, 16: 2}[s], 1):
                lin.append((None, 0))
            if last and s == 16:
                B("v_readfirstlane_b32 s57, v17\ns_mov_b32 s58, 0\nL_chk:\ns_cmp_ge_u32 s57, 8\ns_cbranch_scc1 L_chkend")
                B(f"buffer_load_dword v17, v16, {srd(SDB)}, 0 offen offset:{128 if cfg.dstamp else 0} sc1\ns_add_u32 s58, s58, 1\ns_waitcnt vmcnt(0)\nv_readfirstlane_b32 s57, v17")
                B("s_cmp_lt_u32 s58, 0x80000\ns_cbranch_scc1 L_chk\nL_chkend:")
            if not cfg.nobar:
                B("s_barrier")
            for g, w in pl.req[s]:
                if w and not wrapped:
                    wrapped = True
                    B(f"s_add_u32 s{sKV}, s{sKV}, 0x20000")
                assert g >= 16 or w == wrapped
                if not (last and w):
                    for q in pl.grp[g]:
                        if cfg.cap and g < 16:
                            B(f"s_waitcnt vmcnt({cfg.cap - 4})")
                        for o in quad_ops(q):
                            put(sc2, o, int(w))
            if last and s == 2:
                B(f"s_lshl_b32 s56, s{sPAIR}, 2\nv_mov_b32 v16, s56")
                put(sc2, (f"buffer_load_dword v17, v16, {srd(SDB)}, 0 offen offset:{128 if cfg.dstamp else 0} sc1", None))
            if s == cfg.pf_wo_step and not last:
                for o in touch_wo(147456):
                    put(sc2, o)
            if cfg.warm and s == 9 and not last:
                B("s_call_b64 s[40:41], L_warm_more")
            if last:
                continue
            extra = []
            if s < 6:
                extra = conv3(*divmod(2 * s, 3)) + conv3(*divmod(2 * s + 1, 3))
            elif s in (QS0 + 1, QS1 + 1):
                p = int(s == QS1 + 1)
                extra = [f"ds_read_b128 {R('a', 4 * (8 * j + 4 * p + i), 4)}, v{pQ3_} offset:{(4 * j + i) * 1024}" for j in range(3) for i in range(4)]
            if extra:
                B(f"s_cmp_lg_u32 s{sIT}, 0\ns_cbranch_scc1 L_w3x{s}")
                B("\n".join(extra) + f"\ns_waitcnt lgkmcnt(0)\nL_w3x{s}:")
            if s in (16, 20):
                p = int(s == 20)
                for j in range(3):
                    for i in range(4):
                        B(f"ds_write_b128 v{pQ3_}, {R('a', 4 * (8 * j + 4 * p + i), 4)} offset:{(4 * j + i) * 1024}")
            if s == 22:
                B(f"s_cmp_lg_u32 s{sIT}, 1\ns_cbranch_scc1 L_w3mv")
                for k in range(96):
                    B(f"v_accvgpr_mov_b32 a{k}, a{96 + k}")
                B("L_w3mv:")
        tail = [e[0] for e in lin if e[1] == 1][::4]
        if not last:
            B(f"s_add_u32 s{sWOo}, s{sWOo}, 147456")
            if cfg.trace is True:
                B(f"s_cmp_lg_u32 s{sIT}, {cfg.trace_it}\ns_cbranch_scc1 L_notr3\nv_lshlrev_b32 v1, 2, v0\ns_lshl_b32 s62, s2, 10\ns_add_u32 s62, s62, {STAMP_BASE + 768}")
                B(f"buffer_store_dword v2, v1, {srd(SWS)}, s62 offen\ns_waitcnt vmcnt(0)\nL_notr3:")
            B(f"s_add_u32 s{sIT}, s{sIT}, 1\ns_cmp_lt_u32 s{sIT}, 3\ns_cbranch_scc1 L_w3loop")
        return B.ins, tail

    b1, tail = period(False, pro)
    b2, tail2 = period(False, tail)
    assert tail == tail2 and len(b1) == len(b2) and (cfg.noload or sorted(tail) == sorted(pro))
    import re
    body = []
    for x, y in zip(b1, b2):
        if x.text != y.text:
            n = min(int(re.search(r"vmcnt\((\d+)\)", z.text).group(1)) for z in (x, y))
            x = parse(re.sub(r"vmcnt\(\d+\)", f"vmcnt({n})", x.text))
        body.append(x)
    lastp, _ = period(True, tail)
    T = Prog()
    T(f"s_cmp_ge_u32 s{sCU}, 3\ns_cbranch_scc1 L_done\ns_mov_b32 s61, 8")
    finish_unit(cfg, T, "w3", 8, 192, sCU, 61, False)
    allins, nn = hazard_pass(head + [parse("L_w3loop:")] + body + lastp + T.ins, verbose=cfg.dbg == "nops3")
    return allins, dict(w3nops=nn, w3head=est_cycles(head))


def zero16(r):
    z = R("v", NEGM + 12, 4)
    return f"{MF} {R('a', r, 16)}, {z}, {z}, 0"


QS0, QS1 = 7, 10


def compute(cfg, pl):
    addr = pl.addr
    sc = Sched(cfg)
    A = sc.out
    nsl = len(cfg.slabs)
    vS, vXo = P0, P0 + 4
    pS = pWq + [OUTV + k for k in range(4)]
    TMP = 248
    nsh = {"16x8": 16, "8x16": 8, "4x32": 4}[cfg.mapping]
    A(f"s_lshl_b32 s{sT4K}, s{sW}, 12\ns_mov_b32 s{sTHR}, {hex(f2u(cfg.thr))}")
    A(f"s_lshl_b32 s56, s{sW}, 16\ns_add_u32 s{sSL}, s{sWQo}, s56\ns_mul_i32 s56, s{sW}, 36864\ns_add_u32 s{sXW}, s{sXo}, s56")
    A(f"s_mov_b32 s{sC2}, s{sC}\ns_mov_b32 s{sC2 + 1}, s{sC}")
    slab_offsets(A, vS)
    A("v_lshrrev_b32 v1, 3, v0\nv_and_b32 v2, 7, v0\nv_lshrrev_b32 v3, 4, v0\nv_mul_u32_u24 v20, 1152, v1")
    for g in range(4):
        A(f"v_add_u32 v17, {4 * g}, v3\nv_and_b32 v17, 7, v17\nv_xor_b32 v17, v17, v2\nv_lshlrev_b32 v17, 4, v17")
        A(f"v_add_u32 v17, {g * (9216 - 1024)}, v17\nv_add_u32 v{vXo + g}, v17, v20")
    rows = 576 // nsh
    A(f"v_lshrrev_b32 v16, 3, v0\nv_lshlrev_b32 v16, 13, v16\nv_and_b32 v17, 7, v0\nv_lshl_add_u32 v16, v17, 7, v16")
    rw = rows // cfg.NR // 3
    A(f"s_and_b32 s56, s{sB}, {nsh - 1}\ns_mul_i32 s56, s56, 3\ns_add_u32 s56, s56, s{sW}\ns_mul_i32 s56, s56, {rw * 8192}\ns_add_u32 s98, s56, s{sWQo}")
    assert rw <= 8
    A(f"v_mov_b32 v17, 0x7fffff00\nv_cmp_gt_u32 vcc, {rw * 8}, v0\ns_nop 0\nv_cndmask_b32 v{P0 + 10}, v17, v16, vcc")
    if cfg.pfc:
        A(f"s_cmp_lg_u32 s{sW}, 2\ns_cbranch_scc1 L_nopfc")
        code_warm(A, NEGM + 2, NEGM + 4, cfg.codesh)
        A("L_nopfc:")
    descriptors(A)
    lin = []

    def x_request(t):
        l = [f"s_add_u32 m0, s{sT4K}, {pl.xt[t]}", f"s_add_u32 s{sTMP}, s{sXW}, {t * 128}"]
        if not cfg.noload:
            l += [(f"buffer_load_dwordx4 v{vXo + k}, {srd(SX)}, s{sTMP} offen offset:{k * 1024}{cfg.xf} lds", ("x", 4 * t)) for k in range(4)]
        return l

    def now(l):
        for o in l:
            if isinstance(o, tuple):
                A(o[0])
                lin.append(o[1])
            else:
                A(o)
    KS = cfg.KS
    rs = lambda l: [(o[0], ("c", o[1][1] // KS)) if isinstance(o, tuple) else o for o in l]
    vTA, vTB, vFA = P0 + 10, P0 + 11, P0 + 12
    tq, late_t = {}, []
    if cfg.pf:
        for r in range(cfg.NR):
            l = [f"s_add_u32 s99, s98, {r * (576 // cfg.NR) * 8192}", (f"buffer_load_dword v{NEGM}, v{vTA}, {srd(SWQ)}, s99 offen", None)]
            b = r * (NQ // KS) // cfg.NR - cfg.pflead
            if r < cfg.tfirst:
                now(l)
            elif b <= 0:
                late_t += l
            else:
                tq[b] = l
    now(rs(slab_request(cfg, 0, pl, vS, "c") + x_request(0)))
    for ks in range(1, KS):
        now(rs(slab_request(cfg, ks, pl, vS, "c")))
    rest = list(late_t)
    for ks in range(KS, nsl):
        rest += rs(slab_request(cfg, ks, pl, vS, "c"))
    if cfg.pfx:
        xr = 96 // (32 // nsh) // 3
        vTX_ = P0 + 13
        A(f"v_lshrrev_b32 v17, 2, v0\nv_mul_u32_u24 v17, 1152, v17\nv_and_b32 v{vTX_}, 3, v0\nv_lshl_add_u32 v{vTX_}, v{vTX_}, 7, v17")
        A(f"s_and_b32 s57, s{sCU}, {32 // nsh - 1}\ns_mul_i32 s57, s57, 3\ns_add_u32 s57, s57, s{sW}\ns_mul_i32 s57, s57, {xr * 1152}\ns_add_u32 s101, s57, s{sXo}")
        assert xr == 16
        tx = [(f"buffer_load_dword v{NEGM}, v{vTX_}, {srd(SX)}, s101 offen offset:{128 + 512 * i}", None) for i in range(2)]
        rest = (tx + rest) if cfg.pfx == 1 else (rest + tx)
    xreq = {}
    for t in range(1, 9):
        b = max((4 * t - cfg.xlead) // KS, (4 * (t - 3) + 3) // KS + 1 if t >= 3 else 0)
        if b <= 0:
            rest += rs(x_request(t))
        else:
            xreq[b] = t
    A(f"v_and_b32 v{vFA}, 7, v0\nv_lshlrev_b32 v{vFA}, 2, v{vFA}")
    fo = (f"buffer_load_dword v{vFL}, v{vFA}, {srd(SWS)}, s{sFLG} offen sc1", ("c", cfg.cnt_at))
    if cfg.flagfirst:
        now([fo])
    else:
        rest.append(fo)
    if not cfg.lazy:
        now(rest)
        rest = []
    v_patterns(A)
    x16_patterns(A, pK, sT4K)
    slab_patterns(A, pS)
    A(f"v_lshlrev_b32 v{vST}, 4, v0\nv_add_u32 v{pQ}, s{sT4K}, v{vST}")
    A(f"s_mul_i32 s56, s{sPAIR}, 884736\ns_lshl_b32 s57, s{sW}, 15\ns_add_u32 s56, s56, s57\ns_lshl_b32 s57, s{sCU}, 12\ns_add_u32 s{sWSo}, s56, s57")
    if not cfg.alt:
        for i in range(4):
            A(f"v_mov_b32 v{NEGM + 12 + i}, 0")
        for i in range(128, STASH):
            if not cfg.mzero:
                A(f"v_accvgpr_write_b32 a{i}, 0")
            elif i % 16 == 0:
                A(zero16(i))
        for i in range(4, 32):
            A(f"v_mov_b32 v{OUTV + i}, 0")
    for p in pK + pV + pS + pWo + [pQ]:
        sc.bias[p] = 0
    qops, qf = [], {}
    k = -cfg.LA + 1
    for o in rest:
        qf.setdefault(min(k, 12 * KS - cfg.LB - 1), []).append(o)
        k += isinstance(o, tuple)
    for ks in range(NQ):
        k2 = ks >> 1
        xb = S0 + 8 * (k2 % 4)
        tiles = (list(range(8, 24)) + list(range(8))) if k2 < NQ // 2 - 1 else list(range(24))
        for n_, dt in enumerate(tiles[12 * (ks & 1):12 * (ks & 1) + 12]):
            a = pl.slab[2 * k2 + (dt >> 4)] + ((dt >> 3) & 1) * 256
            mm = []
            for e in range(2):
                d = R("v", O0 + 8 * dt + 4 * e, 4) if dt < 8 else R("a", 8 * (dt - 8) + 4 * e, 4)
                mm.append((d, R("v", xb + 4 * e, 4), "0" if k2 == 0 else d))
            o = dict(step=k2, a=[("tr", pS[dt & 7], a), ("tr", pS[dt & 7], a + 2048)], mm=mm)
            if n_ == 0 and not ks & 1:
                o["x"] = [(xb + 4 * e, pK[k2 & 1], pl.xt[k2 >> 1] + 2048 * e) for e in range(2)]
            qops.append(o)
        if ks % KS == 0 and ks:
            l = []
            for k2 in range(ks - KS + nsl, min(NQ, ks + nsl)):
                l += rs(slab_request(cfg, k2, pl, vS, "c"))
            if ks // KS in xreq:
                l += rs(x_request(xreq[ks // KS]))
            l += tq.get(ks // KS, [])
            k = 12 * ks - cfg.LB
            nv = sum(isinstance(o, tuple) for o in l)
            sp = min(cfg.dsp, (12 * KS - 1) / max(nv, 1))
            kk = 0
            for o in l:
                qf.setdefault(k + int(kk * sp), []).append(o)
                kk += isinstance(o, tuple)
    n = 12 * NQ
    for b in range(4):
        spread(qf, conv_q(b), n - 16 + 4 * b, n - 13 + 4 * b)
    emit_slots(cfg, sc, qops, qf, {}, -cfg.LA, n, dict(rd=0, step=-1, lin=lin, tag="c"), [], {0: 0})
    if not cfg.nobar:
        A("s_waitcnt lgkmcnt(0)\ns_barrier")
    if cfg.trace in ("head", "head2"):
        if cfg.trace == "head":
            A(f"s_memrealtime s[60:61]\ns_waitcnt lgkmcnt(0)\nv_writelane_b32 v{NEGM + 1}, s60, 36\nv_writelane_b32 v{NEGM + 1}, s101, 37")
        A(f"v_lshlrev_b32 v1, 2, v0\ns_lshl_b32 s62, s2, 10\ns_lshl_b32 s63, s{sW}, 8\ns_add_u32 s62, s62, s63\ns_add_u32 s62, s62, {STAMP_BASE}")
        A(f"buffer_store_dword v{NEGM + 1}, v1, {srd(SWS)}, s62 offen\ns_waitcnt vmcnt(0)")

    def pack(hd, ds, e):
        l = []
        for x in range(2):
            r = 64 * hd + 8 * (2 * ds + x) + 4 * e
            l += [f"v_accvgpr_read_b32 v{TMP + k}, a{r + k}" for k in range(4)]
            l += [f"v_accvgpr_write_b32 a{r + k}, 0" for k in range(4) if not (cfg.alt or cfg.mzero)]
            l += [f"v_pk_mul_f32 v[{TMP + k}:{TMP + k + 1}], v[{TMP + k}:{TMP + k + 1}], s[{sC2}:{sC2 + 1}]" for k in (0, 2)]
            l += [f"v_cvt_pk_bf16_f32 v{TMP + 4 + 2 * x + y}, v{TMP + 2 * y}, v{TMP + 2 * y + 1}" for y in range(2)]
        return l + ["s_nop 0", f"v_permlane16_swap_b32 v{TMP + 4}, v{TMP + 6}", f"v_permlane16_swap_b32 v{TMP + 5}, v{TMP + 7}"]
    lumps = {}
    for part in range(8):
        lumps[16 * (2 + part // 2) + 2 + 6 * (part & 1)] = pack(0, part >> 1, part & 1) + [
            f"v_accvgpr_write_b32 a{STASH + 4 * part + k}, v{TMP + 4 + k}" for k in range(4)]
    for p, s0 in ((0, QS0), (1, QS1)):
        for fr in range(4):
            lumps[16 * (s0 - 1 + fr // 2) + 2 + 6 * (fr & 1)] = pack(1, 2 * p + (fr >> 1), fr & 1) + [
                f"ds_write_b128 v{pQ}, {R('v', TMP + 4, 4)} offset:{fr * 1024}"]
    if cfg.onelump:
        merged = {}
        for k in sorted(lumps):
            merged.setdefault(16 * (k // 16) + 4, []).extend(lumps[k])
        lumps = merged
        if cfg.mzero and not cfg.alt:
            for n_, k in enumerate(sorted(lumps)):
                lumps[k].append(zero16(16 * n_))
    if not cfg.alt:
        for i in range(4):
            A(f"v_mov_b32 v{OUTV + i}, 0")
    k_patterns(A, False)
    wo_shift(A)
    for p in pK:
        sc.bias[p] = 0
    for p in pV + pWo:
        sc.rebias(p, 0)
    sc.rebias(pQ, QB)
    for p in pS:
        del sc.bias[p]
    bias0 = dict(sc.bias)
    sc.nbuf = 0
    ops = item_ops(addr, cfg.merge)
    st = dict(rd=0, step=-1, lin=[], tag="c")
    emit_slots(cfg, sc, ops, {}, {}, -cfg.LA, 0, st, [], {0: 1})
    assert st["rd"] == cfg.LA and 400 % cfg.NB == 0
    bias1 = dict(sc.bias)
    head, pend0 = lgkm_pass(sc.out.ins)
    assert len(pend0) == cfg.LA
    head, nh = hazard_pass(head, verbose=cfg.dbg == "nops")
    sc.out = Prog()
    fill = {}
    split = 272
    post = item_fill(cfg, ops, fill)
    for s_, l in lumps.items():
        fill.setdefault(s_, []).append(f"s_cmp_lg_u32 s{sIT}, 0\ns_cbranch_scc1 L_lump{s_}\n" + "\n".join(l) + f"\nL_lump{s_}:")
    stubs = []
    sc.out("L_item:")
    st["lin"] = []
    st["alts"] = [] if cfg.alt else None
    emit_slots(cfg, sc, ops, fill, post, 0, split, st, stubs, {16: 2})
    sc.out(f"s_cmp_lg_u32 s{sIT}, 3\ns_cbranch_scc1 L_more")
    common, pend = lgkm_pass_skips(sc.out.ins, pend0)
    common, n0 = hazard_pass(common, history=head[-20:], verbose=cfg.dbg == "nops")
    sa = copy.deepcopy(sc)
    sa.out = Prog()
    sa.out("L_warm_more:\ns_setpc_b64 s[40:41]\nL_more:")
    fa = {k: list(v) for k, v in fill.items()}
    for p, r0, m0 in ((0, 288, 302), (1, 352, 365)):
        spread(fa, [(lambda s_, i=i, p=p: s_.lds("ds_read_b128", R("v", Q0 + 16 * p + 4 * i, 4), pQ, QB + i * 1024)) for i in range(4)], r0, r0 + 3)
        mv_ = "\n".join(f"v_accvgpr_read_b32 v{Q0 + 16 * p + i}, a{STASH + 16 * p + i}" + ("" if cfg.alt or cfg.mzero else f"\nv_accvgpr_write_b32 a{STASH + 16 * p + i}, 0") for i in range(16))
        if cfg.mzero and not cfg.alt:
            mv_ += "\n" + zero16(STASH + 16 * p) + "\ns_nop 9"
        fa.setdefault(m0, []).append(f"s_cmp_lg_u32 s{sIT}, 0\ns_cbranch_scc1 L_lumpm{p}\n{mv_}\nL_lumpm{p}:")
    sta = copy.deepcopy(st)
    sta["rebias"] = bias0
    fa.setdefault(390, []).append(f"s_add_u32 s{sIT}, s{sIT}, 1")
    emit_slots(cfg, sa, copy.deepcopy(ops), fa, {}, split, 400, sta, stubs, {25: 1}, nextops=copy.deepcopy(ops[:cfg.LA]))
    assert sa.bias == bias1 and sta["rd"] == 400 + cfg.LA
    if cfg.trace is True:
        sa.out(f"s_cmp_lg_u32 s{sIT}, {cfg.trace_it + 1}\ns_cbranch_scc1 L_notr\nv_lshlrev_b32 v1, 2, v0\ns_lshl_b32 s62, s2, 10\ns_lshl_b32 s63, s{sW}, 8\ns_add_u32 s62, s62, s63\ns_add_u32 s62, s62, {STAMP_BASE}")
        sa.out(f"buffer_store_dword v2, v1, {srd(SWS)}, s62 offen\ns_waitcnt vmcnt(0)\nL_notr:")
    sa.out("s_branch L_item")
    conta, pe = lgkm_pass_skips(sa.out.ins, pend)
    assert pe == pend0[len(pend0) - len(pe):]
    conta, n1 = hazard_pass(conta, history=common[-20:], verbose=cfg.dbg == "nops")
    sb = copy.deepcopy(sc)
    sb.out = Prog()
    fb = {k: list(v) for k, v in fill.items()}
    last_fill(cfg, fb)
    emit_slots(cfg, sb, copy.deepcopy(ops), fb, {}, split, 400, dict(copy.deepcopy(st), alts=None), stubs)
    T = sb.out
    stamp(cfg, T, 3, 0)
    stamp(cfg, T, 4, 0)
    finish_unit(cfg, T, "c", 7, OUTV, sW, sCU, True)
    contb, _ = lgkm_pass(sb.out.ins, pend)
    contb, n2 = hazard_pass(contb, history=common[-20:], verbose=cfg.dbg == "nops")
    stb = Prog()
    for tag, p in stubs:
        stb(f"L_stub_{tag}:\ns_call_b64 s[40:41], L_rare{p}\ns_branch L_back_{tag}")
    info = dict(nops=(nh, n0, n1, n2), est_head=est_cycles(head), est_item=est_cycles(common + conta))
    return head + common + contb + conta + stb.ins + rare_routine(0) + rare_routine(1), info


def lgkm_pass_skips(ins, pending):
    out, seg, pend = [], [], pending
    i = 0
    while i < len(ins):
        x = ins[i]
        if x.kind == "branch" and ("L_lump" in x.text or "L_st0" in x.text or "L_st1" in x.text):
            o, pend = lgkm_pass(seg + [x], pend)
            out += o
            lab = x.text.split()[-1] + ":"
            j = next(k for k in range(i, len(ins)) if ins[k].text == lab)
            o, _ = lgkm_pass(ins[i + 1:j + 1], pend)
            out += o
            seg = []
            i = j + 1
            continue
        seg.append(x)
        i += 1
    o, pend = lgkm_pass(seg, pend)
    return out + o, pend


def generate(cfg):
    pl = plan(cfg)
    P = Prog()
    prologue(cfg, P)
    pro, _ = hazard_pass(P.ins)
    comp, info = compute(cfg, pl)
    w3, info3 = wave3(cfg, pl)
    info.update(info3)
    s = HDR + "; @launch grid=(256,1,1) block=(256,1,1) lds=163840\n"
    s += '.amdgcn_target "amdgcn-amd-amdhsa--gfx950"\n.text\n'
    s += f".globl {KNAME}\n.p2align 8\n.type {KNAME},@function\n{KNAME}:\n"
    s += render(pro) + render(comp) + render(w3) + "L_done:\n    s_endpgm\n"
    s += '.section .rodata,"a"\n.p2align 6\n' + kd(KNAME, 512, 256)
    return s, info, pl


if __name__ == "__main__":
    import build
    name = sys.argv[1]
    kw = {}
    for a in sys.argv[2:]:
        k, v = a.split("=", 1)
        try:
            v = eval(v)
        except Exception:
            pass
        kw[k] = v
    s, info, _ = generate(Cfg(**kw))
    open(name, "w").write(s)
    print(info)
    build.build(name)
```

```python
import re, sys
import gen9a as gen5, gen9b as gen6
from gen9a import *
from asmlib import Prog, hazard_pass, render

DOC = """;
;               registers / LDS; the other half (M_ labels): all four Q are projected up front, wave 3 only streams
"""


def generate(kw5, kw6, sel="j1"):
    c5, c6 = gen5.Cfg(codesh=16, **kw5), gen6.Cfg(codesh=16, **kw6)
    P = Prog()
    prologue(c5, P)
    last = P.ins[-2:]
    P.ins = P.ins[:-2]
    if sel == "j1":
        P(f"s_and_b32 s56, s{sJ}, 1\ns_cbranch_scc1 M_entry")
    elif sel == "j0":
        P(f"s_and_b32 s56, s{sJ}, 1\ns_cbranch_scc0 M_entry")
    P.ins += last
    pro, _ = hazard_pass(P.ins)
    pl5, pl6 = gen5.plan_ring(c5), gen6.plan(c6)
    a, i5 = gen5.compute(c5, pl5); b, _ = gen5.wave3(c5, pl5)
    c, i6 = gen6.compute(c6, pl6); d, _ = gen6.wave3(c6, pl6)
    body6 = "M_entry:\n" + render(last) + render(c) + render(d) + "L_done:\n    s_endpgm\n"
    body6 = re.sub(r"\bL_", "M_", body6)
    s = HDR + "; @launch grid=(256,1,1) block=(256,1,1) lds=163840\n" + DOC
    s += '.amdgcn_target "amdgcn-amd-amdhsa--gfx950"\n.text\n'
    s += f".globl {KNAME}\n.p2align 8\n.type {KNAME},@function\n{KNAME}:\n"
    s += render(pro) + render(a) + render(b) + "L_done:\n    s_endpgm\n" + body6
    s += '.section .rodata,"a"\n.p2align 6\n' + kd(KNAME, 512, 256)
    return s, (i5, i6)

if __name__ == "__main__":
    import build
    name = sys.argv[1]
    kw5, kw6, sel = {}, {}, "j1"
    for a in sys.argv[2:]:
        k, v = a.split("=", 1)
        try: v = eval(v)
        except Exception: pass
        if k == "sel": sel = v
        elif k.startswith("5."): kw5[k[2:]] = v
        elif k.startswith("6."): kw6[k[2:]] = v
        else: kw5[k] = v; kw6[k] = v
    s, info = generate(kw5, kw6, sel)
    open(name, "w").write(s); print(info); build.build(name)
```

```python
import copy
import sys

import gen9a as G
from gen9a import *
from asmlib import Prog, parse, lgkm_pass, hazard_pass, render, est_cycles, R


class Cfg(G.Cfg):
    colors = "abcdfehgiacbfhicdegfhiegi"
    reqs = (13, 15, 17, 19, 21, 23, 24, 0, 1, 2, 3, 4, 5, 7, 9, 11) + (6, 8, 10, 13, 14, 16, 18, 20, 22)
    kvq = (20, 26, 32, 32, 32, 34, 34)
    xlead = 8
    slabs = "dfehgi"
    pf_wo_step = 19
    pf_wo_q = 16
    first_x = 1
    KS = 2
    xslots = "c"
    cnt_at = 2
    pk = True
    merge = True
    mzero = True
    onelump = True
    alt = False
    cap = 0
    flagfirst = True
    tfirst = 1
    dsp = 2
    NR = 3
    pflead = 4
    lazy = True

    def __init__(self, **kw):
        for k, v in kw.items():
            assert hasattr(Cfg, k), k
            setattr(self, k, v)


QB = 9 * 16384
NQ = 36
STASH = 224


class Plan:
    pass


def plan(cfg):
    pl = Plan()
    grp = [[("k", 0, 0), ("k", 0, 1), ("k", 1, 0), ("k", 1, 1)]]
    for u in range(1, 15):
        grp.append([("k", u + 1, 0), ("k", u + 1, 1), ("v", u - 1, 0), ("v", u - 1, 1)])
    grp.append([("v", 14, 0), ("v", 14, 1), ("v", 15, 0), ("v", 15, 1)])
    for t in range(9):
        grp.append([("wo", t, rb) for rb in range(4)])
    ns = len(grp)
    slot = lambda c: (ord(c) - 97) * 16384
    addr = {q: slot(cfg.colors[s]) + k * 4096 for s, g in enumerate(grp) for k, q in enumerate(g)}
    req = {b: [] for b in range(ns)}
    for g in range(ns):
        gap = next(d for d in range(1, ns + 1) if cfg.colors[(g - d) % ns] == cfg.colors[g])
        lead = (g - cfg.reqs[g]) % ns
        assert 1 <= lead <= gap - 1 - (cfg.merge and (g - gap) % ns == 16), (g, lead, gap)
        assert not (cfg.merge and g == 17) or lead >= 2
        req[cfg.reqs[g]].append((g, g - lead < 0))
    for b in req:
        req[b].sort(key=lambda e: (e[0] < 16, e[1]))
    pl.pro = [g for b in range(ns) for g, w in req[b] if w]
    if cfg.slabs == "auto":
        first = sorted(set(cfg.colors), key=lambda c: min((cfg.reqs[g] - 13) % ns for g in range(ns) if cfg.colors[g] == c and (g < 16 or cfg.reqs[g] < 13)))
        cfg.xslots = first[3] + first[2]
        cfg.slabs = first[8] + "".join(first[4:8])
    pl.slab = [slot(cfg.slabs[k % len(cfg.slabs)]) for k in range(NQ)]
    xs = [QB] + [slot(c) for c in cfg.xslots]
    pl.xt = [xs[(8 - t) % len(xs)] for t in range(9)]
    KS = cfg.KS
    pl.kvq = {}
    pl.late = []
    for g in sorted(pl.pro):
        a = addr[grp[g][0]]
        busy = max([4 * t + 3 for t in range(9) if pl.xt[t] == a] + [k for k in range(NQ) if pl.slab[k] == a] + [-1])
        b = max(cfg.kvq[g] // KS, busy // KS + 1)
        pl.kvq.setdefault(b, []).append(g)
    pl.grp, pl.addr, pl.req = grp, addr, req
    return pl


def slab_patterns(A, regs):
    A("v_lshrrev_b32 v1, 4, v0\nv_bfe_u32 v2, v0, 2, 2\nv_lshl_add_u32 v16, v1, 3, v2\nv_lshlrev_b32 v16, 9, v16\nv_lshl_add_u32 v16, v2, 6, v16")
    A(f"v_and_b32 v2, 1, v1\nv_lshl_add_u32 v16, v2, 5, v16\nv_and_b32 v2, 3, v0\nv_lshl_add_u32 v{regs[0]}, v2, 3, v16")
    for j in range(1, 8):
        A(f"v_xor_b32 v{regs[j]}, {32 * j}, v{regs[0]}")


def slab_offsets(A, base):
    A(f"v_lshrrev_b32 v1, 5, v0\nv_and_b32 v2, 31, v0\nv_lshlrev_b32 v16, 2, v1\nv_xor_b32 v2, v2, v16\ns_and_b32 s56, s{sW}, 1\ns_lshl_b32 s56, s56, 1")
    A("v_xor_b32 v2, s56, v2\nv_lshlrev_b32 v2, 4, v2\nv_lshl_add_u32 v2, v1, 13, v2")
    for k in range(4):
        A(f"v_xor_b32 v17, {128 * (k & 1)}, v2\nv_add_u32 v{base + k}, {k * (16384 - 1024)}, v17")


def slab_request(cfg, ks, pl, vs, tag):
    l = [f"s_add_u32 m0, s{sT4K}, {pl.slab[ks]}", f"s_add_u32 s{sTMP}, s{sSL}, {(ks >> 1) * 32 * 8192 + (ks & 1) * 512}"]
    if not cfg.noload:
        l += [(f"buffer_load_dwordx4 v{vs + k}, {srd(SWQ)}, s{sTMP} offen offset:{k * 1024}{cfg.wf} lds", (tag, ks)) for k in range(4)]
    return l


sSL, sXW, sC2 = 90, 91, 96


vK3, vV3, vWo3, vS3 = 24, 28, 60, 32
pS3 = [6, 7, 8, 9, 10, 11, 60, 61]
vV3x = 3
A3, B3, ACC3 = 36, 40 + 0, 64


def wave3(cfg, pl):
    addr = pl.addr
    sc = Sched(cfg)
    A = sc.out
    ns = len(pl.grp)
    nsl = len(cfg.slabs)
    AF = [36, 40, 44]
    BF = [48, 52, 56, 12, 16, 20]
    vFL3 = 63
    A("L_loader:")
    A(f"s_lshl_b32 s{sT4K}, s{sW}, 12\ns_add_u32 s{sSL}, s{sWQo}, {24 * 8192}")
    slab_offsets(A, vS3)
    descriptors(A)
    rotation(cfg, A)
    lin = []

    def put(sc_, o, gen=0):
        if isinstance(o, tuple):
            sc_.out(o[0])
            lin.append((o[1], gen))
        elif callable(o):
            o(sc_)
        else:
            sc_.out(o)

    def wait_for(sc_, keys, extra=""):
        idx = [k for k, e in enumerate(lin) if e[0] in keys and e[1] == 0]
        w = f"vmcnt({min(63, len(lin) - 1 - max(idx))}) " if idx else ""
        if w or extra:
            sc_.out("s_waitcnt " + w + extra)

    def quad_ops(q):
        k = q[0]
        pre = []
        if k == "k":
            pre, off = kv_soffset(q[1], q[2])
            base, v, sr, fl = sTMP, [vK3 + g for g in range(4)], SK, cfg.kvf
        elif k == "v":
            pre, off = kv_soffset(q[1], q[2])
            base, v, sr, fl = sTMP, [vV3, vV3x] * 2, SV, cfg.kvf
        else:
            pre = [f"s_add_u32 s{sXW}, s{sWOo}, s{sTC + q[1]}"] if q[2] == 0 else []
            off, base, v, sr, fl = q[2] * 32 * 1152, sXW, [vWo3 + g for g in range(4)], SWO, cfg.wf
        l = pre + [f"s_mov_b32 m0, {addr[q]}", f"s_add_u32 s{sTMP}, s{base}, {off}"]
        if not cfg.noload:
            l += [(f"buffer_load_dwordx4 v{v[g]}, {srd(sr)}, s{sTMP} offen offset:{g * 1024}{fl} lds", q) for g in range(4)]
        return l

    if stamp(cfg, A, 15, 1):
        lin.append((None, 0))
    lin += [(None, 0)] * tlb_warm(cfg, A, 62, 61)
    for ks in range(cfg.KS if cfg.lazy else nsl):
        for o in slab_request(cfg, ks, pl, vS3, "s"):
            put(sc, o)
    A(f"v_and_b32 v1, 7, v0\nv_lshlrev_b32 v1, 2, v1\nbuffer_load_dword v{vFL3}, v1, {srd(SWS)}, s{sFLG} offen sc1")
    lin.append(("flag", 0))
    x16_patterns(A, pK)
    slab_patterns(A, pS3)
    kv_offsets(A, vK3, vV3)
    A(f"v_xor_b32 v{vV3x}, 32, v{vV3}")
    for g in range(1, 4):
        A(f"v_xor_b32 v{vK3 + g}, {KX[g]}, v{vK3}")
    nsh = {"16x8": 16, "8x16": 8, "4x32": 4}[cfg.mapping]
    vTO3, vDUM3, pQ3_ = 29, 30, 31
    A(f"s_and_b32 s56, s{sB}, {nsh - 1}\nv_mov_b32 v17, 0x7fffff00\nv_cmp_gt_u32 vcc, 36, v0\nv_lshlrev_b32 v{vTO3}, 7, v0")
    A(f"s_mul_i32 s57, s56, {(576 // nsh) * 256}\nv_add_u32 v{vTO3}, s57, v{vTO3}\nv_cndmask_b32 v{vTO3}, v17, v{vTO3}, vcc")

    def touch_wo(add):
        l = []
        if cfg.pf:
            for i in range(1152 // nsh // 36):
                l.append(f"s_add_u32 s{sTMP}, s{sWOo}, {i * 36 * 128 + add}")
                l.append((f"buffer_load_dword v{vDUM3}, v{vTO3}, {srd(SWO)}, s{sTMP} offen", None))
        return l
    for p in pK + pS3:
        sc.bias[p] = 0
    assert cfg.KS == 2
    ops = [dict(k2=k2, dt=dt, j=j) for k2 in range(NQ // 2) for dt in range(8) for j in range(3)]
    LB3 = 4
    queue = []
    st = dict(step=-1, rdA=0, rdB=0, na=0)

    def drain(sc_, n):
        while queue and n > 0:
            o, g = queue.pop(0)
            put(sc_, o, g)
            n -= isinstance(o, tuple)

    KS = cfg.KS
    for i in range(-LB3, 12 * NQ):
        nx = st["step"] + 1
        if nx < NQ // KS and i >= 12 * KS * nx - LB3:
            drain(sc, 99)
            if cfg.trace == "head2":
                A(f"s_memtime s[60:61]\ns_waitcnt lgkmcnt(0)\nv_writelane_b32 v62, s60, {nx}")
            wait_for(sc, {("s", KS * nx + KS - 1)} | ({"flag"} if nx == cfg.cnt_at else set()), "lgkmcnt(0)")
            if cfg.trace == "head2":
                A(f"s_memtime s[60:61]\ns_waitcnt lgkmcnt(0)\nv_writelane_b32 v62, s60, {32 + nx}")
            if not cfg.nobar:
                A("s_barrier")
            st["step"] = nx
            if nx == cfg.cnt_at:
                A(f"s_lshl_b32 s56, s{sPAIR}, 2\nv_mov_b32 v1, s56\nv_mov_b32 v2, 1\ns_mov_b64 exec, 1")
                put(sc, (f"buffer_atomic_add v2, v1, {srd(SDB)}, 0 offen offset:{128 if cfg.dstamp else 0} sc1", None))
                A("s_mov_b64 exec, -1")
            for ks in range(KS * (nx - 1) + nsl if nx else KS, min(NQ, KS * nx + nsl)):
                if nx or cfg.lazy:
                    queue.extend((o, 0) for o in slab_request(cfg, ks, pl, vS3, "s"))
            if nx == cfg.pf_wo_q // KS:
                queue.extend((o, 0) for o in touch_wo(0))
            for g in pl.kvq.get(nx, []):
                for q in pl.grp[g]:
                    queue.extend((o, 0) for o in quad_ops(q))
        while st["rdB"] < 3 * (NQ // 2) and st["rdB"] // 3 <= st["step"] and 24 * (st["rdB"] // 3) + st["rdB"] % 3 - 2 <= max(i, -2 + st["rdB"] if st["rdB"] < 3 else i):
            k2, j = divmod(st["rdB"], 3)
            for e in range(2):
                sc.lds("ds_read_b128", R("v", BF[2 * j + e], 4), pK[k2 & 1], pl.xt[k2 >> 1] + (2 * j + e) * 2048)
            st["rdB"] += 1
        while st["rdA"] < 12 * NQ and st["rdA"] <= i + 5 and ops[st["rdA"]]["k2"] <= st["step"]:
            o = ops[st["rdA"]]
            fb = AF[st["na"] % 3]
            st["na"] += 1
            a = pl.slab[2 * o["k2"] + 1] + 256
            sc.lds("ds_read_b64_tr_b16", R("v", fb, 2), pS3[o["dt"]], a)
            sc.lds("ds_read_b64_tr_b16", R("v", fb + 2, 2), pS3[o["dt"]], a + 2048)
            for d in range(3):
                ops[st["rdA"] + d]["areg"] = fb
            st["rdA"] += 3
        if i < 0:
            continue
        o = ops[i]
        for e in range(2):
            if e:
                left = 12 * KS * (st["step"] + 1) - LB3 - i
                nv = sum(isinstance(o_, tuple) for o_, g in queue)
                if nv > left:
                    drain(sc, -(-nv // max(left, 1)))
                elif i % cfg.dsp == 0 or nv * cfg.dsp > left:
                    drain(sc, 1)
            d = R("v", ACC3 + 4 * (6 * o["dt"] + 2 * o["j"] + e), 4)
            A(f"{MF16} {d}, {R('v', o['areg'], 4)}, {R('v', BF[2 * o['j'] + e], 4)}, {'0' if o['k2'] == 0 else d}")
    drain(sc, 99)
    if cfg.trace == "head2":
        A(f"v_lshlrev_b32 v1, 2, v0\ns_lshl_b32 s62, s2, 10\ns_add_u32 s62, s62, {STAMP_BASE + 768}")
        A(f"buffer_store_dword v62, v1, {srd(SWS)}, s62 offen\ns_waitcnt vmcnt(0)")
    A("s_waitcnt lgkmcnt(0)")
    if not cfg.nobar:
        A("s_barrier")
    if cfg.pf_wo_q >= NQ:
        for o in touch_wo(0):
            put(sc, o)
    for g in pl.kvq.get(NQ // KS, []):
        for q in pl.grp[g]:
            for o in quad_ops(q):
                put(sc, o)

    def conv3(b, j):
        l = []
        for e in range(2):
            r0, r1 = (ACC3 + 4 * (6 * (2 * b + x) + 2 * j + e) for x in range(2))
            l += [f"v_mul_f32 v{r + i}, s{sC}, v{r + i}" for r in (r0, r1) for i in range(4)]
            l += [f"v_cvt_pk_bf16_f32 v{r + y}, v{r + 2 * y}, v{r + 2 * y + 1}" for r in (r0, r1) for y in range(2)]
            l += ["s_nop 0", f"v_permlane16_swap_b32 v{r0}, v{r1}", f"v_permlane16_swap_b32 v{r0 + 1}, v{r1 + 1}"]
            l += [f"v_accvgpr_write_b32 a{96 + 4 * (8 * j + 2 * b + e) + k}, v{(r0, r0 + 1, r1, r1 + 1)[k]}" for k in range(4)]
        return l
    post = ["v_lshrrev_b32 v1, 3, v0\nv_and_b32 v2, 7, v0\nv_lshrrev_b32 v16, 4, v0\nv_and_b32 v16, 1, v16\nv_lshlrev_b32 v16, 2, v16",
            f"v_mov_b32 v{vFL}, v{vFL3}\nv_lshrrev_b32 v17, 5, v0\nv_lshlrev_b32 v17, 1, v17\nv_xor_b32 v16, v16, v17",
            "v_xor_b32 v16, v16, v2\nv_lshlrev_b32 v16, 4, v16\nv_mul_u32_u24 v17, 1152, v1\nv_add_u32 v16, v16, v17"]
    post += [f"v_add_u32 v{vWo3 + g}, {g * 8192}, v16" for g in range(4)]
    post += [
             f"v_lshlrev_b32 v{pQ3_}, 4, v0\nv_add_u32 v{pQ3_}, {QB}, v{pQ3_}"]
    for o in post:
        A(o)
    head, pend = lgkm_pass(sc.out.ins)
    assert not pend
    pro = [q for b in sorted(pl.kvq) for g in pl.kvq[b] for q in pl.grp[g]]

    def period(last, pro_):
        nonlocal lin
        sc2 = Sched(cfg)
        B = sc2.out
        lin = [(q, 0) for q in pro_ for g in range(4)] if not cfg.noload else []
        wrapped = False
        for s in range(ns):
            if cfg.trace is True:
                B(f"s_memtime s[60:61]\ns_waitcnt lgkmcnt(0)\nv_writelane_b32 v2, s60, {s}")
            wait_for(sc2, set(pl.grp[s]) | (set(pl.grp[17]) if cfg.merge and s == 16 else set()), "lgkmcnt(0)")
            if cfg.trace is True:
                B(f"s_memtime s[60:61]\ns_waitcnt lgkmcnt(0)\nv_writelane_b32 v2, s60, {32 + s}")
            if s in (0, 16) and stamp(cfg, B, {0: 1, 16: 2}[s], 1):
                lin.append((None, 0))
            if last and s == 16:
                B("v_readfirstlane_b32 s57, v17\ns_mov_b32 s58, 0\nL_chk:\ns_cmp_ge_u32 s57, 8\ns_cbranch_scc1 L_chkend")
                B(f"buffer_load_dword v17, v16, {srd(SDB)}, 0 offen offset:{128 if cfg.dstamp else 0} sc1\ns_add_u32 s58, s58, 1\ns_waitcnt vmcnt(0)\nv_readfirstlane_b32 s57, v17")
                B("s_cmp_lt_u32 s58, 0x80000\ns_cbranch_scc1 L_chk\nL_chkend:")
            if not cfg.nobar:
                B("s_barrier")
            for g, w in pl.req[s]:
                if w and not wrapped:
                    wrapped = True
                    B(f"s_add_u32 s{sKV}, s{sKV}, 0x20000")
                assert g >= 16 or w == wrapped
                if not (last and w):
                    for q in pl.grp[g]:
                        if cfg.cap and g < 16:
                            B(f"s_waitcnt vmcnt({cfg.cap - 4})")
                        for o in quad_ops(q):
                            put(sc2, o, int(w))
            if last and s == 2:
                B(f"s_lshl_b32 s56, s{sPAIR}, 2\nv_mov_b32 v16, s56")
                put(sc2, (f"buffer_load_dword v17, v16, {srd(SDB)}, 0 offen offset:{128 if cfg.dstamp else 0} sc1", None))
            if s == cfg.pf_wo_step and not last:
                for o in touch_wo(147456):
                    put(sc2, o)
            if cfg.warm and s == 9 and not last:
                B("s_call_b64 s[40:41], L_warm_more")
            if last:
                continue
            extra = []
            if s < 6:
                extra = conv3(*divmod(2 * s, 3)) + conv3(*divmod(2 * s + 1, 3))
            elif s in (QS0 + 1, QS1 + 1):
                p = int(s == QS1 + 1)
                extra = [f"ds_read_b128 {R('a', 4 * (8 * j + 4 * p + i), 4)}, v{pQ3_} offset:{(4 * j + i) * 1024}" for j in range(3) for i in range(4)]
            if extra:
                B(f"s_cmp_lg_u32 s{sIT}, 0\ns_cbranch_scc1 L_w3x{s}")
                B("\n".join(extra) + f"\ns_waitcnt lgkmcnt(0)\nL_w3x{s}:")
            if s in (16, 20):
                p = int(s == 20)
                for j in range(3):
                    for i in range(4):
                        B(f"ds_write_b128 v{pQ3_}, {R('a', 4 * (8 * j + 4 * p + i), 4)} offset:{(4 * j + i) * 1024}")
            if s == 22:
                B(f"s_cmp_lg_u32 s{sIT}, 1\ns_cbranch_scc1 L_w3mv")
                for k in range(96):
                    B(f"v_accvgpr_mov_b32 a{k}, a{96 + k}")
                B("L_w3mv:")
        tail = [e[0] for e in lin if e[1] == 1][::4]
        if not last:
            B(f"s_add_u32 s{sWOo}, s{sWOo}, 147456")
            if cfg.trace is True:
                B(f"s_cmp_lg_u32 s{sIT}, {cfg.trace_it}\ns_cbranch_scc1 L_notr3\nv_lshlrev_b32 v1, 2, v0\ns_lshl_b32 s62, s2, 10\ns_add_u32 s62, s62, {STAMP_BASE + 768}")
                B(f"buffer_store_dword v2, v1, {srd(SWS)}, s62 offen\ns_waitcnt vmcnt(0)\nL_notr3:")
            B(f"s_add_u32 s{sIT}, s{sIT}, 1\ns_cmp_lt_u32 s{sIT}, 3\ns_cbranch_scc1 L_w3loop")
        return B.ins, tail

    b1, tail = period(False, pro)
    b2, tail2 = period(False, tail)
    assert tail == tail2 and len(b1) == len(b2) and (cfg.noload or sorted(tail) == sorted(pro))
    import re
    body = []
    for x, y in zip(b1, b2):
        if x.text != y.text:
            n = min(int(re.search(r"vmcnt\((\d+)\)", z.text).group(1)) for z in (x, y))
            x = parse(re.sub(r"vmcnt\(\d+\)", f"vmcnt({n})", x.text))
        body.append(x)
    lastp, _ = period(True, tail)
    T = Prog()
    T(f"s_cmp_ge_u32 s{sCU}, 3\ns_cbranch_scc1 L_done\ns_mov_b32 s61, 8")
    finish_unit(cfg, T, "w3", 8, 192, sCU, 61, False)
    allins, nn = hazard_pass(head + [parse("L_w3loop:")] + body + lastp + T.ins, verbose=cfg.dbg == "nops3")
    return allins, dict(w3nops=nn, w3head=est_cycles(head))


def zero16(r):
    z = R("v", NEGM + 12, 4)
    return f"{MF} {R('a', r, 16)}, {z}, {z}, 0"


QS0, QS1 = 7, 10


def compute(cfg, pl):
    addr = pl.addr
    sc = Sched(cfg)
    A = sc.out
    nsl = len(cfg.slabs)
    vS, vXo = P0, P0 + 4
    pS = pWq + [OUTV + k for k in range(4)]
    TMP = 248
    nsh = {"16x8": 16, "8x16": 8, "4x32": 4}[cfg.mapping]
    A(f"s_lshl_b32 s{sT4K}, s{sW}, 12\ns_mov_b32 s{sTHR}, {hex(f2u(cfg.thr))}")
    A(f"s_lshl_b32 s56, s{sW}, 16\ns_add_u32 s{sSL}, s{sWQo}, s56\ns_mul_i32 s56, s{sW}, 36864\ns_add_u32 s{sXW}, s{sXo}, s56")
    A(f"s_mov_b32 s{sC2}, s{sC}\ns_mov_b32 s{sC2 + 1}, s{sC}")
    slab_offsets(A, vS)
    A("v_lshrrev_b32 v1, 3, v0\nv_and_b32 v2, 7, v0\nv_lshrrev_b32 v3, 4, v0\nv_mul_u32_u24 v20, 1152, v1")
    for g in range(4):
        A(f"v_add_u32 v17, {4 * g}, v3\nv_and_b32 v17, 7, v17\nv_xor_b32 v17, v17, v2\nv_lshlrev_b32 v17, 4, v17")
        A(f"v_add_u32 v17, {g * (9216 - 1024)}, v17\nv_add_u32 v{vXo + g}, v17, v20")
    rows = 576 // nsh
    A(f"v_lshrrev_b32 v16, 3, v0\nv_lshlrev_b32 v16, 13, v16\nv_and_b32 v17, 7, v0\nv_lshl_add_u32 v16, v17, 7, v16")
    rw = rows // cfg.NR // 3
    A(f"s_and_b32 s56, s{sB}, {nsh - 1}\ns_mul_i32 s56, s56, 3\ns_add_u32 s56, s56, s{sW}\ns_mul_i32 s56, s56, {rw * 8192}\ns_add_u32 s98, s56, s{sWQo}")
    assert rw <= 8
    A(f"v_mov_b32 v17, 0x7fffff00\nv_cmp_gt_u32 vcc, {rw * 8}, v0\ns_nop 0\nv_cndmask_b32 v{P0 + 10}, v17, v16, vcc")
    if cfg.pfc:
        A(f"s_cmp_lg_u32 s{sW}, 2\ns_cbranch_scc1 L_nopfc")
        code_warm(A, NEGM + 2, NEGM + 4, cfg.codesh)
        A("L_nopfc:")
    descriptors(A)
    lin = []

    def x_request(t):
        l = [f"s_add_u32 m0, s{sT4K}, {pl.xt[t]}", f"s_add_u32 s{sTMP}, s{sXW}, {t * 128}"]
        if not cfg.noload:
            l += [(f"buffer_load_dwordx4 v{vXo + k}, {srd(SX)}, s{sTMP} offen offset:{k * 1024}{cfg.xf} lds", ("x", 4 * t)) for k in range(4)]
        return l

    def now(l):
        for o in l:
            if isinstance(o, tuple):
                A(o[0])
                lin.append(o[1])
            else:
                A(o)
    KS = cfg.KS
    rs = lambda l: [(o[0], ("c", o[1][1] // KS)) if isinstance(o, tuple) else o for o in l]
    vTA, vTB, vFA = P0 + 10, P0 + 11, P0 + 12
    tq, late_t = {}, []
    if cfg.pf:
        for r in range(cfg.NR):
            l = [f"s_add_u32 s99, s98, {r * (576 // cfg.NR) * 8192}", (f"buffer_load_dword v{NEGM}, v{vTA}, {srd(SWQ)}, s99 offen", None)]
            b = r * (NQ // KS) // cfg.NR - cfg.pflead
            if r < cfg.tfirst:
                now(l)
            elif b <= 0:
                late_t += l
            else:
                tq[b] = l
    now(rs(slab_request(cfg, 0, pl, vS, "c") + x_request(0)))
    for ks in range(1, KS):
        now(rs(slab_request(cfg, ks, pl, vS, "c")))
    rest = list(late_t)
    for ks in range(KS, nsl):
        rest += rs(slab_request(cfg, ks, pl, vS, "c"))
    if cfg.pfx:
        xr = 96 // (32 // nsh) // 3
        vTX_ = P0 + 13
        A(f"v_lshrrev_b32 v17, 2, v0\nv_mul_u32_u24 v17, 1152, v17\nv_and_b32 v{vTX_}, 3, v0\nv_lshl_add_u32 v{vTX_}, v{vTX_}, 7, v17")
        A(f"s_and_b32 s57, s{sCU}, {32 // nsh - 1}\ns_mul_i32 s57, s57, 3\ns_add_u32 s57, s57, s{sW}\ns_mul_i32 s57, s57, {xr * 1152}\ns_add_u32 s101, s57, s{sXo}")
        assert xr == 16
        tx = [(f"buffer_load_dword v{NEGM}, v{vTX_}, {srd(SX)}, s101 offen offset:{128 + 512 * i}", None) for i in range(2)]
        rest = (tx + rest) if cfg.pfx == 1 else (rest + tx)
    xreq = {}
    for t in range(1, 9):
        nxs = 1 + len(cfg.xslots)
        b = max((4 * t - cfg.xlead) // KS, (4 * (t - nxs) + 3) // KS + 1 if t >= nxs else 0)
        if b <= 0:
            rest += rs(x_request(t))
        else:
            xreq[b] = t
    A(f"v_and_b32 v{vFA}, 7, v0\nv_lshlrev_b32 v{vFA}, 2, v{vFA}")
    fo = (f"buffer_load_dword v{vFL}, v{vFA}, {srd(SWS)}, s{sFLG} offen sc1", ("c", cfg.cnt_at))
    if cfg.flagfirst:
        now([fo])
    else:
        rest.append(fo)
    if not cfg.lazy:
        now(rest)
        rest = []
    v_patterns(A)
    x16_patterns(A, pK, sT4K)
    slab_patterns(A, pS)
    A(f"v_lshlrev_b32 v{vST}, 4, v0\nv_add_u32 v{pQ}, s{sT4K}, v{vST}")
    A(f"s_mul_i32 s56, s{sPAIR}, 884736\ns_lshl_b32 s57, s{sW}, 15\ns_add_u32 s56, s56, s57\ns_lshl_b32 s57, s{sCU}, 12\ns_add_u32 s{sWSo}, s56, s57")
    if not cfg.alt:
        for i in range(4):
            A(f"v_mov_b32 v{NEGM + 12 + i}, 0")
        for i in range(128, STASH):
            if not cfg.mzero:
                A(f"v_accvgpr_write_b32 a{i}, 0")
            elif i % 16 == 0:
                A(zero16(i))
        for i in range(4, 32):
            A(f"v_mov_b32 v{OUTV + i}, 0")
    for p in pK + pV + pS + pWo + [pQ]:
        sc.bias[p] = 0
    qops, qf = [], {}
    k = -cfg.LA + 1
    for o in rest:
        qf.setdefault(min(k, 12 * KS - cfg.LB - 1), []).append(o)
        k += isinstance(o, tuple)
    for ks in range(NQ):
        k2 = ks >> 1
        xb = S0 + 8 * (k2 % 4)
        tiles = (list(range(8, 24)) + list(range(8))) if k2 < NQ // 2 - 1 else list(range(24))
        for n_, dt in enumerate(tiles[12 * (ks & 1):12 * (ks & 1) + 12]):
            a = pl.slab[2 * k2 + (dt >> 4)] + ((dt >> 3) & 1) * 256
            mm = []
            for e in range(2):
                d = R("v", O0 + 8 * dt + 4 * e, 4) if dt < 8 else R("a", 8 * (dt - 8) + 4 * e, 4)
                mm.append((d, R("v", xb + 4 * e, 4), "0" if k2 == 0 else d))
            o = dict(step=k2, a=[("tr", pS[dt & 7], a), ("tr", pS[dt & 7], a + 2048)], mm=mm)
            if n_ == 0 and not ks & 1:
                o["x"] = [(xb + 4 * e, pK[k2 & 1], pl.xt[k2 >> 1] + 2048 * e) for e in range(2)]
            qops.append(o)
        if ks % KS == 0 and ks:
            l = []
            for k2 in range(ks - KS + nsl, min(NQ, ks + nsl)):
                l += rs(slab_request(cfg, k2, pl, vS, "c"))
            if ks // KS in xreq:
                l += rs(x_request(xreq[ks // KS]))
            l += tq.get(ks // KS, [])
            k = 12 * ks - cfg.LB
            nv = sum(isinstance(o, tuple) for o in l)
            sp = min(cfg.dsp, (12 * KS - 1) / max(nv, 1))
            kk = 0
            for o in l:
                qf.setdefault(k + int(kk * sp), []).append(o)
                kk += isinstance(o, tuple)
    n = 12 * NQ
    for b in range(4):
        spread(qf, conv_q(b), n - 16 + 4 * b, n - 13 + 4 * b)
    emit_slots(cfg, sc, qops, qf, {}, -cfg.LA, n, dict(rd=0, step=-1, lin=lin, tag="c"), [], {0: 0})
    if not cfg.nobar:
        A("s_waitcnt lgkmcnt(0)\ns_barrier")
    if cfg.trace in ("head", "head2"):
        if cfg.trace == "head":
            A(f"s_memrealtime s[60:61]\ns_waitcnt lgkmcnt(0)\nv_writelane_b32 v{NEGM + 1}, s60, 36\nv_writelane_b32 v{NEGM + 1}, s101, 37")
        A(f"v_lshlrev_b32 v1, 2, v0\ns_lshl_b32 s62, s2, 10\ns_lshl_b32 s63, s{sW}, 8\ns_add_u32 s62, s62, s63\ns_add_u32 s62, s62, {STAMP_BASE}")
        A(f"buffer_store_dword v{NEGM + 1}, v1, {srd(SWS)}, s62 offen\ns_waitcnt vmcnt(0)")

    def pack(hd, ds, e):
        l = []
        for x in range(2):
            r = 64 * hd + 8 * (2 * ds + x) + 4 * e
            l += [f"v_accvgpr_read_b32 v{TMP + k}, a{r + k}" for k in range(4)]
            l += [f"v_accvgpr_write_b32 a{r + k}, 0" for k in range(4) if not (cfg.alt or cfg.mzero)]
            l += [f"v_pk_mul_f32 v[{TMP + k}:{TMP + k + 1}], v[{TMP + k}:{TMP + k + 1}], s[{sC2}:{sC2 + 1}]" for k in (0, 2)]
            l += [f"v_cvt_pk_bf16_f32 v{TMP + 4 + 2 * x + y}, v{TMP + 2 * y}, v{TMP + 2 * y + 1}" for y in range(2)]
        return l + ["s_nop 0", f"v_permlane16_swap_b32 v{TMP + 4}, v{TMP + 6}", f"v_permlane16_swap_b32 v{TMP + 5}, v{TMP + 7}"]
    lumps = {}
    for part in range(8):
        lumps[16 * (2 + part // 2) + 2 + 6 * (part & 1)] = pack(0, part >> 1, part & 1) + [
            f"v_accvgpr_write_b32 a{STASH + 4 * part + k}, v{TMP + 4 + k}" for k in range(4)]
    for p, s0 in ((0, QS0), (1, QS1)):
        for fr in range(4):
            lumps[16 * (s0 - 1 + fr // 2) + 2 + 6 * (fr & 1)] = pack(1, 2 * p + (fr >> 1), fr & 1) + [
                f"ds_write_b128 v{pQ}, {R('v', TMP + 4, 4)} offset:{fr * 1024}"]
    if cfg.onelump:
        merged = {}
        for k in sorted(lumps):
            merged.setdefault(16 * (k // 16) + 4, []).extend(lumps[k])
        lumps = merged
        if cfg.mzero and not cfg.alt:
            for n_, k in enumerate(sorted(lumps)):
                lumps[k].append(zero16(16 * n_))
    if not cfg.alt:
        for i in range(4):
            A(f"v_mov_b32 v{OUTV + i}, 0")
    k_patterns(A, False)
    wo_shift(A)
    for p in pK:
        sc.bias[p] = 0
    for p in pV + pWo:
        sc.rebias(p, 0)
    sc.rebias(pQ, QB)
    for p in pS:
        del sc.bias[p]
    bias0 = dict(sc.bias)
    sc.nbuf = 0
    ops = item_ops(addr, cfg.merge)
    st = dict(rd=0, step=-1, lin=[], tag="c")
    emit_slots(cfg, sc, ops, {}, {}, -cfg.LA, 0, st, [], {0: 1})
    assert st["rd"] == cfg.LA and 400 % cfg.NB == 0
    bias1 = dict(sc.bias)
    head, pend0 = lgkm_pass(sc.out.ins)
    assert len(pend0) == cfg.LA
    head, nh = hazard_pass(head, verbose=cfg.dbg == "nops")
    sc.out = Prog()
    fill = {}
    split = 272
    post = item_fill(cfg, ops, fill)
    for s_, l in lumps.items():
        fill.setdefault(s_, []).append(f"s_cmp_lg_u32 s{sIT}, 0\ns_cbranch_scc1 L_lump{s_}\n" + "\n".join(l) + f"\nL_lump{s_}:")
    stubs = []
    sc.out("L_item:")
    st["lin"] = []
    st["alts"] = [] if cfg.alt else None
    emit_slots(cfg, sc, ops, fill, post, 0, split, st, stubs, {16: 2})
    sc.out(f"s_cmp_lg_u32 s{sIT}, 3\ns_cbranch_scc1 L_more")
    common, pend = lgkm_pass_skips(sc.out.ins, pend0)
    common, n0 = hazard_pass(common, history=head[-20:], verbose=cfg.dbg == "nops")
    sa = copy.deepcopy(sc)
    sa.out = Prog()
    sa.out("L_warm_more:\ns_setpc_b64 s[40:41]\nL_more:")
    fa = {k: list(v) for k, v in fill.items()}
    for p, r0, m0 in ((0, 288, 302), (1, 352, 365)):
        spread(fa, [(lambda s_, i=i, p=p: s_.lds("ds_read_b128", R("v", Q0 + 16 * p + 4 * i, 4), pQ, QB + i * 1024)) for i in range(4)], r0, r0 + 3)
        mv_ = "\n".join(f"v_accvgpr_read_b32 v{Q0 + 16 * p + i}, a{STASH + 16 * p + i}" + ("" if cfg.alt or cfg.mzero else f"\nv_accvgpr_write_b32 a{STASH + 16 * p + i}, 0") for i in range(16))
        if cfg.mzero and not cfg.alt:
            mv_ += "\n" + zero16(STASH + 16 * p) + "\ns_nop 9"
        fa.setdefault(m0, []).append(f"s_cmp_lg_u32 s{sIT}, 0\ns_cbranch_scc1 L_lumpm{p}\n{mv_}\nL_lumpm{p}:")
    sta = copy.deepcopy(st)
    sta["rebias"] = bias0
    fa.setdefault(390, []).append(f"s_add_u32 s{sIT}, s{sIT}, 1")
    emit_slots(cfg, sa, copy.deepcopy(ops), fa, {}, split, 400, sta, stubs, {25: 1}, nextops=copy.deepcopy(ops[:cfg.LA]))
    assert sa.bias == bias1 and sta["rd"] == 400 + cfg.LA
    if cfg.trace is True:
        sa.out(f"s_cmp_lg_u32 s{sIT}, {cfg.trace_it + 1}\ns_cbranch_scc1 L_notr\nv_lshlrev_b32 v1, 2, v0\ns_lshl_b32 s62, s2, 10\ns_lshl_b32 s63, s{sW}, 8\ns_add_u32 s62, s62, s63\ns_add_u32 s62, s62, {STAMP_BASE}")
        sa.out(f"buffer_store_dword v2, v1, {srd(SWS)}, s62 offen\ns_waitcnt vmcnt(0)\nL_notr:")
    sa.out("s_branch L_item")
    conta, pe = lgkm_pass_skips(sa.out.ins, pend)
    assert pe == pend0[len(pend0) - len(pe):]
    conta, n1 = hazard_pass(conta, history=common[-20:], verbose=cfg.dbg == "nops")
    sb = copy.deepcopy(sc)
    sb.out = Prog()
    fb = {k: list(v) for k, v in fill.items()}
    last_fill(cfg, fb)
    emit_slots(cfg, sb, copy.deepcopy(ops), fb, {}, split, 400, dict(copy.deepcopy(st), alts=None), stubs)
    T = sb.out
    stamp(cfg, T, 3, 0)
    stamp(cfg, T, 4, 0)
    finish_unit(cfg, T, "c", 7, OUTV, sW, sCU, True)
    contb, _ = lgkm_pass(sb.out.ins, pend)
    contb, n2 = hazard_pass(contb, history=common[-20:], verbose=cfg.dbg == "nops")
    stb = Prog()
    for tag, p in stubs:
        stb(f"L_stub_{tag}:\ns_call_b64 s[40:41], L_rare{p}\ns_branch L_back_{tag}")
    info = dict(nops=(nh, n0, n1, n2), est_head=est_cycles(head), est_item=est_cycles(common + conta))
    return head + common + contb + conta + stb.ins + rare_routine(0) + rare_routine(1), info


def lgkm_pass_skips(ins, pending):
    out, seg, pend = [], [], pending
    i = 0
    while i < len(ins):
        x = ins[i]
        if x.kind == "branch" and ("L_lump" in x.text or "L_st0" in x.text or "L_st1" in x.text):
            o, pend = lgkm_pass(seg + [x], pend)
            out += o
            lab = x.text.split()[-1] + ":"
            j = next(k for k in range(i, len(ins)) if ins[k].text == lab)
            o, _ = lgkm_pass(ins[i + 1:j + 1], pend)
            out += o
            seg = []
            i = j + 1
            continue
        seg.append(x)
        i += 1
    o, pend = lgkm_pass(seg, pend)
    return out + o, pend


def generate(cfg):
    pl = plan(cfg)
    P = Prog()
    prologue(cfg, P)
    pro, _ = hazard_pass(P.ins)
    comp, info = compute(cfg, pl)
    w3, info3 = wave3(cfg, pl)
    info.update(info3)
    s = HDR + "; @launch grid=(256,1,1) block=(256,1,1) lds=163840\n"
    s += '.amdgcn_target "amdgcn-amd-amdhsa--gfx950"\n.text\n'
    s += f".globl {KNAME}\n.p2align 8\n.type {KNAME},@function\n{KNAME}:\n"
    s += render(pro) + render(comp) + render(w3) + "L_done:\n    s_endpgm\n"
    s += '.section .rodata,"a"\n.p2align 6\n' + kd(KNAME, 512, 256)
    return s, info, pl


if __name__ == "__main__":
    import build
    name = sys.argv[1]
    kw = {}
    for a in sys.argv[2:]:
        k, v = a.split("=", 1)
        try:
            v = eval(v)
        except Exception:
            pass
        kw[k] = v
    s, info, _ = generate(Cfg(**kw))
    open(name, "w").write(s)
    print(info)
    build.build(name)
```
